```python
import torch

def _softmax(x, axis=-1):
    return torch.softmax(x, dim=axis)
def _gelu(x):
    return torch.nn.functional.gelu(x, approximate="tanh")
def _silu(x):
    return torch.nn.functional.silu(x)
def _sigmoid(x):
    return torch.sigmoid(x)
def _layernorm(x, axis=-1, eps=1e-5):
    m = x.mean(dim=axis, keepdim=True)
    v = x.var(dim=axis, keepdim=True, unbiased=False)
    return (x - m) / torch.sqrt(v + eps)
def _scatter_add(tgt, idx, src, axis=0):
    return tgt.clone().index_add_(axis, idx, src)
def _segment_sum(src, seg, n):
    out = torch.zeros((n,) + src.shape[1:], dtype=src.dtype)
    return out.index_add_(0, seg, src)
def _pad(x, pw):
    flat = tuple(v for pair in reversed(pw) for v in pair)
    return torch.nn.functional.pad(x, flat)

kernel_name = 'interleave_layers__linear_attn_block__grouped_kv_mqa__prompt'

def setup_inputs():

    _w = (lambda a: (lambda t: t.to(torch.bfloat16) if t.is_floating_point() else t)(torch.as_tensor(a)))
    def _A_setup():
        B, S, D = 1, 2048, 512
        return {
            "x": _w((lambda *s: torch.randn(*s, dtype=torch.bfloat16) * 0.05)(B, S, D)),
            "wqkv": _w((lambda *s: torch.randn(*s, dtype=torch.bfloat16) * 0.05)(D, 3 * D)),
            "wo": _w((lambda *s: torch.randn(*s, dtype=torch.bfloat16) * 0.05)(D, D)),
        }
    _A_in = _A_setup()

    def _B_setup():
        B, S, D, H = 1, 2048, 512, 32
        Dh = D // H
        return {
            "x": _w((lambda *s: torch.randn(*s, dtype=torch.bfloat16) * 0.05)(B, S, D)),
            "wq": _w((lambda *s: torch.randn(*s, dtype=torch.bfloat16) * 0.1)(D, H * Dh)),
            "wk": _w((lambda *s: torch.randn(*s, dtype=torch.bfloat16) * 0.1)(D, Dh)),
            "wv": _w((lambda *s: torch.randn(*s, dtype=torch.bfloat16) * 0.05)(D, Dh)),
            "wo": _w((lambda *s: torch.randn(*s, dtype=torch.bfloat16) * 0.05)(H * Dh, D)),
        }
    _B_in = _B_setup()

    return {
        "A_x": _A_in["x"],
        "A_wqkv": _A_in["wqkv"],
        "A_wo": _A_in["wo"],
        "B_x": _B_in["x"],
        "B_wq": _B_in["wq"],
        "B_wk": _B_in["wk"],
        "B_wv": _B_in["wv"],
        "B_wo": _B_in["wo"],
    }

def reference(A_x, A_wqkv, A_wo, B_x, B_wq, B_wk, B_wv, B_wo):
    def _A_ref(x, wqkv, wo):
        B, S, D = x.shape
        H = 32; Dh = D // H
        qkv = (lambda x, *d: x.permute(*d))((x @ wqkv).reshape(B, S, 3, H, Dh), 2, 0, 3, 1, 4)
        q, k, v = qkv[0], qkv[1], qkv[2]
        phi = lambda t: torch.where(t > 0, t + 1, torch.exp(t)) + 1e-6
        pq, pk = phi(q), phi(k)
        kv = torch.einsum("bhsd,bhse->bhde", pk, v)
        z = torch.einsum("bhsd->bhd", pk)
        num = torch.einsum("bhqd,bhde->bhqe", pq, kv)
        den = torch.einsum("bhqd,bhd->bhq", pq, z)[..., None] + 1e-6
        o = num / den
        return (lambda x, *d: x.permute(*d))(o, 0, 2, 1, 3).reshape(B, S, D) @ wo

    def _B_ref(x, wq, wk, wv, wo):
        B, S, D = x.shape
        H = 32
        Dh = D // H
        q = (lambda x, *d: x.permute(*d))((x @ wq).reshape(B, S, H, Dh), 0, 2, 1, 3)
        k = x @ wk
        v = x @ wv
        scores = torch.einsum("bhqd,bkd->bhqk", q, k) * (Dh ** -0.5)
        p = _softmax(scores, axis=-1)
        o = torch.einsum("bhqk,bkd->bhqd", p, v)
        return (lambda x, *d: x.permute(*d))(o, 0, 2, 1, 3).reshape(B, S, H * Dh) @ wo

    x = A_x
    x = x + _A_ref(_layernorm(x, axis=-1), A_wqkv, A_wo)
    x = x + _B_ref(_layernorm(x, axis=-1), B_wq, B_wk, B_wv, B_wo)
    x = x + _A_ref(_layernorm(x, axis=-1), A_wqkv, A_wo)
    x = x + _B_ref(_layernorm(x, axis=-1), B_wq, B_wk, B_wv, B_wo)
    return x
```

```python
import struct, math, sys

NAME = 'interleave_layers__linear_attn_block__grouped_kv_mqa__prompt'

XF = [0x000000, 0x200000, 0x400000, 0x600000]
PQ = [0x800000, 0xA00000]
OF = [0xC00000, 0xE00000]
QF = [0x1000000, 0x1200000]
WP = 0x1400000
NT_QKV, NT_OA, NT_Q, NT_OB = 0, 48, 64, 80
WKV16 = 0x1700000
KF = [0x1800000, 0x1840000]
VF = [0x1810000, 0x1850000]
KMAX = [0x1820000, 0x1860000]
KVACC = [0x1900000, 0x1910000]
ZACC = [0x1908000, 0x1918000]
WS_BYTES = 0x10000000

def f2u(x):
    return struct.unpack('<I', struct.pack('<f', x))[0]

LOG2E = math.log2(math.e)
CQ = 0.25 * LOG2E

class Asm:
    def __init__(self):
        self.l = []
        self.uid = 0
    def __call__(self, s):
        for line in s.strip('\n').split('\n'):
            self.l.append('    ' + line.strip())
    def label(self, s):
        self.l.append(s + ':')
    def raw(self, s):
        self.l.append(s)
    def nop(self, n):
        while n > 0:
            k = min(n, 16)
            self('s_nop %d' % (k - 1))
            n -= k
    def newlabel(self, p='L'):
        self.uid += 1
        return '%s_%d' % (p, self.uid)
    def text(self):
        return '\n'.join(self.l) + '\n'

def vr(b, n=4):
    return 'v[%d:%d]' % (b, b + n - 1)

S_WS = 4
S_IN = 8
S_IN2 = 12
S_RB, S_CS, S_W, S_I, S_J, S_KH = 16, 17, 18, 19, 20, 21
S_BLK = 22
S_T0, S_T1, S_T2, S_T3, S_T4, S_T5 = 24, 25, 26, 27, 28, 29
S_MASK_LO16 = 30
S_MASK_Z = 32
S_PTR = 40
V_TID, V_LANE, V_L16, V_L16X = 0, 1, 2, 3
V_XA = 4
V_T = 5
V_ONES = 16
V_RES = 20
V_ST = 17
V_CS = 18
V_XF = 28
V_ACC = 44
V_W = 96
V_W2 = 160

LDS_X = 0
LDS_RED = 65536
LDS_STAT = 65536 + 49152
LDS_CSX = LDS_STAT + 1024
LDS_PKV = LDS_CSX + 6144 + 1024
LDS_PKV = (LDS_PKV + 1023) // 1024 * 1024
LDS_U = LDS_PKV + 16384
LDS_TOTAL = LDS_U + 8192 + 2048 + 256


def kernel_begin(a, name):
    a.raw('.globl %s' % name)
    a.raw('.p2align 8')
    a.raw('.type %s,@function' % name)
    a.label(name)
    end = name + '_end'
    a('s_cmp_ge_u32 s2, 256')
    a('s_cbranch_scc1 %s' % end)
    a('s_load_dwordx16 s[40:55], s[0:1], 0')
    a('s_load_dwordx4 s[56:59], s[0:1], 64')
    a('s_load_dwordx2 s[60:61], s[0:1], 80')
    a('s_and_b32 s%d, s2, 7' % S_RB)
    a('s_lshl_b32 s%d, s%d, 2' % (S_RB, S_RB))
    a('s_lshr_b32 s%d, s2, 6' % S_T0)
    a('s_add_u32 s%d, s%d, s%d' % (S_RB, S_RB, S_T0))
    a('s_bfe_u32 s%d, s2, 0x30003' % S_CS)
    a('v_lshrrev_b32 v%d, 6, v0' % V_T)
    a('v_and_b32 v%d, 63, v0' % V_LANE)
    a('s_nop 0')
    a('v_readfirstlane_b32 s%d, v%d' % (S_W, V_T))
    a('v_lshlrev_b32 v%d, 4, v%d' % (V_L16, V_LANE))
    a('s_nop 3')
    a('s_and_b32 s%d, s%d, 1' % (S_I, S_W))
    a('s_bfe_u32 s%d, s%d, 0x10001' % (S_J, S_W))
    a('s_lshr_b32 s%d, s%d, 2' % (S_KH, S_W))
    a('s_lshl_b32 s%d, s%d, 8' % (S_T0, S_KH))
    a('v_xor_b32 v%d, s%d, v%d' % (V_L16X, S_T0, V_L16))
    a('s_lshl_b32 s%d, s%d, 1' % (S_T0, S_RB))
    a('s_add_u32 s%d, s%d, s%d' % (S_T0, S_T0, S_I))
    a('s_lshl_b32 s%d, s%d, 5' % (S_T0, S_T0))
    a('s_lshl_b32 s%d, s%d, 2' % (S_T1, S_CS))
    a('s_add_u32 s%d, s%d, s%d' % (S_T0, S_T0, S_T1))
    a('s_lshl_b32 s%d, s%d, 1' % (S_T1, S_J))
    a('s_add_u32 s%d, s%d, s%d' % (S_T0, S_T0, S_T1))
    a('s_add_u32 s%d, s%d, s%d' % (S_T0, S_T0, S_KH))
    a('s_lshl_b32 s%d, s%d, 10' % (S_BLK, S_T0))
    a('s_lshl_b32 s%d, s%d, 15' % (S_T0, S_I))
    a('s_lshl_b32 s%d, s%d, 14' % (S_T1, S_KH))
    a('s_add_u32 s%d, s%d, s%d' % (S_T0, S_T0, S_T1))
    a('v_add_u32 v%d, s%d, v%d' % (V_XA, S_T0, V_L16))
    a('v_mov_b32 v%d, 0x3f803f80' % V_ONES)
    a('s_mov_b32 s%d, 0x0000ffff' % S_MASK_LO16)
    a('s_mov_b32 s%d, 0x0000ffff' % (S_MASK_LO16 + 1))
    a('s_mov_b32 s%d, 0x00110011' % S_MASK_Z)
    a('s_mov_b32 s%d, 0x00110011' % (S_MASK_Z + 1))
    a('s_waitcnt lgkmcnt(0)')
    a('s_mov_b32 s%d, s60' % S_WS)
    a('s_mov_b32 s%d, s61' % (S_WS + 1))
    a('s_mov_b32 s%d, 0x%x' % (S_WS + 2, WS_BYTES))
    a('s_mov_b32 s%d, 0x00020000' % (S_WS + 3))


def kernel_end(a, name, nv=256):
    a.label(name + '_end')
    a('s_endpgm')
    a.raw('.section .rodata,"a"')
    a.raw('.p2align 6')
    a.raw('.amdhsa_kernel %s' % name)
    a.raw('  .amdhsa_next_free_vgpr %d' % nv)
    a.raw('  .amdhsa_next_free_sgpr 96')
    a.raw('  .amdhsa_accum_offset %d' % ((nv + 3) // 4 * 4))
    a.raw('  .amdhsa_group_segment_fixed_size 0')
    a.raw('  .amdhsa_kernarg_size 88')
    a.raw('  .amdhsa_user_sgpr_count 2')
    a.raw('  .amdhsa_user_sgpr_kernarg_segment_ptr 1')
    a.raw('  .amdhsa_system_sgpr_workgroup_id_x 1')
    a.raw('  .amdhsa_float_denorm_mode_32 3')
    a.raw('.end_amdhsa_kernel')
    a.raw('.text')


def srd(a, d, ptr_s, nbytes):
    a('s_mov_b32 s%d, s%d' % (d, ptr_s))
    a('s_mov_b32 s%d, s%d' % (d + 1, ptr_s + 1))
    a('s_mov_b32 s%d, 0x%x' % (d + 2, nbytes))
    a('s_mov_b32 s%d, 0x00020000' % (d + 3))

WSR = 's[%d:%d]' % (S_WS, S_WS + 3)

def pack_block(a, sb):
    L_kv = a.newlabel('pk_kv'); L_go = a.newlabel('pk_go'); L_done = a.newlabel('pk_done')
    a('s_cmp_ge_u32 s%d, 3104' % sb)
    a('s_cbranch_scc1 %s' % L_done)
    a('s_cmp_ge_u32 s%d, 3072' % sb)
    a('s_cbranch_scc1 %s' % L_kv)
    a('s_lshr_b32 s%d, s%d, 5' % (S_T0, sb))
    a('s_and_b32 s%d, s%d, 31' % (S_T1, sb))
    a('s_mov_b32 s8, s42\ns_mov_b32 s9, s43\ns_mov_b32 s10, 0x180000\ns_mov_b32 s11, 0x00020000')
    a('s_mov_b32 s%d, 3072' % S_T2)
    a('s_mov_b32 s%d, s%d' % (S_T3, S_T0))
    for (nt0, p) in ((NT_OA, 44), (NT_Q, 48), (NT_OB, 54)):
        a('s_cmp_ge_u32 s%d, %d' % (S_T0, nt0))
        a('s_cselect_b32 s8, s%d, s8' % p)
        a('s_cselect_b32 s9, s%d, s9' % (p + 1))
        a('s_cselect_b32 s10, 0x80000, s10')
        a('s_cselect_b32 s%d, 1024, s%d' % (S_T2, S_T2))
        a('s_sub_u32 s%d, s%d, %d' % (S_T4, S_T0, nt0))
        a('s_cmp_ge_u32 s%d, %d' % (S_T0, nt0))
        a('s_cselect_b32 s%d, s%d, s%d' % (S_T3, S_T4, S_T3))
    a('v_lshrrev_b32 v5, 5, v%d' % V_LANE)
    a('v_lshlrev_b32 v5, 2, v5')
    a('s_lshl_b32 s%d, s%d, 4' % (S_T1, S_T1))
    a('v_add_u32 v5, s%d, v5' % S_T1)
    a('v_mul_lo_u32 v5, v5, s%d' % S_T2)
    a('v_and_b32 v6, 31, v%d' % V_LANE)
    a('s_lshl_b32 s%d, s%d, 5' % (S_T3, S_T3))
    a('v_add_u32 v6, s%d, v6' % S_T3)
    a('v_lshl_add_u32 v5, v6, 1, v5')
    a('s_lshl_b32 s%d, s%d, 10' % (S_T5, sb))
    a('s_add_u32 s%d, s%d, 0x%x' % (S_T5, S_T5, WP))
    a('s_branch %s' % L_go)
    a.label(L_kv)
    a('s_sub_u32 s%d, s%d, 3072' % (S_T0, sb))
    a('s_and_b32 s%d, s%d, 15' % (S_T1, S_T0))
    a('s_cmp_ge_u32 s%d, 16' % S_T0)
    a('s_cselect_b32 s8, s52, s50\ns_cselect_b32 s9, s53, s51\ns_mov_b32 s10, 0x4000\ns_mov_b32 s11, 0x00020000')
    a('s_mov_b32 s%d, 32' % S_T2)
    a('v_lshrrev_b32 v5, 5, v%d' % V_LANE)
    a('v_lshlrev_b32 v5, 4, v5')
    a('v_bfe_u32 v6, v%d, 4, 1' % V_LANE)
    a('v_lshl_add_u32 v5, v6, 2, v5')
    a('s_lshl_b32 s%d, s%d, 5' % (S_T1, S_T1))
    a('v_add_u32 v5, s%d, v5' % S_T1)
    a('v_lshlrev_b32 v5, 5, v5')
    a('v_and_b32 v6, 15, v%d' % V_LANE)
    a('v_lshl_add_u32 v5, v6, 1, v5')
    a('s_lshl_b32 s%d, s%d, 10' % (S_T5, S_T0))
    a('s_add_u32 s%d, s%d, 0x%x' % (S_T5, S_T5, WKV16))
    a.label(L_go)
    for jj in range(8):
        rd = (jj & 3) + 8 * (jj >> 2)
        a('s_mul_i32 s%d, s%d, %d' % (64 + jj, S_T2, rd))
    for jj in range(8):
        a('buffer_load_ushort v%d, v5, s[8:11], s%d offen' % (32 + jj, 64 + jj))
    a('s_waitcnt vmcnt(0)')
    for q in range(4):
        a('v_lshl_or_b32 v%d, v%d, 16, v%d' % (8 + q, 33 + 2 * q, 32 + 2 * q))
    a('buffer_store_dwordx4 v[8:11], v%d, %s, s%d offen' % (V_L16, WSR, S_T5))
    a('s_waitcnt vmcnt(0)')
    a.label(L_done)


def k_pack(a, name):
    kernel_begin(a, name)
    a('s_lshl_b32 s34, s2, 3')
    a('s_add_u32 s34, s34, s%d' % S_W)
    srd(a, S_IN2, 40, 0x200000)
    a('s_lshr_b32 s%d, s34, 5' % S_T0)
    a('s_and_b32 s%d, s34, 31' % S_T1)
    a('v_and_b32 v5, 31, v%d' % V_LANE)
    a('s_lshl_b32 s%d, s%d, 5' % (S_T0, S_T0))
    a('v_add_u32 v5, s%d, v5' % S_T0)
    a('v_lshlrev_b32 v5, 10, v5')
    a('v_lshrrev_b32 v6, 5, v%d' % V_LANE)
    a('v_lshl_add_u32 v5, v6, 3, v5')
    a('s_lshl_b32 s%d, s%d, 5' % (S_T1, S_T1))
    a('buffer_load_dwordx2 v[8:9], v5, s[12:15], s%d offen' % S_T1)
    a('buffer_load_dwordx2 v[10:11], v5, s[12:15], s%d offen offset:16' % S_T1)
    a('s_lshl_b32 s%d, s34, 10' % S_T5)
    a('s_add_u32 s%d, s%d, 0x%x' % (S_T5, S_T5, XF[0]))
    a('s_waitcnt vmcnt(0)')
    a('buffer_store_dwordx4 v[8:11], v%d, %s, s%d offen' % (V_L16, WSR, S_T5))
    a('s_waitcnt vmcnt(0)')
    pack_block(a, 34)
    a('s_add_u32 s35, s34, 2048')
    pack_block(a, 35)
    L = a.newlabel('pk_z')
    a('s_cmp_ge_u32 s34, 68')
    a('s_cbranch_scc1 %s' % L)
    a('s_cmp_ge_u32 s34, 34')
    a('s_cselect_b32 s%d, 0x%x, 0' % (S_T0, KVACC[1] - 34 * 1024 - KVACC[0]))
    a('s_add_u32 s%d, s%d, 0x%x' % (S_T0, S_T0, KVACC[0]))
    a('s_lshl_b32 s%d, s34, 10' % S_T1)
    a('s_add_u32 s%d, s%d, s%d' % (S_T0, S_T0, S_T1))
    a('v_mov_b32 v8, 0\nv_mov_b32 v9, 0\nv_mov_b32 v10, 0\nv_mov_b32 v11, 0')
    a('buffer_store_dwordx4 v[8:11], v%d, %s, s%d offen' % (V_L16, WSR, S_T0))
    a('s_waitcnt vmcnt(0)')
    a.label(L)
    kernel_end(a, name)

def load_w(a, vbase, nt0):
    a('s_lshl_b32 s%d, s%d, 1' % (S_T0, S_CS))
    a('s_add_u32 s%d, s%d, s%d' % (S_T0, S_T0, S_J))
    a('s_lshl_b32 s%d, s%d, 15' % (S_T0, S_T0))
    a('s_lshl_b32 s%d, s%d, 14' % (S_T1, S_KH))
    a('s_add_u32 s%d, s%d, s%d' % (S_T0, S_T0, S_T1))
    a('s_add_u32 s%d, s%d, 0x%x' % (S_T0, S_T0, WP + nt0 * 0x8000))
    for t in range(16):
        if t and t % 4 == 0:
            a('s_add_u32 s%d, s%d, 4096' % (S_T0, S_T0))
        a('buffer_load_dwordx4 %s, v%d, %s, s%d offen offset:%d' % (vr(vbase + 4 * t), V_L16X, WSR, S_T0, (t % 4) * 1024))


def dma_x(a, base, nblk=8, lds0=LDS_X, gstride=65536, sgsel=S_RB):
    a('s_mul_i32 s%d, s%d, %d' % (S_T0, sgsel, gstride))
    a('s_lshl_b32 s%d, s%d, %d' % (S_T1, S_W, int(math.log2(nblk * 1024))))
    a('s_add_u32 s%d, s%d, s%d' % (S_T0, S_T0, S_T1))
    a('s_add_u32 s%d, s%d, 0x%x' % (S_T0, S_T0, base))
    a('s_add_u32 s%d, s%d, %d' % (S_T1, S_T1, lds0))
    for t in range(nblk):
        if t % 4 == 0:
            if t:
                a('s_add_u32 s%d, s%d, 4096' % (S_T0, S_T0))
                a('s_add_u32 s%d, s%d, 4096' % (S_T1, S_T1))
            a('s_mov_b32 m0, s%d' % S_T1)
            a('s_nop 0')
        a('buffer_load_dwordx4 v%d, %s, s%d offen offset:%d lds' % (V_L16, WSR, S_T0, (t % 4) * 1024))


def colsum(a, vw, vcs):
    a('v_mov_b32 v%d, 0' % vcs)
    a('s_nop 1')
    for r in range(64):
        a('v_dot2_f32_bf16 v%d, v%d, v%d, v%d' % (vcs, vw + r, V_ONES, vcs))
    a.nop(3)


def kloop(a, groups, stats):
    if stats:
        a('v_mov_b32 v%d, 0' % V_ST)
    for t in range(4):
        a('ds_read_b128 %s, v%d offset:%d' % (vr(V_XF + 4 * t), V_XA, t * 1024))
    for t in range(16):
        xf = V_XF + 4 * (t % 4)
        outstanding_after = min(3, 15 - t)
        a('s_waitcnt lgkmcnt(%d)' % outstanding_after)
        for (acc, w) in groups:
            c = '0' if t == 0 else vr(acc, 16)
            a('v_mfma_f32_32x32x16_bf16 %s, %s, %s, %s' % (vr(acc, 16), vr(w + 4 * t), vr(xf), c))
        if stats:
            for r in range(4):
                b = V_ONES if stats == 'sum' else xf + r
                a('v_dot2_f32_bf16 v%d, v%d, v%d, v%d' % (V_ST, xf + r, b, V_ST))
        if t + 4 < 16:
            a('ds_read_b128 %s, v%d offset:%d' % (vr(xf), V_XA, (t + 4) * 1024))


def kloop_j(a, groups, stats):
    if not stats:
        kloop(a, groups, None)
        return
    L1 = a.newlabel('kl_sq'); L2 = a.newlabel('kl_done')
    a('s_cmp_eq_u32 s%d, 1' % S_J)
    a('s_cbranch_scc1 %s' % L1)
    kloop(a, groups, 'sum')
    a('s_branch %s' % L2)
    a.label(L1)
    kloop(a, groups, 'sq')
    a.label(L2)


def halves_sum(a, v, tmp, op='v_add_f32'):
    a('v_mov_b32 v%d, v%d' % (tmp, v))
    a('s_nop 1')
    a('v_permlane32_swap_b32 v%d, v%d' % (v, tmp))
    a('s_nop 1')
    a('%s v%d, v%d, v%d' % (op, v, v, tmp))


def write_stats(a):
    a.nop(3)
    halves_sum(a, V_ST, 5)
    a('s_lshl_b32 s%d, s%d, 9' % (S_T0, S_J))
    a('s_lshl_b32 s%d, s%d, 8' % (S_T1, S_KH))
    a('s_add_u32 s%d, s%d, s%d' % (S_T0, S_T0, S_T1))
    a('s_lshl_b32 s%d, s%d, 7' % (S_T1, S_I))
    a('s_add_u32 s%d, s%d, s%d' % (S_T0, S_T0, S_T1))
    a('v_and_b32 v5, 31, v%d' % V_LANE)
    a('v_lshlrev_b32 v5, 2, v5')
    a('s_add_u32 s%d, s%d, %d' % (S_T0, S_T0, LDS_STAT))
    a('v_add_u32 v5, s%d, v5' % S_T0)
    a('ds_write_b32 v5, v%d' % (V_ST))


def bf16r(a, v):
    a('v_cvt_pk_bf16_f32 v%d, v%d, v%d' % (v, v, v))
    a('v_and_b32 v%d, 0xffff0000, v%d' % (v, v))


def read_stats(a, vaddr, vm, vrstd, t0):
    a('ds_read2_b32 v[%d:%d], v%d offset0:%d offset1:%d' % (t0, t0 + 1, vaddr, 0, 64))
    a('ds_read2_b32 v[%d:%d], v%d offset0:%d offset1:%d' % (t0 + 2, t0 + 3, vaddr, 128, 192))
    a('s_waitcnt lgkmcnt(0)')
    a('v_add_f32 v%d, v%d, v%d' % (vm, t0, t0 + 1))
    a('v_add_f32 v%d, v%d, v%d' % (vrstd, t0 + 2, t0 + 3))
    a('v_mul_f32 v%d, 0x%x, v%d' % (vm, f2u(1.0 / 512), vm))
    a('v_mul_f32 v%d, 0x%x, v%d' % (vrstd, f2u(1.0 / 512), vrstd))
    a('v_fma_f32 v%d, -v%d, v%d, v%d' % (vrstd, vm, vm, vrstd))
    a('v_max_f32 v%d, 0, v%d' % (vrstd, vrstd))
    bf16r(a, vrstd)
    a('v_add_f32 v%d, 0x%x, v%d' % (vrstd, f2u(1e-5), vrstd))
    bf16r(a, vrstd)
    a('v_sqrt_f32 v%d, v%d' % (vrstd, vrstd))
    a('s_nop 0')
    bf16r(a, vrstd)
    a('v_rcp_f32 v%d, v%d' % (vrstd, vrstd))
    bf16r(a, vm)


def make_csfrag(a, vc, d, t):
    a('v_cvt_pk_bf16_f32 v%d, v%d, v%d' % (t, vc, vc))
    a('v_and_b32 v%d, 0xffff0000, v%d' % (t, t))
    a('v_sub_f32 v%d, v%d, v%d' % (t + 1, vc, t))
    a('v_cvt_pk_bf16_f32 v%d, v%d, v%d' % (d, t, t + 1))
    a('v_and_b32 v%d, 0xffff0000, v%d' % (t, d))
    a('v_sub_f32 v%d, v%d, v%d' % (t + 1, t + 1, t))
    a('v_cvt_pk_bf16_f32 v%d, v%d, 0' % (d + 1, t + 1))
    a('v_mov_b32 v%d, 0' % (d + 2))
    a('v_mov_b32 v%d, 0' % (d + 3))


def make_mfrag(a, vm, d):
    a('v_cvt_pk_bf16_f32 v%d, -v%d, -v%d' % (d, vm, vm))
    a('v_cvt_pk_bf16_f32 v%d, -v%d, -v%d' % (d + 1, vm, vm))
    a('v_mov_b32 v%d, 0' % (d + 2))
    a('v_mov_b32 v%d, 0' % (d + 3))


def red_write(a, accs, css):
    a('s_mul_i32 s%d, s%d, 6144' % (S_T0, S_W))
    a('v_add_u32 v5, s%d, v%d' % (S_T0, V_L16))
    a('v_add_u32 v5, %d, v5' % LDS_RED)
    for g, acc in enumerate(accs):
        a('ds_write_b128 v5, %s offset:%d' % (vr(acc + 8), g * 2048))
        a('ds_write_b128 v5, %s offset:%d' % (vr(acc + 12), g * 2048 + 1024))
    if css:
        a('s_mul_i32 s%d, s%d, 768' % (S_T0, S_W))
        a('s_add_u32 s%d, s%d, %d' % (S_T0, S_T0, LDS_CSX))
        a('v_lshlrev_b32 v6, 2, v%d' % V_LANE)
        a('v_add_u32 v6, s%d, v6' % S_T0)
        for g, c in enumerate(css):
            a('ds_write_b32 v6, v%d offset:%d' % (c, g * 256))


def red_read(a, accs, css, tmp):
    a('s_xor_b32 s%d, s%d, 4' % (S_T1, S_W))
    a('s_mul_i32 s%d, s%d, 6144' % (S_T0, S_T1))
    a('s_add_u32 s%d, s%d, %d' % (S_T0, S_T0, LDS_RED))
    a('v_add_u32 v5, s%d, v%d' % (S_T0, V_L16))
    for g, acc in enumerate(accs):
        a('ds_read_b128 %s, v5 offset:%d' % (vr(acc + 8), g * 2048))
        a('ds_read_b128 %s, v5 offset:%d' % (vr(acc + 12), g * 2048 + 1024))
    if css:
        a('s_mul_i32 s%d, s%d, 768' % (S_T0, S_T1))
        a('s_add_u32 s%d, s%d, %d' % (S_T0, S_T0, LDS_CSX))
        a('v_xor_b32 v6, 16, v%d' % V_LANE)
        a('v_lshlrev_b32 v6, 2, v6')
        a('v_add_u32 v6, s%d, v6' % S_T0)
        for g, c in enumerate(css):
            a('ds_read_b32 v%d, v6 offset:%d' % (tmp + g, g * 256))
    a('s_waitcnt lgkmcnt(0)')
    for g, acc in enumerate(accs):
        for r in range(0, 8, 2):
            a('v_pk_add_f32 v[%d:%d], v[%d:%d], v[%d:%d]' % (acc + r, acc + r + 1, acc + r, acc + r + 1, acc + 8 + r, acc + 9 + r))
    for g, c in enumerate(css or []):
        a('v_add_f32 v%d, v%d, v%d' % (c, c, tmp + g))


def barrier(a):
    a('s_waitcnt lgkmcnt(0)')
    a('s_barrier')


def ln_finish(a, accs, css, VM=10, VR=11):
    a('v_and_b32 v5, 31, v%d' % V_LANE)
    a('s_lshl_b32 s%d, s%d, 5' % (S_T0, S_I))
    a('v_add_u32 v5, s%d, v5' % S_T0)
    a('v_lshlrev_b32 v5, 2, v5')
    a('v_add_u32 v5, %d, v5' % LDS_STAT)
    read_stats(a, 5, VM, VR, 6)
    mf = V_XF
    make_mfrag(a, VM, mf)
    for g, (acc, c) in enumerate(zip(accs, css)):
        cf = V_XF + 4 + 4 * g
        make_csfrag(a, c, cf, 6)
    a('s_nop 1')
    for g, (acc, c) in enumerate(zip(accs, css)):
        cf = V_XF + 4 + 4 * g
        a('v_mfma_f32_32x32x16_bf16 %s, %s, %s, %s' % (vr(acc, 16), vr(cf), vr(mf), vr(acc, 16)))
    a.nop(16)


def phi_pack(a, acc, VR, dst, tl):
    a('v_mul_f32 v%d, 0x%x, v%d' % (tl, f2u(LOG2E), VR))
    for r in range(8):
        a('v_mul_f32 v%d, v%d, v%d' % (acc + 8 + r, acc + r, tl))
    for r in range(8):
        a('v_exp_f32_e64 v%d, v%d clamp' % (acc + 8 + r, acc + 8 + r))
    for r in range(8):
        a('v_fmaak_f32 v%d, v%d, v%d, 0x%x' % (acc + r, acc + r, VR, f2u(1e-6)))
        a('v_max_f32 v%d, 0x%x, v%d' % (acc + r, f2u(1e-6), acc + r))
    for r in range(8):
        a('v_add_f32 v%d, v%d, v%d' % (acc + r, acc + r, acc + 8 + r))
    for r in range(4):
        a('v_cvt_pk_bf16_f32 v%d, v%d, v%d' % (dst + r, acc + 2 * r, acc + 2 * r + 1))


def scale_pack(a, acc, VR, dst):
    for r in range(8):
        a('v_mul_f32 v%d, v%d, v%d' % (acc + r, acc + r, VR))
    for r in range(4):
        a('v_cvt_pk_bf16_f32 v%d, v%d, v%d' % (dst + r, acc + 2 * r, acc + 2 * r + 1))


def store_blk(a, v, base, flags=''):
    a('s_add_u32 s%d, s%d, 0x%x' % (S_T0, S_BLK, base))
    a('buffer_store_dwordx4 %s, v%d, %s, s%d offen%s' % (vr(v), V_L16, WSR, S_T0, flags))


def load_blk(a, v, base, flags=''):
    a('s_add_u32 s%d, s%d, 0x%x' % (S_T0, S_BLK, base))
    a('buffer_load_dwordx4 %s, v%d, %s, s%d offen%s' % (vr(v), V_L16, WSR, S_T0, flags))

def k_a1(a, name, layer):
    kernel_begin(a, name)
    xin = XF[2 * layer]
    dma_x(a, xin)
    AK, AV, AQ = V_ACC, V_ACC + 16, V_ACC + 32
    CK, CV, CQ_ = 18, 19, 24
    load_w(a, V_W, NT_QKV + 16)
    load_w(a, V_W2, NT_QKV + 32)
    a('s_waitcnt vmcnt(0)')
    a('s_barrier')
    colsum(a, V_W, CK)
    colsum(a, V_W2, CV)
    kloop_j(a, [(AK, V_W), (AV, V_W2)], True)
    write_stats(a)
    a.nop(12)
    load_w(a, V_W, NT_QKV + 0)
    a('s_waitcnt vmcnt(0)')
    colsum(a, V_W, CQ_)
    kloop(a, [(AQ, V_W)], None)
    a.nop(16)
    red_write(a, [AK, AV, AQ], [CK, CV, CQ_])
    barrier(a)
    red_read(a, [AK, AV, AQ], [CK, CV, CQ_], 7)
    ln_finish(a, [AK, AV, AQ], [CK, CV, CQ_])
    VR = 11
    phi_pack(a, AQ, VR, V_XF, 12)
    store_blk(a, V_XF, PQ[layer])
    phi_pack(a, AK, VR, V_XF + 4, 12)
    scale_pack(a, AV, VR, V_XF + 8)
    a('s_lshl_b32 s%d, s%d, 12' % (S_T0, S_J))
    a('s_lshl_b32 s%d, s%d, 11' % (S_T1, S_KH))
    a('s_add_u32 s%d, s%d, s%d' % (S_T0, S_T0, S_T1))
    a('s_lshl_b32 s%d, s%d, 10' % (S_T1, S_I))
    a('s_add_u32 s%d, s%d, s%d' % (S_T0, S_T0, S_T1))
    a('s_add_u32 s%d, s%d, %d' % (S_T0, S_T0, LDS_PKV))
    a('v_and_b32 v5, 31, v%d' % V_LANE)
    a('v_lshlrev_b32 v5, 5, v5')
    a('v_lshrrev_b32 v6, 5, v%d' % V_LANE)
    a('v_lshl_add_u32 v5, v6, 4, v5')
    a('v_add_u32 v5, s%d, v5' % S_T0)
    a('ds_write_b128 v5, %s' % vr(V_XF + 4))
    a('ds_write_b128 v5, %s offset:8192' % vr(V_XF + 8))
    barrier(a)
    Lend = a.newlabel('a1_skip')
    a('s_cmp_ge_u32 s%d, 2' % S_W)
    a('s_cbranch_scc1 %s' % Lend)
    a('v_bfe_u32 v5, v%d, 4, 1' % V_LANE)
    a('v_lshlrev_b32 v5, 11, v5')
    a('v_lshrrev_b32 v6, 5, v%d' % V_LANE)
    a('v_lshl_add_u32 v5, v6, 8, v5')
    a('v_bfe_u32 v6, v%d, 2, 2' % V_LANE)
    a('v_lshl_add_u32 v5, v6, 5, v5')
    a('v_and_b32 v6, 1, v%d' % V_LANE)
    a('v_lshl_add_u32 v5, v6, 4, v5')
    a('v_bfe_u32 v6, v%d, 1, 1' % V_LANE)
    a('v_lshl_add_u32 v5, v6, 3, v5')
    a('s_lshl_b32 s%d, s%d, 12' % (S_T0, S_W))
    a('s_add_u32 s%d, s%d, %d' % (S_T0, S_T0, LDS_PKV))
    a('v_add_u32 v5, s%d, v5' % S_T0)
    PA, PB = V_W, V_W + 16
    for sl in range(4):
        for u in range(2):
            a('ds_read_b64_tr_b16 v[%d:%d], v5 offset:%d' % (PA + 4 * sl + 2 * u, PA + 4 * sl + 2 * u + 1, sl * 512 + u * 128))
            a('ds_read_b64_tr_b16 v[%d:%d], v5 offset:%d' % (PB + 4 * sl + 2 * u, PB + 4 * sl + 2 * u + 1, 8192 + sl * 512 + u * 128))
    a('v_mov_b32 v%d, 0' % V_ST)
    a('s_waitcnt lgkmcnt(0)')
    D = V_ACC
    for sl in range(4):
        c = '0' if sl == 0 else vr(D, 16)
        a('v_mfma_f32_32x32x16_bf16 %s, %s, %s, %s' % (vr(D, 16), vr(PA + 4 * sl), vr(PB + 4 * sl), c))
    for r in range(16):
        a('v_dot2_f32_bf16 v%d, v%d, v%d, v%d' % (V_ST, PA + r, V_ONES, V_ST))
    a.nop(3)
    halves_sum(a, V_ST, 6)
    a.nop(8)
    for r in range(8):
        a('v_cndmask_b32_e64 v%d, v%d, v%d, s[%d:%d]' % (D + r, D + 8 + r, D + r, S_MASK_LO16, S_MASK_LO16 + 1))
    a('s_lshl_b32 s%d, s%d, 1' % (S_T0, S_CS))
    a('s_add_u32 s%d, s%d, s%d' % (S_T0, S_T0, S_W))
    a('s_lshl_b32 s%d, s%d, 11' % (S_T1, S_T0))
    a('s_add_u32 s%d, s%d, 0x%x' % (S_T1, S_T1, KVACC[layer]))
    a('v_lshlrev_b32 v5, 2, v%d' % V_LANE)
    for r in range(8):
        a('buffer_atomic_add_f32 v%d, v5, %s, s%d offen offset:%d' % (D + r, WSR, S_T1, r * 256))
    a('v_bfe_u32 v5, v%d, 4, 1' % V_LANE)
    a('v_lshlrev_b32 v5, 6, v5')
    a('v_bfe_u32 v6, v%d, 2, 1' % V_LANE)
    a('v_lshl_add_u32 v5, v6, 5, v5')
    a('v_and_b32 v6, 3, v%d' % V_LANE)
    a('v_lshl_add_u32 v5, v6, 2, v5')
    a('v_bfe_u32 v6, v%d, 3, 1' % V_LANE)
    a('v_lshl_add_u32 v5, v6, 4, v5')
    a('s_lshl_b32 s%d, s%d, 7' % (S_T1, S_T0))
    a('s_add_u32 s%d, s%d, 0x%x' % (S_T1, S_T1, ZACC[layer]))
    a('s_mov_b32 exec_hi, 0')
    a('buffer_atomic_add_f32 v%d, v5, %s, s%d offen' % (V_ST, WSR, S_T1))
    a('s_mov_b32 exec_hi, -1')
    a.label(Lend)
    a('s_waitcnt vmcnt(0)')
    kernel_end(a, name)

def resid_epilogue(a, acc, out_base, final):
    for r in range(4):
        a('v_lshlrev_b32 v%d, 16, v%d' % (acc + 8 + 2 * r, V_RES + r))
        a('v_and_b32 v%d, 0xffff0000, v%d' % (acc + 9 + 2 * r, V_RES + r))
    for r in range(8):
        a('v_add_f32 v%d, v%d, v%d' % (acc + r, acc + r, acc + 8 + r))
    for r in range(4):
        a('v_cvt_pk_bf16_f32 v%d, v%d, v%d' % (V_RES + r, acc + 2 * r, acc + 2 * r + 1))
    if not final:
        store_blk(a, V_RES, out_base)
    else:
        srd(a, S_IN2, 56, 0x200000)
        a('s_nop 1')
        a('v_permlane32_swap_b32 v%d, v%d' % (V_RES, V_RES + 2))
        a('v_permlane32_swap_b32 v%d, v%d' % (V_RES + 1, V_RES + 3))
        a('v_and_b32 v5, 31, v%d' % V_LANE)
        a('v_lshlrev_b32 v5, 10, v5')
        a('v_lshrrev_b32 v6, 5, v%d' % V_LANE)
        a('v_lshl_add_u32 v5, v6, 4, v5')
        a('s_lshl_b32 s%d, s%d, 16' % (S_T0, S_RB))
        a('s_lshl_b32 s%d, s%d, 15' % (S_T1, S_I))
        a('s_add_u32 s%d, s%d, s%d' % (S_T0, S_T0, S_T1))
        a('s_lshl_b32 s%d, s%d, 7' % (S_T1, S_CS))
        a('s_add_u32 s%d, s%d, s%d' % (S_T0, S_T0, S_T1))
        a('s_lshl_b32 s%d, s%d, 6' % (S_T1, S_J))
        a('s_add_u32 s%d, s%d, s%d' % (S_T0, S_T0, S_T1))
        a('s_lshl_b32 s%d, s%d, 5' % (S_T1, S_KH))
        a('s_add_u32 s%d, s%d, s%d' % (S_T0, S_T0, S_T1))
        a('buffer_store_dwordx4 %s, v5, s[12:15], s%d offen' % (vr(V_RES), S_T0))

LDS_KVF = 65536
def k_a2(a, name, layer):
    kernel_begin(a, name)
    dma_x(a, PQ[layer])
    load_w(a, V_W, NT_OA)
    load_blk(a, V_RES, XF[2 * layer])
    F, Z = V_W2, V_W2 + 16
    a('v_lshlrev_b32 v5, 2, v%d' % V_LANE)
    a('s_lshl_b32 s%d, s%d, 12' % (S_T0, S_W))
    a('s_add_u32 s%d, s%d, 0x%x' % (S_T0, S_T0, KVACC[layer]))
    for p in range(2):
        for r in range(8):
            a('buffer_load_dword v%d, v5, %s, s%d offen offset:%d' % (F + 8 * p + r, WSR, S_T0, p * 2048 + r * 256))
    a('v_bfe_u32 v6, v%d, 4, 1' % V_LANE)
    a('v_xor_b32 v6, 1, v6')
    a('v_lshlrev_b32 v6, 6, v6')
    a('v_lshrrev_b32 v7, 5, v%d' % V_LANE)
    a('v_lshl_add_u32 v6, v7, 5, v6')
    a('s_lshl_b32 s%d, s%d, 8' % (S_T0, S_W))
    a('s_add_u32 s%d, s%d, 0x%x' % (S_T0, S_T0, ZACC[layer]))
    for p in range(2):
        a('buffer_load_dwordx4 %s, v6, %s, s%d offen offset:%d' % (vr(Z + 8 * p), WSR, S_T0, p * 128))
        a('buffer_load_dwordx4 %s, v6, %s, s%d offen offset:%d' % (vr(Z + 8 * p + 4), WSR, S_T0, p * 128 + 16))
    a('s_waitcnt vmcnt(0)')
    T = V_W2 + 32
    a('s_lshl_b32 s%d, s%d, 12' % (S_T0, S_W))
    a('s_add_u32 s%d, s%d, %d' % (S_T0, S_T0, LDS_KVF))
    a('v_add_u32 v5, s%d, v%d' % (S_T0, V_L16))
    for p in range(2):
        for r in range(4):
            a('v_cvt_pk_bf16_f32 v%d, v%d, v%d' % (F + 8 * p + r, F + 8 * p + 2 * r, F + 8 * p + 2 * r + 1))
            a('v_cvt_pk_bf16_f32 v%d, v%d, v%d' % (Z + 8 * p + r, Z + 8 * p + 2 * r, Z + 8 * p + 2 * r + 1))
        for r in range(4):
            a('v_cndmask_b32_e64 v%d, 0, v%d, s[%d:%d]' % (Z + 8 * p + r, Z + 8 * p + r, S_MASK_Z, S_MASK_Z + 1))
        for r in range(4):
            a('v_cndmask_b32_e64 v%d, v%d, v%d, s[%d:%d]' % (T + 8 * p + r, Z + 8 * p + r, F + 8 * p + r, S_MASK_LO16, S_MASK_LO16 + 1))
            a('v_cndmask_b32_e64 v%d, v%d, v%d, s[%d:%d]' % (T + 8 * p + 4 + r, F + 8 * p + r, Z + 8 * p + r, S_MASK_LO16, S_MASK_LO16 + 1))
        a('ds_write_b128 v5, %s offset:%d' % (vr(T + 8 * p), p * 2048))
        a('ds_write_b128 v5, %s offset:%d' % (vr(T + 8 * p + 4), p * 2048 + 1024))
    barrier(a)
    ACC = V_ACC
    ND = [V_ACC + 16, V_ACC + 32]
    KVA = 7
    a('s_lshl_b32 s%d, s%d, 14' % (S_T0, S_KH))
    a('s_add_u32 s%d, s%d, %d' % (S_T0, S_T0, LDS_KVF))
    a('v_add_u32 v%d, s%d, v%d' % (KVA, S_T0, V_L16))
    XB = [V_W2, V_W2 + 8, V_W2 + 16]
    OFR = [V_XF, V_XF + 4]
    def rd(t):
        b = XB[t % 3]
        a('ds_read_b128 %s, v%d offset:%d' % (vr(b), V_XA, t * 1024))
        a('ds_read_b128 %s, v%d offset:%d' % (vr(b + 4), KVA, t * 1024))
    def nd(t):
        b = XB[t % 3]
        a('v_mfma_f32_32x32x16_bf16 %s, %s, %s, 0' % (vr(ND[t % 2], 16), vr(b + 4), vr(b)))
    rd(0); rd(1)
    a('s_waitcnt lgkmcnt(2)')
    nd(0)
    for t in range(16):
        if t + 2 < 16:
            rd(t + 2)
        if t + 1 < 16:
            a('s_waitcnt lgkmcnt(%d)' % (2 if t + 2 < 16 else 0))
            nd(t + 1)
        a.nop(12)
        n = ND[t % 2]
        num = n if t % 2 == 0 else n + 8
        den = n + 8 if t % 2 == 0 else n
        a('v_add_f32 v8, 0x%x, v%d' % (f2u(1e-6), den))
        a('v_rcp_f32 v8, v8')
        a('s_nop 0')
        for r in range(0, 8, 2):
            a('v_pk_mul_f32 v[%d:%d], v[%d:%d], v[8:9] op_sel_hi:[1,0]' % (num + r, num + r + 1, num + r, num + r + 1))
        o = OFR[t % 2]
        for r in range(4):
            a('v_cvt_pk_bf16_f32 v%d, v%d, v%d' % (o + r, num + 2 * r, num + 2 * r + 1))
        a('s_nop 1')
        c = '0' if t == 0 else vr(ACC, 16)
        a('v_mfma_f32_32x32x16_bf16 %s, %s, %s, %s' % (vr(ACC, 16), vr(V_W + 4 * t), vr(o), c))
    a.nop(16)
    a('s_barrier')
    red_write(a, [ACC], None)
    barrier(a)
    red_read(a, [ACC], None, 6)
    resid_epilogue(a, ACC, XF[2 * layer + 1], False)
    a('s_waitcnt vmcnt(0)')
    kernel_end(a, name)

def k_b1(a, name, layer):
    kernel_begin(a, name)
    dma_x(a, XF[2 * layer + 1])
    load_w(a, V_W, NT_Q)
    W16 = V_W2
    S_WHICH, S_SLAB = 34, 35
    a('s_and_b32 s%d, s%d, 1' % (S_WHICH, S_CS))
    a('s_lshr_b32 s%d, s%d, 1' % (S_SLAB, S_CS))
    a('s_lshl_b32 s%d, s%d, 14' % (S_T0, S_WHICH))
    a('s_lshl_b32 s%d, s%d, 11' % (S_T1, S_W))
    a('s_add_u32 s%d, s%d, s%d' % (S_T0, S_T0, S_T1))
    a('s_add_u32 s%d, s%d, 0x%x' % (S_T0, S_T0, WKV16))
    a('buffer_load_dwordx4 %s, v%d, %s, s%d offen' % (vr(W16), V_L16, WSR, S_T0))
    a('buffer_load_dwordx4 %s, v%d, %s, s%d offen offset:1024' % (vr(W16 + 4), V_L16, WSR, S_T0))
    a('s_waitcnt vmcnt(0)')
    a('s_barrier')
    AQ = V_ACC; CQ_ = 18
    colsum(a, V_W, CQ_)
    kloop_j(a, [(AQ, V_W)], True)
    write_stats(a)
    X16 = V_W2 + 8; A16 = V_W2 + 16; C16 = 19
    a('v_and_b32 v5, 15, v%d' % V_LANE)
    a('v_lshlrev_b32 v5, 4, v5')
    a('v_bfe_u32 v6, v%d, 4, 1' % V_LANE)
    a('v_lshl_add_u32 v5, v6, 9, v5')
    a('v_lshrrev_b32 v6, 5, v%d' % V_LANE)
    a('v_lshl_add_u32 v5, v6, 10, v5')
    a('s_lshr_b32 s%d, s%d, 1' % (S_T0, S_SLAB))
    a('s_lshl_b32 s%d, s%d, 15' % (S_T0, S_T0))
    a('s_and_b32 s%d, s%d, 1' % (S_T1, S_SLAB))
    a('s_lshl_b32 s%d, s%d, 8' % (S_T1, S_T1))
    a('s_add_u32 s%d, s%d, s%d' % (S_T0, S_T0, S_T1))
    a('s_lshl_b32 s%d, s%d, 12' % (S_T1, S_W))
    a('s_add_u32 s%d, s%d, s%d' % (S_T0, S_T0, S_T1))
    a('v_add_u32 v5, s%d, v5' % S_T0)
    a('ds_read_b128 %s, v5' % vr(X16))
    a('ds_read_b128 %s, v5 offset:2048' % vr(X16 + 4))
    a('v_mov_b32 v%d, 0' % C16)
    a('s_nop 1')
    for r in range(8):
        a('v_dot2_f32_bf16 v%d, v%d, v%d, v%d' % (C16, W16 + r, V_ONES, C16))
    a('s_waitcnt lgkmcnt(0)')
    L1 = a.newlabel('b1_v'); L2 = a.newlabel('b1_j')
    a('s_cmp_eq_u32 s%d, 1' % S_WHICH)
    a('s_cbranch_scc1 %s' % L1)
    a('v_mfma_f32_16x16x32_bf16 %s, %s, %s, 0' % (vr(A16), vr(W16), vr(X16)))
    a('v_mfma_f32_16x16x32_bf16 %s, %s, %s, %s' % (vr(A16), vr(W16 + 4), vr(X16 + 4), vr(A16)))
    a('s_branch %s' % L2)
    a.label(L1)
    a('v_mfma_f32_16x16x32_bf16 %s, %s, %s, 0' % (vr(A16), vr(X16), vr(W16)))
    a('v_mfma_f32_16x16x32_bf16 %s, %s, %s, %s' % (vr(A16), vr(X16 + 4), vr(W16 + 4), vr(A16)))
    a.label(L2)
    a.nop(16)
    red_write(a, [AQ], [CQ_])
    a('s_lshl_b32 s%d, s%d, 10' % (S_T0, S_W))
    a('s_add_u32 s%d, s%d, %d' % (S_T0, S_T0, LDS_U))
    a('v_add_u32 v5, s%d, v%d' % (S_T0, V_L16))
    a('ds_write_b128 v5, %s' % vr(A16))
    a('s_lshl_b32 s%d, s%d, 8' % (S_T0, S_W))
    a('s_add_u32 s%d, s%d, %d' % (S_T0, S_T0, LDS_U + 8192))
    a('v_lshlrev_b32 v5, 2, v%d' % V_LANE)
    a('v_add_u32 v5, s%d, v5' % S_T0)
    a('ds_write_b32 v5, v%d' % C16)
    barrier(a)
    red_read(a, [AQ], [CQ_], 7)
    ln_finish(a, [AQ], [CQ_])
    VR = 11
    scale_pack(a, AQ, VR, V_XF)
    for r in range(4):
        a('v_lshlrev_b32 v%d, 16, v%d' % (AQ + 2 * r, V_XF + r))
        a('v_and_b32 v%d, 0xffff0000, v%d' % (AQ + 2 * r + 1, V_XF + r))
    for r in range(8):
        a('v_mul_f32 v%d, 0x%x, v%d' % (AQ + r, f2u(CQ), AQ + r))
    for r in range(4):
        a('v_cvt_pk_bf16_f32 v%d, v%d, v%d' % (V_XF + r, AQ + 2 * r, AQ + 2 * r + 1))
    store_blk(a, V_XF, QF[layer])
    Lend = a.newlabel('b1_end')
    a('s_cmp_lg_u32 s%d, 7' % S_W)
    a('s_cbranch_scc1 %s' % Lend)
    P = V_W
    a('v_add_u32 v5, %d, v%d' % (LDS_U, V_L16))
    a('v_lshlrev_b32 v6, 2, v%d' % V_LANE)
    a('v_add_u32 v6, %d, v6' % (LDS_U + 8192))
    for w in range(8):
        a('ds_read_b128 %s, v5 offset:%d' % (vr(P + 4 * w), w * 1024))
        a('ds_read_b32 v%d, v6 offset:%d' % (P + 32 + w, w * 256))
    a('s_waitcnt lgkmcnt(0)')
    for w in range(1, 8):
        for r in range(4):
            a('v_add_f32 v%d, v%d, v%d' % (P + r, P + r, P + 4 * w + r))
        a('v_add_f32 v%d, v%d, v%d' % (P + 32, P + 32, P + 32 + w))
    a('v_and_b32 v5, 15, v%d' % V_LANE)
    a('s_lshl_b32 s%d, s%d, 4' % (S_T0, S_SLAB))
    a('v_add_u32 v5, s%d, v5' % S_T0)
    a('v_lshlrev_b32 v5, 2, v5')
    a('v_add_u32 v5, %d, v5' % LDS_STAT)
    read_stats(a, 5, 10, 11, 6)
    MFg, CFg = P + 8, P + 12
    make_mfrag(a, 10, MFg)
    make_csfrag(a, P + 32, CFg, 6)
    a('s_nop 1')
    L1 = a.newlabel('b1_fv')
    a('s_cmp_eq_u32 s%d, 1' % S_WHICH)
    a('s_cbranch_scc1 %s' % L1)
    a('v_mfma_f32_16x16x32_bf16 %s, %s, %s, %s' % (vr(P), vr(CFg), vr(MFg), vr(P)))
    a.nop(10)
    for r in range(4):
        a('v_mul_f32 v%d, v%d, v11' % (P + r, P + r))
    a('v_cvt_pk_bf16_f32 v%d, v%d, v%d' % (P + 4, P, P + 1))
    a('v_cvt_pk_bf16_f32 v%d, v%d, v%d' % (P + 5, P + 2, P + 3))
    a('v_and_b32 v5, 15, v%d' % V_LANE)
    a('v_lshlrev_b32 v5, 4, v5')
    a('v_bfe_u32 v6, v%d, 4, 1' % V_LANE)
    a('v_lshl_add_u32 v5, v6, 9, v5')
    a('v_lshrrev_b32 v6, 5, v%d' % V_LANE)
    a('v_lshl_add_u32 v5, v6, 3, v5')
    a('s_lshl_b32 s%d, s%d, 11' % (S_T0, S_RB))
    a('s_lshr_b32 s%d, s%d, 1' % (S_T1, S_SLAB))
    a('s_lshl_b32 s%d, s%d, 10' % (S_T1, S_T1))
    a('s_add_u32 s%d, s%d, s%d' % (S_T0, S_T0, S_T1))
    a('s_and_b32 s%d, s%d, 1' % (S_T1, S_SLAB))
    a('s_lshl_b32 s%d, s%d, 8' % (S_T1, S_T1))
    a('s_add_u32 s%d, s%d, s%d' % (S_T0, S_T0, S_T1))
    a('s_add_u32 s%d, s%d, 0x%x' % (S_T0, S_T0, KF[layer]))
    a('buffer_store_dwordx2 v[%d:%d], v5, %s, s%d offen' % (P + 4, P + 5, WSR, S_T0))
    a('v_mov_b32 v8, 0')
    a('s_nop 1')
    a('v_dot2_f32_bf16 v8, v%d, v%d, v8' % (P + 4, P + 4))
    a('v_dot2_f32_bf16 v8, v%d, v%d, v8' % (P + 5, P + 5))
    a.nop(3)
    a('v_mov_b32 v9, v8')
    a('s_nop 1')
    a('v_permlane16_swap_b32 v8, v9')
    a('s_nop 1')
    a('v_add_f32 v8, v8, v9')
    halves_sum(a, 8, 9)
    for sh in (8, 4, 2, 1):
        a('s_nop 1')
        a('v_max_f32_dpp v8, v8, v8 row_ror:%d row_mask:0xf bank_mask:0xf' % sh)
    a('s_lshl_b32 s%d, s%d, 2' % (S_T0, S_RB))
    a('s_add_u32 s%d, s%d, s%d' % (S_T0, S_T0, S_SLAB))
    a('s_lshl_b32 s%d, s%d, 2' % (S_T0, S_T0))
    a('s_add_u32 s%d, s%d, 0x%x' % (S_T0, S_T0, KMAX[layer]))
    a('v_mov_b32 v5, 0')
    a('s_mov_b64 exec, 1')
    a('buffer_store_dword v8, v5, %s, s%d offen' % (WSR, S_T0))
    a('s_mov_b64 exec, -1')
    a('s_branch %s' % Lend)
    a.label(L1)
    a('v_mfma_f32_16x16x32_bf16 %s, %s, %s, %s' % (vr(P), vr(MFg), vr(CFg), vr(P)))
    a('v_and_b32 v5, 15, v%d' % V_LANE)
    a('v_lshlrev_b32 v5, 2, v5')
    a('ds_write_b32 v5, v11 offset:%d' % (0))
    a('v_lshrrev_b32 v6, 4, v%d' % V_LANE)
    a('v_lshlrev_b32 v6, 4, v6')
    a('s_waitcnt lgkmcnt(0)')
    a('ds_read_b128 %s, v6' % vr(P + 16))
    a('s_waitcnt lgkmcnt(0)')
    a.nop(8)
    for r in range(4):
        a('v_mul_f32 v%d, v%d, v%d' % (P + r, P + r, P + 16 + r))
    a('v_cvt_pk_bf16_f32 v%d, v%d, v%d' % (P + 4, P, P + 1))
    a('v_cvt_pk_bf16_f32 v%d, v%d, v%d' % (P + 5, P + 2, P + 3))
    a('v_and_b32 v5, 15, v%d' % V_LANE)
    a('v_lshlrev_b32 v5, 4, v5')
    a('v_bfe_u32 v6, v%d, 4, 1' % V_LANE)
    a('v_lshl_add_u32 v5, v6, 8, v5')
    a('v_lshrrev_b32 v6, 5, v%d' % V_LANE)
    a('v_lshl_add_u32 v5, v6, 3, v5')
    a('s_lshl_b32 s%d, s%d, 2' % (S_T0, S_RB))
    a('s_add_u32 s%d, s%d, s%d' % (S_T0, S_T0, S_SLAB))
    a('s_lshl_b32 s%d, s%d, 9' % (S_T0, S_T0))
    a('s_add_u32 s%d, s%d, 0x%x' % (S_T0, S_T0, VF[layer]))
    a('buffer_store_dwordx2 v[%d:%d], v5, %s, s%d offen' % (P + 4, P + 5, WSR, S_T0))
    a.label(Lend)
    a('s_waitcnt vmcnt(0)')
    kernel_end(a, name)

A_Q = 24
A_BIAS = 28
A_S = [44, 60]
A_P = 76
A_O = 84
A_K = [100, 104]
A_V = [108, 116]
A_KA, A_VA = 5, 6
UNROLL = 8

def attn_loop(a):
    S_CNT = 36
    Ltop = a.newlabel('at_loop')
    def rdK(buf, off):
        a('ds_read_b128 %s, v%d offset:%d' % (vr(A_K[buf]), A_KA, off))
    def rdV(buf, off):
        a('s_mov_b64 exec, s[%d:%d]' % (S_MASK_LO16, S_MASK_LO16 + 1))
        a('ds_read_b128 %s, v%d offset:%d' % (vr(A_V[buf]), A_VA, off))
        a('ds_read_b128 %s, v%d offset:%d' % (vr(A_V[buf] + 4), A_VA, off + 512))
        a('s_mov_b64 exec, -1')
    def qk(sbuf, kbuf):
        a('v_mfma_f32_32x32x16_bf16 %s, %s, %s, %s' % (vr(A_S[sbuf], 16), vr(A_K[kbuf]), vr(A_Q), vr(A_BIAS, 16)))
    a('v_mov_b32 v%d, v%d' % (A_KA, V_L16))
    a('v_and_b32 v%d, 15, v%d' % (A_VA, V_LANE))
    a('v_lshlrev_b32 v%d, 4, v%d' % (A_VA, A_VA))
    a('v_lshrrev_b32 v7, 5, v%d' % V_LANE)
    a('v_lshl_add_u32 v%d, v7, 8, v%d' % (A_VA, A_VA))
    a('v_add_u32 v%d, 65536, v%d' % (A_VA, A_VA))
    for r in range(16):
        a('v_mov_b32 v%d, 0' % (A_O + r))
    rdK(0, 0)
    rdK(1, 1024)
    rdV(0, 0)
    a('s_waitcnt lgkmcnt(3)')
    qk(0, 0)
    a('s_mov_b32 s%d, 0' % S_CNT)
    a.nop(8)
    a.label(Ltop)
    for u in range(UNROLL):
        sb = u % 2
        S = A_S[sb]
        a('s_waitcnt lgkmcnt(2)')
        qk(1 - sb, (u + 1) % 2)
        rdK(u % 2, (u + 2) * 1024)
        for r in range(8):
            a('v_exp_f32 v%d, v%d' % (S + r, S + r))
        for r in range(4):
            a('v_cvt_pk_bf16_f32 v%d, v%d, v%d' % (A_P + r, S + 2 * r, S + 2 * r + 1))
        a('v_exp_f32 v%d, v%d' % (S + 8, S + 8))
        a('v_exp_f32 v%d, v%d' % (S + 9, S + 9))
        a('s_waitcnt lgkmcnt(1)')
        a('v_mfma_f32_32x32x16_bf16 %s, %s, %s, %s' % (vr(A_O, 16), vr(A_V[u % 2]), vr(A_P), vr(A_O, 16)))
        rdV((u + 1) % 2, (u + 1) * 1024)
        for r in range(10, 16):
            a('v_exp_f32 v%d, v%d' % (S + r, S + r))
        for r in range(4, 8):
            a('v_cvt_pk_bf16_f32 v%d, v%d, v%d' % (A_P + r, S + 2 * r, S + 2 * r + 1))
        a('s_nop 1')
        a('v_mfma_f32_32x32x16_bf16 %s, %s, %s, %s' % (vr(A_O, 16), vr(A_V[u % 2] + 4), vr(A_P + 4), vr(A_O, 16)))
    a('v_add_u32 v%d, %d, v%d' % (A_KA, UNROLL * 1024, A_KA))
    a('v_add_u32 v%d, %d, v%d' % (A_VA, UNROLL * 1024, A_VA))
    a('s_add_u32 s%d, s%d, 1' % (S_CNT, S_CNT))
    a('s_cmp_lt_u32 s%d, %d' % (S_CNT, 64 // UNROLL))
    a('s_cbranch_scc1 %s' % Ltop)
    a('s_waitcnt lgkmcnt(0)')
    a.nop(16)


def k_attn(a, name, layer):
    kernel_begin(a, name)
    assert VF[layer] == KF[layer] + 0x10000
    a('s_mov_b32 s34, 0')
    dma_x(a, KF[layer], nblk=16, lds0=0, gstride=0, sgsel=34)
    load_blk(a, A_Q, QF[layer])
    a('v_lshlrev_b32 v5, 3, v%d' % V_LANE)
    a('s_mov_b32 s%d, 0x%x' % (S_T0, KMAX[layer]))
    a('buffer_load_dwordx2 v[8:9], v5, %s, s%d offen' % (WSR, S_T0))
    a('s_mov_b32 s34, 0x00110000')
    a('s_mov_b32 s35, 0x00110000')
    a('v_cndmask_b32_e64 v7, 0, v%d, s[34:35]' % V_ONES)
    for b in range(2):
        for r in range(8):
            a('v_mov_b32 v%d, v7' % (A_V[b] + r))
    a('s_waitcnt vmcnt(0)')
    a('s_barrier')
    a('v_max_f32 v8, v8, v9')
    for sh in (8, 4, 2, 1):
        a('s_nop 1')
        a('v_max_f32_dpp v8, v8, v8 row_ror:%d row_mask:0xf bank_mask:0xf' % sh)
    a('v_mov_b32 v9, v8')
    a('s_nop 1')
    a('v_permlane16_swap_b32 v8, v9')
    a('s_nop 1')
    a('v_max_f32 v8, v8, v9')
    halves_sum(a, 8, 9, 'v_max_f32')
    a('v_mov_b32 v10, 0')
    a('s_nop 1')
    for r in range(4):
        a('v_dot2_f32_bf16 v10, v%d, v%d, v10' % (A_Q + r, A_Q + r))
    a.nop(3)
    halves_sum(a, 10, 9)
    a('v_mul_f32 v10, v10, v8')
    a('v_sqrt_f32 v10, v10')
    a('s_nop 0')
    a('v_mul_f32 v10, 0x%x, v10' % f2u(-1.001))
    a('s_mov_b32 s37, 0')
    Lrun = a.newlabel('at_run'); Lok = a.newlabel('at_ok'); Lmx = a.newlabel('at_mx')
    a.label(Lrun)
    for r in range(16):
        a('v_mov_b32 v%d, v10' % (A_BIAS + r))
    a('s_nop 1')
    attn_loop(a)
    a('s_cmp_eq_u32 s37, 1')
    a('s_cbranch_scc1 %s' % Lok)
    a('v_cmp_nle_f32 vcc, 0x%x, v%d' % (f2u(2.0 ** -89), A_O + 8))
    a('s_nop 3')
    a('s_cbranch_vccz %s' % Lok)
    a('s_mov_b32 s37, 1')
    a('v_mov_b32 v10, 0xff800000')
    a('v_mov_b32 v%d, v%d' % (A_KA, V_L16))
    a('s_mov_b32 s36, 0')
    a.label(Lmx)
    a('ds_read_b128 %s, v%d' % (vr(A_K[0]), A_KA))
    a('s_waitcnt lgkmcnt(0)')
    a('v_mfma_f32_32x32x16_bf16 %s, %s, %s, 0' % (vr(A_S[0], 16), vr(A_K[0]), vr(A_Q)))
    a.nop(16)
    for r in range(0, 16, 2):
        a('v_max3_f32 v10, v10, v%d, v%d' % (A_S[0] + r, A_S[0] + r + 1))
    a('v_add_u32 v%d, 1024, v%d' % (A_KA, A_KA))
    a('s_add_u32 s36, s36, 1')
    a('s_cmp_lt_u32 s36, 64')
    a('s_cbranch_scc1 %s' % Lmx)
    halves_sum(a, 10, 9, 'v_max_f32')
    a('v_sub_f32 v10, 0, v10')
    a('s_branch %s' % Lrun)
    a.label(Lok)
    a('v_rcp_f32 v8, v%d' % (A_O + 8))
    a('s_nop 0')
    scale_pack(a, A_O, 8, A_P)
    store_blk(a, A_P, OF[layer])
    a('s_waitcnt vmcnt(0)')
    kernel_end(a, name)

def k_b3(a, name, layer):
    kernel_begin(a, name)
    dma_x(a, OF[layer])
    load_w(a, V_W, NT_OB)
    load_blk(a, V_RES, XF[2 * layer + 1])
    a('s_waitcnt vmcnt(0)')
    a('s_barrier')
    kloop(a, [(V_ACC, V_W)], None)
    a.nop(16)
    red_write(a, [V_ACC], None)
    barrier(a)
    red_read(a, [V_ACC], None, 6)
    final = layer == 1
    resid_epilogue(a, V_ACC, None if final else XF[2 * layer + 2], final)
    a('s_waitcnt vmcnt(0)')
    kernel_end(a, name)


def header():
    ref = open('cdna_kernels/%s.s.ref' % NAME).read().split('\n')
    out = []
    for l in ref:
        if not l.startswith(';'):
            break
        if '@launch' in l:
            continue
        out.append(l)
    return out


def main(path):
    a = Asm()
    ks = [('pack_kernel', k_pack, None)]
    for l in range(2):
        ks += [('a1_%d_kernel' % l, k_a1, l), ('a2_%d_kernel' % l, k_a2, l), ('b1_%d_kernel' % l, k_b1, l),
               ('at_%d_kernel' % l, k_attn, l), ('b3_%d_kernel' % l, k_b3, l)]
    for h in header():
        a.raw(h)
    for (n, f, l) in ks:
        lds = 0 if n == 'pack_kernel' else max(LDS_TOTAL, 131072 + 2048)
        a.raw('; @launch kernel=%s grid=(256,1,1) block=(512,1,1) lds=%d' % (n, lds))
    a.raw('.amdgcn_target "amdgcn-amd-amdhsa--gfx950"')
    a.raw('.text')
    for (n, f, l) in ks:
        if l is None:
            f(a, n)
        else:
            f(a, n, l)
    open(path, 'w').write(a.text())

if __name__ == '__main__':
    main(sys.argv[1] if len(sys.argv) > 1 else 'cdna_kernels/%s.s' % NAME)
```

```python
import struct, math, sys, os

NAME = 'interleave_layers__linear_attn_block__grouped_kv_mqa__prompt'
E = os.environ.get
TS_ON = E('TS', '0') == '1'
TS2 = TS_ON and E('TS2', '0') == '1'
DBGBUF = E('DBGBUF', '0') == '1'

T0_ = 0x1000000 if DBGBUF else 0x000000
WP = 0x400000
NT_QKV, NT_OA, NT_Q, NT_OB = 0, 48, 64, 80
WKV16 = 0x700000
STP = 0x780000
LB, LS = 0x880000, 0x140000
KF_, VF_, KMAX_ = LB, LB + 0x10000, LB + 0x20000
KVP_, ZP_ = LB + 0x28000, LB + 0x128000
CFLAG = 0xB00000
GFLAG = 0xB04000
XFLAG = 0xB05000
HFLAG = 0xB20000
TSBUF = 0xB40000
WS_BYTES = 0x10000000
OOB = 0x7FFF0000
_t = lambda n: T0_ + n * 0x200000
XF = [None, _t(1), _t(3), _t(5)]
OLIN = [_t(0), _t(4)]; OF = [_t(2), _t(6)]
KF = [KF_, KF_ + LS]; VF = [VF_, VF_ + LS]; KMAX = [KMAX_, KMAX_ + LS]; KVP = [KVP_, KVP_ + LS]; ZP = [ZP_, ZP_ + LS]

def f2u(x): return struct.unpack('<I', struct.pack('<f', x))[0]
LOG2E = math.log2(math.e)
CQ = 0.25 * LOG2E

class Asm:
    def __init__(self):
        self.l = []; self.uid = 0; self.vm = []
    def __call__(self, s):
        for line in s.strip('\n').split('\n'):
            self.l.append('    ' + line.strip())
    def label(self, s): self.l.append(s + ':')
    def raw(self, s): self.l.append(s)
    def nop(self, n):
        while n > 0:
            k = min(n, 16); self('s_nop %d' % (k - 1)); n -= k
    def newlabel(self, p='L'):
        self.uid += 1; return '%s_%d' % (p, self.uid)
    def text(self): return '\n'.join(self.l) + '\n'
    def vreset(self): self.vm = []
    def v(self, tag, s):
        self(s); self.vm.append(tag)
    def vwait(self, *tags, extra=''):
        idx = [i for i, t in enumerate(self.vm) if t in tags]
        n = len(self.vm) - 1 - max(idx)
        assert n <= 63
        self('s_waitcnt vmcnt(%d)%s' % (n, extra))

def vr(b, n=4): return 'v[%d:%d]' % (b, b + n - 1)

S_WS, S_IN, S_IN2 = 4, 8, 12
S_RB, S_CS, S_W, S_I, S_J, S_KH = 16, 17, 18, 19, 20, 21
S_BLK, S_LOFF = 22, 23
S_T0, S_T1, S_T2, S_T3, S_T4, S_T5 = 24, 25, 26, 27, 28, 29
S_MASK_LO16 = 30
S_WHICH, S_SLAB = 34, 35
S_CNT, S_PASS, S_CPH, S_GPH = 36, 37, 38, 39
S_FAST, S_SPIN = 62, 63
S_TSI, S_TOFF, S_SOFF, S_GRP = 72, 73, 74, 75
S_DBG = 76
S_WOFF, S_XOFF = 80, 81
S_TS = 82
S_NLO, S_NHI, S_XCC = 32, 33, 91
V_ONES, V_LANE, V_L16, V_XA = 0, 1, 2, 4
VM, VR = 10, 11
V_CF1, V_CF0, V_CF2 = 12, 14, 16
V_RES = 20
V_XF = 24
V_ACC = 40
V_PQ = 88
V_CFA, V_GFA, V_PCA, V_Q2 = 96, 97, 98, 99
V_TMP = 100
V_W0, V_W1 = 128, 192
A_Q, A_BIAS, A_S, A_P, A_O, A_K, A_V = 100, 24, [40, 56], 72, 80, [104, 108], [112, 120]
A_KA, A_VA = 5, 6
XBUF = [V_XF, V_XF + 8, V_TMP, V_TMP + 8]
ACC0, ACC1 = V_ACC, V_ACC + 16
V_MF = V_ACC + 32

class LM:
    def __init__(s, red, stat, pkv, kvf, redq): s.red, s.stat, s.pkv, s.kvf, s.redq = red, stat, pkv, kvf, redq
LM_STD = LM(red=65536, stat=131072, pkv=135168, kvf=151552, redq=65536)
LDS_U = 155648
LDS_TOTAL = 163840
WSR = 's[%d:%d]' % (S_WS, S_WS + 3)
SPIN_MAX = 200000

def srd(a, d, ptr_s, nbytes):
    a('s_mov_b32 s%d, s%d' % (d, ptr_s))
    a('s_mov_b32 s%d, s%d' % (d + 1, ptr_s + 1))
    a('s_mov_b32 s%d, 0x%x' % (d + 2, nbytes))
    a('s_mov_b32 s%d, 0x00020000' % (d + 3))

def ts(a):
    if not TS_ON: return
    L = a.newlabel('ts')
    a('s_cmp_lg_u32 s%d, %s' % (S_W, E('TSW', '0')))
    a('s_cbranch_scc1 %s' % L)
    a('s_memrealtime s[%d:%d]' % (S_TS, S_TS + 1))
    a('s_memtime s[92:93]')
    a('s_waitcnt lgkmcnt(0)')
    a('s_mov_b64 exec, 1')
    a('v_mov_b32 v8, s%d' % S_TS)
    a('v_mov_b32 v9, s%d' % S_TSI)
    a('buffer_store_dword v8, v9, %s, 0 offen' % WSR)
    a('v_mov_b32 v7, s92')
    a('buffer_store_dword v7, v9, %s, 0 offen offset:256' % WSR)
    a('s_mov_b64 exec, -1')
    a('s_add_u32 s%d, s%d, 4' % (S_TSI, S_TSI))
    a.label(L)
def ts2(a):
    if TS2: ts(a)

class role:
    def __init__(s, a, who): s.a, s.who = a, who
    def __enter__(s):
        a = s.a; s.L = a.newlabel('role')
        if s.who == 'A': a('s_cmp_lg_u32 s%d, 0' % S_KH)
        elif s.who == 'B': a('s_cmp_lg_u32 s%d, 1' % S_KH)
        else: a('s_cmp_lg_u32 s%d, %d' % (S_W, s.who))
        a('s_cbranch_scc1 %s' % s.L)
    def __exit__(s, *e): s.a.label(s.L)

def prologue(a, name):
    a.raw('.globl %s' % name); a.raw('.p2align 8'); a.raw('.type %s,@function' % name)
    a.label(name)
    a('s_cmp_ge_u32 s2, 256')
    a('s_cbranch_scc1 L_end')
    a('s_load_dwordx16 s[40:55], s[0:1], 0')
    a('s_load_dwordx4 s[56:59], s[0:1], 64')
    a('s_load_dwordx2 s[60:61], s[0:1], 80')
    a('s_and_b32 s%d, s2, 7' % S_GRP)
    a('s_lshl_b32 s%d, s%d, 2' % (S_RB, S_GRP))
    a('s_lshr_b32 s%d, s2, 6' % S_T0)
    a('s_add_u32 s%d, s%d, s%d' % (S_RB, S_RB, S_T0))
    a('s_bfe_u32 s%d, s2, 0x30003' % S_CS)
    a('v_lshrrev_b32 v5, 6, v0')
    a('v_and_b32 v%d, 63, v0' % V_LANE)
    a('s_nop 0')
    a('v_readfirstlane_b32 s%d, v5' % S_W)
    a('v_lshlrev_b32 v%d, 4, v%d' % (V_L16, V_LANE))
    a('s_nop 3')
    a('s_and_b32 s%d, s%d, 1' % (S_I, S_W))
    a('s_bfe_u32 s%d, s%d, 0x10001' % (S_J, S_W))
    a('s_lshr_b32 s%d, s%d, 2' % (S_KH, S_W))
    a('s_lshl_b32 s%d, s%d, 1' % (S_T0, S_RB))
    a('s_add_u32 s%d, s%d, s%d' % (S_T0, S_T0, S_I))
    a('s_lshl_b32 s%d, s%d, 5' % (S_T0, S_T0))
    a('s_lshl_b32 s%d, s%d, 2' % (S_T1, S_CS))
    a('s_add_u32 s%d, s%d, s%d' % (S_T0, S_T0, S_T1))
    a('s_lshl_b32 s%d, s%d, 1' % (S_T1, S_J))
    a('s_add_u32 s%d, s%d, s%d' % (S_T0, S_T0, S_T1))
    a('s_add_u32 s%d, s%d, s%d' % (S_T0, S_T0, S_KH))
    a('s_lshl_b32 s%d, s%d, 10' % (S_BLK, S_T0))
    a('s_lshl_b32 s%d, s%d, 14' % (S_T1, S_I))
    a('v_add_u32 v%d, s%d, v%d' % (V_XA, S_T1, V_L16))
    a('s_lshl_b32 s%d, s%d, 1' % (S_T0, S_CS))
    a('s_add_u32 s%d, s%d, s%d' % (S_T0, S_T0, S_J))
    a('s_lshl_b32 s%d, s%d, 15' % (S_T0, S_T0))
    a('s_add_u32 s%d, s%d, s%d' % (S_WOFF, S_T0, S_T1))
    a('s_lshl_b32 s%d, s%d, 16' % (S_XOFF, S_RB))
    a('v_mov_b32 v%d, 0x3f803f80' % V_ONES)
    a('s_mov_b32 s%d, 0x0000ffff' % S_MASK_LO16)
    a('s_mov_b32 s%d, 0x0000ffff' % (S_MASK_LO16 + 1))
    a('s_and_b32 s%d, s%d, 1' % (S_WHICH, S_CS))
    a('s_lshr_b32 s%d, s%d, 1' % (S_SLAB, S_CS))
    a('s_mov_b32 s%d, 0' % S_LOFF)
    a('s_mov_b32 s%d, 0' % S_CPH)
    a('s_mov_b32 s%d, 0' % S_GPH)
    a('s_mov_b32 s%d, 0' % S_FAST)
    a('s_mov_b32 s%d, 0x%x' % (S_TOFF, T0_))
    a('s_mov_b32 s%d, 0x%x' % (S_SOFF, STP))
    a('s_lshl_b32 s%d, s%d, 9' % (S_T0, S_RB))
    a('s_add_u32 s%d, s%d, 0x%x' % (S_T0, S_T0, CFLAG))
    a('v_lshlrev_b32 v5, 3, v%d' % V_LANE)
    a('v_add_u32 v%d, s%d, v5' % (V_PCA, S_T0))
    a('s_lshl_b32 s%d, s%d, 6' % (S_T1, S_CS))
    a('s_add_u32 s%d, s%d, s%d' % (S_T0, S_T0, S_T1))
    a('s_lshl_b32 s%d, s%d, 3' % (S_T1, S_W))
    a('s_add_u32 s%d, s%d, s%d' % (S_T0, S_T0, S_T1))
    a('v_mov_b32 v%d, s%d' % (V_CFA, S_T0))
    a('s_getreg_b32 s%d, hwreg(HW_REG_XCC_ID)' % S_XCC)
    a('s_and_b32 s%d, s%d, 15' % (S_XCC, S_XCC))
    a('s_lshl_b32 s%d, s%d, 6' % (S_T0, S_RB))
    a('s_lshl_b32 s%d, s%d, 3' % (S_T1, S_CS))
    a('s_add_u32 s%d, s%d, s%d' % (S_T0, S_T0, S_T1))
    a('s_add_u32 s%d, s%d, 0x%x' % (S_T0, S_T0, GFLAG))
    a('v_mov_b32 v%d, s%d' % (V_GFA, S_T0))
    a('s_lshl_b32 s%d, s2, 9' % S_TSI)
    a('s_add_u32 s%d, s%d, 0x%x' % (S_TSI, S_TSI, TSBUF))
    a('s_waitcnt lgkmcnt(0)')
    srd(a, S_WS, 60, WS_BYTES)
    srd(a, S_DBG, 58, 256)

def epilogue(a, name, nv=256):
    a.label('L_end')
    a('s_endpgm')
    a.raw('.section .rodata,"a"'); a.raw('.p2align 6')
    a.raw('.amdhsa_kernel %s' % name)
    a.raw('  .amdhsa_next_free_vgpr %d' % nv)
    a.raw('  .amdhsa_next_free_sgpr 96')
    a.raw('  .amdhsa_accum_offset %d' % ((nv + 3) // 4 * 4))
    a.raw('  .amdhsa_group_segment_fixed_size 0')
    a.raw('  .amdhsa_kernarg_size 88')
    a.raw('  .amdhsa_user_sgpr_count 2')
    a.raw('  .amdhsa_user_sgpr_kernarg_segment_ptr 1')
    a.raw('  .amdhsa_system_sgpr_workgroup_id_x 1')
    a.raw('  .amdhsa_float_denorm_mode_32 3')
    a.raw('.end_amdhsa_kernel')

def fast_store(a, fmts):
    L1 = a.newlabel('fs'); L2 = a.newlabel('fs')
    a('s_cmp_eq_u32 s%d, 1' % S_FAST)
    a('s_cbranch_scc1 %s' % L1)
    for f in fmts: a(f.replace('@', ' sc1'))
    a('s_branch %s' % L2)
    a.label(L1)
    for f in fmts: a(f.replace('@', ''))
    a.label(L2)

def tagval(a, v, sph, xcc=False):
    a('s_lshl_b32 s%d, s%d, 4' % (S_T0, sph))
    a('s_add_u32 s%d, s%d, s%d' % (S_T0, S_T0, S_NLO))
    if xcc: a('s_add_u32 s%d, s%d, s%d' % (S_T0, S_T0, S_XCC))
    a('v_mov_b32 v%d, s%d' % (v, S_T0))
    a('v_mov_b32 v%d, s%d' % (v + 1, S_NHI))

def tagbase(a, sdst, sph):
    a('s_lshl_b32 s%d, s%d, 4' % (sdst, sph))
    a('s_add_u32 s%d, s%d, s%d' % (sdst, sdst, S_NLO))

def tagcmp(pairs, sbase, t):
    out = []
    for n, p in enumerate(pairs):
        out.append('v_subrev_u32 v%d, s%d, v%d' % (p, sbase, p))
        out.append('v_xor_b32 v%d, s%d, v%d' % (p + 1, S_NHI, p + 1))
        out.append('v_lshrrev_b32 v%d, 12, v%d' % (p, p))
        if n == 0: out.append('v_or_b32 v%d, v%d, v%d' % (t, p, p + 1))
        else: out.append('v_or3_b32 v%d, v%d, v%d, v%d' % (t, t, p, p + 1))
    out.append('v_cmp_ne_u32 vcc, 0, v%d' % t)
    return out

def csignal(a, tag=None):
    a('s_add_u32 s%d, s%d, 1' % (S_CPH, S_CPH))
    tagval(a, 6, S_CPH, True)
    if tag is None:
        a('s_waitcnt vmcnt(0) lgkmcnt(0)')
    a('s_mov_b64 exec, 1')
    fast_store(a, ['buffer_store_dwordx2 v[6:7], v%d, %s, 0 offen@' % (V_CFA, WSR)])
    a('s_mov_b64 exec, -1')
    if tag: a.vm.append(tag)

def poll(a, load, cmp, sleep=0):
    Lp = a.newlabel('pl'); Lo = a.newlabel('po')
    a('s_mov_b32 s%d, 0' % S_SPIN)
    a.label(Lp)
    a('s_add_u32 s%d, s%d, 1' % (S_SPIN, S_SPIN))
    a('s_cmp_gt_u32 s%d, %d' % (S_SPIN, SPIN_MAX))
    a('s_cbranch_scc1 L_end')
    for l in load: a(l)
    a('s_waitcnt vmcnt(0)')
    for c in cmp: a(c)
    if sleep:
        a('s_cbranch_vccz %s' % Lo)
        a('s_sleep %d' % sleep)
        a('s_branch %s' % Lp)
        a.label(Lo)
    else:
        a('s_cbranch_vccnz %s' % Lp)

def cwait(a):
    tagbase(a, 65, S_CPH)
    poll(a, ['buffer_load_dwordx2 v[8:9], v%d, %s, 0 offen sc1' % (V_PCA, WSR)], tagcmp([8], 65, 7))

def lpoll_addr(a, v):
    a('v_and_b32 v%d, 31, v%d' % (v, V_LANE))
    a('v_lshlrev_b32 v%d, 3, v%d' % (v, v))
    a('s_lshl_b32 s66, s%d, 8' % S_GRP)
    a('s_add_u32 s66, s66, 0x%x' % GFLAG)

def lwait(a):
    tagbase(a, 65, S_GPH)
    lpoll_addr(a, 5)
    poll(a, ['buffer_load_dwordx2 v[8:9], v5, %s, s66 offen sc1' % WSR], tagcmp([8], 65, 7))

def lsignal(a):
    tagval(a, 6, S_GPH, True)
    a('s_mov_b64 exec, 1')
    fast_store(a, ['buffer_store_dwordx2 v[6:7], v%d, %s, 0 offen@' % (V_GFA, WSR)])
    a('s_mov_b64 exec, -1')

DBR = 's[%d:%d]' % (S_DBG, S_DBG + 3)
NP = 18
def nonce_publish(a):
    L = a.newlabel('np')
    a('s_cmp_lg_u32 s2, 0')
    a('s_cbranch_scc1 %s' % L)
    a('s_cmp_lg_u32 s%d, 0' % S_W)
    a('s_cbranch_scc1 %s' % L)
    a('s_memrealtime s[64:65]')
    a('s_waitcnt lgkmcnt(0)')
    a('s_lshl_b64 s[64:65], s[64:65], 12')
    a('s_or_b32 s65, s65, 0x80000000')
    a('v_mov_b32 v6, s64')
    a('v_mov_b32 v7, s65')
    a('v_mov_b32 v5, 0')
    a('s_mov_b64 exec, 1')
    a('buffer_store_dwordx2 v[6:7], v5, %s, 0 offen sc1' % DBR)
    a('s_mov_b64 exec, -1')
    a.label(L)

def nonce_probe(a):
    a('v_mov_b32 v5, 0')
    a.v('np', 'buffer_load_dwordx2 v[%d:%d], v5, %s, 0 offen sc1' % (NP, NP + 1, DBR))

def nonce_check(a):
    Lok = a.newlabel('nok')
    a.vwait('np')
    a('v_cmp_eq_u32 vcc, 0, v%d' % (NP + 1))
    a('s_cbranch_vccz %s' % Lok)
    a('v_mov_b32 v5, 0')
    poll(a, ['buffer_load_dwordx2 v[%d:%d], v5, %s, 0 offen sc1' % (NP, NP + 1, DBR)], ['v_cmp_eq_u32 vcc, 0, v%d' % (NP + 1)], sleep=2)
    a.label(Lok)
    a('v_readfirstlane_b32 s%d, v%d' % (S_NLO, NP))
    a('v_readfirstlane_b32 s%d, v%d' % (S_NHI, NP + 1))
    a('s_nop 3')

PR = V_W0 + 48
def p1_probe(a):
    a.v('pr', 'buffer_load_dwordx2 v[%d:%d], v%d, %s, 0 offen sc1' % (PR, PR + 1, V_PCA, WSR))
    lpoll_addr(a, PR + 6)
    a.v('pr', 'buffer_load_dwordx2 v[%d:%d], v%d, %s, s66 offen sc1' % (PR + 2, PR + 3, PR + 6, WSR))

def p1_check(a):
    L1 = a.newlabel('pc'); L2 = a.newlabel('pc')
    a.vwait('pr')
    tagbase(a, 65, S_CPH)
    for c in tagcmp([PR], 65, 7): a(c)
    a('s_cbranch_vccz %s' % L1)
    poll(a, ['buffer_load_dwordx2 v[%d:%d], v%d, %s, 0 offen sc1' % (PR, PR + 1, V_PCA, WSR)], tagcmp([PR], 65, 7), sleep=1)
    a.label(L1)
    tagbase(a, 65, S_GPH)
    a('v_mov_b32 v%d, v%d' % (PR + 4, PR + 2))
    for c in tagcmp([PR + 2], 65, 7): a(c)
    a('s_cbranch_vccz %s' % L2)
    poll(a, ['buffer_load_dwordx2 v[%d:%d], v%d, %s, s66 offen sc1' % (PR + 2, PR + 3, PR + 6, WSR)],
         ['v_mov_b32 v%d, v%d' % (PR + 4, PR + 2)] + tagcmp([PR + 2], 65, 7), sleep=1)
    a.label(L2)
    a('v_and_b32 v%d, 15, v%d' % (PR + 4, PR + 4))
    a('v_cmp_ne_u32 vcc, s%d, v%d' % (S_XCC, PR + 4))
    a('s_nop 3')
    a('s_cmp_eq_u64 vcc, 0')
    a('s_cselect_b32 s%d, 1, 0' % S_FAST)
    if E('NOFAST'):
        a('s_mov_b32 s%d, 0' % S_FAST)

def next_tile(a):
    if DBGBUF: a('s_add_u32 s%d, s%d, 0x200000' % (S_TOFF, S_TOFF))
    else: a('s_xor_b32 s%d, s%d, 0x200000' % (S_TOFF, S_TOFF))

def pack_issue(a, sj, vb, sdst):
    L_kv = a.newlabel('pk_kv'); L_go = a.newlabel('pk_go')
    R = 68
    a('s_cmp_ge_u32 s%d, 192' % sj)
    a('s_cbranch_scc1 %s' % L_kv)
    a('s_lshr_b32 s%d, s%d, 5' % (S_T0, sj))
    a('s_and_b32 s%d, s%d, 15' % (S_T1, sj))
    a('s_bfe_u32 s%d, s%d, 0x10004' % (S_T4, sj))
    a('s_lshl_b32 s%d, s%d, 1' % (S_T3, S_CS))
    a('s_add_u32 s%d, s%d, s%d' % (S_T3, S_T3, S_T4))
    a('s_lshl_b32 s%d, s%d, 4' % (sdst, S_T0))
    a('s_add_u32 s%d, s%d, s%d' % (sdst, sdst, S_T3))
    a('s_mov_b32 s%d, s42\ns_mov_b32 s%d, s43\ns_mov_b32 s%d, 0x180000\ns_mov_b32 s%d, 0x00020000' % (R, R + 1, R + 2, R + 3))
    a('s_mov_b32 s%d, 3072' % S_T2)
    a('s_cmp_lt_u32 s%d, 3' % S_T0)
    a('s_cselect_b32 s%d, s%d, s%d' % (S_T3, sdst, S_T3))
    for (u, p) in ((3, 44), (4, 48), (5, 54)):
        a('s_cmp_ge_u32 s%d, %d' % (S_T0, u))
        a('s_cselect_b32 s%d, s%d, s%d' % (R, p, R))
        a('s_cselect_b32 s%d, s%d, s%d' % (R + 1, p + 1, R + 1))
        a('s_cselect_b32 s%d, 0x80000, s%d' % (R + 2, R + 2))
        a('s_cselect_b32 s%d, 1024, s%d' % (S_T2, S_T2))
    a('s_lshl_b32 s%d, s%d, 15' % (sdst, sdst))
    a('s_lshl_b32 s%d, s%d, 11' % (S_T4, S_T1))
    a('s_add_u32 s%d, s%d, s%d' % (sdst, sdst, S_T4))
    a('s_add_u32 s%d, s%d, 0x%x' % (sdst, sdst, WP))
    a('v_lshrrev_b32 v5, 5, v%d' % V_LANE)
    a('v_lshlrev_b32 v5, 2, v5')
    a('s_lshl_b32 s%d, s%d, 5' % (S_T1, S_T1))
    a('v_add_u32 v5, s%d, v5' % S_T1)
    a('v_mul_lo_u32 v5, v5, s%d' % S_T2)
    a('v_and_b32 v6, 31, v%d' % V_LANE)
    a('s_lshl_b32 s%d, s%d, 5' % (S_T3, S_T3))
    a('v_add_u32 v6, s%d, v6' % S_T3)
    a('v_lshl_add_u32 v5, v6, 1, v5')
    a('s_lshl_b32 s%d, s%d, 4' % (S_T3, S_T2))
    a('s_branch %s' % L_go)
    a.label(L_kv)
    a('s_and_b32 s%d, s%d, 7' % (S_T1, sj))
    a('s_cmp_eq_u32 s%d, 1' % S_WHICH)
    a('s_cselect_b32 s%d, s52, s50\ns_cselect_b32 s%d, s53, s51\ns_mov_b32 s%d, 0x4000\ns_mov_b32 s%d, 0x00020000' % (R, R + 1, R + 2, R + 3))
    a('s_mov_b32 s%d, 32' % S_T2)
    a('s_lshl_b32 s%d, s%d, 14' % (sdst, S_CS))
    a('s_lshl_b32 s%d, s%d, 11' % (S_T4, S_T1))
    a('s_add_u32 s%d, s%d, s%d' % (sdst, sdst, S_T4))
    a('s_add_u32 s%d, s%d, 0x%x' % (sdst, sdst, WKV16))
    a('s_cmp_ge_u32 s%d, 200' % sj)
    a('s_cselect_b32 s%d, 0x%x, s%d' % (sdst, OOB, sdst))
    a('v_lshrrev_b32 v5, 5, v%d' % V_LANE)
    a('v_lshlrev_b32 v5, 4, v5')
    a('v_bfe_u32 v6, v%d, 4, 1' % V_LANE)
    a('v_lshl_add_u32 v5, v6, 2, v5')
    a('s_lshl_b32 s%d, s%d, 6' % (S_T1, S_T1))
    a('v_add_u32 v5, s%d, v5' % S_T1)
    a('v_lshlrev_b32 v5, 5, v5')
    a('v_and_b32 v6, 15, v%d' % V_LANE)
    a('v_lshl_add_u32 v5, v6, 1, v5')
    a('s_mov_b32 s%d, 1024' % S_T3)
    a.label(L_go)
    a('v_add_u32 v6, s%d, v5' % S_T3)
    for jj in range(8):
        rd = (jj & 3) + 8 * (jj >> 2)
        a('s_mul_i32 s%d, s%d, %d' % (S_T0, S_T2, rd))
        a.v('pk', 'buffer_load_ushort v%d, v5, s[%d:%d], s%d offen' % (vb + jj, R, R + 3, S_T0))
        a.v('pk', 'buffer_load_ushort v%d, v6, s[%d:%d], s%d offen' % (vb + 8 + jj, R, R + 3, S_T0))

def pack_finish(a, sj, vb, sdst):
    for b in range(2):
        for q in range(4):
            a('v_lshl_or_b32 v%d, v%d, 16, v%d' % (vb + 8 * b + q, vb + 8 * b + 1 + 2 * q, vb + 8 * b + 2 * q))
    a.v('pks', 'buffer_store_dwordx4 %s, v%d, %s, s%d offen sc1' % (vr(vb), V_L16, WSR, sdst))
    a.v('pks', 'buffer_store_dwordx4 %s, v%d, %s, s%d offen offset:1024 sc1' % (vr(vb + 8), V_L16, WSR, sdst))

def colsum(a, vw, vcs):
    a('v_mov_b32 v%d, 0' % vcs)
    a('s_nop 1')
    for r in range(64):
        a('v_dot2_f32_bf16 v%d, v%d, v%d, v%d' % (vcs, vw + r, V_ONES, vcs))
    a.nop(3)

def rowcol_off(a):
    a('s_lshl_b32 s%d, s%d, 15' % (S_T1, S_I))
    a('s_add_u32 s%d, s%d, s%d' % (S_T0, S_XOFF, S_T1))
    a('s_lshl_b32 s%d, s%d, 7' % (S_T1, S_CS))
    a('s_add_u32 s%d, s%d, s%d' % (S_T0, S_T0, S_T1))
    a('s_lshl_b32 s%d, s%d, 6' % (S_T1, S_J))
    a('s_add_u32 s%d, s%d, s%d' % (S_T0, S_T0, S_T1))
    a('s_lshl_b32 s%d, s%d, 5' % (S_T1, S_KH))
    a('s_add_u32 s%d, s%d, s%d' % (S_T0, S_T0, S_T1))

def w_base(a, sreg, nt0, nt1=None):
    if nt1 is None or nt1 == nt0:
        a('s_add_u32 s%d, s%d, 0x%x' % (sreg, S_WOFF, WP + nt0 * 0x8000))
    else:
        a('s_cmp_eq_u32 s%d, 0' % S_KH)
        a('s_cselect_b32 s%d, 0, 0x%x' % (sreg, ((nt1 - nt0) * 0x8000) & 0xffffffff))
        a('s_add_u32 s%d, s%d, s%d' % (sreg, sreg, S_WOFF))
        a('s_add_u32 s%d, s%d, 0x%x' % (sreg, sreg, WP + nt0 * 0x8000))

def load_w(a, vbase, nt0, nt1=None, t0=0, t1=16):
    w_base(a, S_T0, nt0, nt1)
    if t0: a('s_add_u32 s%d, s%d, %d' % (S_T0, S_T0, (t0 // 4) * 4096))
    for t in range(t0, t1):
        if t != t0 and t % 4 == 0:
            a('s_add_u32 s%d, s%d, 4096' % (S_T0, S_T0))
        a('buffer_load_dwordx4 %s, v%d, %s, s%d offen offset:%d sc1' % (vr(vbase + 4 * t), V_L16, WSR, S_T0, (t % 4) * 1024))

def load_w16(a):
    a('s_lshl_b32 s%d, s%d, 14' % (S_T0, S_CS))
    a('s_add_u32 s%d, s%d, 0x%x' % (S_T0, S_T0, WKV16))
    for t in range(16):
        if t and t % 4 == 0:
            a('s_add_u32 s%d, s%d, 4096' % (S_T0, S_T0))
        a('buffer_load_dwordx4 %s, v%d, %s, s%d offen offset:%d sc1' % (vr(V_W1 + 4 * t), V_L16, WSR, S_T0, (t % 4) * 1024))

def dma_tile2(a):
    a('s_lshl_b32 s%d, s%d, 15' % (S_T1, S_I))
    a('s_lshl_b32 s%d, s%d, 14' % (S_T0, S_J))
    a('s_add_u32 s%d, s%d, s%d' % (S_T1, S_T1, S_T0))
    a('s_lshl_b32 s%d, s%d, 12' % (S_T0, S_KH))
    a('s_add_u32 s%d, s%d, s%d' % (S_T1, S_T1, S_T0))
    a('s_add_u32 s%d, s%d, s%d' % (S_T0, S_TOFF, S_XOFF))
    a('s_add_u32 s%d, s%d, s%d' % (S_T0, S_T0, S_T1))
    for c in range(2):
        if c:
            a('s_add_u32 s%d, s%d, 8192' % (S_T0, S_T0))
            a('s_add_u32 s%d, s%d, 8192' % (S_T1, S_T1))
        a('s_mov_b32 m0, s%d' % S_T1)
        a('s_nop 0')
        for t in range(4):
            a('buffer_load_dwordx4 v%d, %s, s%d offen offset:%d sc1 lds' % (V_L16, WSR, S_T0, t * 1024))

def kloop(a, w, t0, t1):
    def rd(t):
        b = XBUF[t % 4]
        a('ds_read_b128 %s, v%d offset:%d' % (vr(b), V_XA, t * 1024))
        a('ds_read_b128 %s, v%d offset:%d' % (vr(b + 4), V_XA, 32768 + t * 1024))
    for t in range(t0, min(t0 + 3, t1)):
        rd(t)
    for t in range(t0, t1):
        b = XBUF[t % 4]
        if t + 3 < t1:
            rd(t + 3)
        a('s_waitcnt lgkmcnt(%d)' % (2 * min(3, t1 - 1 - t)))
        for q, acc in enumerate((ACC0, ACC1)):
            c = '0' if t == 0 else vr(acc, 16)
            a('v_mfma_f32_32x32x16_bf16 %s, %s, %s, %s' % (vr(acc, 16), vr(w + 4 * t), vr(b + 4 * q), c))

def halves_sum(a, v, tmp, op='v_add_f32'):
    a('v_mov_b32 v%d, v%d' % (tmp, v))
    a('s_nop 1')
    a('v_permlane32_swap_b32 v%d, v%d' % (v, tmp))
    a('s_nop 1')
    a('%s v%d, v%d, v%d' % (op, v, v, tmp))

def bf16r(a, v):
    a('v_cvt_pk_bf16_f32 v%d, v%d, v%d' % (v, v, v))
    a('v_and_b32 v%d, 0xffff0000, v%d' % (v, v))

def pk_add(a, d, x, y):
    a('v_pk_add_f32 v[%d:%d], v[%d:%d], v[%d:%d]' % (d, d + 1, x, x + 1, y, y + 1))

def stats_math(a, vm, vrstd):
    a('v_mul_f32 v%d, 0x%x, v%d' % (vm, f2u(1.0 / 512), vm))
    a('v_mul_f32 v%d, 0x%x, v%d' % (vrstd, f2u(1.0 / 512), vrstd))
    a('v_fma_f32 v%d, -v%d, v%d, v%d' % (vrstd, vm, vm, vrstd))
    a('v_max_f32 v%d, 0, v%d' % (vrstd, vrstd))
    bf16r(a, vrstd)
    a('v_add_f32 v%d, 0x%x, v%d' % (vrstd, f2u(1e-5), vrstd))
    bf16r(a, vrstd)
    a('v_sqrt_f32 v%d, v%d' % (vrstd, vrstd))
    a('s_nop 0')
    bf16r(a, vrstd)
    a('v_rcp_f32 v%d, v%d' % (vrstd, vrstd))
    bf16r(a, vm)

def stats_read(a, lm, vrow, T, vm=VM):
    a('v_lshlrev_b32 v%d, 3, v%d' % (vrow, vrow))
    a('v_add_u32 v%d, %d, v%d' % (vrow, lm.stat, vrow))
    for q in range(4):
        a('ds_read2st64_b64 %s, v%d offset0:%d offset1:%d' % (vr(T + 4 * q), vrow, 2 * q, 2 * q + 1))
    a('s_waitcnt lgkmcnt(0)')
    for q in range(4):
        pk_add(a, T + 4 * q, T + 4 * q, T + 4 * q + 2)
    pk_add(a, T, T, T + 4)
    pk_add(a, T + 8, T + 8, T + 12)
    pk_add(a, vm, T, T + 8)
    stats_math(a, vm, vm + 1)

def ln_stats(a, lm, T=V_TMP):
    a('v_and_b32 v5, 31, v%d' % V_LANE)
    a('s_lshl_b32 s%d, s%d, 5' % (S_T0, S_I))
    a('v_add_u32 v5, s%d, v5' % S_T0)
    stats_read(a, lm, 5, T)

def make_mfrag(a, vm, d):
    a('v_cvt_pk_bf16_f32 v%d, -v%d, -v%d' % (d, vm, vm))
    a('v_cvt_pk_bf16_f32 v%d, -v%d, -v%d' % (d + 1, vm, vm))
    a('v_mov_b32 v%d, 0' % (d + 2))
    a('v_mov_b32 v%d, 0' % (d + 3))

def mean_frags(a, lm):
    T = V_ACC + 40
    a('v_and_b32 v5, 31, v%d' % V_LANE)
    a('v_lshlrev_b32 v5, 3, v5')
    a('v_add_u32 v5, %d, v5' % lm.stat)
    for q in range(2):
        for k in range(4):
            a('ds_read2st64_b32 v[%d:%d], v5 offset0:%d offset1:%d' % (T + 8 * q + 2 * k, T + 8 * q + 2 * k + 1, 4 * k + q, 4 * k + 2 + q))
    a('s_waitcnt lgkmcnt(0)')
    for q in range(2):
        t = T + 8 * q
        pk_add(a, t, t, t + 2)
        pk_add(a, t + 4, t + 4, t + 6)
        pk_add(a, t, t, t + 4)
        a('v_add_f32 v%d, v%d, v%d' % (t, t, t + 1))
        a('v_mul_f32 v%d, 0x%x, v%d' % (t, f2u(1.0 / 512), t))
        make_mfrag(a, t, V_MF + 4 * q)

def stats_load_issue(a, T=V_TMP, tag=None):
    a('v_lshlrev_b32 v5, 3, v%d' % V_LANE)
    a('s_lshr_b32 s%d, s%d, 2' % (S_T0, S_XOFF))
    a('s_lshl_b32 s%d, s%d, 11' % (S_T1, S_W))
    a('s_add_u32 s%d, s%d, s%d' % (S_T0, S_T0, S_T1))
    a('s_add_u32 s%d, s%d, s%d' % (S_T0, S_T0, S_SOFF))
    for q in range(4):
        a.v(tag, 'buffer_load_dwordx2 v[%d:%d], v5, %s, s%d offen offset:%d sc1' % (T + 2 * q, T + 2 * q + 1, WSR, S_T0, q * 512))

def stats_load_finish(a, lm, T=V_TMP):
    pk_add(a, T, T, T + 2)
    pk_add(a, T + 4, T + 4, T + 6)
    pk_add(a, T, T, T + 4)
    a('s_lshl_b32 s%d, s%d, 9' % (S_T0, S_W))
    a('s_add_u32 s%d, s%d, %d' % (S_T0, S_T0, lm.stat))
    a('v_lshlrev_b32 v5, 3, v%d' % V_LANE)
    a('v_add_u32 v5, s%d, v5' % S_T0)
    a('ds_write_b64 v5, v[%d:%d]' % (T, T + 1))
    a('s_xor_b32 s%d, s%d, 0x%x' % (S_SOFF, S_SOFF, STP ^ (STP + 0x80000)))

def make_csfrag(a, vc, d, t):
    a('v_cvt_pk_bf16_f32 v%d, v%d, v%d' % (t, vc, vc))
    a('v_and_b32 v%d, 0xffff0000, v%d' % (t, t))
    a('v_sub_f32 v%d, v%d, v%d' % (t + 1, vc, t))
    a('v_cvt_pk_bf16_f32 v%d, v%d, v%d' % (d, t, t + 1))
    a('v_and_b32 v%d, 0xffff0000, v%d' % (t, d))
    a('v_sub_f32 v%d, v%d, v%d' % (t + 1, t + 1, t))
    a('v_cvt_pk_bf16_f32 v%d, v%d, 0' % (d + 1, t + 1))

def y_correct(a, cf):
    for q, acc in enumerate((ACC0, ACC1)):
        a('v_mfma_f32_32x32x16_bf16 %s, %s, %s, %s' % (vr(acc, 16), vr(cf), vr(V_MF + 4 * q), vr(acc, 16)))

def y_red_write(a, base, by_set=False):
    a('s_lshl_b32 s%d, s%d, 13' % (S_T0, S_J))
    a('s_lshl_b32 s%d, s%d, 11' % (S_T1, S_I))
    a('s_add_u32 s%d, s%d, s%d' % (S_T0, S_T0, S_T1))
    if by_set:
        a('s_lshl_b32 s%d, s%d, 15' % (S_T1, S_KH))
        a('s_add_u32 s%d, s%d, s%d' % (S_T0, S_T0, S_T1))
    a('s_add_u32 s%d, s%d, %d' % (S_T0, S_T0, base))
    a('v_add_u32 v5, s%d, v%d' % (S_T0, V_L16))
    a.nop(8)
    for q, acc in enumerate((ACC0, ACC1)):
        for nh in range(2):
            off = q * 4096 + nh * 16384
            a('ds_write_b128 v5, %s offset:%d' % (vr(acc + 8 * nh), off))
            a('ds_write_b128 v5, %s offset:%d' % (vr(acc + 8 * nh + 4), off + 1024))

def y_red_read(a, base, offs_dst):
    a('s_lshl_b32 s%d, s%d, 12' % (S_T0, S_W))
    a('s_add_u32 s%d, s%d, %d' % (S_T0, S_T0, base))
    a('v_add_u32 v5, s%d, v%d' % (S_T0, V_L16))
    for (off, d) in offs_dst:
        for k in range(4):
            a('ds_read_b128 %s, v5 offset:%d' % (vr(d + 4 * k), off + k * 1024))
    a('s_waitcnt lgkmcnt(0)')
    for (off, d) in offs_dst:
        for r in range(0, 8, 2):
            pk_add(a, d + r, d + r, d + 8 + r)

def barrier(a):
    a('s_waitcnt lgkmcnt(0)')
    a('s_barrier')

def phi_pack(a, acc, dst, tl=9):
    a('v_mul_f32 v%d, 0x%x, v%d' % (tl, f2u(LOG2E), VR))
    for r in range(8):
        a('v_mul_f32 v%d, v%d, v%d' % (acc + 8 + r, acc + r, tl))
    for r in range(8):
        a('v_exp_f32_e64 v%d, v%d clamp' % (acc + 8 + r, acc + 8 + r))
    for r in range(8):
        a('v_fmaak_f32 v%d, v%d, v%d, 0x%x' % (acc + r, acc + r, VR, f2u(1e-6)))
        a('v_max_f32 v%d, 0x%x, v%d' % (acc + r, f2u(1e-6), acc + r))
    for r in range(0, 8, 2):
        pk_add(a, acc + r, acc + r, acc + 8 + r)
    for r in range(4):
        a('v_cvt_pk_bf16_f32 v%d, v%d, v%d' % (dst + r, acc + 2 * r, acc + 2 * r + 1))

def scale_pack(a, acc, vs, dst):
    for r in range(8):
        a('v_mul_f32 v%d, v%d, v%d' % (acc + r, acc + r, vs))
    for r in range(4):
        a('v_cvt_pk_bf16_f32 v%d, v%d, v%d' % (dst + r, acc + 2 * r, acc + 2 * r + 1))

def store_blk(a, v):
    a('s_add_u32 s%d, s%d, s%d' % (S_T0, S_BLK, S_TOFF))
    fast_store(a, ['buffer_store_dwordx4 %s, v%d, %s, s%d offen@' % (vr(v), V_L16, WSR, S_T0)])

def store_stats(a, tag=None):
    a('v_mov_b32 v6, 0')
    a('v_mov_b32 v7, 0')
    a('s_nop 0')
    for r in range(4):
        a('v_dot2_f32_bf16 v6, v%d, v%d, v6' % (V_RES + r, V_ONES))
        a('v_dot2_f32_bf16 v7, v%d, v%d, v7' % (V_RES + r, V_RES + r))
    a('s_bfe_u32 s%d, s%d, 0x5000a' % (S_T0, S_BLK))
    a('s_lshl_b32 s%d, s%d, 9' % (S_T0, S_T0))
    a('s_lshr_b32 s%d, s%d, 2' % (S_T1, S_XOFF))
    a('s_add_u32 s%d, s%d, s%d' % (S_T0, S_T0, S_T1))
    a('s_lshl_b32 s%d, s%d, 8' % (S_T1, S_I))
    a('s_add_u32 s%d, s%d, s%d' % (S_T0, S_T0, S_T1))
    a('s_add_u32 s%d, s%d, s%d' % (S_T0, S_T0, S_SOFF))
    a('v_mov_b32 v8, v6')
    a('v_mov_b32 v9, v7')
    a('v_lshlrev_b32 v5, 3, v%d' % V_LANE)
    a('s_nop 0')
    a('v_permlane32_swap_b32 v6, v8')
    a('v_permlane32_swap_b32 v7, v9')
    a('s_nop 1')
    a('v_pk_add_f32 v[6:7], v[6:7], v[8:9]')
    a('s_mov_b32 exec_hi, 0')
    fast_store(a, ['buffer_store_dwordx2 v[6:7], v5, %s, s%d offen@' % (WSR, S_T0)])
    a('s_mov_b32 exec_hi, -1')
    if tag: a.vm.append(tag)

def store_x(a):
    store_blk(a, V_RES)
    store_stats(a)

def a1_kv_owner(a, lm):
    AK, AV = V_ACC, V_ACC + 16
    y_red_read(a, lm.red, [(0, AK), (32768, AV)])
    phi_pack(a, AK, V_XF + 4)
    scale_pack(a, AV, VR, V_XF + 8)
    a('s_lshl_b32 s%d, s%d, 12' % (S_T0, S_J))
    a('s_lshl_b32 s%d, s%d, 11' % (S_T1, S_KH))
    a('s_add_u32 s%d, s%d, s%d' % (S_T0, S_T0, S_T1))
    a('s_lshl_b32 s%d, s%d, 10' % (S_T1, S_I))
    a('s_add_u32 s%d, s%d, s%d' % (S_T0, S_T0, S_T1))
    a('s_add_u32 s%d, s%d, %d' % (S_T0, S_T0, lm.pkv))
    a('v_and_b32 v5, 31, v%d' % V_LANE)
    a('v_lshlrev_b32 v5, 5, v5')
    a('v_lshrrev_b32 v6, 5, v%d' % V_LANE)
    a('v_lshl_add_u32 v5, v6, 4, v5')
    a('v_add_u32 v5, s%d, v5' % S_T0)
    a('ds_write_b128 v5, %s' % vr(V_XF + 4))
    a('ds_write_b128 v5, %s offset:8192' % vr(V_XF + 8))
    barrier(a)

def kv_publish_gather(a, lm, load_oa=False):
    PA, PB, D, D2, ON = V_XF, V_XF + 8, V_ACC, V_ACC + 4, V_ACC + 8
    a('v_lshrrev_b32 v5, 4, v%d' % V_LANE)
    a('v_lshlrev_b32 v5, 8, v5')
    a('v_bfe_u32 v6, v%d, 2, 2' % V_LANE)
    a('v_lshl_add_u32 v5, v6, 5, v5')
    a('v_and_b32 v6, 1, v%d' % V_LANE)
    a('v_lshl_add_u32 v5, v6, 4, v5')
    a('v_bfe_u32 v6, v%d, 1, 1' % V_LANE)
    a('v_lshl_add_u32 v5, v6, 3, v5')
    a('s_lshl_b32 s%d, s%d, 11' % (S_T0, S_W))
    a('s_add_u32 s%d, s%d, %d' % (S_T0, S_T0, lm.pkv))
    a('v_add_u32 v5, s%d, v5' % S_T0)
    for sl in range(2):
        for u in range(2):
            a('ds_read_b64_tr_b16 v[%d:%d], v5 offset:%d' % (PA + 4 * sl + 2 * u, PA + 4 * sl + 2 * u + 1, sl * 1024 + u * 128))
            a('ds_read_b64_tr_b16 v[%d:%d], v5 offset:%d' % (PB + 4 * sl + 2 * u, PB + 4 * sl + 2 * u + 1, 8192 + sl * 1024 + u * 128))
    for r in range(4):
        a('v_mov_b32 v%d, v%d' % (ON + r, V_ONES))
    a('s_lshl_b32 s%d, s%d, 2' % (S_T2, S_CS))
    a('s_add_u32 s%d, s%d, s%d' % (S_T2, S_T2, S_W))
    a('s_lshl_b32 s%d, s%d, 15' % (S_T3, S_T2))
    a('s_add_u32 s%d, s%d, s%d' % (S_T3, S_T3, S_LOFF))
    a('s_add_u32 s%d, s%d, 0x%x' % (S_T3, S_T3, KVP_))
    a('s_lshl_b32 s%d, s%d, 11' % (S_T4, S_T2))
    a('s_add_u32 s%d, s%d, s%d' % (S_T4, S_T4, S_LOFF))
    a('s_add_u32 s%d, s%d, 0x%x' % (S_T4, S_T4, ZP_))
    a('s_lshl_b32 s%d, s%d, 12' % (S_T5, S_T2))
    a('s_add_u32 s%d, s%d, 0x%x' % (S_T5, S_T5, HFLAG))
    a('s_waitcnt lgkmcnt(0)')
    a('v_mfma_f32_16x16x32_bf16 %s, %s, %s, 0' % (vr(D), vr(PA), vr(PB)))
    a('v_mfma_f32_16x16x32_bf16 %s, %s, %s, 0' % (vr(D2), vr(PA), vr(ON)))
    a('v_mfma_f32_16x16x32_bf16 %s, %s, %s, %s' % (vr(D), vr(PA + 4), vr(PB + 4), vr(D)))
    a('v_mfma_f32_16x16x32_bf16 %s, %s, %s, %s' % (vr(D2), vr(PA + 4), vr(ON), vr(D2)))
    a('s_lshl_b32 s%d, s%d, 10' % (S_T0, S_RB))
    a('s_add_u32 s%d, s%d, s%d' % (S_T0, S_T0, S_T3))
    a('s_lshl_b32 s%d, s%d, 6' % (S_T1, S_RB))
    a('s_add_u32 s%d, s%d, s%d' % (S_T1, S_T1, S_T4))
    a('v_and_b32 v6, 48, v%d' % V_LANE)
    tagbase(a, 65, S_GPH)
    a('v_mov_b32 v8, s65')
    a('v_mov_b32 v9, s%d' % S_NHI)
    a('s_nop 2')
    a('buffer_store_dwordx4 %s, v%d, %s, s%d offen sc1' % (vr(D), V_L16, WSR, S_T0))
    a('s_mov_b32 exec_lo, 0x00010001')
    a('s_mov_b32 exec_hi, 0x00010001')
    a('buffer_store_dwordx4 %s, v6, %s, s%d offen sc1' % (vr(D2), WSR, S_T1))
    a('s_lshl_b32 s%d, s%d, 7' % (S_T0, S_RB))
    a('s_add_u32 s%d, s%d, s%d' % (S_T0, S_T0, S_T5))
    a('s_mov_b64 exec, 1')
    a('v_mov_b32 v5, 0')
    a('s_waitcnt vmcnt(0)')
    a('buffer_store_dwordx2 v[8:9], v5, %s, s%d offen sc1' % (WSR, S_T0))
    a('s_mov_b64 exec, -1')
    ts2(a)
    a('v_and_b32 v5, 31, v%d' % V_LANE)
    a('v_lshlrev_b32 v5, 7, v5')
    poll(a, ['buffer_load_dwordx2 v[8:9], v5, %s, s%d offen sc1' % (WSR, S_T5)], tagcmp([8], 65, 7))
    ts2(a)
    ZR = V_TMP
    a('v_and_b32 v5, 15, v%d' % V_LANE)
    a('v_lshl_add_u32 v5, v5, 6, v6')
    a('buffer_load_dwordx4 %s, v5, %s, s%d offen sc1' % (vr(ZR), WSR, S_T4))
    a('buffer_load_dwordx4 %s, v5, %s, s%d offen offset:1024 sc1' % (vr(ZR + 4), WSR, S_T4))
    G = [V_W1 + 4 * k for k in range(16)] + [V_ACC + 4 * k for k in range(12)] + [V_XF + 4 * k for k in range(4)]
    for k in range(32):
        if k and k % 4 == 0:
            a('s_add_u32 s%d, s%d, 4096' % (S_T3, S_T3))
        a('buffer_load_dwordx4 %s, v%d, %s, s%d offen offset:%d sc1' % (vr(G[k]), V_L16, WSR, S_T3, (k % 4) * 1024))
    nx = 0
    if load_oa:
        load_w(a, V_W0, NT_OA)
        nx = 16
    a('s_waitcnt vmcnt(%d)' % (32 + nx))
    pk_add(a, ZR, ZR, ZR + 4)
    pk_add(a, ZR + 2, ZR + 2, ZR + 6)
    for sh in (8, 4, 2, 1):
        a('s_nop 1')
        for r in range(4):
            a('v_add_f32_dpp v%d, v%d, v%d row_ror:%d row_mask:0xf bank_mask:0xf' % (ZR + r, ZR + r, ZR + r, sh))
    a('v_cvt_pk_bf16_f32 v%d, v%d, v%d' % (ZR, ZR, ZR + 1))
    a('v_cvt_pk_bf16_f32 v%d, v%d, v%d' % (ZR + 1, ZR + 2, ZR + 3))
    a('s_mov_b32 s%d, 0x00110011' % S_T0)
    a('s_mov_b32 s%d, 0x00110011' % S_T1)
    a('v_cndmask_b32_e64 v%d, 0, v%d, s[%d:%d]' % (ZR, ZR, S_T0, S_T1))
    a('v_cndmask_b32_e64 v%d, 0, v%d, s[%d:%d]' % (ZR + 1, ZR + 1, S_T0, S_T1))
    a('v_and_b32 v5, 15, v%d' % V_LANE)
    a('v_lshlrev_b32 v5, 4, v5')
    a('v_bfe_u32 v6, v%d, 4, 1' % V_LANE)
    a('v_lshl_add_u32 v5, v6, 9, v5')
    a('v_lshrrev_b32 v6, 5, v%d' % V_LANE)
    a('v_lshl_add_u32 v5, v6, 3, v5')
    a('s_lshl_b32 s%d, s%d, 10' % (S_T0, S_W))
    a('s_add_u32 s%d, s%d, %d' % (S_T0, S_T0, lm.kvf))
    a('v_add_u32 v5, s%d, v5' % S_T0)
    a('ds_write_b64 v5, v[%d:%d] offset:256' % (ZR, ZR + 1))
    for k in range(2, 32, 2):
        a('s_waitcnt vmcnt(%d)' % (30 - k + nx))
        for c in range(2):
            pk_add(a, G[c], G[c], G[k + c])
            pk_add(a, G[c] + 2, G[c] + 2, G[k + c] + 2)
    pk_add(a, G[0], G[0], G[1])
    pk_add(a, G[0] + 2, G[0] + 2, G[1] + 2)
    a('v_cvt_pk_bf16_f32 v%d, v%d, v%d' % (G[0], G[0], G[0] + 1))
    a('v_cvt_pk_bf16_f32 v%d, v%d, v%d' % (G[0] + 1, G[0] + 2, G[0] + 3))
    a('ds_write_b64 v5, v[%d:%d]' % (G[0], G[0] + 1))

def a1_finish(a, lm):
    a('s_lshl_b32 s%d, s%d, 1' % (S_T0, S_J))
    a('s_add_u32 s%d, s%d, s%d' % (S_T0, S_T0, S_KH))
    a('s_lshl_b32 s%d, s%d, 10' % (S_T0, S_T0))
    a('s_add_u32 s%d, s%d, %d' % (S_T0, S_T0, lm.kvf))
    a('v_add_u32 v6, s%d, v%d' % (S_T0, V_L16))
    a('ds_read_b128 %s, v6' % vr(V_XF + 4))
    y_red_read(a, lm.redq, [(0, V_ACC)])
    phi_pack(a, V_ACC, V_XF)
    a('s_nop 1')
    N = V_ACC + 16
    a('v_mfma_f32_32x32x16_bf16 %s, %s, %s, 0' % (vr(N, 16), vr(V_XF + 4), vr(V_XF)))
    a.nop(14)
    a('v_add_f32 v8, 0x%x, v%d' % (f2u(1e-6), N + 8))
    a('v_rcp_f32 v8, v8')
    a('s_nop 0')
    scale_pack(a, N, 8, V_XF + 8)
    store_blk(a, V_XF + 8)
    csignal(a)

def late_w(a):
    with role(a, 'A'):
        load_w(a, V_W0, NT_OA)
    with role(a, 3):
        load_w16(a)

def a1_std(a):
    lm = LM_STD
    kloop(a, V_W1, 0, 8)
    mean_frags(a, lm)
    chunk1(a)
    with role(a, 'A'):
        load_w(a, V_W0, NT_OA)
    kloop(a, V_W1, 8, 16)
    y_correct(a, V_CF1)
    y_red_write(a, lm.red, by_set=True)
    ln_stats(a, lm)
    barrier(a)
    ts2(a)
    a1_kv_owner(a, lm)
    ts2(a)
    with role(a, 'B'):
        kloop(a, V_W0, 0, 16)
        y_correct(a, V_CF0)
        y_red_write(a, lm.redq)
    with role(a, 'A'):
        kv_publish_gather(a, lm)
    barrier(a)
    ts2(a)
    a1_finish(a, lm)

def p1(a):
    lm = LM(red=65536, stat=147456 + 12288 - 0, pkv=65536, kvf=65536 + 16384, redq=65536 + 32768 - 32768)
    a.vreset()
    a('s_lshl_b32 s84, s%d, 3' % S_RB)
    a('s_add_u32 s84, s84, s%d' % S_W)
    srd(a, S_IN2, 40, 0x200000)
    srd(a, S_IN, 42, 0x180000)
    VXD = [V_TMP + 16, V_TMP + 17]; VWD = V_TMP + 18
    a('v_lshrrev_b32 v5, 3, v%d' % V_LANE)
    a('v_and_b32 v6, 7, v%d' % V_LANE)
    a('v_lshrrev_b32 v7, 4, v%d' % V_LANE)
    a('v_xor_b32 v8, v6, v7')
    a('v_lshlrev_b32 v8, 4, v8')
    a('v_lshl_add_u32 v%d, v5, 10, v8' % VXD[0])
    a('v_xor_b32 v%d, 64, v%d' % (VXD[1], VXD[0]))
    a('v_bfe_u32 v7, v%d, 4, 1' % V_LANE)
    a('v_lshlrev_b32 v7, 2, v7')
    a('v_xor_b32 v8, v6, v7')
    a('v_lshlrev_b32 v8, 4, v8')
    a('v_mul_u32_u24 v5, 3072, v5')
    a('v_add_u32 v%d, v5, v8' % VWD)
    SXG, SXL, SWG, SWL, SQG = 85, 87, 88, 89, 90
    a('s_lshl_b32 s%d, s%d, 15' % (S_T0, S_KH))
    a('s_lshl_b32 s%d, s%d, 14' % (S_T1, S_I))
    a('s_add_u32 s%d, s%d, s%d' % (SXG, S_XOFF, S_T0))
    a('s_add_u32 s%d, s%d, s%d' % (SXG, SXG, S_T1))
    a('s_lshl_b32 s%d, s%d, 9' % (S_T1, S_J))
    a('s_add_u32 s%d, s%d, s%d' % (SXG, SXG, S_T1))
    a('s_lshl_b32 s%d, s%d, 14' % (S_T1, S_J))
    a('s_add_u32 s%d, s%d, s%d' % (SXL, S_T0, S_T1))
    a('s_lshl_b32 s%d, s%d, 11' % (S_T1, S_I))
    a('s_add_u32 s%d, s%d, s%d' % (SXL, SXL, S_T1))
    a('s_mul_i32 s%d, s%d, %d' % (SWG, S_J, 256 * 3072))
    a('s_mul_i32 s%d, s%d, %d' % (S_T0, S_I, 16 * 3072))
    a('s_add_u32 s%d, s%d, s%d' % (SWG, SWG, S_T0))
    a('s_lshl_b32 s%d, s%d, 10' % (S_T0, S_KH))
    a('s_add_u32 s%d, s%d, s%d' % (SWG, SWG, S_T0))
    a('s_lshl_b32 s%d, s%d, 7' % (S_T0, S_CS))
    a('s_add_u32 s%d, s%d, s%d' % (SWG, SWG, S_T0))
    a('s_add_u32 s%d, s%d, 1024' % (SWG, SWG))
    a('s_lshl_b32 s%d, s%d, 11' % (SWL, S_W))
    a('s_add_u32 s%d, s%d, 65536' % (SWL, SWL))
    a('s_mul_i32 s%d, s%d, %d' % (SQG, S_KH, 256 * 3072))
    a('s_and_b32 s%d, s%d, 3' % (S_T1, S_W))
    a('s_mul_i32 s%d, s%d, %d' % (S_T1, S_T1, 16 * 3072))
    a('s_add_u32 s%d, s%d, s%d' % (SQG, SQG, S_T1))
    a('s_add_u32 s%d, s%d, s%d' % (SQG, SQG, S_T0))
    slot_of = {0: 0, 1: 1, 2: 2, 3: 3, 4: 4, 5: 5, 6: 0, 7: 1, 8: 4, 9: 5, 10: 2, 11: 3}
    def dma_x(g):
        for p in range(2):
            a('s_add_u32 s%d, s%d, %d' % (S_T0, SXG, g * 128 + p * 8192))
            a('s_add_u32 m0, s%d, %d' % (SXL, g * 4096 + p * 1024))
            a('s_nop 0')
            a.v('x%d' % g, 'buffer_load_dwordx4 v%d, s[12:15], s%d offen lds' % (VXD[p], S_T0))
    def dma_w(s):
        for p in range(2):
            if s < 8: a('s_add_u32 s%d, s%d, %d' % (S_T0, SWG, (32 * s + 8 * p) * 3072))
            else: a('s_add_u32 s%d, s%d, %d' % (S_T0, SQG, (64 * (s - 8) + 8 * p) * 3072))
            a('s_add_u32 m0, s%d, %d' % (SWL, slot_of[s] * 16384 + p * 1024))
            a('s_nop 0')
            a.v('w%d' % s, 'buffer_load_dwordx4 v%d, s[8:11], s%d offen lds' % (VWD, S_T0))
    nonce_publish(a)
    dma_x(0); dma_w(0); dma_w(1)
    PKR = V_W0
    pack_issue(a, 84, PKR, 86)
    a('v_and_b32 v5, 31, v%d' % V_LANE)
    a('v_lshlrev_b32 v5, 10, v5')
    a('v_lshrrev_b32 v6, 5, v%d' % V_LANE)
    a('v_lshl_add_u32 v5, v6, 3, v5')
    rowcol_off(a)
    a.v('res', 'buffer_load_dwordx2 v[%d:%d], v5, s[12:15], s%d offen' % (V_RES, V_RES + 1, S_T0))
    a.v('res', 'buffer_load_dwordx2 v[%d:%d], v5, s[12:15], s%d offen offset:16' % (V_RES + 2, V_RES + 3, S_T0))
    nonce_probe(a)
    dma_x(1); dma_w(2); dma_w(3)
    XR = [V_TMP + 20 + q for q in range(4)]
    WR = V_TMP + 24
    a('v_and_b32 v5, 31, v%d' % V_LANE)
    a('v_bfe_u32 v6, v%d, 1, 3' % V_LANE)
    a('v_lshrrev_b32 v7, 5, v%d' % V_LANE)
    a('v_xor_b32 v6, v6, v7')
    a('s_lshl_b32 s%d, s%d, 14' % (S_T0, S_I))
    a('v_lshlrev_b32 v5, 7, v5')
    a('v_add_u32 v5, s%d, v5' % S_T0)
    for q in range(4):
        a('v_xor_b32 v7, %d, v6' % (2 * q))
        a('v_lshl_add_u32 v%d, v7, 4, v5' % XR[q])
    a('v_lshrrev_b32 v5, 5, v%d' % V_LANE)
    a('v_lshlrev_b32 v5, 10, v5')
    a('v_bfe_u32 v6, v%d, 2, 2' % V_LANE)
    a('v_lshl_add_u32 v5, v6, 7, v5')
    a('v_bfe_u32 v6, v%d, 3, 1' % V_LANE)
    a('v_xor_b32 v6, s%d, v6' % S_J)
    a('v_lshl_add_u32 v5, v6, 6, v5')
    a('v_bfe_u32 v6, v%d, 4, 1' % V_LANE)
    a('v_lshl_add_u32 v5, v6, 5, v5')
    a('v_and_b32 v6, 3, v%d' % V_LANE)
    a('v_lshl_add_u32 v5, v6, 3, v5')
    a('s_lshl_b32 s%d, s%d, 13' % (S_T0, S_KH))
    a('s_lshl_b32 s%d, s%d, 12' % (S_T1, S_I))
    a('s_add_u32 s%d, s%d, s%d' % (S_T0, S_T0, S_T1))
    a('s_add_u32 s%d, s%d, 65536' % (S_T0, S_T0))
    a('v_add_u32 v%d, s%d, v5' % (WR, S_T0))
    a('v_add_u32 v%d, %d, v%d' % (WR + 1, 49152, WR))
    a('s_lshl_b32 s%d, s%d, 13' % (S_T0, S_I))
    a('s_add_u32 s%d, s%d, 65536' % (S_T0, S_T0))
    a('v_add_u32 v%d, s%d, v5' % (WR + 2, S_T0))
    a('v_add_u32 v%d, %d, v%d' % (WR + 3, 49152, WR + 2))
    FB = [V_W1, V_W1 + 24]
    def rd_kt(b, kt, areg, off):
        a('ds_read_b64_tr_b16 v[%d:%d], v%d offset:%d' % (b + 8, b + 9, areg, off))
        a('ds_read_b64_tr_b16 v[%d:%d], v%d offset:%d' % (b + 10, b + 11, areg, off + 512))
        a('ds_read_b128 %s, v%d offset:%d' % (vr(b), XR[kt & 3], (kt >> 2) * 4096))
        a('ds_read_b128 %s, v%d offset:%d' % (vr(b + 4), XR[kt & 3], 32768 + (kt >> 2) * 4096))
    CS = V_TMP + 19
    def mm_kt(b, first):
        if first: a('v_mov_b32 v%d, 0' % CS)
        for q, acc in enumerate((ACC0, ACC1)):
            a('v_mfma_f32_32x32x16_bf16 %s, %s, %s, %s' % (vr(acc, 16), vr(b + 8), vr(b + 4 * q), '0' if first else vr(acc, 16)))
        for r in range(4):
            a('v_dot2_f32_bf16 v%d, v%d, v%d, v%d' % (CS, b + 8 + r, V_ONES, CS))
    def rd_stage(s):
        sl = slot_of[s]
        for q in range(2):
            rd_kt(FB[s % 2] + 12 * q, 2 * s + q, WR + sl // 3, (sl % 3) * 16384 + q * 2048)
    def mm_stage(s):
        for q in range(2):
            mm_kt(FB[s % 2] + 12 * q, s == 0 and q == 0)
    a.vwait('pk', 'res')
    pack_finish(a, 84, PKR, 86)
    store_stats(a, 'pks')
    nonce_check(a)
    dma_x(2); dma_w(4); dma_w(5); dma_x(3)
    a('s_mov_b32 s%d, 1' % S_GPH)
    with role(a, 0):
        lsignal(a)
    CSR = V_W0 + 16
    STR = V_W0 + 40
    for s in range(9):
        if s < 8:
            tags = ['w%d' % s, 'x%d' % (s >> 1)] + (['pks'] if s == 2 else [])
            a.vwait(*tags, extra=' lgkmcnt(0)')
            if s == 2: csignal(a, 'cf')
            a('s_barrier')
            if E('TSP1'): ts(a)

            rd_stage(s)
            if s == 1: dma_w(6)
            if s == 2: dma_w(7)
            if s == 5: dma_w(8)
            if s == 6: dma_w(9)
        else:
            a('s_waitcnt lgkmcnt(0)')
        if s >= 1:
            mm_stage(s - 1)
        if s == 5:
            p1_probe(a)
        if s == 6:
            p1_check(a)
            stats_load_issue(a, STR, 'st')
    lms = LM(red=0, stat=65536 + 32768, pkv=0, kvf=0, redq=0)
    a.vwait('st')
    stats_load_finish(a, lms, STR)
    make_csfrag(a, CS, V_CF1, 6)
    for r in range(14, 20):
        a('v_mov_b32 v%d, 0' % r)
    barrier(a)
    ts(a)
    mean_frags(a, lms)
    ln_stats(a, lms, T=V_W0)
    a('s_nop 1')
    y_correct(a, V_CF1)

    a('s_barrier')
    lm = LM(red=65536, stat=0, pkv=65536, kvf=65536 + 16384, redq=65536)
    y_red_write(a, lm.red, by_set=True)
    barrier(a)
    AK, AV = V_ACC, V_ACC + 16
    y_red_read(a, lm.red, [(0, AK), (32768, AV)])
    a('s_barrier')
    a.vreset()
    dma_w(10); dma_w(11)
    phi_pack(a, AK, V_XF + 4)
    scale_pack(a, AV, VR, V_XF + 8)
    a('s_lshl_b32 s%d, s%d, 12' % (S_T0, S_J))
    a('s_lshl_b32 s%d, s%d, 11' % (S_T1, S_KH))
    a('s_add_u32 s%d, s%d, s%d' % (S_T0, S_T0, S_T1))
    a('s_lshl_b32 s%d, s%d, 10' % (S_T1, S_I))
    a('s_add_u32 s%d, s%d, s%d' % (S_T0, S_T0, S_T1))
    a('s_add_u32 s%d, s%d, %d' % (S_T0, S_T0, lm.pkv))
    a('v_and_b32 v5, 31, v%d' % V_LANE)
    a('v_lshlrev_b32 v5, 5, v5')
    a('v_lshrrev_b32 v6, 5, v%d' % V_LANE)
    a('v_lshl_add_u32 v5, v6, 4, v5')
    a('v_add_u32 v5, s%d, v5' % S_T0)
    a('ds_write_b128 v5, %s' % vr(V_XF + 4))
    a('ds_write_b128 v5, %s offset:8192' % vr(V_XF + 8))
    a('s_waitcnt vmcnt(0)')
    barrier(a)
    ts(a)
    lm.redq = 131072
    with role(a, 'B'):
        QB = [V_W1 + 12 * k for k in range(4)]
        def q_rd(kt):
            s = 8 + kt // 4; sl = slot_of[s]
            rd_kt(QB[kt % 4], kt, WR + 2 + sl // 3, (sl % 3) * 16384 + (kt % 4) * 2048)
        for kt in range(3): q_rd(kt)
        for kt in range(16):
            if kt + 3 < 16: q_rd(kt + 3)
            a('s_waitcnt lgkmcnt(%d)' % (4 * min(3, 15 - kt)))
            mm_kt(QB[kt % 4], kt == 0)
        a.nop(3)
        make_csfrag(a, CS, V_CF0, 6)
        a('s_nop 1')
        y_correct(a, V_CF0)
    with role(a, 'A'):
        kv_publish_gather(a, lm, True)
    barrier(a)
    with role(a, 'B'):
        y_red_write(a, lm.redq)
    barrier(a)
    a1_finish(a, lm)

def resid_add(a, acc):
    for r in range(4):
        a('v_lshlrev_b32 v%d, 16, v%d' % (acc + 8 + 2 * r, V_RES + r))
        a('v_and_b32 v%d, 0xffff0000, v%d' % (acc + 9 + 2 * r, V_RES + r))
    for r in range(0, 8, 2):
        pk_add(a, acc + r, acc + r, acc + 8 + r)
    for r in range(4):
        a('v_cvt_pk_bf16_f32 v%d, v%d, v%d' % (V_RES + r, acc + 2 * r, acc + 2 * r + 1))

def final_store(a):
    srd(a, S_IN2, 56, 0x200000)
    a('s_nop 1')
    a('v_permlane32_swap_b32 v%d, v%d' % (V_RES, V_RES + 2))
    a('v_permlane32_swap_b32 v%d, v%d' % (V_RES + 1, V_RES + 3))
    a('v_and_b32 v5, 31, v%d' % V_LANE)
    a('v_lshlrev_b32 v5, 10, v5')
    a('v_lshrrev_b32 v6, 5, v%d' % V_LANE)
    a('v_lshl_add_u32 v5, v6, 4, v5')
    rowcol_off(a)
    a('buffer_store_dwordx4 %s, v5, s[12:15], s%d offen' % (vr(V_RES), S_T0))

def x_inputs(a, stats):
    cwait(a)
    if stats:
        stats_load_issue(a)
    dma_tile2(a)
    if stats:
        a('s_waitcnt vmcnt(8)')
        stats_load_finish(a, LM_STD)
    a('s_waitcnt vmcnt(4) lgkmcnt(0)')
    a('s_barrier')
    next_tile(a)

def chunk1(a):
    a('s_waitcnt vmcnt(0)')
    a('s_barrier')

def cf2_once(a):
    L = a.newlabel('cf2')
    a('s_cmp_lg_u32 s%d, 0' % S_LOFF)
    a('s_cbranch_scc1 %s' % L)
    a('s_cmp_lt_u32 s%d, 3' % S_W)
    a('s_cbranch_scc1 %s' % L)
    colsum(a, V_W1, 9)
    make_csfrag(a, 9, V_CF2, 6)
    a.label(L)

def out_gemm(a, w16=False):
    if w16:
        with role(a, 3):
            load_w16(a)
        with role(a, 'B'):
            load_w(a, V_W1, NT_Q)
    with role(a, 'A'):
        kloop(a, V_W0, 0, 8)
    if w16:
        L = a.newlabel('c1')
        a('s_waitcnt vmcnt(16)')
        a('s_cmp_ge_u32 s%d, 3' % S_W)
        a('s_cbranch_scc1 %s' % L)
        a('s_waitcnt vmcnt(0)')
        a.label(L)
        a('s_barrier')
    else:
        chunk1(a)
    with role(a, 'A'):
        kloop(a, V_W0, 8, 16)
        y_red_write(a, 65536)
    barrier(a)
    y_red_read(a, 65536, [(0, V_ACC)])
    resid_add(a, V_ACC)

def b1_compute(a):
    lm = LM_STD
    a('s_add_u32 s%d, s%d, 1' % (S_GPH, S_GPH))
    P = V_ACC
    X16 = [V_XF, V_XF + 4, V_XF + 8, V_XF + 12]
    def kv16_steps(s0):
        steps = list(range(s0, s0 + 4)) + list(range(s0 + 8, s0 + 12))
        L1 = a.newlabel('k16'); L2 = a.newlabel('k16')
        a('s_cmp_eq_u32 s%d, 1' % S_WHICH)
        a('s_cbranch_scc1 %s' % L1)
        for var in range(2):
            if var: a('s_branch %s' % L2); a.label(L1)
            for n in range(4):
                a('ds_read_b128 %s, v6 offset:%d' % (vr(X16[n]), steps[n] * 2048))
            for n, st in enumerate(steps):
                a('s_waitcnt lgkmcnt(%d)' % min(3, 7 - n))
                c = '0' if (s0 == 0 and n == 0) else vr(P)
                A_, B_ = (vr(V_W1 + 4 * st), vr(X16[n % 4])) if var == 0 else (vr(X16[n % 4]), vr(V_W1 + 4 * st))
                a('v_mfma_f32_16x16x32_bf16 %s, %s, %s, %s' % (vr(P), A_, B_, c))
                if n + 4 < 8:
                    a('ds_read_b128 %s, v6 offset:%d' % (vr(X16[n % 4]), steps[n + 4] * 2048))
        a.label(L2)
    with role(a, 'B'):
        kloop(a, V_W1, 0, 8)
        mean_frags(a, lm)
    with role(a, 3):
        a('v_and_b32 v6, 15, v%d' % V_LANE)
        a('v_lshlrev_b32 v6, 4, v6')
        a('v_bfe_u32 v5, v%d, 4, 1' % V_LANE)
        a('v_lshl_add_u32 v6, v5, 9, v6')
        a('v_lshrrev_b32 v5, 5, v%d' % V_LANE)
        a('v_lshl_add_u32 v6, v5, 10, v6')
        a('s_lshr_b32 s%d, s%d, 1' % (S_T0, S_SLAB))
        a('s_lshl_b32 s%d, s%d, 15' % (S_T0, S_T0))
        a('s_and_b32 s%d, s%d, 1' % (S_T1, S_SLAB))
        a('s_lshl_b32 s%d, s%d, 8' % (S_T1, S_T1))
        a('s_add_u32 s%d, s%d, s%d' % (S_T0, S_T0, S_T1))
        a('v_add_u32 v6, s%d, v6' % S_T0)
        kv16_steps(0)
        a('v_and_b32 v7, 15, v%d' % V_LANE)
        a('s_lshl_b32 s%d, s%d, 4' % (S_T0, S_SLAB))
        a('v_add_u32 v7, s%d, v7' % S_T0)
        stats_read(a, lm, 7, V_TMP)
        make_mfrag(a, VM, P + 8)
    chunk1(a)
    with role(a, 'B'):
        kloop(a, V_W1, 8, 16)
        y_correct(a, V_CF2)
        y_red_write(a, 65536)
    with role(a, 3):
        kv16_steps(4)
        MFg, CFg = P + 8, V_CF2
        L1 = a.newlabel('b1_fv'); Lsig = a.newlabel('b1_sig')
        a('s_cmp_eq_u32 s%d, 1' % S_WHICH)
        a('s_cbranch_scc1 %s' % L1)
        a('v_mfma_f32_16x16x32_bf16 %s, %s, %s, %s' % (vr(P), vr(CFg), vr(MFg), vr(P)))
        a('v_and_b32 v5, 15, v%d' % V_LANE)
        a('v_lshlrev_b32 v5, 4, v5')
        a('v_bfe_u32 v6, v%d, 4, 1' % V_LANE)
        a('v_lshl_add_u32 v5, v6, 9, v5')
        a('v_lshrrev_b32 v6, 5, v%d' % V_LANE)
        a('v_lshl_add_u32 v5, v6, 3, v5')
        a('s_lshl_b32 s%d, s%d, 11' % (S_T0, S_RB))
        a('s_lshr_b32 s%d, s%d, 1' % (S_T1, S_SLAB))
        a('s_lshl_b32 s%d, s%d, 10' % (S_T1, S_T1))
        a('s_add_u32 s%d, s%d, s%d' % (S_T0, S_T0, S_T1))
        a('s_and_b32 s%d, s%d, 1' % (S_T1, S_SLAB))
        a('s_lshl_b32 s%d, s%d, 8' % (S_T1, S_T1))
        a('s_add_u32 s%d, s%d, s%d' % (S_T0, S_T0, S_T1))
        a('s_add_u32 s%d, s%d, s%d' % (S_T0, S_T0, S_LOFF))
        a('s_add_u32 s%d, s%d, 0x%x' % (S_T0, S_T0, KF_))
        for r in range(4):
            a('v_mul_f32 v%d, v%d, v%d' % (P + r, P + r, VR))
        a('v_cvt_pk_bf16_f32 v%d, v%d, v%d' % (P + 4, P, P + 1))
        a('v_cvt_pk_bf16_f32 v%d, v%d, v%d' % (P + 5, P + 2, P + 3))
        a('buffer_store_dwordx2 v[%d:%d], v5, %s, s%d offen sc1' % (P + 4, P + 5, WSR, S_T0))
        a('v_mov_b32 v8, 0')
        a('s_nop 1')
        a('v_dot2_f32_bf16 v8, v%d, v%d, v8' % (P + 4, P + 4))
        a('v_dot2_f32_bf16 v8, v%d, v%d, v8' % (P + 5, P + 5))
        a.nop(3)
        a('v_mov_b32 v9, v8')
        a('s_nop 1')
        a('v_permlane16_swap_b32 v8, v9')
        a('s_nop 1')
        a('v_add_f32 v8, v8, v9')
        halves_sum(a, 8, 9)
        for sh in (8, 4, 2, 1):
            a('s_nop 1')
            a('v_max_f32_dpp v8, v8, v8 row_ror:%d row_mask:0xf bank_mask:0xf' % sh)
        a('s_lshl_b32 s%d, s%d, 2' % (S_T0, S_RB))
        a('s_add_u32 s%d, s%d, s%d' % (S_T0, S_T0, S_SLAB))
        a('s_lshl_b32 s%d, s%d, 2' % (S_T0, S_T0))
        a('s_add_u32 s%d, s%d, s%d' % (S_T0, S_T0, S_LOFF))
        a('s_add_u32 s%d, s%d, 0x%x' % (S_T0, S_T0, KMAX_))
        a('v_mov_b32 v5, 0')
        a('s_mov_b64 exec, 1')
        a('buffer_store_dword v8, v5, %s, s%d offen sc1' % (WSR, S_T0))
        a('s_mov_b64 exec, -1')
        a('s_branch %s' % Lsig)
        a.label(L1)
        a('v_mfma_f32_16x16x32_bf16 %s, %s, %s, %s' % (vr(P), vr(MFg), vr(CFg), vr(P)))
        a('v_and_b32 v5, 15, v%d' % V_LANE)
        a('v_lshlrev_b32 v5, 2, v5')
        a('v_add_u32 v5, %d, v5' % LDS_U)
        a('ds_write_b32 v5, v%d' % VR)
        a('v_lshrrev_b32 v6, 4, v%d' % V_LANE)
        a('v_lshlrev_b32 v6, 4, v6')
        a('v_add_u32 v6, %d, v6' % LDS_U)
        a('s_waitcnt lgkmcnt(0)')
        a('ds_read_b128 %s, v6' % vr(P + 16))
        a('v_and_b32 v5, 15, v%d' % V_LANE)
        a('v_lshlrev_b32 v5, 4, v5')
        a('v_bfe_u32 v6, v%d, 4, 1' % V_LANE)
        a('v_lshl_add_u32 v5, v6, 8, v5')
        a('v_lshrrev_b32 v6, 5, v%d' % V_LANE)
        a('v_lshl_add_u32 v5, v6, 3, v5')
        a('s_lshl_b32 s%d, s%d, 2' % (S_T0, S_RB))
        a('s_add_u32 s%d, s%d, s%d' % (S_T0, S_T0, S_SLAB))
        a('s_lshl_b32 s%d, s%d, 9' % (S_T0, S_T0))
        a('s_add_u32 s%d, s%d, s%d' % (S_T0, S_T0, S_LOFF))
        a('s_add_u32 s%d, s%d, 0x%x' % (S_T0, S_T0, VF_))
        a('s_waitcnt lgkmcnt(0)')
        for r in range(4):
            a('v_mul_f32 v%d, v%d, v%d' % (P + r, P + r, P + 16 + r))
        a('v_cvt_pk_bf16_f32 v%d, v%d, v%d' % (P + 4, P, P + 1))
        a('v_cvt_pk_bf16_f32 v%d, v%d, v%d' % (P + 5, P + 2, P + 3))
        a('buffer_store_dwordx2 v[%d:%d], v5, %s, s%d offen sc1' % (P + 4, P + 5, WSR, S_T0))
        a.label(Lsig)
        a('s_waitcnt vmcnt(0)')
        lsignal(a)
    ln_stats(a, lm)
    barrier(a)
    AQ = V_ACC
    y_red_read(a, 65536, [(0, AQ)])
    scale_pack(a, AQ, VR, V_XF)
    for r in range(4):
        a('v_lshlrev_b32 v%d, 16, v%d' % (AQ + 2 * r, V_XF + r))
        a('v_and_b32 v%d, 0xffff0000, v%d' % (AQ + 2 * r + 1, V_XF + r))
    for r in range(8):
        a('v_mul_f32 v%d, 0x%x, v%d' % (AQ + r, f2u(CQ), AQ + r))
    for r in range(4):
        a('v_cvt_pk_bf16_f32 v%d, v%d, v%d' % (A_Q + r, AQ + 2 * r, AQ + 2 * r + 1))

UNROLL = 8
def attn_loop(a):
    Ltop = a.newlabel('at_loop')
    def rdK(buf, off):
        a('ds_read_b128 %s, v%d offset:%d' % (vr(A_K[buf]), A_KA, off))
    def rdV(buf, off):
        a('s_mov_b64 exec, s[%d:%d]' % (S_MASK_LO16, S_MASK_LO16 + 1))
        a('ds_read_b128 %s, v%d offset:%d' % (vr(A_V[buf]), A_VA, off))
        a('ds_read_b128 %s, v%d offset:%d' % (vr(A_V[buf] + 4), A_VA, off + 512))
        a('s_mov_b64 exec, -1')
    def qk(sbuf, kbuf):
        a('v_mfma_f32_32x32x16_bf16 %s, %s, %s, %s' % (vr(A_S[sbuf], 16), vr(A_K[kbuf]), vr(A_Q), vr(A_BIAS, 16)))
    def pv(vb, pb):
        a('v_mfma_f32_32x32x16_bf16 %s, %s, %s, %s' % (vr(A_O, 16), vr(vb), vr(pb), vr(A_O, 16)))
    ex = lambda r: a('v_exp_f32 v%d, v%d' % (r, r))
    a('v_mov_b32 v%d, v%d' % (A_KA, V_L16))
    a('v_and_b32 v%d, 15, v%d' % (A_VA, V_LANE))
    a('v_lshlrev_b32 v%d, 4, v%d' % (A_VA, A_VA))
    a('v_lshrrev_b32 v7, 5, v%d' % V_LANE)
    a('v_lshl_add_u32 v%d, v7, 8, v%d' % (A_VA, A_VA))
    a('v_add_u32 v%d, 65536, v%d' % (A_VA, A_VA))
    rdK(0, 0)
    rdK(1, 1024)
    rdV(0, 0)
    for r in range(16):
        a('v_mov_b32 v%d, 0' % (A_O + r))
    a('s_waitcnt lgkmcnt(3)')
    qk(0, 0)
    a('s_mov_b32 s%d, 0' % S_CNT)
    a.nop(8)
    a.label(Ltop)
    for u in range(UNROLL):
        sb = u % 2
        S = A_S[sb]
        cv = lambda r: a('v_cvt_pk_bf16_f32 v%d, v%d, v%d' % (A_P + r, S + 2 * r, S + 2 * r + 1))
        if u == 3:
            Lh = a.newlabel('h1')
            a('s_or_b32 s%d, s%d, s%d' % (S_T0, S_CNT, S_PASS))
            a('s_cmp_lg_u32 s%d, 0' % S_T0)
            a('s_cbranch_scc1 %s' % Lh)
            tagbase(a, 65, S_GPH)
            a('v_and_b32 v7, 7, v%d' % V_LANE)
            a('v_lshlrev_b32 v7, 7, v7')
            a('s_mov_b32 s66, 0x%x' % XFLAG)
            poll(a, ['buffer_load_dwordx2 v[8:9], v7, %s, s66 offen sc1' % WSR], tagcmp([8], 65, 3), sleep=1)
            kv_dma(a, range(1, 8))
            a.label(Lh)
        if u == 6:
            Lh = a.newlabel('h2'); Lh1 = a.newlabel('h2')
            a('s_lshl_b32 s%d, s%d, 3' % (S_T0, S_PASS))
            a('s_or_b32 s%d, s%d, s%d' % (S_T0, S_T0, S_CNT))
            a('s_cmp_gt_u32 s%d, 1' % S_T0)
            a('s_cbranch_scc1 %s' % Lh)
            a('s_waitcnt vmcnt(12)')
            a('s_cmp_eq_u32 s%d, 0' % S_T0)
            a('s_cbranch_scc1 %s' % Lh1)
            a('s_waitcnt vmcnt(0)')
            a.label(Lh1)
            a('s_barrier')
            a.label(Lh)
        a('s_waitcnt lgkmcnt(2)')
        qk(1 - sb, (u + 1) % 2)
        rdK(u % 2, (u + 2) * 1024)
        ex(S + 0); ex(S + 1); ex(S + 2); ex(S + 3); cv(0); ex(S + 4); ex(S + 5); cv(1); ex(S + 6); ex(S + 7); cv(2)
        ex(S + 8); ex(S + 9); cv(3); ex(S + 10); ex(S + 11)
        a('s_waitcnt lgkmcnt(1)')
        pv(A_V[u % 2], A_P)
        cv(4); ex(S + 12); ex(S + 13); cv(5); ex(S + 14); ex(S + 15); cv(6)
        a('s_nop 0')
        cv(7)
        a('s_nop 1')
        pv(A_V[u % 2] + 4, A_P + 4)
        rdV((u + 1) % 2, (u + 1) * 1024)
    a('v_add_u32 v%d, %d, v%d' % (A_KA, UNROLL * 1024, A_KA))
    a('v_add_u32 v%d, %d, v%d' % (A_VA, UNROLL * 1024, A_VA))
    Lnw = a.newlabel('at_nw')
    plan = {1: (0, 0, 4), 2: (0, 4, 12), 3: (0, 12, 16), 4: (1, 0, 8), 5: (1, 8, 12), 6: (1, 12, 16)}
    for n, (ws_, t0, t1) in plan.items():
        Ln = a.newlabel('at_w')
        a('s_cmp_lg_u32 s%d, %d' % (S_CNT, n))
        a('s_cbranch_scc1 %s' % Ln)
        if ws_ == 0: load_w(a, V_W0, NT_OB, NT_QKV, t0, t1)
        else: load_w(a, V_W1, NT_QKV + 16, NT_QKV + 32, t0, t1)
        a('s_branch %s' % Lnw)
        a.label(Ln)
    a.label(Lnw)
    a('s_add_u32 s%d, s%d, 1' % (S_CNT, S_CNT))
    a('s_cmp_lt_u32 s%d, %d' % (S_CNT, 64 // UNROLL))
    a('s_cbranch_scc1 %s' % Ltop)
    a('s_waitcnt lgkmcnt(0)')
    a.nop(16)

def attn_pre(a):
    a('s_mov_b32 s%d, 0x00110000' % S_T0)
    a('s_mov_b32 s%d, 0x00110000' % S_T1)
    a('v_cndmask_b32_e64 v7, 0, v%d, s[%d:%d]' % (V_ONES, S_T0, S_T1))
    for b in range(2):
        for r in range(8):
            a('v_mov_b32 v%d, v7' % (A_V[b] + r))
    a('v_mov_b32 v%d, 0' % V_Q2)
    a('s_nop 1')
    for r in range(4):
        a('v_dot2_f32_bf16 v%d, v%d, v%d, v%d' % (V_Q2, A_Q + r, A_Q + r, V_Q2))
    a.nop(3)
    halves_sum(a, V_Q2, 9)

def kv_dma(a, slots):
    a('s_lshl_b32 s67, s%d, 10' % S_W)
    for sl in slots:
        a('s_add_u32 s%d, s%d, %d' % (S_T0, S_GRP, sl))
        a('s_and_b32 s%d, s%d, 7' % (S_T0, S_T0))
        a('s_lshl_b32 s%d, s%d, 13' % (S_T0, S_T0))
        a('s_add_u32 s%d, s%d, s67' % (S_T0, S_T0))
        a('s_add_u32 s%d, s%d, s%d' % (S_T0, S_T0, S_LOFF))
        a('s_add_u32 s%d, s%d, 0x%x' % (S_T0, S_T0, KF_))
        a('s_add_u32 m0, s67, %d' % (sl * 8192))
        a('s_add_u32 s%d, s%d, 0x10000' % (S_T1, S_T0))
        a('buffer_load_dwordx4 v%d, %s, s%d offen sc1 lds' % (V_L16, WSR, S_T0))
        a('s_add_u32 m0, s67, %d' % (65536 + sl * 8192))
        a('s_nop 0')
        a('buffer_load_dwordx4 v%d, %s, s%d offen sc1 lds' % (V_L16, WSR, S_T1))

def attn_inputs(a):
    with role(a, 0):
        lwait(a)
        L = a.newlabel('ld')
        a('s_lshr_b32 s%d, s2, 3' % S_T0)
        a('s_cmp_lg_u32 s%d, 0' % S_T0)
        a('s_cbranch_scc1 %s' % L)
        tagval(a, 6, S_GPH)
        a('s_lshl_b32 s%d, s%d, 7' % (S_T0, S_GRP))
        a('s_add_u32 s%d, s%d, 0x%x' % (S_T0, S_T0, XFLAG))
        a('v_mov_b32 v5, 0')
        a('s_mov_b64 exec, 1')
        a('buffer_store_dwordx2 v[6:7], v5, %s, s%d offen sc1' % (WSR, S_T0))
        a('s_mov_b64 exec, -1')
        a.label(L)
    barrier(a)
    ts(a)
    kv_dma(a, [0])
    a('v_and_b32 v5, 15, v%d' % V_LANE)
    a('v_lshlrev_b32 v5, 2, v5')
    a('s_lshl_b32 s%d, s%d, 6' % (S_T0, S_GRP))
    a('s_add_u32 s%d, s%d, s%d' % (S_T0, S_T0, S_LOFF))
    a('s_add_u32 s%d, s%d, 0x%x' % (S_T0, S_T0, KMAX_))
    a('buffer_load_dword v10, v5, %s, s%d offen sc1' % (WSR, S_T0))
    a('s_waitcnt vmcnt(0)')
    a('s_barrier')

def attn_compute(a):
    a('v_mov_b32 v8, v10')
    for sh in (8, 4, 2, 1):
        a('s_nop 1')
        a('v_max_f32_dpp v8, v8, v8 row_ror:%d row_mask:0xf bank_mask:0xf' % sh)
    a('v_mul_f32 v10, v%d, v8' % V_Q2)
    a('v_sqrt_f32 v10, v10')
    a('s_nop 0')
    a('v_mul_f32 v10, 0x%x, v10' % f2u(-1.001))
    a('s_mov_b32 s%d, 0' % S_PASS)
    Lrun = a.newlabel('at_run'); Lok = a.newlabel('at_ok'); Lmx = a.newlabel('at_mx')
    a.label(Lrun)
    for r in range(16):
        a('v_mov_b32 v%d, v10' % (A_BIAS + r))
    a('s_nop 1')
    attn_loop(a)
    a('s_cmp_eq_u32 s%d, 1' % S_PASS)
    a('s_cbranch_scc1 %s' % Lok)
    a('v_max3_f32 v8, abs(v%d), abs(v%d), abs(v%d)' % (A_O, A_O + 1, A_O + 2))
    a('v_max3_f32 v9, abs(v%d), abs(v%d), abs(v%d)' % (A_O + 3, A_O + 4, A_O + 5))
    a('v_max3_f32 v8, abs(v%d), abs(v%d), v8' % (A_O + 6, A_O + 7))
    a('v_max_f32 v8, v8, v9')
    a('v_cmp_nle_f32 vcc, 0x%x, v%d' % (f2u(2.0 ** -89), A_O + 8))
    a('v_cmp_nge_f32 s[64:65], v%d, v%d' % (7, A_O + 8)) if False else None
    a('s_mov_b64 s[64:65], vcc')
    a('v_cmp_nge_f32 vcc, 0x%x, v%d' % (f2u(2.0 ** 90), A_O + 8))
    a('s_nop 3')
    a('s_or_b64 s[64:65], s[64:65], vcc')
    a('v_cmp_nge_f32 vcc, 0x%x, v8' % f2u(2.0 ** 126))
    a('s_nop 3')
    a('s_or_b64 s[64:65], s[64:65], vcc')
    a('s_cmp_eq_u64 s[64:65], 0')
    a('s_cbranch_scc1 %s' % Lok)
    a('s_mov_b32 s%d, 1' % S_PASS)
    a('v_mov_b32 v10, 0xff800000')
    a('v_mov_b32 v%d, v%d' % (A_KA, V_L16))
    a('s_mov_b32 s%d, 0' % S_CNT)
    a.label(Lmx)
    a('ds_read_b128 %s, v%d' % (vr(A_K[0]), A_KA))
    a('s_waitcnt lgkmcnt(0)')
    a('v_mfma_f32_32x32x16_bf16 %s, %s, %s, 0' % (vr(A_S[0], 16), vr(A_K[0]), vr(A_Q)))
    a.nop(16)
    for r in range(0, 16, 2):
        a('v_max3_f32 v10, v10, v%d, v%d' % (A_S[0] + r, A_S[0] + r + 1))
    a('v_add_u32 v%d, 1024, v%d' % (A_KA, A_KA))
    a('s_add_u32 s%d, s%d, 1' % (S_CNT, S_CNT))
    a('s_cmp_lt_u32 s%d, 64' % S_CNT)
    a('s_cbranch_scc1 %s' % Lmx)
    halves_sum(a, 10, 9, 'v_max_f32')
    a('v_sub_f32 v10, 0, v10')
    a('s_branch %s' % Lrun)
    a.label(Lok)
    a('v_rcp_f32 v8, v%d' % (A_O + 8))
    a('s_nop 0')
    scale_pack(a, A_O, 8, A_P)
    store_blk(a, A_P)
    csignal(a)

def header():
    ref = open('cdna_kernels/%s.s.ref' % NAME).read().split('\n')
    out = []
    for l in ref:
        if not l.startswith(';'): break
        if '@launch' in l: continue
        out.append(l)
    return out

def main(path):
    a = Asm()
    for h in header(): a.raw(h)
    a.raw('; @launch grid=(256,1,1) block=(512,1,1) lds=%d' % LDS_TOTAL)
    a.raw('.amdgcn_target "amdgcn-amd-amdhsa--gfx950"')
    a.raw('.text')
    name = NAME + '_kernel'
    prologue(a, name)
    ts(a)
    p1(a)
    ts(a)
    a.label('L_layer')
    x_inputs(a, False)
    ts(a)
    out_gemm(a, True)
    store_x(a)
    csignal(a)
    cf2_once(a)
    ts(a)
    x_inputs(a, True)
    ts(a)
    b1_compute(a)
    attn_pre(a)
    ts(a)
    attn_inputs(a)
    ts(a)
    attn_compute(a)
    ts(a)
    x_inputs(a, False)
    ts(a)
    out_gemm(a)
    a('s_cmp_lg_u32 s%d, 0' % S_LOFF)
    a('s_cbranch_scc1 L_final')
    a('s_mov_b32 s%d, 0x%x' % (S_LOFF, LS))
    store_x(a)
    csignal(a)
    ts(a)
    x_inputs(a, True)
    ts(a)
    a1_std(a)
    ts(a)
    a('s_branch L_layer')
    a.label('L_final')
    final_store(a)
    a('s_waitcnt vmcnt(0)')
    ts(a)
    epilogue(a, name)
    open(path, 'w').write(a.text())

if __name__ == '__main__':
    main(sys.argv[1] if len(sys.argv) > 1 else 'cdna_kernels/%s.s' % NAME)
```

```python
import struct, math, sys, os

NAME = 'interleave_layers__linear_attn_block__grouped_kv_mqa__prompt'
E = os.environ.get
TS_ON = E('TS', '0') == '1'
TS2 = TS_ON and E('TS2', '0') == '1'
DBGBUF = E('DBGBUF', '0') == '1'

T0_ = 0x1000000 if DBGBUF else 0x000000
WP = 0x400000
NT_QKV, NT_OA, NT_Q, NT_OB = 0, 48, 64, 80
WKV16 = 0x700000
STP = 0x780000
LB, LS = 0x880000, 0x140000
KF_, VF_, KMAX_ = LB, LB + 0x10000, LB + 0x20000
KVP_, ZP_ = LB + 0x28000, LB + 0x128000
CFLAG = 0xB00000
GFLAG = 0xB04000
XFLAG = 0xB05000
HFLAG = 0xB20000
TSBUF = 0xB40000
WS_BYTES = 0x10000000
OOB = 0x7FFF0000
_t = lambda n: T0_ + n * 0x200000
XF = [None, _t(1), _t(3), _t(5)]
OLIN = [_t(0), _t(4)]; OF = [_t(2), _t(6)]
KF = [KF_, KF_ + LS]; VF = [VF_, VF_ + LS]; KMAX = [KMAX_, KMAX_ + LS]; KVP = [KVP_, KVP_ + LS]; ZP = [ZP_, ZP_ + LS]

def f2u(x): return struct.unpack('<I', struct.pack('<f', x))[0]
LOG2E = math.log2(math.e)
CQ = 0.25 * LOG2E

class Asm:
    def __init__(self):
        self.l = []; self.uid = 0; self.vm = []; self.done = -1
    def __call__(self, s):
        for line in s.strip('\n').split('\n'):
            self.l.append('    ' + line.strip())
    def label(self, s): self.l.append(s + ':')
    def raw(self, s): self.l.append(s)
    def nop(self, n):
        while n > 0:
            k = min(n, 16); self('s_nop %d' % (k - 1)); n -= k
    def newlabel(self, p='L'):
        self.uid += 1; return '%s_%d' % (p, self.uid)
    def text(self): return '\n'.join(self.l) + '\n'
    def lreset(self): self.lg = []; self.ldone = -1
    def l_(self, tag, s_):
        self(s_); self.lg.append(tag)
    def lwait(self, *tags):
        idx = [i for i, t in enumerate(self.lg) if t in tags]
        if not idx or max(idx) <= self.ldone: return
        self.ldone = max(idx)
        n = len(self.lg) - 1 - max(idx)
        self('s_waitcnt lgkmcnt(%d)' % min(n, 15))
    def vreset(self): self.vm = []; self.done = -1
    def v(self, tag, s):
        self(s); self.vm.append(tag)
    def vwait(self, *tags, extra=''):
        idx = [i for i, t in enumerate(self.vm) if t in tags]
        if max(idx) <= self.done and not extra: return
        self.done = max(self.done, max(idx))
        n = len(self.vm) - 1 - max(idx)
        assert n <= 63
        self('s_waitcnt vmcnt(%d)%s' % (n, extra))

def vr(b, n=4): return 'v[%d:%d]' % (b, b + n - 1)

S_WS, S_IN, S_IN2 = 4, 8, 12
S_RB, S_CS, S_W, S_I, S_J, S_KH = 16, 17, 18, 19, 20, 21
S_BLK, S_LOFF = 22, 23
S_T0, S_T1, S_T2, S_T3, S_T4, S_T5 = 24, 25, 26, 27, 28, 29
S_MASK_LO16 = 30
S_WHICH, S_SLAB = 34, 35
S_CNT, S_PASS, S_CPH, S_GPH = 36, 37, 38, 39
S_FAST, S_SPIN = 62, 63
S_TSI, S_TOFF, S_SOFF, S_GRP = 72, 73, 74, 75
S_DBG = 76
S_WOFF, S_XOFF = 80, 81
S_TS = 82
S_NLO, S_NHI, S_XCC = 32, 33, 91
V_ONES, V_LANE, V_L16, V_XB, V_XA = 0, 1, 2, 3, 4
VM, VR = 10, 11
V_CF1, V_CF0, V_CF2 = 12, 14, 16
V_RES = 20
V_XF = 24
V_ACC = 40
V_PQ = 88
V_CFA, V_GFA, V_PCA, V_Q2 = 96, 97, 98, 99
V_TMP = 100
V_W0, V_W1 = 128, 192
A_Q, A_BIAS, A_S, A_P, A_O, A_K, A_V = 100, 24, [40, 56], 72, 80, [104, 108], [112, 120]
A_KA, A_VA = 5, 6
XBUF = [V_XF, V_XF + 8, V_TMP, V_TMP + 8]
ACC0, ACC1 = V_ACC, V_ACC + 16
V_MF = V_ACC + 32

class LM:
    def __init__(s, red, stat, pkv, kvf, redq, wst=98304): s.red, s.stat, s.pkv, s.kvf, s.redq, s.wst = red, stat, pkv, kvf, redq, wst
LM_STD = LM(red=65536, stat=131072, pkv=135168, kvf=151552, redq=65536)
LDS_U = 155648
LDS_TOTAL = 163840
WSR = 's[%d:%d]' % (S_WS, S_WS + 3)
SPIN_MAX = 200000

def srd(a, d, ptr_s, nbytes):
    a('s_mov_b32 s%d, s%d' % (d, ptr_s))
    a('s_mov_b32 s%d, s%d' % (d + 1, ptr_s + 1))
    a('s_mov_b32 s%d, 0x%x' % (d + 2, nbytes))
    a('s_mov_b32 s%d, 0x00020000' % (d + 3))

def ts(a):
    if not TS_ON: return
    L = a.newlabel('ts')
    a('s_cmp_lg_u32 s%d, %s' % (S_W, E('TSW', '0')))
    a('s_cbranch_scc1 %s' % L)
    a('s_memrealtime s[%d:%d]' % (S_TS, S_TS + 1))
    a('s_memtime s[92:93]')
    a('s_waitcnt lgkmcnt(0)')
    a('s_mov_b64 exec, 1')
    a('v_mov_b32 v8, s%d' % S_TS)
    a('v_mov_b32 v9, s%d' % S_TSI)
    a('buffer_store_dword v8, v9, %s, 0 offen' % WSR)
    a('v_mov_b32 v7, s92')
    a('buffer_store_dword v7, v9, %s, 0 offen offset:256' % WSR)
    a('s_mov_b64 exec, -1')
    a('s_add_u32 s%d, s%d, 4' % (S_TSI, S_TSI))
    a.label(L)
def ts3(a):
    if TS_ON and E('TS3'): ts(a)
def ts2(a):
    if TS2: ts(a)

class role:
    def __init__(s, a, who): s.a, s.who = a, who
    def __enter__(s):
        a = s.a; s.L = a.newlabel('role')
        if s.who == 'A': a('s_cmp_lg_u32 s%d, 0' % S_KH)
        elif s.who == 'B': a('s_cmp_lg_u32 s%d, 1' % S_KH)
        else: a('s_cmp_lg_u32 s%d, %d' % (S_W, s.who))
        a('s_cbranch_scc1 %s' % s.L)
    def __exit__(s, *e): s.a.label(s.L)

def prologue(a, name):
    a.raw('.globl %s' % name); a.raw('.p2align 8'); a.raw('.type %s,@function' % name)
    a.label(name)
    a('s_cmp_ge_u32 s2, 256')
    a('s_cbranch_scc1 L_end')
    a('s_load_dwordx16 s[40:55], s[0:1], 0')
    a('s_load_dwordx4 s[56:59], s[0:1], 64')
    a('s_load_dwordx2 s[60:61], s[0:1], 80')
    a('s_and_b32 s%d, s2, 7' % S_GRP)
    a('s_lshl_b32 s%d, s%d, 2' % (S_RB, S_GRP))
    a('s_lshr_b32 s%d, s2, 6' % S_T0)
    a('s_add_u32 s%d, s%d, s%d' % (S_RB, S_RB, S_T0))
    a('s_bfe_u32 s%d, s2, 0x30003' % S_CS)
    a('v_lshrrev_b32 v5, 6, v0')
    a('v_and_b32 v%d, 63, v0' % V_LANE)
    a('s_nop 0')
    a('v_readfirstlane_b32 s%d, v5' % S_W)
    a('v_lshlrev_b32 v%d, 4, v%d' % (V_L16, V_LANE))
    a('s_nop 3')
    a('s_and_b32 s%d, s%d, 1' % (S_I, S_W))
    a('s_bfe_u32 s%d, s%d, 0x10001' % (S_J, S_W))
    a('s_lshr_b32 s%d, s%d, 2' % (S_KH, S_W))
    a('s_lshl_b32 s%d, s%d, 1' % (S_T0, S_RB))
    a('s_add_u32 s%d, s%d, s%d' % (S_T0, S_T0, S_I))
    a('s_lshl_b32 s%d, s%d, 5' % (S_T0, S_T0))
    a('s_lshl_b32 s%d, s%d, 2' % (S_T1, S_CS))
    a('s_add_u32 s%d, s%d, s%d' % (S_T0, S_T0, S_T1))
    a('s_lshl_b32 s%d, s%d, 1' % (S_T1, S_J))
    a('s_add_u32 s%d, s%d, s%d' % (S_T0, S_T0, S_T1))
    a('s_add_u32 s%d, s%d, s%d' % (S_T0, S_T0, S_KH))
    a('s_lshl_b32 s%d, s%d, 10' % (S_BLK, S_T0))
    a('s_lshl_b32 s%d, s%d, 14' % (S_T1, S_I))
    a('s_mul_i32 s%d, s%d, 49152' % (S_T0, S_I))
    a('v_add_u32 v%d, s%d, v%d' % (V_XA, S_T0, V_L16))
    a('v_xor_b32 v%d, 32768, v%d' % (V_XB, V_XA))
    a('s_lshl_b32 s%d, s%d, 1' % (S_T0, S_CS))
    a('s_add_u32 s%d, s%d, s%d' % (S_T0, S_T0, S_J))
    a('s_lshl_b32 s%d, s%d, 6' % (S_WOFF, S_T0))
    a('s_lshl_b32 s%d, s%d, 16' % (S_XOFF, S_RB))
    a('v_mov_b32 v%d, 0x3f803f80' % V_ONES)
    a('s_mov_b32 s%d, 0x0000ffff' % S_MASK_LO16)
    a('s_mov_b32 s%d, 0x0000ffff' % (S_MASK_LO16 + 1))
    a('s_and_b32 s%d, s%d, 1' % (S_WHICH, S_CS))
    a('s_lshr_b32 s%d, s%d, 1' % (S_SLAB, S_CS))
    a('s_mov_b32 s%d, 0' % S_LOFF)
    a('s_mov_b32 s%d, 0' % S_CPH)
    a('s_mov_b32 s%d, 0' % S_GPH)
    a('s_mov_b32 s%d, 0' % S_FAST)
    a('s_mov_b32 s%d, 0x%x' % (S_TOFF, T0_))
    a('s_mov_b32 s%d, 0x%x' % (S_SOFF, STP))
    a('s_lshl_b32 s%d, s%d, 9' % (S_T0, S_RB))
    a('s_add_u32 s%d, s%d, 0x%x' % (S_T0, S_T0, CFLAG))
    a('v_lshlrev_b32 v5, 3, v%d' % V_LANE)
    a('v_add_u32 v%d, s%d, v5' % (V_PCA, S_T0))
    a('s_lshl_b32 s%d, s%d, 6' % (S_T1, S_CS))
    a('s_add_u32 s%d, s%d, s%d' % (S_T0, S_T0, S_T1))
    a('s_lshl_b32 s%d, s%d, 3' % (S_T1, S_W))
    a('s_add_u32 s%d, s%d, s%d' % (S_T0, S_T0, S_T1))
    a('v_mov_b32 v%d, s%d' % (V_CFA, S_T0))
    a('s_getreg_b32 s%d, hwreg(HW_REG_XCC_ID)' % S_XCC)
    a('s_and_b32 s%d, s%d, 15' % (S_XCC, S_XCC))
    a('s_lshl_b32 s%d, s%d, 6' % (S_T0, S_RB))
    a('s_lshl_b32 s%d, s%d, 3' % (S_T1, S_CS))
    a('s_add_u32 s%d, s%d, s%d' % (S_T0, S_T0, S_T1))
    a('s_add_u32 s%d, s%d, 0x%x' % (S_T0, S_T0, GFLAG))
    a('v_mov_b32 v%d, s%d' % (V_GFA, S_T0))
    a('s_lshl_b32 s%d, s2, 9' % S_TSI)
    a('s_add_u32 s%d, s%d, 0x%x' % (S_TSI, S_TSI, TSBUF))
    a('s_waitcnt lgkmcnt(0)')
    srd(a, S_WS, 60, WS_BYTES)
    srd(a, S_DBG, 58, 256)

def epilogue(a, name, nv=256):
    a.label('L_end')
    a('s_endpgm')
    a.raw('.section .rodata,"a"'); a.raw('.p2align 6')
    a.raw('.amdhsa_kernel %s' % name)
    a.raw('  .amdhsa_next_free_vgpr %d' % nv)
    a.raw('  .amdhsa_next_free_sgpr 96')
    a.raw('  .amdhsa_accum_offset %d' % ((nv + 3) // 4 * 4))
    a.raw('  .amdhsa_group_segment_fixed_size 0')
    a.raw('  .amdhsa_kernarg_size 88')
    a.raw('  .amdhsa_user_sgpr_count 2')
    a.raw('  .amdhsa_user_sgpr_kernarg_segment_ptr 1')
    a.raw('  .amdhsa_system_sgpr_workgroup_id_x 1')
    a.raw('  .amdhsa_float_denorm_mode_32 3')
    a.raw('.end_amdhsa_kernel')

def fast_store(a, fmts):
    L1 = a.newlabel('fs'); L2 = a.newlabel('fs')
    a('s_cmp_eq_u32 s%d, 1' % S_FAST)
    a('s_cbranch_scc1 %s' % L1)
    for f in fmts: a(f.replace('@', ' sc1'))
    a('s_branch %s' % L2)
    a.label(L1)
    for f in fmts: a(f.replace('@', ''))
    a.label(L2)

def tagval(a, v, sph, xcc=False):
    a('s_lshl_b32 s%d, s%d, 4' % (S_T0, sph))
    a('s_add_u32 s%d, s%d, s%d' % (S_T0, S_T0, S_NLO))
    if xcc: a('s_add_u32 s%d, s%d, s%d' % (S_T0, S_T0, S_XCC))
    a('v_mov_b32 v%d, s%d' % (v, S_T0))
    a('v_mov_b32 v%d, s%d' % (v + 1, S_NHI))

def tagbase(a, sdst, sph):
    a('s_lshl_b32 s%d, s%d, 4' % (sdst, sph))
    a('s_add_u32 s%d, s%d, s%d' % (sdst, sdst, S_NLO))

def tagcmp(pairs, sbase, t):
    out = []
    for n, p in enumerate(pairs):
        out.append('v_subrev_u32 v%d, s%d, v%d' % (p, sbase, p))
        out.append('v_xor_b32 v%d, s%d, v%d' % (p + 1, S_NHI, p + 1))
        out.append('v_lshrrev_b32 v%d, 12, v%d' % (p, p))
        if n == 0: out.append('v_or_b32 v%d, v%d, v%d' % (t, p, p + 1))
        else: out.append('v_or3_b32 v%d, v%d, v%d, v%d' % (t, t, p, p + 1))
    out.append('v_cmp_ne_u32 vcc, 0, v%d' % t)
    return out

def csignal(a, tag=None):
    a('s_add_u32 s%d, s%d, 1' % (S_CPH, S_CPH))
    tagval(a, 6, S_CPH, True)
    if tag is None:
        a('s_waitcnt vmcnt(0) lgkmcnt(0)')
    a('s_mov_b64 exec, 1')
    fast_store(a, ['buffer_store_dwordx2 v[6:7], v%d, %s, 0 offen@' % (V_CFA, WSR)])
    a('s_mov_b64 exec, -1')
    if tag: a.vm.append(tag)

def poll(a, load, cmp, sleep=0):
    Lp = a.newlabel('pl'); Lo = a.newlabel('po')
    a('s_mov_b32 s%d, 0' % S_SPIN)
    a.label(Lp)
    a('s_add_u32 s%d, s%d, 1' % (S_SPIN, S_SPIN))
    a('s_cmp_gt_u32 s%d, %d' % (S_SPIN, SPIN_MAX))
    a('s_cbranch_scc1 L_end')
    for l in load: a(l)
    a('s_waitcnt vmcnt(0)')
    for c in cmp: a(c)
    if sleep:
        a('s_cbranch_vccz %s' % Lo)
        a('s_sleep %d' % sleep)
        a('s_branch %s' % Lp)
        a.label(Lo)
    else:
        a('s_cbranch_vccnz %s' % Lp)

def cwait(a):
    tagbase(a, 65, S_CPH)
    poll(a, ['buffer_load_dwordx2 v[8:9], v%d, %s, 0 offen sc1' % (V_PCA, WSR)], tagcmp([8], 65, 7))

def lpoll_addr(a, v):
    a('v_and_b32 v%d, 31, v%d' % (v, V_LANE))
    a('v_lshlrev_b32 v%d, 3, v%d' % (v, v))
    a('s_lshl_b32 s66, s%d, 8' % S_GRP)
    a('s_add_u32 s66, s66, 0x%x' % GFLAG)

def lwait(a):
    tagbase(a, 65, S_GPH)
    lpoll_addr(a, 5)
    poll(a, ['buffer_load_dwordx2 v[8:9], v5, %s, s66 offen sc1' % WSR], tagcmp([8], 65, 7))

def lsignal(a):
    tagval(a, 6, S_GPH, True)
    a('s_mov_b64 exec, 1')
    fast_store(a, ['buffer_store_dwordx2 v[6:7], v%d, %s, 0 offen@' % (V_GFA, WSR)])
    a('s_mov_b64 exec, -1')

DBR = 's[%d:%d]' % (S_DBG, S_DBG + 3)
NP = 18
def nonce_publish(a):
    L = a.newlabel('np')
    a('s_cmp_lg_u32 s2, 0')
    a('s_cbranch_scc1 %s' % L)
    a('s_cmp_lg_u32 s%d, 0' % S_W)
    a('s_cbranch_scc1 %s' % L)
    a('s_memrealtime s[64:65]')
    a('s_waitcnt lgkmcnt(0)')
    a('s_lshl_b64 s[64:65], s[64:65], 12')
    a('s_or_b32 s65, s65, 0x80000000')
    a('v_mov_b32 v6, s64')
    a('v_mov_b32 v7, s65')
    a('v_mov_b32 v5, 0')
    a('s_mov_b64 exec, 1')
    a('buffer_store_dwordx2 v[6:7], v5, %s, 0 offen sc1' % DBR)
    a('s_mov_b64 exec, -1')
    a.label(L)

def nonce_probe(a):
    a('v_mov_b32 v5, 0')
    a.v('np', 'buffer_load_dwordx2 v[%d:%d], v5, %s, 0 offen sc1' % (NP, NP + 1, DBR))

def nonce_check(a):
    Lok = a.newlabel('nok')
    a.vwait('np')
    a('v_cmp_eq_u32 vcc, 0, v%d' % (NP + 1))
    a('s_cbranch_vccz %s' % Lok)
    a('v_mov_b32 v5, 0')
    poll(a, ['buffer_load_dwordx2 v[%d:%d], v5, %s, 0 offen sc1' % (NP, NP + 1, DBR)], ['v_cmp_eq_u32 vcc, 0, v%d' % (NP + 1)], sleep=2)
    a.label(Lok)
    a('v_readfirstlane_b32 s%d, v%d' % (S_NLO, NP))
    a('v_readfirstlane_b32 s%d, v%d' % (S_NHI, NP + 1))
    a('s_nop 3')

PR = V_W0 + 48
def p1_probe(a):
    lpoll_addr(a, PR + 6)
    a.v('pr', 'buffer_load_dwordx2 v[%d:%d], v%d, %s, s66 offen sc1' % (PR + 2, PR + 3, PR + 6, WSR))

def p1_check(a):
    L2 = a.newlabel('pc')
    a.vwait('pr')
    tagbase(a, 65, S_GPH)
    a('v_mov_b32 v%d, v%d' % (PR + 4, PR + 2))
    for c in tagcmp([PR + 2], 65, 7): a(c)
    a('s_cbranch_vccz %s' % L2)
    poll(a, ['buffer_load_dwordx2 v[%d:%d], v%d, %s, s66 offen sc1' % (PR + 2, PR + 3, PR + 6, WSR)],
         ['v_mov_b32 v%d, v%d' % (PR + 4, PR + 2)] + tagcmp([PR + 2], 65, 7), sleep=1)
    a.label(L2)
    a('v_and_b32 v%d, 15, v%d' % (PR + 4, PR + 4))
    a('v_cmp_ne_u32 vcc, s%d, v%d' % (S_XCC, PR + 4))
    a('s_nop 3')
    a('s_cmp_eq_u64 vcc, 0')
    a('s_cselect_b32 s%d, 1, 0' % S_FAST)
    if E('NOFAST'):
        a('s_mov_b32 s%d, 0' % S_FAST)

def next_tile(a):
    if DBGBUF: a('s_add_u32 s%d, s%d, 0x200000' % (S_TOFF, S_TOFF))
    else: a('s_xor_b32 s%d, s%d, 0x200000' % (S_TOFF, S_TOFF))

def colsum(a, vw, vcs):
    a('v_mov_b32 v%d, 0' % vcs)
    a('s_nop 1')
    for r in range(64):
        a('v_dot2_f32_bf16 v%d, v%d, v%d, v%d' % (vcs, vw + r, V_ONES, vcs))
    a.nop(3)

def rowcol_off(a):
    a('s_lshl_b32 s%d, s%d, 15' % (S_T1, S_I))
    a('s_add_u32 s%d, s%d, s%d' % (S_T0, S_XOFF, S_T1))
    a('s_lshl_b32 s%d, s%d, 7' % (S_T1, S_CS))
    a('s_add_u32 s%d, s%d, s%d' % (S_T0, S_T0, S_T1))
    a('s_lshl_b32 s%d, s%d, 6' % (S_T1, S_J))
    a('s_add_u32 s%d, s%d, s%d' % (S_T0, S_T0, S_T1))
    a('s_lshl_b32 s%d, s%d, 5' % (S_T1, S_KH))
    a('s_add_u32 s%d, s%d, s%d' % (S_T0, S_T0, S_T1))

U_Q, U_K, U_V, U_OA, U_WQ, U_OB = range(6)
UPTR = {U_Q: 42, U_K: 42, U_V: 42, U_OA: 44, U_WQ: 48, U_OB: 54}
ULD = {U_Q: 3072, U_K: 3072, U_V: 3072, U_OA: 1024, U_WQ: 1024, U_OB: 1024}
UCOL = {U_Q: 0, U_K: 1024, U_V: 2048, U_OA: 0, U_WQ: 0, U_OB: 0}
def raw_setup(a, uA, uB, R, sbase, sstep, vdma):
    def sel(d, x, y):
        if x == y: a('s_mov_b32 s%d, %s' % (d, x))
        else:
            a('s_mov_b32 s%d, %s' % (d, x))
            a('s_cmp_eq_u32 s%d, 1' % S_KH)
            a('s_cselect_b32 s%d, %s, s%d' % (d, y, d))
    sel(R, 's%d' % UPTR[uA], 's%d' % UPTR[uB])
    sel(R + 1, 's%d' % (UPTR[uA] + 1), 's%d' % (UPTR[uB] + 1))
    sel(R + 2, '0x%x' % (ULD[uA] * 512), '0x%x' % (ULD[uB] * 512))
    a('s_mov_b32 s%d, 0x00020000' % (R + 3))
    sel(sstep, str(ULD[uA]), str(ULD[uB]))
    sel(sbase, str(UCOL[uA]), str(UCOL[uB]))
    a('v_lshrrev_b32 v%d, 2, v%d' % (vdma, V_LANE))
    a('v_mul_lo_u32 v%d, v%d, s%d' % (vdma, vdma, sstep))
    a('v_and_b32 v7, 3, v%d' % V_LANE)
    a('v_lshl_add_u32 v%d, v7, 4, v%d' % (vdma, vdma))
    a('s_lshl_b32 s%d, s%d, 4' % (sstep, sstep))
    a('s_lshl_b32 s%d, s%d, 4' % (S_T0, S_I))
    a('s_mul_i32 s%d, s%d, s%d' % (S_T0, S_T0, sstep))
    a('s_add_u32 s%d, s%d, s%d' % (sbase, sbase, S_T0))
    a('s_add_u32 s%d, s%d, s%d' % (sbase, sbase, S_WOFF))

def raw_rdaddr(a, v, slds):
    a('v_lshrrev_b32 v%d, 5, v%d' % (v, V_LANE))
    a('v_lshlrev_b32 v%d, 8, v%d' % (v, v))
    a('v_bfe_u32 v7, v%d, 2, 2' % V_LANE)
    a('v_lshl_add_u32 v%d, v7, 6, v%d' % (v, v))
    a('v_bfe_u32 v7, v%d, 4, 1' % V_LANE)
    a('v_lshl_add_u32 v%d, v7, 5, v%d' % (v, v))
    a('v_and_b32 v7, 3, v%d' % V_LANE)
    a('v_lshl_add_u32 v%d, v7, 3, v%d' % (v, v))
    a('v_add_u32 v%d, s%d, v%d' % (v, slds, v))

def raw_dma(R, sbase, sstep, vdma, slds, off):
    return ['s_add_u32 m0, s%d, %d' % (slds, off), 's_nop 0',
            'buffer_load_dwordx4 v%d, s[%d:%d], s%d offen lds' % (vdma, R, R + 3, sbase),
            's_add_u32 s%d, s%d, s%d' % (sbase, sbase, sstep)]

def raw_rd(dst, va, off):
    return ['ds_read_b64_tr_b16 v[%d:%d], v%d offset:%d' % (dst, dst + 1, va, off),
            'ds_read_b64_tr_b16 v[%d:%d], v%d offset:%d' % (dst + 2, dst + 3, va, off + 512)]

RW_D, RW_A = 94, 95
def load_w_issue(a, u, lds0, half):
    if half == 0:
        raw_setup(a, u, u, S_IN2, 68, 69, RW_D)
        a('s_and_b32 s70, s%d, 3' % S_W)
        a('s_lshl_b32 s70, s70, 13')
        a('s_add_u32 s70, s70, %d' % lds0)
        raw_rdaddr(a, RW_A, 70)
    for k in range(8):
        for l in raw_dma(S_IN2, 68, 69, RW_D, 70, k * 1024): a(l)

def load_w_read(a, vbase, half):
    for k in range(8):
        for l in raw_rd(vbase + 4 * (8 * half + k), RW_A, k * 1024): a(l)
    a('s_waitcnt lgkmcnt(0)')

def load_w_sync(a, u, vbase, lds0):
    for half in range(2):
        load_w_issue(a, u, lds0, half)
        a('s_waitcnt vmcnt(0)')
        load_w_read(a, vbase, half)

LDS_W16 = 135168
def dma_w16(a):
    a('s_cmp_eq_u32 s%d, 1' % S_WHICH)
    a('s_cselect_b32 s%d, s52, s50' % S_IN2)
    a('s_cselect_b32 s%d, s53, s51' % (S_IN2 + 1))
    a('s_mov_b32 s%d, 0x4000' % (S_IN2 + 2))
    a('s_mov_b32 s%d, 0x00020000' % (S_IN2 + 3))
    a('s_and_b32 s%d, s%d, 3' % (S_T0, S_W))
    a('s_lshl_b32 s%d, s%d, 12' % (S_T0, S_T0))
    a('s_add_u32 m0, s%d, %d' % (S_T0, LDS_W16))
    a('s_nop 0')
    for k in range(4):
        a('buffer_load_dwordx4 v%d, s[%d:%d], s%d offen offset:%d lds' % (V_L16, S_IN2, S_IN2 + 3, S_T0, k * 1024))

def dma_tile2(a):
    a('s_lshl_b32 s%d, s%d, 15' % (S_T1, S_I))
    a('s_lshl_b32 s%d, s%d, 14' % (S_T0, S_J))
    a('s_add_u32 s%d, s%d, s%d' % (S_T1, S_T1, S_T0))
    a('s_lshl_b32 s%d, s%d, 12' % (S_T0, S_KH))
    a('s_add_u32 s%d, s%d, s%d' % (S_T1, S_T1, S_T0))
    a('s_add_u32 s%d, s%d, s%d' % (S_T0, S_TOFF, S_XOFF))
    a('s_add_u32 s%d, s%d, s%d' % (S_T0, S_T0, S_T1))
    for c in range(2):
        if c:
            a('s_add_u32 s%d, s%d, 8192' % (S_T0, S_T0))
            a('s_add_u32 s%d, s%d, 8192' % (S_T1, S_T1))
        a('s_mov_b32 m0, s%d' % S_T1)
        a('s_nop 0')
        for t in range(4):
            a('buffer_load_dwordx4 v%d, %s, s%d offen offset:%d sc1 lds' % (V_L16, WSR, S_T0, t * 1024))

def kloop(a, w, t0, t1):
    def rd(t):
        b = XBUF[t % 4]
        a('ds_read_b128 %s, v%d offset:%d' % (vr(b), V_XA, t * 1024))
        a('ds_read_b128 %s, v%d offset:%d' % (vr(b + 4), V_XB, t * 1024))
    for t in range(t0, min(t0 + 3, t1)):
        rd(t)
    for t in range(t0, t1):
        b = XBUF[t % 4]
        if t + 3 < t1:
            rd(t + 3)
        a('s_waitcnt lgkmcnt(%d)' % (2 * min(3, t1 - 1 - t)))
        for q, acc in enumerate((ACC0, ACC1)):
            c = '0' if t == 0 else vr(acc, 16)
            a('v_mfma_f32_32x32x16_bf16 %s, %s, %s, %s' % (vr(acc, 16), vr(w + 4 * t), vr(b + 4 * q), c))

def halves_sum(a, v, tmp, op='v_add_f32'):
    a('v_mov_b32 v%d, v%d' % (tmp, v))
    a('s_nop 1')
    a('v_permlane32_swap_b32 v%d, v%d' % (v, tmp))
    a('s_nop 1')
    a('%s v%d, v%d, v%d' % (op, v, v, tmp))

def bf16r(a, v):
    a('v_cvt_pk_bf16_f32 v%d, v%d, v%d' % (v, v, v))
    a('v_and_b32 v%d, 0xffff0000, v%d' % (v, v))

def pk_add(a, d, x, y):
    a('v_pk_add_f32 v[%d:%d], v[%d:%d], v[%d:%d]' % (d, d + 1, x, x + 1, y, y + 1))

def stats_math(a, vm, vrstd):
    a('v_mul_f32 v%d, 0x%x, v%d' % (vm, f2u(1.0 / 512), vm))
    a('v_mul_f32 v%d, 0x%x, v%d' % (vrstd, f2u(1.0 / 512), vrstd))
    a('v_fma_f32 v%d, -v%d, v%d, v%d' % (vrstd, vm, vm, vrstd))
    a('v_max_f32 v%d, 0, v%d' % (vrstd, vrstd))
    bf16r(a, vrstd)
    a('v_add_f32 v%d, 0x%x, v%d' % (vrstd, f2u(1e-5), vrstd))
    bf16r(a, vrstd)
    a('v_sqrt_f32 v%d, v%d' % (vrstd, vrstd))
    a('s_nop 0')
    bf16r(a, vrstd)
    a('v_rcp_f32 v%d, v%d' % (vrstd, vrstd))
    bf16r(a, vm)

def stats_read(a, lm, vrow, T, vm=VM):
    a('v_lshlrev_b32 v%d, 3, v%d' % (vrow, vrow))
    a('v_add_u32 v%d, %d, v%d' % (vrow, lm.stat, vrow))
    for q in range(4):
        a('ds_read2st64_b64 %s, v%d offset0:%d offset1:%d' % (vr(T + 4 * q), vrow, 2 * q, 2 * q + 1))
    a('s_waitcnt lgkmcnt(0)')
    for q in range(4):
        pk_add(a, T + 4 * q, T + 4 * q, T + 4 * q + 2)
    pk_add(a, T, T, T + 4)
    pk_add(a, T + 8, T + 8, T + 12)
    pk_add(a, vm, T, T + 8)
    stats_math(a, vm, vm + 1)

def ln_stats(a, lm, T=V_TMP):
    a('v_and_b32 v5, 31, v%d' % V_LANE)
    a('s_lshl_b32 s%d, s%d, 5' % (S_T0, S_I))
    a('v_add_u32 v5, s%d, v5' % S_T0)
    stats_read(a, lm, 5, T)

def make_mfrag(a, vm, d):
    a('v_cvt_pk_bf16_f32 v%d, -v%d, -v%d' % (d, vm, vm))
    a('v_cvt_pk_bf16_f32 v%d, -v%d, -v%d' % (d + 1, vm, vm))
    a('v_mov_b32 v%d, 0' % (d + 2))
    a('v_mov_b32 v%d, 0' % (d + 3))

def mean_issue(a, lm):
    T = V_ACC + 40
    a('v_and_b32 v5, 31, v%d' % V_LANE)
    a('v_lshlrev_b32 v5, 3, v5')
    a('s_lshl_b32 s%d, s%d, 8' % (S_T0, S_I))
    a('s_add_u32 s%d, s%d, %d' % (S_T0, S_T0, lm.stat))
    a('v_add_u32 v5, s%d, v5' % S_T0)
    a('v_xor_b32 v6, 256, v5')
    for q in range(2):
        for k in range(4):
            a('ds_read2st64_b32 v[%d:%d], v%d offset0:%d offset1:%d' % (T + 8 * q + 2 * k, T + 8 * q + 2 * k + 1, 5 + q, 4 * k, 4 * k + 2))

def mean_finish(a):
    T = V_ACC + 40
    for q in range(2):
        t = T + 8 * q
        pk_add(a, t, t, t + 2)
        pk_add(a, t + 4, t + 4, t + 6)
        pk_add(a, t, t, t + 4)
        a('v_add_f32 v%d, v%d, v%d' % (t, t, t + 1))
        a('v_mul_f32 v%d, 0x%x, v%d' % (t, f2u(1.0 / 512), t))
        make_mfrag(a, t, V_MF + 4 * q)
    a('s_nop 1')

def mean_frags(a, lm):
    mean_issue(a, lm)
    a('s_waitcnt lgkmcnt(0)')
    mean_finish(a)

def stats_load_issue(a, T=V_TMP, tag=None):
    a('v_lshlrev_b32 v5, 3, v%d' % V_LANE)
    a('s_lshr_b32 s%d, s%d, 2' % (S_T0, S_XOFF))
    a('s_lshl_b32 s%d, s%d, 11' % (S_T1, S_W))
    a('s_add_u32 s%d, s%d, s%d' % (S_T0, S_T0, S_T1))
    a('s_add_u32 s%d, s%d, s%d' % (S_T0, S_T0, S_SOFF))
    for q in range(4):
        a.v(tag, 'buffer_load_dwordx2 v[%d:%d], v5, %s, s%d offen offset:%d sc1' % (T + 2 * q, T + 2 * q + 1, WSR, S_T0, q * 512))

def stats_load_finish(a, lm, T=V_TMP):
    pk_add(a, T, T, T + 2)
    pk_add(a, T + 4, T + 4, T + 6)
    pk_add(a, T, T, T + 4)
    a('s_lshl_b32 s%d, s%d, 9' % (S_T0, S_W))
    a('s_add_u32 s%d, s%d, %d' % (S_T0, S_T0, lm.stat))
    a('v_lshlrev_b32 v5, 3, v%d' % V_LANE)
    a('v_add_u32 v5, s%d, v5' % S_T0)
    a('ds_write_b64 v5, v[%d:%d]' % (T, T + 1))
    a('s_xor_b32 s%d, s%d, 0x%x' % (S_SOFF, S_SOFF, STP ^ (STP + 0x80000)))

def make_csfrag(a, vc, d, t):
    a('v_cvt_pk_bf16_f32 v%d, v%d, v%d' % (t, vc, vc))
    a('v_and_b32 v%d, 0xffff0000, v%d' % (t, t))
    a('v_sub_f32 v%d, v%d, v%d' % (t + 1, vc, t))
    a('v_cvt_pk_bf16_f32 v%d, v%d, v%d' % (d, t, t + 1))
    a('v_and_b32 v%d, 0xffff0000, v%d' % (t, d))
    a('v_sub_f32 v%d, v%d, v%d' % (t + 1, t + 1, t))
    a('v_cvt_pk_bf16_f32 v%d, v%d, 0' % (d + 1, t + 1))

def y_correct(a, cf):
    for q, acc in enumerate((ACC0, ACC1)):
        a('v_mfma_f32_32x32x16_bf16 %s, %s, %s, %s' % (vr(acc, 16), vr(cf), vr(V_MF + 4 * q), vr(acc, 16)))

def y_red_write(a, base, own):
    a('s_lshl_b32 s%d, s%d, 13' % (S_T0, S_J))
    a('s_mul_i32 s%d, s%d, 6144' % (S_T1, S_I))
    a('s_add_u32 s%d, s%d, s%d' % (S_T0, S_T0, S_T1))
    a('s_add_u32 s%d, s%d, %d' % (S_T0, S_T0, base))
    a('v_add_u32 v5, s%d, v%d' % (S_T0, V_L16))
    a('v_xor_b32 v6, 4096, v5')
    a.nop(7)
    for q, acc in enumerate((ACC0, ACC1)):
        for nh in range(2):
            if q == 0 and nh == own: continue
            a('ds_write_b128 v%d, %s offset:%d' % (5 + q, vr(acc + 8 * nh), nh * 16384))
            a('ds_write_b128 v%d, %s offset:%d' % (5 + q, vr(acc + 8 * nh + 4), nh * 16384 + 1024))

def y_red_read(a, base, own):
    d = V_ACC
    a('s_lshl_b32 s%d, s%d, 12' % (S_T0, S_W))
    a('s_add_u32 s%d, s%d, %d' % (S_T0, S_T0, base))
    a('v_add_u32 v5, s%d, v%d' % (S_T0, V_L16))
    L1 = a.newlabel('rr'); L2 = a.newlabel('rr')
    a('s_cmp_eq_u32 s%d, %d' % (S_KH, own))
    a('s_cbranch_scc1 %s' % L1)
    for k in range(4):
        a('ds_read_b128 %s, v5 offset:%d' % (vr(d + 4 * k), k * 1024))
    a('s_waitcnt lgkmcnt(0)')
    for r in range(0, 8, 2):
        pk_add(a, d + r, d + r, d + 8 + r)
    a('s_branch %s' % L2)
    a.label(L1)
    a('s_xor_b32 s%d, s%d, 1' % (S_T0, S_I))
    a('s_lshl_b32 s%d, s%d, 11' % (S_T0, S_T0))
    a('v_add_u32 v5, s%d, v5' % S_T0)
    a('ds_read_b128 %s, v5' % vr(ACC1))
    a('ds_read_b128 %s, v5 offset:1024' % vr(ACC1 + 4))
    a('s_waitcnt lgkmcnt(0)')
    for r in range(0, 8, 2):
        pk_add(a, d + r, ACC0 + 8 * own + r, ACC1 + r)
    a.label(L2)

def kv_red_write(a, base):
    a('s_xor_b32 s%d, s%d, 1' % (S_T0, S_W))
    a('s_lshl_b32 s%d, s%d, 12' % (S_T0, S_T0))
    a('s_add_u32 s%d, s%d, %d' % (S_T0, S_T0, base))
    a('v_add_u32 v5, s%d, v%d' % (S_T0, V_L16))
    a.nop(9)
    for k in range(4):
        a('ds_write_b128 v5, %s offset:%d' % (vr(ACC1 + 4 * k), k * 1024))

def barrier(a):
    a('s_waitcnt lgkmcnt(0)')
    a('s_barrier')

def phi_pack(a, acc, dst, tl=9, tmp=None, n=8):
    if tmp is None: tmp = acc + 8
    a('v_mul_f32 v%d, 0x%x, v%d' % (tl, f2u(LOG2E), VR))
    for r in range(n):
        a('v_mul_f32 v%d, v%d, v%d' % (tmp + r, acc + r, tl))
    for r in range(n):
        a('v_exp_f32_e64 v%d, v%d clamp' % (tmp + r, tmp + r))
    for r in range(n):
        a('v_fmaak_f32 v%d, v%d, v%d, 0x%x' % (acc + r, acc + r, VR, f2u(1e-6)))
        a('v_max_f32 v%d, 0x%x, v%d' % (acc + r, f2u(1e-6), acc + r))
    for r in range(0, n, 2):
        pk_add(a, acc + r, acc + r, tmp + r)
    for r in range(n // 2):
        a('v_cvt_pk_bf16_f32 v%d, v%d, v%d' % (dst + r, acc + 2 * r, acc + 2 * r + 1))

def scale_pack(a, acc, vs, dst, n=8):
    for r in range(n):
        a('v_mul_f32 v%d, v%d, v%d' % (acc + r, acc + r, vs))
    for r in range(n // 2):
        a('v_cvt_pk_bf16_f32 v%d, v%d, v%d' % (dst + r, acc + 2 * r, acc + 2 * r + 1))

def store_blk(a, v):
    a('s_add_u32 s%d, s%d, s%d' % (S_T0, S_BLK, S_TOFF))
    fast_store(a, ['buffer_store_dwordx4 %s, v%d, %s, s%d offen@' % (vr(v), V_L16, WSR, S_T0)])

def store_stats(a, tag=None):
    a('v_mov_b32 v6, 0')
    a('v_mov_b32 v7, 0')
    a('s_nop 0')
    for r in range(4):
        a('v_dot2_f32_bf16 v6, v%d, v%d, v6' % (V_RES + r, V_ONES))
        a('v_dot2_f32_bf16 v7, v%d, v%d, v7' % (V_RES + r, V_RES + r))
    a('s_bfe_u32 s%d, s%d, 0x5000a' % (S_T0, S_BLK))
    a('s_lshl_b32 s%d, s%d, 9' % (S_T0, S_T0))
    a('s_lshr_b32 s%d, s%d, 2' % (S_T1, S_XOFF))
    a('s_add_u32 s%d, s%d, s%d' % (S_T0, S_T0, S_T1))
    a('s_lshl_b32 s%d, s%d, 8' % (S_T1, S_I))
    a('s_add_u32 s%d, s%d, s%d' % (S_T0, S_T0, S_T1))
    a('s_add_u32 s%d, s%d, s%d' % (S_T0, S_T0, S_SOFF))
    a('v_mov_b32 v8, v6')
    a('v_mov_b32 v9, v7')
    a('v_lshlrev_b32 v5, 3, v%d' % V_LANE)
    a('s_nop 0')
    a('v_permlane32_swap_b32 v6, v8')
    a('v_permlane32_swap_b32 v7, v9')
    a('s_nop 1')
    a('v_pk_add_f32 v[6:7], v[6:7], v[8:9]')
    a('s_mov_b32 exec_hi, 0')
    fast_store(a, ['buffer_store_dwordx2 v[6:7], v5, %s, s%d offen@' % (WSR, S_T0)])
    a('s_mov_b32 exec_hi, -1')
    if tag: a.vm.append(tag)

def store_x(a):
    store_blk(a, V_RES)
    store_stats(a)

def a1_kv_owner(a, lm):
    a('s_lshl_b32 s%d, s%d, 12' % (S_T0, S_W))
    a('s_add_u32 s%d, s%d, %d' % (S_T0, S_T0, lm.red))
    a('v_add_u32 v5, s%d, v%d' % (S_T0, V_L16))
    for k in range(4):
        a('ds_read_b128 %s, v5 offset:%d' % (vr(ACC1 + 4 * k), k * 1024))
    a('s_lshl_b32 s%d, s%d, 12' % (S_T0, S_J))
    a('s_lshl_b32 s%d, s%d, 13' % (S_T1, S_KH))
    a('s_add_u32 s%d, s%d, s%d' % (S_T0, S_T0, S_T1))
    a('s_lshl_b32 s%d, s%d, 10' % (S_T1, S_I))
    a('s_add_u32 s%d, s%d, s%d' % (S_T0, S_T0, S_T1))
    a('s_add_u32 s%d, s%d, %d' % (S_T0, S_T0, lm.pkv))
    a('v_and_b32 v7, 31, v%d' % V_LANE)
    a('v_lshlrev_b32 v7, 5, v7')
    a('v_lshrrev_b32 v6, 5, v%d' % V_LANE)
    a('v_lshl_add_u32 v7, v6, 4, v7')
    a('v_add_u32 v7, s%d, v7' % S_T0)
    a('s_waitcnt lgkmcnt(0)')
    for r in range(0, 16, 2):
        pk_add(a, ACC0 + r, ACC0 + r, ACC1 + r)
    with role(a, 'A'):
        phi_pack(a, ACC0, V_XF, tmp=ACC1, n=16)
    with role(a, 'B'):
        scale_pack(a, ACC0, VR, V_XF, n=16)
    a('ds_write_b128 v7, %s' % vr(V_XF))
    a('ds_write_b128 v7, %s offset:2048' % vr(V_XF + 4))
    barrier(a)

def head_addrs(a):
    a('s_lshl_b32 s%d, s%d, 2' % (S_T2, S_CS))
    a('s_add_u32 s%d, s%d, s%d' % (S_T2, S_T2, S_W))
    a('s_lshl_b32 s%d, s%d, 15' % (S_T3, S_T2))
    a('s_add_u32 s%d, s%d, s%d' % (S_T3, S_T3, S_LOFF))
    a('s_add_u32 s%d, s%d, 0x%x' % (S_T3, S_T3, KVP_))
    a('s_lshl_b32 s%d, s%d, 11' % (S_T4, S_T2))
    a('s_add_u32 s%d, s%d, s%d' % (S_T4, S_T4, S_LOFF))
    a('s_add_u32 s%d, s%d, 0x%x' % (S_T4, S_T4, ZP_))
    a('s_lshl_b32 s%d, s%d, 12' % (S_T5, S_T2))
    a('s_add_u32 s%d, s%d, 0x%x' % (S_T5, S_T5, HFLAG))

def hello(a):
    head_addrs(a)
    a('s_mov_b32 s64, 1')
    tagval(a, 8, 64)
    a('s_lshl_b32 s%d, s%d, 7' % (S_T0, S_RB))
    a('s_add_u32 s%d, s%d, s%d' % (S_T0, S_T0, S_T5))
    a('v_mov_b32 v5, 0')
    a('s_mov_b64 exec, 1')
    a('buffer_store_dwordx2 v[8:9], v5, %s, s%d offen sc1' % (WSR, S_T0))
    a('s_mov_b64 exec, -1')

def kv_publish_gather(a, lm, first):
    PA, PB, D, D2, ON = V_XF, V_XF + 8, V_ACC, V_ACC + 4, V_ACC + 8
    a('v_lshrrev_b32 v5, 4, v%d' % V_LANE)
    a('v_lshlrev_b32 v5, 8, v5')
    a('v_bfe_u32 v6, v%d, 2, 2' % V_LANE)
    a('v_lshl_add_u32 v5, v6, 5, v5')
    a('v_and_b32 v6, 1, v%d' % V_LANE)
    a('v_lshl_add_u32 v5, v6, 4, v5')
    a('v_bfe_u32 v6, v%d, 1, 1' % V_LANE)
    a('v_lshl_add_u32 v5, v6, 3, v5')
    a('s_lshl_b32 s%d, s%d, 11' % (S_T0, S_W))
    a('s_add_u32 s%d, s%d, %d' % (S_T0, S_T0, lm.pkv))
    a('v_add_u32 v5, s%d, v5' % S_T0)
    for sl in range(2):
        for u in range(2):
            a('ds_read_b64_tr_b16 v[%d:%d], v5 offset:%d' % (PA + 4 * sl + 2 * u, PA + 4 * sl + 2 * u + 1, sl * 1024 + u * 128))
            a('ds_read_b64_tr_b16 v[%d:%d], v5 offset:%d' % (PB + 4 * sl + 2 * u, PB + 4 * sl + 2 * u + 1, 8192 + sl * 1024 + u * 128))
    for r in range(4):
        a('v_mov_b32 v%d, v%d' % (ON + r, V_ONES))
    head_addrs(a)
    a('s_waitcnt lgkmcnt(0)')
    a('v_mfma_f32_16x16x32_bf16 %s, %s, %s, 0' % (vr(D), vr(PA), vr(PB)))
    a('v_mfma_f32_16x16x32_bf16 %s, %s, %s, 0' % (vr(D2), vr(PA), vr(ON)))
    a('v_mfma_f32_16x16x32_bf16 %s, %s, %s, %s' % (vr(D), vr(PA + 4), vr(PB + 4), vr(D)))
    a('v_mfma_f32_16x16x32_bf16 %s, %s, %s, %s' % (vr(D2), vr(PA + 4), vr(ON), vr(D2)))
    a('s_lshl_b32 s%d, s%d, 10' % (S_T0, S_RB))
    a('s_add_u32 s%d, s%d, s%d' % (S_T0, S_T0, S_T3))
    a('s_lshl_b32 s%d, s%d, 6' % (S_T1, S_RB))
    a('s_add_u32 s%d, s%d, s%d' % (S_T1, S_T1, S_T4))
    a('v_and_b32 v6, 48, v%d' % V_LANE)
    a('s_nop 3')
    for r in range(8):
        a('v_min_u32 v%d, -2, v%d' % (D + r, D + r))
    a('buffer_store_dwordx4 %s, v%d, %s, s%d offen sc1' % (vr(D), V_L16, WSR, S_T0))
    a('s_mov_b32 exec_lo, 0x00010001')
    a('s_mov_b32 exec_hi, 0x00010001')
    a('buffer_store_dwordx4 %s, v6, %s, s%d offen sc1' % (vr(D2), WSR, S_T1))
    a('s_mov_b64 exec, -1')
    ts2(a)
    load_w_issue(a, U_OA, lm.wst, 0)
    if first:
        a('s_mov_b32 s64, 1')
        tagbase(a, 65, 64)
        a('v_and_b32 v5, 31, v%d' % V_LANE)
        a('v_lshlrev_b32 v5, 7, v5')
        poll(a, ['buffer_load_dwordx2 v[8:9], v5, %s, s%d offen sc1' % (WSR, S_T5)], tagcmp([8], 65, 7))
    else:
        a('s_waitcnt vmcnt(0)')
    load_w_read(a, V_W0, 0)
    load_w_issue(a, U_OA, lm.wst, 1)
    ZR = V_TMP
    a('v_and_b32 v5, 15, v%d' % V_LANE)
    a('v_lshl_add_u32 v5, v5, 6, v6')
    poll(a, ['buffer_load_dwordx4 %s, v5, %s, s%d offen sc1' % (vr(ZR), WSR, S_T4),
             'buffer_load_dwordx4 %s, v5, %s, s%d offen offset:1024 sc1' % (vr(ZR + 4), WSR, S_T4)],
         ['v_max3_u32 v7, v%d, v%d, v%d' % (ZR, ZR + 1, ZR + 2), 'v_max3_u32 v8, v%d, v%d, v%d' % (ZR + 3, ZR + 4, ZR + 5),
          'v_max3_u32 v7, v7, v%d, v%d' % (ZR + 6, ZR + 7), 'v_max_u32 v7, v7, v8', 'v_cmp_eq_u32 vcc, -1, v7'])
    ts2(a)
    load_w_read(a, V_W0, 1)
    G = [V_W1 + 4 * k for k in range(16)] + [V_ACC + 4 * k for k in range(12)] + [V_XF + 4 * k for k in range(4)]
    Lg = a.newlabel('gat')
    a('s_mov_b32 s%d, 0' % S_SPIN)
    a.label(Lg)
    a('s_add_u32 s%d, s%d, 1' % (S_SPIN, S_SPIN))
    a('s_cmp_gt_u32 s%d, %d' % (S_SPIN, SPIN_MAX))
    a('s_cbranch_scc1 L_end')
    a('s_mov_b32 s%d, s%d' % (S_T0, S_T3))
    for k in range(32):
        if k and k % 4 == 0:
            a('s_add_u32 s%d, s%d, 4096' % (S_T0, S_T0))
        a('buffer_load_dwordx4 %s, v%d, %s, s%d offen offset:%d sc1' % (vr(G[k]), V_L16, WSR, S_T0, (k % 4) * 1024))
    Z2 = V_TMP + 8
    pk_add(a, Z2, ZR, ZR + 4)
    pk_add(a, Z2 + 2, ZR + 2, ZR + 6)
    for sh in (8, 4, 2, 1):
        a('s_nop 1')
        for r in range(4):
            a('v_add_f32_dpp v%d, v%d, v%d row_ror:%d row_mask:0xf bank_mask:0xf' % (Z2 + r, Z2 + r, Z2 + r, sh))
    a('v_cvt_pk_bf16_f32 v%d, v%d, v%d' % (Z2, Z2, Z2 + 1))
    a('v_cvt_pk_bf16_f32 v%d, v%d, v%d' % (Z2 + 1, Z2 + 2, Z2 + 3))
    a('s_mov_b32 s%d, 0x00110011' % S_T0)
    a('s_mov_b32 s%d, 0x00110011' % S_T1)
    a('v_cndmask_b32_e64 v%d, 0, v%d, s[%d:%d]' % (Z2, Z2, S_T0, S_T1))
    a('v_cndmask_b32_e64 v%d, 0, v%d, s[%d:%d]' % (Z2 + 1, Z2 + 1, S_T0, S_T1))
    a('v_and_b32 v5, 15, v%d' % V_LANE)
    a('v_lshlrev_b32 v5, 4, v5')
    a('v_bfe_u32 v6, v%d, 4, 1' % V_LANE)
    a('v_lshl_add_u32 v5, v6, 9, v5')
    a('v_lshrrev_b32 v6, 5, v%d' % V_LANE)
    a('v_lshl_add_u32 v5, v6, 3, v5')
    a('s_lshl_b32 s%d, s%d, 11' % (S_T0, S_W))
    a('s_add_u32 s%d, s%d, %d' % (S_T0, S_T0, lm.pkv))
    a('v_add_u32 v5, s%d, v5' % S_T0)
    a('ds_write_b64 v5, v[%d:%d] offset:256' % (Z2, Z2 + 1))
    a('v_mov_b32 v7, 0')
    for k in range(0, 32, 2):
        a('s_waitcnt vmcnt(%d)' % (30 - k))
        for c in range(2):
            g = G[k + c]
            a('v_max3_u32 v7, v7, v%d, v%d' % (g, g + 1))
            a('v_max3_u32 v7, v7, v%d, v%d' % (g + 2, g + 3))
            if k:
                pk_add(a, G[c], G[c], g)
                pk_add(a, G[c] + 2, G[c] + 2, g + 2)
    a('v_cmp_eq_u32 vcc, -1, v7')
    a('s_cbranch_vccnz %s' % Lg)
    pk_add(a, G[0], G[0], G[1])
    pk_add(a, G[0] + 2, G[0] + 2, G[1] + 2)
    a('v_cvt_pk_bf16_f32 v%d, v%d, v%d' % (G[0], G[0], G[0] + 1))
    a('v_cvt_pk_bf16_f32 v%d, v%d, v%d' % (G[0] + 1, G[0] + 2, G[0] + 3))
    a('ds_write_b64 v5, v[%d:%d]' % (G[0], G[0] + 1))

def a1_finish(a, lm):
    a('s_lshl_b32 s%d, s%d, 1' % (S_T0, S_J))
    a('s_add_u32 s%d, s%d, s%d' % (S_T0, S_T0, S_KH))
    a('s_lshl_b32 s%d, s%d, 11' % (S_T0, S_T0))
    a('s_add_u32 s%d, s%d, %d' % (S_T0, S_T0, lm.pkv))
    a('v_add_u32 v6, s%d, v%d' % (S_T0, V_L16))
    a('ds_read_b128 %s, v6' % vr(V_XF + 4))
    y_red_read(a, lm.redq, 1)
    phi_pack(a, V_ACC, V_XF)
    a('s_nop 1')
    N = V_ACC + 16
    a('v_mfma_f32_32x32x16_bf16 %s, %s, %s, 0' % (vr(N, 16), vr(V_XF + 4), vr(V_XF)))
    a.nop(14)
    a('v_add_f32 v8, 0x%x, v%d' % (f2u(1e-6), N + 8))
    a('v_rcp_f32 v8, v8')
    a('s_nop 0')
    scale_pack(a, N, 8, V_XF + 8)
    store_blk(a, V_XF + 8)
    csignal(a)

def a1_std(a):
    lm = LM_STD
    kloop(a, V_W1, 0, 8)
    chunk1(a, True)
    mean_issue(a, lm)
    kloop(a, V_W1, 8, 16)
    mean_finish(a)
    y_correct(a, V_CF1)
    kv_red_write(a, lm.red)
    ln_stats(a, lm)
    barrier(a)
    ts2(a)
    a1_kv_owner(a, lm)
    ts2(a)
    with role(a, 'B'):
        kloop(a, V_W0, 0, 16)
        y_correct(a, V_CF0)
        y_red_write(a, lm.redq, 1)
    with role(a, 'A'):
        kv_publish_gather(a, lm, False)
    barrier(a)
    ts2(a)
    a1_finish(a, lm)

def p1(a):
    a.vreset()
    a('s_lshl_b32 s84, s%d, 3' % S_RB)
    a('s_add_u32 s84, s84, s%d' % S_W)
    srd(a, S_IN2, 40, 0x200000)
    srd(a, S_IN, 42, 0x180000)
    nonce_publish(a)
    VXD = [V_TMP + 16, V_TMP + 17]; VWD = V_TMP + 18
    a('v_lshrrev_b32 v5, 3, v%d' % V_LANE)
    a('v_and_b32 v6, 7, v%d' % V_LANE)
    a('v_lshrrev_b32 v7, 4, v%d' % V_LANE)
    a('v_xor_b32 v8, v6, v7')
    a('v_lshlrev_b32 v8, 4, v8')
    a('v_lshl_add_u32 v%d, v5, 10, v8' % VXD[0])
    a('v_xor_b32 v%d, 64, v%d' % (VXD[1], VXD[0]))
    a('v_lshrrev_b32 v5, 2, v%d' % V_LANE)
    a('v_mul_u32_u24 v5, 3072, v5')
    a('v_and_b32 v6, 3, v%d' % V_LANE)
    a('v_lshl_add_u32 v%d, v6, 4, v5' % VWD)
    SXG, SXL, SWG, SLO, SHI = 85, 87, 88, 89, 90
    a('s_lshl_b32 s%d, s%d, 15' % (S_T0, S_KH))
    a('s_lshl_b32 s%d, s%d, 14' % (S_T1, S_I))
    a('s_add_u32 s%d, s%d, s%d' % (SXG, S_XOFF, S_T0))
    a('s_add_u32 s%d, s%d, s%d' % (SXG, SXG, S_T1))
    a('s_lshl_b32 s%d, s%d, 9' % (S_T1, S_J))
    a('s_add_u32 s%d, s%d, s%d' % (SXG, SXG, S_T1))
    a('s_lshl_b32 s%d, s%d, 14' % (S_T1, S_J))
    a('s_add_u32 s%d, s%d, s%d' % (SXL, S_T0, S_T1))
    a('s_lshl_b32 s%d, s%d, 11' % (S_T1, S_I))
    a('s_add_u32 s%d, s%d, s%d' % (SXL, SXL, S_T1))
    a('s_mul_i32 s%d, s%d, %d' % (SWG, S_I, 256 * 3072))
    a('s_lshl_b32 s%d, s%d, 7' % (S_T0, S_CS))
    a('s_add_u32 s%d, s%d, s%d' % (SWG, SWG, S_T0))
    a('s_lshl_b32 s%d, s%d, 6' % (S_T0, S_J))
    a('s_add_u32 s%d, s%d, s%d' % (SWG, SWG, S_T0))
    a('s_lshl_b32 s94, s%d, 10' % S_KH)
    a('s_add_u32 s94, s94, s%d' % SWG)
    a('s_add_u32 s94, s94, 1024')
    a('s_and_b32 s%d, s%d, 3' % (S_T2, S_W))
    a('s_mul_i32 s%d, s%d, 12288' % (SLO, S_T2))
    a('s_add_u32 s%d, s%d, 65536' % (SLO, SLO))
    a('s_add_u32 s%d, s%d, 4096' % (SHI, SLO))
    a('s_lshl_b32 s%d, s%d, 12' % (S_T0, S_T2))
    a('s_add_u32 s%d, s%d, 114688' % (S_T0, S_T0))
    a('s_lshl_b32 s%d, s%d, 13' % (S_T1, S_T2))
    a('s_add_u32 s%d, s%d, 131072' % (S_T1, S_T1))
    a('s_cmp_eq_u32 s%d, 1' % S_KH)
    a('s_cselect_b32 s%d, s%d, s%d' % (SLO, S_T0, SLO))
    a('s_cselect_b32 s%d, s%d, s%d' % (SHI, S_T1, SHI))
    SROT = 3
    a('s_add_u32 s%d, s%d, s%d' % (SROT, S_RB, S_GRP))
    a('s_and_b32 s%d, s%d, 3' % (SROT, SROT))
    def rotg(g):
        a('s_add_u32 s%d, s%d, %d' % (S_T1, SROT, g))
        a('s_and_b32 s%d, s%d, 3' % (S_T1, S_T1))
    def dma_x(g):
        rotg(g)
        a('s_lshl_b32 s%d, s%d, 7' % (S_T1, S_T1))
        a('s_add_u32 s%d, s%d, s%d' % (S_T1, S_T1, SXG))
        for p in range(2):
            a('s_add_u32 s%d, s%d, %d' % (S_T0, S_T1, p * 8192))
            a('s_add_u32 m0, s%d, %d' % (SXL, g * 4096 + p * 1024))
            a('s_nop 0')
            a.v('x%d' % g, 'buffer_load_dwordx4 v%d, s[12:15], s%d offen lds' % (VXD[p], S_T0))
    def slot(sl): return (SLO, sl * 1024) if sl < 4 else (SHI, (sl - 4) * 1024)
    def dma_w(kt, q=False):
        sb, off = (SLO, (kt % 4) * 1024) if q else slot(kt % 12)
        rotg(kt // 4)
        a('s_mul_i32 s%d, s%d, %d' % (S_T1, S_T1, 64 * 3072))
        a('s_add_u32 s%d, s%d, s%d' % (S_T1, S_T1, SWG if q else 94))
        a('s_add_u32 s%d, s%d, %d' % (S_T0, S_T1, (kt % 4) * 16 * 3072))
        a('s_add_u32 m0, s%d, %d' % (sb, off))
        a('s_nop 0')
        a.v(('q%d' if q else 'w%d') % kt, 'buffer_load_dwordx4 v%d, s[8:11], s%d offen lds' % (VWD, S_T0))
    dma_x(0)
    for kt in range(4): dma_w(kt)
    a('s_getpc_b64 s[64:65]')
    a.label('L_pcref')
    a('s_lshr_b32 s%d, s2, 3' % S_T0)
    a('s_lshl_b32 s%d, s%d, 3' % (S_T0, S_T0))
    a('s_add_u32 s%d, s%d, s%d' % (S_T0, S_T0, S_W))
    a('s_lshl_b32 s%d, s%d, 8' % (S_T0, S_T0))
    a('s_min_u32 s%d, s%d, L_end - L_pcref - 256' % (S_T0, S_T0))
    a('v_lshlrev_b32 v5, 2, v%d' % V_LANE)
    a('v_add_u32 v5, s%d, v5' % S_T0)
    a.v('cp', 'global_load_dword v%d, v5, s[64:65]' % (V_W0 + 21))
    dma_x(1)
    for kt in range(4, 8): dma_w(kt)
    PKR = V_W0
    def side_misc():
        a('v_and_b32 v5, 31, v%d' % V_LANE)
        a('v_lshlrev_b32 v5, 10, v5')
        a('v_lshrrev_b32 v6, 5, v%d' % V_LANE)
        a('v_lshl_add_u32 v5, v6, 3, v5')
        rowcol_off(a)
        a.v('res', 'buffer_load_dwordx2 v[%d:%d], v5, s[12:15], s%d offen' % (V_RES, V_RES + 1, S_T0))
        a.v('res', 'buffer_load_dwordx2 v[%d:%d], v5, s[12:15], s%d offen offset:16' % (V_RES + 2, V_RES + 3, S_T0))
        head_addrs(a)
        a('s_lshl_b32 s%d, s%d, 10' % (S_T0, S_RB))
        a('s_add_u32 s%d, s%d, s%d' % (S_T0, S_T0, S_T3))
        a('s_lshl_b32 s%d, s%d, 6' % (S_T1, S_RB))
        a('s_add_u32 s%d, s%d, s%d' % (S_T1, S_T1, S_T4))
        a('s_cmp_eq_u32 s%d, 0' % S_KH)
        a('s_cselect_b32 s%d, s%d, 0x%x' % (S_T0, S_T0, OOB))
        a('s_cselect_b32 s%d, s%d, 0x%x' % (S_T1, S_T1, OOB))
        PO = V_W0 + 16
        for r in range(4): a('v_mov_b32 v%d, -1' % (PO + r))
        for ly in range(2):
            if ly:
                a('s_add_u32 s%d, s%d, 0x%x' % (S_T0, S_T0, LS))
                a('s_add_u32 s%d, s%d, 0x%x' % (S_T1, S_T1, LS))
            a.v('poi', 'buffer_store_dwordx4 %s, v%d, %s, s%d offen sc1' % (vr(PO), V_L16, WSR, S_T0))
            a('s_mov_b64 exec, 15')
            a.v('poi', 'buffer_store_dwordx4 %s, v%d, %s, s%d offen sc1' % (vr(PO), V_L16, WSR, S_T1))
            a('s_mov_b64 exec, -1')
        a('v_and_b32 v5, 7, v%d' % V_LANE)
        a('v_lshlrev_b32 v5, 21, v5')
        a.v('tlb', 'buffer_load_dword v%d, v5, %s, 0 offen' % (PO + 4, WSR))
    XR = [V_TMP + 20 + q for q in range(4)]
    WR = V_TMP + 24
    a('v_and_b32 v5, 31, v%d' % V_LANE)
    a('v_bfe_u32 v6, v%d, 1, 3' % V_LANE)
    a('v_lshrrev_b32 v7, 5, v%d' % V_LANE)
    a('v_xor_b32 v6, v6, v7')
    a('s_mul_i32 s%d, s%d, 49152' % (S_T0, S_I))
    a('v_lshlrev_b32 v5, 7, v5')
    a('v_add_u32 v5, s%d, v5' % S_T0)
    XR2 = [V_TMP + 12 + q for q in range(4)]
    for q in range(4):
        a('v_xor_b32 v7, %d, v6' % (2 * q))
        a('v_lshl_add_u32 v%d, v7, 4, v5' % XR[q])
        a('v_xor_b32 v%d, 32768, v%d' % (XR2[q], XR[q]))
    a('v_lshrrev_b32 v5, 5, v%d' % V_LANE)
    a('v_lshlrev_b32 v5, 9, v5')
    a('v_bfe_u32 v6, v%d, 2, 2' % V_LANE)
    a('v_lshl_add_u32 v5, v6, 6, v5')
    a('v_bfe_u32 v6, v%d, 4, 1' % V_LANE)
    a('v_lshl_add_u32 v5, v6, 5, v5')
    a('v_and_b32 v6, 3, v%d' % V_LANE)
    a('v_lshl_add_u32 v5, v6, 3, v5')
    a('v_add_u32 v%d, s%d, v5' % (WR, SLO))
    a('v_add_u32 v%d, s%d, v5' % (WR + 1, SHI))
    FB = [V_W1 + 12 * k for k in range(4)]
    CS, SS = V_TMP + 19, V_TMP + 26
    a('v_mov_b32 v%d, 0\nv_mov_b32 v%d, 0' % (SS, SS + 1))
    a('s_lshl_b32 s95, s%d, 1' % S_KH)
    a('s_add_u32 s95, s95, s%d' % S_J)
    def rd_kt(kt, q=False):
        b = FB[kt % 4]
        sl = kt % 4 if q else kt % 12
        areg, off = (WR, sl * 1024) if sl < 4 else (WR + 1, (sl - 4) * 1024)
        a('ds_read_b64_tr_b16 v[%d:%d], v%d offset:%d' % (b + 8, b + 9, areg, off))
        a('ds_read_b64_tr_b16 v[%d:%d], v%d offset:%d' % (b + 10, b + 11, areg, off + 256))
        a('ds_read_b128 %s, v%d offset:%d' % (vr(b), XR[kt & 3], (kt >> 2) * 4096))
        a('ds_read_b128 %s, v%d offset:%d' % (vr(b + 4), XR2[kt & 3], (kt >> 2) * 4096))
    def mm_kt(kt, stats):
        b = FB[kt % 4]; first = kt == 0
        if first: a('v_mov_b32 v%d, 0' % CS)
        for q, acc in enumerate((ACC0, ACC1)):
            a('v_mfma_f32_32x32x16_bf16 %s, %s, %s, %s' % (vr(acc, 16), vr(b + 8), vr(b + 4 * q), '0' if first else vr(acc, 16)))
        for r in range(4):
            a('v_dot2_f32_bf16 v%d, v%d, v%d, v%d' % (CS, b + 8 + r, V_ONES, CS))
        if stats:
            for tile in range(2):
                L = a.newlabel('st')
                a('s_cmp_lg_u32 s95, %d' % (2 * tile + (kt & 1)))
                a('s_cbranch_scc1 %s' % L)
                for r in range(4):
                    x = b + 4 * tile + r
                    a('v_dot2_f32_bf16 v%d, v%d, v%d, v%d' % (SS, x, V_ONES, SS))
                    a('v_dot2_f32_bf16 v%d, v%d, v%d, v%d' % (SS + 1, x, x, SS + 1))
                a.label(L)
    for kt in range(17):
        if kt < 16:
            if kt % 4 == 0:
                tags = ['x%d' % (kt // 4), 'w%d' % kt]
                a.vwait(*tags)
                a('s_barrier')
                if E('TSP1'): ts(a)
            else:
                a.vwait('w%d' % kt)
            rd_kt(kt)
            if kt: a('s_waitcnt lgkmcnt(4)')
        else:
            a('s_waitcnt lgkmcnt(0)')
        if kt >= 1:
            p = kt - 1
            if p < 4: dma_w(p + 12)
            mm_kt(p, True)
        if kt == 0:
            dma_x(2); dma_w(8); dma_w(9)
        if kt == 1:
            dma_w(10); dma_w(11); dma_x(3)
        if kt == 5:
            side_misc()
            nonce_probe(a)
        if kt == 13:
            nonce_check(a)
            a('s_mov_b32 s%d, 1' % S_GPH)
            with role(a, 0):
                lsignal(a)
            with role(a, 'A'):
                hello(a)
    lms = LM(red=0, stat=106496, pkv=0, kvf=0, redq=0)
    a.nop(3)
    a('v_mov_b32 v8, v%d\nv_mov_b32 v9, v%d' % (SS, SS + 1))
    a('s_nop 1')
    a('v_permlane32_swap_b32 v%d, v8' % SS)
    a('v_permlane32_swap_b32 v%d, v9' % (SS + 1))
    a('s_nop 1')
    pk_add(a, 6, SS, 8)
    a('s_mov_b32 s%d, 0' % S_T2)
    a('s_mov_b32 s%d, -1' % S_T3)
    a('v_cndmask_b32_e64 v6, v6, 0, s[%d:%d]' % (S_T2, S_T3))
    a('v_cndmask_b32_e64 v7, v7, 0, s[%d:%d]' % (S_T2, S_T3))
    a('v_and_b32 v5, 31, v%d' % V_LANE)
    a('v_lshlrev_b32 v5, 3, v5')
    a('v_lshrrev_b32 v8, 5, v%d' % V_LANE)
    a('v_lshl_add_u32 v5, v8, 11, v5')
    a('s_lshl_b32 s%d, s%d, 10' % (S_T0, S_J))
    a('s_lshl_b32 s%d, s%d, 9' % (S_T1, S_I))
    a('s_add_u32 s%d, s%d, s%d' % (S_T0, S_T0, S_T1))
    a('s_xor_b32 s%d, s%d, s%d' % (S_T1, S_KH, S_I))
    a('s_lshl_b32 s%d, s%d, 8' % (S_T1, S_T1))
    a('s_add_u32 s%d, s%d, s%d' % (S_T0, S_T0, S_T1))
    a('s_add_u32 s%d, s%d, %d' % (S_T0, S_T0, lms.stat))
    a('v_add_u32 v5, s%d, v5' % S_T0)
    a('ds_write_b64 v5, v[6:7]')
    make_csfrag(a, CS, V_CF1, 6)
    for r in range(14, 20):
        a('v_mov_b32 v%d, 0' % r)
    barrier(a)
    ts(a)
    lm = LM(red=65536, stat=0, pkv=98304, kvf=114688, redq=65536, wst=114688)
    mean_frags(a, lms)
    y_correct(a, V_CF1)
    kv_red_write(a, lm.red)
    ln_stats(a, lms, T=V_W0 + 24)
    p1_probe(a)
    with role(a, 'B'):
        a('s_add_u32 s%d, s%d, 32768' % (SLO, SLO))
        a('v_add_u32 v%d, 32768, v%d' % (WR, WR))
        for k in range(4): dma_w(k, True)
    barrier(a)
    if E('TSP1'): ts(a)
    a1_kv_owner(a, lm)
    ts(a)
    with role(a, 'B'):
        a('s_waitcnt vmcnt(0)')
        a.vreset(); a.vm.append('pr')
        p1_check(a)
        a.vreset()
        for kt in range(17):
            if kt < 16:
                if kt >= 4: a.vwait('q%d' % kt)
                rd_kt(kt, True)
                if kt: a('s_waitcnt lgkmcnt(4)')
            else:
                a('s_waitcnt lgkmcnt(0)')
            if kt >= 1:
                p = kt - 1
                if p < 12: dma_w(p + 4, True)
                mm_kt(p, False)
        a.nop(3)
        make_csfrag(a, CS, V_CF0, 6)
        a('s_nop 1')
        y_correct(a, V_CF0)
        y_red_write(a, lm.redq, 1)
    with role(a, 'A'):
        a.vreset(); a.vm.append('pr')
        p1_check(a)
        kv_publish_gather(a, lm, True)
    barrier(a)
    a1_finish(a, lm)

def resid_add(a, acc):
    for r in range(4):
        a('v_lshlrev_b32 v%d, 16, v%d' % (acc + 8 + 2 * r, V_RES + r))
        a('v_and_b32 v%d, 0xffff0000, v%d' % (acc + 9 + 2 * r, V_RES + r))
    for r in range(0, 8, 2):
        pk_add(a, acc + r, acc + r, acc + 8 + r)
    for r in range(4):
        a('v_cvt_pk_bf16_f32 v%d, v%d, v%d' % (V_RES + r, acc + 2 * r, acc + 2 * r + 1))

def final_store(a):
    srd(a, S_IN2, 56, 0x200000)
    a('s_nop 1')
    a('v_permlane32_swap_b32 v%d, v%d' % (V_RES, V_RES + 2))
    a('v_permlane32_swap_b32 v%d, v%d' % (V_RES + 1, V_RES + 3))
    a('v_and_b32 v5, 31, v%d' % V_LANE)
    a('v_lshlrev_b32 v5, 10, v5')
    a('v_lshrrev_b32 v6, 5, v%d' % V_LANE)
    a('v_lshl_add_u32 v5, v6, 4, v5')
    rowcol_off(a)
    a('buffer_store_dwordx4 %s, v5, s[12:15], s%d offen' % (vr(V_RES), S_T0))

STL = 88
def x_inputs(a, stats):
    cwait(a)
    ts3(a)
    dma_tile2(a)
    if stats:
        stats_load_issue(a, STL)
    a('s_waitcnt vmcnt(%d)' % (8 if stats else 4))
    a('s_barrier')
    next_tile(a)

def chunk1(a, stats=False):
    if stats and E('TS4'):
        a('s_waitcnt vmcnt(4)')
        ts(a)
    a('s_waitcnt vmcnt(0)')
    if stats:
        if E('TS4'): ts(a)
        stats_load_finish(a, LM_STD, STL)
        a('s_waitcnt lgkmcnt(0)')
    a('s_barrier')
    if stats and E('TS4'): ts(a)

def cf2_once(a):
    with role(a, 'B'):
        load_w_read(a, V_W1, 1)
    L = a.newlabel('cf2')
    a('s_cmp_lg_u32 s%d, 0' % S_LOFF)
    a('s_cbranch_scc1 %s' % L)
    with role(a, 'B'):
        colsum(a, V_W1, 9)
        make_csfrag(a, 9, V_CF2, 6)
    a.label(L)

def w16_regs(a):
    with role(a, 3):
        a('v_lshrrev_b32 v5, 5, v%d' % V_LANE)
        a('v_lshlrev_b32 v5, 9, v5')
        a('v_bfe_u32 v6, v%d, 4, 1' % V_LANE)
        a('v_lshl_add_u32 v5, v6, 7, v5')
        a('v_bfe_u32 v6, v%d, 2, 2' % V_LANE)
        a('v_lshl_add_u32 v5, v6, 5, v5')
        a('v_and_b32 v6, 3, v%d' % V_LANE)
        a('v_lshl_add_u32 v5, v6, 3, v5')
        a('v_add_u32 v5, %d, v5' % LDS_W16)
        for st in range(16):
            a('ds_read_b64_tr_b16 v[%d:%d], v5 offset:%d' % (V_W1 + 4 * st, V_W1 + 4 * st + 1, st * 1024))
            a('ds_read_b64_tr_b16 v[%d:%d], v5 offset:%d' % (V_W1 + 4 * st + 2, V_W1 + 4 * st + 3, st * 1024 + 256))
        a('s_waitcnt lgkmcnt(0)')
        L = a.newlabel('cf2')
        a('s_cmp_lg_u32 s%d, 0' % S_LOFF)
        a('s_cbranch_scc1 %s' % L)
        colsum(a, V_W1, 9)
        make_csfrag(a, 9, V_CF2, 6)
        a.label(L)

def out_gemm(a, w16=False):
    if w16:
        with role(a, 'B'):
            dma_w16(a)
            load_w_issue(a, U_WQ, 98304, 0)
            a('s_waitcnt vmcnt(12)')
    with role(a, 'A'):
        kloop(a, V_W0, 0, 8)
        a('s_waitcnt vmcnt(0)')
    if w16:
        a('s_barrier')
        with role(a, 'B'):
            a('s_waitcnt vmcnt(0)')
            load_w_read(a, V_W1, 0)
            load_w_issue(a, U_WQ, 98304, 1)
    else:
        chunk1(a)
    ts3(a)
    with role(a, 'A'):
        kloop(a, V_W0, 8, 16)
        ts3(a)
        y_red_write(a, 65536, 0)
    barrier(a)
    ts3(a)
    y_red_read(a, 65536, 0)
    resid_add(a, V_ACC)
    ts3(a)

def b1_compute(a):
    lm = LM_STD
    a('s_add_u32 s%d, s%d, 1' % (S_GPH, S_GPH))
    P = V_ACC
    X16 = [V_XF, V_XF + 4, V_XF + 8, V_XF + 12]
    def kv16_steps(s0):
        steps = list(range(s0, s0 + 4)) + list(range(s0 + 8, s0 + 12))
        L1 = a.newlabel('k16'); L2 = a.newlabel('k16')
        a('s_cmp_eq_u32 s%d, 1' % S_WHICH)
        a('s_cbranch_scc1 %s' % L1)
        for var in range(2):
            if var: a('s_branch %s' % L2); a.label(L1)
            for n in range(4):
                a('ds_read_b128 %s, v6 offset:%d' % (vr(X16[n]), steps[n] * 2048))
            for n, st in enumerate(steps):
                a('s_waitcnt lgkmcnt(%d)' % min(3, 7 - n))
                c = '0' if (s0 == 0 and n == 0) else vr(P)
                A_, B_ = (vr(V_W1 + 4 * st), vr(X16[n % 4])) if var == 0 else (vr(X16[n % 4]), vr(V_W1 + 4 * st))
                a('v_mfma_f32_16x16x32_bf16 %s, %s, %s, %s' % (vr(P), A_, B_, c))
                if n + 4 < 8:
                    a('ds_read_b128 %s, v6 offset:%d' % (vr(X16[n % 4]), steps[n + 4] * 2048))
        a.label(L2)
    with role(a, 'B'):
        kloop(a, V_W1, 0, 8)
    with role(a, 3):
        a('v_and_b32 v6, 15, v%d' % V_LANE)
        a('v_lshlrev_b32 v6, 4, v6')
        a('v_bfe_u32 v5, v%d, 4, 1' % V_LANE)
        a('v_lshl_add_u32 v6, v5, 9, v6')
        a('v_lshrrev_b32 v5, 5, v%d' % V_LANE)
        a('v_lshl_add_u32 v6, v5, 10, v6')
        a('s_lshr_b32 s%d, s%d, 1' % (S_T0, S_SLAB))
        a('s_lshl_b32 s%d, s%d, 15' % (S_T0, S_T0))
        a('s_and_b32 s%d, s%d, 1' % (S_T1, S_SLAB))
        a('s_lshl_b32 s%d, s%d, 8' % (S_T1, S_T1))
        a('s_add_u32 s%d, s%d, s%d' % (S_T0, S_T0, S_T1))
        a('v_add_u32 v6, s%d, v6' % S_T0)
        kv16_steps(0)
    chunk1(a, True)
    with role(a, 'B'):
        mean_issue(a, lm)
        kloop(a, V_W1, 8, 16)
        mean_finish(a)
        y_correct(a, V_CF2)
        y_red_write(a, 65536, 1)
    with role(a, 3):
        kv16_steps(4)
        a('v_and_b32 v7, 15, v%d' % V_LANE)
        a('s_lshl_b32 s%d, s%d, 4' % (S_T0, S_SLAB))
        a('v_add_u32 v7, s%d, v7' % S_T0)
        stats_read(a, lm, 7, V_TMP)
        make_mfrag(a, VM, P + 8)
        a('s_nop 1')
        MFg, CFg = P + 8, V_CF2
        L1 = a.newlabel('b1_fv'); Lsig = a.newlabel('b1_sig')
        a('s_cmp_eq_u32 s%d, 1' % S_WHICH)
        a('s_cbranch_scc1 %s' % L1)
        a('v_mfma_f32_16x16x32_bf16 %s, %s, %s, %s' % (vr(P), vr(CFg), vr(MFg), vr(P)))
        a('v_and_b32 v5, 15, v%d' % V_LANE)
        a('v_lshlrev_b32 v5, 4, v5')
        a('v_bfe_u32 v6, v%d, 4, 1' % V_LANE)
        a('v_lshl_add_u32 v5, v6, 9, v5')
        a('v_lshrrev_b32 v6, 5, v%d' % V_LANE)
        a('v_lshl_add_u32 v5, v6, 3, v5')
        a('s_lshl_b32 s%d, s%d, 11' % (S_T0, S_RB))
        a('s_lshr_b32 s%d, s%d, 1' % (S_T1, S_SLAB))
        a('s_lshl_b32 s%d, s%d, 10' % (S_T1, S_T1))
        a('s_add_u32 s%d, s%d, s%d' % (S_T0, S_T0, S_T1))
        a('s_and_b32 s%d, s%d, 1' % (S_T1, S_SLAB))
        a('s_lshl_b32 s%d, s%d, 8' % (S_T1, S_T1))
        a('s_add_u32 s%d, s%d, s%d' % (S_T0, S_T0, S_T1))
        a('s_add_u32 s%d, s%d, s%d' % (S_T0, S_T0, S_LOFF))
        a('s_add_u32 s%d, s%d, 0x%x' % (S_T0, S_T0, KF_))
        for r in range(4):
            a('v_mul_f32 v%d, v%d, v%d' % (P + r, P + r, VR))
        a('v_cvt_pk_bf16_f32 v%d, v%d, v%d' % (P + 4, P, P + 1))
        a('v_cvt_pk_bf16_f32 v%d, v%d, v%d' % (P + 5, P + 2, P + 3))
        a('buffer_store_dwordx2 v[%d:%d], v5, %s, s%d offen sc1' % (P + 4, P + 5, WSR, S_T0))
        a('v_mov_b32 v8, 0')
        a('s_nop 1')
        a('v_dot2_f32_bf16 v8, v%d, v%d, v8' % (P + 4, P + 4))
        a('v_dot2_f32_bf16 v8, v%d, v%d, v8' % (P + 5, P + 5))
        a.nop(3)
        a('v_mov_b32 v9, v8')
        a('s_nop 1')
        a('v_permlane16_swap_b32 v8, v9')
        a('s_nop 1')
        a('v_add_f32 v8, v8, v9')
        halves_sum(a, 8, 9)
        for sh in (8, 4, 2, 1):
            a('s_nop 1')
            a('v_max_f32_dpp v8, v8, v8 row_ror:%d row_mask:0xf bank_mask:0xf' % sh)
        a('s_lshl_b32 s%d, s%d, 2' % (S_T0, S_RB))
        a('s_add_u32 s%d, s%d, s%d' % (S_T0, S_T0, S_SLAB))
        a('s_lshl_b32 s%d, s%d, 2' % (S_T0, S_T0))
        a('s_add_u32 s%d, s%d, s%d' % (S_T0, S_T0, S_LOFF))
        a('s_add_u32 s%d, s%d, 0x%x' % (S_T0, S_T0, KMAX_))
        a('v_mov_b32 v5, 0')
        a('s_mov_b64 exec, 1')
        a('buffer_store_dword v8, v5, %s, s%d offen sc1' % (WSR, S_T0))
        a('s_mov_b64 exec, -1')
        a('s_branch %s' % Lsig)
        a.label(L1)
        a('v_mfma_f32_16x16x32_bf16 %s, %s, %s, %s' % (vr(P), vr(MFg), vr(CFg), vr(P)))
        a('v_and_b32 v5, 15, v%d' % V_LANE)
        a('v_lshlrev_b32 v5, 2, v5')
        a('v_add_u32 v5, %d, v5' % LDS_U)
        a('ds_write_b32 v5, v%d' % VR)
        a('v_lshrrev_b32 v6, 4, v%d' % V_LANE)
        a('v_lshlrev_b32 v6, 4, v6')
        a('v_add_u32 v6, %d, v6' % LDS_U)
        a('s_waitcnt lgkmcnt(0)')
        a('ds_read_b128 %s, v6' % vr(P + 16))
        a('v_and_b32 v5, 15, v%d' % V_LANE)
        a('v_lshlrev_b32 v5, 4, v5')
        a('v_bfe_u32 v6, v%d, 4, 1' % V_LANE)
        a('v_lshl_add_u32 v5, v6, 8, v5')
        a('v_lshrrev_b32 v6, 5, v%d' % V_LANE)
        a('v_lshl_add_u32 v5, v6, 3, v5')
        a('s_lshl_b32 s%d, s%d, 2' % (S_T0, S_RB))
        a('s_add_u32 s%d, s%d, s%d' % (S_T0, S_T0, S_SLAB))
        a('s_lshl_b32 s%d, s%d, 9' % (S_T0, S_T0))
        a('s_add_u32 s%d, s%d, s%d' % (S_T0, S_T0, S_LOFF))
        a('s_add_u32 s%d, s%d, 0x%x' % (S_T0, S_T0, VF_))
        a('s_waitcnt lgkmcnt(0)')
        for r in range(4):
            a('v_mul_f32 v%d, v%d, v%d' % (P + r, P + r, P + 16 + r))
        a('v_cvt_pk_bf16_f32 v%d, v%d, v%d' % (P + 4, P, P + 1))
        a('v_cvt_pk_bf16_f32 v%d, v%d, v%d' % (P + 5, P + 2, P + 3))
        a('buffer_store_dwordx2 v[%d:%d], v5, %s, s%d offen sc1' % (P + 4, P + 5, WSR, S_T0))
        a.label(Lsig)
    ln_stats(a, lm)
    barrier(a)
    with role(a, 3):
        a('s_waitcnt vmcnt(0)')
        lsignal(a)
    AQ = V_ACC
    y_red_read(a, 65536, 1)
    scale_pack(a, AQ, VR, V_XF)
    for r in range(4):
        a('v_lshlrev_b32 v%d, 16, v%d' % (AQ + 2 * r, V_XF + r))
        a('v_and_b32 v%d, 0xffff0000, v%d' % (AQ + 2 * r + 1, V_XF + r))
    for r in range(8):
        a('v_mul_f32 v%d, 0x%x, v%d' % (AQ + r, f2u(CQ), AQ + r))
    for r in range(4):
        a('v_cvt_pk_bf16_f32 v%d, v%d, v%d' % (A_Q + r, AQ + 2 * r, AQ + 2 * r + 1))

PRIO_SW = int(E('PRIO_SW', '48'))
def attn_loop(a):
    a.lreset()
    def rdK(t):
        if t < 64: a.l_('k%d' % t, 'ds_read_b128 %s, v%d offset:%d' % (vr(A_K[t % 2]), V_L16, t * 1024))
    def rdV(t):
        if t >= 64: return
        a('s_mov_b64 exec, s[%d:%d]' % (S_MASK_LO16, S_MASK_LO16 + 1))
        a.l_('v%d' % t, 'ds_read_b128 %s, v%d offset:%d' % (vr(A_V[t % 2]), A_VA, t * 1024))
        a.l_('v%d' % t, 'ds_read_b128 %s, v%d offset:%d' % (vr(A_V[t % 2] + 4), A_VA, t * 1024 + 512))
        a('s_mov_b64 exec, -1')
    def qk(t):
        a('v_mfma_f32_32x32x16_bf16 %s, %s, %s, %s' % (vr(A_S[t % 2], 16), vr(A_K[t % 2]), vr(A_Q), vr(A_BIAS, 16)))
    def pv(vb, pb, first=False):
        a('v_mfma_f32_32x32x16_bf16 %s, %s, %s, %s' % (vr(A_O, 16), vr(vb), vr(pb), '0' if first else vr(A_O, 16)))
    ex = lambda r: a('v_exp_f32 v%d, v%d' % (r, r))
    class first_pass:
        def __enter__(s_):
            s_.L = a.newlabel('fp')
            a('s_cmp_lg_u32 s%d, 0' % S_PASS)
            a('s_cbranch_scc1 %s' % s_.L)
        def __exit__(s_, *e): a.label(s_.L)
    a('v_and_b32 v%d, 15, v%d' % (A_VA, V_LANE))
    a('v_lshlrev_b32 v%d, 4, v%d' % (A_VA, A_VA))
    a('v_lshrrev_b32 v7, 5, v%d' % V_LANE)
    a('v_lshl_add_u32 v%d, v7, 8, v%d' % (A_VA, A_VA))
    a('v_add_u32 v%d, 65536, v%d' % (A_VA, A_VA))
    rdK(0); rdK(1); rdV(0)
    WD, WA = 10, 11
    a('s_lshl_b32 s70, s%d, 12' % S_W)
    a('s_add_u32 s70, s70, 131072')
    a('s_setprio 1')
    with role(a, 'B'):
        a('s_setprio 2')
    a.lwait('k0')
    qk(0)
    raw_rdaddr(a, WA, 70)
    a('s_nop 1')
    T0 = 16
    def wskip(cond_all):
        a('s_cmp_lg_u32 s%d, 0' % S_LOFF)
        a('s_cselect_b32 s%d, 0x%x, 0' % (S_T0, OOB))
        if not cond_all:
            a('s_cmp_eq_u32 s%d, 0' % S_KH)
            a('s_cselect_b32 s%d, 0, s%d' % (S_T0, S_T0))
        a('s_add_u32 s68, s68, s%d' % S_T0)
    for t in range(64):
        S = A_S[t % 2]
        cv = lambda r: a('v_cvt_pk_bf16_f32 v%d, v%d, v%d' % (A_P + r, S + 2 * r, S + 2 * r + 1))
        if t == 3:
            with first_pass():
                tagbase(a, 65, S_GPH)
                a('v_and_b32 v7, 7, v%d' % V_LANE)
                a('v_lshlrev_b32 v7, 7, v7')
                a('s_mov_b32 s66, 0x%x' % XFLAG)
                poll(a, ['buffer_load_dwordx2 v[8:9], v7, %s, s66 offen sc1' % WSR], tagcmp([8], 65, 5), sleep=1)
                kv_dma(a, range(1, 8))
        if t in (6, 14):
            with first_pass():
                a('s_waitcnt vmcnt(%d)' % (12 if t == 6 else 0))
                a('s_barrier')
        if t == PRIO_SW:
            with role(a, 'B'):
                a('s_setprio 0')
        if t == T0:
            raw_setup(a, U_OB, U_Q, S_IN2, 68, 69, WD); wskip(False)
        if t == T0 + 16:
            raw_setup(a, U_K, U_V, S_IN2, 68, 69, WD); wskip(True)
        if t + 1 < 64:
            a.lwait('k%d' % (t + 1))
            qk(t + 1)
        rdK(t + 2)
        ex(S + 0); ex(S + 1); ex(S + 2); ex(S + 3); cv(0); ex(S + 4); ex(S + 5); cv(1); ex(S + 6); ex(S + 7); cv(2)
        ex(S + 8); ex(S + 9); cv(3); ex(S + 10); ex(S + 11)
        a.lwait('v%d' % t)
        pv(A_V[t % 2], A_P, t == 0)
        p = t - T0
        if 0 <= p < 32:
            if p >= 4: a.lwait('w%d' % (p - 4))
            for l in raw_dma(S_IN2, 68, 69, WD, 70, (p % 4) * 1024): a(l)
        cv(4); ex(S + 12); ex(S + 13); cv(5); ex(S + 14); ex(S + 15); cv(6)
        p = t - T0 - 2
        if 0 <= p < 32:
            a('s_waitcnt vmcnt(%d)' % min(2, 31 - p))
        else:
            a('s_nop 0')
        cv(7)
        if 0 <= p < 32:
            for l in raw_rd((V_W0 if p < 16 else V_W1) + 4 * (p % 16), WA, (p % 4) * 1024): a.l_('w%d' % p, l)
        else:
            a('s_nop 1')
        pv(A_V[t % 2] + 4, A_P + 4)
        rdV(t + 1)
    a('s_setprio 0')
    a.nop(16)

def attn_pre(a):
    a('s_mov_b32 s%d, 0x00110000' % S_T0)
    a('s_mov_b32 s%d, 0x00110000' % S_T1)
    a('v_cndmask_b32_e64 v7, 0, v%d, s[%d:%d]' % (V_ONES, S_T0, S_T1))
    for b in range(2):
        for r in range(8):
            a('v_mov_b32 v%d, v7' % (A_V[b] + r))
    a('v_mov_b32 v%d, 0' % V_Q2)
    a('s_nop 1')
    for r in range(4):
        a('v_dot2_f32_bf16 v%d, v%d, v%d, v%d' % (V_Q2, A_Q + r, A_Q + r, V_Q2))
    a.nop(3)
    halves_sum(a, V_Q2, 9)

def kv_dma(a, slots):
    a('s_lshl_b32 s67, s%d, 10' % S_W)
    for sl in slots:
        a('s_add_u32 s%d, s%d, %d' % (S_T0, S_GRP, sl))
        a('s_and_b32 s%d, s%d, 7' % (S_T0, S_T0))
        a('s_lshl_b32 s%d, s%d, 13' % (S_T0, S_T0))
        a('s_add_u32 s%d, s%d, s67' % (S_T0, S_T0))
        a('s_add_u32 s%d, s%d, s%d' % (S_T0, S_T0, S_LOFF))
        a('s_add_u32 s%d, s%d, 0x%x' % (S_T0, S_T0, KF_))
        a('s_add_u32 m0, s67, %d' % (sl * 8192))
        a('s_add_u32 s%d, s%d, 0x10000' % (S_T1, S_T0))
        a('buffer_load_dwordx4 v%d, %s, s%d offen sc1 lds' % (V_L16, WSR, S_T0))
        a('s_add_u32 m0, s67, %d' % (65536 + sl * 8192))
        a('s_nop 0')
        a('buffer_load_dwordx4 v%d, %s, s%d offen sc1 lds' % (V_L16, WSR, S_T1))

def attn_inputs(a):
    with role(a, 0):
        lwait(a)
        L = a.newlabel('ld')
        a('s_lshr_b32 s%d, s2, 3' % S_T0)
        a('s_cmp_lg_u32 s%d, 0' % S_T0)
        a('s_cbranch_scc1 %s' % L)
        tagval(a, 6, S_GPH)
        a('s_lshl_b32 s%d, s%d, 7' % (S_T0, S_GRP))
        a('s_add_u32 s%d, s%d, 0x%x' % (S_T0, S_T0, XFLAG))
        a('v_mov_b32 v5, 0')
        a('s_mov_b64 exec, 1')
        a('buffer_store_dwordx2 v[6:7], v5, %s, s%d offen sc1' % (WSR, S_T0))
        a('s_mov_b64 exec, -1')
        a.label(L)
    barrier(a)
    ts(a)
    kv_dma(a, [0])
    a('v_and_b32 v5, 15, v%d' % V_LANE)
    a('v_lshlrev_b32 v5, 2, v5')
    a('s_lshl_b32 s%d, s%d, 6' % (S_T0, S_GRP))
    a('s_add_u32 s%d, s%d, s%d' % (S_T0, S_T0, S_LOFF))
    a('s_add_u32 s%d, s%d, 0x%x' % (S_T0, S_T0, KMAX_))
    a('buffer_load_dword v10, v5, %s, s%d offen sc1' % (WSR, S_T0))
    a('s_waitcnt vmcnt(0)')
    a('s_barrier')

def attn_compute(a):
    a('v_mov_b32 v8, v10')
    for sh in (8, 4, 2, 1):
        a('s_nop 1')
        a('v_max_f32_dpp v8, v8, v8 row_ror:%d row_mask:0xf bank_mask:0xf' % sh)
    a('v_mul_f32 v10, v%d, v8' % V_Q2)
    a('v_sqrt_f32 v10, v10')
    a('s_nop 0')
    a('v_mul_f32 v10, 0x%x, v10' % f2u(-1.001))
    a('s_mov_b32 s%d, 0' % S_PASS)
    Lrun = a.newlabel('at_run'); Lok = a.newlabel('at_ok'); Lmx = a.newlabel('at_mx')
    a.label(Lrun)
    for r in range(16):
        a('v_mov_b32 v%d, v10' % (A_BIAS + r))
    a('s_nop 1')
    attn_loop(a)
    a('s_cmp_eq_u32 s%d, 1' % S_PASS)
    a('s_cbranch_scc1 %s' % Lok)
    a('v_max3_f32 v8, abs(v%d), abs(v%d), abs(v%d)' % (A_O, A_O + 1, A_O + 2))
    a('v_max3_f32 v9, abs(v%d), abs(v%d), abs(v%d)' % (A_O + 3, A_O + 4, A_O + 5))
    a('v_max3_f32 v8, abs(v%d), abs(v%d), v8' % (A_O + 6, A_O + 7))
    a('v_max_f32 v8, v8, v9')
    a('v_cmp_nle_f32 vcc, 0x%x, v%d' % (f2u(2.0 ** -89), A_O + 8))
    a('v_cmp_nge_f32 s[64:65], v%d, v%d' % (7, A_O + 8)) if False else None
    a('s_mov_b64 s[64:65], vcc')
    a('v_cmp_nge_f32 vcc, 0x%x, v%d' % (f2u(2.0 ** 90), A_O + 8))
    a('s_nop 3')
    a('s_or_b64 s[64:65], s[64:65], vcc')
    a('v_cmp_nge_f32 vcc, 0x%x, v8' % f2u(2.0 ** 126))
    a('s_nop 3')
    a('s_or_b64 s[64:65], s[64:65], vcc')
    a('s_cmp_eq_u64 s[64:65], 0')
    a('s_cbranch_scc1 %s' % Lok)
    a('s_mov_b32 s%d, 1' % S_PASS)
    a('v_mov_b32 v10, 0xff800000')
    a('v_mov_b32 v%d, v%d' % (A_KA, V_L16))
    a('s_mov_b32 s%d, 0' % S_CNT)
    a.label(Lmx)
    a('ds_read_b128 %s, v%d' % (vr(A_K[0]), A_KA))
    a('s_waitcnt lgkmcnt(0)')
    a('v_mfma_f32_32x32x16_bf16 %s, %s, %s, 0' % (vr(A_S[0], 16), vr(A_K[0]), vr(A_Q)))
    a.nop(16)
    for r in range(0, 16, 2):
        a('v_max3_f32 v10, v10, v%d, v%d' % (A_S[0] + r, A_S[0] + r + 1))
    a('v_add_u32 v%d, 1024, v%d' % (A_KA, A_KA))
    a('s_add_u32 s%d, s%d, 1' % (S_CNT, S_CNT))
    a('s_cmp_lt_u32 s%d, 64' % S_CNT)
    a('s_cbranch_scc1 %s' % Lmx)
    halves_sum(a, 10, 9, 'v_max_f32')
    a('v_sub_f32 v10, 0, v10')
    a('s_branch %s' % Lrun)
    a.label(Lok)
    a('v_rcp_f32 v8, v%d' % (A_O + 8))
    a('s_nop 0')
    scale_pack(a, A_O, 8, A_P)
    store_blk(a, A_P)
    csignal(a)

def header():
    ref = open('cdna_kernels/%s.s.ref' % NAME).read().split('\n')
    out = []
    for l in ref:
        if not l.startswith(';'): break
        if '@launch' in l: continue
        out.append(l)
    return out

def main(path):
    a = Asm()
    for h in header(): a.raw(h)
    a.raw('; @launch grid=(256,1,1) block=(512,1,1) lds=%d' % LDS_TOTAL)
    a.raw('.amdgcn_target "amdgcn-amd-amdhsa--gfx950"')
    a.raw('.text')
    name = NAME + '_kernel'
    prologue(a, name)
    ts(a)
    p1(a)
    ts(a)
    a.label('L_layer')
    x_inputs(a, False)
    ts(a)
    out_gemm(a, True)
    store_x(a)
    csignal(a)
    cf2_once(a)
    w16_regs(a)
    ts(a)
    x_inputs(a, True)
    ts(a)
    b1_compute(a)
    attn_pre(a)
    ts(a)
    attn_inputs(a)
    ts(a)
    attn_compute(a)
    ts(a)
    x_inputs(a, False)
    ts(a)
    out_gemm(a)
    a('s_cmp_lg_u32 s%d, 0' % S_LOFF)
    a('s_cbranch_scc1 L_final')
    a('s_mov_b32 s%d, 0x%x' % (S_LOFF, LS))
    store_x(a)
    csignal(a)
    ts(a)
    x_inputs(a, True)
    ts(a)
    a1_std(a)
    ts(a)
    a('s_branch L_layer')
    a.label('L_final')
    final_store(a)
    a('s_waitcnt vmcnt(0)')
    ts(a)
    epilogue(a, name)
    open(path, 'w').write(a.text())

if __name__ == '__main__':
    main(sys.argv[1] if len(sys.argv) > 1 else 'cdna_kernels/%s.s' % NAME)
```

```python
import struct, math, sys, os

NAME = 'interleave_layers__linear_attn_block__grouped_kv_mqa__prompt'
E = os.environ.get
TS_ON = E('TS', '0') == '1'
TS2 = TS_ON and E('TS2', '0') == '1'
DBGBUF = E('DBGBUF', '0') == '1'

T0_ = 0x1000000 if DBGBUF else 0x000000
WP = 0x400000
NT_QKV, NT_OA, NT_Q, NT_OB = 0, 48, 64, 80
WKV16 = 0x700000
STP = 0x780000
LB, LS = 0x880000, 0x140000
KF_, VF_, KMAX_ = LB, LB + 0x10000, LB + 0x20000
KVP_, ZP_ = LB + 0x28000, LB + 0x128000
CFLAG = 0xB00000
GFLAG = 0xB04000
XFLAG = 0xB05000
HFLAG = 0xB20000
TSBUF = 0xB40000
WS_BYTES = 0x10000000
OOB = 0x7FFF0000
_t = lambda n: T0_ + n * 0x200000
XF = [None, _t(1), _t(3), _t(5)]
OLIN = [_t(0), _t(4)]; OF = [_t(2), _t(6)]
KF = [KF_, KF_ + LS]; VF = [VF_, VF_ + LS]; KMAX = [KMAX_, KMAX_ + LS]; KVP = [KVP_, KVP_ + LS]; ZP = [ZP_, ZP_ + LS]

def f2u(x): return struct.unpack('<I', struct.pack('<f', x))[0]
LOG2E = math.log2(math.e)
CQ = 0.25 * LOG2E

class Asm:
    def __init__(self):
        self.l = []; self.uid = 0; self.vm = []; self.done = -1
    def __call__(self, s):
        for line in s.strip('\n').split('\n'):
            self.l.append('    ' + line.strip())
    def label(self, s): self.l.append(s + ':')
    def raw(self, s): self.l.append(s)
    def nop(self, n):
        while n > 0:
            k = min(n, 16); self('s_nop %d' % (k - 1)); n -= k
    def newlabel(self, p='L'):
        self.uid += 1; return '%s_%d' % (p, self.uid)
    def text(self): return '\n'.join(self.l) + '\n'
    def lreset(self): self.lg = []; self.ldone = -1
    def l_(self, tag, s_):
        self(s_); self.lg.append(tag)
    def lwait(self, *tags):
        idx = [i for i, t in enumerate(self.lg) if t in tags]
        if not idx or max(idx) <= self.ldone: return
        self.ldone = max(idx)
        n = len(self.lg) - 1 - max(idx)
        self('s_waitcnt lgkmcnt(%d)' % min(n, 15))
    def vreset(self): self.vm = []; self.done = -1
    def v(self, tag, s):
        self(s); self.vm.append(tag)
    def vwait(self, *tags, extra=''):
        idx = [i for i, t in enumerate(self.vm) if t in tags]
        if max(idx) <= self.done and not extra: return
        self.done = max(self.done, max(idx))
        n = len(self.vm) - 1 - max(idx)
        assert n <= 63
        self('s_waitcnt vmcnt(%d)%s' % (n, extra))

def vr(b, n=4): return 'v[%d:%d]' % (b, b + n - 1)

S_WS, S_IN, S_IN2 = 4, 8, 12
S_RB, S_CS, S_W, S_I, S_J, S_KH = 16, 17, 18, 19, 20, 21
S_BLK, S_LOFF = 22, 23
S_T0, S_T1, S_T2, S_T3, S_T4, S_T5 = 24, 25, 26, 27, 28, 29
S_MASK_LO16 = 30
S_WHICH, S_SLAB = 34, 35
S_CNT, S_PASS, S_CPH, S_GPH = 36, 37, 38, 39
S_FAST, S_SPIN = 62, 63
S_TSI, S_TOFF, S_SOFF, S_GRP = 72, 73, 74, 75
S_DBG = 76
S_WOFF, S_XOFF = 80, 81
S_TS = 82
S_NLO, S_NHI, S_XCC = 32, 33, 91
V_ONES, V_LANE, V_L16, V_XB, V_XA = 0, 1, 2, 3, 4
VM, VR = 10, 11
V_CF1, V_CF0, V_CF2 = 12, 14, 16
V_RES = 20
V_XF = 24
V_ACC = 40
V_PQ = 88
V_CFA, V_GFA, V_PCA, V_Q2 = 96, 97, 98, 99
V_TMP = 100
V_W0, V_W1 = 128, 192
A_Q, A_BIAS, A_S, A_P, A_O, A_K, A_V = 100, 24, [40, 56], 72, 80, [104, 108], [112, 120]
A_KA, A_VA = 5, 6
XBUF = [V_XF, V_XF + 8, V_TMP, V_TMP + 8]
ACC0, ACC1 = V_ACC, V_ACC + 16
V_MF = V_ACC + 32

class LM:
    def __init__(s, red, stat, pkv, kvf, redq, wst=98304): s.red, s.stat, s.pkv, s.kvf, s.redq, s.wst = red, stat, pkv, kvf, redq, wst
LM_STD = LM(red=65536, stat=131072, pkv=135168, kvf=151552, redq=65536)
LDS_U = 155648
LDS_TOTAL = 163840
WSR = 's[%d:%d]' % (S_WS, S_WS + 3)
SPIN_MAX = 200000

def srd(a, d, ptr_s, nbytes):
    a('s_mov_b32 s%d, s%d' % (d, ptr_s))
    a('s_mov_b32 s%d, s%d' % (d + 1, ptr_s + 1))
    a('s_mov_b32 s%d, 0x%x' % (d + 2, nbytes))
    a('s_mov_b32 s%d, 0x00020000' % (d + 3))

def ts(a):
    if not TS_ON: return
    L = a.newlabel('ts')
    a('s_cmp_lg_u32 s%d, %s' % (S_W, E('TSW', '0')))
    a('s_cbranch_scc1 %s' % L)
    a('s_memrealtime s[%d:%d]' % (S_TS, S_TS + 1))
    a('s_memtime s[92:93]')
    a('s_waitcnt lgkmcnt(0)')
    a('s_mov_b64 exec, 1')
    a('v_mov_b32 v8, s%d' % S_TS)
    a('v_mov_b32 v9, s%d' % S_TSI)
    a('buffer_store_dword v8, v9, %s, 0 offen' % WSR)
    a('v_mov_b32 v7, s92')
    a('buffer_store_dword v7, v9, %s, 0 offen offset:256' % WSR)
    a('s_mov_b64 exec, -1')
    a('s_add_u32 s%d, s%d, 4' % (S_TSI, S_TSI))
    a.label(L)
def ts3(a):
    if TS_ON and E('TS3'): ts(a)
def ts2(a):
    if TS2: ts(a)

class role:
    def __init__(s, a, who): s.a, s.who = a, who
    def __enter__(s):
        a = s.a; s.L = a.newlabel('role')
        if s.who == 'A': a('s_cmp_lg_u32 s%d, 0' % S_KH)
        elif s.who == 'B': a('s_cmp_lg_u32 s%d, 1' % S_KH)
        else: a('s_cmp_lg_u32 s%d, %d' % (S_W, s.who))
        a('s_cbranch_scc1 %s' % s.L)
    def __exit__(s, *e): s.a.label(s.L)

def prologue(a, name):
    a.raw('.globl %s' % name); a.raw('.p2align 8'); a.raw('.type %s,@function' % name)
    a.label(name)
    a('s_cmp_ge_u32 s2, 256')
    a('s_cbranch_scc1 L_end')
    a('s_load_dwordx16 s[40:55], s[0:1], 0')
    a('s_load_dwordx4 s[56:59], s[0:1], 64')
    a('s_load_dwordx2 s[60:61], s[0:1], 80')
    a('s_and_b32 s%d, s2, 7' % S_GRP)
    a('s_lshl_b32 s%d, s%d, 2' % (S_RB, S_GRP))
    a('s_lshr_b32 s%d, s2, 6' % S_T0)
    a('s_add_u32 s%d, s%d, s%d' % (S_RB, S_RB, S_T0))
    a('s_bfe_u32 s%d, s2, 0x30003' % S_CS)
    a('v_lshrrev_b32 v5, 6, v0')
    a('v_and_b32 v%d, 63, v0' % V_LANE)
    a('s_nop 0')
    a('v_readfirstlane_b32 s%d, v5' % S_W)
    a('v_lshlrev_b32 v%d, 4, v%d' % (V_L16, V_LANE))
    a('s_nop 3')
    a('s_and_b32 s%d, s%d, 1' % (S_I, S_W))
    a('s_bfe_u32 s%d, s%d, 0x10001' % (S_J, S_W))
    a('s_lshr_b32 s%d, s%d, 2' % (S_KH, S_W))
    a('s_lshl_b32 s%d, s%d, 1' % (S_T0, S_RB))
    a('s_add_u32 s%d, s%d, s%d' % (S_T0, S_T0, S_I))
    a('s_lshl_b32 s%d, s%d, 5' % (S_T0, S_T0))
    a('s_lshl_b32 s%d, s%d, 2' % (S_T1, S_CS))
    a('s_add_u32 s%d, s%d, s%d' % (S_T0, S_T0, S_T1))
    a('s_lshl_b32 s%d, s%d, 1' % (S_T1, S_J))
    a('s_add_u32 s%d, s%d, s%d' % (S_T0, S_T0, S_T1))
    a('s_add_u32 s%d, s%d, s%d' % (S_T0, S_T0, S_KH))
    a('s_lshl_b32 s%d, s%d, 10' % (S_BLK, S_T0))
    a('s_lshl_b32 s%d, s%d, 14' % (S_T1, S_I))
    a('s_mul_i32 s%d, s%d, 49152' % (S_T0, S_I))
    a('v_add_u32 v%d, s%d, v%d' % (V_XA, S_T0, V_L16))
    a('v_xor_b32 v%d, 32768, v%d' % (V_XB, V_XA))
    a('s_lshl_b32 s%d, s%d, 1' % (S_T0, S_CS))
    a('s_add_u32 s%d, s%d, s%d' % (S_T0, S_T0, S_J))
    a('s_lshl_b32 s%d, s%d, 6' % (S_WOFF, S_T0))
    a('s_lshl_b32 s%d, s%d, 16' % (S_XOFF, S_RB))
    a('v_mov_b32 v%d, 0x3f803f80' % V_ONES)
    a('s_mov_b32 s%d, 0x0000ffff' % S_MASK_LO16)
    a('s_mov_b32 s%d, 0x0000ffff' % (S_MASK_LO16 + 1))
    a('s_and_b32 s%d, s%d, 1' % (S_WHICH, S_CS))
    a('s_lshr_b32 s%d, s%d, 1' % (S_SLAB, S_CS))
    a('s_mov_b32 s%d, 0' % S_LOFF)
    a('s_mov_b32 s%d, 0' % S_CPH)
    a('s_mov_b32 s%d, 0' % S_GPH)
    a('s_mov_b32 s%d, 0' % S_FAST)
    a('s_mov_b32 s%d, 0x%x' % (S_TOFF, T0_))
    a('s_mov_b32 s%d, 0x%x' % (S_SOFF, STP))
    a('s_lshl_b32 s%d, s%d, 9' % (S_T0, S_RB))
    a('s_add_u32 s%d, s%d, 0x%x' % (S_T0, S_T0, CFLAG))
    a('v_lshlrev_b32 v5, 3, v%d' % V_LANE)
    a('v_add_u32 v%d, s%d, v5' % (V_PCA, S_T0))
    a('s_lshl_b32 s%d, s%d, 6' % (S_T1, S_CS))
    a('s_add_u32 s%d, s%d, s%d' % (S_T0, S_T0, S_T1))
    a('s_lshl_b32 s%d, s%d, 3' % (S_T1, S_W))
    a('s_add_u32 s%d, s%d, s%d' % (S_T0, S_T0, S_T1))
    a('v_mov_b32 v%d, s%d' % (V_CFA, S_T0))
    a('s_getreg_b32 s%d, hwreg(HW_REG_XCC_ID)' % S_XCC)
    a('s_and_b32 s%d, s%d, 15' % (S_XCC, S_XCC))
    a('s_lshl_b32 s%d, s%d, 6' % (S_T0, S_RB))
    a('s_lshl_b32 s%d, s%d, 3' % (S_T1, S_CS))
    a('s_add_u32 s%d, s%d, s%d' % (S_T0, S_T0, S_T1))
    a('s_add_u32 s%d, s%d, 0x%x' % (S_T0, S_T0, GFLAG))
    a('v_mov_b32 v%d, s%d' % (V_GFA, S_T0))
    a('s_lshl_b32 s%d, s2, 9' % S_TSI)
    a('s_add_u32 s%d, s%d, 0x%x' % (S_TSI, S_TSI, TSBUF))
    a('s_waitcnt lgkmcnt(0)')
    srd(a, S_WS, 60, WS_BYTES)
    srd(a, S_DBG, 58, 256)

def epilogue(a, name, nv=256):
    a.label('L_end')
    a('s_endpgm')
    a.raw('.section .rodata,"a"'); a.raw('.p2align 6')
    a.raw('.amdhsa_kernel %s' % name)
    a.raw('  .amdhsa_next_free_vgpr %d' % nv)
    a.raw('  .amdhsa_next_free_sgpr 96')
    a.raw('  .amdhsa_accum_offset %d' % ((nv + 3) // 4 * 4))
    a.raw('  .amdhsa_group_segment_fixed_size 0')
    a.raw('  .amdhsa_kernarg_size 88')
    a.raw('  .amdhsa_user_sgpr_count 2')
    a.raw('  .amdhsa_user_sgpr_kernarg_segment_ptr 1')
    a.raw('  .amdhsa_system_sgpr_workgroup_id_x 1')
    a.raw('  .amdhsa_float_denorm_mode_32 3')
    a.raw('.end_amdhsa_kernel')

def fast_store(a, fmts):
    L1 = a.newlabel('fs'); L2 = a.newlabel('fs')
    a('s_cmp_eq_u32 s%d, 1' % S_FAST)
    a('s_cbranch_scc1 %s' % L1)
    for f in fmts: a(f.replace('@', ' sc1'))
    a('s_branch %s' % L2)
    a.label(L1)
    for f in fmts: a(f.replace('@', ''))
    a.label(L2)

def tagval(a, v, sph, xcc=False):
    a('s_lshl_b32 s%d, s%d, 4' % (S_T0, sph))
    a('s_add_u32 s%d, s%d, s%d' % (S_T0, S_T0, S_NLO))
    if xcc: a('s_add_u32 s%d, s%d, s%d' % (S_T0, S_T0, S_XCC))
    a('v_mov_b32 v%d, s%d' % (v, S_T0))
    a('v_mov_b32 v%d, s%d' % (v + 1, S_NHI))

def tagbase(a, sdst, sph):
    a('s_lshl_b32 s%d, s%d, 4' % (sdst, sph))
    a('s_add_u32 s%d, s%d, s%d' % (sdst, sdst, S_NLO))

def tagcmp(pairs, sbase, t):
    out = []
    for n, p in enumerate(pairs):
        out.append('v_subrev_u32 v%d, s%d, v%d' % (p, sbase, p))
        out.append('v_xor_b32 v%d, s%d, v%d' % (p + 1, S_NHI, p + 1))
        out.append('v_lshrrev_b32 v%d, 12, v%d' % (p, p))
        if n == 0: out.append('v_or_b32 v%d, v%d, v%d' % (t, p, p + 1))
        else: out.append('v_or3_b32 v%d, v%d, v%d, v%d' % (t, t, p, p + 1))
    out.append('v_cmp_ne_u32 vcc, 0, v%d' % t)
    return out

def csignal(a, tag=None):
    a('s_add_u32 s%d, s%d, 1' % (S_CPH, S_CPH))
    tagval(a, 6, S_CPH, True)
    if tag is None:
        a('s_waitcnt vmcnt(0) lgkmcnt(0)')
    a('s_mov_b64 exec, 1')
    fast_store(a, ['buffer_store_dwordx2 v[6:7], v%d, %s, 0 offen@' % (V_CFA, WSR)])
    a('s_mov_b64 exec, -1')
    if tag: a.vm.append(tag)

def poll(a, load, cmp, sleep=0):
    Lp = a.newlabel('pl'); Lo = a.newlabel('po')
    a('s_mov_b32 s%d, 0' % S_SPIN)
    a.label(Lp)
    a('s_add_u32 s%d, s%d, 1' % (S_SPIN, S_SPIN))
    a('s_cmp_gt_u32 s%d, %d' % (S_SPIN, SPIN_MAX))
    a('s_cbranch_scc1 L_end')
    for l in load: a(l)
    a('s_waitcnt vmcnt(0)')
    for c in cmp: a(c)
    if sleep:
        a('s_cbranch_vccz %s' % Lo)
        a('s_sleep %d' % sleep)
        a('s_branch %s' % Lp)
        a.label(Lo)
    else:
        a('s_cbranch_vccnz %s' % Lp)

def cwait(a):
    tagbase(a, 65, S_CPH)
    poll(a, ['buffer_load_dwordx2 v[8:9], v%d, %s, 0 offen sc1' % (V_PCA, WSR)], tagcmp([8], 65, 7))

def lpoll_addr(a, v):
    a('v_and_b32 v%d, 31, v%d' % (v, V_LANE))
    a('v_lshlrev_b32 v%d, 3, v%d' % (v, v))
    a('s_lshl_b32 s66, s%d, 8' % S_GRP)
    a('s_add_u32 s66, s66, 0x%x' % GFLAG)

def lwait(a):
    tagbase(a, 65, S_GPH)
    lpoll_addr(a, 5)
    poll(a, ['buffer_load_dwordx2 v[8:9], v5, %s, s66 offen sc1' % WSR], tagcmp([8], 65, 7))

def lsignal(a):
    tagval(a, 6, S_GPH, True)
    a('s_mov_b64 exec, 1')
    fast_store(a, ['buffer_store_dwordx2 v[6:7], v%d, %s, 0 offen@' % (V_GFA, WSR)])
    a('s_mov_b64 exec, -1')

DBR = 's[%d:%d]' % (S_DBG, S_DBG + 3)
NP = 18
def nonce_publish(a):
    L = a.newlabel('np')
    a('s_cmp_lg_u32 s2, 0')
    a('s_cbranch_scc1 %s' % L)
    a('s_cmp_lg_u32 s%d, 0' % S_W)
    a('s_cbranch_scc1 %s' % L)
    a('s_memrealtime s[64:65]')
    a('s_waitcnt lgkmcnt(0)')
    a('s_lshl_b64 s[64:65], s[64:65], 12')
    a('s_or_b32 s65, s65, 0x80000000')
    a('v_mov_b32 v6, s64')
    a('v_mov_b32 v7, s65')
    a('v_mov_b32 v5, 0')
    a('s_mov_b64 exec, 1')
    a('buffer_store_dwordx2 v[6:7], v5, %s, 0 offen sc1' % DBR)
    a('s_mov_b64 exec, -1')
    a.label(L)

def nonce_probe(a):
    a('v_mov_b32 v5, 0')
    a.v('np', 'buffer_load_dwordx2 v[%d:%d], v5, %s, 0 offen sc1' % (NP, NP + 1, DBR))

def nonce_check(a):
    Lok = a.newlabel('nok')
    a.vwait('np')
    a('v_cmp_eq_u32 vcc, 0, v%d' % (NP + 1))
    a('s_cbranch_vccz %s' % Lok)
    a('v_mov_b32 v5, 0')
    poll(a, ['buffer_load_dwordx2 v[%d:%d], v5, %s, 0 offen sc1' % (NP, NP + 1, DBR)], ['v_cmp_eq_u32 vcc, 0, v%d' % (NP + 1)], sleep=2)
    a.label(Lok)
    a('v_readfirstlane_b32 s%d, v%d' % (S_NLO, NP))
    a('v_readfirstlane_b32 s%d, v%d' % (S_NHI, NP + 1))
    a('s_nop 3')

PR = V_W0 + 48
def p1_probe(a):
    lpoll_addr(a, PR + 6)
    a.v('pr', 'buffer_load_dwordx2 v[%d:%d], v%d, %s, s66 offen sc1' % (PR + 2, PR + 3, PR + 6, WSR))

def p1_check(a):
    L2 = a.newlabel('pc')
    a.vwait('pr')
    tagbase(a, 65, S_GPH)
    a('v_mov_b32 v%d, v%d' % (PR + 4, PR + 2))
    for c in tagcmp([PR + 2], 65, 7): a(c)
    a('s_cbranch_vccz %s' % L2)
    poll(a, ['buffer_load_dwordx2 v[%d:%d], v%d, %s, s66 offen sc1' % (PR + 2, PR + 3, PR + 6, WSR)],
         ['v_mov_b32 v%d, v%d' % (PR + 4, PR + 2)] + tagcmp([PR + 2], 65, 7), sleep=1)
    a.label(L2)
    a('v_and_b32 v%d, 15, v%d' % (PR + 4, PR + 4))
    a('v_cmp_ne_u32 vcc, s%d, v%d' % (S_XCC, PR + 4))
    a('s_nop 3')
    a('s_cmp_eq_u64 vcc, 0')
    a('s_cselect_b32 s%d, 1, 0' % S_FAST)
    if E('NOFAST'):
        a('s_mov_b32 s%d, 0' % S_FAST)

def next_tile(a):
    if DBGBUF: a('s_add_u32 s%d, s%d, 0x200000' % (S_TOFF, S_TOFF))
    else: a('s_xor_b32 s%d, s%d, 0x200000' % (S_TOFF, S_TOFF))

def colsum(a, vw, vcs):
    a('v_mov_b32 v%d, 0' % vcs)
    a('s_nop 1')
    for r in range(64):
        a('v_dot2_f32_bf16 v%d, v%d, v%d, v%d' % (vcs, vw + r, V_ONES, vcs))
    a.nop(3)

def rowcol_off(a):
    a('s_lshl_b32 s%d, s%d, 15' % (S_T1, S_I))
    a('s_add_u32 s%d, s%d, s%d' % (S_T0, S_XOFF, S_T1))
    a('s_lshl_b32 s%d, s%d, 7' % (S_T1, S_CS))
    a('s_add_u32 s%d, s%d, s%d' % (S_T0, S_T0, S_T1))
    a('s_lshl_b32 s%d, s%d, 6' % (S_T1, S_J))
    a('s_add_u32 s%d, s%d, s%d' % (S_T0, S_T0, S_T1))
    a('s_lshl_b32 s%d, s%d, 5' % (S_T1, S_KH))
    a('s_add_u32 s%d, s%d, s%d' % (S_T0, S_T0, S_T1))

U_Q, U_K, U_V, U_OA, U_WQ, U_OB = range(6)
UPTR = {U_Q: 42, U_K: 42, U_V: 42, U_OA: 44, U_WQ: 48, U_OB: 54}
ULD = {U_Q: 3072, U_K: 3072, U_V: 3072, U_OA: 1024, U_WQ: 1024, U_OB: 1024}
UCOL = {U_Q: 0, U_K: 1024, U_V: 2048, U_OA: 0, U_WQ: 0, U_OB: 0}
def raw_setup(a, uA, uB, R, sbase, sstep, vdma):
    def sel(d, x, y):
        if x == y: a('s_mov_b32 s%d, %s' % (d, x))
        else:
            a('s_mov_b32 s%d, %s' % (d, x))
            a('s_cmp_eq_u32 s%d, 1' % S_KH)
            a('s_cselect_b32 s%d, %s, s%d' % (d, y, d))
    sel(R, 's%d' % UPTR[uA], 's%d' % UPTR[uB])
    sel(R + 1, 's%d' % (UPTR[uA] + 1), 's%d' % (UPTR[uB] + 1))
    sel(R + 2, '0x%x' % (ULD[uA] * 512), '0x%x' % (ULD[uB] * 512))
    a('s_mov_b32 s%d, 0x00020000' % (R + 3))
    sel(sstep, str(ULD[uA]), str(ULD[uB]))
    sel(sbase, str(UCOL[uA]), str(UCOL[uB]))
    a('v_lshrrev_b32 v%d, 2, v%d' % (vdma, V_LANE))
    a('v_mul_lo_u32 v%d, v%d, s%d' % (vdma, vdma, sstep))
    a('v_and_b32 v7, 3, v%d' % V_LANE)
    a('v_lshl_add_u32 v%d, v7, 4, v%d' % (vdma, vdma))
    a('s_lshl_b32 s%d, s%d, 4' % (sstep, sstep))
    a('s_lshl_b32 s%d, s%d, 4' % (S_T0, S_I))
    a('s_mul_i32 s%d, s%d, s%d' % (S_T0, S_T0, sstep))
    a('s_add_u32 s%d, s%d, s%d' % (sbase, sbase, S_T0))
    a('s_add_u32 s%d, s%d, s%d' % (sbase, sbase, S_WOFF))

def raw_rdaddr(a, v, slds):
    a('v_lshrrev_b32 v%d, 5, v%d' % (v, V_LANE))
    a('v_lshlrev_b32 v%d, 8, v%d' % (v, v))
    a('v_bfe_u32 v7, v%d, 2, 2' % V_LANE)
    a('v_lshl_add_u32 v%d, v7, 6, v%d' % (v, v))
    a('v_bfe_u32 v7, v%d, 4, 1' % V_LANE)
    a('v_lshl_add_u32 v%d, v7, 5, v%d' % (v, v))
    a('v_and_b32 v7, 3, v%d' % V_LANE)
    a('v_lshl_add_u32 v%d, v7, 3, v%d' % (v, v))
    a('v_add_u32 v%d, s%d, v%d' % (v, slds, v))

def raw_dma(R, sbase, sstep, vdma, slds, off):
    return ['s_add_u32 m0, s%d, %d' % (slds, off), 's_nop 0',
            'buffer_load_dwordx4 v%d, s[%d:%d], s%d offen lds' % (vdma, R, R + 3, sbase),
            's_add_u32 s%d, s%d, s%d' % (sbase, sbase, sstep)]

def raw_rd(dst, va, off):
    return ['ds_read_b64_tr_b16 v[%d:%d], v%d offset:%d' % (dst, dst + 1, va, off),
            'ds_read_b64_tr_b16 v[%d:%d], v%d offset:%d' % (dst + 2, dst + 3, va, off + 512)]

RW_D, RW_A = 94, 95
def load_w_issue(a, u, lds0, half):
    if half == 0:
        raw_setup(a, u, u, S_IN2, 68, 69, RW_D)
        a('s_and_b32 s70, s%d, 3' % S_W)
        a('s_lshl_b32 s70, s70, 13')
        a('s_add_u32 s70, s70, %d' % lds0)
        raw_rdaddr(a, RW_A, 70)
    for k in range(8):
        for l in raw_dma(S_IN2, 68, 69, RW_D, 70, k * 1024): a(l)

def load_w_read(a, vbase, half):
    for k in range(8):
        for l in raw_rd(vbase + 4 * (8 * half + k), RW_A, k * 1024): a(l)
    a('s_waitcnt lgkmcnt(0)')

def load_w_sync(a, u, vbase, lds0):
    for half in range(2):
        load_w_issue(a, u, lds0, half)
        a('s_waitcnt vmcnt(0)')
        load_w_read(a, vbase, half)

def load_w_ring(a, u, vbase, nslots):
    raw_setup(a, u, u, S_IN2, 68, 69, RW_D)
    raw_rdaddr(a, RW_A, 70)
    for k in range(nslots):
        for l in raw_dma(S_IN2, 68, 69, RW_D, 70, k * 1024): a(l)
    for k in range(16):
        a('s_waitcnt vmcnt(%d)' % min(nslots - 1, 15 - k))
        for l in raw_rd(vbase + 4 * k, RW_A, (k % nslots) * 1024): a(l)
        if k + nslots < 16:
            a('s_waitcnt lgkmcnt(0)')
            for l in raw_dma(S_IN2, 68, 69, RW_D, 70, (k % nslots) * 1024): a(l)
    a('s_waitcnt lgkmcnt(0)')

LDS_W16 = 135168
def dma_w16(a):
    a('s_cmp_eq_u32 s%d, 1' % S_WHICH)
    a('s_cselect_b32 s%d, s52, s50' % S_IN2)
    a('s_cselect_b32 s%d, s53, s51' % (S_IN2 + 1))
    a('s_mov_b32 s%d, 0x4000' % (S_IN2 + 2))
    a('s_mov_b32 s%d, 0x00020000' % (S_IN2 + 3))
    a('s_and_b32 s%d, s%d, 3' % (S_T0, S_W))
    a('s_lshl_b32 s%d, s%d, 12' % (S_T0, S_T0))
    a('s_add_u32 m0, s%d, %d' % (S_T0, LDS_W16))
    a('s_nop 0')
    for k in range(4):
        a('buffer_load_dwordx4 v%d, s[%d:%d], s%d offen offset:%d lds' % (V_L16, S_IN2, S_IN2 + 3, S_T0, k * 1024))

STL = 88
def dma_tile4(a, stats):
    a('s_lshl_b32 s%d, s%d, 15' % (S_T3, S_I))
    a('s_lshl_b32 s%d, s%d, 14' % (S_T2, S_J))
    a('s_add_u32 s%d, s%d, s%d' % (S_T3, S_T3, S_T2))
    a('s_lshl_b32 s%d, s%d, 11' % (S_T2, S_KH))
    a('s_add_u32 s%d, s%d, s%d' % (S_T3, S_T3, S_T2))
    a('s_add_u32 s%d, s%d, s%d' % (S_T2, S_TOFF, S_XOFF))
    a('s_add_u32 s%d, s%d, s%d' % (S_T2, S_T2, S_T3))
    for c in range(4):
        if c:
            a('s_add_u32 s%d, s%d, 4096' % (S_T2, S_T2))
            a('s_add_u32 s%d, s%d, 4096' % (S_T3, S_T3))
        a('s_mov_b32 m0, s%d' % S_T3)
        a('s_nop 0')
        for t in range(2):
            a('buffer_load_dwordx4 v%d, %s, s%d offen offset:%d sc1 lds' % (V_L16, WSR, S_T2, t * 1024))
        if c == 0 and stats:
            stats_load_issue(a, STL)

def chunk_sync(a, c, stats, extra=0):
    n = [6 + (4 if stats else 0), 4, 2, 0][c] + extra
    a('s_waitcnt vmcnt(%d)' % n)
    if stats and c == 1:
        stats_load_finish(a, LM_STD, STL)
        a('s_waitcnt lgkmcnt(0)')
    a('s_barrier')

def idle4(a, stats, extra=0):
    for c in (1, 2, 3): chunk_sync(a, c, stats, extra)

def kloop4(a, w, stats):
    def rd(t):
        b = XBUF[t % 4]
        a('ds_read_b128 %s, v%d offset:%d' % (vr(b), V_XA, t * 1024))
        a('ds_read_b128 %s, v%d offset:%d' % (vr(b + 4), V_XB, t * 1024))
    for t in range(3): rd(t)
    for t in range(16):
        b = XBUF[t % 4]
        if t in (1, 5, 9):
            chunk_sync(a, (t + 3) // 4, stats)
        if t == 10 and stats:
            mean_issue(a, LM_STD)
        if t + 3 < 16:
            rd(t + 3)
        a('s_waitcnt lgkmcnt(%d)' % (2 * min(3, 15 - t)))
        for q, acc in enumerate((ACC0, ACC1)):
            c = '0' if t == 0 else vr(acc, 16)
            a('v_mfma_f32_32x32x16_bf16 %s, %s, %s, %s' % (vr(acc, 16), vr(w + 4 * t), vr(b + 4 * q), c))
    if stats:
        mean_finish(a)

class ifelse:
    def __init__(s, a): s.a = a; s.L1 = a.newlabel('ie'); s.L2 = a.newlabel('ie')
    def if_set(s, k):
        s.a('s_cmp_lg_u32 s%d, %d' % (S_KH, k)); s.a('s_cbranch_scc1 %s' % s.L1)
    def else_(s):
        s.a('s_branch %s' % s.L2); s.a.label(s.L1)
    def end(s): s.a.label(s.L2)

def kloop(a, w, t0, t1):
    def rd(t):
        b = XBUF[t % 4]
        a('ds_read_b128 %s, v%d offset:%d' % (vr(b), V_XA, t * 1024))
        a('ds_read_b128 %s, v%d offset:%d' % (vr(b + 4), V_XB, t * 1024))
    for t in range(t0, min(t0 + 3, t1)):
        rd(t)
    for t in range(t0, t1):
        b = XBUF[t % 4]
        if t + 3 < t1:
            rd(t + 3)
        a('s_waitcnt lgkmcnt(%d)' % (2 * min(3, t1 - 1 - t)))
        for q, acc in enumerate((ACC0, ACC1)):
            c = '0' if t == 0 else vr(acc, 16)
            a('v_mfma_f32_32x32x16_bf16 %s, %s, %s, %s' % (vr(acc, 16), vr(w + 4 * t), vr(b + 4 * q), c))

def halves_sum(a, v, tmp, op='v_add_f32'):
    a('v_mov_b32 v%d, v%d' % (tmp, v))
    a('s_nop 1')
    a('v_permlane32_swap_b32 v%d, v%d' % (v, tmp))
    a('s_nop 1')
    a('%s v%d, v%d, v%d' % (op, v, v, tmp))

def bf16r(a, v):
    a('v_cvt_pk_bf16_f32 v%d, v%d, v%d' % (v, v, v))
    a('v_and_b32 v%d, 0xffff0000, v%d' % (v, v))

def pk_add(a, d, x, y):
    a('v_pk_add_f32 v[%d:%d], v[%d:%d], v[%d:%d]' % (d, d + 1, x, x + 1, y, y + 1))

def stats_math(a, vm, vrstd):
    a('v_mul_f32 v%d, 0x%x, v%d' % (vm, f2u(1.0 / 512), vm))
    a('v_mul_f32 v%d, 0x%x, v%d' % (vrstd, f2u(1.0 / 512), vrstd))
    a('v_fma_f32 v%d, -v%d, v%d, v%d' % (vrstd, vm, vm, vrstd))
    a('v_max_f32 v%d, 0, v%d' % (vrstd, vrstd))
    bf16r(a, vrstd)
    a('v_add_f32 v%d, 0x%x, v%d' % (vrstd, f2u(1e-5), vrstd))
    bf16r(a, vrstd)
    a('v_sqrt_f32 v%d, v%d' % (vrstd, vrstd))
    a('s_nop 0')
    bf16r(a, vrstd)
    a('v_rcp_f32 v%d, v%d' % (vrstd, vrstd))
    bf16r(a, vm)

def stats_read(a, lm, vrow, T, vm=VM):
    a('v_lshlrev_b32 v%d, 3, v%d' % (vrow, vrow))
    a('v_add_u32 v%d, %d, v%d' % (vrow, lm.stat, vrow))
    for q in range(4):
        a('ds_read2st64_b64 %s, v%d offset0:%d offset1:%d' % (vr(T + 4 * q), vrow, 2 * q, 2 * q + 1))
    a('s_waitcnt lgkmcnt(0)')
    for q in range(4):
        pk_add(a, T + 4 * q, T + 4 * q, T + 4 * q + 2)
    pk_add(a, T, T, T + 4)
    pk_add(a, T + 8, T + 8, T + 12)
    pk_add(a, vm, T, T + 8)
    stats_math(a, vm, vm + 1)

def ln_stats(a, lm, T=V_TMP):
    a('v_and_b32 v5, 31, v%d' % V_LANE)
    a('s_lshl_b32 s%d, s%d, 5' % (S_T0, S_I))
    a('v_add_u32 v5, s%d, v5' % S_T0)
    stats_read(a, lm, 5, T)

def make_mfrag(a, vm, d):
    a('v_cvt_pk_bf16_f32 v%d, -v%d, -v%d' % (d, vm, vm))
    a('v_cvt_pk_bf16_f32 v%d, -v%d, -v%d' % (d + 1, vm, vm))
    a('v_mov_b32 v%d, 0' % (d + 2))
    a('v_mov_b32 v%d, 0' % (d + 3))

def mean_issue(a, lm):
    T = V_ACC + 40
    a('v_and_b32 v5, 31, v%d' % V_LANE)
    a('v_lshlrev_b32 v5, 3, v5')
    a('s_lshl_b32 s%d, s%d, 8' % (S_T0, S_I))
    a('s_add_u32 s%d, s%d, %d' % (S_T0, S_T0, lm.stat))
    a('v_add_u32 v5, s%d, v5' % S_T0)
    a('v_xor_b32 v6, 256, v5')
    for q in range(2):
        for k in range(4):
            a('ds_read2st64_b32 v[%d:%d], v%d offset0:%d offset1:%d' % (T + 8 * q + 2 * k, T + 8 * q + 2 * k + 1, 5 + q, 4 * k, 4 * k + 2))

def mean_finish(a):
    T = V_ACC + 40
    for q in range(2):
        t = T + 8 * q
        pk_add(a, t, t, t + 2)
        pk_add(a, t + 4, t + 4, t + 6)
        pk_add(a, t, t, t + 4)
        a('v_add_f32 v%d, v%d, v%d' % (t, t, t + 1))
        a('v_mul_f32 v%d, 0x%x, v%d' % (t, f2u(1.0 / 512), t))
        make_mfrag(a, t, V_MF + 4 * q)
    a('s_nop 1')

def mean_frags(a, lm):
    mean_issue(a, lm)
    a('s_waitcnt lgkmcnt(0)')
    mean_finish(a)

def stats_load_issue(a, T=V_TMP, tag=None):
    a('v_lshlrev_b32 v5, 3, v%d' % V_LANE)
    a('s_lshr_b32 s%d, s%d, 2' % (S_T0, S_XOFF))
    a('s_lshl_b32 s%d, s%d, 11' % (S_T1, S_W))
    a('s_add_u32 s%d, s%d, s%d' % (S_T0, S_T0, S_T1))
    a('s_add_u32 s%d, s%d, s%d' % (S_T0, S_T0, S_SOFF))
    for q in range(4):
        a.v(tag, 'buffer_load_dwordx2 v[%d:%d], v5, %s, s%d offen offset:%d sc1' % (T + 2 * q, T + 2 * q + 1, WSR, S_T0, q * 512))

def stats_load_finish(a, lm, T=V_TMP):
    pk_add(a, T, T, T + 2)
    pk_add(a, T + 4, T + 4, T + 6)
    pk_add(a, T, T, T + 4)
    a('s_lshl_b32 s%d, s%d, 9' % (S_T0, S_W))
    a('s_add_u32 s%d, s%d, %d' % (S_T0, S_T0, lm.stat))
    a('v_lshlrev_b32 v5, 3, v%d' % V_LANE)
    a('v_add_u32 v5, s%d, v5' % S_T0)
    a('ds_write_b64 v5, v[%d:%d]' % (T, T + 1))
    a('s_xor_b32 s%d, s%d, 0x%x' % (S_SOFF, S_SOFF, STP ^ (STP + 0x80000)))

def make_csfrag(a, vc, d, t):
    a('v_cvt_pk_bf16_f32 v%d, v%d, v%d' % (t, vc, vc))
    a('v_and_b32 v%d, 0xffff0000, v%d' % (t, t))
    a('v_sub_f32 v%d, v%d, v%d' % (t + 1, vc, t))
    a('v_cvt_pk_bf16_f32 v%d, v%d, v%d' % (d, t, t + 1))
    a('v_and_b32 v%d, 0xffff0000, v%d' % (t, d))
    a('v_sub_f32 v%d, v%d, v%d' % (t + 1, t + 1, t))
    a('v_cvt_pk_bf16_f32 v%d, v%d, 0' % (d + 1, t + 1))

def y_correct(a, cf):
    for q, acc in enumerate((ACC0, ACC1)):
        a('v_mfma_f32_32x32x16_bf16 %s, %s, %s, %s' % (vr(acc, 16), vr(cf), vr(V_MF + 4 * q), vr(acc, 16)))

def y_red_write(a, base, own):
    a('s_lshl_b32 s%d, s%d, 13' % (S_T0, S_J))
    a('s_mul_i32 s%d, s%d, 6144' % (S_T1, S_I))
    a('s_add_u32 s%d, s%d, s%d' % (S_T0, S_T0, S_T1))
    a('s_add_u32 s%d, s%d, %d' % (S_T0, S_T0, base))
    a('v_add_u32 v5, s%d, v%d' % (S_T0, V_L16))
    a('v_xor_b32 v6, 4096, v5')
    a.nop(7)
    for q, acc in enumerate((ACC0, ACC1)):
        for nh in range(2):
            if q == 0 and nh == own: continue
            a('ds_write_b128 v%d, %s offset:%d' % (5 + q, vr(acc + 8 * nh), nh * 16384))
            a('ds_write_b128 v%d, %s offset:%d' % (5 + q, vr(acc + 8 * nh + 4), nh * 16384 + 1024))

def y_red_read(a, base, own):
    d = V_ACC
    a('s_lshl_b32 s%d, s%d, 12' % (S_T0, S_W))
    a('s_add_u32 s%d, s%d, %d' % (S_T0, S_T0, base))
    a('v_add_u32 v5, s%d, v%d' % (S_T0, V_L16))
    L1 = a.newlabel('rr'); L2 = a.newlabel('rr')
    a('s_cmp_eq_u32 s%d, %d' % (S_KH, own))
    a('s_cbranch_scc1 %s' % L1)
    for k in range(4):
        a('ds_read_b128 %s, v5 offset:%d' % (vr(d + 4 * k), k * 1024))
    a('s_waitcnt lgkmcnt(0)')
    for r in range(0, 8, 2):
        pk_add(a, d + r, d + r, d + 8 + r)
    a('s_branch %s' % L2)
    a.label(L1)
    a('s_xor_b32 s%d, s%d, 1' % (S_T0, S_I))
    a('s_lshl_b32 s%d, s%d, 11' % (S_T0, S_T0))
    a('v_add_u32 v5, s%d, v5' % S_T0)
    a('ds_read_b128 %s, v5' % vr(ACC1))
    a('ds_read_b128 %s, v5 offset:1024' % vr(ACC1 + 4))
    a('s_waitcnt lgkmcnt(0)')
    for r in range(0, 8, 2):
        pk_add(a, d + r, ACC0 + 8 * own + r, ACC1 + r)
    a.label(L2)

def kv_red_write(a, base):
    a('s_xor_b32 s%d, s%d, 1' % (S_T0, S_W))
    a('s_lshl_b32 s%d, s%d, 12' % (S_T0, S_T0))
    a('s_add_u32 s%d, s%d, %d' % (S_T0, S_T0, base))
    a('v_add_u32 v5, s%d, v%d' % (S_T0, V_L16))
    a.nop(9)
    for k in range(4):
        a('ds_write_b128 v5, %s offset:%d' % (vr(ACC1 + 4 * k), k * 1024))

def barrier(a):
    a('s_waitcnt lgkmcnt(0)')
    a('s_barrier')

def phi_pack(a, acc, dst, tl=9, tmp=None, n=8):
    if tmp is None: tmp = acc + 8
    a('v_mul_f32 v%d, 0x%x, v%d' % (tl, f2u(LOG2E), VR))
    for r in range(n):
        a('v_mul_f32 v%d, v%d, v%d' % (tmp + r, acc + r, tl))
    for r in range(n):
        a('v_exp_f32_e64 v%d, v%d clamp' % (tmp + r, tmp + r))
    for r in range(n):
        a('v_fmaak_f32 v%d, v%d, v%d, 0x%x' % (acc + r, acc + r, VR, f2u(1e-6)))
        a('v_max_f32 v%d, 0x%x, v%d' % (acc + r, f2u(1e-6), acc + r))
    for r in range(0, n, 2):
        pk_add(a, acc + r, acc + r, tmp + r)
    for r in range(n // 2):
        a('v_cvt_pk_bf16_f32 v%d, v%d, v%d' % (dst + r, acc + 2 * r, acc + 2 * r + 1))

def scale_pack(a, acc, vs, dst, n=8):
    for r in range(n):
        a('v_mul_f32 v%d, v%d, v%d' % (acc + r, acc + r, vs))
    for r in range(n // 2):
        a('v_cvt_pk_bf16_f32 v%d, v%d, v%d' % (dst + r, acc + 2 * r, acc + 2 * r + 1))

def store_blk(a, v):
    a('s_add_u32 s%d, s%d, s%d' % (S_T0, S_BLK, S_TOFF))
    fast_store(a, ['buffer_store_dwordx4 %s, v%d, %s, s%d offen@' % (vr(v), V_L16, WSR, S_T0)])

def store_stats(a, tag=None):
    a('v_mov_b32 v6, 0')
    a('v_mov_b32 v7, 0')
    a('s_nop 0')
    for r in range(4):
        a('v_dot2_f32_bf16 v6, v%d, v%d, v6' % (V_RES + r, V_ONES))
        a('v_dot2_f32_bf16 v7, v%d, v%d, v7' % (V_RES + r, V_RES + r))
    a('s_bfe_u32 s%d, s%d, 0x5000a' % (S_T0, S_BLK))
    a('s_lshl_b32 s%d, s%d, 9' % (S_T0, S_T0))
    a('s_lshr_b32 s%d, s%d, 2' % (S_T1, S_XOFF))
    a('s_add_u32 s%d, s%d, s%d' % (S_T0, S_T0, S_T1))
    a('s_lshl_b32 s%d, s%d, 8' % (S_T1, S_I))
    a('s_add_u32 s%d, s%d, s%d' % (S_T0, S_T0, S_T1))
    a('s_add_u32 s%d, s%d, s%d' % (S_T0, S_T0, S_SOFF))
    a('v_mov_b32 v8, v6')
    a('v_mov_b32 v9, v7')
    a('v_lshlrev_b32 v5, 3, v%d' % V_LANE)
    a('s_nop 0')
    a('v_permlane32_swap_b32 v6, v8')
    a('v_permlane32_swap_b32 v7, v9')
    a('s_nop 1')
    a('v_pk_add_f32 v[6:7], v[6:7], v[8:9]')
    a('s_mov_b32 exec_hi, 0')
    fast_store(a, ['buffer_store_dwordx2 v[6:7], v5, %s, s%d offen@' % (WSR, S_T0)])
    a('s_mov_b32 exec_hi, -1')
    if tag: a.vm.append(tag)

def store_x(a):
    store_blk(a, V_RES)
    store_stats(a)

def a1_kv_owner(a, lm):
    a('s_lshl_b32 s%d, s%d, 12' % (S_T0, S_W))
    a('s_add_u32 s%d, s%d, %d' % (S_T0, S_T0, lm.red))
    a('v_add_u32 v5, s%d, v%d' % (S_T0, V_L16))
    for k in range(4):
        a('ds_read_b128 %s, v5 offset:%d' % (vr(ACC1 + 4 * k), k * 1024))
    a('s_lshl_b32 s%d, s%d, 12' % (S_T0, S_J))
    a('s_lshl_b32 s%d, s%d, 13' % (S_T1, S_KH))
    a('s_add_u32 s%d, s%d, s%d' % (S_T0, S_T0, S_T1))
    a('s_lshl_b32 s%d, s%d, 10' % (S_T1, S_I))
    a('s_add_u32 s%d, s%d, s%d' % (S_T0, S_T0, S_T1))
    a('s_add_u32 s%d, s%d, %d' % (S_T0, S_T0, lm.pkv))
    a('v_and_b32 v7, 31, v%d' % V_LANE)
    a('v_lshlrev_b32 v7, 5, v7')
    a('v_lshrrev_b32 v6, 5, v%d' % V_LANE)
    a('v_lshl_add_u32 v7, v6, 4, v7')
    a('v_add_u32 v7, s%d, v7' % S_T0)
    a('s_waitcnt lgkmcnt(0)')
    for r in range(0, 16, 2):
        pk_add(a, ACC0 + r, ACC0 + r, ACC1 + r)
    with role(a, 'A'):
        phi_pack(a, ACC0, V_XF, tmp=ACC1, n=16)
    with role(a, 'B'):
        scale_pack(a, ACC0, VR, V_XF, n=16)
    a('ds_write_b128 v7, %s' % vr(V_XF))
    a('ds_write_b128 v7, %s offset:2048' % vr(V_XF + 4))
    barrier(a)

def head_addrs(a):
    a('s_lshl_b32 s%d, s%d, 2' % (S_T2, S_CS))
    a('s_add_u32 s%d, s%d, s%d' % (S_T2, S_T2, S_W))
    a('s_lshl_b32 s%d, s%d, 14' % (S_T3, S_T2))
    a('s_add_u32 s%d, s%d, s%d' % (S_T3, S_T3, S_LOFF))
    a('s_add_u32 s%d, s%d, 0x%x' % (S_T3, S_T3, KVP_))
    a('s_lshl_b32 s%d, s%d, 11' % (S_T4, S_T2))
    a('s_add_u32 s%d, s%d, s%d' % (S_T4, S_T4, S_LOFF))
    a('s_add_u32 s%d, s%d, 0x%x' % (S_T4, S_T4, ZP_))
    a('s_lshl_b32 s%d, s%d, 12' % (S_T5, S_T2))
    a('s_add_u32 s%d, s%d, 0x%x' % (S_T5, S_T5, HFLAG))

def hello(a):
    head_addrs(a)
    a('s_mov_b32 s64, 1')
    tagval(a, 8, 64)
    a('s_lshl_b32 s%d, s%d, 7' % (S_T0, S_RB))
    a('s_add_u32 s%d, s%d, s%d' % (S_T0, S_T0, S_T5))
    a('v_mov_b32 v5, 0')
    a('s_mov_b64 exec, 1')
    a('buffer_store_dwordx2 v[8:9], v5, %s, s%d offen sc1' % (WSR, S_T0))
    a('s_mov_b64 exec, -1')

def kv_publish(a, lm, first):
    PA, PB, D, D2, ON = V_XF, V_XF + 8, V_ACC, V_ACC + 4, V_ACC + 8
    a('v_lshrrev_b32 v5, 4, v%d' % V_LANE)
    a('v_lshlrev_b32 v5, 8, v5')
    a('v_bfe_u32 v6, v%d, 2, 2' % V_LANE)
    a('v_lshl_add_u32 v5, v6, 5, v5')
    a('v_and_b32 v6, 1, v%d' % V_LANE)
    a('v_lshl_add_u32 v5, v6, 4, v5')
    a('v_bfe_u32 v6, v%d, 1, 1' % V_LANE)
    a('v_lshl_add_u32 v5, v6, 3, v5')
    a('s_lshl_b32 s%d, s%d, 11' % (S_T0, S_W))
    a('s_add_u32 s%d, s%d, %d' % (S_T0, S_T0, lm.pkv))
    a('v_add_u32 v5, s%d, v5' % S_T0)
    for sl in range(2):
        for u in range(2):
            a('ds_read_b64_tr_b16 v[%d:%d], v5 offset:%d' % (PA + 4 * sl + 2 * u, PA + 4 * sl + 2 * u + 1, sl * 1024 + u * 128))
            a('ds_read_b64_tr_b16 v[%d:%d], v5 offset:%d' % (PB + 4 * sl + 2 * u, PB + 4 * sl + 2 * u + 1, 8192 + sl * 1024 + u * 128))
    for r in range(4):
        a('v_mov_b32 v%d, v%d' % (ON + r, V_ONES))
    head_addrs(a)
    a('s_waitcnt lgkmcnt(0)')
    a('v_mfma_f32_16x16x32_bf16 %s, %s, %s, 0' % (vr(D), vr(PA), vr(PB)))
    a('v_mfma_f32_16x16x32_bf16 %s, %s, %s, 0' % (vr(D2), vr(PA), vr(ON)))
    a('v_mfma_f32_16x16x32_bf16 %s, %s, %s, %s' % (vr(D), vr(PA + 4), vr(PB + 4), vr(D)))
    a('v_mfma_f32_16x16x32_bf16 %s, %s, %s, %s' % (vr(D2), vr(PA + 4), vr(ON), vr(D2)))
    a('s_lshl_b32 s%d, s%d, 9' % (S_T0, S_RB))
    a('s_add_u32 s%d, s%d, s%d' % (S_T0, S_T0, S_T3))
    a('s_lshl_b32 s%d, s%d, 6' % (S_T1, S_RB))
    a('s_add_u32 s%d, s%d, s%d' % (S_T1, S_T1, S_T4))
    a('v_and_b32 v6, 48, v%d' % V_LANE)
    a('v_lshlrev_b32 v5, 3, v%d' % V_LANE)
    a('s_nop 2')
    a('v_cvt_pk_bf16_f32 v%d, v%d, v%d' % (D, D, D + 1))
    a('v_cvt_pk_bf16_f32 v%d, v%d, v%d' % (D + 1, D + 2, D + 3))
    for r in (0, 1, 4, 5, 6, 7):
        a('v_min_u32 v%d, -2, v%d' % (D + r, D + r))
    a('buffer_store_dwordx2 v[%d:%d], v5, %s, s%d offen sc1' % (D, D + 1, WSR, S_T0))
    a('s_mov_b32 exec_lo, 0x00010001')
    a('s_mov_b32 exec_hi, 0x00010001')
    a('buffer_store_dwordx4 %s, v6, %s, s%d offen sc1' % (vr(D2), WSR, S_T1))
    a('s_mov_b64 exec, -1')
    ts2(a)
    load_w_issue(a, U_OA, lm.wst, 0)
    if first:
        a('s_mov_b32 s64, 1')
        tagbase(a, 65, 64)
        a('v_and_b32 v5, 31, v%d' % V_LANE)
        a('v_lshlrev_b32 v5, 7, v5')
        poll(a, ['buffer_load_dwordx2 v[8:9], v5, %s, s%d offen sc1' % (WSR, S_T5)], tagcmp([8], 65, 7))
    else:
        a('s_waitcnt vmcnt(0)')
    load_w_read(a, V_W0, 0)
    load_w_issue(a, U_OA, lm.wst, 1)

def kv_gather(a, lm, first):
    head_addrs(a)
    ZR = V_TMP
    a('v_and_b32 v6, 48, v%d' % V_LANE)
    a('v_and_b32 v5, 15, v%d' % V_LANE)
    a('v_lshl_add_u32 v5, v5, 6, v6')
    poll(a, ['buffer_load_dwordx4 %s, v5, %s, s%d offen sc1' % (vr(ZR), WSR, S_T4),
             'buffer_load_dwordx4 %s, v5, %s, s%d offen offset:1024 sc1' % (vr(ZR + 4), WSR, S_T4)],
         ['v_max3_u32 v7, v%d, v%d, v%d' % (ZR, ZR + 1, ZR + 2), 'v_max3_u32 v8, v%d, v%d, v%d' % (ZR + 3, ZR + 4, ZR + 5),
          'v_max3_u32 v7, v7, v%d, v%d' % (ZR + 6, ZR + 7), 'v_max_u32 v7, v7, v8', 'v_cmp_eq_u32 vcc, -1, v7'])
    ts2(a)
    G = [V_W1 + 4 * k for k in range(16)]
    AC = V_ACC
    SEL = V_ACC + 8
    Lg = a.newlabel('gat')
    a('s_mov_b32 s%d, 0' % S_SPIN)
    a.label(Lg)
    a('s_add_u32 s%d, s%d, 1' % (S_SPIN, S_SPIN))
    a('s_cmp_gt_u32 s%d, %d' % (S_SPIN, SPIN_MAX))
    a('s_cbranch_scc1 L_end')
    a('s_mov_b32 s%d, s%d' % (S_T0, S_T3))
    for k in range(16):
        if k and k % 4 == 0:
            a('s_add_u32 s%d, s%d, 4096' % (S_T0, S_T0))
        a('buffer_load_dwordx4 %s, v%d, %s, s%d offen offset:%d sc1' % (vr(G[k]), V_L16, WSR, S_T0, (k % 4) * 1024))
    load_w_read(a, V_W0, 1)
    Z2 = V_TMP + 8
    pk_add(a, Z2, ZR, ZR + 4)
    pk_add(a, Z2 + 2, ZR + 2, ZR + 6)
    for sh in (8, 4, 2, 1):
        a('s_nop 1')
        for r in range(4):
            a('v_add_f32_dpp v%d, v%d, v%d row_ror:%d row_mask:0xf bank_mask:0xf' % (Z2 + r, Z2 + r, Z2 + r, sh))
    a('v_cvt_pk_bf16_f32 v%d, v%d, v%d' % (Z2, Z2, Z2 + 1))
    a('v_cvt_pk_bf16_f32 v%d, v%d, v%d' % (Z2 + 1, Z2 + 2, Z2 + 3))
    a('s_mov_b32 s%d, 0x00110011' % S_T0)
    a('s_mov_b32 s%d, 0x00110011' % S_T1)
    a('v_cndmask_b32_e64 v%d, 0, v%d, s[%d:%d]' % (Z2, Z2, S_T0, S_T1))
    a('v_cndmask_b32_e64 v%d, 0, v%d, s[%d:%d]' % (Z2 + 1, Z2 + 1, S_T0, S_T1))
    a('v_and_b32 v5, 15, v%d' % V_LANE)
    a('v_lshlrev_b32 v5, 4, v5')
    a('v_bfe_u32 v6, v%d, 4, 1' % V_LANE)
    a('v_lshl_add_u32 v5, v6, 9, v5')
    a('v_lshrrev_b32 v6, 5, v%d' % V_LANE)
    a('v_lshl_add_u32 v5, v6, 3, v5')
    a('s_lshl_b32 s%d, s%d, 11' % (S_T0, S_W))
    a('s_add_u32 s%d, s%d, %d' % (S_T0, S_T0, lm.pkv))
    a('v_add_u32 v5, s%d, v5' % S_T0)
    a('ds_write_b64 v5, v[%d:%d] offset:256' % (Z2, Z2 + 1))
    a('v_and_b32 v5, 7, v%d' % V_LANE)
    a('v_lshlrev_b32 v5, 5, v5')
    a('v_bfe_u32 v6, v%d, 3, 1' % V_LANE)
    a('v_lshl_add_u32 v5, v6, 9, v5')
    a('v_bfe_u32 v6, v%d, 4, 1' % V_LANE)
    a('v_lshl_add_u32 v5, v6, 3, v5')
    a('v_add_u32 v5, s%d, v5' % S_T0)
    a('v_mov_b32 v7, 0')
    a('v_mov_b32 v%d, 0x00003f80' % SEL)
    a('v_mov_b32 v%d, 0x3f800000' % (SEL + 1))
    for r in range(8): a('v_mov_b32 v%d, 0' % (AC + r))
    for k in range(16):
        a('s_waitcnt vmcnt(%d)' % (15 - k))
        g = G[k]
        a('v_max3_u32 v7, v7, v%d, v%d' % (g, g + 1))
        a('v_max3_u32 v7, v7, v%d, v%d' % (g + 2, g + 3))
        for r in range(4):
            a('v_dot2_f32_bf16 v%d, v%d, v%d, v%d' % (AC + 2 * r, g + r, SEL, AC + 2 * r))
            a('v_dot2_f32_bf16 v%d, v%d, v%d, v%d' % (AC + 2 * r + 1, g + r, SEL + 1, AC + 2 * r + 1))
    a('v_cmp_eq_u32 vcc, -1, v7')
    a('s_cbranch_vccnz %s' % Lg)
    a('s_nop 1')
    for r in range(8): a('v_mov_b32 v%d, v%d' % (AC + 16 + r, AC + r))
    a('s_nop 1')
    for r in range(8): a('v_permlane32_swap_b32 v%d, v%d' % (AC + r, AC + 16 + r))
    a('s_nop 1')
    for r in range(0, 8, 2): pk_add(a, AC + r, AC + r, AC + 16 + r)
    for r in range(4):
        a('v_cvt_pk_bf16_f32 v%d, v%d, v%d' % (AC + r, AC + 2 * r, AC + 2 * r + 1))
    a('ds_write_b64 v5, v[%d:%d]' % (AC, AC + 1))
    a('ds_write_b64 v5, v[%d:%d] offset:16' % (AC + 2, AC + 3))

def a1_pq(a, lm):
    y_red_read(a, lm.redq, 1)
    phi_pack(a, V_ACC, V_PQ)

def a1_finish(a, lm):
    a('s_lshl_b32 s%d, s%d, 1' % (S_T0, S_J))
    a('s_add_u32 s%d, s%d, s%d' % (S_T0, S_T0, S_KH))
    a('s_lshl_b32 s%d, s%d, 11' % (S_T0, S_T0))
    a('s_add_u32 s%d, s%d, %d' % (S_T0, S_T0, lm.pkv))
    a('v_add_u32 v6, s%d, v%d' % (S_T0, V_L16))
    a('ds_read_b128 %s, v6' % vr(V_XF + 4))
    a('s_waitcnt lgkmcnt(0)')
    N = V_ACC + 16
    a('v_mfma_f32_32x32x16_bf16 %s, %s, %s, 0' % (vr(N, 16), vr(V_XF + 4), vr(V_PQ)))
    a.nop(12)
    a('v_add_f32 v8, 0x%x, v%d' % (f2u(1e-6), N + 8))
    a('v_rcp_f32 v8, v8')
    a('s_nop 0')
    scale_pack(a, N, 8, V_XF + 8)
    store_blk(a, V_XF + 8)
    csignal(a)

def a1_tail(a, lm, first, qpass, ringbase):
    with role(a, 'B'):
        qpass()
        y_red_write(a, lm.redq, 1)
    with role(a, 'A'):
        kv_publish(a, lm, first)
    barrier(a)
    a1_pq(a, lm)
    with role(a, 'B'):
        ringbase()
        if first:
            colsum(a, V_W1, 9)
            make_csfrag(a, 9, V_CF2, 6)
    with role(a, 'A'):
        kv_gather(a, lm, first)
    barrier(a)
    ts2(a)
    a1_finish(a, lm)

def a1_std(a):
    lm = LM_STD
    kloop4(a, V_W1, True)
    y_correct(a, V_CF1)
    kv_red_write(a, lm.red)
    ln_stats(a, lm)
    barrier(a)
    ts2(a)
    a1_kv_owner(a, lm)
    ts2(a)
    def qpass():
        kloop(a, V_W0, 0, 16)
        y_correct(a, V_CF0)
    def ring():
        a('s_and_b32 s70, s%d, 3' % S_W)
        a('s_lshl_b32 s70, s70, 14')
        load_w_ring(a, U_WQ, V_W1, 16)
    a1_tail(a, lm, False, qpass, ring)

def p1(a):
    a.vreset()
    a('s_lshl_b32 s84, s%d, 3' % S_RB)
    a('s_add_u32 s84, s84, s%d' % S_W)
    srd(a, S_IN2, 40, 0x200000)
    srd(a, S_IN, 42, 0x180000)
    nonce_publish(a)
    VXD = [V_TMP + 16, V_TMP + 17]; VWD = V_TMP + 18
    a('v_lshrrev_b32 v5, 3, v%d' % V_LANE)
    a('v_and_b32 v6, 7, v%d' % V_LANE)
    a('v_lshrrev_b32 v7, 4, v%d' % V_LANE)
    a('v_xor_b32 v8, v6, v7')
    a('v_lshlrev_b32 v8, 4, v8')
    a('v_lshl_add_u32 v%d, v5, 10, v8' % VXD[0])
    a('v_xor_b32 v%d, 64, v%d' % (VXD[1], VXD[0]))
    a('v_lshrrev_b32 v5, 2, v%d' % V_LANE)
    a('v_mul_u32_u24 v5, 3072, v5')
    a('v_and_b32 v6, 3, v%d' % V_LANE)
    a('v_lshl_add_u32 v%d, v6, 4, v5' % VWD)
    SXG, SXL, SWG, SLO, SHI = 85, 87, 88, 89, 90
    a('s_lshl_b32 s%d, s%d, 15' % (S_T0, S_KH))
    a('s_lshl_b32 s%d, s%d, 14' % (S_T1, S_I))
    a('s_add_u32 s%d, s%d, s%d' % (SXG, S_XOFF, S_T0))
    a('s_add_u32 s%d, s%d, s%d' % (SXG, SXG, S_T1))
    a('s_lshl_b32 s%d, s%d, 9' % (S_T1, S_J))
    a('s_add_u32 s%d, s%d, s%d' % (SXG, SXG, S_T1))
    a('s_lshl_b32 s%d, s%d, 14' % (S_T1, S_J))
    a('s_add_u32 s%d, s%d, s%d' % (SXL, S_T0, S_T1))
    a('s_lshl_b32 s%d, s%d, 11' % (S_T1, S_I))
    a('s_add_u32 s%d, s%d, s%d' % (SXL, SXL, S_T1))
    a('s_mul_i32 s%d, s%d, %d' % (SWG, S_I, 256 * 3072))
    a('s_lshl_b32 s%d, s%d, 7' % (S_T0, S_CS))
    a('s_add_u32 s%d, s%d, s%d' % (SWG, SWG, S_T0))
    a('s_lshl_b32 s%d, s%d, 6' % (S_T0, S_J))
    a('s_add_u32 s%d, s%d, s%d' % (SWG, SWG, S_T0))
    a('s_lshl_b32 s94, s%d, 10' % S_KH)
    a('s_add_u32 s94, s94, s%d' % SWG)
    a('s_add_u32 s94, s94, 1024')
    a('s_and_b32 s%d, s%d, 3' % (S_T2, S_W))
    a('s_mul_i32 s%d, s%d, 12288' % (SLO, S_T2))
    a('s_add_u32 s%d, s%d, 65536' % (SLO, SLO))
    a('s_add_u32 s%d, s%d, 4096' % (SHI, SLO))
    a('s_lshl_b32 s%d, s%d, 12' % (S_T0, S_T2))
    a('s_add_u32 s%d, s%d, 114688' % (S_T0, S_T0))
    a('s_lshl_b32 s%d, s%d, 13' % (S_T1, S_T2))
    a('s_add_u32 s%d, s%d, 131072' % (S_T1, S_T1))
    a('s_cmp_eq_u32 s%d, 1' % S_KH)
    a('s_cselect_b32 s%d, s%d, s%d' % (SLO, S_T0, SLO))
    a('s_cselect_b32 s%d, s%d, s%d' % (SHI, S_T1, SHI))
    SROT = 3
    a('s_add_u32 s%d, s%d, s%d' % (SROT, S_RB, S_GRP))
    a('s_and_b32 s%d, s%d, 3' % (SROT, SROT))
    def rotg(g):
        a('s_add_u32 s%d, s%d, %d' % (S_T1, SROT, g))
        a('s_and_b32 s%d, s%d, 3' % (S_T1, S_T1))
    def dma_x(g):
        rotg(g)
        a('s_lshl_b32 s%d, s%d, 7' % (S_T1, S_T1))
        a('s_add_u32 s%d, s%d, s%d' % (S_T1, S_T1, SXG))
        for p in range(2):
            a('s_add_u32 s%d, s%d, %d' % (S_T0, S_T1, p * 8192))
            a('s_add_u32 m0, s%d, %d' % (SXL, g * 4096 + p * 1024))
            a('s_nop 0')
            a.v('x%d' % g, 'buffer_load_dwordx4 v%d, s[12:15], s%d offen lds' % (VXD[p], S_T0))
    def slot(sl): return (SLO, sl * 1024) if sl < 4 else (SHI, (sl - 4) * 1024)
    def dma_w(kt, q=False):
        sb, off = (SLO, (kt % 4) * 1024) if q else slot(kt % 12)
        rotg(kt // 4)
        a('s_mul_i32 s%d, s%d, %d' % (S_T1, S_T1, 64 * 3072))
        a('s_add_u32 s%d, s%d, s%d' % (S_T1, S_T1, SWG if q else 94))
        a('s_add_u32 s%d, s%d, %d' % (S_T0, S_T1, (kt % 4) * 16 * 3072))
        a('s_add_u32 m0, s%d, %d' % (sb, off))
        a('s_nop 0')
        a.v(('q%d' if q else 'w%d') % kt, 'buffer_load_dwordx4 v%d, s[8:11], s%d offen lds' % (VWD, S_T0))
    dma_x(0)
    for kt in range(4): dma_w(kt)
    a('s_getpc_b64 s[64:65]')
    a.label('L_pcref')
    a('s_lshr_b32 s%d, s2, 3' % S_T0)
    a('s_lshl_b32 s%d, s%d, 3' % (S_T0, S_T0))
    a('s_add_u32 s%d, s%d, s%d' % (S_T0, S_T0, S_W))
    a('s_lshl_b32 s%d, s%d, 8' % (S_T0, S_T0))
    a('s_min_u32 s%d, s%d, L_end - L_pcref - 256' % (S_T0, S_T0))
    a('v_lshlrev_b32 v5, 2, v%d' % V_LANE)
    a('v_add_u32 v5, s%d, v5' % S_T0)
    a.v('cp', 'global_load_dword v%d, v5, s[64:65]' % (V_W0 + 21))
    dma_x(1)
    for kt in range(4, 8): dma_w(kt)
    PKR = V_W0
    def side_misc():
        a('v_and_b32 v5, 31, v%d' % V_LANE)
        a('v_lshlrev_b32 v5, 10, v5')
        a('v_lshrrev_b32 v6, 5, v%d' % V_LANE)
        a('v_lshl_add_u32 v5, v6, 3, v5')
        rowcol_off(a)
        a.v('res', 'buffer_load_dwordx2 v[%d:%d], v5, s[12:15], s%d offen' % (V_RES, V_RES + 1, S_T0))
        a.v('res', 'buffer_load_dwordx2 v[%d:%d], v5, s[12:15], s%d offen offset:16' % (V_RES + 2, V_RES + 3, S_T0))
        head_addrs(a)
        a('s_lshl_b32 s%d, s%d, 9' % (S_T0, S_RB))
        a('s_add_u32 s%d, s%d, s%d' % (S_T0, S_T0, S_T3))
        a('s_lshl_b32 s%d, s%d, 6' % (S_T1, S_RB))
        a('s_add_u32 s%d, s%d, s%d' % (S_T1, S_T1, S_T4))
        a('s_cmp_eq_u32 s%d, 0' % S_KH)
        a('s_cselect_b32 s%d, s%d, 0x%x' % (S_T0, S_T0, OOB))
        a('s_cselect_b32 s%d, s%d, 0x%x' % (S_T1, S_T1, OOB))
        PO = V_W0 + 16
        for r in range(4): a('v_mov_b32 v%d, -1' % (PO + r))
        for ly in range(2):
            if ly:
                a('s_add_u32 s%d, s%d, 0x%x' % (S_T0, S_T0, LS))
                a('s_add_u32 s%d, s%d, 0x%x' % (S_T1, S_T1, LS))
            a('s_mov_b32 exec_hi, 0')
            a.v('poi', 'buffer_store_dwordx4 %s, v%d, %s, s%d offen sc1' % (vr(PO), V_L16, WSR, S_T0))
            a('s_mov_b64 exec, 15')
            a.v('poi', 'buffer_store_dwordx4 %s, v%d, %s, s%d offen sc1' % (vr(PO), V_L16, WSR, S_T1))
            a('s_mov_b64 exec, -1')
        a('v_and_b32 v5, 7, v%d' % V_LANE)
        a('v_lshlrev_b32 v5, 21, v5')
        a.v('tlb', 'buffer_load_dword v%d, v5, %s, 0 offen' % (PO + 4, WSR))
    XR = [V_TMP + 20 + q for q in range(4)]
    WR = V_TMP + 24
    a('v_and_b32 v5, 31, v%d' % V_LANE)
    a('v_bfe_u32 v6, v%d, 1, 3' % V_LANE)
    a('v_lshrrev_b32 v7, 5, v%d' % V_LANE)
    a('v_xor_b32 v6, v6, v7')
    a('s_mul_i32 s%d, s%d, 49152' % (S_T0, S_I))
    a('v_lshlrev_b32 v5, 7, v5')
    a('v_add_u32 v5, s%d, v5' % S_T0)
    XR2 = [V_TMP + 12 + q for q in range(4)]
    for q in range(4):
        a('v_xor_b32 v7, %d, v6' % (2 * q))
        a('v_lshl_add_u32 v%d, v7, 4, v5' % XR[q])
        a('v_xor_b32 v%d, 32768, v%d' % (XR2[q], XR[q]))
    a('v_lshrrev_b32 v5, 5, v%d' % V_LANE)
    a('v_lshlrev_b32 v5, 9, v5')
    a('v_bfe_u32 v6, v%d, 2, 2' % V_LANE)
    a('v_lshl_add_u32 v5, v6, 6, v5')
    a('v_bfe_u32 v6, v%d, 4, 1' % V_LANE)
    a('v_lshl_add_u32 v5, v6, 5, v5')
    a('v_and_b32 v6, 3, v%d' % V_LANE)
    a('v_lshl_add_u32 v5, v6, 3, v5')
    a('v_add_u32 v%d, s%d, v5' % (WR, SLO))
    a('v_add_u32 v%d, s%d, v5' % (WR + 1, SHI))
    FB = [V_W1 + 12 * k for k in range(4)]
    CS, SS = V_TMP + 19, V_TMP + 26
    a('v_mov_b32 v%d, 0\nv_mov_b32 v%d, 0' % (SS, SS + 1))
    a('s_lshl_b32 s95, s%d, 1' % S_KH)
    a('s_add_u32 s95, s95, s%d' % S_J)
    def rd_kt(kt, q=False):
        b = FB[kt % 4]
        sl = kt % 4 if q else kt % 12
        areg, off = (WR, sl * 1024) if sl < 4 else (WR + 1, (sl - 4) * 1024)
        a('ds_read_b64_tr_b16 v[%d:%d], v%d offset:%d' % (b + 8, b + 9, areg, off))
        a('ds_read_b64_tr_b16 v[%d:%d], v%d offset:%d' % (b + 10, b + 11, areg, off + 256))
        a('ds_read_b128 %s, v%d offset:%d' % (vr(b), XR[kt & 3], (kt >> 2) * 4096))
        a('ds_read_b128 %s, v%d offset:%d' % (vr(b + 4), XR2[kt & 3], (kt >> 2) * 4096))
    def mm_kt(kt, stats):
        b = FB[kt % 4]; first = kt == 0
        if first: a('v_mov_b32 v%d, 0' % CS)
        for q, acc in enumerate((ACC0, ACC1)):
            a('v_mfma_f32_32x32x16_bf16 %s, %s, %s, %s' % (vr(acc, 16), vr(b + 8), vr(b + 4 * q), '0' if first else vr(acc, 16)))
        for r in range(4):
            a('v_dot2_f32_bf16 v%d, v%d, v%d, v%d' % (CS, b + 8 + r, V_ONES, CS))
        if stats:
            for tile in range(2):
                L = a.newlabel('st')
                a('s_cmp_lg_u32 s95, %d' % (2 * tile + (kt & 1)))
                a('s_cbranch_scc1 %s' % L)
                for r in range(4):
                    x = b + 4 * tile + r
                    a('v_dot2_f32_bf16 v%d, v%d, v%d, v%d' % (SS, x, V_ONES, SS))
                    a('v_dot2_f32_bf16 v%d, v%d, v%d, v%d' % (SS + 1, x, x, SS + 1))
                a.label(L)
    for kt in range(17):
        if kt < 16:
            if kt % 4 == 0:
                tags = ['x%d' % (kt // 4), 'w%d' % kt]
                a.vwait(*tags)
                a('s_barrier')
                if E('TSP1'): ts(a)
            else:
                a.vwait('w%d' % kt)
            rd_kt(kt)
            if kt: a('s_waitcnt lgkmcnt(4)')
        else:
            a('s_waitcnt lgkmcnt(0)')
        if kt >= 1:
            p = kt - 1
            if p < 4: dma_w(p + 12)
            mm_kt(p, True)
        if kt == 0:
            dma_x(2); dma_w(8); dma_w(9)
        if kt == 1:
            dma_w(10); dma_w(11); dma_x(3)
        if kt == 5:
            side_misc()
            nonce_probe(a)
        if kt == 13:
            nonce_check(a)
            a('s_mov_b32 s%d, 1' % S_GPH)
            with role(a, 0):
                lsignal(a)
            with role(a, 'A'):
                hello(a)
    lms = LM(red=0, stat=106496, pkv=0, kvf=0, redq=0)
    a.nop(3)
    a('v_mov_b32 v8, v%d\nv_mov_b32 v9, v%d' % (SS, SS + 1))
    a('s_nop 1')
    a('v_permlane32_swap_b32 v%d, v8' % SS)
    a('v_permlane32_swap_b32 v%d, v9' % (SS + 1))
    a('s_nop 1')
    pk_add(a, 6, SS, 8)
    a('s_mov_b32 s%d, 0' % S_T2)
    a('s_mov_b32 s%d, -1' % S_T3)
    a('v_cndmask_b32_e64 v6, v6, 0, s[%d:%d]' % (S_T2, S_T3))
    a('v_cndmask_b32_e64 v7, v7, 0, s[%d:%d]' % (S_T2, S_T3))
    a('v_and_b32 v5, 31, v%d' % V_LANE)
    a('v_lshlrev_b32 v5, 3, v5')
    a('v_lshrrev_b32 v8, 5, v%d' % V_LANE)
    a('v_lshl_add_u32 v5, v8, 11, v5')
    a('s_lshl_b32 s%d, s%d, 10' % (S_T0, S_J))
    a('s_lshl_b32 s%d, s%d, 9' % (S_T1, S_I))
    a('s_add_u32 s%d, s%d, s%d' % (S_T0, S_T0, S_T1))
    a('s_xor_b32 s%d, s%d, s%d' % (S_T1, S_KH, S_I))
    a('s_lshl_b32 s%d, s%d, 8' % (S_T1, S_T1))
    a('s_add_u32 s%d, s%d, s%d' % (S_T0, S_T0, S_T1))
    a('s_add_u32 s%d, s%d, %d' % (S_T0, S_T0, lms.stat))
    a('v_add_u32 v5, s%d, v5' % S_T0)
    a('ds_write_b64 v5, v[6:7]')
    make_csfrag(a, CS, V_CF1, 6)
    for r in range(14, 20):
        a('v_mov_b32 v%d, 0' % r)
    barrier(a)
    ts(a)
    lm = LM(red=65536, stat=0, pkv=98304, kvf=114688, redq=65536, wst=114688)
    mean_frags(a, lms)
    y_correct(a, V_CF1)
    kv_red_write(a, lm.red)
    ln_stats(a, lms, T=V_W0 + 24)
    p1_probe(a)
    with role(a, 'B'):
        a('s_add_u32 s%d, s%d, 32768' % (SLO, SLO))
        a('v_add_u32 v%d, 32768, v%d' % (WR, WR))
        for k in range(4): dma_w(k, True)
    barrier(a)
    if E('TSP1'): ts(a)
    a1_kv_owner(a, lm)
    ts(a)
    a('s_waitcnt vmcnt(0)')
    a.vreset(); a.vm.append('pr')
    p1_check(a)
    def qpass():
        a.vreset()
        for kt in range(17):
            if kt < 16:
                if kt >= 4: a.vwait('q%d' % kt)
                rd_kt(kt, True)
                if kt: a('s_waitcnt lgkmcnt(4)')
            else:
                a('s_waitcnt lgkmcnt(0)')
            if kt >= 1:
                p = kt - 1
                if p < 12: dma_w(p + 4, True)
                mm_kt(p, False)
        a.nop(3)
        make_csfrag(a, CS, V_CF0, 6)
        a('s_nop 1')
        y_correct(a, V_CF0)
    def ring():
        a('s_and_b32 s70, s%d, 3' % S_W)
        a('s_lshl_b32 s70, s70, 14')
        load_w_ring(a, U_WQ, V_W1, 16)
    a1_tail(a, lm, True, qpass, ring)

def resid_add(a, acc):
    for r in range(4):
        a('v_lshlrev_b32 v%d, 16, v%d' % (acc + 8 + 2 * r, V_RES + r))
        a('v_and_b32 v%d, 0xffff0000, v%d' % (acc + 9 + 2 * r, V_RES + r))
    for r in range(0, 8, 2):
        pk_add(a, acc + r, acc + r, acc + 8 + r)
    for r in range(4):
        a('v_cvt_pk_bf16_f32 v%d, v%d, v%d' % (V_RES + r, acc + 2 * r, acc + 2 * r + 1))

def final_store(a):
    srd(a, S_IN2, 56, 0x200000)
    a('s_nop 1')
    a('v_permlane32_swap_b32 v%d, v%d' % (V_RES, V_RES + 2))
    a('v_permlane32_swap_b32 v%d, v%d' % (V_RES + 1, V_RES + 3))
    a('v_and_b32 v5, 31, v%d' % V_LANE)
    a('v_lshlrev_b32 v5, 10, v5')
    a('v_lshrrev_b32 v6, 5, v%d' % V_LANE)
    a('v_lshl_add_u32 v5, v6, 4, v5')
    rowcol_off(a)
    a('buffer_store_dwordx4 %s, v5, s[12:15], s%d offen' % (vr(V_RES), S_T0))

def x_inputs(a, stats):
    cwait(a)
    ts3(a)
    dma_tile4(a, stats)
    chunk_sync(a, 0, stats)
    next_tile(a)

def w16_regs(a):
    with role(a, 3):
        a('v_lshrrev_b32 v5, 5, v%d' % V_LANE)
        a('v_lshlrev_b32 v5, 9, v5')
        a('v_bfe_u32 v6, v%d, 4, 1' % V_LANE)
        a('v_lshl_add_u32 v5, v6, 7, v5')
        a('v_bfe_u32 v6, v%d, 2, 2' % V_LANE)
        a('v_lshl_add_u32 v5, v6, 5, v5')
        a('v_and_b32 v6, 3, v%d' % V_LANE)
        a('v_lshl_add_u32 v5, v6, 3, v5')
        a('v_add_u32 v5, %d, v5' % LDS_W16)
        for st in range(16):
            a('ds_read_b64_tr_b16 v[%d:%d], v5 offset:%d' % (V_W1 + 4 * st, V_W1 + 4 * st + 1, st * 1024))
            a('ds_read_b64_tr_b16 v[%d:%d], v5 offset:%d' % (V_W1 + 4 * st + 2, V_W1 + 4 * st + 3, st * 1024 + 256))
        a('s_waitcnt lgkmcnt(0)')
        L = a.newlabel('cf2')
        a('s_cmp_lg_u32 s%d, 0' % S_LOFF)
        a('s_cbranch_scc1 %s' % L)
        colsum(a, V_W1, 9)
        make_csfrag(a, 9, V_CF2, 6)
        a.label(L)

def out_gemm(a, w16=False):
    ie = ifelse(a)
    ie.if_set(0)
    kloop4(a, V_W0, False)
    y_red_write(a, 65536, 0)
    ie.else_()
    if w16:
        dma_w16(a)
        idle4(a, False, 4)
        a('s_waitcnt vmcnt(0)')
    else:
        idle4(a, False)
    ie.end()
    barrier(a)
    ts3(a)
    y_red_read(a, 65536, 0)
    resid_add(a, V_ACC)
    ts3(a)

def b1_compute(a):
    lm = LM_STD
    a('s_add_u32 s%d, s%d, 1' % (S_GPH, S_GPH))
    P = V_ACC
    X16 = [V_XF, V_XF + 4, V_XF + 8, V_XF + 12]
    MFg, CFg = P + 8, V_CF2
    def kv16(var):
        for c in range(4):
            if c: chunk_sync(a, c, True)
            steps = [2 * c, 2 * c + 1, 8 + 2 * c, 9 + 2 * c]
            for n in range(4):
                a('ds_read_b128 %s, v6 offset:%d' % (vr(X16[n]), steps[n] * 2048))
            for n, st in enumerate(steps):
                a('s_waitcnt lgkmcnt(%d)' % (3 - n))
                cc = '0' if (c == 0 and n == 0) else vr(P)
                A_, B_ = (vr(V_W1 + 4 * st), vr(X16[n])) if var == 0 else (vr(X16[n]), vr(V_W1 + 4 * st))
                a('v_mfma_f32_16x16x32_bf16 %s, %s, %s, %s' % (vr(P), A_, B_, cc))
            if c == 1:
                a('v_and_b32 v7, 15, v%d' % V_LANE)
                a('s_lshl_b32 s%d, s%d, 4' % (S_T0, S_SLAB))
                a('v_add_u32 v7, s%d, v7' % S_T0)
                stats_read(a, lm, 7, V_TMP)
                make_mfrag(a, VM, MFg)
                a('s_nop 1')
                if var == 0: a('v_mfma_f32_16x16x32_bf16 %s, %s, %s, %s' % (vr(P), vr(CFg), vr(MFg), vr(P)))
                else: a('v_mfma_f32_16x16x32_bf16 %s, %s, %s, %s' % (vr(P), vr(MFg), vr(CFg), vr(P)))
            if c == 2:
                if var == 0:
                    for r in range(4): a('v_mov_b32 v%d, v%d' % (P + 16 + r, VR))
                else:
                    a('v_and_b32 v5, 15, v%d' % V_LANE)
                    a('v_lshlrev_b32 v5, 2, v5')
                    a('v_add_u32 v5, %d, v5' % LDS_U)
                    a('ds_write_b32 v5, v%d' % VR)
                    a('v_lshrrev_b32 v7, 4, v%d' % V_LANE)
                    a('v_lshlrev_b32 v7, 4, v7')
                    a('v_add_u32 v7, %d, v7' % LDS_U)
                    a('s_waitcnt lgkmcnt(0)')
                    a('ds_read_b128 %s, v7' % vr(P + 16))
                a('v_and_b32 v9, 15, v%d' % V_LANE)
                a('v_lshlrev_b32 v9, 4, v9')
                a('v_bfe_u32 v7, v%d, 4, 1' % V_LANE)
                a('v_lshl_add_u32 v9, v7, %d, v9' % (9 if var == 0 else 8))
                a('v_lshrrev_b32 v7, 5, v%d' % V_LANE)
                a('v_lshl_add_u32 v9, v7, 3, v9')
                if var == 0:
                    a('s_lshl_b32 s71, s%d, 11' % S_RB)
                    a('s_lshr_b32 s%d, s%d, 1' % (S_T1, S_SLAB))
                    a('s_lshl_b32 s%d, s%d, 10' % (S_T1, S_T1))
                    a('s_add_u32 s71, s71, s%d' % S_T1)
                    a('s_and_b32 s%d, s%d, 1' % (S_T1, S_SLAB))
                    a('s_lshl_b32 s%d, s%d, 8' % (S_T1, S_T1))
                    a('s_add_u32 s71, s71, s%d' % S_T1)
                    a('s_add_u32 s71, s71, 0x%x' % KF_)
                else:
                    a('s_lshl_b32 s71, s%d, 2' % S_RB)
                    a('s_add_u32 s71, s71, s%d' % S_SLAB)
                    a('s_lshl_b32 s71, s71, 9')
                    a('s_add_u32 s71, s71, 0x%x' % VF_)
                a('s_add_u32 s71, s71, s%d' % S_LOFF)
    Lb = a.newlabel('b1b'); L3 = a.newlabel('b13'); L3v = a.newlabel('b13v'); L3e = a.newlabel('b13e'); Le = a.newlabel('b1e')
    a('s_cmp_eq_u32 s%d, 1' % S_KH)
    a('s_cbranch_scc1 %s' % Lb)
    a('s_cmp_eq_u32 s%d, 3' % S_W)
    a('s_cbranch_scc1 %s' % L3)
    idle4(a, True)
    a('s_branch %s' % Le)
    a.label(Lb)
    kloop4(a, V_W1, True)
    y_correct(a, V_CF2)
    y_red_write(a, 65536, 1)
    a('s_branch %s' % Le)
    a.label(L3)
    a('v_and_b32 v6, 15, v%d' % V_LANE)
    a('v_lshlrev_b32 v6, 4, v6')
    a('v_bfe_u32 v5, v%d, 4, 1' % V_LANE)
    a('v_lshl_add_u32 v6, v5, 9, v6')
    a('v_lshrrev_b32 v5, 5, v%d' % V_LANE)
    a('v_lshl_add_u32 v6, v5, 10, v6')
    a('s_lshr_b32 s%d, s%d, 1' % (S_T0, S_SLAB))
    a('s_lshl_b32 s%d, s%d, 15' % (S_T0, S_T0))
    a('s_and_b32 s%d, s%d, 1' % (S_T1, S_SLAB))
    a('s_lshl_b32 s%d, s%d, 8' % (S_T1, S_T1))
    a('s_add_u32 s%d, s%d, s%d' % (S_T0, S_T0, S_T1))
    a('v_add_u32 v6, s%d, v6' % S_T0)
    a('s_cmp_eq_u32 s%d, 1' % S_WHICH)
    a('s_cbranch_scc1 %s' % L3v)
    kv16(0)
    a('s_branch %s' % L3e)
    a.label(L3v)
    kv16(1)
    a.label(L3e)
    a.nop(8)
    for r in range(4):
        a('v_mul_f32 v%d, v%d, v%d' % (P + r, P + r, P + 16 + r))
    a('v_cvt_pk_bf16_f32 v%d, v%d, v%d' % (P + 4, P, P + 1))
    a('v_cvt_pk_bf16_f32 v%d, v%d, v%d' % (P + 5, P + 2, P + 3))
    a('buffer_store_dwordx2 v[%d:%d], v9, %s, s71 offen sc1' % (P + 4, P + 5, WSR))
    a.label(Le)
    ln_stats(a, lm)
    barrier(a)
    with role(a, 3):
        a('s_waitcnt vmcnt(0)')
        lsignal(a)
    AQ = V_ACC
    y_red_read(a, 65536, 1)
    scale_pack(a, AQ, VR, V_XF)
    for r in range(4):
        a('v_lshlrev_b32 v%d, 16, v%d' % (AQ + 2 * r, V_XF + r))
        a('v_and_b32 v%d, 0xffff0000, v%d' % (AQ + 2 * r + 1, V_XF + r))
    for r in range(8):
        a('v_mul_f32 v%d, 0x%x, v%d' % (AQ + r, f2u(CQ), AQ + r))
    for r in range(4):
        a('v_cvt_pk_bf16_f32 v%d, v%d, v%d' % (A_Q + r, AQ + 2 * r, AQ + 2 * r + 1))

PRIO_SW = int(E('PRIO_SW', '48'))
def attn_loop(a):
    a.lreset()
    def rdK(t):
        if t < 64: a.l_('k%d' % t, 'ds_read_b128 %s, v%d offset:%d' % (vr(A_K[t % 2]), V_L16, t * 1024))
    def rdV(t):
        if t >= 64: return
        a('s_mov_b64 exec, s[%d:%d]' % (S_MASK_LO16, S_MASK_LO16 + 1))
        a.l_('v%d' % t, 'ds_read_b128 %s, v%d offset:%d' % (vr(A_V[t % 2]), A_VA, t * 1024))
        a.l_('v%d' % t, 'ds_read_b128 %s, v%d offset:%d' % (vr(A_V[t % 2] + 4), A_VA, t * 1024 + 512))
        a('s_mov_b64 exec, -1')
    def qk(t):
        a('v_mfma_f32_32x32x16_bf16 %s, %s, %s, %s' % (vr(A_S[t % 2], 16), vr(A_K[t % 2]), vr(A_Q), vr(A_BIAS, 16)))
    def pv(vb, pb, first=False):
        a('v_mfma_f32_32x32x16_bf16 %s, %s, %s, %s' % (vr(A_O, 16), vr(vb), vr(pb), '0' if first else vr(A_O, 16)))
    ex = lambda r: a('v_exp_f32 v%d, v%d' % (r, r))
    class first_pass:
        def __enter__(s_):
            s_.L = a.newlabel('fp')
            a('s_cmp_lg_u32 s%d, 0' % S_PASS)
            a('s_cbranch_scc1 %s' % s_.L)
        def __exit__(s_, *e): a.label(s_.L)
    a('v_and_b32 v%d, 15, v%d' % (A_VA, V_LANE))
    a('v_lshlrev_b32 v%d, 4, v%d' % (A_VA, A_VA))
    a('v_lshrrev_b32 v7, 5, v%d' % V_LANE)
    a('v_lshl_add_u32 v%d, v7, 8, v%d' % (A_VA, A_VA))
    a('v_add_u32 v%d, 65536, v%d' % (A_VA, A_VA))
    rdK(0); rdK(1); rdV(0)
    WD, WA = 10, 11
    a('s_lshl_b32 s70, s%d, 12' % S_W)
    a('s_add_u32 s70, s70, 131072')
    a('s_setprio 1')
    with role(a, 'B'):
        a('s_setprio 2')
    a.lwait('k0')
    qk(0)
    raw_rdaddr(a, WA, 70)
    a('s_nop 1')
    T0 = 24
    def wskip(cond_all):
        a('s_cmp_lg_u32 s%d, 0' % S_LOFF)
        a('s_cselect_b32 s%d, 0x%x, 0' % (S_T0, OOB))
        if not cond_all:
            a('s_cmp_eq_u32 s%d, 0' % S_KH)
            a('s_cselect_b32 s%d, 0, s%d' % (S_T0, S_T0))
        a('s_add_u32 s68, s68, s%d' % S_T0)
    for t in range(64):
        S = A_S[t % 2]
        cv = lambda r: a('v_cvt_pk_bf16_f32 v%d, v%d, v%d' % (A_P + r, S + 2 * r, S + 2 * r + 1))
        def xprobe():
            a('v_and_b32 v7, 7, v%d' % V_LANE)
            a('v_lshlrev_b32 v7, 7, v7')
            a('s_mov_b32 s66, 0x%x' % XFLAG)
            a('buffer_load_dwordx2 v[8:9], v7, %s, s66 offen sc1' % WSR)
        def xcheck(only_next):
            Lr = a.newlabel('xr')
            tagbase(a, 65, S_GPH)
            if only_next:
                a('s_add_u32 s%d, s%d, 1' % (S_T0, S_GRP))
                a('s_and_b32 s%d, s%d, 7' % (S_T0, S_T0))
                a('s_lshl_b32 s64, 1, s%d' % S_T0)
            else:
                a('s_mov_b32 s64, 0xff')
            chk = ['s_mov_b32 exec_lo, s64', 's_mov_b32 exec_hi, 0'] + tagcmp([8], 65, 5) + ['s_mov_b64 exec, -1']
            a('s_waitcnt vmcnt(0)')
            for c in chk: a(c)
            a('s_cbranch_vccz %s' % Lr)
            a('v_and_b32 v7, 7, v%d' % V_LANE)
            a('v_lshlrev_b32 v7, 7, v7')
            poll(a, ['buffer_load_dwordx2 v[8:9], v7, %s, s66 offen sc1' % WSR], chk, sleep=1)
            a.label(Lr)
        if t in (2, 8):
            with first_pass(): xprobe()
        if t == 4:
            with first_pass():
                xcheck(True); kv_dma(a, [1])
        if t == 10:
            with first_pass():
                xcheck(False); kv_dma(a, range(2, 8))
        if t in (7, 14, 22):
            with first_pass():
                a('s_waitcnt vmcnt(%d)' % (10 if t == 14 else 0))
                a('s_barrier')
            if t == 7: rdK(8)
        if E('TSA') and t in (0, 3, 4, 7, 15, 32, 50, 63): ts(a)
        if t == PRIO_SW:
            with role(a, 'B'):
                a('s_setprio 0')
        if t == T0:
            raw_setup(a, U_OB, U_Q, S_IN2, 68, 69, WD); wskip(False)
        if t == T0 + 16:
            raw_setup(a, U_K, U_V, S_IN2, 68, 69, WD); wskip(True)
        if t + 1 < 64:
            a.lwait('k%d' % (t + 1))
            qk(t + 1)
        if t != 6: rdK(t + 2)
        ex(S + 0); ex(S + 1); ex(S + 2); ex(S + 3); cv(0); ex(S + 4); ex(S + 5); cv(1); ex(S + 6); ex(S + 7); cv(2)
        ex(S + 8); ex(S + 9); cv(3); ex(S + 10); ex(S + 11)
        a.lwait('v%d' % t)
        pv(A_V[t % 2], A_P, t == 0)
        p = t - T0
        if 0 <= p < 32:
            if p >= 4: a.lwait('w%d' % (p - 4))
            for l in raw_dma(S_IN2, 68, 69, WD, 70, (p % 4) * 1024): a(l)
        cv(4); ex(S + 12); ex(S + 13); cv(5); ex(S + 14); ex(S + 15); cv(6)
        p = t - T0 - 2
        if 0 <= p < 32:
            a('s_waitcnt vmcnt(%d)' % min(2, 31 - p))
        else:
            a('s_nop 0')
        cv(7)
        if 0 <= p < 32:
            for l in raw_rd((V_W0 if p < 16 else V_W1) + 4 * (p % 16), WA, (p % 4) * 1024): a.l_('w%d' % p, l)
        else:
            a('s_nop 1')
        pv(A_V[t % 2] + 4, A_P + 4)
        rdV(t + 1)
    a('s_setprio 0')
    a.nop(16)

def attn_pre(a):
    a('s_mov_b32 s%d, 0x00110000' % S_T0)
    a('s_mov_b32 s%d, 0x00110000' % S_T1)
    a('v_cndmask_b32_e64 v7, 0, v%d, s[%d:%d]' % (V_ONES, S_T0, S_T1))
    for b in range(2):
        for r in range(8):
            a('v_mov_b32 v%d, v7' % (A_V[b] + r))

def kv_dma(a, slots):
    a('s_lshl_b32 s67, s%d, 10' % S_W)
    for sl in slots:
        a('s_add_u32 s%d, s%d, %d' % (S_T0, S_GRP, sl))
        a('s_and_b32 s%d, s%d, 7' % (S_T0, S_T0))
        a('s_lshl_b32 s%d, s%d, 13' % (S_T0, S_T0))
        a('s_add_u32 s%d, s%d, s67' % (S_T0, S_T0))
        a('s_add_u32 s%d, s%d, s%d' % (S_T0, S_T0, S_LOFF))
        a('s_add_u32 s%d, s%d, 0x%x' % (S_T0, S_T0, KF_))
        a('s_add_u32 m0, s67, %d' % (sl * 8192))
        a('s_add_u32 s%d, s%d, 0x10000' % (S_T1, S_T0))
        a('buffer_load_dwordx4 v%d, %s, s%d offen sc1 lds' % (V_L16, WSR, S_T0))
        a('s_add_u32 m0, s67, %d' % (65536 + sl * 8192))
        a('s_nop 0')
        a('buffer_load_dwordx4 v%d, %s, s%d offen sc1 lds' % (V_L16, WSR, S_T1))

def attn_inputs(a):
    with role(a, 0):
        lwait(a)
        L = a.newlabel('ld')
        a('s_lshr_b32 s%d, s2, 3' % S_T0)
        a('s_cmp_lg_u32 s%d, 0' % S_T0)
        a('s_cbranch_scc1 %s' % L)
        tagval(a, 6, S_GPH)
        a('s_lshl_b32 s%d, s%d, 7' % (S_T0, S_GRP))
        a('s_add_u32 s%d, s%d, 0x%x' % (S_T0, S_T0, XFLAG))
        a('v_mov_b32 v5, 0')
        a('s_mov_b64 exec, 1')
        a('buffer_store_dwordx2 v[6:7], v5, %s, s%d offen sc1' % (WSR, S_T0))
        a('s_mov_b64 exec, -1')
        a.label(L)
    barrier(a)
    ts(a)
    kv_dma(a, [0])
    a('s_waitcnt vmcnt(0)')
    a('s_barrier')

def attn_compute(a):
    a('ds_read_b128 %s, v%d' % (vr(A_K[0]), V_L16))
    a('s_waitcnt lgkmcnt(0)')
    a('v_mfma_f32_32x32x16_bf16 %s, %s, %s, 0' % (vr(A_S[0], 16), vr(A_K[0]), vr(A_Q)))
    a.nop(12)
    a('v_max3_f32 v10, v%d, v%d, v%d' % (A_S[0], A_S[0] + 1, A_S[0] + 2))
    a('v_max3_f32 v9, v%d, v%d, v%d' % (A_S[0] + 3, A_S[0] + 4, A_S[0] + 5))
    for r in range(6, 14, 4):
        a('v_max3_f32 v10, v10, v%d, v%d' % (A_S[0] + r, A_S[0] + r + 1))
        a('v_max3_f32 v9, v9, v%d, v%d' % (A_S[0] + r + 2, A_S[0] + r + 3))
    a('v_max3_f32 v10, v10, v%d, v%d' % (A_S[0] + 14, A_S[0] + 15))
    a('v_max_f32 v10, v10, v9')
    halves_sum(a, 10, 9, 'v_max_f32')
    a('v_sub_f32 v10, 0, v10')
    a('s_mov_b32 s%d, 0' % S_PASS)
    Lrun = a.newlabel('at_run'); Lok = a.newlabel('at_ok'); Lmx = a.newlabel('at_mx')
    a.label(Lrun)
    for r in range(16):
        a('v_mov_b32 v%d, v10' % (A_BIAS + r))
    a('s_nop 1')
    attn_loop(a)
    a('s_cmp_eq_u32 s%d, 1' % S_PASS)
    a('s_cbranch_scc1 %s' % Lok)
    a('v_max3_f32 v8, abs(v%d), abs(v%d), abs(v%d)' % (A_O, A_O + 1, A_O + 2))
    a('v_max3_f32 v9, abs(v%d), abs(v%d), abs(v%d)' % (A_O + 3, A_O + 4, A_O + 5))
    a('v_max3_f32 v8, abs(v%d), abs(v%d), v8' % (A_O + 6, A_O + 7))
    a('v_max_f32 v8, v8, v9')
    a('v_cmp_nle_f32 vcc, 0x%x, v%d' % (f2u(2.0 ** -89), A_O + 8))
    a('v_cmp_nge_f32 s[64:65], v%d, v%d' % (7, A_O + 8)) if False else None
    a('s_mov_b64 s[64:65], vcc')
    a('v_cmp_nge_f32 vcc, 0x%x, v%d' % (f2u(2.0 ** 90), A_O + 8))
    a('s_nop 3')
    a('s_or_b64 s[64:65], s[64:65], vcc')
    a('v_cmp_nge_f32 vcc, 0x%x, v8' % f2u(2.0 ** 126))
    a('s_nop 3')
    a('s_or_b64 s[64:65], s[64:65], vcc')
    a('s_cmp_eq_u64 s[64:65], 0')
    a('s_cbranch_scc1 %s' % Lok)
    a('s_mov_b32 s%d, 1' % S_PASS)
    a('v_mov_b32 v10, 0xff800000')
    a('v_mov_b32 v%d, v%d' % (A_KA, V_L16))
    a('s_mov_b32 s%d, 0' % S_CNT)
    a.label(Lmx)
    a('ds_read_b128 %s, v%d' % (vr(A_K[0]), A_KA))
    a('s_waitcnt lgkmcnt(0)')
    a('v_mfma_f32_32x32x16_bf16 %s, %s, %s, 0' % (vr(A_S[0], 16), vr(A_K[0]), vr(A_Q)))
    a.nop(16)
    for r in range(0, 16, 2):
        a('v_max3_f32 v10, v10, v%d, v%d' % (A_S[0] + r, A_S[0] + r + 1))
    a('v_add_u32 v%d, 1024, v%d' % (A_KA, A_KA))
    a('s_add_u32 s%d, s%d, 1' % (S_CNT, S_CNT))
    a('s_cmp_lt_u32 s%d, 64' % S_CNT)
    a('s_cbranch_scc1 %s' % Lmx)
    halves_sum(a, 10, 9, 'v_max_f32')
    a('v_sub_f32 v10, 0, v10')
    a('s_branch %s' % Lrun)
    a.label(Lok)
    a('v_rcp_f32 v8, v%d' % (A_O + 8))
    a('s_nop 0')
    scale_pack(a, A_O, 8, A_P)
    store_blk(a, A_P)
    csignal(a)

def header():
    ref = open('cdna_kernels/%s.s.ref' % NAME).read().split('\n')
    out = []
    for l in ref:
        if not l.startswith(';'): break
        if '@launch' in l: continue
        out.append(l)
    return out

def main(path):
    a = Asm()
    for h in header(): a.raw(h)
    a.raw('; @launch grid=(256,1,1) block=(512,1,1) lds=%d' % LDS_TOTAL)
    a.raw('.amdgcn_target "amdgcn-amd-amdhsa--gfx950"')
    a.raw('.text')
    name = NAME + '_kernel'
    prologue(a, name)
    ts(a)
    p1(a)
    ts(a)
    a.label('L_layer')
    x_inputs(a, False)
    ts(a)
    out_gemm(a, True)
    store_x(a)
    csignal(a)
    w16_regs(a)
    ts(a)
    x_inputs(a, True)
    ts(a)
    b1_compute(a)
    attn_pre(a)
    ts(a)
    attn_inputs(a)
    ts(a)
    attn_compute(a)
    ts(a)
    x_inputs(a, False)
    ts(a)
    out_gemm(a)
    a('s_cmp_lg_u32 s%d, 0' % S_LOFF)
    a('s_cbranch_scc1 L_final')
    a('s_mov_b32 s%d, 0x%x' % (S_LOFF, LS))
    store_x(a)
    csignal(a)
    ts(a)
    x_inputs(a, True)
    ts(a)
    a1_std(a)
    ts(a)
    a('s_branch L_layer')
    a.label('L_final')
    final_store(a)
    a('s_waitcnt vmcnt(0)')
    ts(a)
    epilogue(a, name)
    open(path, 'w').write(a.text())

if __name__ == '__main__':
    main(sys.argv[1] if len(sys.argv) > 1 else 'cdna_kernels/%s.s' % NAME)
```

```python
import struct, math, sys, os

NAME = 'interleave_layers__linear_attn_block__grouped_kv_mqa__prompt'
E = os.environ.get
TS_ON = E('TS', '0') == '1'
TS2 = TS_ON and E('TS2', '0') == '1'
DBGBUF = E('DBGBUF', '0') == '1'

T0_ = 0x1000000 if DBGBUF else 0x000000
WP = 0x400000
NT_QKV, NT_OA, NT_Q, NT_OB = 0, 48, 64, 80
WKV16 = 0x700000
STP = 0x780000
LB, LS = 0x880000, 0x140000
KF_, VF_, KMAX_ = LB, LB + 0x10000, LB + 0x20000
KVP_, ZP_ = LB + 0x28000, LB + 0x128000
CFLAG = 0xB00000
GFLAG = 0xB04000
XFLAG = 0xB05000
HFLAG = 0xB20000
TSBUF = 0xB40000
WS_BYTES = 0x10000000
OOB = 0x7FFF0000
_t = lambda n: T0_ + n * 0x200000
XF = [None, _t(1), _t(3), _t(5)]
OLIN = [_t(0), _t(4)]; OF = [_t(2), _t(6)]
KF = [KF_, KF_ + LS]; VF = [VF_, VF_ + LS]; KMAX = [KMAX_, KMAX_ + LS]; KVP = [KVP_, KVP_ + LS]; ZP = [ZP_, ZP_ + LS]

def f2u(x): return struct.unpack('<I', struct.pack('<f', x))[0]
LOG2E = math.log2(math.e)
CQ = 0.25 * LOG2E

class Asm:
    def __init__(self):
        self.l = []; self.uid = 0; self.vm = []; self.done = -1
    def __call__(self, s):
        for line in s.strip('\n').split('\n'):
            self.l.append('    ' + line.strip())
    def label(self, s): self.l.append(s + ':')
    def raw(self, s): self.l.append(s)
    def nop(self, n):
        while n > 0:
            k = min(n, 16); self('s_nop %d' % (k - 1)); n -= k
    def newlabel(self, p='L'):
        self.uid += 1; return '%s_%d' % (p, self.uid)
    def text(self): return '\n'.join(self.l) + '\n'
    def lreset(self): self.lg = []; self.ldone = -1
    def l_(self, tag, s_):
        self(s_); self.lg.append(tag)
    def lwait(self, *tags):
        idx = [i for i, t in enumerate(self.lg) if t in tags]
        if not idx or max(idx) <= self.ldone: return
        self.ldone = max(idx)
        n = len(self.lg) - 1 - max(idx)
        self('s_waitcnt lgkmcnt(%d)' % min(n, 15))
    def vreset(self): self.vm = []; self.done = -1
    def v(self, tag, s):
        self(s); self.vm.append(tag)
    def vwait(self, *tags, extra=''):
        idx = [i for i, t in enumerate(self.vm) if t in tags]
        if max(idx) <= self.done and not extra: return
        self.done = max(self.done, max(idx))
        n = len(self.vm) - 1 - max(idx)
        assert n <= 63
        self('s_waitcnt vmcnt(%d)%s' % (n, extra))

def vr(b, n=4): return 'v[%d:%d]' % (b, b + n - 1)

S_WS, S_IN, S_IN2 = 4, 8, 12
S_RB, S_CS, S_W, S_I, S_J, S_KH = 16, 17, 18, 19, 20, 21
S_BLK, S_LOFF = 22, 23
S_T0, S_T1, S_T2, S_T3, S_T4, S_T5 = 24, 25, 26, 27, 28, 29
S_MASK_LO16 = 30
S_WHICH, S_SLAB = 34, 35
S_CNT, S_PASS, S_CPH, S_GPH = 36, 37, 38, 39
S_FAST, S_SPIN = 62, 63
S_TSI, S_TOFF, S_SOFF, S_GRP = 72, 73, 74, 75
S_DBG = 76
S_WOFF, S_XOFF = 80, 81
S_TS = 82
S_NLO, S_NHI, S_XCC = 32, 33, 91
V_ONES, V_LANE, V_L16, V_XB, V_XA = 0, 1, 2, 3, 4
VM, VR = 10, 11
V_CF1, V_CF0, V_CF2 = 12, 14, 16
V_RES = 20
V_XF = 24
V_ACC = 40
V_PQ = 88
V_CFA, V_GFA, V_PCA, V_Q2 = 96, 97, 98, 99
V_TMP = 100
V_W0, V_W1 = 128, 192
A_Q, A_BIAS, A_S, A_P, A_O, A_K, A_V = 100, 24, [40, 56], 72, 80, [104, 108], [112, 120]
A_KA, A_VA = 5, 6
XBUF = [V_XF, V_XF + 8, V_TMP, V_TMP + 8]
ACC0, ACC1 = V_ACC, V_ACC + 16
V_MF = V_ACC + 32

class LM:
    def __init__(s, red, stat, pkv, kvf, redq, wst=98304): s.red, s.stat, s.pkv, s.kvf, s.redq, s.wst = red, stat, pkv, kvf, redq, wst
LM_STD = LM(red=65536, stat=131072, pkv=135168, kvf=151552, redq=65536)
LDS_U = 155648
LDS_TOTAL = 163840
WSR = 's[%d:%d]' % (S_WS, S_WS + 3)
SPIN_MAX = 200000

def srd(a, d, ptr_s, nbytes):
    a('s_mov_b32 s%d, s%d' % (d, ptr_s))
    a('s_mov_b32 s%d, s%d' % (d + 1, ptr_s + 1))
    a('s_mov_b32 s%d, 0x%x' % (d + 2, nbytes))
    a('s_mov_b32 s%d, 0x00020000' % (d + 3))

TSD_N = [0]
def tsd(a):
    if not E('TSD'): return
    L = a.newlabel('tsd')
    a('s_cmp_lg_u32 s2, %s' % E('TSD'))
    a('s_cbranch_scc1 %s' % L)
    a('s_cmp_lg_u32 s%d, 0' % S_W)
    a('s_cbranch_scc1 %s' % L)
    a('s_memrealtime s[%d:%d]' % (S_TS, S_TS + 1))
    a('s_waitcnt lgkmcnt(0)')
    a('s_mov_b64 exec, 1')
    a('v_mov_b32 v8, s%d' % S_TS)
    a('v_mov_b32 v9, s%d' % S_TSI)
    a('buffer_store_dword v8, v9, s[%d:%d], 0 offen' % (S_DBG, S_DBG + 3))
    a('s_mov_b64 exec, -1')
    a('s_add_u32 s%d, s%d, 4' % (S_TSI, S_TSI))
    a.label(L)

def ts(a):
    if not TS_ON: return
    L = a.newlabel('ts')
    a('s_cmp_lg_u32 s%d, %s' % (S_W, E('TSW', '0')))
    a('s_cbranch_scc1 %s' % L)
    a('s_memrealtime s[%d:%d]' % (S_TS, S_TS + 1))
    a('s_memtime s[92:93]')
    a('s_waitcnt lgkmcnt(0)')
    a('s_mov_b64 exec, 1')
    a('v_mov_b32 v8, s%d' % S_TS)
    a('v_mov_b32 v9, s%d' % S_TSI)
    a('buffer_store_dword v8, v9, %s, 0 offen' % WSR)
    a('v_mov_b32 v7, s92')
    a('buffer_store_dword v7, v9, %s, 0 offen offset:256' % WSR)
    a('s_mov_b64 exec, -1')
    a('s_add_u32 s%d, s%d, 4' % (S_TSI, S_TSI))
    a.label(L)
def ts3(a):
    if TS_ON and E('TS3'): ts(a)
def ts2(a):
    if TS2: ts(a)

class role:
    def __init__(s, a, who): s.a, s.who = a, who
    def __enter__(s):
        a = s.a; s.L = a.newlabel('role')
        if s.who == 'A': a('s_cmp_lg_u32 s%d, 0' % S_KH)
        elif s.who == 'B': a('s_cmp_lg_u32 s%d, 1' % S_KH)
        else: a('s_cmp_lg_u32 s%d, %d' % (S_W, s.who))
        a('s_cbranch_scc1 %s' % s.L)
    def __exit__(s, *e): s.a.label(s.L)

def prologue(a, name):
    a.raw('.globl %s' % name); a.raw('.p2align 8'); a.raw('.type %s,@function' % name)
    a.label(name)
    a('s_cmp_ge_u32 s2, 256')
    a('s_cbranch_scc1 L_end')
    a('s_load_dwordx16 s[40:55], s[0:1], 0')
    a('s_load_dwordx4 s[56:59], s[0:1], 64')
    a('s_load_dwordx2 s[60:61], s[0:1], 80')
    a('s_and_b32 s%d, s2, 7' % S_GRP)
    a('s_lshl_b32 s%d, s%d, 2' % (S_RB, S_GRP))
    a('s_lshr_b32 s%d, s2, 6' % S_T0)
    a('s_add_u32 s%d, s%d, s%d' % (S_RB, S_RB, S_T0))
    a('s_bfe_u32 s%d, s2, 0x30003' % S_CS)
    a('v_lshrrev_b32 v5, 6, v0')
    a('v_and_b32 v%d, 63, v0' % V_LANE)
    a('s_nop 0')
    a('v_readfirstlane_b32 s%d, v5' % S_W)
    a('v_lshlrev_b32 v%d, 4, v%d' % (V_L16, V_LANE))
    a('s_nop 3')
    a('s_and_b32 s%d, s%d, 1' % (S_I, S_W))
    a('s_bfe_u32 s%d, s%d, 0x10001' % (S_J, S_W))
    a('s_lshr_b32 s%d, s%d, 2' % (S_KH, S_W))
    a('s_lshl_b32 s%d, s%d, 1' % (S_T0, S_RB))
    a('s_add_u32 s%d, s%d, s%d' % (S_T0, S_T0, S_I))
    a('s_lshl_b32 s%d, s%d, 5' % (S_T0, S_T0))
    a('s_lshl_b32 s%d, s%d, 2' % (S_T1, S_CS))
    a('s_add_u32 s%d, s%d, s%d' % (S_T0, S_T0, S_T1))
    a('s_lshl_b32 s%d, s%d, 1' % (S_T1, S_J))
    a('s_add_u32 s%d, s%d, s%d' % (S_T0, S_T0, S_T1))
    a('s_add_u32 s%d, s%d, s%d' % (S_T0, S_T0, S_KH))
    a('s_lshl_b32 s%d, s%d, 10' % (S_BLK, S_T0))
    a('s_lshl_b32 s%d, s%d, 14' % (S_T1, S_I))
    a('s_mul_i32 s%d, s%d, 49152' % (S_T0, S_I))
    a('v_add_u32 v%d, s%d, v%d' % (V_XA, S_T0, V_L16))
    a('v_xor_b32 v%d, 32768, v%d' % (V_XB, V_XA))
    a('s_lshl_b32 s%d, s%d, 1' % (S_T0, S_CS))
    a('s_add_u32 s%d, s%d, s%d' % (S_T0, S_T0, S_J))
    a('s_lshl_b32 s%d, s%d, 6' % (S_WOFF, S_T0))
    a('s_lshl_b32 s%d, s%d, 16' % (S_XOFF, S_RB))
    a('v_mov_b32 v%d, 0x3f803f80' % V_ONES)
    a('s_mov_b32 s%d, 0x0000ffff' % S_MASK_LO16)
    a('s_mov_b32 s%d, 0x0000ffff' % (S_MASK_LO16 + 1))
    a('s_and_b32 s%d, s%d, 1' % (S_WHICH, S_CS))
    a('s_lshr_b32 s%d, s%d, 1' % (S_SLAB, S_CS))
    a('s_mov_b32 s%d, 0' % S_LOFF)
    a('s_mov_b32 s%d, 0' % S_CPH)
    a('s_mov_b32 s%d, 0' % S_GPH)
    a('s_mov_b32 s%d, 0' % S_FAST)
    a('s_mov_b32 s%d, 0x%x' % (S_TOFF, T0_))
    a('s_mov_b32 s%d, 0x%x' % (S_SOFF, STP))
    a('s_lshl_b32 s%d, s%d, 9' % (S_T0, S_RB))
    a('s_add_u32 s%d, s%d, 0x%x' % (S_T0, S_T0, CFLAG))
    a('v_lshlrev_b32 v5, 3, v%d' % V_LANE)
    a('v_add_u32 v%d, s%d, v5' % (V_PCA, S_T0))
    a('s_lshl_b32 s%d, s%d, 6' % (S_T1, S_CS))
    a('s_add_u32 s%d, s%d, s%d' % (S_T0, S_T0, S_T1))
    a('s_lshl_b32 s%d, s%d, 3' % (S_T1, S_W))
    a('s_add_u32 s%d, s%d, s%d' % (S_T0, S_T0, S_T1))
    a('v_mov_b32 v%d, s%d' % (V_CFA, S_T0))
    a('s_getreg_b32 s%d, hwreg(HW_REG_XCC_ID)' % S_XCC)
    a('s_and_b32 s%d, s%d, 15' % (S_XCC, S_XCC))
    a('s_lshl_b32 s%d, s%d, 6' % (S_T0, S_RB))
    a('s_lshl_b32 s%d, s%d, 3' % (S_T1, S_CS))
    a('s_add_u32 s%d, s%d, s%d' % (S_T0, S_T0, S_T1))
    a('s_add_u32 s%d, s%d, 0x%x' % (S_T0, S_T0, GFLAG))
    a('v_mov_b32 v%d, s%d' % (V_GFA, S_T0))
    a('s_lshl_b32 s%d, s2, 9' % S_TSI)
    a('s_add_u32 s%d, s%d, 0x%x' % (S_TSI, S_TSI, TSBUF))
    a('s_waitcnt lgkmcnt(0)')
    srd(a, S_WS, 60, WS_BYTES)
    srd(a, S_DBG, 58, 256)

def epilogue(a, name, nv=256):
    a.label('L_end')
    a('s_endpgm')
    a.raw('.section .rodata,"a"'); a.raw('.p2align 6')
    a.raw('.amdhsa_kernel %s' % name)
    a.raw('  .amdhsa_next_free_vgpr %d' % nv)
    a.raw('  .amdhsa_next_free_sgpr 96')
    a.raw('  .amdhsa_accum_offset %d' % ((nv + 3) // 4 * 4))
    a.raw('  .amdhsa_group_segment_fixed_size 0')
    a.raw('  .amdhsa_kernarg_size 88')
    a.raw('  .amdhsa_user_sgpr_count 2')
    a.raw('  .amdhsa_user_sgpr_kernarg_segment_ptr 1')
    a.raw('  .amdhsa_system_sgpr_workgroup_id_x 1')
    a.raw('  .amdhsa_float_denorm_mode_32 3')
    a.raw('.end_amdhsa_kernel')

def fast_store(a, fmts):
    L1 = a.newlabel('fs'); L2 = a.newlabel('fs')
    a('s_cmp_eq_u32 s%d, 1' % S_FAST)
    a('s_cbranch_scc1 %s' % L1)
    for f in fmts: a(f.replace('@', ' sc1'))
    a('s_branch %s' % L2)
    a.label(L1)
    for f in fmts: a(f.replace('@', ''))
    a.label(L2)

def tagval(a, v, sph, xcc=False):
    a('s_lshl_b32 s%d, s%d, 4' % (S_T0, sph))
    a('s_add_u32 s%d, s%d, s%d' % (S_T0, S_T0, S_NLO))
    if xcc: a('s_add_u32 s%d, s%d, s%d' % (S_T0, S_T0, S_XCC))
    a('v_mov_b32 v%d, s%d' % (v, S_T0))
    a('v_mov_b32 v%d, s%d' % (v + 1, S_NHI))

def tagbase(a, sdst, sph):
    a('s_lshl_b32 s%d, s%d, 4' % (sdst, sph))
    a('s_add_u32 s%d, s%d, s%d' % (sdst, sdst, S_NLO))

def tagcmp(pairs, sbase, t):
    out = []
    for n, p in enumerate(pairs):
        out.append('v_subrev_u32 v%d, s%d, v%d' % (p, sbase, p))
        out.append('v_xor_b32 v%d, s%d, v%d' % (p + 1, S_NHI, p + 1))
        out.append('v_lshrrev_b32 v%d, 12, v%d' % (p, p))
        if n == 0: out.append('v_or_b32 v%d, v%d, v%d' % (t, p, p + 1))
        else: out.append('v_or3_b32 v%d, v%d, v%d, v%d' % (t, t, p, p + 1))
    out.append('v_cmp_ne_u32 vcc, 0, v%d' % t)
    return out

def csignal(a, tag=None):
    a('s_add_u32 s%d, s%d, 1' % (S_CPH, S_CPH))
    tagval(a, 6, S_CPH, True)
    if tag is None:
        a('s_waitcnt vmcnt(0) lgkmcnt(0)')
    a('s_mov_b64 exec, 1')
    fast_store(a, ['buffer_store_dwordx2 v[6:7], v%d, %s, 0 offen@' % (V_CFA, WSR)])
    a('s_mov_b64 exec, -1')
    if tag: a.vm.append(tag)

def poll(a, load, cmp, sleep=0):
    Lp = a.newlabel('pl'); Lo = a.newlabel('po')
    a('s_mov_b32 s%d, 0' % S_SPIN)
    a.label(Lp)
    a('s_add_u32 s%d, s%d, 1' % (S_SPIN, S_SPIN))
    a('s_cmp_gt_u32 s%d, %d' % (S_SPIN, SPIN_MAX))
    a('s_cbranch_scc1 L_end')
    for l in load: a(l)
    a('s_waitcnt vmcnt(0)')
    for c in cmp: a(c)
    if sleep:
        a('s_cbranch_vccz %s' % Lo)
        a('s_sleep %d' % sleep)
        a('s_branch %s' % Lp)
        a.label(Lo)
    else:
        a('s_cbranch_vccnz %s' % Lp)

def cwait(a):
    tagbase(a, 65, S_CPH)
    poll(a, ['buffer_load_dwordx2 v[8:9], v%d, %s, 0 offen sc1' % (V_PCA, WSR)], tagcmp([8], 65, 7))

def lpoll_addr(a, v):
    a('v_and_b32 v%d, 31, v%d' % (v, V_LANE))
    a('v_lshlrev_b32 v%d, 3, v%d' % (v, v))
    a('s_lshl_b32 s66, s%d, 8' % S_GRP)
    a('s_add_u32 s66, s66, 0x%x' % GFLAG)

def lwait(a):
    tagbase(a, 65, S_GPH)
    lpoll_addr(a, 5)
    poll(a, ['buffer_load_dwordx2 v[8:9], v5, %s, s66 offen sc1' % WSR], tagcmp([8], 65, 7))

def lsignal(a):
    tagval(a, 6, S_GPH, True)
    a('s_mov_b64 exec, 1')
    fast_store(a, ['buffer_store_dwordx2 v[6:7], v%d, %s, 0 offen@' % (V_GFA, WSR)])
    a('s_mov_b64 exec, -1')

DBR = 's[%d:%d]' % (S_DBG, S_DBG + 3)
NP = 18
def nonce_publish(a):
    L = a.newlabel('np')
    a('s_cmp_lg_u32 s2, 0')
    a('s_cbranch_scc1 %s' % L)
    a('s_cmp_lg_u32 s%d, 0' % S_W)
    a('s_cbranch_scc1 %s' % L)
    a('s_memrealtime s[64:65]')
    a('s_waitcnt lgkmcnt(0)')
    a('s_lshl_b64 s[64:65], s[64:65], 12')
    a('s_or_b32 s65, s65, 0x80000000')
    a('v_mov_b32 v6, s64')
    a('v_mov_b32 v7, s65')
    a('v_mov_b32 v5, 0')
    a('s_mov_b64 exec, 1')
    a('buffer_store_dwordx2 v[6:7], v5, %s, 0 offen sc1' % DBR)
    a('s_mov_b64 exec, -1')
    a.label(L)

def nonce_probe(a):
    a('v_mov_b32 v5, 0')
    a.v('np', 'buffer_load_dwordx2 v[%d:%d], v5, %s, 0 offen sc1' % (NP, NP + 1, DBR))

def nonce_check(a):
    Lok = a.newlabel('nok')
    a.vwait('np')
    a('v_cmp_eq_u32 vcc, 0, v%d' % (NP + 1))
    a('s_cbranch_vccz %s' % Lok)
    a('v_mov_b32 v5, 0')
    poll(a, ['buffer_load_dwordx2 v[%d:%d], v5, %s, 0 offen sc1' % (NP, NP + 1, DBR)], ['v_cmp_eq_u32 vcc, 0, v%d' % (NP + 1)], sleep=2)
    a.label(Lok)
    a('v_readfirstlane_b32 s%d, v%d' % (S_NLO, NP))
    a('v_readfirstlane_b32 s%d, v%d' % (S_NHI, NP + 1))
    a('s_nop 3')

PR = V_W0 + 48
def p1_probe(a):
    lpoll_addr(a, PR + 6)
    a.v('pr', 'buffer_load_dwordx2 v[%d:%d], v%d, %s, s66 offen sc1' % (PR + 2, PR + 3, PR + 6, WSR))

def p1_check(a):
    L2 = a.newlabel('pc')
    a.vwait('pr')
    tagbase(a, 65, S_GPH)
    a('v_mov_b32 v%d, v%d' % (PR + 4, PR + 2))
    for c in tagcmp([PR + 2], 65, 7): a(c)
    a('s_cbranch_vccz %s' % L2)
    poll(a, ['buffer_load_dwordx2 v[%d:%d], v%d, %s, s66 offen sc1' % (PR + 2, PR + 3, PR + 6, WSR)],
         ['v_mov_b32 v%d, v%d' % (PR + 4, PR + 2)] + tagcmp([PR + 2], 65, 7), sleep=1)
    a.label(L2)
    a('v_and_b32 v%d, 15, v%d' % (PR + 4, PR + 4))
    a('v_cmp_ne_u32 vcc, s%d, v%d' % (S_XCC, PR + 4))
    a('s_nop 3')
    a('s_cmp_eq_u64 vcc, 0')
    a('s_cselect_b32 s%d, 1, 0' % S_FAST)
    if E('NOFAST'):
        a('s_mov_b32 s%d, 0' % S_FAST)

def next_tile(a):
    if DBGBUF: a('s_add_u32 s%d, s%d, 0x200000' % (S_TOFF, S_TOFF))
    else: a('s_xor_b32 s%d, s%d, 0x200000' % (S_TOFF, S_TOFF))

def colsum(a, vw, vcs):
    a('v_mov_b32 v%d, 0' % vcs)
    a('s_nop 1')
    for r in range(64):
        a('v_dot2_f32_bf16 v%d, v%d, v%d, v%d' % (vcs, vw + r, V_ONES, vcs))
    a.nop(3)

def rowcol_off(a):
    a('s_lshl_b32 s%d, s%d, 15' % (S_T1, S_I))
    a('s_add_u32 s%d, s%d, s%d' % (S_T0, S_XOFF, S_T1))
    a('s_lshl_b32 s%d, s%d, 7' % (S_T1, S_CS))
    a('s_add_u32 s%d, s%d, s%d' % (S_T0, S_T0, S_T1))
    a('s_lshl_b32 s%d, s%d, 6' % (S_T1, S_J))
    a('s_add_u32 s%d, s%d, s%d' % (S_T0, S_T0, S_T1))
    a('s_lshl_b32 s%d, s%d, 5' % (S_T1, S_KH))
    a('s_add_u32 s%d, s%d, s%d' % (S_T0, S_T0, S_T1))

U_Q, U_K, U_V, U_OA, U_WQ, U_OB = range(6)
UPTR = {U_Q: 42, U_K: 42, U_V: 42, U_OA: 44, U_WQ: 48, U_OB: 54}
ULD = {U_Q: 3072, U_K: 3072, U_V: 3072, U_OA: 1024, U_WQ: 1024, U_OB: 1024}
UCOL = {U_Q: 0, U_K: 1024, U_V: 2048, U_OA: 0, U_WQ: 0, U_OB: 0}
def raw_setup(a, uA, uB, R, sbase, sstep, vdma):
    def sel(d, x, y):
        if x == y: a('s_mov_b32 s%d, %s' % (d, x))
        else:
            a('s_mov_b32 s%d, %s' % (d, x))
            a('s_cmp_eq_u32 s%d, 1' % S_KH)
            a('s_cselect_b32 s%d, %s, s%d' % (d, y, d))
    sel(R, 's%d' % UPTR[uA], 's%d' % UPTR[uB])
    sel(R + 1, 's%d' % (UPTR[uA] + 1), 's%d' % (UPTR[uB] + 1))
    sel(R + 2, '0x%x' % (ULD[uA] * 512), '0x%x' % (ULD[uB] * 512))
    a('s_mov_b32 s%d, 0x00020000' % (R + 3))
    sel(sstep, str(ULD[uA]), str(ULD[uB]))
    sel(sbase, str(UCOL[uA]), str(UCOL[uB]))
    a('v_lshrrev_b32 v%d, 2, v%d' % (vdma, V_LANE))
    a('v_mul_lo_u32 v%d, v%d, s%d' % (vdma, vdma, sstep))
    a('v_and_b32 v7, 3, v%d' % V_LANE)
    a('v_lshl_add_u32 v%d, v7, 4, v%d' % (vdma, vdma))
    a('s_lshl_b32 s%d, s%d, 4' % (sstep, sstep))
    a('s_lshl_b32 s%d, s%d, 4' % (S_T0, S_I))
    a('s_mul_i32 s%d, s%d, s%d' % (S_T0, S_T0, sstep))
    a('s_add_u32 s%d, s%d, s%d' % (sbase, sbase, S_T0))
    a('s_add_u32 s%d, s%d, s%d' % (sbase, sbase, S_WOFF))

def raw_rdaddr(a, v, slds):
    a('v_lshrrev_b32 v%d, 5, v%d' % (v, V_LANE))
    a('v_lshlrev_b32 v%d, 8, v%d' % (v, v))
    a('v_bfe_u32 v7, v%d, 2, 2' % V_LANE)
    a('v_lshl_add_u32 v%d, v7, 6, v%d' % (v, v))
    a('v_bfe_u32 v7, v%d, 4, 1' % V_LANE)
    a('v_lshl_add_u32 v%d, v7, 5, v%d' % (v, v))
    a('v_and_b32 v7, 3, v%d' % V_LANE)
    a('v_lshl_add_u32 v%d, v7, 3, v%d' % (v, v))
    a('v_add_u32 v%d, s%d, v%d' % (v, slds, v))

def raw_dma(R, sbase, sstep, vdma, slds, off):
    return ['s_add_u32 m0, s%d, %d' % (slds, off), 's_nop 0',
            'buffer_load_dwordx4 v%d, s[%d:%d], s%d offen lds' % (vdma, R, R + 3, sbase),
            's_add_u32 s%d, s%d, s%d' % (sbase, sbase, sstep)]

def raw_rd(dst, va, off):
    return ['ds_read_b64_tr_b16 v[%d:%d], v%d offset:%d' % (dst, dst + 1, va, off),
            'ds_read_b64_tr_b16 v[%d:%d], v%d offset:%d' % (dst + 2, dst + 3, va, off + 512)]

RW_D, RW_A = 94, 95
def load_w_issue(a, u, lds0, half):
    if half == 0:
        raw_setup(a, u, u, S_IN2, 68, 69, RW_D)
        a('s_and_b32 s70, s%d, 3' % S_W)
        a('s_lshl_b32 s70, s70, 13')
        a('s_add_u32 s70, s70, %d' % lds0)
        raw_rdaddr(a, RW_A, 70)
    for k in range(8):
        for l in raw_dma(S_IN2, 68, 69, RW_D, 70, k * 1024): a(l)

def load_w_read(a, vbase, half):
    for k in range(8):
        for l in raw_rd(vbase + 4 * (8 * half + k), RW_A, k * 1024): a(l)
    a('s_waitcnt lgkmcnt(0)')

def load_w_sync(a, u, vbase, lds0):
    for half in range(2):
        load_w_issue(a, u, lds0, half)
        a('s_waitcnt vmcnt(0)')
        load_w_read(a, vbase, half)

def load_w_ring(a, u, vbase, nslots):
    raw_setup(a, u, u, S_IN2, 68, 69, RW_D)
    raw_rdaddr(a, RW_A, 70)
    for k in range(nslots):
        for l in raw_dma(S_IN2, 68, 69, RW_D, 70, k * 1024): a(l)
    for k in range(16):
        a('s_waitcnt vmcnt(%d)' % min(nslots - 1, 15 - k))
        for l in raw_rd(vbase + 4 * k, RW_A, (k % nslots) * 1024): a(l)
        if k + nslots < 16:
            a('s_waitcnt lgkmcnt(0)')
            for l in raw_dma(S_IN2, 68, 69, RW_D, 70, (k % nslots) * 1024): a(l)
    a('s_waitcnt lgkmcnt(0)')

LDS_W16 = 135168
def dma_w16(a):
    a('s_cmp_eq_u32 s%d, 1' % S_WHICH)
    a('s_cselect_b32 s%d, s52, s50' % S_IN2)
    a('s_cselect_b32 s%d, s53, s51' % (S_IN2 + 1))
    a('s_mov_b32 s%d, 0x4000' % (S_IN2 + 2))
    a('s_mov_b32 s%d, 0x00020000' % (S_IN2 + 3))
    a('s_and_b32 s%d, s%d, 3' % (S_T0, S_W))
    a('s_lshl_b32 s%d, s%d, 12' % (S_T0, S_T0))
    a('s_add_u32 m0, s%d, %d' % (S_T0, LDS_W16))
    a('s_nop 0')
    for k in range(4):
        a('buffer_load_dwordx4 v%d, s[%d:%d], s%d offen offset:%d lds' % (V_L16, S_IN2, S_IN2 + 3, S_T0, k * 1024))

STL = 88
def dma_tile4(a, stats):
    a('s_lshl_b32 s%d, s%d, 15' % (S_T3, S_I))
    a('s_lshl_b32 s%d, s%d, 14' % (S_T2, S_J))
    a('s_add_u32 s%d, s%d, s%d' % (S_T3, S_T3, S_T2))
    a('s_lshl_b32 s%d, s%d, 11' % (S_T2, S_KH))
    a('s_add_u32 s%d, s%d, s%d' % (S_T3, S_T3, S_T2))
    a('s_add_u32 s%d, s%d, s%d' % (S_T2, S_TOFF, S_XOFF))
    a('s_add_u32 s%d, s%d, s%d' % (S_T2, S_T2, S_T3))
    for c in range(4):
        if c:
            a('s_add_u32 s%d, s%d, 4096' % (S_T2, S_T2))
            a('s_add_u32 s%d, s%d, 4096' % (S_T3, S_T3))
        a('s_mov_b32 m0, s%d' % S_T3)
        a('s_nop 0')
        for t in range(2):
            a('buffer_load_dwordx4 v%d, %s, s%d offen offset:%d sc1 lds' % (V_L16, WSR, S_T2, t * 1024))
        if c == 0 and stats:
            stats_load_issue(a, STL)

def chunk_sync(a, c, stats, extra=0):
    n = [6 + (4 if stats else 0), 4, 2, 0][c] + extra
    a('s_waitcnt vmcnt(%d)' % n)
    if stats and c == 1:
        stats_load_finish(a, LM_STD, STL)
        a('s_waitcnt lgkmcnt(0)')
    a('s_barrier')

def idle4(a, stats, extra=0):
    for c in (1, 2, 3): chunk_sync(a, c, stats, extra)

def kloop4(a, w, stats):
    def rd(t):
        b = XBUF[t % 4]
        a('ds_read_b128 %s, v%d offset:%d' % (vr(b), V_XA, t * 1024))
        a('ds_read_b128 %s, v%d offset:%d' % (vr(b + 4), V_XB, t * 1024))
    for t in range(3): rd(t)
    for t in range(16):
        b = XBUF[t % 4]
        if t in (1, 5, 9):
            chunk_sync(a, (t + 3) // 4, stats)
        if t == 10 and stats:
            mean_issue(a, LM_STD)
        if t + 3 < 16:
            rd(t + 3)
        a('s_waitcnt lgkmcnt(%d)' % (2 * min(3, 15 - t)))
        for q, acc in enumerate((ACC0, ACC1)):
            c = '0' if t == 0 else vr(acc, 16)
            a('v_mfma_f32_32x32x16_bf16 %s, %s, %s, %s' % (vr(acc, 16), vr(w + 4 * t), vr(b + 4 * q), c))
    if stats:
        mean_finish(a)

class ifelse:
    def __init__(s, a): s.a = a; s.L1 = a.newlabel('ie'); s.L2 = a.newlabel('ie')
    def if_set(s, k):
        s.a('s_cmp_lg_u32 s%d, %d' % (S_KH, k)); s.a('s_cbranch_scc1 %s' % s.L1)
    def else_(s):
        s.a('s_branch %s' % s.L2); s.a.label(s.L1)
    def end(s): s.a.label(s.L2)

def kloop(a, w, t0, t1):
    def rd(t):
        b = XBUF[t % 4]
        a('ds_read_b128 %s, v%d offset:%d' % (vr(b), V_XA, t * 1024))
        a('ds_read_b128 %s, v%d offset:%d' % (vr(b + 4), V_XB, t * 1024))
    for t in range(t0, min(t0 + 3, t1)):
        rd(t)
    for t in range(t0, t1):
        b = XBUF[t % 4]
        if t + 3 < t1:
            rd(t + 3)
        a('s_waitcnt lgkmcnt(%d)' % (2 * min(3, t1 - 1 - t)))
        for q, acc in enumerate((ACC0, ACC1)):
            c = '0' if t == 0 else vr(acc, 16)
            a('v_mfma_f32_32x32x16_bf16 %s, %s, %s, %s' % (vr(acc, 16), vr(w + 4 * t), vr(b + 4 * q), c))

def halves_sum(a, v, tmp, op='v_add_f32'):
    a('v_mov_b32 v%d, v%d' % (tmp, v))
    a('s_nop 1')
    a('v_permlane32_swap_b32 v%d, v%d' % (v, tmp))
    a('s_nop 1')
    a('%s v%d, v%d, v%d' % (op, v, v, tmp))

def bf16r(a, v):
    a('v_cvt_pk_bf16_f32 v%d, v%d, v%d' % (v, v, v))
    a('v_and_b32 v%d, 0xffff0000, v%d' % (v, v))

def pk_add(a, d, x, y):
    a('v_pk_add_f32 v[%d:%d], v[%d:%d], v[%d:%d]' % (d, d + 1, x, x + 1, y, y + 1))

def stats_math(a, vm, vrstd):
    a('v_mul_f32 v%d, 0x%x, v%d' % (vm, f2u(1.0 / 512), vm))
    a('v_mul_f32 v%d, 0x%x, v%d' % (vrstd, f2u(1.0 / 512), vrstd))
    a('v_fma_f32 v%d, -v%d, v%d, v%d' % (vrstd, vm, vm, vrstd))
    a('v_max_f32 v%d, 0, v%d' % (vrstd, vrstd))
    bf16r(a, vrstd)
    a('v_add_f32 v%d, 0x%x, v%d' % (vrstd, f2u(1e-5), vrstd))
    bf16r(a, vrstd)
    a('v_sqrt_f32 v%d, v%d' % (vrstd, vrstd))
    a('s_nop 0')
    bf16r(a, vrstd)
    a('v_rcp_f32 v%d, v%d' % (vrstd, vrstd))
    bf16r(a, vm)

def stats_read(a, lm, vrow, T, vm=VM):
    a('v_lshlrev_b32 v%d, 3, v%d' % (vrow, vrow))
    a('v_add_u32 v%d, %d, v%d' % (vrow, lm.stat, vrow))
    for q in range(4):
        a('ds_read2st64_b64 %s, v%d offset0:%d offset1:%d' % (vr(T + 4 * q), vrow, 2 * q, 2 * q + 1))
    a('s_waitcnt lgkmcnt(0)')
    for q in range(4):
        pk_add(a, T + 4 * q, T + 4 * q, T + 4 * q + 2)
    pk_add(a, T, T, T + 4)
    pk_add(a, T + 8, T + 8, T + 12)
    pk_add(a, vm, T, T + 8)
    stats_math(a, vm, vm + 1)

def ln_stats(a, lm, T=V_TMP):
    a('v_and_b32 v5, 31, v%d' % V_LANE)
    a('s_lshl_b32 s%d, s%d, 5' % (S_T0, S_I))
    a('v_add_u32 v5, s%d, v5' % S_T0)
    stats_read(a, lm, 5, T)

def make_mfrag(a, vm, d):
    a('v_cvt_pk_bf16_f32 v%d, -v%d, -v%d' % (d, vm, vm))
    a('v_cvt_pk_bf16_f32 v%d, -v%d, -v%d' % (d + 1, vm, vm))
    a('v_mov_b32 v%d, 0' % (d + 2))
    a('v_mov_b32 v%d, 0' % (d + 3))

def mean_issue(a, lm):
    T = V_ACC + 40
    a('v_and_b32 v5, 31, v%d' % V_LANE)
    a('v_lshlrev_b32 v5, 3, v5')
    a('s_lshl_b32 s%d, s%d, 8' % (S_T0, S_I))
    a('s_add_u32 s%d, s%d, %d' % (S_T0, S_T0, lm.stat))
    a('v_add_u32 v5, s%d, v5' % S_T0)
    a('v_xor_b32 v6, 256, v5')
    for q in range(2):
        for k in range(4):
            a('ds_read2st64_b32 v[%d:%d], v%d offset0:%d offset1:%d' % (T + 8 * q + 2 * k, T + 8 * q + 2 * k + 1, 5 + q, 4 * k, 4 * k + 2))

def mean_finish(a):
    T = V_ACC + 40
    for q in range(2):
        t = T + 8 * q
        pk_add(a, t, t, t + 2)
        pk_add(a, t + 4, t + 4, t + 6)
        pk_add(a, t, t, t + 4)
        a('v_add_f32 v%d, v%d, v%d' % (t, t, t + 1))
        a('v_mul_f32 v%d, 0x%x, v%d' % (t, f2u(1.0 / 512), t))
        make_mfrag(a, t, V_MF + 4 * q)
    a('s_nop 1')

def mean_frags(a, lm):
    mean_issue(a, lm)
    a('s_waitcnt lgkmcnt(0)')
    mean_finish(a)

def stats_load_issue(a, T=V_TMP, tag=None):
    a('v_lshlrev_b32 v5, 3, v%d' % V_LANE)
    a('s_lshr_b32 s%d, s%d, 2' % (S_T0, S_XOFF))
    a('s_lshl_b32 s%d, s%d, 11' % (S_T1, S_W))
    a('s_add_u32 s%d, s%d, s%d' % (S_T0, S_T0, S_T1))
    a('s_add_u32 s%d, s%d, s%d' % (S_T0, S_T0, S_SOFF))
    for q in range(4):
        a.v(tag, 'buffer_load_dwordx2 v[%d:%d], v5, %s, s%d offen offset:%d sc1' % (T + 2 * q, T + 2 * q + 1, WSR, S_T0, q * 512))

def stats_load_finish(a, lm, T=V_TMP):
    pk_add(a, T, T, T + 2)
    pk_add(a, T + 4, T + 4, T + 6)
    pk_add(a, T, T, T + 4)
    a('s_lshl_b32 s%d, s%d, 9' % (S_T0, S_W))
    a('s_add_u32 s%d, s%d, %d' % (S_T0, S_T0, lm.stat))
    a('v_lshlrev_b32 v5, 3, v%d' % V_LANE)
    a('v_add_u32 v5, s%d, v5' % S_T0)
    a('ds_write_b64 v5, v[%d:%d]' % (T, T + 1))
    a('s_xor_b32 s%d, s%d, 0x%x' % (S_SOFF, S_SOFF, STP ^ (STP + 0x80000)))

def make_csfrag(a, vc, d, t):
    a('v_cvt_pk_bf16_f32 v%d, v%d, v%d' % (t, vc, vc))
    a('v_and_b32 v%d, 0xffff0000, v%d' % (t, t))
    a('v_sub_f32 v%d, v%d, v%d' % (t + 1, vc, t))
    a('v_cvt_pk_bf16_f32 v%d, v%d, v%d' % (d, t, t + 1))
    a('v_and_b32 v%d, 0xffff0000, v%d' % (t, d))
    a('v_sub_f32 v%d, v%d, v%d' % (t + 1, t + 1, t))
    a('v_cvt_pk_bf16_f32 v%d, v%d, 0' % (d + 1, t + 1))

def y_correct(a, cf):
    for q, acc in enumerate((ACC0, ACC1)):
        a('v_mfma_f32_32x32x16_bf16 %s, %s, %s, %s' % (vr(acc, 16), vr(cf), vr(V_MF + 4 * q), vr(acc, 16)))

def y_red_write(a, base, own):
    a('s_lshl_b32 s%d, s%d, 13' % (S_T0, S_J))
    a('s_mul_i32 s%d, s%d, 6144' % (S_T1, S_I))
    a('s_add_u32 s%d, s%d, s%d' % (S_T0, S_T0, S_T1))
    a('s_add_u32 s%d, s%d, %d' % (S_T0, S_T0, base))
    a('v_add_u32 v5, s%d, v%d' % (S_T0, V_L16))
    a('v_xor_b32 v6, 4096, v5')
    a.nop(7)
    for q, acc in enumerate((ACC0, ACC1)):
        for nh in range(2):
            if q == 0 and nh == own: continue
            a('ds_write_b128 v%d, %s offset:%d' % (5 + q, vr(acc + 8 * nh), nh * 16384))
            a('ds_write_b128 v%d, %s offset:%d' % (5 + q, vr(acc + 8 * nh + 4), nh * 16384 + 1024))

def y_red_read(a, base, own):
    d = V_ACC
    a('s_lshl_b32 s%d, s%d, 12' % (S_T0, S_W))
    a('s_add_u32 s%d, s%d, %d' % (S_T0, S_T0, base))
    a('v_add_u32 v5, s%d, v%d' % (S_T0, V_L16))
    L1 = a.newlabel('rr'); L2 = a.newlabel('rr')
    a('s_cmp_eq_u32 s%d, %d' % (S_KH, own))
    a('s_cbranch_scc1 %s' % L1)
    for k in range(4):
        a('ds_read_b128 %s, v5 offset:%d' % (vr(d + 4 * k), k * 1024))
    a('s_waitcnt lgkmcnt(0)')
    for r in range(0, 8, 2):
        pk_add(a, d + r, d + r, d + 8 + r)
    a('s_branch %s' % L2)
    a.label(L1)
    a('s_xor_b32 s%d, s%d, 1' % (S_T0, S_I))
    a('s_lshl_b32 s%d, s%d, 11' % (S_T0, S_T0))
    a('v_add_u32 v5, s%d, v5' % S_T0)
    a('ds_read_b128 %s, v5' % vr(ACC1))
    a('ds_read_b128 %s, v5 offset:1024' % vr(ACC1 + 4))
    a('s_waitcnt lgkmcnt(0)')
    for r in range(0, 8, 2):
        pk_add(a, d + r, ACC0 + 8 * own + r, ACC1 + r)
    a.label(L2)

def kv_red_write(a, base):
    a('s_xor_b32 s%d, s%d, 1' % (S_T0, S_W))
    a('s_lshl_b32 s%d, s%d, 12' % (S_T0, S_T0))
    a('s_add_u32 s%d, s%d, %d' % (S_T0, S_T0, base))
    a('v_add_u32 v5, s%d, v%d' % (S_T0, V_L16))
    a.nop(9)
    for k in range(4):
        a('ds_write_b128 v5, %s offset:%d' % (vr(ACC1 + 4 * k), k * 1024))

def barrier(a):
    a('s_waitcnt lgkmcnt(0)')
    a('s_barrier')

def phi_pack(a, acc, dst, tl=9, tmp=None, n=8):
    if tmp is None: tmp = acc + 8
    a('v_mul_f32 v%d, 0x%x, v%d' % (tl, f2u(LOG2E), VR))
    for r in range(n):
        a('v_mul_f32 v%d, v%d, v%d' % (tmp + r, acc + r, tl))
    for r in range(n):
        a('v_exp_f32_e64 v%d, v%d clamp' % (tmp + r, tmp + r))
    for r in range(n):
        a('v_fmaak_f32 v%d, v%d, v%d, 0x%x' % (acc + r, acc + r, VR, f2u(1e-6)))
        a('v_max_f32 v%d, 0x%x, v%d' % (acc + r, f2u(1e-6), acc + r))
    for r in range(0, n, 2):
        pk_add(a, acc + r, acc + r, tmp + r)
    for r in range(n // 2):
        a('v_cvt_pk_bf16_f32 v%d, v%d, v%d' % (dst + r, acc + 2 * r, acc + 2 * r + 1))

def scale_pack(a, acc, vs, dst, n=8):
    for r in range(n):
        a('v_mul_f32 v%d, v%d, v%d' % (acc + r, acc + r, vs))
    for r in range(n // 2):
        a('v_cvt_pk_bf16_f32 v%d, v%d, v%d' % (dst + r, acc + 2 * r, acc + 2 * r + 1))

def store_blk(a, v):
    a('s_add_u32 s%d, s%d, s%d' % (S_T0, S_BLK, S_TOFF))
    fast_store(a, ['buffer_store_dwordx4 %s, v%d, %s, s%d offen@' % (vr(v), V_L16, WSR, S_T0)])

def store_stats(a, tag=None):
    a('v_mov_b32 v6, 0')
    a('v_mov_b32 v7, 0')
    a('s_nop 0')
    for r in range(4):
        a('v_dot2_f32_bf16 v6, v%d, v%d, v6' % (V_RES + r, V_ONES))
        a('v_dot2_f32_bf16 v7, v%d, v%d, v7' % (V_RES + r, V_RES + r))
    a('s_bfe_u32 s%d, s%d, 0x5000a' % (S_T0, S_BLK))
    a('s_lshl_b32 s%d, s%d, 9' % (S_T0, S_T0))
    a('s_lshr_b32 s%d, s%d, 2' % (S_T1, S_XOFF))
    a('s_add_u32 s%d, s%d, s%d' % (S_T0, S_T0, S_T1))
    a('s_lshl_b32 s%d, s%d, 8' % (S_T1, S_I))
    a('s_add_u32 s%d, s%d, s%d' % (S_T0, S_T0, S_T1))
    a('s_add_u32 s%d, s%d, s%d' % (S_T0, S_T0, S_SOFF))
    a('v_mov_b32 v8, v6')
    a('v_mov_b32 v9, v7')
    a('v_lshlrev_b32 v5, 3, v%d' % V_LANE)
    a('s_nop 0')
    a('v_permlane32_swap_b32 v6, v8')
    a('v_permlane32_swap_b32 v7, v9')
    a('s_nop 1')
    a('v_pk_add_f32 v[6:7], v[6:7], v[8:9]')
    a('s_mov_b32 exec_hi, 0')
    fast_store(a, ['buffer_store_dwordx2 v[6:7], v5, %s, s%d offen@' % (WSR, S_T0)])
    a('s_mov_b32 exec_hi, -1')
    if tag: a.vm.append(tag)

def store_x(a):
    store_blk(a, V_RES)
    store_stats(a)

def a1_kv_owner(a, lm):
    a('s_lshl_b32 s%d, s%d, 12' % (S_T0, S_W))
    a('s_add_u32 s%d, s%d, %d' % (S_T0, S_T0, lm.red))
    a('v_add_u32 v5, s%d, v%d' % (S_T0, V_L16))
    for k in range(4):
        a('ds_read_b128 %s, v5 offset:%d' % (vr(ACC1 + 4 * k), k * 1024))
    a('s_lshl_b32 s%d, s%d, 12' % (S_T0, S_J))
    a('s_lshl_b32 s%d, s%d, 13' % (S_T1, S_KH))
    a('s_add_u32 s%d, s%d, s%d' % (S_T0, S_T0, S_T1))
    a('s_lshl_b32 s%d, s%d, 10' % (S_T1, S_I))
    a('s_add_u32 s%d, s%d, s%d' % (S_T0, S_T0, S_T1))
    a('s_add_u32 s%d, s%d, %d' % (S_T0, S_T0, lm.pkv))
    a('v_and_b32 v7, 31, v%d' % V_LANE)
    a('v_lshlrev_b32 v7, 5, v7')
    a('v_lshrrev_b32 v6, 5, v%d' % V_LANE)
    a('v_lshl_add_u32 v7, v6, 4, v7')
    a('v_add_u32 v7, s%d, v7' % S_T0)
    a('s_waitcnt lgkmcnt(0)')
    for r in range(0, 16, 2):
        pk_add(a, ACC0 + r, ACC0 + r, ACC1 + r)
    with role(a, 'A'):
        phi_pack(a, ACC0, V_XF, tmp=ACC1, n=16)
    with role(a, 'B'):
        scale_pack(a, ACC0, VR, V_XF, n=16)
    a('ds_write_b128 v7, %s' % vr(V_XF))
    a('ds_write_b128 v7, %s offset:2048' % vr(V_XF + 4))
    barrier(a)

def head_addrs(a):
    a('s_lshl_b32 s%d, s%d, 2' % (S_T2, S_CS))
    a('s_add_u32 s%d, s%d, s%d' % (S_T2, S_T2, S_W))
    a('s_lshl_b32 s%d, s%d, 14' % (S_T3, S_T2))
    a('s_add_u32 s%d, s%d, s%d' % (S_T3, S_T3, S_LOFF))
    a('s_add_u32 s%d, s%d, 0x%x' % (S_T3, S_T3, KVP_))
    a('s_lshl_b32 s%d, s%d, 11' % (S_T4, S_T2))
    a('s_add_u32 s%d, s%d, s%d' % (S_T4, S_T4, S_LOFF))
    a('s_add_u32 s%d, s%d, 0x%x' % (S_T4, S_T4, ZP_))
    a('s_lshl_b32 s%d, s%d, 12' % (S_T5, S_T2))
    a('s_add_u32 s%d, s%d, 0x%x' % (S_T5, S_T5, HFLAG))

def hello(a):
    head_addrs(a)
    a('s_mov_b32 s64, 1')
    tagval(a, 8, 64)
    a('s_lshl_b32 s%d, s%d, 7' % (S_T0, S_RB))
    a('s_add_u32 s%d, s%d, s%d' % (S_T0, S_T0, S_T5))
    a('v_mov_b32 v5, 0')
    a('s_mov_b64 exec, 1')
    a('buffer_store_dwordx2 v[8:9], v5, %s, s%d offen sc1' % (WSR, S_T0))
    a('s_mov_b64 exec, -1')

def kv_publish(a, lm, first):
    PA, PB, D, D2, ON = V_XF, V_XF + 8, V_ACC, V_ACC + 4, V_ACC + 8
    a('v_lshrrev_b32 v5, 4, v%d' % V_LANE)
    a('v_lshlrev_b32 v5, 8, v5')
    a('v_bfe_u32 v6, v%d, 2, 2' % V_LANE)
    a('v_lshl_add_u32 v5, v6, 5, v5')
    a('v_and_b32 v6, 1, v%d' % V_LANE)
    a('v_lshl_add_u32 v5, v6, 4, v5')
    a('v_bfe_u32 v6, v%d, 1, 1' % V_LANE)
    a('v_lshl_add_u32 v5, v6, 3, v5')
    a('s_lshl_b32 s%d, s%d, 11' % (S_T0, S_W))
    a('s_add_u32 s%d, s%d, %d' % (S_T0, S_T0, lm.pkv))
    a('v_add_u32 v5, s%d, v5' % S_T0)
    for sl in range(2):
        for u in range(2):
            a('ds_read_b64_tr_b16 v[%d:%d], v5 offset:%d' % (PA + 4 * sl + 2 * u, PA + 4 * sl + 2 * u + 1, sl * 1024 + u * 128))
            a('ds_read_b64_tr_b16 v[%d:%d], v5 offset:%d' % (PB + 4 * sl + 2 * u, PB + 4 * sl + 2 * u + 1, 8192 + sl * 1024 + u * 128))
    for r in range(4):
        a('v_mov_b32 v%d, v%d' % (ON + r, V_ONES))
    head_addrs(a)
    a('s_waitcnt lgkmcnt(0)')
    a('v_mfma_f32_16x16x32_bf16 %s, %s, %s, 0' % (vr(D), vr(PA), vr(PB)))
    a('v_mfma_f32_16x16x32_bf16 %s, %s, %s, 0' % (vr(D2), vr(PA), vr(ON)))
    a('v_mfma_f32_16x16x32_bf16 %s, %s, %s, %s' % (vr(D), vr(PA + 4), vr(PB + 4), vr(D)))
    a('v_mfma_f32_16x16x32_bf16 %s, %s, %s, %s' % (vr(D2), vr(PA + 4), vr(ON), vr(D2)))
    a('s_lshl_b32 s%d, s%d, 9' % (S_T0, S_RB))
    a('s_add_u32 s%d, s%d, s%d' % (S_T0, S_T0, S_T3))
    a('s_lshl_b32 s%d, s%d, 6' % (S_T1, S_RB))
    a('s_add_u32 s%d, s%d, s%d' % (S_T1, S_T1, S_T4))
    a('v_and_b32 v6, 48, v%d' % V_LANE)
    a('v_lshlrev_b32 v5, 3, v%d' % V_LANE)
    a('s_nop 2')
    a('v_cvt_pk_bf16_f32 v%d, v%d, v%d' % (D, D, D + 1))
    a('v_cvt_pk_bf16_f32 v%d, v%d, v%d' % (D + 1, D + 2, D + 3))
    for r in (0, 1, 4, 5, 6, 7):
        a('v_min_u32 v%d, -2, v%d' % (D + r, D + r))
    a('buffer_store_dwordx2 v[%d:%d], v5, %s, s%d offen sc1' % (D, D + 1, WSR, S_T0))
    a('s_mov_b32 exec_lo, 0x00010001')
    a('s_mov_b32 exec_hi, 0x00010001')
    a('buffer_store_dwordx4 %s, v6, %s, s%d offen sc1' % (vr(D2), WSR, S_T1))
    a('s_mov_b64 exec, -1')
    ts2(a)
    load_w_issue(a, U_OA, lm.wst, 0)
    if first:
        a('s_mov_b32 s64, 1')
        tagbase(a, 65, 64)
        a('v_and_b32 v5, 31, v%d' % V_LANE)
        a('v_lshlrev_b32 v5, 7, v5')
        poll(a, ['buffer_load_dwordx2 v[8:9], v5, %s, s%d offen sc1' % (WSR, S_T5)], tagcmp([8], 65, 7))
    else:
        a('s_waitcnt vmcnt(0)')
    load_w_read(a, V_W0, 0)
    load_w_issue(a, U_OA, lm.wst, 1)

def kv_gather(a, lm, first):
    head_addrs(a)
    ZR = V_TMP
    a('v_and_b32 v6, 48, v%d' % V_LANE)
    a('v_and_b32 v5, 15, v%d' % V_LANE)
    a('v_lshl_add_u32 v5, v5, 6, v6')
    poll(a, ['buffer_load_dwordx4 %s, v5, %s, s%d offen sc1' % (vr(ZR), WSR, S_T4),
             'buffer_load_dwordx4 %s, v5, %s, s%d offen offset:1024 sc1' % (vr(ZR + 4), WSR, S_T4)],
         ['v_max3_u32 v7, v%d, v%d, v%d' % (ZR, ZR + 1, ZR + 2), 'v_max3_u32 v8, v%d, v%d, v%d' % (ZR + 3, ZR + 4, ZR + 5),
          'v_max3_u32 v7, v7, v%d, v%d' % (ZR + 6, ZR + 7), 'v_max_u32 v7, v7, v8', 'v_cmp_eq_u32 vcc, -1, v7'])
    ts2(a)
    G = [V_W1 + 4 * k for k in range(16)]
    AC = V_ACC
    SEL = V_ACC + 8
    Lg = a.newlabel('gat')
    a('s_mov_b32 s%d, 0' % S_SPIN)
    a.label(Lg)
    a('s_add_u32 s%d, s%d, 1' % (S_SPIN, S_SPIN))
    a('s_cmp_gt_u32 s%d, %d' % (S_SPIN, SPIN_MAX))
    a('s_cbranch_scc1 L_end')
    a('s_mov_b32 s%d, s%d' % (S_T0, S_T3))
    for k in range(16):
        if k and k % 4 == 0:
            a('s_add_u32 s%d, s%d, 4096' % (S_T0, S_T0))
        a('buffer_load_dwordx4 %s, v%d, %s, s%d offen offset:%d sc1' % (vr(G[k]), V_L16, WSR, S_T0, (k % 4) * 1024))
    load_w_read(a, V_W0, 1)
    Z2 = V_TMP + 8
    pk_add(a, Z2, ZR, ZR + 4)
    pk_add(a, Z2 + 2, ZR + 2, ZR + 6)
    for sh in (8, 4, 2, 1):
        a('s_nop 1')
        for r in range(4):
            a('v_add_f32_dpp v%d, v%d, v%d row_ror:%d row_mask:0xf bank_mask:0xf' % (Z2 + r, Z2 + r, Z2 + r, sh))
    a('v_cvt_pk_bf16_f32 v%d, v%d, v%d' % (Z2, Z2, Z2 + 1))
    a('v_cvt_pk_bf16_f32 v%d, v%d, v%d' % (Z2 + 1, Z2 + 2, Z2 + 3))
    a('s_mov_b32 s%d, 0x00110011' % S_T0)
    a('s_mov_b32 s%d, 0x00110011' % S_T1)
    a('v_cndmask_b32_e64 v%d, 0, v%d, s[%d:%d]' % (Z2, Z2, S_T0, S_T1))
    a('v_cndmask_b32_e64 v%d, 0, v%d, s[%d:%d]' % (Z2 + 1, Z2 + 1, S_T0, S_T1))
    a('v_and_b32 v5, 15, v%d' % V_LANE)
    a('v_lshlrev_b32 v5, 4, v5')
    a('v_bfe_u32 v6, v%d, 4, 1' % V_LANE)
    a('v_lshl_add_u32 v5, v6, 9, v5')
    a('v_lshrrev_b32 v6, 5, v%d' % V_LANE)
    a('v_lshl_add_u32 v5, v6, 3, v5')
    a('s_lshl_b32 s%d, s%d, 11' % (S_T0, S_W))
    a('s_add_u32 s%d, s%d, %d' % (S_T0, S_T0, lm.pkv))
    a('v_add_u32 v5, s%d, v5' % S_T0)
    a('ds_write_b64 v5, v[%d:%d] offset:256' % (Z2, Z2 + 1))
    a('v_and_b32 v5, 7, v%d' % V_LANE)
    a('v_lshlrev_b32 v5, 5, v5')
    a('v_bfe_u32 v6, v%d, 3, 1' % V_LANE)
    a('v_lshl_add_u32 v5, v6, 9, v5')
    a('v_bfe_u32 v6, v%d, 4, 1' % V_LANE)
    a('v_lshl_add_u32 v5, v6, 3, v5')
    a('v_add_u32 v5, s%d, v5' % S_T0)
    a('v_mov_b32 v7, 0')
    a('v_mov_b32 v%d, 0x00003f80' % SEL)
    a('v_mov_b32 v%d, 0x3f800000' % (SEL + 1))
    for r in range(8): a('v_mov_b32 v%d, 0' % (AC + r))
    for k in range(16):
        a('s_waitcnt vmcnt(%d)' % (15 - k))
        g = G[k]
        a('v_max3_u32 v7, v7, v%d, v%d' % (g, g + 1))
        a('v_max3_u32 v7, v7, v%d, v%d' % (g + 2, g + 3))
        for r in range(4):
            a('v_dot2_f32_bf16 v%d, v%d, v%d, v%d' % (AC + 2 * r, g + r, SEL, AC + 2 * r))
            a('v_dot2_f32_bf16 v%d, v%d, v%d, v%d' % (AC + 2 * r + 1, g + r, SEL + 1, AC + 2 * r + 1))
    a('v_cmp_eq_u32 vcc, -1, v7')
    a('s_cbranch_vccnz %s' % Lg)
    a('s_nop 1')
    for r in range(8): a('v_mov_b32 v%d, v%d' % (AC + 16 + r, AC + r))
    a('s_nop 1')
    for r in range(8): a('v_permlane32_swap_b32 v%d, v%d' % (AC + r, AC + 16 + r))
    a('s_nop 1')
    for r in range(0, 8, 2): pk_add(a, AC + r, AC + r, AC + 16 + r)
    for r in range(4):
        a('v_cvt_pk_bf16_f32 v%d, v%d, v%d' % (AC + r, AC + 2 * r, AC + 2 * r + 1))
    a('ds_write_b64 v5, v[%d:%d]' % (AC, AC + 1))
    a('ds_write_b64 v5, v[%d:%d] offset:16' % (AC + 2, AC + 3))

def a1_pq(a, lm):
    y_red_read(a, lm.redq, 1)
    phi_pack(a, V_ACC, V_PQ)

def a1_finish(a, lm):
    a('s_lshl_b32 s%d, s%d, 1' % (S_T0, S_J))
    a('s_add_u32 s%d, s%d, s%d' % (S_T0, S_T0, S_KH))
    a('s_lshl_b32 s%d, s%d, 11' % (S_T0, S_T0))
    a('s_add_u32 s%d, s%d, %d' % (S_T0, S_T0, lm.pkv))
    a('v_add_u32 v6, s%d, v%d' % (S_T0, V_L16))
    a('ds_read_b128 %s, v6' % vr(V_XF + 4))
    a('s_waitcnt lgkmcnt(0)')
    N = V_ACC + 16
    a('v_mfma_f32_32x32x16_bf16 %s, %s, %s, 0' % (vr(N, 16), vr(V_XF + 4), vr(V_PQ)))
    a.nop(12)
    a('v_add_f32 v8, 0x%x, v%d' % (f2u(1e-6), N + 8))
    a('v_rcp_f32 v8, v8')
    a('s_nop 0')
    scale_pack(a, N, 8, V_XF + 8)
    store_blk(a, V_XF + 8)
    csignal(a)

def a1_tail(a, lm, first, qpass, ringbase):
    with role(a, 'B'):
        qpass()
        y_red_write(a, lm.redq, 1)
    with role(a, 'A'):
        kv_publish(a, lm, first)
    barrier(a)
    a1_pq(a, lm)
    with role(a, 'B'):
        ringbase()
        if first:
            colsum(a, V_W1, 9)
            make_csfrag(a, 9, V_CF2, 6)
    with role(a, 'A'):
        kv_gather(a, lm, first)
    barrier(a)
    ts2(a)
    a1_finish(a, lm)

def a1_std(a):
    lm = LM_STD
    kloop4(a, V_W1, True)
    y_correct(a, V_CF1)
    kv_red_write(a, lm.red)
    ln_stats(a, lm)
    barrier(a)
    ts2(a)
    a1_kv_owner(a, lm)
    ts2(a)
    def qpass():
        kloop(a, V_W0, 0, 16)
        y_correct(a, V_CF0)
    def ring():
        a('s_and_b32 s70, s%d, 3' % S_W)
        a('s_lshl_b32 s70, s70, 14')
        load_w_ring(a, U_WQ, V_W1, 16)
    a1_tail(a, lm, False, qpass, ring)

def p1(a):
    a.vreset()
    a('s_lshl_b32 s84, s%d, 3' % S_RB)
    a('s_add_u32 s84, s84, s%d' % S_W)
    srd(a, S_IN2, 40, 0x200000)
    srd(a, S_IN, 42, 0x180000)
    nonce_publish(a)
    VXD = [V_TMP + 16, V_TMP + 17]; VWD = V_TMP + 18
    a('v_lshrrev_b32 v5, 3, v%d' % V_LANE)
    a('v_and_b32 v6, 7, v%d' % V_LANE)
    a('v_lshrrev_b32 v7, 4, v%d' % V_LANE)
    a('v_xor_b32 v8, v6, v7')
    a('v_lshlrev_b32 v8, 4, v8')
    a('v_lshl_add_u32 v%d, v5, 10, v8' % VXD[0])
    a('v_xor_b32 v%d, 64, v%d' % (VXD[1], VXD[0]))
    a('v_lshrrev_b32 v5, 2, v%d' % V_LANE)
    a('v_mul_u32_u24 v5, 3072, v5')
    a('v_and_b32 v6, 3, v%d' % V_LANE)
    a('v_lshl_add_u32 v%d, v6, 4, v5' % VWD)
    SXG, SXL, SWG, SLO, SHI = 85, 87, 88, 89, 90
    a('s_lshl_b32 s%d, s%d, 15' % (S_T0, S_KH))
    a('s_lshl_b32 s%d, s%d, 14' % (S_T1, S_I))
    a('s_add_u32 s%d, s%d, s%d' % (SXG, S_XOFF, S_T0))
    a('s_add_u32 s%d, s%d, s%d' % (SXG, SXG, S_T1))
    a('s_lshl_b32 s%d, s%d, 9' % (S_T1, S_J))
    a('s_add_u32 s%d, s%d, s%d' % (SXG, SXG, S_T1))
    a('s_lshl_b32 s%d, s%d, 14' % (S_T1, S_J))
    a('s_add_u32 s%d, s%d, s%d' % (SXL, S_T0, S_T1))
    a('s_lshl_b32 s%d, s%d, 11' % (S_T1, S_I))
    a('s_add_u32 s%d, s%d, s%d' % (SXL, SXL, S_T1))
    a('s_mul_i32 s%d, s%d, %d' % (SWG, S_I, 256 * 3072))
    a('s_lshl_b32 s%d, s%d, 7' % (S_T0, S_CS))
    a('s_add_u32 s%d, s%d, s%d' % (SWG, SWG, S_T0))
    a('s_lshl_b32 s%d, s%d, 6' % (S_T0, S_J))
    a('s_add_u32 s%d, s%d, s%d' % (SWG, SWG, S_T0))
    a('s_lshl_b32 s94, s%d, 10' % S_KH)
    a('s_add_u32 s94, s94, s%d' % SWG)
    a('s_add_u32 s94, s94, 1024')
    a('s_and_b32 s%d, s%d, 3' % (S_T2, S_W))
    a('s_mul_i32 s%d, s%d, 12288' % (SLO, S_T2))
    a('s_add_u32 s%d, s%d, 65536' % (SLO, SLO))
    a('s_add_u32 s%d, s%d, 4096' % (SHI, SLO))
    a('s_lshl_b32 s%d, s%d, 12' % (S_T0, S_T2))
    a('s_add_u32 s%d, s%d, 114688' % (S_T0, S_T0))
    a('s_lshl_b32 s%d, s%d, 13' % (S_T1, S_T2))
    a('s_add_u32 s%d, s%d, 131072' % (S_T1, S_T1))
    a('s_cmp_eq_u32 s%d, 1' % S_KH)
    a('s_cselect_b32 s%d, s%d, s%d' % (SLO, S_T0, SLO))
    a('s_cselect_b32 s%d, s%d, s%d' % (SHI, S_T1, SHI))
    SROT = 3
    a('s_add_u32 s%d, s%d, s%d' % (SROT, S_RB, S_GRP))
    a('s_and_b32 s%d, s%d, 3' % (SROT, SROT))
    def rotg(g):
        a('s_add_u32 s%d, s%d, %d' % (S_T1, SROT, g))
        a('s_and_b32 s%d, s%d, 3' % (S_T1, S_T1))
    def dma_x(g):
        rotg(g)
        a('s_lshl_b32 s%d, s%d, 7' % (S_T1, S_T1))
        a('s_add_u32 s%d, s%d, s%d' % (S_T1, S_T1, SXG))
        for p in range(2):
            a('s_add_u32 s%d, s%d, %d' % (S_T0, S_T1, p * 8192))
            a('s_add_u32 m0, s%d, %d' % (SXL, g * 4096 + p * 1024))
            a('s_nop 0')
            a.v('x%d' % g, 'buffer_load_dwordx4 v%d, s[12:15], s%d offen lds' % (VXD[p], S_T0))
    def slot(sl): return (SLO, sl * 1024) if sl < 4 else (SHI, (sl - 4) * 1024)
    def dma_w(kt, q=False):
        sb, off = (SLO, (kt % 4) * 1024) if q else slot(kt % 12)
        rotg(kt // 4)
        a('s_mul_i32 s%d, s%d, %d' % (S_T1, S_T1, 64 * 3072))
        a('s_add_u32 s%d, s%d, s%d' % (S_T1, S_T1, SWG if q else 94))
        a('s_add_u32 s%d, s%d, %d' % (S_T0, S_T1, (kt % 4) * 16 * 3072))
        a('s_add_u32 m0, s%d, %d' % (sb, off))
        a('s_nop 0')
        a.v(('q%d' if q else 'w%d') % kt, 'buffer_load_dwordx4 v%d, s[8:11], s%d offen lds' % (VWD, S_T0))
    dma_x(0)
    for kt in range(4): dma_w(kt)
    a('s_getpc_b64 s[64:65]')
    a.label('L_pcref')
    a('s_lshr_b32 s%d, s2, 3' % S_T0)
    a('s_lshl_b32 s%d, s%d, 3' % (S_T0, S_T0))
    a('s_add_u32 s%d, s%d, s%d' % (S_T0, S_T0, S_W))
    a('s_lshl_b32 s%d, s%d, 8' % (S_T0, S_T0))
    a('s_min_u32 s%d, s%d, L_end - L_pcref - 256' % (S_T0, S_T0))
    a('v_lshlrev_b32 v5, 2, v%d' % V_LANE)
    a('v_add_u32 v5, s%d, v5' % S_T0)
    a.v('cp', 'global_load_dword v%d, v5, s[64:65]' % (V_W0 + 21))
    dma_x(1)
    for kt in range(4, 8): dma_w(kt)
    PKR = V_W0
    def side_misc():
        a('v_and_b32 v5, 31, v%d' % V_LANE)
        a('v_lshlrev_b32 v5, 10, v5')
        a('v_lshrrev_b32 v6, 5, v%d' % V_LANE)
        a('v_lshl_add_u32 v5, v6, 3, v5')
        rowcol_off(a)
        a.v('res', 'buffer_load_dwordx2 v[%d:%d], v5, s[12:15], s%d offen' % (V_RES, V_RES + 1, S_T0))
        a.v('res', 'buffer_load_dwordx2 v[%d:%d], v5, s[12:15], s%d offen offset:16' % (V_RES + 2, V_RES + 3, S_T0))
        head_addrs(a)
        a('s_lshl_b32 s%d, s%d, 9' % (S_T0, S_RB))
        a('s_add_u32 s%d, s%d, s%d' % (S_T0, S_T0, S_T3))
        a('s_lshl_b32 s%d, s%d, 6' % (S_T1, S_RB))
        a('s_add_u32 s%d, s%d, s%d' % (S_T1, S_T1, S_T4))
        a('s_cmp_eq_u32 s%d, 0' % S_KH)
        a('s_cselect_b32 s%d, s%d, 0x%x' % (S_T0, S_T0, OOB))
        a('s_cselect_b32 s%d, s%d, 0x%x' % (S_T1, S_T1, OOB))
        PO = V_W0 + 16
        for r in range(4): a('v_mov_b32 v%d, -1' % (PO + r))
        for ly in range(2):
            if ly:
                a('s_add_u32 s%d, s%d, 0x%x' % (S_T0, S_T0, LS))
                a('s_add_u32 s%d, s%d, 0x%x' % (S_T1, S_T1, LS))
            a('s_mov_b32 exec_hi, 0')
            a.v('poi', 'buffer_store_dwordx4 %s, v%d, %s, s%d offen sc1' % (vr(PO), V_L16, WSR, S_T0))
            a('s_mov_b64 exec, 15')
            a.v('poi', 'buffer_store_dwordx4 %s, v%d, %s, s%d offen sc1' % (vr(PO), V_L16, WSR, S_T1))
            a('s_mov_b64 exec, -1')
        a('v_and_b32 v5, 7, v%d' % V_LANE)
        a('v_lshlrev_b32 v5, 21, v5')
        a.v('tlb', 'buffer_load_dword v%d, v5, %s, 0 offen' % (PO + 4, WSR))
    XR = [V_TMP + 20 + q for q in range(4)]
    WR = V_TMP + 24
    a('v_and_b32 v5, 31, v%d' % V_LANE)
    a('v_bfe_u32 v6, v%d, 1, 3' % V_LANE)
    a('v_lshrrev_b32 v7, 5, v%d' % V_LANE)
    a('v_xor_b32 v6, v6, v7')
    a('s_mul_i32 s%d, s%d, 49152' % (S_T0, S_I))
    a('v_lshlrev_b32 v5, 7, v5')
    a('v_add_u32 v5, s%d, v5' % S_T0)
    XR2 = [V_TMP + 12 + q for q in range(4)]
    for q in range(4):
        a('v_xor_b32 v7, %d, v6' % (2 * q))
        a('v_lshl_add_u32 v%d, v7, 4, v5' % XR[q])
        a('v_xor_b32 v%d, 32768, v%d' % (XR2[q], XR[q]))
    a('v_lshrrev_b32 v5, 5, v%d' % V_LANE)
    a('v_lshlrev_b32 v5, 9, v5')
    a('v_bfe_u32 v6, v%d, 2, 2' % V_LANE)
    a('v_lshl_add_u32 v5, v6, 6, v5')
    a('v_bfe_u32 v6, v%d, 4, 1' % V_LANE)
    a('v_lshl_add_u32 v5, v6, 5, v5')
    a('v_and_b32 v6, 3, v%d' % V_LANE)
    a('v_lshl_add_u32 v5, v6, 3, v5')
    a('v_add_u32 v%d, s%d, v5' % (WR, SLO))
    a('v_add_u32 v%d, s%d, v5' % (WR + 1, SHI))
    FB = [V_W1 + 12 * k for k in range(4)]
    CS, SS = V_TMP + 19, V_TMP + 26
    a('v_mov_b32 v%d, 0\nv_mov_b32 v%d, 0' % (SS, SS + 1))
    a('s_lshl_b32 s95, s%d, 1' % S_KH)
    a('s_add_u32 s95, s95, s%d' % S_J)
    def rd_kt(kt, q=False):
        b = FB[kt % 4]
        sl = kt % 4 if q else kt % 12
        areg, off = (WR, sl * 1024) if sl < 4 else (WR + 1, (sl - 4) * 1024)
        a('ds_read_b64_tr_b16 v[%d:%d], v%d offset:%d' % (b + 8, b + 9, areg, off))
        a('ds_read_b64_tr_b16 v[%d:%d], v%d offset:%d' % (b + 10, b + 11, areg, off + 256))
        a('ds_read_b128 %s, v%d offset:%d' % (vr(b), XR[kt & 3], (kt >> 2) * 4096))
        a('ds_read_b128 %s, v%d offset:%d' % (vr(b + 4), XR2[kt & 3], (kt >> 2) * 4096))
    def mm_kt(kt, stats):
        b = FB[kt % 4]; first = kt == 0
        if first: a('v_mov_b32 v%d, 0' % CS)
        for q, acc in enumerate((ACC0, ACC1)):
            a('v_mfma_f32_32x32x16_bf16 %s, %s, %s, %s' % (vr(acc, 16), vr(b + 8), vr(b + 4 * q), '0' if first else vr(acc, 16)))
        for r in range(4):
            a('v_dot2_f32_bf16 v%d, v%d, v%d, v%d' % (CS, b + 8 + r, V_ONES, CS))
        if stats:
            for tile in range(2):
                L = a.newlabel('st')
                a('s_cmp_lg_u32 s95, %d' % (2 * tile + (kt & 1)))
                a('s_cbranch_scc1 %s' % L)
                for r in range(4):
                    x = b + 4 * tile + r
                    a('v_dot2_f32_bf16 v%d, v%d, v%d, v%d' % (SS, x, V_ONES, SS))
                    a('v_dot2_f32_bf16 v%d, v%d, v%d, v%d' % (SS + 1, x, x, SS + 1))
                a.label(L)
    for kt in range(17):
        if kt < 16:
            if kt % 4 == 0:
                tags = ['x%d' % (kt // 4), 'w%d' % kt]
                a.vwait(*tags)
                a('s_barrier')
                if E('TSP1'): ts(a)
            else:
                a.vwait('w%d' % kt)
            rd_kt(kt)
            if kt: a('s_waitcnt lgkmcnt(4)')
        else:
            a('s_waitcnt lgkmcnt(0)')
        if kt >= 1:
            p = kt - 1
            if p < 4: dma_w(p + 12)
            mm_kt(p, True)
        if kt == 0:
            dma_x(2); dma_w(8); dma_w(9)
        if kt == 1:
            dma_w(10); dma_w(11); dma_x(3)
        if kt == 5:
            side_misc()
            nonce_probe(a)
        if kt == 13:
            nonce_check(a)
            a('s_mov_b32 s%d, 1' % S_GPH)
            with role(a, 0):
                lsignal(a)
            with role(a, 'A'):
                hello(a)
    lms = LM(red=0, stat=106496, pkv=0, kvf=0, redq=0)
    a.nop(3)
    a('v_mov_b32 v8, v%d\nv_mov_b32 v9, v%d' % (SS, SS + 1))
    a('s_nop 1')
    a('v_permlane32_swap_b32 v%d, v8' % SS)
    a('v_permlane32_swap_b32 v%d, v9' % (SS + 1))
    a('s_nop 1')
    pk_add(a, 6, SS, 8)
    a('s_mov_b32 s%d, 0' % S_T2)
    a('s_mov_b32 s%d, -1' % S_T3)
    a('v_cndmask_b32_e64 v6, v6, 0, s[%d:%d]' % (S_T2, S_T3))
    a('v_cndmask_b32_e64 v7, v7, 0, s[%d:%d]' % (S_T2, S_T3))
    a('v_and_b32 v5, 31, v%d' % V_LANE)
    a('v_lshlrev_b32 v5, 3, v5')
    a('v_lshrrev_b32 v8, 5, v%d' % V_LANE)
    a('v_lshl_add_u32 v5, v8, 11, v5')
    a('s_lshl_b32 s%d, s%d, 10' % (S_T0, S_J))
    a('s_lshl_b32 s%d, s%d, 9' % (S_T1, S_I))
    a('s_add_u32 s%d, s%d, s%d' % (S_T0, S_T0, S_T1))
    a('s_xor_b32 s%d, s%d, s%d' % (S_T1, S_KH, S_I))
    a('s_lshl_b32 s%d, s%d, 8' % (S_T1, S_T1))
    a('s_add_u32 s%d, s%d, s%d' % (S_T0, S_T0, S_T1))
    a('s_add_u32 s%d, s%d, %d' % (S_T0, S_T0, lms.stat))
    a('v_add_u32 v5, s%d, v5' % S_T0)
    a('ds_write_b64 v5, v[6:7]')
    make_csfrag(a, CS, V_CF1, 6)
    for r in range(14, 20):
        a('v_mov_b32 v%d, 0' % r)
    barrier(a)
    tsd(a)
    lm = LM(red=65536, stat=0, pkv=98304, kvf=114688, redq=65536, wst=114688)
    mean_frags(a, lms)
    y_correct(a, V_CF1)
    kv_red_write(a, lm.red)
    ln_stats(a, lms, T=V_W0 + 24)
    p1_probe(a)
    with role(a, 'B'):
        a('s_add_u32 s%d, s%d, 32768' % (SLO, SLO))
        a('v_add_u32 v%d, 32768, v%d' % (WR, WR))
        for k in range(4): dma_w(k, True)
    barrier(a)
    if E('TSP1'): ts(a)
    a1_kv_owner(a, lm)
    ts(a)
    a('s_waitcnt vmcnt(0)')
    a.vreset(); a.vm.append('pr')
    p1_check(a)
    def qpass():
        a.vreset()
        for kt in range(17):
            if kt < 16:
                if kt >= 4: a.vwait('q%d' % kt)
                rd_kt(kt, True)
                if kt: a('s_waitcnt lgkmcnt(4)')
            else:
                a('s_waitcnt lgkmcnt(0)')
            if kt >= 1:
                p = kt - 1
                if p < 12: dma_w(p + 4, True)
                mm_kt(p, False)
        a.nop(3)
        make_csfrag(a, CS, V_CF0, 6)
        a('s_nop 1')
        y_correct(a, V_CF0)
    def ring():
        a('s_and_b32 s70, s%d, 3' % S_W)
        a('s_lshl_b32 s70, s70, 14')
        load_w_ring(a, U_WQ, V_W1, 16)
    a1_tail(a, lm, True, qpass, ring)

def resid_add(a, acc):
    for r in range(4):
        a('v_lshlrev_b32 v%d, 16, v%d' % (acc + 8 + 2 * r, V_RES + r))
        a('v_and_b32 v%d, 0xffff0000, v%d' % (acc + 9 + 2 * r, V_RES + r))
    for r in range(0, 8, 2):
        pk_add(a, acc + r, acc + r, acc + 8 + r)
    for r in range(4):
        a('v_cvt_pk_bf16_f32 v%d, v%d, v%d' % (V_RES + r, acc + 2 * r, acc + 2 * r + 1))

def final_store(a):
    srd(a, S_IN2, 56, 0x200000)
    a('s_nop 1')
    a('v_permlane32_swap_b32 v%d, v%d' % (V_RES, V_RES + 2))
    a('v_permlane32_swap_b32 v%d, v%d' % (V_RES + 1, V_RES + 3))
    a('v_and_b32 v5, 31, v%d' % V_LANE)
    a('v_lshlrev_b32 v5, 10, v5')
    a('v_lshrrev_b32 v6, 5, v%d' % V_LANE)
    a('v_lshl_add_u32 v5, v6, 4, v5')
    rowcol_off(a)
    a('buffer_store_dwordx4 %s, v5, s[12:15], s%d offen' % (vr(V_RES), S_T0))

def x_inputs(a, stats):
    cwait(a)
    ts3(a)
    dma_tile4(a, stats)
    chunk_sync(a, 0, stats)
    next_tile(a)

def w16_regs(a):
    with role(a, 3):
        a('v_lshrrev_b32 v5, 5, v%d' % V_LANE)
        a('v_lshlrev_b32 v5, 9, v5')
        a('v_bfe_u32 v6, v%d, 4, 1' % V_LANE)
        a('v_lshl_add_u32 v5, v6, 7, v5')
        a('v_bfe_u32 v6, v%d, 2, 2' % V_LANE)
        a('v_lshl_add_u32 v5, v6, 5, v5')
        a('v_and_b32 v6, 3, v%d' % V_LANE)
        a('v_lshl_add_u32 v5, v6, 3, v5')
        a('v_add_u32 v5, %d, v5' % LDS_W16)
        for st in range(16):
            a('ds_read_b64_tr_b16 v[%d:%d], v5 offset:%d' % (V_W1 + 4 * st, V_W1 + 4 * st + 1, st * 1024))
            a('ds_read_b64_tr_b16 v[%d:%d], v5 offset:%d' % (V_W1 + 4 * st + 2, V_W1 + 4 * st + 3, st * 1024 + 256))
        a('s_waitcnt lgkmcnt(0)')
        L = a.newlabel('cf2')
        a('s_cmp_lg_u32 s%d, 0' % S_LOFF)
        a('s_cbranch_scc1 %s' % L)
        colsum(a, V_W1, 9)
        make_csfrag(a, 9, V_CF2, 6)
        a.label(L)

def out_gemm(a, w16=False):
    ie = ifelse(a)
    ie.if_set(0)
    kloop4(a, V_W0, False)
    y_red_write(a, 65536, 0)
    ie.else_()
    if w16:
        dma_w16(a)
        idle4(a, False, 4)
        a('s_waitcnt vmcnt(0)')
    else:
        idle4(a, False)
    ie.end()
    barrier(a)
    ts3(a)
    y_red_read(a, 65536, 0)
    resid_add(a, V_ACC)
    ts3(a)

def b1_compute(a):
    lm = LM_STD
    a('s_add_u32 s%d, s%d, 1' % (S_GPH, S_GPH))
    P = V_ACC
    X16 = [V_XF, V_XF + 4, V_XF + 8, V_XF + 12]
    MFg, CFg = P + 8, V_CF2
    def kv16(var):
        for c in range(4):
            if c: chunk_sync(a, c, True)
            steps = [2 * c, 2 * c + 1, 8 + 2 * c, 9 + 2 * c]
            for n in range(4):
                a('ds_read_b128 %s, v6 offset:%d' % (vr(X16[n]), steps[n] * 2048))
            for n, st in enumerate(steps):
                a('s_waitcnt lgkmcnt(%d)' % (3 - n))
                cc = '0' if (c == 0 and n == 0) else vr(P)
                A_, B_ = (vr(V_W1 + 4 * st), vr(X16[n])) if var == 0 else (vr(X16[n]), vr(V_W1 + 4 * st))
                a('v_mfma_f32_16x16x32_bf16 %s, %s, %s, %s' % (vr(P), A_, B_, cc))
            if c == 1:
                a('v_and_b32 v7, 15, v%d' % V_LANE)
                a('s_lshl_b32 s%d, s%d, 4' % (S_T0, S_SLAB))
                a('v_add_u32 v7, s%d, v7' % S_T0)
                stats_read(a, lm, 7, V_TMP)
                make_mfrag(a, VM, MFg)
                a('s_nop 1')
                if var == 0: a('v_mfma_f32_16x16x32_bf16 %s, %s, %s, %s' % (vr(P), vr(CFg), vr(MFg), vr(P)))
                else: a('v_mfma_f32_16x16x32_bf16 %s, %s, %s, %s' % (vr(P), vr(MFg), vr(CFg), vr(P)))
            if c == 2:
                if var == 0:
                    for r in range(4): a('v_mov_b32 v%d, v%d' % (P + 16 + r, VR))
                else:
                    a('v_and_b32 v5, 15, v%d' % V_LANE)
                    a('v_lshlrev_b32 v5, 2, v5')
                    a('v_add_u32 v5, %d, v5' % LDS_U)
                    a('ds_write_b32 v5, v%d' % VR)
                    a('v_lshrrev_b32 v7, 4, v%d' % V_LANE)
                    a('v_lshlrev_b32 v7, 4, v7')
                    a('v_add_u32 v7, %d, v7' % LDS_U)
                    a('s_waitcnt lgkmcnt(0)')
                    a('ds_read_b128 %s, v7' % vr(P + 16))
                a('v_and_b32 v9, 15, v%d' % V_LANE)
                a('v_lshlrev_b32 v9, 4, v9')
                a('v_bfe_u32 v7, v%d, 4, 1' % V_LANE)
                a('v_lshl_add_u32 v9, v7, %d, v9' % (9 if var == 0 else 8))
                a('v_lshrrev_b32 v7, 5, v%d' % V_LANE)
                a('v_lshl_add_u32 v9, v7, 3, v9')
                if var == 0:
                    a('s_lshl_b32 s71, s%d, 11' % S_RB)
                    a('s_lshr_b32 s%d, s%d, 1' % (S_T1, S_SLAB))
                    a('s_lshl_b32 s%d, s%d, 10' % (S_T1, S_T1))
                    a('s_add_u32 s71, s71, s%d' % S_T1)
                    a('s_and_b32 s%d, s%d, 1' % (S_T1, S_SLAB))
                    a('s_lshl_b32 s%d, s%d, 8' % (S_T1, S_T1))
                    a('s_add_u32 s71, s71, s%d' % S_T1)
                    a('s_add_u32 s71, s71, 0x%x' % KF_)
                else:
                    a('s_lshl_b32 s71, s%d, 2' % S_RB)
                    a('s_add_u32 s71, s71, s%d' % S_SLAB)
                    a('s_lshl_b32 s71, s71, 9')
                    a('s_add_u32 s71, s71, 0x%x' % VF_)
                a('s_add_u32 s71, s71, s%d' % S_LOFF)
    Lb = a.newlabel('b1b'); L3 = a.newlabel('b13'); L3v = a.newlabel('b13v'); L3e = a.newlabel('b13e'); Le = a.newlabel('b1e')
    a('s_cmp_eq_u32 s%d, 1' % S_KH)
    a('s_cbranch_scc1 %s' % Lb)
    a('s_cmp_eq_u32 s%d, 3' % S_W)
    a('s_cbranch_scc1 %s' % L3)
    idle4(a, True)
    a('s_branch %s' % Le)
    a.label(Lb)
    kloop4(a, V_W1, True)
    y_correct(a, V_CF2)
    y_red_write(a, 65536, 1)
    a('s_branch %s' % Le)
    a.label(L3)
    a('v_and_b32 v6, 15, v%d' % V_LANE)
    a('v_lshlrev_b32 v6, 4, v6')
    a('v_bfe_u32 v5, v%d, 4, 1' % V_LANE)
    a('v_lshl_add_u32 v6, v5, 9, v6')
    a('v_lshrrev_b32 v5, 5, v%d' % V_LANE)
    a('v_lshl_add_u32 v6, v5, 10, v6')
    a('s_lshr_b32 s%d, s%d, 1' % (S_T0, S_SLAB))
    a('s_lshl_b32 s%d, s%d, 15' % (S_T0, S_T0))
    a('s_and_b32 s%d, s%d, 1' % (S_T1, S_SLAB))
    a('s_lshl_b32 s%d, s%d, 8' % (S_T1, S_T1))
    a('s_add_u32 s%d, s%d, s%d' % (S_T0, S_T0, S_T1))
    a('v_add_u32 v6, s%d, v6' % S_T0)
    a('s_cmp_eq_u32 s%d, 1' % S_WHICH)
    a('s_cbranch_scc1 %s' % L3v)
    kv16(0)
    a('s_branch %s' % L3e)
    a.label(L3v)
    kv16(1)
    a.label(L3e)
    a.nop(8)
    for r in range(4):
        a('v_mul_f32 v%d, v%d, v%d' % (P + r, P + r, P + 16 + r))
    a('v_cvt_pk_bf16_f32 v%d, v%d, v%d' % (P + 4, P, P + 1))
    a('v_cvt_pk_bf16_f32 v%d, v%d, v%d' % (P + 5, P + 2, P + 3))
    a('buffer_store_dwordx2 v[%d:%d], v9, %s, s71 offen sc1' % (P + 4, P + 5, WSR))
    a.label(Le)
    ln_stats(a, lm)
    barrier(a)
    with role(a, 3):
        a('s_waitcnt vmcnt(0)')
        lsignal(a)
    AQ = V_ACC
    y_red_read(a, 65536, 1)
    scale_pack(a, AQ, VR, V_XF)
    for r in range(4):
        a('v_lshlrev_b32 v%d, 16, v%d' % (AQ + 2 * r, V_XF + r))
        a('v_and_b32 v%d, 0xffff0000, v%d' % (AQ + 2 * r + 1, V_XF + r))
    for r in range(8):
        a('v_mul_f32 v%d, 0x%x, v%d' % (AQ + r, f2u(CQ), AQ + r))
    for r in range(4):
        a('v_cvt_pk_bf16_f32 v%d, v%d, v%d' % (A_Q + r, AQ + 2 * r, AQ + 2 * r + 1))

PRIO_SW = int(E('PRIO_SW', '48'))
def attn_loop(a):
    a.lreset()
    def rdK(t):
        if t < 64: a.l_('k%d' % t, 'ds_read_b128 %s, v%d offset:%d' % (vr(A_K[t % 2]), V_L16, t * 1024))
    def rdV(t):
        if t >= 64: return
        a('s_mov_b64 exec, s[%d:%d]' % (S_MASK_LO16, S_MASK_LO16 + 1))
        a.l_('v%d' % t, 'ds_read_b128 %s, v%d offset:%d' % (vr(A_V[t % 2]), A_VA, t * 1024))
        a.l_('v%d' % t, 'ds_read_b128 %s, v%d offset:%d' % (vr(A_V[t % 2] + 4), A_VA, t * 1024 + 512))
        a('s_mov_b64 exec, -1')
    def qk(t):
        a('v_mfma_f32_32x32x16_bf16 %s, %s, %s, %s' % (vr(A_S[t % 2], 16), vr(A_K[t % 2]), vr(A_Q), vr(A_BIAS, 16)))
    def pv(vb, pb, first=False):
        a('v_mfma_f32_32x32x16_bf16 %s, %s, %s, %s' % (vr(A_O, 16), vr(vb), vr(pb), '0' if first else vr(A_O, 16)))
    ex = lambda r: a('v_exp_f32 v%d, v%d' % (r, r))
    class first_pass:
        def __enter__(s_):
            s_.L = a.newlabel('fp')
            a('s_cmp_lg_u32 s%d, 0' % S_PASS)
            a('s_cbranch_scc1 %s' % s_.L)
        def __exit__(s_, *e): a.label(s_.L)
    a('v_and_b32 v%d, 15, v%d' % (A_VA, V_LANE))
    a('v_lshlrev_b32 v%d, 4, v%d' % (A_VA, A_VA))
    a('v_lshrrev_b32 v7, 5, v%d' % V_LANE)
    a('v_lshl_add_u32 v%d, v7, 8, v%d' % (A_VA, A_VA))
    a('v_add_u32 v%d, 65536, v%d' % (A_VA, A_VA))
    rdK(0); rdK(1); rdV(0)
    WD, WA = 10, 11
    a('s_lshl_b32 s70, s%d, 12' % S_W)
    a('s_add_u32 s70, s70, 131072')
    a('s_setprio 1')
    with role(a, 'B'):
        a('s_setprio 2')
    a.lwait('k0')
    qk(0)
    raw_rdaddr(a, WA, 70)
    a('s_nop 1')
    T0 = 24
    def wskip(cond_all):
        a('s_cmp_lg_u32 s%d, 0' % S_LOFF)
        a('s_cselect_b32 s%d, 0x%x, 0' % (S_T0, OOB))
        if not cond_all:
            a('s_cmp_eq_u32 s%d, 0' % S_KH)
            a('s_cselect_b32 s%d, 0, s%d' % (S_T0, S_T0))
        a('s_add_u32 s68, s68, s%d' % S_T0)
    for t in range(64):
        S = A_S[t % 2]
        cv = lambda r: a('v_cvt_pk_bf16_f32 v%d, v%d, v%d' % (A_P + r, S + 2 * r, S + 2 * r + 1))
        def xprobe():
            a('v_and_b32 v7, 7, v%d' % V_LANE)
            a('v_lshlrev_b32 v7, 7, v7')
            a('s_mov_b32 s66, 0x%x' % XFLAG)
            a('buffer_load_dwordx2 v[8:9], v7, %s, s66 offen sc1' % WSR)
        def xcheck(only_next):
            Lr = a.newlabel('xr')
            tagbase(a, 65, S_GPH)
            if only_next:
                a('s_add_u32 s%d, s%d, 1' % (S_T0, S_GRP))
                a('s_and_b32 s%d, s%d, 7' % (S_T0, S_T0))
                a('s_lshl_b32 s64, 1, s%d' % S_T0)
            else:
                a('s_mov_b32 s64, 0xff')
            chk = ['s_mov_b32 exec_lo, s64', 's_mov_b32 exec_hi, 0'] + tagcmp([8], 65, 5) + ['s_mov_b64 exec, -1']
            a('s_waitcnt vmcnt(0)')
            for c in chk: a(c)
            a('s_cbranch_vccz %s' % Lr)
            a('v_and_b32 v7, 7, v%d' % V_LANE)
            a('v_lshlrev_b32 v7, 7, v7')
            poll(a, ['buffer_load_dwordx2 v[8:9], v7, %s, s66 offen sc1' % WSR], chk, sleep=1)
            a.label(Lr)
        if t in (2, 8):
            with first_pass(): xprobe()
        if t == 4:
            with first_pass():
                xcheck(True); kv_dma(a, [1])
        if t == 10:
            with first_pass():
                xcheck(False); kv_dma(a, range(2, 8))
        if t in (7, 14, 22):
            with first_pass():
                a('s_waitcnt vmcnt(%d)' % (10 if t == 14 else 0))
                a('s_barrier')
            if t == 7: rdK(8)
        if E('TSA') and t in (0, 3, 4, 7, 15, 32, 50, 63): ts(a)
        if t == PRIO_SW:
            with role(a, 'B'):
                a('s_setprio 0')
        if t == T0:
            raw_setup(a, U_OB, U_Q, S_IN2, 68, 69, WD); wskip(False)
        if t == T0 + 16:
            raw_setup(a, U_K, U_V, S_IN2, 68, 69, WD); wskip(True)
        if t + 1 < 64:
            a.lwait('k%d' % (t + 1))
            qk(t + 1)
        if t != 6: rdK(t + 2)
        ex(S + 0); ex(S + 1); ex(S + 2); ex(S + 3); cv(0); ex(S + 4); ex(S + 5); cv(1); ex(S + 6); ex(S + 7); cv(2)
        ex(S + 8); ex(S + 9); cv(3); ex(S + 10); ex(S + 11)
        a.lwait('v%d' % t)
        pv(A_V[t % 2], A_P, t == 0)
        p = t - T0
        if 0 <= p < 32:
            if p >= 4: a.lwait('w%d' % (p - 4))
            for l in raw_dma(S_IN2, 68, 69, WD, 70, (p % 4) * 1024): a(l)
        cv(4); ex(S + 12); ex(S + 13); cv(5); ex(S + 14); ex(S + 15); cv(6)
        p = t - T0 - 2
        if 0 <= p < 32:
            a('s_waitcnt vmcnt(%d)' % min(2, 31 - p))
        else:
            a('s_nop 0')
        cv(7)
        if 0 <= p < 32:
            for l in raw_rd((V_W0 if p < 16 else V_W1) + 4 * (p % 16), WA, (p % 4) * 1024): a.l_('w%d' % p, l)
        else:
            a('s_nop 1')
        pv(A_V[t % 2] + 4, A_P + 4)
        rdV(t + 1)
    a('s_setprio 0')
    a.nop(16)

def attn_pre(a):
    a('s_mov_b32 s%d, 0x00110000' % S_T0)
    a('s_mov_b32 s%d, 0x00110000' % S_T1)
    a('v_cndmask_b32_e64 v7, 0, v%d, s[%d:%d]' % (V_ONES, S_T0, S_T1))
    for b in range(2):
        for r in range(8):
            a('v_mov_b32 v%d, v7' % (A_V[b] + r))

def kv_dma(a, slots):
    a('s_lshl_b32 s67, s%d, 10' % S_W)
    for sl in slots:
        a('s_add_u32 s%d, s%d, %d' % (S_T0, S_GRP, sl))
        a('s_and_b32 s%d, s%d, 7' % (S_T0, S_T0))
        a('s_lshl_b32 s%d, s%d, 13' % (S_T0, S_T0))
        a('s_add_u32 s%d, s%d, s67' % (S_T0, S_T0))
        a('s_add_u32 s%d, s%d, s%d' % (S_T0, S_T0, S_LOFF))
        a('s_add_u32 s%d, s%d, 0x%x' % (S_T0, S_T0, KF_))
        a('s_add_u32 m0, s67, %d' % (sl * 8192))
        a('s_add_u32 s%d, s%d, 0x10000' % (S_T1, S_T0))
        a('buffer_load_dwordx4 v%d, %s, s%d offen sc1 lds' % (V_L16, WSR, S_T0))
        a('s_add_u32 m0, s67, %d' % (65536 + sl * 8192))
        a('s_nop 0')
        a('buffer_load_dwordx4 v%d, %s, s%d offen sc1 lds' % (V_L16, WSR, S_T1))

def attn_inputs(a):
    with role(a, 0):
        lwait(a)
        L = a.newlabel('ld')
        a('s_lshr_b32 s%d, s2, 3' % S_T0)
        a('s_cmp_lg_u32 s%d, 0' % S_T0)
        a('s_cbranch_scc1 %s' % L)
        tagval(a, 6, S_GPH)
        a('s_lshl_b32 s%d, s%d, 7' % (S_T0, S_GRP))
        a('s_add_u32 s%d, s%d, 0x%x' % (S_T0, S_T0, XFLAG))
        a('v_mov_b32 v5, 0')
        a('s_mov_b64 exec, 1')
        a('buffer_store_dwordx2 v[6:7], v5, %s, s%d offen sc1' % (WSR, S_T0))
        a('s_mov_b64 exec, -1')
        a.label(L)
    barrier(a)
    ts(a)
    kv_dma(a, [0])
    a('s_waitcnt vmcnt(0)')
    a('s_barrier')

def attn_compute(a):
    a('ds_read_b128 %s, v%d' % (vr(A_K[0]), V_L16))
    a('s_waitcnt lgkmcnt(0)')
    a('v_mfma_f32_32x32x16_bf16 %s, %s, %s, 0' % (vr(A_S[0], 16), vr(A_K[0]), vr(A_Q)))
    a.nop(12)
    a('v_max3_f32 v10, v%d, v%d, v%d' % (A_S[0], A_S[0] + 1, A_S[0] + 2))
    a('v_max3_f32 v9, v%d, v%d, v%d' % (A_S[0] + 3, A_S[0] + 4, A_S[0] + 5))
    for r in range(6, 14, 4):
        a('v_max3_f32 v10, v10, v%d, v%d' % (A_S[0] + r, A_S[0] + r + 1))
        a('v_max3_f32 v9, v9, v%d, v%d' % (A_S[0] + r + 2, A_S[0] + r + 3))
    a('v_max3_f32 v10, v10, v%d, v%d' % (A_S[0] + 14, A_S[0] + 15))
    a('v_max_f32 v10, v10, v9')
    halves_sum(a, 10, 9, 'v_max_f32')
    a('v_sub_f32 v10, 0, v10')
    a('s_mov_b32 s%d, 0' % S_PASS)
    Lrun = a.newlabel('at_run'); Lok = a.newlabel('at_ok'); Lmx = a.newlabel('at_mx')
    a.label(Lrun)
    for r in range(16):
        a('v_mov_b32 v%d, v10' % (A_BIAS + r))
    a('s_nop 1')
    attn_loop(a)
    a('s_cmp_eq_u32 s%d, 1' % S_PASS)
    a('s_cbranch_scc1 %s' % Lok)
    a('v_max3_f32 v8, abs(v%d), abs(v%d), abs(v%d)' % (A_O, A_O + 1, A_O + 2))
    a('v_max3_f32 v9, abs(v%d), abs(v%d), abs(v%d)' % (A_O + 3, A_O + 4, A_O + 5))
    a('v_max3_f32 v8, abs(v%d), abs(v%d), v8' % (A_O + 6, A_O + 7))
    a('v_max_f32 v8, v8, v9')
    a('v_cmp_nle_f32 vcc, 0x%x, v%d' % (f2u(2.0 ** -89), A_O + 8))
    a('v_cmp_nge_f32 s[64:65], v%d, v%d' % (7, A_O + 8)) if False else None
    a('s_mov_b64 s[64:65], vcc')
    a('v_cmp_nge_f32 vcc, 0x%x, v%d' % (f2u(2.0 ** 90), A_O + 8))
    a('s_nop 3')
    a('s_or_b64 s[64:65], s[64:65], vcc')
    a('v_cmp_nge_f32 vcc, 0x%x, v8' % f2u(2.0 ** 126))
    a('s_nop 3')
    a('s_or_b64 s[64:65], s[64:65], vcc')
    a('s_cmp_eq_u64 s[64:65], 0')
    a('s_cbranch_scc1 %s' % Lok)
    a('s_mov_b32 s%d, 1' % S_PASS)
    a('v_mov_b32 v10, 0xff800000')
    a('v_mov_b32 v%d, v%d' % (A_KA, V_L16))
    a('s_mov_b32 s%d, 0' % S_CNT)
    a.label(Lmx)
    a('ds_read_b128 %s, v%d' % (vr(A_K[0]), A_KA))
    a('s_waitcnt lgkmcnt(0)')
    a('v_mfma_f32_32x32x16_bf16 %s, %s, %s, 0' % (vr(A_S[0], 16), vr(A_K[0]), vr(A_Q)))
    a.nop(16)
    for r in range(0, 16, 2):
        a('v_max3_f32 v10, v10, v%d, v%d' % (A_S[0] + r, A_S[0] + r + 1))
    a('v_add_u32 v%d, 1024, v%d' % (A_KA, A_KA))
    a('s_add_u32 s%d, s%d, 1' % (S_CNT, S_CNT))
    a('s_cmp_lt_u32 s%d, 64' % S_CNT)
    a('s_cbranch_scc1 %s' % Lmx)
    halves_sum(a, 10, 9, 'v_max_f32')
    a('v_sub_f32 v10, 0, v10')
    a('s_branch %s' % Lrun)
    a.label(Lok)
    a('v_rcp_f32 v8, v%d' % (A_O + 8))
    a('s_nop 0')
    scale_pack(a, A_O, 8, A_P)
    store_blk(a, A_P)
    csignal(a)

def header():
    ref = open('cdna_kernels/%s.s.ref' % NAME).read().split('\n')
    out = []
    for l in ref:
        if not l.startswith(';'): break
        if '@launch' in l: continue
        out.append(l)
    return out

def main(path):
    a = Asm()
    for h in header(): a.raw(h)
    a.raw('; @launch grid=(256,1,1) block=(512,1,1) lds=%d' % LDS_TOTAL)
    a.raw('.amdgcn_target "amdgcn-amd-amdhsa--gfx950"')
    a.raw('.text')
    name = NAME + '_kernel'
    prologue(a, name)
    if E('TSD'): a('s_mov_b32 s%d, 8' % S_TSI)
    tsd(a)
    p1(a)
    tsd(a)
    a.label('L_layer')
    x_inputs(a, False)
    ts(a)
    out_gemm(a, True)
    store_x(a)
    csignal(a)
    w16_regs(a)
    ts(a)
    x_inputs(a, True)
    ts(a)
    b1_compute(a)
    attn_pre(a)
    ts(a)
    tsd(a)
    attn_inputs(a)
    tsd(a)
    attn_compute(a)
    tsd(a)
    x_inputs(a, False)
    ts(a)
    out_gemm(a)
    a('s_cmp_lg_u32 s%d, 0' % S_LOFF)
    a('s_cbranch_scc1 L_final')
    a('s_mov_b32 s%d, 0x%x' % (S_LOFF, LS))
    store_x(a)
    csignal(a)
    ts(a)
    x_inputs(a, True)
    ts(a)
    tsd(a)
    a1_std(a)
    tsd(a)
    a('s_branch L_layer')
    a.label('L_final')
    final_store(a)
    a('s_waitcnt vmcnt(0)')
    tsd(a)
    epilogue(a, name)
    open(path, 'w').write(a.text())

if __name__ == '__main__':
    main(sys.argv[1] if len(sys.argv) > 1 else 'cdna_kernels/%s.s' % NAME)
```

```python
import struct, math, sys, os

NAME = 'interleave_layers__linear_attn_block__grouped_kv_mqa__prompt'
E = os.environ.get
TS_ON = E('TS', '0') == '1'
TS2 = TS_ON and E('TS2', '0') == '1'
DBGBUF = E('DBGBUF', '0') == '1'

T0_ = 0x1000000 if DBGBUF else 0x000000
WP = 0x400000
NT_QKV, NT_OA, NT_Q, NT_OB = 0, 48, 64, 80
WKV16 = 0x700000
STP = 0x780000
LB, LS = 0x880000, 0x140000
KF_, VF_, KMAX_ = LB, LB + 0x10000, LB + 0x20000
KVP_, ZP_ = LB + 0x28000, LB + 0x128000
CFLAG = 0xB00000
GFLAG = 0xB04000
XFLAG = 0xB05000
HFLAG = 0xB20000
TSBUF = 0xB40000
WS_BYTES = 0x10000000
OOB = 0x7FFF0000
_t = lambda n: T0_ + n * 0x200000
XF = [None, _t(1), _t(3), _t(5)]
OLIN = [_t(0), _t(4)]; OF = [_t(2), _t(6)]
KF = [KF_, KF_ + LS]; VF = [VF_, VF_ + LS]; KMAX = [KMAX_, KMAX_ + LS]; KVP = [KVP_, KVP_ + LS]; ZP = [ZP_, ZP_ + LS]

def f2u(x): return struct.unpack('<I', struct.pack('<f', x))[0]
LOG2E = math.log2(math.e)
CQ = 0.25 * LOG2E

class Asm:
    def __init__(self):
        self.l = []; self.uid = 0; self.vm = []; self.done = -1
    def __call__(self, s):
        for line in s.strip('\n').split('\n'):
            self.l.append('    ' + line.strip())
    def label(self, s): self.l.append(s + ':')
    def raw(self, s): self.l.append(s)
    def nop(self, n):
        while n > 0:
            k = min(n, 16); self('s_nop %d' % (k - 1)); n -= k
    def newlabel(self, p='L'):
        self.uid += 1; return '%s_%d' % (p, self.uid)
    def text(self): return '\n'.join(self.l) + '\n'
    def lreset(self): self.lg = []; self.ldone = -1
    def l_(self, tag, s_):
        self(s_); self.lg.append(tag)
    def lwait(self, *tags):
        idx = [i for i, t in enumerate(self.lg) if t in tags]
        if not idx or max(idx) <= self.ldone: return
        self.ldone = max(idx)
        n = len(self.lg) - 1 - max(idx)
        self('s_waitcnt lgkmcnt(%d)' % min(n, 15))
    def vreset(self): self.vm = []; self.done = -1
    def v(self, tag, s):
        self(s); self.vm.append(tag)
    def vwait(self, *tags, extra=''):
        idx = [i for i, t in enumerate(self.vm) if t in tags]
        if max(idx) <= self.done and not extra: return
        self.done = max(self.done, max(idx))
        n = len(self.vm) - 1 - max(idx)
        assert n <= 63
        self('s_waitcnt vmcnt(%d)%s' % (n, extra))

def vr(b, n=4): return 'v[%d:%d]' % (b, b + n - 1)

S_WS, S_IN, S_IN2 = 4, 8, 12
S_RB, S_CS, S_W, S_I, S_J, S_KH = 16, 17, 18, 19, 20, 21
S_BLK, S_LOFF = 22, 23
S_T0, S_T1, S_T2, S_T3, S_T4, S_T5 = 24, 25, 26, 27, 28, 29
S_MASK_LO16 = 30
S_WHICH, S_SLAB = 34, 35
S_CNT, S_PASS, S_CPH, S_GPH = 36, 37, 38, 39
S_FAST, S_SPIN = 62, 63
S_TSI, S_TOFF, S_SOFF, S_GRP = 72, 73, 74, 75
S_DBG = 76
S_WOFF, S_XOFF = 80, 81
S_TS = 82
S_NLO, S_NHI, S_XCC = 32, 33, 91
V_ONES, V_LANE, V_L16, V_XB, V_XA = 0, 1, 2, 3, 4
VM, VR = 10, 11
V_CF1, V_CF0, V_CF2 = 12, 14, 16
V_RES = 20
V_XF = 24
V_ACC = 40
V_PQ = 88
V_CFA, V_GFA, V_PCA, V_Q2 = 96, 97, 98, 99
V_TMP = 100
V_W0, V_W1 = 128, 192
A_Q, A_BIAS, A_S, A_P, A_O, A_K, A_V = 100, 24, [40, 56], 72, 80, [104, 108], [112, 120]
A_KA, A_VA = 5, 6
XBUF = [V_XF, V_XF + 8, V_TMP, V_TMP + 8]
ACC0, ACC1 = V_ACC, V_ACC + 16
V_MF = V_ACC + 32

class LM:
    def __init__(s, red, stat, pkv, kvf, redq, wst=98304): s.red, s.stat, s.pkv, s.kvf, s.redq, s.wst = red, stat, pkv, kvf, redq, wst
LM_STD = LM(red=65536, stat=131072, pkv=135168, kvf=151552, redq=65536)
LDS_U = 155648
LDS_TOTAL = 163840
WSR = 's[%d:%d]' % (S_WS, S_WS + 3)
SPIN_MAX = 200000

def srd(a, d, ptr_s, nbytes):
    a('s_mov_b32 s%d, s%d' % (d, ptr_s))
    a('s_mov_b32 s%d, s%d' % (d + 1, ptr_s + 1))
    a('s_mov_b32 s%d, 0x%x' % (d + 2, nbytes))
    a('s_mov_b32 s%d, 0x00020000' % (d + 3))

def ts(a):
    if not TS_ON: return
    L = a.newlabel('ts')
    a('s_cmp_lg_u32 s%d, %s' % (S_W, E('TSW', '0')))
    a('s_cbranch_scc1 %s' % L)
    a('s_memrealtime s[%d:%d]' % (S_TS, S_TS + 1))
    a('s_memtime s[92:93]')
    a('s_waitcnt lgkmcnt(0)')
    a('s_mov_b64 exec, 1')
    a('v_mov_b32 v8, s%d' % S_TS)
    a('v_mov_b32 v9, s%d' % S_TSI)
    a('buffer_store_dword v8, v9, %s, 0 offen' % WSR)
    a('v_mov_b32 v7, s92')
    a('buffer_store_dword v7, v9, %s, 0 offen offset:256' % WSR)
    a('s_mov_b64 exec, -1')
    a('s_add_u32 s%d, s%d, 4' % (S_TSI, S_TSI))
    a.label(L)
def ts3(a):
    if TS_ON and E('TS3'): ts(a)
def ts2(a):
    if TS2: ts(a)

class role:
    def __init__(s, a, who): s.a, s.who = a, who
    def __enter__(s):
        a = s.a; s.L = a.newlabel('role')
        if s.who == 'A': a('s_cmp_lg_u32 s%d, 0' % S_KH)
        elif s.who == 'B': a('s_cmp_lg_u32 s%d, 1' % S_KH)
        else: a('s_cmp_lg_u32 s%d, %d' % (S_W, s.who))
        a('s_cbranch_scc1 %s' % s.L)
    def __exit__(s, *e): s.a.label(s.L)

def prologue(a, name):
    a.raw('.globl %s' % name); a.raw('.p2align 8'); a.raw('.type %s,@function' % name)
    a.label(name)
    a('s_cmp_ge_u32 s2, 256')
    a('s_cbranch_scc1 L_end')
    a('s_load_dwordx16 s[40:55], s[0:1], 0')
    a('s_load_dwordx4 s[56:59], s[0:1], 64')
    a('s_load_dwordx2 s[60:61], s[0:1], 80')
    a('s_and_b32 s%d, s2, 7' % S_GRP)
    a('s_lshl_b32 s%d, s%d, 2' % (S_RB, S_GRP))
    a('s_lshr_b32 s%d, s2, 6' % S_T0)
    a('s_add_u32 s%d, s%d, s%d' % (S_RB, S_RB, S_T0))
    a('s_bfe_u32 s%d, s2, 0x30003' % S_CS)
    a('v_lshrrev_b32 v5, 6, v0')
    a('v_and_b32 v%d, 63, v0' % V_LANE)
    a('s_nop 0')
    a('v_readfirstlane_b32 s%d, v5' % S_W)
    a('v_lshlrev_b32 v%d, 4, v%d' % (V_L16, V_LANE))
    a('s_nop 3')
    a('s_and_b32 s%d, s%d, 1' % (S_I, S_W))
    a('s_bfe_u32 s%d, s%d, 0x10001' % (S_J, S_W))
    a('s_lshr_b32 s%d, s%d, 2' % (S_KH, S_W))
    a('s_lshl_b32 s%d, s%d, 1' % (S_T0, S_RB))
    a('s_add_u32 s%d, s%d, s%d' % (S_T0, S_T0, S_I))
    a('s_lshl_b32 s%d, s%d, 5' % (S_T0, S_T0))
    a('s_lshl_b32 s%d, s%d, 2' % (S_T1, S_CS))
    a('s_add_u32 s%d, s%d, s%d' % (S_T0, S_T0, S_T1))
    a('s_lshl_b32 s%d, s%d, 1' % (S_T1, S_J))
    a('s_add_u32 s%d, s%d, s%d' % (S_T0, S_T0, S_T1))
    a('s_add_u32 s%d, s%d, s%d' % (S_T0, S_T0, S_KH))
    a('s_lshl_b32 s%d, s%d, 10' % (S_BLK, S_T0))
    a('s_lshl_b32 s%d, s%d, 14' % (S_T1, S_I))
    a('s_mul_i32 s%d, s%d, 49152' % (S_T0, S_I))
    a('v_add_u32 v%d, s%d, v%d' % (V_XA, S_T0, V_L16))
    a('v_xor_b32 v%d, 32768, v%d' % (V_XB, V_XA))
    a('s_lshl_b32 s%d, s%d, 1' % (S_T0, S_CS))
    a('s_add_u32 s%d, s%d, s%d' % (S_T0, S_T0, S_J))
    a('s_lshl_b32 s%d, s%d, 6' % (S_WOFF, S_T0))
    a('s_lshl_b32 s%d, s%d, 16' % (S_XOFF, S_RB))
    a('v_mov_b32 v%d, 0x3f803f80' % V_ONES)
    a('s_mov_b32 s%d, 0x0000ffff' % S_MASK_LO16)
    a('s_mov_b32 s%d, 0x0000ffff' % (S_MASK_LO16 + 1))
    a('s_and_b32 s%d, s%d, 1' % (S_WHICH, S_CS))
    a('s_lshr_b32 s%d, s%d, 1' % (S_SLAB, S_CS))
    a('s_mov_b32 s%d, 0' % S_LOFF)
    a('s_mov_b32 s%d, 0' % S_CPH)
    a('s_mov_b32 s%d, 0' % S_GPH)
    a('s_mov_b32 s%d, 0' % S_FAST)
    a('s_mov_b32 s%d, 0x%x' % (S_TOFF, T0_))
    a('s_mov_b32 s%d, 0x%x' % (S_SOFF, STP))
    a('s_lshl_b32 s%d, s%d, 9' % (S_T0, S_RB))
    a('s_add_u32 s%d, s%d, 0x%x' % (S_T0, S_T0, CFLAG))
    a('v_lshlrev_b32 v5, 3, v%d' % V_LANE)
    a('v_add_u32 v%d, s%d, v5' % (V_PCA, S_T0))
    a('s_lshl_b32 s%d, s%d, 6' % (S_T1, S_CS))
    a('s_add_u32 s%d, s%d, s%d' % (S_T0, S_T0, S_T1))
    a('s_lshl_b32 s%d, s%d, 3' % (S_T1, S_W))
    a('s_add_u32 s%d, s%d, s%d' % (S_T0, S_T0, S_T1))
    a('v_mov_b32 v%d, s%d' % (V_CFA, S_T0))
    a('s_getreg_b32 s%d, hwreg(HW_REG_XCC_ID)' % S_XCC)
    a('s_and_b32 s%d, s%d, 15' % (S_XCC, S_XCC))
    a('s_lshl_b32 s%d, s%d, 6' % (S_T0, S_RB))
    a('s_lshl_b32 s%d, s%d, 3' % (S_T1, S_CS))
    a('s_add_u32 s%d, s%d, s%d' % (S_T0, S_T0, S_T1))
    a('s_add_u32 s%d, s%d, 0x%x' % (S_T0, S_T0, GFLAG))
    a('v_mov_b32 v%d, s%d' % (V_GFA, S_T0))
    a('s_lshl_b32 s%d, s2, 9' % S_TSI)
    a('s_add_u32 s%d, s%d, 0x%x' % (S_TSI, S_TSI, TSBUF))
    a('s_waitcnt lgkmcnt(0)')
    srd(a, S_WS, 60, WS_BYTES)
    srd(a, S_DBG, 58, 256)

def epilogue(a, name, nv=256):
    a.label('L_end')
    a('s_endpgm')
    a.raw('.section .rodata,"a"'); a.raw('.p2align 6')
    a.raw('.amdhsa_kernel %s' % name)
    a.raw('  .amdhsa_next_free_vgpr %d' % nv)
    a.raw('  .amdhsa_next_free_sgpr 96')
    a.raw('  .amdhsa_accum_offset %d' % ((nv + 3) // 4 * 4))
    a.raw('  .amdhsa_group_segment_fixed_size 0')
    a.raw('  .amdhsa_kernarg_size 88')
    a.raw('  .amdhsa_user_sgpr_count 2')
    a.raw('  .amdhsa_user_sgpr_kernarg_segment_ptr 1')
    a.raw('  .amdhsa_system_sgpr_workgroup_id_x 1')
    a.raw('  .amdhsa_float_denorm_mode_32 3')
    a.raw('.end_amdhsa_kernel')

def fast_store(a, fmts):
    L1 = a.newlabel('fs'); L2 = a.newlabel('fs')
    a('s_cmp_eq_u32 s%d, 1' % S_FAST)
    a('s_cbranch_scc1 %s' % L1)
    for f in fmts: a(f.replace('@', ' sc1'))
    a('s_branch %s' % L2)
    a.label(L1)
    for f in fmts: a(f.replace('@', ''))
    a.label(L2)

def tagval(a, v, sph, xcc=False):
    a('s_lshl_b32 s%d, s%d, 4' % (S_T0, sph))
    a('s_add_u32 s%d, s%d, s%d' % (S_T0, S_T0, S_NLO))
    if xcc: a('s_add_u32 s%d, s%d, s%d' % (S_T0, S_T0, S_XCC))
    a('v_mov_b32 v%d, s%d' % (v, S_T0))
    a('v_mov_b32 v%d, s%d' % (v + 1, S_NHI))

def tagbase(a, sdst, sph):
    a('s_lshl_b32 s%d, s%d, 4' % (sdst, sph))
    a('s_add_u32 s%d, s%d, s%d' % (sdst, sdst, S_NLO))

def tagcmp(pairs, sbase, t):
    out = []
    for n, p in enumerate(pairs):
        out.append('v_subrev_u32 v%d, s%d, v%d' % (p, sbase, p))
        out.append('v_xor_b32 v%d, s%d, v%d' % (p + 1, S_NHI, p + 1))
        out.append('v_lshrrev_b32 v%d, 12, v%d' % (p, p))
        if n == 0: out.append('v_or_b32 v%d, v%d, v%d' % (t, p, p + 1))
        else: out.append('v_or3_b32 v%d, v%d, v%d, v%d' % (t, t, p, p + 1))
    out.append('v_cmp_ne_u32 vcc, 0, v%d' % t)
    return out

def csignal(a, tag=None):
    a('s_add_u32 s%d, s%d, 1' % (S_CPH, S_CPH))
    tagval(a, 6, S_CPH, True)
    if tag is None:
        a('s_waitcnt vmcnt(0) lgkmcnt(0)')
    a('s_mov_b64 exec, 1')
    fast_store(a, ['buffer_store_dwordx2 v[6:7], v%d, %s, 0 offen@' % (V_CFA, WSR)])
    a('s_mov_b64 exec, -1')
    if tag: a.vm.append(tag)

def poll(a, load, cmp, sleep=0):
    Lp = a.newlabel('pl'); Lo = a.newlabel('po')
    a('s_mov_b32 s%d, 0' % S_SPIN)
    a.label(Lp)
    a('s_add_u32 s%d, s%d, 1' % (S_SPIN, S_SPIN))
    a('s_cmp_gt_u32 s%d, %d' % (S_SPIN, SPIN_MAX))
    a('s_cbranch_scc1 L_end')
    for l in load: a(l)
    a('s_waitcnt vmcnt(0)')
    for c in cmp: a(c)
    if sleep:
        a('s_cbranch_vccz %s' % Lo)
        a('s_sleep %d' % sleep)
        a('s_branch %s' % Lp)
        a.label(Lo)
    else:
        a('s_cbranch_vccnz %s' % Lp)

def cwait(a):
    tagbase(a, 65, S_CPH)
    poll(a, ['buffer_load_dwordx2 v[8:9], v%d, %s, 0 offen sc1' % (V_PCA, WSR)], tagcmp([8], 65, 7))

def lpoll_addr(a, v):
    a('v_and_b32 v%d, 31, v%d' % (v, V_LANE))
    a('v_lshlrev_b32 v%d, 3, v%d' % (v, v))
    a('s_lshl_b32 s66, s%d, 8' % S_GRP)
    a('s_add_u32 s66, s66, 0x%x' % GFLAG)

def lwait(a):
    tagbase(a, 65, S_GPH)
    lpoll_addr(a, 5)
    poll(a, ['buffer_load_dwordx2 v[8:9], v5, %s, s66 offen sc1' % WSR], tagcmp([8], 65, 7))

def lsignal(a):
    tagval(a, 6, S_GPH, True)
    a('s_mov_b64 exec, 1')
    fast_store(a, ['buffer_store_dwordx2 v[6:7], v%d, %s, 0 offen@' % (V_GFA, WSR)])
    a('s_mov_b64 exec, -1')

DBR = 's[%d:%d]' % (S_DBG, S_DBG + 3)
NP = 18
def nonce_publish(a):
    L = a.newlabel('np')
    a('s_cmp_lg_u32 s2, 0')
    a('s_cbranch_scc1 %s' % L)
    a('s_cmp_lg_u32 s%d, 0' % S_W)
    a('s_cbranch_scc1 %s' % L)
    a('s_memrealtime s[64:65]')
    a('s_waitcnt lgkmcnt(0)')
    a('s_lshl_b64 s[64:65], s[64:65], 12')
    a('s_or_b32 s65, s65, 0x80000000')
    a('v_mov_b32 v6, s64')
    a('v_mov_b32 v7, s65')
    a('v_mov_b32 v5, 0')
    a('s_mov_b64 exec, 1')
    a('buffer_store_dwordx2 v[6:7], v5, %s, 0 offen sc1' % DBR)
    a('s_mov_b64 exec, -1')
    a.label(L)

def nonce_probe(a):
    a('v_mov_b32 v5, 0')
    a.v('np', 'buffer_load_dwordx2 v[%d:%d], v5, %s, 0 offen sc1' % (NP, NP + 1, DBR))

def nonce_check(a):
    Lok = a.newlabel('nok')
    a.vwait('np')
    a('v_cmp_eq_u32 vcc, 0, v%d' % (NP + 1))
    a('s_cbranch_vccz %s' % Lok)
    a('v_mov_b32 v5, 0')
    poll(a, ['buffer_load_dwordx2 v[%d:%d], v5, %s, 0 offen sc1' % (NP, NP + 1, DBR)], ['v_cmp_eq_u32 vcc, 0, v%d' % (NP + 1)], sleep=2)
    a.label(Lok)
    a('v_readfirstlane_b32 s%d, v%d' % (S_NLO, NP))
    a('v_readfirstlane_b32 s%d, v%d' % (S_NHI, NP + 1))
    a('s_nop 3')

PR = V_W0 + 48
def p1_probe(a):
    lpoll_addr(a, PR + 6)
    a.v('pr', 'buffer_load_dwordx2 v[%d:%d], v%d, %s, s66 offen sc1' % (PR + 2, PR + 3, PR + 6, WSR))

def p1_check(a):
    L2 = a.newlabel('pc')
    a.vwait('pr')
    tagbase(a, 65, S_GPH)
    a('v_mov_b32 v%d, v%d' % (PR + 4, PR + 2))
    for c in tagcmp([PR + 2], 65, 7): a(c)
    a('s_cbranch_vccz %s' % L2)
    poll(a, ['buffer_load_dwordx2 v[%d:%d], v%d, %s, s66 offen sc1' % (PR + 2, PR + 3, PR + 6, WSR)],
         ['v_mov_b32 v%d, v%d' % (PR + 4, PR + 2)] + tagcmp([PR + 2], 65, 7), sleep=1)
    a.label(L2)
    a('v_and_b32 v%d, 15, v%d' % (PR + 4, PR + 4))
    a('v_cmp_ne_u32 vcc, s%d, v%d' % (S_XCC, PR + 4))
    a('s_nop 3')
    a('s_cmp_eq_u64 vcc, 0')
    a('s_cselect_b32 s%d, 1, 0' % S_FAST)
    if E('NOFAST'):
        a('s_mov_b32 s%d, 0' % S_FAST)

def next_tile(a):
    if DBGBUF: a('s_add_u32 s%d, s%d, 0x200000' % (S_TOFF, S_TOFF))
    else: a('s_xor_b32 s%d, s%d, 0x200000' % (S_TOFF, S_TOFF))

def colsum(a, vw, vcs):
    a('v_mov_b32 v%d, 0' % vcs)
    a('s_nop 1')
    for r in range(64):
        a('v_dot2_f32_bf16 v%d, v%d, v%d, v%d' % (vcs, vw + r, V_ONES, vcs))
    a.nop(3)

def rowcol_off(a):
    a('s_lshl_b32 s%d, s%d, 15' % (S_T1, S_I))
    a('s_add_u32 s%d, s%d, s%d' % (S_T0, S_XOFF, S_T1))
    a('s_lshl_b32 s%d, s%d, 7' % (S_T1, S_CS))
    a('s_add_u32 s%d, s%d, s%d' % (S_T0, S_T0, S_T1))
    a('s_lshl_b32 s%d, s%d, 6' % (S_T1, S_J))
    a('s_add_u32 s%d, s%d, s%d' % (S_T0, S_T0, S_T1))
    a('s_lshl_b32 s%d, s%d, 5' % (S_T1, S_KH))
    a('s_add_u32 s%d, s%d, s%d' % (S_T0, S_T0, S_T1))

U_Q, U_K, U_V, U_OA, U_WQ, U_OB = range(6)
UPTR = {U_Q: 42, U_K: 42, U_V: 42, U_OA: 44, U_WQ: 48, U_OB: 54}
ULD = {U_Q: 3072, U_K: 3072, U_V: 3072, U_OA: 1024, U_WQ: 1024, U_OB: 1024}
UCOL = {U_Q: 0, U_K: 1024, U_V: 2048, U_OA: 0, U_WQ: 0, U_OB: 0}
def raw_setup(a, uA, uB, R, sbase, sstep, vdma):
    def sel(d, x, y):
        if x == y: a('s_mov_b32 s%d, %s' % (d, x))
        else:
            a('s_mov_b32 s%d, %s' % (d, x))
            a('s_cmp_eq_u32 s%d, 1' % S_KH)
            a('s_cselect_b32 s%d, %s, s%d' % (d, y, d))
    sel(R, 's%d' % UPTR[uA], 's%d' % UPTR[uB])
    sel(R + 1, 's%d' % (UPTR[uA] + 1), 's%d' % (UPTR[uB] + 1))
    sel(R + 2, '0x%x' % (ULD[uA] * 512), '0x%x' % (ULD[uB] * 512))
    a('s_mov_b32 s%d, 0x00020000' % (R + 3))
    sel(sstep, str(ULD[uA]), str(ULD[uB]))
    sel(sbase, str(UCOL[uA]), str(UCOL[uB]))
    a('v_lshrrev_b32 v%d, 2, v%d' % (vdma, V_LANE))
    a('v_mul_lo_u32 v%d, v%d, s%d' % (vdma, vdma, sstep))
    a('v_and_b32 v7, 3, v%d' % V_LANE)
    a('v_lshl_add_u32 v%d, v7, 4, v%d' % (vdma, vdma))
    a('s_lshl_b32 s%d, s%d, 4' % (sstep, sstep))
    a('s_lshl_b32 s%d, s%d, 4' % (S_T0, S_I))
    a('s_mul_i32 s%d, s%d, s%d' % (S_T0, S_T0, sstep))
    a('s_add_u32 s%d, s%d, s%d' % (sbase, sbase, S_T0))
    a('s_add_u32 s%d, s%d, s%d' % (sbase, sbase, S_WOFF))

def raw_rdaddr(a, v, slds):
    a('v_lshrrev_b32 v%d, 5, v%d' % (v, V_LANE))
    a('v_lshlrev_b32 v%d, 8, v%d' % (v, v))
    a('v_bfe_u32 v7, v%d, 2, 2' % V_LANE)
    a('v_lshl_add_u32 v%d, v7, 6, v%d' % (v, v))
    a('v_bfe_u32 v7, v%d, 4, 1' % V_LANE)
    a('v_lshl_add_u32 v%d, v7, 5, v%d' % (v, v))
    a('v_and_b32 v7, 3, v%d' % V_LANE)
    a('v_lshl_add_u32 v%d, v7, 3, v%d' % (v, v))
    a('v_add_u32 v%d, s%d, v%d' % (v, slds, v))

def raw_dma(R, sbase, sstep, vdma, slds, off):
    return ['s_add_u32 m0, s%d, %d' % (slds, off), 's_nop 0',
            'buffer_load_dwordx4 v%d, s[%d:%d], s%d offen lds' % (vdma, R, R + 3, sbase),
            's_add_u32 s%d, s%d, s%d' % (sbase, sbase, sstep)]

def raw_rd(dst, va, off):
    return ['ds_read_b64_tr_b16 v[%d:%d], v%d offset:%d' % (dst, dst + 1, va, off),
            'ds_read_b64_tr_b16 v[%d:%d], v%d offset:%d' % (dst + 2, dst + 3, va, off + 512)]

RW_D, RW_A = 94, 95
def load_w_issue(a, u, lds0, half):
    if half == 0:
        raw_setup(a, u, u, S_IN2, 68, 69, RW_D)
        a('s_and_b32 s70, s%d, 3' % S_W)
        a('s_lshl_b32 s70, s70, 13')
        a('s_add_u32 s70, s70, %d' % lds0)
        raw_rdaddr(a, RW_A, 70)
    for k in range(8):
        for l in raw_dma(S_IN2, 68, 69, RW_D, 70, k * 1024): a(l)

def load_w_read(a, vbase, half):
    for k in range(8):
        for l in raw_rd(vbase + 4 * (8 * half + k), RW_A, k * 1024): a(l)
    a('s_waitcnt lgkmcnt(0)')

def load_w_sync(a, u, vbase, lds0):
    for half in range(2):
        load_w_issue(a, u, lds0, half)
        a('s_waitcnt vmcnt(0)')
        load_w_read(a, vbase, half)

def load_w_ring(a, u, vbase, nslots):
    raw_setup(a, u, u, S_IN2, 68, 69, RW_D)
    raw_rdaddr(a, RW_A, 70)
    for k in range(nslots):
        for l in raw_dma(S_IN2, 68, 69, RW_D, 70, k * 1024): a(l)
    for k in range(16):
        a('s_waitcnt vmcnt(%d)' % min(nslots - 1, 15 - k))
        for l in raw_rd(vbase + 4 * k, RW_A, (k % nslots) * 1024): a(l)
        if k + nslots < 16:
            a('s_waitcnt lgkmcnt(0)')
            for l in raw_dma(S_IN2, 68, 69, RW_D, 70, (k % nslots) * 1024): a(l)
    a('s_waitcnt lgkmcnt(0)')

LDS_W16 = 135168
def dma_w16(a):
    a('s_cmp_eq_u32 s%d, 1' % S_WHICH)
    a('s_cselect_b32 s%d, s52, s50' % S_IN2)
    a('s_cselect_b32 s%d, s53, s51' % (S_IN2 + 1))
    a('s_mov_b32 s%d, 0x4000' % (S_IN2 + 2))
    a('s_mov_b32 s%d, 0x00020000' % (S_IN2 + 3))
    a('s_and_b32 s%d, s%d, 3' % (S_T0, S_W))
    a('s_lshl_b32 s%d, s%d, 12' % (S_T0, S_T0))
    a('s_add_u32 m0, s%d, %d' % (S_T0, LDS_W16))
    a('s_nop 0')
    for k in range(4):
        a('buffer_load_dwordx4 v%d, s[%d:%d], s%d offen offset:%d lds' % (V_L16, S_IN2, S_IN2 + 3, S_T0, k * 1024))

STL = 88
def dma_tile4(a, stats):
    a('s_lshl_b32 s%d, s%d, 15' % (S_T3, S_I))
    a('s_lshl_b32 s%d, s%d, 14' % (S_T2, S_J))
    a('s_add_u32 s%d, s%d, s%d' % (S_T3, S_T3, S_T2))
    a('s_lshl_b32 s%d, s%d, 11' % (S_T2, S_KH))
    a('s_add_u32 s%d, s%d, s%d' % (S_T3, S_T3, S_T2))
    a('s_add_u32 s%d, s%d, s%d' % (S_T2, S_TOFF, S_XOFF))
    a('s_add_u32 s%d, s%d, s%d' % (S_T2, S_T2, S_T3))
    for c in range(4):
        if c:
            a('s_add_u32 s%d, s%d, 4096' % (S_T2, S_T2))
            a('s_add_u32 s%d, s%d, 4096' % (S_T3, S_T3))
        a('s_mov_b32 m0, s%d' % S_T3)
        a('s_nop 0')
        for t in range(2):
            a('buffer_load_dwordx4 v%d, %s, s%d offen offset:%d sc1 lds' % (V_L16, WSR, S_T2, t * 1024))
        if c == 0 and stats:
            stats_load_issue(a, STL)

def chunk_sync(a, c, stats, extra=0):
    n = [6 + (4 if stats else 0), 4, 2, 0][c] + extra
    a('s_waitcnt vmcnt(%d)' % n)
    if stats and c == 1:
        stats_load_finish(a, LM_STD, STL)
        a('s_waitcnt lgkmcnt(0)')
    a('s_barrier')

def idle4(a, stats, extra=0):
    for c in (1, 2, 3): chunk_sync(a, c, stats, extra)

def kloop4(a, w, stats):
    def rd(t):
        b = XBUF[t % 4]
        a('ds_read_b128 %s, v%d offset:%d' % (vr(b), V_XA, t * 1024))
        a('ds_read_b128 %s, v%d offset:%d' % (vr(b + 4), V_XB, t * 1024))
    for t in range(3): rd(t)
    for t in range(16):
        b = XBUF[t % 4]
        if t in (1, 5, 9):
            chunk_sync(a, (t + 3) // 4, stats)
        if t == 10 and stats:
            mean_issue(a, LM_STD)
        if t + 3 < 16:
            rd(t + 3)
        a('s_waitcnt lgkmcnt(%d)' % (2 * min(3, 15 - t)))
        for q, acc in enumerate((ACC0, ACC1)):
            c = '0' if t == 0 else vr(acc, 16)
            a('v_mfma_f32_32x32x16_bf16 %s, %s, %s, %s' % (vr(acc, 16), vr(w + 4 * t), vr(b + 4 * q), c))
    if stats:
        mean_finish(a)

class ifelse:
    def __init__(s, a): s.a = a; s.L1 = a.newlabel('ie'); s.L2 = a.newlabel('ie')
    def if_set(s, k):
        s.a('s_cmp_lg_u32 s%d, %d' % (S_KH, k)); s.a('s_cbranch_scc1 %s' % s.L1)
    def else_(s):
        s.a('s_branch %s' % s.L2); s.a.label(s.L1)
    def end(s): s.a.label(s.L2)

def kloop(a, w, t0, t1):
    def rd(t):
        b = XBUF[t % 4]
        a('ds_read_b128 %s, v%d offset:%d' % (vr(b), V_XA, t * 1024))
        a('ds_read_b128 %s, v%d offset:%d' % (vr(b + 4), V_XB, t * 1024))
    for t in range(t0, min(t0 + 3, t1)):
        rd(t)
    for t in range(t0, t1):
        b = XBUF[t % 4]
        if t + 3 < t1:
            rd(t + 3)
        a('s_waitcnt lgkmcnt(%d)' % (2 * min(3, t1 - 1 - t)))
        for q, acc in enumerate((ACC0, ACC1)):
            c = '0' if t == 0 else vr(acc, 16)
            a('v_mfma_f32_32x32x16_bf16 %s, %s, %s, %s' % (vr(acc, 16), vr(w + 4 * t), vr(b + 4 * q), c))

def halves_sum(a, v, tmp, op='v_add_f32'):
    a('v_mov_b32 v%d, v%d' % (tmp, v))
    a('s_nop 1')
    a('v_permlane32_swap_b32 v%d, v%d' % (v, tmp))
    a('s_nop 1')
    a('%s v%d, v%d, v%d' % (op, v, v, tmp))

def bf16r(a, v):
    a('v_cvt_pk_bf16_f32 v%d, v%d, v%d' % (v, v, v))
    a('v_and_b32 v%d, 0xffff0000, v%d' % (v, v))

def pk_add(a, d, x, y):
    a('v_pk_add_f32 v[%d:%d], v[%d:%d], v[%d:%d]' % (d, d + 1, x, x + 1, y, y + 1))

def stats_math(a, vm, vrstd):
    a('v_mul_f32 v%d, 0x%x, v%d' % (vm, f2u(1.0 / 512), vm))
    a('v_mul_f32 v%d, 0x%x, v%d' % (vrstd, f2u(1.0 / 512), vrstd))
    a('v_fma_f32 v%d, -v%d, v%d, v%d' % (vrstd, vm, vm, vrstd))
    a('v_max_f32 v%d, 0, v%d' % (vrstd, vrstd))
    bf16r(a, vrstd)
    a('v_add_f32 v%d, 0x%x, v%d' % (vrstd, f2u(1e-5), vrstd))
    bf16r(a, vrstd)
    a('v_sqrt_f32 v%d, v%d' % (vrstd, vrstd))
    a('s_nop 0')
    bf16r(a, vrstd)
    a('v_rcp_f32 v%d, v%d' % (vrstd, vrstd))
    bf16r(a, vm)

def stats_read(a, lm, vrow, T, vm=VM):
    a('v_lshlrev_b32 v%d, 3, v%d' % (vrow, vrow))
    a('v_add_u32 v%d, %d, v%d' % (vrow, lm.stat, vrow))
    for q in range(4):
        a('ds_read2st64_b64 %s, v%d offset0:%d offset1:%d' % (vr(T + 4 * q), vrow, 2 * q, 2 * q + 1))
    a('s_waitcnt lgkmcnt(0)')
    for q in range(4):
        pk_add(a, T + 4 * q, T + 4 * q, T + 4 * q + 2)
    pk_add(a, T, T, T + 4)
    pk_add(a, T + 8, T + 8, T + 12)
    pk_add(a, vm, T, T + 8)
    stats_math(a, vm, vm + 1)

def ln_stats(a, lm, T=V_TMP):
    a('v_and_b32 v5, 31, v%d' % V_LANE)
    a('s_lshl_b32 s%d, s%d, 5' % (S_T0, S_I))
    a('v_add_u32 v5, s%d, v5' % S_T0)
    stats_read(a, lm, 5, T)

def make_mfrag(a, vm, d):
    a('v_cvt_pk_bf16_f32 v%d, -v%d, -v%d' % (d, vm, vm))
    a('v_cvt_pk_bf16_f32 v%d, -v%d, -v%d' % (d + 1, vm, vm))
    a('v_mov_b32 v%d, 0' % (d + 2))
    a('v_mov_b32 v%d, 0' % (d + 3))

def mean_issue(a, lm):
    T = V_ACC + 40
    a('v_and_b32 v5, 31, v%d' % V_LANE)
    a('v_lshlrev_b32 v5, 3, v5')
    a('s_lshl_b32 s%d, s%d, 8' % (S_T0, S_I))
    a('s_add_u32 s%d, s%d, %d' % (S_T0, S_T0, lm.stat))
    a('v_add_u32 v5, s%d, v5' % S_T0)
    a('v_xor_b32 v6, 256, v5')
    for q in range(2):
        for k in range(4):
            a('ds_read2st64_b32 v[%d:%d], v%d offset0:%d offset1:%d' % (T + 8 * q + 2 * k, T + 8 * q + 2 * k + 1, 5 + q, 4 * k, 4 * k + 2))

def mean_finish(a):
    T = V_ACC + 40
    for q in range(2):
        t = T + 8 * q
        pk_add(a, t, t, t + 2)
        pk_add(a, t + 4, t + 4, t + 6)
        pk_add(a, t, t, t + 4)
        a('v_add_f32 v%d, v%d, v%d' % (t, t, t + 1))
        a('v_mul_f32 v%d, 0x%x, v%d' % (t, f2u(1.0 / 512), t))
        make_mfrag(a, t, V_MF + 4 * q)
    a('s_nop 1')

def mean_frags(a, lm):
    mean_issue(a, lm)
    a('s_waitcnt lgkmcnt(0)')
    mean_finish(a)

def stats_load_issue(a, T=V_TMP, tag=None):
    a('v_lshlrev_b32 v5, 3, v%d' % V_LANE)
    a('s_lshr_b32 s%d, s%d, 2' % (S_T0, S_XOFF))
    a('s_lshl_b32 s%d, s%d, 11' % (S_T1, S_W))
    a('s_add_u32 s%d, s%d, s%d' % (S_T0, S_T0, S_T1))
    a('s_add_u32 s%d, s%d, s%d' % (S_T0, S_T0, S_SOFF))
    for q in range(4):
        a.v(tag, 'buffer_load_dwordx2 v[%d:%d], v5, %s, s%d offen offset:%d sc1' % (T + 2 * q, T + 2 * q + 1, WSR, S_T0, q * 512))

def stats_load_finish(a, lm, T=V_TMP):
    pk_add(a, T, T, T + 2)
    pk_add(a, T + 4, T + 4, T + 6)
    pk_add(a, T, T, T + 4)
    a('s_lshl_b32 s%d, s%d, 9' % (S_T0, S_W))
    a('s_add_u32 s%d, s%d, %d' % (S_T0, S_T0, lm.stat))
    a('v_lshlrev_b32 v5, 3, v%d' % V_LANE)
    a('v_add_u32 v5, s%d, v5' % S_T0)
    a('ds_write_b64 v5, v[%d:%d]' % (T, T + 1))
    a('s_xor_b32 s%d, s%d, 0x%x' % (S_SOFF, S_SOFF, STP ^ (STP + 0x80000)))

def make_csfrag(a, vc, d, t):
    a('v_cvt_pk_bf16_f32 v%d, v%d, v%d' % (t, vc, vc))
    a('v_and_b32 v%d, 0xffff0000, v%d' % (t, t))
    a('v_sub_f32 v%d, v%d, v%d' % (t + 1, vc, t))
    a('v_cvt_pk_bf16_f32 v%d, v%d, v%d' % (d, t, t + 1))
    a('v_and_b32 v%d, 0xffff0000, v%d' % (t, d))
    a('v_sub_f32 v%d, v%d, v%d' % (t + 1, t + 1, t))
    a('v_cvt_pk_bf16_f32 v%d, v%d, 0' % (d + 1, t + 1))

def y_correct(a, cf):
    for q, acc in enumerate((ACC0, ACC1)):
        a('v_mfma_f32_32x32x16_bf16 %s, %s, %s, %s' % (vr(acc, 16), vr(cf), vr(V_MF + 4 * q), vr(acc, 16)))

def y_red_write(a, base, own):
    a('s_lshl_b32 s%d, s%d, 13' % (S_T0, S_J))
    a('s_mul_i32 s%d, s%d, 6144' % (S_T1, S_I))
    a('s_add_u32 s%d, s%d, s%d' % (S_T0, S_T0, S_T1))
    a('s_add_u32 s%d, s%d, %d' % (S_T0, S_T0, base))
    a('v_add_u32 v5, s%d, v%d' % (S_T0, V_L16))
    a('v_xor_b32 v6, 4096, v5')
    a.nop(7)
    for q, acc in enumerate((ACC0, ACC1)):
        for nh in range(2):
            if q == 0 and nh == own: continue
            a('ds_write_b128 v%d, %s offset:%d' % (5 + q, vr(acc + 8 * nh), nh * 16384))
            a('ds_write_b128 v%d, %s offset:%d' % (5 + q, vr(acc + 8 * nh + 4), nh * 16384 + 1024))

def y_red_read(a, base, own):
    d = V_ACC
    a('s_lshl_b32 s%d, s%d, 12' % (S_T0, S_W))
    a('s_add_u32 s%d, s%d, %d' % (S_T0, S_T0, base))
    a('v_add_u32 v5, s%d, v%d' % (S_T0, V_L16))
    L1 = a.newlabel('rr'); L2 = a.newlabel('rr')
    a('s_cmp_eq_u32 s%d, %d' % (S_KH, own))
    a('s_cbranch_scc1 %s' % L1)
    for k in range(4):
        a('ds_read_b128 %s, v5 offset:%d' % (vr(d + 4 * k), k * 1024))
    a('s_waitcnt lgkmcnt(0)')
    for r in range(0, 8, 2):
        pk_add(a, d + r, d + r, d + 8 + r)
    a('s_branch %s' % L2)
    a.label(L1)
    a('s_xor_b32 s%d, s%d, 1' % (S_T0, S_I))
    a('s_lshl_b32 s%d, s%d, 11' % (S_T0, S_T0))
    a('v_add_u32 v5, s%d, v5' % S_T0)
    a('ds_read_b128 %s, v5' % vr(ACC1))
    a('ds_read_b128 %s, v5 offset:1024' % vr(ACC1 + 4))
    a('s_waitcnt lgkmcnt(0)')
    for r in range(0, 8, 2):
        pk_add(a, d + r, ACC0 + 8 * own + r, ACC1 + r)
    a.label(L2)

def kv_red_write(a, base):
    a('s_xor_b32 s%d, s%d, 1' % (S_T0, S_W))
    a('s_lshl_b32 s%d, s%d, 12' % (S_T0, S_T0))
    a('s_add_u32 s%d, s%d, %d' % (S_T0, S_T0, base))
    a('v_add_u32 v5, s%d, v%d' % (S_T0, V_L16))
    a.nop(9)
    for k in range(4):
        a('ds_write_b128 v5, %s offset:%d' % (vr(ACC1 + 4 * k), k * 1024))

def barrier(a):
    a('s_waitcnt lgkmcnt(0)')
    a('s_barrier')

def phi_pack(a, acc, dst, tl=9, tmp=None, n=8):
    if tmp is None: tmp = acc + 8
    a('v_mul_f32 v%d, 0x%x, v%d' % (tl, f2u(LOG2E), VR))
    for r in range(n):
        a('v_mul_f32 v%d, v%d, v%d' % (tmp + r, acc + r, tl))
    for r in range(n):
        a('v_exp_f32_e64 v%d, v%d clamp' % (tmp + r, tmp + r))
    for r in range(n):
        a('v_fmaak_f32 v%d, v%d, v%d, 0x%x' % (acc + r, acc + r, VR, f2u(1e-6)))
        a('v_max_f32 v%d, 0x%x, v%d' % (acc + r, f2u(1e-6), acc + r))
    for r in range(0, n, 2):
        pk_add(a, acc + r, acc + r, tmp + r)
    for r in range(n // 2):
        a('v_cvt_pk_bf16_f32 v%d, v%d, v%d' % (dst + r, acc + 2 * r, acc + 2 * r + 1))

def scale_pack(a, acc, vs, dst, n=8):
    for r in range(n):
        a('v_mul_f32 v%d, v%d, v%d' % (acc + r, acc + r, vs))
    for r in range(n // 2):
        a('v_cvt_pk_bf16_f32 v%d, v%d, v%d' % (dst + r, acc + 2 * r, acc + 2 * r + 1))

def store_blk(a, v):
    a('s_add_u32 s%d, s%d, s%d' % (S_T0, S_BLK, S_TOFF))
    fast_store(a, ['buffer_store_dwordx4 %s, v%d, %s, s%d offen@' % (vr(v), V_L16, WSR, S_T0)])

def store_stats(a, tag=None):
    a('v_mov_b32 v6, 0')
    a('v_mov_b32 v7, 0')
    a('s_nop 0')
    for r in range(4):
        a('v_dot2_f32_bf16 v6, v%d, v%d, v6' % (V_RES + r, V_ONES))
        a('v_dot2_f32_bf16 v7, v%d, v%d, v7' % (V_RES + r, V_RES + r))
    a('s_bfe_u32 s%d, s%d, 0x5000a' % (S_T0, S_BLK))
    a('s_lshl_b32 s%d, s%d, 9' % (S_T0, S_T0))
    a('s_lshr_b32 s%d, s%d, 2' % (S_T1, S_XOFF))
    a('s_add_u32 s%d, s%d, s%d' % (S_T0, S_T0, S_T1))
    a('s_lshl_b32 s%d, s%d, 8' % (S_T1, S_I))
    a('s_add_u32 s%d, s%d, s%d' % (S_T0, S_T0, S_T1))
    a('s_add_u32 s%d, s%d, s%d' % (S_T0, S_T0, S_SOFF))
    a('v_mov_b32 v8, v6')
    a('v_mov_b32 v9, v7')
    a('v_lshlrev_b32 v5, 3, v%d' % V_LANE)
    a('s_nop 0')
    a('v_permlane32_swap_b32 v6, v8')
    a('v_permlane32_swap_b32 v7, v9')
    a('s_nop 1')
    a('v_pk_add_f32 v[6:7], v[6:7], v[8:9]')
    a('s_mov_b32 exec_hi, 0')
    fast_store(a, ['buffer_store_dwordx2 v[6:7], v5, %s, s%d offen@' % (WSR, S_T0)])
    a('s_mov_b32 exec_hi, -1')
    if tag: a.vm.append(tag)

def store_x(a):
    store_blk(a, V_RES)
    store_stats(a)

def a1_kv_owner(a, lm):
    a('s_lshl_b32 s%d, s%d, 12' % (S_T0, S_W))
    a('s_add_u32 s%d, s%d, %d' % (S_T0, S_T0, lm.red))
    a('v_add_u32 v5, s%d, v%d' % (S_T0, V_L16))
    for k in range(4):
        a('ds_read_b128 %s, v5 offset:%d' % (vr(ACC1 + 4 * k), k * 1024))
    a('s_lshl_b32 s%d, s%d, 12' % (S_T0, S_J))
    a('s_lshl_b32 s%d, s%d, 13' % (S_T1, S_KH))
    a('s_add_u32 s%d, s%d, s%d' % (S_T0, S_T0, S_T1))
    a('s_lshl_b32 s%d, s%d, 10' % (S_T1, S_I))
    a('s_add_u32 s%d, s%d, s%d' % (S_T0, S_T0, S_T1))
    a('s_add_u32 s%d, s%d, %d' % (S_T0, S_T0, lm.pkv))
    a('v_and_b32 v7, 31, v%d' % V_LANE)
    a('v_lshlrev_b32 v7, 5, v7')
    a('v_lshrrev_b32 v6, 5, v%d' % V_LANE)
    a('v_lshl_add_u32 v7, v6, 4, v7')
    a('v_add_u32 v7, s%d, v7' % S_T0)
    a('s_waitcnt lgkmcnt(0)')
    for r in range(0, 16, 2):
        pk_add(a, ACC0 + r, ACC0 + r, ACC1 + r)
    with role(a, 'A'):
        phi_pack(a, ACC0, V_XF, tmp=ACC1, n=16)
    with role(a, 'B'):
        scale_pack(a, ACC0, VR, V_XF, n=16)
    a('ds_write_b128 v7, %s' % vr(V_XF))
    a('ds_write_b128 v7, %s offset:2048' % vr(V_XF + 4))
    barrier(a)

def head_addrs(a):
    a('s_lshl_b32 s%d, s%d, 2' % (S_T2, S_CS))
    a('s_add_u32 s%d, s%d, s%d' % (S_T2, S_T2, S_W))
    a('s_lshl_b32 s%d, s%d, 14' % (S_T3, S_T2))
    a('s_add_u32 s%d, s%d, s%d' % (S_T3, S_T3, S_LOFF))
    a('s_add_u32 s%d, s%d, 0x%x' % (S_T3, S_T3, KVP_))
    a('s_lshl_b32 s%d, s%d, 11' % (S_T4, S_T2))
    a('s_add_u32 s%d, s%d, s%d' % (S_T4, S_T4, S_LOFF))
    a('s_add_u32 s%d, s%d, 0x%x' % (S_T4, S_T4, ZP_))
    a('s_lshl_b32 s%d, s%d, 12' % (S_T5, S_T2))
    a('s_add_u32 s%d, s%d, 0x%x' % (S_T5, S_T5, HFLAG))

def hello(a):
    head_addrs(a)
    a('s_mov_b32 s64, 1')
    tagval(a, 8, 64)
    a('s_lshl_b32 s%d, s%d, 7' % (S_T0, S_RB))
    a('s_add_u32 s%d, s%d, s%d' % (S_T0, S_T0, S_T5))
    a('v_mov_b32 v5, 0')
    a('s_mov_b64 exec, 1')
    a('buffer_store_dwordx2 v[8:9], v5, %s, s%d offen sc1' % (WSR, S_T0))
    a('s_mov_b64 exec, -1')

def kv_publish(a, lm, first):
    PA, PB, D, D2, ON = V_XF, V_XF + 8, V_ACC, V_ACC + 4, V_ACC + 8
    a('v_lshrrev_b32 v5, 4, v%d' % V_LANE)
    a('v_lshlrev_b32 v5, 8, v5')
    a('v_bfe_u32 v6, v%d, 2, 2' % V_LANE)
    a('v_lshl_add_u32 v5, v6, 5, v5')
    a('v_and_b32 v6, 1, v%d' % V_LANE)
    a('v_lshl_add_u32 v5, v6, 4, v5')
    a('v_bfe_u32 v6, v%d, 1, 1' % V_LANE)
    a('v_lshl_add_u32 v5, v6, 3, v5')
    a('s_lshl_b32 s%d, s%d, 11' % (S_T0, S_W))
    a('s_add_u32 s%d, s%d, %d' % (S_T0, S_T0, lm.pkv))
    a('v_add_u32 v5, s%d, v5' % S_T0)
    for sl in range(2):
        for u in range(2):
            a('ds_read_b64_tr_b16 v[%d:%d], v5 offset:%d' % (PA + 4 * sl + 2 * u, PA + 4 * sl + 2 * u + 1, sl * 1024 + u * 128))
            a('ds_read_b64_tr_b16 v[%d:%d], v5 offset:%d' % (PB + 4 * sl + 2 * u, PB + 4 * sl + 2 * u + 1, 8192 + sl * 1024 + u * 128))
    for r in range(4):
        a('v_mov_b32 v%d, v%d' % (ON + r, V_ONES))
    head_addrs(a)
    a('s_waitcnt lgkmcnt(0)')
    a('v_mfma_f32_16x16x32_bf16 %s, %s, %s, 0' % (vr(D), vr(PA), vr(PB)))
    a('v_mfma_f32_16x16x32_bf16 %s, %s, %s, 0' % (vr(D2), vr(PA), vr(ON)))
    a('v_mfma_f32_16x16x32_bf16 %s, %s, %s, %s' % (vr(D), vr(PA + 4), vr(PB + 4), vr(D)))
    a('v_mfma_f32_16x16x32_bf16 %s, %s, %s, %s' % (vr(D2), vr(PA + 4), vr(ON), vr(D2)))
    a('s_lshl_b32 s%d, s%d, 9' % (S_T0, S_RB))
    a('s_add_u32 s%d, s%d, s%d' % (S_T0, S_T0, S_T3))
    a('s_lshl_b32 s%d, s%d, 6' % (S_T1, S_RB))
    a('s_add_u32 s%d, s%d, s%d' % (S_T1, S_T1, S_T4))
    a('v_and_b32 v6, 48, v%d' % V_LANE)
    a('v_lshlrev_b32 v5, 3, v%d' % V_LANE)
    a('s_nop 2')
    a('v_cvt_pk_bf16_f32 v%d, v%d, v%d' % (D, D, D + 1))
    a('v_cvt_pk_bf16_f32 v%d, v%d, v%d' % (D + 1, D + 2, D + 3))
    for r in (0, 1, 4, 5, 6, 7):
        a('v_min_u32 v%d, -2, v%d' % (D + r, D + r))
    a('buffer_store_dwordx2 v[%d:%d], v5, %s, s%d offen sc1' % (D, D + 1, WSR, S_T0))
    a('s_mov_b32 exec_lo, 0x00010001')
    a('s_mov_b32 exec_hi, 0x00010001')
    a('buffer_store_dwordx4 %s, v6, %s, s%d offen sc1' % (vr(D2), WSR, S_T1))
    a('s_mov_b64 exec, -1')
    ts2(a)
    if first:
        a('s_mov_b32 s64, 1')
        tagbase(a, 65, 64)
        a('v_and_b32 v5, 31, v%d' % V_LANE)
        a('v_lshlrev_b32 v5, 7, v5')
        poll(a, ['buffer_load_dwordx2 v[8:9], v5, %s, s%d offen sc1' % (WSR, S_T5)], tagcmp([8], 65, 7))
    else:
        load_w_issue(a, U_OA, lm.wst, 0)
        a('s_waitcnt vmcnt(0)')
        load_w_read(a, V_W0, 0)
        load_w_issue(a, U_OA, lm.wst, 1)

def kv_gather(a, lm, first):
    if first:
        load_w_issue(a, U_OA, lm.wst, 0)
    head_addrs(a)
    ZR = V_TMP
    a('v_and_b32 v6, 48, v%d' % V_LANE)
    a('v_and_b32 v5, 15, v%d' % V_LANE)
    a('v_lshl_add_u32 v5, v5, 6, v6')
    poll(a, ['buffer_load_dwordx4 %s, v5, %s, s%d offen sc1' % (vr(ZR), WSR, S_T4),
             'buffer_load_dwordx4 %s, v5, %s, s%d offen offset:1024 sc1' % (vr(ZR + 4), WSR, S_T4)],
         ['v_max3_u32 v7, v%d, v%d, v%d' % (ZR, ZR + 1, ZR + 2), 'v_max3_u32 v8, v%d, v%d, v%d' % (ZR + 3, ZR + 4, ZR + 5),
          'v_max3_u32 v7, v7, v%d, v%d' % (ZR + 6, ZR + 7), 'v_max_u32 v7, v7, v8', 'v_cmp_eq_u32 vcc, -1, v7'])
    ts2(a)
    G = [V_W1 + 4 * k for k in range(16)]
    AC = V_ACC
    SEL = V_ACC + 8
    Lg = a.newlabel('gat')
    a('s_mov_b32 s%d, 0' % S_SPIN)
    a.label(Lg)
    a('s_add_u32 s%d, s%d, 1' % (S_SPIN, S_SPIN))
    a('s_cmp_gt_u32 s%d, %d' % (S_SPIN, SPIN_MAX))
    a('s_cbranch_scc1 L_end')
    a('s_mov_b32 s%d, s%d' % (S_T0, S_T3))
    for k in range(16):
        if k and k % 4 == 0:
            a('s_add_u32 s%d, s%d, 4096' % (S_T0, S_T0))
        a('buffer_load_dwordx4 %s, v%d, %s, s%d offen offset:%d sc1' % (vr(G[k]), V_L16, WSR, S_T0, (k % 4) * 1024))
    nx = 0
    if first:
        Ls = a.newlabel('gs')
        a('s_cmp_lg_u32 s%d, 1' % S_SPIN)
        a('s_cbranch_scc1 %s' % Ls)
        load_w_read(a, V_W0, 0)
        load_w_issue(a, U_OA, lm.wst, 1)
        a('s_branch %s_j' % Ls)
        a.label(Ls)
        a('s_waitcnt vmcnt(0)')
        a.label(Ls + '_j')
        nx = 8
    else:
        load_w_read(a, V_W0, 1)
    Z2 = V_TMP + 8
    pk_add(a, Z2, ZR, ZR + 4)
    pk_add(a, Z2 + 2, ZR + 2, ZR + 6)
    for sh in (8, 4, 2, 1):
        a('s_nop 1')
        for r in range(4):
            a('v_add_f32_dpp v%d, v%d, v%d row_ror:%d row_mask:0xf bank_mask:0xf' % (Z2 + r, Z2 + r, Z2 + r, sh))
    a('v_cvt_pk_bf16_f32 v%d, v%d, v%d' % (Z2, Z2, Z2 + 1))
    a('v_cvt_pk_bf16_f32 v%d, v%d, v%d' % (Z2 + 1, Z2 + 2, Z2 + 3))
    a('s_mov_b32 s%d, 0x00110011' % S_T0)
    a('s_mov_b32 s%d, 0x00110011' % S_T1)
    a('v_cndmask_b32_e64 v%d, 0, v%d, s[%d:%d]' % (Z2, Z2, S_T0, S_T1))
    a('v_cndmask_b32_e64 v%d, 0, v%d, s[%d:%d]' % (Z2 + 1, Z2 + 1, S_T0, S_T1))
    a('v_and_b32 v5, 15, v%d' % V_LANE)
    a('v_lshlrev_b32 v5, 4, v5')
    a('v_bfe_u32 v6, v%d, 4, 1' % V_LANE)
    a('v_lshl_add_u32 v5, v6, 9, v5')
    a('v_lshrrev_b32 v6, 5, v%d' % V_LANE)
    a('v_lshl_add_u32 v5, v6, 3, v5')
    a('s_lshl_b32 s%d, s%d, 11' % (S_T0, S_W))
    a('s_add_u32 s%d, s%d, %d' % (S_T0, S_T0, lm.pkv))
    a('v_add_u32 v5, s%d, v5' % S_T0)
    a('ds_write_b64 v5, v[%d:%d] offset:256' % (Z2, Z2 + 1))
    a('v_and_b32 v5, 7, v%d' % V_LANE)
    a('v_lshlrev_b32 v5, 5, v5')
    a('v_bfe_u32 v6, v%d, 3, 1' % V_LANE)
    a('v_lshl_add_u32 v5, v6, 9, v5')
    a('v_bfe_u32 v6, v%d, 4, 1' % V_LANE)
    a('v_lshl_add_u32 v5, v6, 3, v5')
    a('v_add_u32 v5, s%d, v5' % S_T0)
    a('v_mov_b32 v7, 0')
    a('v_mov_b32 v%d, 0x00003f80' % SEL)
    a('v_mov_b32 v%d, 0x3f800000' % (SEL + 1))
    for r in range(8): a('v_mov_b32 v%d, 0' % (AC + r))
    for k in range(16):
        a('s_waitcnt vmcnt(%d)' % (15 - k + nx))
        g = G[k]
        a('v_max3_u32 v7, v7, v%d, v%d' % (g, g + 1))
        a('v_max3_u32 v7, v7, v%d, v%d' % (g + 2, g + 3))
        for r in range(4):
            a('v_dot2_f32_bf16 v%d, v%d, v%d, v%d' % (AC + 2 * r, g + r, SEL, AC + 2 * r))
            a('v_dot2_f32_bf16 v%d, v%d, v%d, v%d' % (AC + 2 * r + 1, g + r, SEL + 1, AC + 2 * r + 1))
    a('v_cmp_eq_u32 vcc, -1, v7')
    a('s_cbranch_vccnz %s' % Lg)
    a('s_nop 1')
    for r in range(8): a('v_mov_b32 v%d, v%d' % (AC + 16 + r, AC + r))
    a('s_nop 1')
    for r in range(8): a('v_permlane32_swap_b32 v%d, v%d' % (AC + r, AC + 16 + r))
    a('s_nop 1')
    for r in range(0, 8, 2): pk_add(a, AC + r, AC + r, AC + 16 + r)
    for r in range(4):
        a('v_cvt_pk_bf16_f32 v%d, v%d, v%d' % (AC + r, AC + 2 * r, AC + 2 * r + 1))
    a('ds_write_b64 v5, v[%d:%d]' % (AC, AC + 1))
    a('ds_write_b64 v5, v[%d:%d] offset:16' % (AC + 2, AC + 3))
    if first:
        a('s_waitcnt vmcnt(0)')
        load_w_read(a, V_W0, 1)

def a1_pq(a, lm):
    y_red_read(a, lm.redq, 1)
    phi_pack(a, V_ACC, V_PQ)

def a1_finish(a, lm):
    a('s_lshl_b32 s%d, s%d, 1' % (S_T0, S_J))
    a('s_add_u32 s%d, s%d, s%d' % (S_T0, S_T0, S_KH))
    a('s_lshl_b32 s%d, s%d, 11' % (S_T0, S_T0))
    a('s_add_u32 s%d, s%d, %d' % (S_T0, S_T0, lm.pkv))
    a('v_add_u32 v6, s%d, v%d' % (S_T0, V_L16))
    a('ds_read_b128 %s, v6' % vr(V_XF + 4))
    a('s_waitcnt lgkmcnt(0)')
    N = V_ACC + 16
    a('v_mfma_f32_32x32x16_bf16 %s, %s, %s, 0' % (vr(N, 16), vr(V_XF + 4), vr(V_PQ)))
    a.nop(12)
    a('v_add_f32 v8, 0x%x, v%d' % (f2u(1e-6), N + 8))
    a('v_rcp_f32 v8, v8')
    a('s_nop 0')
    scale_pack(a, N, 8, V_XF + 8)
    store_blk(a, V_XF + 8)
    csignal(a)

def a1_tail(a, lm, first, qpass, ringbase):
    with role(a, 'B'):
        qpass()
        y_red_write(a, lm.redq, 1)
    with role(a, 'A'):
        kv_publish(a, lm, first)
    barrier(a)
    a1_pq(a, lm)
    with role(a, 'B'):
        ringbase()
        if first:
            colsum(a, V_W1, 9)
            make_csfrag(a, 9, V_CF2, 6)
    with role(a, 'A'):
        kv_gather(a, lm, first)
    barrier(a)
    ts2(a)
    a1_finish(a, lm)

def a1_std(a):
    lm = LM_STD
    kloop4(a, V_W1, True)
    y_correct(a, V_CF1)
    kv_red_write(a, lm.red)
    ln_stats(a, lm)
    barrier(a)
    ts2(a)
    a1_kv_owner(a, lm)
    ts2(a)
    def qpass():
        kloop(a, V_W0, 0, 16)
        y_correct(a, V_CF0)
    def ring():
        a('s_and_b32 s70, s%d, 3' % S_W)
        a('s_lshl_b32 s70, s70, 14')
        load_w_ring(a, U_WQ, V_W1, 16)
    a1_tail(a, lm, False, qpass, ring)

def p1(a):
    a.vreset()
    srd(a, S_IN2, 40, 0x200000)
    srd(a, S_IN, 42, 0x180000)
    a('s_lshr_b32 s84, s2, 3')
    a('s_lshl_b32 s84, s84, 3')
    a('s_add_u32 s84, s84, s%d' % S_W)
    a('v_lshlrev_b32 v%d, 7, v%d' % (V_W0 + 23, V_LANE))
    def warm2():
        R = 68
        a('s_lshr_b32 s%d, s84, 6' % S_T1)
        a('s_mov_b32 s%d, s44\ns_mov_b32 s%d, s45\ns_mov_b32 s%d, 0x80000\ns_mov_b32 s%d, 0x00020000' % (R, R + 1, R + 2, R + 3))
        for (k, p) in ((1, 48), (2, 54), (3, 50)):
            a('s_cmp_eq_u32 s%d, %d' % (S_T1, k))
            a('s_cselect_b32 s%d, s%d, s%d' % (R, p, R))
            a('s_cselect_b32 s%d, s%d, s%d' % (R + 1, p + 1, R + 1))
        a('s_cselect_b32 s%d, 0x4000, s%d' % (R + 2, R + 2))
        a('s_cmp_ge_u32 s84, 224')
        a('s_cselect_b32 s%d, s52, s%d' % (R, R))
        a('s_cselect_b32 s%d, s53, s%d' % (R + 1, R + 1))
        a('s_cselect_b32 s%d, 31, 63' % S_T1)
        a('s_and_b32 s%d, s84, s%d' % (S_T0, S_T1))
        a('s_lshl_b32 s%d, s%d, 13' % (S_T0, S_T0))
        a.v('wu', 'buffer_load_dword v%d, v%d, s[%d:%d], s%d offen' % (V_W0 + 22, V_W0 + 23, R, R + 3, S_T0))
    nonce_publish(a)
    VXD = [V_TMP + 16, V_TMP + 17]; VWD = V_TMP + 18
    a('v_lshrrev_b32 v5, 3, v%d' % V_LANE)
    a('v_and_b32 v6, 7, v%d' % V_LANE)
    a('v_lshrrev_b32 v7, 4, v%d' % V_LANE)
    a('v_xor_b32 v8, v6, v7')
    a('v_lshlrev_b32 v8, 4, v8')
    a('v_lshl_add_u32 v%d, v5, 10, v8' % VXD[0])
    a('v_xor_b32 v%d, 64, v%d' % (VXD[1], VXD[0]))
    a('v_lshrrev_b32 v5, 2, v%d' % V_LANE)
    a('v_mul_u32_u24 v5, 3072, v5')
    a('v_and_b32 v6, 3, v%d' % V_LANE)
    a('v_lshl_add_u32 v%d, v6, 4, v5' % VWD)
    SXG, SXL, SWG, SLO, SHI = 85, 87, 88, 89, 90
    a('s_lshl_b32 s%d, s%d, 15' % (S_T0, S_KH))
    a('s_lshl_b32 s%d, s%d, 14' % (S_T1, S_I))
    a('s_add_u32 s%d, s%d, s%d' % (SXG, S_XOFF, S_T0))
    a('s_add_u32 s%d, s%d, s%d' % (SXG, SXG, S_T1))
    a('s_lshl_b32 s%d, s%d, 9' % (S_T1, S_J))
    a('s_add_u32 s%d, s%d, s%d' % (SXG, SXG, S_T1))
    a('s_lshl_b32 s%d, s%d, 14' % (S_T1, S_J))
    a('s_add_u32 s%d, s%d, s%d' % (SXL, S_T0, S_T1))
    a('s_lshl_b32 s%d, s%d, 11' % (S_T1, S_I))
    a('s_add_u32 s%d, s%d, s%d' % (SXL, SXL, S_T1))
    a('s_mul_i32 s%d, s%d, %d' % (SWG, S_I, 256 * 3072))
    a('s_lshl_b32 s%d, s%d, 7' % (S_T0, S_CS))
    a('s_add_u32 s%d, s%d, s%d' % (SWG, SWG, S_T0))
    a('s_lshl_b32 s%d, s%d, 6' % (S_T0, S_J))
    a('s_add_u32 s%d, s%d, s%d' % (SWG, SWG, S_T0))
    a('s_lshl_b32 s94, s%d, 10' % S_KH)
    a('s_add_u32 s94, s94, s%d' % SWG)
    a('s_add_u32 s94, s94, 1024')
    a('s_and_b32 s%d, s%d, 3' % (S_T2, S_W))
    a('s_mul_i32 s%d, s%d, 12288' % (SLO, S_T2))
    a('s_add_u32 s%d, s%d, 65536' % (SLO, SLO))
    a('s_add_u32 s%d, s%d, 4096' % (SHI, SLO))
    a('s_lshl_b32 s%d, s%d, 12' % (S_T0, S_T2))
    a('s_add_u32 s%d, s%d, 114688' % (S_T0, S_T0))
    a('s_lshl_b32 s%d, s%d, 13' % (S_T1, S_T2))
    a('s_add_u32 s%d, s%d, 131072' % (S_T1, S_T1))
    a('s_cmp_eq_u32 s%d, 1' % S_KH)
    a('s_cselect_b32 s%d, s%d, s%d' % (SLO, S_T0, SLO))
    a('s_cselect_b32 s%d, s%d, s%d' % (SHI, S_T1, SHI))
    SROT = 3
    a('s_add_u32 s%d, s%d, s%d' % (SROT, S_RB, S_GRP))
    a('s_and_b32 s%d, s%d, 3' % (SROT, SROT))
    def rotg(g):
        a('s_add_u32 s%d, s%d, %d' % (S_T1, SROT, g))
        a('s_and_b32 s%d, s%d, 3' % (S_T1, S_T1))
    def dma_x(g):
        rotg(g)
        a('s_lshl_b32 s%d, s%d, 7' % (S_T1, S_T1))
        a('s_add_u32 s%d, s%d, s%d' % (S_T1, S_T1, SXG))
        for p in range(2):
            a('s_add_u32 s%d, s%d, %d' % (S_T0, S_T1, p * 8192))
            a('s_add_u32 m0, s%d, %d' % (SXL, g * 4096 + p * 1024))
            a('s_nop 0')
            a.v('x%d' % g, 'buffer_load_dwordx4 v%d, s[12:15], s%d offen lds' % (VXD[p], S_T0))
    def slot(sl): return (SLO, sl * 1024) if sl < 4 else (SHI, (sl - 4) * 1024)
    def dma_w(kt, q=False):
        sb, off = slot(4 + kt % 8) if q else slot(kt % 12)
        rotg(kt // 4)
        a('s_mul_i32 s%d, s%d, %d' % (S_T1, S_T1, 64 * 3072))
        a('s_add_u32 s%d, s%d, s%d' % (S_T1, S_T1, SWG if q else 94))
        a('s_add_u32 s%d, s%d, %d' % (S_T0, S_T1, (kt % 4) * 16 * 3072))
        a('s_add_u32 m0, s%d, %d' % (sb, off))
        a('s_nop 0')
        a.v(('q%d' if q else 'w%d') % kt, 'buffer_load_dwordx4 v%d, s[8:11], s%d offen lds' % (VWD, S_T0))
    dma_x(0)
    for kt in range(4): dma_w(kt)
    a('s_getpc_b64 s[64:65]')
    a.label('L_pcref')
    a('s_lshr_b32 s%d, s2, 3' % S_T0)
    a('s_lshl_b32 s%d, s%d, 3' % (S_T0, S_T0))
    a('s_add_u32 s%d, s%d, s%d' % (S_T0, S_T0, S_W))
    a('s_lshl_b32 s%d, s%d, 8' % (S_T0, S_T0))
    a('s_min_u32 s%d, s%d, L_end - L_pcref - 256' % (S_T0, S_T0))
    a('v_lshlrev_b32 v5, 2, v%d' % V_LANE)
    a('v_add_u32 v5, s%d, v5' % S_T0)
    a.v('cp', 'global_load_dword v%d, v5, s[64:65]' % (V_W0 + 21))
    dma_x(1)
    for kt in range(4, 8): dma_w(kt)
    PKR = V_W0
    def side_misc():
        a('v_and_b32 v5, 31, v%d' % V_LANE)
        a('v_lshlrev_b32 v5, 10, v5')
        a('v_lshrrev_b32 v6, 5, v%d' % V_LANE)
        a('v_lshl_add_u32 v5, v6, 3, v5')
        rowcol_off(a)
        a.v('res', 'buffer_load_dwordx2 v[%d:%d], v5, s[12:15], s%d offen' % (V_RES, V_RES + 1, S_T0))
        a.v('res', 'buffer_load_dwordx2 v[%d:%d], v5, s[12:15], s%d offen offset:16' % (V_RES + 2, V_RES + 3, S_T0))
        head_addrs(a)
        a('s_lshl_b32 s%d, s%d, 9' % (S_T0, S_RB))
        a('s_add_u32 s%d, s%d, s%d' % (S_T0, S_T0, S_T3))
        a('s_lshl_b32 s%d, s%d, 6' % (S_T1, S_RB))
        a('s_add_u32 s%d, s%d, s%d' % (S_T1, S_T1, S_T4))
        a('s_cmp_eq_u32 s%d, 0' % S_KH)
        a('s_cselect_b32 s%d, s%d, 0x%x' % (S_T0, S_T0, OOB))
        a('s_cselect_b32 s%d, s%d, 0x%x' % (S_T1, S_T1, OOB))
        PO = V_W0 + 16
        for r in range(4): a('v_mov_b32 v%d, -1' % (PO + r))
        for ly in range(2):
            if ly:
                a('s_add_u32 s%d, s%d, 0x%x' % (S_T0, S_T0, LS))
                a('s_add_u32 s%d, s%d, 0x%x' % (S_T1, S_T1, LS))
            a('s_mov_b32 exec_hi, 0')
            a.v('poi', 'buffer_store_dwordx4 %s, v%d, %s, s%d offen sc1' % (vr(PO), V_L16, WSR, S_T0))
            a('s_mov_b64 exec, 15')
            a.v('poi', 'buffer_store_dwordx4 %s, v%d, %s, s%d offen sc1' % (vr(PO), V_L16, WSR, S_T1))
            a('s_mov_b64 exec, -1')
        a('v_and_b32 v5, 7, v%d' % V_LANE)
        a('v_lshlrev_b32 v5, 21, v5')
        a.v('tlb', 'buffer_load_dword v%d, v5, %s, 0 offen' % (PO + 4, WSR))
    XR = [V_TMP + 20 + q for q in range(4)]
    WR = V_TMP + 24
    a('v_and_b32 v5, 31, v%d' % V_LANE)
    a('v_bfe_u32 v6, v%d, 1, 3' % V_LANE)
    a('v_lshrrev_b32 v7, 5, v%d' % V_LANE)
    a('v_xor_b32 v6, v6, v7')
    a('s_mul_i32 s%d, s%d, 49152' % (S_T0, S_I))
    a('v_lshlrev_b32 v5, 7, v5')
    a('v_add_u32 v5, s%d, v5' % S_T0)
    XR2 = [V_TMP + 12 + q for q in range(4)]
    for q in range(4):
        a('v_xor_b32 v7, %d, v6' % (2 * q))
        a('v_lshl_add_u32 v%d, v7, 4, v5' % XR[q])
        a('v_xor_b32 v%d, 32768, v%d' % (XR2[q], XR[q]))
    a('v_lshrrev_b32 v5, 5, v%d' % V_LANE)
    a('v_lshlrev_b32 v5, 9, v5')
    a('v_bfe_u32 v6, v%d, 2, 2' % V_LANE)
    a('v_lshl_add_u32 v5, v6, 6, v5')
    a('v_bfe_u32 v6, v%d, 4, 1' % V_LANE)
    a('v_lshl_add_u32 v5, v6, 5, v5')
    a('v_and_b32 v6, 3, v%d' % V_LANE)
    a('v_lshl_add_u32 v5, v6, 3, v5')
    a('v_add_u32 v%d, s%d, v5' % (WR, SLO))
    a('v_add_u32 v%d, s%d, v5' % (WR + 1, SHI))
    FB = [V_W1 + 12 * k for k in range(4)]
    CS, SS = V_TMP + 19, V_TMP + 26
    a('v_mov_b32 v%d, 0\nv_mov_b32 v%d, 0' % (SS, SS + 1))
    a('s_lshl_b32 s95, s%d, 1' % S_KH)
    a('s_add_u32 s95, s95, s%d' % S_J)
    def rd_kt(kt, q=False):
        b = FB[kt % 4]
        sl = 4 + kt % 8 if q else kt % 12
        areg, off = (WR, sl * 1024) if sl < 4 else (WR + 1, (sl - 4) * 1024)
        a('ds_read_b64_tr_b16 v[%d:%d], v%d offset:%d' % (b + 8, b + 9, areg, off))
        a('ds_read_b64_tr_b16 v[%d:%d], v%d offset:%d' % (b + 10, b + 11, areg, off + 256))
        a('ds_read_b128 %s, v%d offset:%d' % (vr(b), XR[kt & 3], (kt >> 2) * 4096))
        a('ds_read_b128 %s, v%d offset:%d' % (vr(b + 4), XR2[kt & 3], (kt >> 2) * 4096))
    def mm_kt(kt, stats):
        b = FB[kt % 4]; first = kt == 0
        if first: a('v_mov_b32 v%d, 0' % CS)
        for q, acc in enumerate((ACC0, ACC1)):
            a('v_mfma_f32_32x32x16_bf16 %s, %s, %s, %s' % (vr(acc, 16), vr(b + 8), vr(b + 4 * q), '0' if first else vr(acc, 16)))
        for r in range(4):
            a('v_dot2_f32_bf16 v%d, v%d, v%d, v%d' % (CS, b + 8 + r, V_ONES, CS))
        if stats:
            for tile in range(2):
                L = a.newlabel('st')
                a('s_cmp_lg_u32 s95, %d' % (2 * tile + (kt & 1)))
                a('s_cbranch_scc1 %s' % L)
                for r in range(4):
                    x = b + 4 * tile + r
                    a('v_dot2_f32_bf16 v%d, v%d, v%d, v%d' % (SS, x, V_ONES, SS))
                    a('v_dot2_f32_bf16 v%d, v%d, v%d, v%d' % (SS + 1, x, x, SS + 1))
                a.label(L)
    for kt in range(17):
        if kt < 16:
            if kt % 4 == 0:
                tags = ['x%d' % (kt // 4), 'w%d' % kt]
                a.vwait(*tags)
                a('s_barrier')
                if E('TSP1'): ts(a)
            else:
                a.vwait('w%d' % kt)
                if E('TSP2'): ts(a)
            rd_kt(kt)
            if kt: a('s_waitcnt lgkmcnt(4)')
        else:
            a('s_waitcnt lgkmcnt(0)')
        if kt >= 1:
            p = kt - 1
            if p < 4: dma_w(p + 12)
            mm_kt(p, True)
        if kt == 0:
            dma_x(2); dma_w(8); dma_w(9)
        if kt == 1:
            dma_w(10); dma_w(11); dma_x(3)
        if kt == 5:
            side_misc()
            nonce_probe(a)
        if kt == 9:
            nonce_check(a)
            a('s_mov_b32 s%d, 1' % S_GPH)
            with role(a, 0):
                lsignal(a)
            with role(a, 'A'):
                hello(a)
            with role(a, 'B'):
                vm = list(a.vm)
                for k in range(4): dma_w(k, True)
                a.vm = vm
        if kt == int(E('WARMKT', '10')):
            warm2()
        if kt == 13:
            with role(a, 'B'):
                vm = list(a.vm)
                for k in range(4, 8): dma_w(k, True)
                a.vm = vm
    lms = LM(red=0, stat=106496, pkv=0, kvf=0, redq=0)
    a.nop(3)
    a('v_mov_b32 v8, v%d\nv_mov_b32 v9, v%d' % (SS, SS + 1))
    a('s_nop 1')
    a('v_permlane32_swap_b32 v%d, v8' % SS)
    a('v_permlane32_swap_b32 v%d, v9' % (SS + 1))
    a('s_nop 1')
    pk_add(a, 6, SS, 8)
    a('s_mov_b32 s%d, 0' % S_T2)
    a('s_mov_b32 s%d, -1' % S_T3)
    a('v_cndmask_b32_e64 v6, v6, 0, s[%d:%d]' % (S_T2, S_T3))
    a('v_cndmask_b32_e64 v7, v7, 0, s[%d:%d]' % (S_T2, S_T3))
    a('v_and_b32 v5, 31, v%d' % V_LANE)
    a('v_lshlrev_b32 v5, 3, v5')
    a('v_lshrrev_b32 v8, 5, v%d' % V_LANE)
    a('v_lshl_add_u32 v5, v8, 11, v5')
    a('s_lshl_b32 s%d, s%d, 10' % (S_T0, S_J))
    a('s_lshl_b32 s%d, s%d, 9' % (S_T1, S_I))
    a('s_add_u32 s%d, s%d, s%d' % (S_T0, S_T0, S_T1))
    a('s_xor_b32 s%d, s%d, s%d' % (S_T1, S_KH, S_I))
    a('s_lshl_b32 s%d, s%d, 8' % (S_T1, S_T1))
    a('s_add_u32 s%d, s%d, s%d' % (S_T0, S_T0, S_T1))
    a('s_add_u32 s%d, s%d, %d' % (S_T0, S_T0, lms.stat))
    a('v_add_u32 v5, s%d, v5' % S_T0)
    a('ds_write_b64 v5, v[6:7]')
    make_csfrag(a, CS, V_CF1, 6)
    for r in range(14, 20):
        a('v_mov_b32 v%d, 0' % r)
    barrier(a)
    ts(a)
    lm = LM(red=65536, stat=0, pkv=98304, kvf=114688, redq=65536, wst=131072)
    mean_frags(a, lms)
    y_correct(a, V_CF1)
    kv_red_write(a, lm.red)
    ln_stats(a, lms, T=V_W0 + 24)
    p1_probe(a)
    barrier(a)
    if E('TSP1'): ts(a)
    a1_kv_owner(a, lm)
    ts(a)
    a('s_waitcnt vmcnt(0)')
    a.vreset(); a.vm.append('pr')
    p1_check(a)
    def qpass():
        a.vreset()
        for kt in range(17):
            if kt < 16:
                if kt >= 8: a.vwait('q%d' % kt)
                rd_kt(kt, True)
                if kt: a('s_waitcnt lgkmcnt(4)')
            else:
                a('s_waitcnt lgkmcnt(0)')
            if kt >= 1:
                p = kt - 1
                if p < 8: dma_w(p + 8, True)
                mm_kt(p, False)
        a.nop(3)
        make_csfrag(a, CS, V_CF0, 6)
        a('s_nop 1')
        y_correct(a, V_CF0)
    def ring():
        a('s_and_b32 s70, s%d, 3' % S_W)
        a('s_lshl_b32 s70, s70, 14')
        load_w_ring(a, U_WQ, V_W1, 16)
    a1_tail(a, lm, True, qpass, ring)

def resid_add(a, acc):
    for r in range(4):
        a('v_lshlrev_b32 v%d, 16, v%d' % (acc + 8 + 2 * r, V_RES + r))
        a('v_and_b32 v%d, 0xffff0000, v%d' % (acc + 9 + 2 * r, V_RES + r))
    for r in range(0, 8, 2):
        pk_add(a, acc + r, acc + r, acc + 8 + r)
    for r in range(4):
        a('v_cvt_pk_bf16_f32 v%d, v%d, v%d' % (V_RES + r, acc + 2 * r, acc + 2 * r + 1))

def final_store(a):
    srd(a, S_IN2, 56, 0x200000)
    a('s_nop 1')
    a('v_permlane32_swap_b32 v%d, v%d' % (V_RES, V_RES + 2))
    a('v_permlane32_swap_b32 v%d, v%d' % (V_RES + 1, V_RES + 3))
    a('v_and_b32 v5, 31, v%d' % V_LANE)
    a('v_lshlrev_b32 v5, 10, v5')
    a('v_lshrrev_b32 v6, 5, v%d' % V_LANE)
    a('v_lshl_add_u32 v5, v6, 4, v5')
    rowcol_off(a)
    a('buffer_store_dwordx4 %s, v5, s[12:15], s%d offen' % (vr(V_RES), S_T0))

def x_inputs(a, stats):
    cwait(a)
    ts3(a)
    dma_tile4(a, stats)
    chunk_sync(a, 0, stats)
    next_tile(a)

def w16_regs(a):
    with role(a, 3):
        a('v_lshrrev_b32 v5, 5, v%d' % V_LANE)
        a('v_lshlrev_b32 v5, 9, v5')
        a('v_bfe_u32 v6, v%d, 4, 1' % V_LANE)
        a('v_lshl_add_u32 v5, v6, 7, v5')
        a('v_bfe_u32 v6, v%d, 2, 2' % V_LANE)
        a('v_lshl_add_u32 v5, v6, 5, v5')
        a('v_and_b32 v6, 3, v%d' % V_LANE)
        a('v_lshl_add_u32 v5, v6, 3, v5')
        a('v_add_u32 v5, %d, v5' % LDS_W16)
        for st in range(16):
            a('ds_read_b64_tr_b16 v[%d:%d], v5 offset:%d' % (V_W1 + 4 * st, V_W1 + 4 * st + 1, st * 1024))
            a('ds_read_b64_tr_b16 v[%d:%d], v5 offset:%d' % (V_W1 + 4 * st + 2, V_W1 + 4 * st + 3, st * 1024 + 256))
        a('s_waitcnt lgkmcnt(0)')
        L = a.newlabel('cf2')
        a('s_cmp_lg_u32 s%d, 0' % S_LOFF)
        a('s_cbranch_scc1 %s' % L)
        colsum(a, V_W1, 9)
        make_csfrag(a, 9, V_CF2, 6)
        a.label(L)

def out_gemm(a, w16=False):
    ie = ifelse(a)
    ie.if_set(0)
    kloop4(a, V_W0, False)
    y_red_write(a, 65536, 0)
    ie.else_()
    if w16:
        dma_w16(a)
        idle4(a, False, 4)
        a('s_waitcnt vmcnt(0)')
    else:
        idle4(a, False)
    ie.end()
    barrier(a)
    ts3(a)
    y_red_read(a, 65536, 0)
    resid_add(a, V_ACC)
    ts3(a)

def b1_compute(a):
    lm = LM_STD
    a('s_add_u32 s%d, s%d, 1' % (S_GPH, S_GPH))
    P = V_ACC
    X16 = [V_XF, V_XF + 4, V_XF + 8, V_XF + 12]
    MFg, CFg = P + 8, V_CF2
    def kv16(var):
        for c in range(4):
            if c: chunk_sync(a, c, True)
            steps = [2 * c, 2 * c + 1, 8 + 2 * c, 9 + 2 * c]
            for n in range(4):
                a('ds_read_b128 %s, v6 offset:%d' % (vr(X16[n]), steps[n] * 2048))
            for n, st in enumerate(steps):
                a('s_waitcnt lgkmcnt(%d)' % (3 - n))
                cc = '0' if (c == 0 and n == 0) else vr(P)
                A_, B_ = (vr(V_W1 + 4 * st), vr(X16[n])) if var == 0 else (vr(X16[n]), vr(V_W1 + 4 * st))
                a('v_mfma_f32_16x16x32_bf16 %s, %s, %s, %s' % (vr(P), A_, B_, cc))
            if c == 1:
                a('v_and_b32 v7, 15, v%d' % V_LANE)
                a('s_lshl_b32 s%d, s%d, 4' % (S_T0, S_SLAB))
                a('v_add_u32 v7, s%d, v7' % S_T0)
                stats_read(a, lm, 7, V_TMP)
                make_mfrag(a, VM, MFg)
                a('s_nop 1')
                if var == 0: a('v_mfma_f32_16x16x32_bf16 %s, %s, %s, %s' % (vr(P), vr(CFg), vr(MFg), vr(P)))
                else: a('v_mfma_f32_16x16x32_bf16 %s, %s, %s, %s' % (vr(P), vr(MFg), vr(CFg), vr(P)))
            if c == 2:
                if var == 0:
                    for r in range(4): a('v_mov_b32 v%d, v%d' % (P + 16 + r, VR))
                else:
                    a('v_and_b32 v5, 15, v%d' % V_LANE)
                    a('v_lshlrev_b32 v5, 2, v5')
                    a('v_add_u32 v5, %d, v5' % LDS_U)
                    a('ds_write_b32 v5, v%d' % VR)
                    a('v_lshrrev_b32 v7, 4, v%d' % V_LANE)
                    a('v_lshlrev_b32 v7, 4, v7')
                    a('v_add_u32 v7, %d, v7' % LDS_U)
                    a('s_waitcnt lgkmcnt(0)')
                    a('ds_read_b128 %s, v7' % vr(P + 16))
                a('v_and_b32 v9, 15, v%d' % V_LANE)
                a('v_lshlrev_b32 v9, 4, v9')
                a('v_bfe_u32 v7, v%d, 4, 1' % V_LANE)
                a('v_lshl_add_u32 v9, v7, %d, v9' % (9 if var == 0 else 8))
                a('v_lshrrev_b32 v7, 5, v%d' % V_LANE)
                a('v_lshl_add_u32 v9, v7, 3, v9')
                if var == 0:
                    a('s_lshl_b32 s71, s%d, 11' % S_RB)
                    a('s_lshr_b32 s%d, s%d, 1' % (S_T1, S_SLAB))
                    a('s_lshl_b32 s%d, s%d, 10' % (S_T1, S_T1))
                    a('s_add_u32 s71, s71, s%d' % S_T1)
                    a('s_and_b32 s%d, s%d, 1' % (S_T1, S_SLAB))
                    a('s_lshl_b32 s%d, s%d, 8' % (S_T1, S_T1))
                    a('s_add_u32 s71, s71, s%d' % S_T1)
                    a('s_add_u32 s71, s71, 0x%x' % KF_)
                else:
                    a('s_lshl_b32 s71, s%d, 2' % S_RB)
                    a('s_add_u32 s71, s71, s%d' % S_SLAB)
                    a('s_lshl_b32 s71, s71, 9')
                    a('s_add_u32 s71, s71, 0x%x' % VF_)
                a('s_add_u32 s71, s71, s%d' % S_LOFF)
    Lb = a.newlabel('b1b'); L3 = a.newlabel('b13'); L3v = a.newlabel('b13v'); L3e = a.newlabel('b13e'); Le = a.newlabel('b1e')
    a('s_cmp_eq_u32 s%d, 1' % S_KH)
    a('s_cbranch_scc1 %s' % Lb)
    a('s_cmp_eq_u32 s%d, 3' % S_W)
    a('s_cbranch_scc1 %s' % L3)
    idle4(a, True)
    a('s_branch %s' % Le)
    a.label(Lb)
    kloop4(a, V_W1, True)
    y_correct(a, V_CF2)
    y_red_write(a, 65536, 1)
    a('s_branch %s' % Le)
    a.label(L3)
    a('v_and_b32 v6, 15, v%d' % V_LANE)
    a('v_lshlrev_b32 v6, 4, v6')
    a('v_bfe_u32 v5, v%d, 4, 1' % V_LANE)
    a('v_lshl_add_u32 v6, v5, 9, v6')
    a('v_lshrrev_b32 v5, 5, v%d' % V_LANE)
    a('v_lshl_add_u32 v6, v5, 10, v6')
    a('s_lshr_b32 s%d, s%d, 1' % (S_T0, S_SLAB))
    a('s_lshl_b32 s%d, s%d, 15' % (S_T0, S_T0))
    a('s_and_b32 s%d, s%d, 1' % (S_T1, S_SLAB))
    a('s_lshl_b32 s%d, s%d, 8' % (S_T1, S_T1))
    a('s_add_u32 s%d, s%d, s%d' % (S_T0, S_T0, S_T1))
    a('v_add_u32 v6, s%d, v6' % S_T0)
    a('s_cmp_eq_u32 s%d, 1' % S_WHICH)
    a('s_cbranch_scc1 %s' % L3v)
    kv16(0)
    a('s_branch %s' % L3e)
    a.label(L3v)
    kv16(1)
    a.label(L3e)
    a.nop(8)
    for r in range(4):
        a('v_mul_f32 v%d, v%d, v%d' % (P + r, P + r, P + 16 + r))
    a('v_cvt_pk_bf16_f32 v%d, v%d, v%d' % (P + 4, P, P + 1))
    a('v_cvt_pk_bf16_f32 v%d, v%d, v%d' % (P + 5, P + 2, P + 3))
    a('buffer_store_dwordx2 v[%d:%d], v9, %s, s71 offen sc1' % (P + 4, P + 5, WSR))
    a.label(Le)
    ln_stats(a, lm)
    barrier(a)
    with role(a, 3):
        a('s_waitcnt vmcnt(0)')
        lsignal(a)
    AQ = V_ACC
    y_red_read(a, 65536, 1)
    scale_pack(a, AQ, VR, V_XF)
    for r in range(4):
        a('v_lshlrev_b32 v%d, 16, v%d' % (AQ + 2 * r, V_XF + r))
        a('v_and_b32 v%d, 0xffff0000, v%d' % (AQ + 2 * r + 1, V_XF + r))
    for r in range(8):
        a('v_mul_f32 v%d, 0x%x, v%d' % (AQ + r, f2u(CQ), AQ + r))
    for r in range(4):
        a('v_cvt_pk_bf16_f32 v%d, v%d, v%d' % (A_Q + r, AQ + 2 * r, AQ + 2 * r + 1))

PRIO_SW = int(E('PRIO_SW', '48'))
def attn_loop(a):
    a.lreset()
    def rdK(t):
        if t < 64: a.l_('k%d' % t, 'ds_read_b128 %s, v%d offset:%d' % (vr(A_K[t % 2]), V_L16, t * 1024))
    def rdV(t):
        if t >= 64: return
        a('s_mov_b64 exec, s[%d:%d]' % (S_MASK_LO16, S_MASK_LO16 + 1))
        a.l_('v%d' % t, 'ds_read_b128 %s, v%d offset:%d' % (vr(A_V[t % 2]), A_VA, t * 1024))
        a.l_('v%d' % t, 'ds_read_b128 %s, v%d offset:%d' % (vr(A_V[t % 2] + 4), A_VA, t * 1024 + 512))
        a('s_mov_b64 exec, -1')
    def qk(t):
        a('v_mfma_f32_32x32x16_bf16 %s, %s, %s, %s' % (vr(A_S[t % 2], 16), vr(A_K[t % 2]), vr(A_Q), vr(A_BIAS, 16)))
    def pv(vb, pb, first=False):
        a('v_mfma_f32_32x32x16_bf16 %s, %s, %s, %s' % (vr(A_O, 16), vr(vb), vr(pb), '0' if first else vr(A_O, 16)))
    ex = lambda r: a('v_exp_f32 v%d, v%d' % (r, r))
    class first_pass:
        def __enter__(s_):
            s_.L = a.newlabel('fp')
            a('s_cmp_lg_u32 s%d, 0' % S_PASS)
            a('s_cbranch_scc1 %s' % s_.L)
        def __exit__(s_, *e): a.label(s_.L)
    a('v_and_b32 v%d, 15, v%d' % (A_VA, V_LANE))
    a('v_lshlrev_b32 v%d, 4, v%d' % (A_VA, A_VA))
    a('v_lshrrev_b32 v7, 5, v%d' % V_LANE)
    a('v_lshl_add_u32 v%d, v7, 8, v%d' % (A_VA, A_VA))
    a('v_add_u32 v%d, 65536, v%d' % (A_VA, A_VA))
    rdK(0); rdK(1); rdV(0)
    WD, WA = 10, 11
    a('s_lshl_b32 s70, s%d, 12' % S_W)
    a('s_add_u32 s70, s70, 131072')
    a('s_setprio 1')
    with role(a, 'B'):
        a('s_setprio 2')
    a.lwait('k0')
    qk(0)
    raw_rdaddr(a, WA, 70)
    a('s_nop 1')
    T0 = 29
    def wskip(cond_all):
        a('s_cmp_lg_u32 s%d, 0' % S_LOFF)
        a('s_cselect_b32 s%d, 0x%x, 0' % (S_T0, OOB))
        if not cond_all:
            a('s_cmp_eq_u32 s%d, 0' % S_KH)
            a('s_cselect_b32 s%d, 0, s%d' % (S_T0, S_T0))
        a('s_add_u32 s68, s68, s%d' % S_T0)
    for t in range(64):
        S = A_S[t % 2]
        cv = lambda r: a('v_cvt_pk_bf16_f32 v%d, v%d, v%d' % (A_P + r, S + 2 * r, S + 2 * r + 1))
        def xprobe():
            a('v_and_b32 v7, 7, v%d' % V_LANE)
            a('v_lshlrev_b32 v7, 7, v7')
            a('s_mov_b32 s66, 0x%x' % XFLAG)
            a('buffer_load_dwordx2 v[8:9], v7, %s, s66 offen sc1' % WSR)
        def xcheck(slots):
            Lr = a.newlabel('xr')
            tagbase(a, 65, S_GPH)
            m = sum(1 << sl for sl in slots)
            a('s_lshl_b32 s64, %d, s%d' % (m, S_GRP))
            chk = ['s_mov_b32 exec_lo, s64', 's_mov_b32 exec_hi, 0'] + tagcmp([8], 65, 5) + ['s_mov_b64 exec, -1']
            a('s_waitcnt vmcnt(0)')
            for c in chk: a(c)
            a('s_cbranch_vccz %s' % Lr)
            a('v_and_b32 v7, 7, v%d' % V_LANE)
            a('v_lshlrev_b32 v7, 7, v7')
            poll(a, ['buffer_load_dwordx2 v[8:9], v7, %s, s66 offen sc1' % WSR], chk, sleep=1)
            a.label(Lr)
        if t in (2, 9, 20):
            with first_pass(): xprobe()
        if t == 4:
            with first_pass():
                xcheck([1]); kv_dma(a, [1])
        if t == 11:
            with first_pass():
                xcheck([2, 3]); kv_dma(a, [2, 3])
        if t == 22:
            with first_pass():
                xcheck([4, 5, 6, 7]); kv_dma(a, range(4, 8))
        if t in (7, 15, 28):
            with first_pass():
                a('s_waitcnt vmcnt(0)')
                a('s_barrier')
            if t in (7, 15): rdK(t + 1)
        if E('TSA') and t in (0, 3, 4, 7, 15, 32, 50, 63): ts(a)
        if t == PRIO_SW:
            with role(a, 'B'):
                a('s_setprio 0')
        if t == T0:
            raw_setup(a, U_OB, U_Q, S_IN2, 68, 69, WD); wskip(False)
        if t == T0 + 16:
            raw_setup(a, U_K, U_V, S_IN2, 68, 69, WD); wskip(True)
        if t + 1 < 64:
            a.lwait('k%d' % (t + 1))
            qk(t + 1)
        if t not in (6, 14): rdK(t + 2)
        ex(S + 0); ex(S + 1); ex(S + 2); ex(S + 3); cv(0); ex(S + 4); ex(S + 5); cv(1); ex(S + 6); ex(S + 7); cv(2)
        ex(S + 8); ex(S + 9); cv(3); ex(S + 10); ex(S + 11)
        a.lwait('v%d' % t)
        pv(A_V[t % 2], A_P, t == 0)
        p = t - T0
        if 0 <= p < 32:
            if p >= 4: a.lwait('w%d' % (p - 4))
            for l in raw_dma(S_IN2, 68, 69, WD, 70, (p % 4) * 1024): a(l)
        cv(4); ex(S + 12); ex(S + 13); cv(5); ex(S + 14); ex(S + 15); cv(6)
        p = t - T0 - 2
        if 0 <= p < 32:
            a('s_waitcnt vmcnt(%d)' % min(2, 31 - p))
        else:
            a('s_nop 0')
        cv(7)
        if 0 <= p < 32:
            for l in raw_rd((V_W0 if p < 16 else V_W1) + 4 * (p % 16), WA, (p % 4) * 1024): a.l_('w%d' % p, l)
        else:
            a('s_nop 1')
        pv(A_V[t % 2] + 4, A_P + 4)
        rdV(t + 1)
    a('s_setprio 0')
    a.nop(16)

def attn_pre(a):
    a('s_mov_b32 s%d, 0x00110000' % S_T0)
    a('s_mov_b32 s%d, 0x00110000' % S_T1)
    a('v_cndmask_b32_e64 v7, 0, v%d, s[%d:%d]' % (V_ONES, S_T0, S_T1))
    for b in range(2):
        for r in range(8):
            a('v_mov_b32 v%d, v7' % (A_V[b] + r))

def kv_dma(a, slots):
    a('s_lshl_b32 s67, s%d, 10' % S_W)
    for sl in slots:
        a('s_add_u32 s%d, s%d, %d' % (S_T0, S_GRP, sl))
        a('s_and_b32 s%d, s%d, 7' % (S_T0, S_T0))
        a('s_lshl_b32 s%d, s%d, 13' % (S_T0, S_T0))
        a('s_add_u32 s%d, s%d, s67' % (S_T0, S_T0))
        a('s_add_u32 s%d, s%d, s%d' % (S_T0, S_T0, S_LOFF))
        a('s_add_u32 s%d, s%d, 0x%x' % (S_T0, S_T0, KF_))
        a('s_add_u32 m0, s67, %d' % (sl * 8192))
        a('s_add_u32 s%d, s%d, 0x10000' % (S_T1, S_T0))
        a('buffer_load_dwordx4 v%d, %s, s%d offen sc1 lds' % (V_L16, WSR, S_T0))
        a('s_add_u32 m0, s67, %d' % (65536 + sl * 8192))
        a('s_nop 0')
        a('buffer_load_dwordx4 v%d, %s, s%d offen sc1 lds' % (V_L16, WSR, S_T1))

def attn_inputs(a):
    with role(a, 0):
        lwait(a)
        L = a.newlabel('ld')
        a('s_lshr_b32 s%d, s2, 3' % S_T0)
        a('s_cmp_lg_u32 s%d, 0' % S_T0)
        a('s_cbranch_scc1 %s' % L)
        tagval(a, 6, S_GPH)
        a('s_lshl_b32 s%d, s%d, 7' % (S_T0, S_GRP))
        a('s_add_u32 s%d, s%d, 0x%x' % (S_T0, S_T0, XFLAG))
        a('v_mov_b32 v5, 0')
        a('s_mov_b64 exec, 1')
        a('buffer_store_dwordx2 v[6:7], v5, %s, s%d offen sc1' % (WSR, S_T0))
        a('s_mov_b64 exec, -1')
        a.label(L)
    barrier(a)
    ts(a)
    kv_dma(a, [0])
    a('s_waitcnt vmcnt(0)')
    a('s_barrier')

def attn_compute(a):
    a('ds_read_b128 %s, v%d' % (vr(A_K[0]), V_L16))
    a('s_waitcnt lgkmcnt(0)')
    a('v_mfma_f32_32x32x16_bf16 %s, %s, %s, 0' % (vr(A_S[0], 16), vr(A_K[0]), vr(A_Q)))
    a.nop(12)
    a('v_max3_f32 v10, v%d, v%d, v%d' % (A_S[0], A_S[0] + 1, A_S[0] + 2))
    a('v_max3_f32 v9, v%d, v%d, v%d' % (A_S[0] + 3, A_S[0] + 4, A_S[0] + 5))
    for r in range(6, 14, 4):
        a('v_max3_f32 v10, v10, v%d, v%d' % (A_S[0] + r, A_S[0] + r + 1))
        a('v_max3_f32 v9, v9, v%d, v%d' % (A_S[0] + r + 2, A_S[0] + r + 3))
    a('v_max3_f32 v10, v10, v%d, v%d' % (A_S[0] + 14, A_S[0] + 15))
    a('v_max_f32 v10, v10, v9')
    halves_sum(a, 10, 9, 'v_max_f32')
    a('v_sub_f32 v10, 0, v10')
    a('s_mov_b32 s%d, 0' % S_PASS)
    Lrun = a.newlabel('at_run'); Lok = a.newlabel('at_ok'); Lmx = a.newlabel('at_mx')
    a.label(Lrun)
    for r in range(16):
        a('v_mov_b32 v%d, v10' % (A_BIAS + r))
    a('s_nop 1')
    attn_loop(a)
    a('s_cmp_eq_u32 s%d, 1' % S_PASS)
    a('s_cbranch_scc1 %s' % Lok)
    a('v_max3_f32 v8, abs(v%d), abs(v%d), abs(v%d)' % (A_O, A_O + 1, A_O + 2))
    a('v_max3_f32 v9, abs(v%d), abs(v%d), abs(v%d)' % (A_O + 3, A_O + 4, A_O + 5))
    a('v_max3_f32 v8, abs(v%d), abs(v%d), v8' % (A_O + 6, A_O + 7))
    a('v_max_f32 v8, v8, v9')
    a('v_cmp_nle_f32 vcc, 0x%x, v%d' % (f2u(2.0 ** -89), A_O + 8))
    a('v_cmp_nge_f32 s[64:65], v%d, v%d' % (7, A_O + 8)) if False else None
    a('s_mov_b64 s[64:65], vcc')
    a('v_cmp_nge_f32 vcc, 0x%x, v%d' % (f2u(2.0 ** 90), A_O + 8))
    a('s_nop 3')
    a('s_or_b64 s[64:65], s[64:65], vcc')
    a('v_cmp_nge_f32 vcc, 0x%x, v8' % f2u(2.0 ** 126))
    a('s_nop 3')
    a('s_or_b64 s[64:65], s[64:65], vcc')
    a('s_cmp_eq_u64 s[64:65], 0')
    a('s_cbranch_scc1 %s' % Lok)
    a('s_mov_b32 s%d, 1' % S_PASS)
    a('v_mov_b32 v10, 0xff800000')
    a('v_mov_b32 v%d, v%d' % (A_KA, V_L16))
    a('s_mov_b32 s%d, 0' % S_CNT)
    a.label(Lmx)
    a('ds_read_b128 %s, v%d' % (vr(A_K[0]), A_KA))
    a('s_waitcnt lgkmcnt(0)')
    a('v_mfma_f32_32x32x16_bf16 %s, %s, %s, 0' % (vr(A_S[0], 16), vr(A_K[0]), vr(A_Q)))
    a.nop(16)
    for r in range(0, 16, 2):
        a('v_max3_f32 v10, v10, v%d, v%d' % (A_S[0] + r, A_S[0] + r + 1))
    a('v_add_u32 v%d, 1024, v%d' % (A_KA, A_KA))
    a('s_add_u32 s%d, s%d, 1' % (S_CNT, S_CNT))
    a('s_cmp_lt_u32 s%d, 64' % S_CNT)
    a('s_cbranch_scc1 %s' % Lmx)
    halves_sum(a, 10, 9, 'v_max_f32')
    a('v_sub_f32 v10, 0, v10')
    a('s_branch %s' % Lrun)
    a.label(Lok)
    a('v_rcp_f32 v8, v%d' % (A_O + 8))
    a('s_nop 0')
    scale_pack(a, A_O, 8, A_P)
    store_blk(a, A_P)
    csignal(a)

def header():
    ref = open('cdna_kernels/%s.s.ref' % NAME).read().split('\n')
    out = []
    for l in ref:
        if not l.startswith(';'): break
        if '@launch' in l: continue
        out.append(l)
    return out

def main(path):
    a = Asm()
    for h in header(): a.raw(h)
    a.raw('; @launch grid=(256,1,1) block=(512,1,1) lds=%d' % LDS_TOTAL)
    a.raw('.amdgcn_target "amdgcn-amd-amdhsa--gfx950"')
    a.raw('.text')
    name = NAME + '_kernel'
    prologue(a, name)
    ts(a)
    p1(a)
    ts(a)
    a.label('L_layer')
    x_inputs(a, False)
    ts(a)
    out_gemm(a, True)
    store_x(a)
    csignal(a)
    w16_regs(a)
    ts(a)
    x_inputs(a, True)
    ts(a)
    b1_compute(a)
    attn_pre(a)
    ts(a)
    attn_inputs(a)
    ts(a)
    attn_compute(a)
    ts(a)
    x_inputs(a, False)
    ts(a)
    out_gemm(a)
    a('s_cmp_lg_u32 s%d, 0' % S_LOFF)
    a('s_cbranch_scc1 L_final')
    a('s_mov_b32 s%d, 0x%x' % (S_LOFF, LS))
    store_x(a)
    csignal(a)
    ts(a)
    x_inputs(a, True)
    ts(a)
    a1_std(a)
    ts(a)
    a('s_branch L_layer')
    a.label('L_final')
    final_store(a)
    a('s_waitcnt vmcnt(0)')
    ts(a)
    epilogue(a, name)
    open(path, 'w').write(a.text())

if __name__ == '__main__':
    main(sys.argv[1] if len(sys.argv) > 1 else 'cdna_kernels/%s.s' % NAME)
```

```python
import struct, math, sys, os

NAME = 'interleave_layers__linear_attn_block__grouped_kv_mqa__prompt'
E = os.environ.get
TS_ON = E('TS', '0') == '1'
TS2 = TS_ON and E('TS2', '0') == '1'
DBGBUF = E('DBGBUF', '0') == '1'

T0_ = 0x1000000 if DBGBUF else 0x000000
WP = 0x400000
NT_QKV, NT_OA, NT_Q, NT_OB = 0, 48, 64, 80
WKV16 = 0x700000
STP = 0x780000
LB, LS = 0x880000, 0x140000
KF_, VF_, KMAX_ = LB, LB + 0x10000, LB + 0x20000
KVP_, ZP_ = LB + 0x28000, LB + 0x128000
CFLAG = 0xB00000
GFLAG = 0xB04000
XFLAG = 0xB05000
HFLAG = 0xB20000
TSBUF = 0xB40000
WS_BYTES = 0x10000000
OOB = 0x7FFF0000
_t = lambda n: T0_ + n * 0x200000
XF = [None, _t(1), _t(3), _t(5)]
OLIN = [_t(0), _t(4)]; OF = [_t(2), _t(6)]
KF = [KF_, KF_ + LS]; VF = [VF_, VF_ + LS]; KMAX = [KMAX_, KMAX_ + LS]; KVP = [KVP_, KVP_ + LS]; ZP = [ZP_, ZP_ + LS]

def f2u(x): return struct.unpack('<I', struct.pack('<f', x))[0]
LOG2E = math.log2(math.e)
CQ = 0.25 * LOG2E

class Asm:
    def __init__(self):
        self.l = []; self.uid = 0; self.vm = []; self.done = -1
    def __call__(self, s):
        for line in s.strip('\n').split('\n'):
            self.l.append('    ' + line.strip())
    def label(self, s): self.l.append(s + ':')
    def raw(self, s): self.l.append(s)
    def nop(self, n):
        while n > 0:
            k = min(n, 16); self('s_nop %d' % (k - 1)); n -= k
    def newlabel(self, p='L'):
        self.uid += 1; return '%s_%d' % (p, self.uid)
    def text(self): return '\n'.join(self.l) + '\n'
    def lreset(self): self.lg = []; self.ldone = -1
    def l_(self, tag, s_):
        self(s_); self.lg.append(tag)
    def lwait(self, *tags):
        idx = [i for i, t in enumerate(self.lg) if t in tags]
        if not idx or max(idx) <= self.ldone: return
        self.ldone = max(idx)
        n = len(self.lg) - 1 - max(idx)
        self('s_waitcnt lgkmcnt(%d)' % min(n, 15))
    def vreset(self): self.vm = []; self.done = -1
    def v(self, tag, s):
        self(s); self.vm.append(tag)
    def vwait(self, *tags, extra=''):
        idx = [i for i, t in enumerate(self.vm) if t in tags]
        if max(idx) <= self.done and not extra: return
        self.done = max(self.done, max(idx))
        n = len(self.vm) - 1 - max(idx)
        assert n <= 63
        self('s_waitcnt vmcnt(%d)%s' % (n, extra))

def vr(b, n=4): return 'v[%d:%d]' % (b, b + n - 1)

S_WS, S_IN, S_IN2 = 4, 8, 12
S_RB, S_CS, S_W, S_I, S_J, S_KH = 16, 17, 18, 19, 20, 21
S_BLK, S_LOFF = 22, 23
S_T0, S_T1, S_T2, S_T3, S_T4, S_T5 = 24, 25, 26, 27, 28, 29
S_MASK_LO16 = 30
S_WHICH, S_SLAB = 34, 35
S_CNT, S_PASS, S_CPH, S_GPH = 36, 37, 38, 39
S_FAST, S_SPIN = 62, 63
S_TSI, S_TOFF, S_SOFF, S_GRP = 72, 73, 74, 75
S_DBG = 76
S_WOFF, S_XOFF = 80, 81
S_TS = 82
S_NLO, S_NHI, S_XCC = 32, 33, 91
V_ONES, V_LANE, V_L16, V_XB, V_XA = 0, 1, 2, 3, 4
VM, VR = 10, 11
V_CF1, V_CF0, V_CF2 = 12, 14, 16
V_RES = 20
V_XF = 24
V_ACC = 40
V_PQ = 88
V_CFA, V_GFA, V_PCA, V_Q2 = 96, 97, 98, 99
V_TMP = 100
V_W0, V_W1 = 128, 192
A_Q, A_BIAS, A_S, A_P, A_O, A_K, A_V = 100, 24, [40, 56], 72, 80, [104, 108], [112, 120]
A_KA, A_VA = 5, 6
XBUF = [V_XF, V_XF + 8, V_TMP, V_TMP + 8]
ACC0, ACC1 = V_ACC, V_ACC + 16
V_MF = V_ACC + 32

class LM:
    def __init__(s, red, stat, pkv, kvf, redq, wst=98304): s.red, s.stat, s.pkv, s.kvf, s.redq, s.wst = red, stat, pkv, kvf, redq, wst
LM_STD = LM(red=65536, stat=131072, pkv=135168, kvf=151552, redq=65536)
LDS_U = 155648
LDS_TOTAL = 163840
WSR = 's[%d:%d]' % (S_WS, S_WS + 3)
SPIN_MAX = 200000

def srd(a, d, ptr_s, nbytes):
    a('s_mov_b32 s%d, s%d' % (d, ptr_s))
    a('s_mov_b32 s%d, s%d' % (d + 1, ptr_s + 1))
    a('s_mov_b32 s%d, 0x%x' % (d + 2, nbytes))
    a('s_mov_b32 s%d, 0x00020000' % (d + 3))

def ts(a):
    if not TS_ON: return
    L = a.newlabel('ts')
    a('s_cmp_lg_u32 s%d, %s' % (S_W, E('TSW', '0')))
    a('s_cbranch_scc1 %s' % L)
    a('s_memrealtime s[%d:%d]' % (S_TS, S_TS + 1))
    a('s_memtime s[92:93]')
    a('s_waitcnt lgkmcnt(0)')
    a('s_mov_b64 exec, 1')
    a('v_mov_b32 v8, s%d' % S_TS)
    a('v_mov_b32 v9, s%d' % S_TSI)
    a('buffer_store_dword v8, v9, %s, 0 offen' % WSR)
    a('v_mov_b32 v7, s92')
    a('buffer_store_dword v7, v9, %s, 0 offen offset:256' % WSR)
    a('s_mov_b64 exec, -1')
    a('s_add_u32 s%d, s%d, 4' % (S_TSI, S_TSI))
    a.label(L)
def ts3(a):
    if TS_ON and E('TS3'): ts(a)
def ts2(a):
    if TS2: ts(a)

class role:
    def __init__(s, a, who): s.a, s.who = a, who
    def __enter__(s):
        a = s.a; s.L = a.newlabel('role')
        if s.who == 'A': a('s_cmp_lg_u32 s%d, 0' % S_KH)
        elif s.who == 'B': a('s_cmp_lg_u32 s%d, 1' % S_KH)
        else: a('s_cmp_lg_u32 s%d, %d' % (S_W, s.who))
        a('s_cbranch_scc1 %s' % s.L)
    def __exit__(s, *e): s.a.label(s.L)

def prologue(a, name):
    a.raw('.globl %s' % name); a.raw('.p2align 8'); a.raw('.type %s,@function' % name)
    a.label(name)
    a('s_cmp_ge_u32 s2, 256')
    a('s_cbranch_scc1 L_end')
    a('s_load_dwordx16 s[40:55], s[0:1], 0')
    a('s_load_dwordx4 s[56:59], s[0:1], 64')
    a('s_load_dwordx2 s[60:61], s[0:1], 80')
    a('s_and_b32 s%d, s2, 7' % S_GRP)
    a('s_lshl_b32 s%d, s%d, 2' % (S_RB, S_GRP))
    a('s_lshr_b32 s%d, s2, 6' % S_T0)
    a('s_add_u32 s%d, s%d, s%d' % (S_RB, S_RB, S_T0))
    a('s_bfe_u32 s%d, s2, 0x30003' % S_CS)
    a('v_lshrrev_b32 v5, 6, v0')
    a('v_and_b32 v%d, 63, v0' % V_LANE)
    a('s_nop 0')
    a('v_readfirstlane_b32 s%d, v5' % S_W)
    a('v_lshlrev_b32 v%d, 4, v%d' % (V_L16, V_LANE))
    a('s_nop 3')
    a('s_and_b32 s%d, s%d, 1' % (S_I, S_W))
    a('s_bfe_u32 s%d, s%d, 0x10001' % (S_J, S_W))
    a('s_lshr_b32 s%d, s%d, 2' % (S_KH, S_W))
    a('s_lshl_b32 s%d, s%d, 1' % (S_T0, S_RB))
    a('s_add_u32 s%d, s%d, s%d' % (S_T0, S_T0, S_I))
    a('s_lshl_b32 s%d, s%d, 5' % (S_T0, S_T0))
    a('s_lshl_b32 s%d, s%d, 2' % (S_T1, S_CS))
    a('s_add_u32 s%d, s%d, s%d' % (S_T0, S_T0, S_T1))
    a('s_lshl_b32 s%d, s%d, 1' % (S_T1, S_J))
    a('s_add_u32 s%d, s%d, s%d' % (S_T0, S_T0, S_T1))
    a('s_add_u32 s%d, s%d, s%d' % (S_T0, S_T0, S_KH))
    a('s_lshl_b32 s%d, s%d, 10' % (S_BLK, S_T0))
    a('s_lshl_b32 s%d, s%d, 14' % (S_T1, S_I))
    a('s_mul_i32 s%d, s%d, 49152' % (S_T0, S_I))
    a('v_add_u32 v%d, s%d, v%d' % (V_XA, S_T0, V_L16))
    a('v_xor_b32 v%d, 32768, v%d' % (V_XB, V_XA))
    a('s_lshl_b32 s%d, s%d, 1' % (S_T0, S_CS))
    a('s_add_u32 s%d, s%d, s%d' % (S_T0, S_T0, S_J))
    a('s_lshl_b32 s%d, s%d, 6' % (S_WOFF, S_T0))
    a('s_lshl_b32 s%d, s%d, 16' % (S_XOFF, S_RB))
    a('v_mov_b32 v%d, 0x3f803f80' % V_ONES)
    a('s_mov_b32 s%d, 0x0000ffff' % S_MASK_LO16)
    a('s_mov_b32 s%d, 0x0000ffff' % (S_MASK_LO16 + 1))
    a('s_and_b32 s%d, s%d, 1' % (S_WHICH, S_CS))
    a('s_lshr_b32 s%d, s%d, 1' % (S_SLAB, S_CS))
    a('s_mov_b32 s%d, 0' % S_LOFF)
    a('s_mov_b32 s%d, 0' % S_CPH)
    a('s_mov_b32 s%d, 0' % S_GPH)
    a('s_mov_b32 s%d, 0' % S_FAST)
    a('s_mov_b32 s%d, 0x%x' % (S_TOFF, T0_))
    a('s_mov_b32 s%d, 0x%x' % (S_SOFF, STP))
    a('s_lshl_b32 s%d, s%d, 9' % (S_T0, S_RB))
    a('s_add_u32 s%d, s%d, 0x%x' % (S_T0, S_T0, CFLAG))
    a('v_lshlrev_b32 v5, 3, v%d' % V_LANE)
    a('v_add_u32 v%d, s%d, v5' % (V_PCA, S_T0))
    a('s_lshl_b32 s%d, s%d, 6' % (S_T1, S_CS))
    a('s_add_u32 s%d, s%d, s%d' % (S_T0, S_T0, S_T1))
    a('s_lshl_b32 s%d, s%d, 3' % (S_T1, S_W))
    a('s_add_u32 s%d, s%d, s%d' % (S_T0, S_T0, S_T1))
    a('v_mov_b32 v%d, s%d' % (V_CFA, S_T0))
    a('s_getreg_b32 s%d, hwreg(HW_REG_XCC_ID)' % S_XCC)
    a('s_and_b32 s%d, s%d, 15' % (S_XCC, S_XCC))
    a('s_lshl_b32 s%d, s%d, 6' % (S_T0, S_RB))
    a('s_lshl_b32 s%d, s%d, 3' % (S_T1, S_CS))
    a('s_add_u32 s%d, s%d, s%d' % (S_T0, S_T0, S_T1))
    a('s_add_u32 s%d, s%d, 0x%x' % (S_T0, S_T0, GFLAG))
    a('v_mov_b32 v%d, s%d' % (V_GFA, S_T0))
    a('s_lshl_b32 s%d, s2, 9' % S_TSI)
    a('s_add_u32 s%d, s%d, 0x%x' % (S_TSI, S_TSI, TSBUF))
    a('s_waitcnt lgkmcnt(0)')
    srd(a, S_WS, 60, WS_BYTES)
    srd(a, S_DBG, 58, 256)

def epilogue(a, name, nv=256):
    a.label('L_end')
    a('s_endpgm')
    a.raw('.section .rodata,"a"'); a.raw('.p2align 6')
    a.raw('.amdhsa_kernel %s' % name)
    a.raw('  .amdhsa_next_free_vgpr %d' % nv)
    a.raw('  .amdhsa_next_free_sgpr 96')
    a.raw('  .amdhsa_accum_offset %d' % ((nv + 3) // 4 * 4))
    a.raw('  .amdhsa_group_segment_fixed_size 0')
    a.raw('  .amdhsa_kernarg_size 88')
    a.raw('  .amdhsa_user_sgpr_count 2')
    a.raw('  .amdhsa_user_sgpr_kernarg_segment_ptr 1')
    a.raw('  .amdhsa_system_sgpr_workgroup_id_x 1')
    a.raw('  .amdhsa_float_denorm_mode_32 3')
    a.raw('.end_amdhsa_kernel')

def fast_store(a, fmts):
    L1 = a.newlabel('fs'); L2 = a.newlabel('fs')
    a('s_cmp_eq_u32 s%d, 1' % S_FAST)
    a('s_cbranch_scc1 %s' % L1)
    for f in fmts: a(f.replace('@', ' sc1'))
    a('s_branch %s' % L2)
    a.label(L1)
    for f in fmts: a(f.replace('@', ''))
    a.label(L2)

def tagval(a, v, sph, xcc=False):
    a('s_lshl_b32 s%d, s%d, 4' % (S_T0, sph))
    a('s_add_u32 s%d, s%d, s%d' % (S_T0, S_T0, S_NLO))
    if xcc: a('s_add_u32 s%d, s%d, s%d' % (S_T0, S_T0, S_XCC))
    a('v_mov_b32 v%d, s%d' % (v, S_T0))
    a('v_mov_b32 v%d, s%d' % (v + 1, S_NHI))

def tagbase(a, sdst, sph):
    a('s_lshl_b32 s%d, s%d, 4' % (sdst, sph))
    a('s_add_u32 s%d, s%d, s%d' % (sdst, sdst, S_NLO))

def tagcmp(pairs, sbase, t):
    out = []
    for n, p in enumerate(pairs):
        out.append('v_subrev_u32 v%d, s%d, v%d' % (p, sbase, p))
        out.append('v_xor_b32 v%d, s%d, v%d' % (p + 1, S_NHI, p + 1))
        out.append('v_lshrrev_b32 v%d, 12, v%d' % (p, p))
        if n == 0: out.append('v_or_b32 v%d, v%d, v%d' % (t, p, p + 1))
        else: out.append('v_or3_b32 v%d, v%d, v%d, v%d' % (t, t, p, p + 1))
    out.append('v_cmp_ne_u32 vcc, 0, v%d' % t)
    return out

def csignal(a, tag=None):
    a('s_add_u32 s%d, s%d, 1' % (S_CPH, S_CPH))
    tagval(a, 6, S_CPH, True)
    if tag is None:
        a('s_waitcnt vmcnt(0) lgkmcnt(0)')
    a('s_mov_b64 exec, 1')
    fast_store(a, ['buffer_store_dwordx2 v[6:7], v%d, %s, 0 offen@' % (V_CFA, WSR)])
    a('s_mov_b64 exec, -1')
    if tag: a.vm.append(tag)

def poll(a, load, cmp, sleep=0):
    Lp = a.newlabel('pl'); Lo = a.newlabel('po')
    a('s_mov_b32 s%d, 0' % S_SPIN)
    a.label(Lp)
    a('s_add_u32 s%d, s%d, 1' % (S_SPIN, S_SPIN))
    a('s_cmp_gt_u32 s%d, %d' % (S_SPIN, SPIN_MAX))
    a('s_cbranch_scc1 L_end')
    for l in load: a(l)
    a('s_waitcnt vmcnt(0)')
    for c in cmp: a(c)
    if sleep:
        a('s_cbranch_vccz %s' % Lo)
        a('s_sleep %d' % sleep)
        a('s_branch %s' % Lp)
        a.label(Lo)
    else:
        a('s_cbranch_vccnz %s' % Lp)

def cwait(a):
    tagbase(a, 65, S_CPH)
    Lp = a.newlabel('cw'); Lo = a.newlabel('co')
    ld = lambda v: a('buffer_load_dwordx2 v[%d:%d], v%d, %s, 0 offen sc1' % (v, v + 1, V_PCA, WSR))
    a('s_mov_b32 s%d, 0' % S_SPIN)
    ld(8)
    a.label(Lp)
    a('s_add_u32 s%d, s%d, 1' % (S_SPIN, S_SPIN))
    a('s_cmp_gt_u32 s%d, %d' % (S_SPIN, SPIN_MAX))
    a('s_cbranch_scc1 L_end')
    a('s_sleep 1')
    ld(92)
    a('s_waitcnt vmcnt(1)')
    for c in tagcmp([8], 65, 7): a(c)
    a('s_cbranch_vccz %s' % Lo)
    a('s_sleep 1')
    ld(8)
    a('s_waitcnt vmcnt(1)')
    for c in tagcmp([92], 65, 7): a(c)
    a('s_cbranch_vccnz %s' % Lp)
    a.label(Lo)

def lpoll_addr(a, v):
    a('v_and_b32 v%d, 31, v%d' % (v, V_LANE))
    a('v_lshlrev_b32 v%d, 3, v%d' % (v, v))
    a('s_lshl_b32 s66, s%d, 8' % S_GRP)
    a('s_add_u32 s66, s66, 0x%x' % GFLAG)

def lwait(a):
    tagbase(a, 65, S_GPH)
    lpoll_addr(a, 5)
    poll(a, ['buffer_load_dwordx2 v[8:9], v5, %s, s66 offen sc1' % WSR], tagcmp([8], 65, 7))

def lsignal(a):
    tagval(a, 6, S_GPH, True)
    a('s_mov_b64 exec, 1')
    fast_store(a, ['buffer_store_dwordx2 v[6:7], v%d, %s, 0 offen@' % (V_GFA, WSR)])
    a('s_mov_b64 exec, -1')

DBR = 's[%d:%d]' % (S_DBG, S_DBG + 3)
NP = 18
def nonce_publish(a):
    L = a.newlabel('np')
    a('s_cmp_lg_u32 s2, 0')
    a('s_cbranch_scc1 %s' % L)
    a('s_cmp_lg_u32 s%d, 0' % S_W)
    a('s_cbranch_scc1 %s' % L)
    a('s_memrealtime s[64:65]')
    a('s_waitcnt lgkmcnt(0)')
    a('s_lshl_b64 s[64:65], s[64:65], 12')
    a('s_or_b32 s65, s65, 0x80000000')
    a('v_mov_b32 v6, s64')
    a('v_mov_b32 v7, s65')
    a('v_mov_b32 v5, 0')
    a('s_mov_b64 exec, 1')
    a('buffer_store_dwordx2 v[6:7], v5, %s, 0 offen sc1' % DBR)
    a('s_mov_b64 exec, -1')
    a.label(L)

def nonce_probe(a):
    a('v_mov_b32 v5, 0')
    a.v('np', 'buffer_load_dwordx2 v[%d:%d], v5, %s, 0 offen sc1' % (NP, NP + 1, DBR))

def nonce_check(a):
    Lok = a.newlabel('nok')
    a.vwait('np')
    a('v_cmp_eq_u32 vcc, 0, v%d' % (NP + 1))
    a('s_cbranch_vccz %s' % Lok)
    a('v_mov_b32 v5, 0')
    poll(a, ['buffer_load_dwordx2 v[%d:%d], v5, %s, 0 offen sc1' % (NP, NP + 1, DBR)], ['v_cmp_eq_u32 vcc, 0, v%d' % (NP + 1)], sleep=2)
    a.label(Lok)
    a('v_readfirstlane_b32 s%d, v%d' % (S_NLO, NP))
    a('v_readfirstlane_b32 s%d, v%d' % (S_NHI, NP + 1))
    a('s_nop 3')

PR = V_W0 + 48
def p1_probe(a):
    lpoll_addr(a, PR + 6)
    a.v('pr', 'buffer_load_dwordx2 v[%d:%d], v%d, %s, s66 offen sc1' % (PR + 2, PR + 3, PR + 6, WSR))

def p1_check(a):
    L2 = a.newlabel('pc')
    a.vwait('pr')
    tagbase(a, 65, S_GPH)
    a('v_mov_b32 v%d, v%d' % (PR + 4, PR + 2))
    for c in tagcmp([PR + 2], 65, 7): a(c)
    a('s_cbranch_vccz %s' % L2)
    poll(a, ['buffer_load_dwordx2 v[%d:%d], v%d, %s, s66 offen sc1' % (PR + 2, PR + 3, PR + 6, WSR)],
         ['v_mov_b32 v%d, v%d' % (PR + 4, PR + 2)] + tagcmp([PR + 2], 65, 7), sleep=1)
    a.label(L2)
    a('v_and_b32 v%d, 15, v%d' % (PR + 4, PR + 4))
    a('v_cmp_ne_u32 vcc, s%d, v%d' % (S_XCC, PR + 4))
    a('s_nop 3')
    a('s_cmp_eq_u64 vcc, 0')
    a('s_cselect_b32 s%d, 1, 0' % S_FAST)
    if E('NOFAST'):
        a('s_mov_b32 s%d, 0' % S_FAST)

def next_tile(a):
    if DBGBUF: a('s_add_u32 s%d, s%d, 0x200000' % (S_TOFF, S_TOFF))
    else: a('s_xor_b32 s%d, s%d, 0x200000' % (S_TOFF, S_TOFF))

def colsum(a, vw, vcs):
    a('v_mov_b32 v%d, 0' % vcs)
    a('s_nop 1')
    for r in range(64):
        a('v_dot2_f32_bf16 v%d, v%d, v%d, v%d' % (vcs, vw + r, V_ONES, vcs))
    a.nop(3)

def rowcol_off(a):
    a('s_lshl_b32 s%d, s%d, 15' % (S_T1, S_I))
    a('s_add_u32 s%d, s%d, s%d' % (S_T0, S_XOFF, S_T1))
    a('s_lshl_b32 s%d, s%d, 7' % (S_T1, S_CS))
    a('s_add_u32 s%d, s%d, s%d' % (S_T0, S_T0, S_T1))
    a('s_lshl_b32 s%d, s%d, 6' % (S_T1, S_J))
    a('s_add_u32 s%d, s%d, s%d' % (S_T0, S_T0, S_T1))
    a('s_lshl_b32 s%d, s%d, 5' % (S_T1, S_KH))
    a('s_add_u32 s%d, s%d, s%d' % (S_T0, S_T0, S_T1))

U_Q, U_K, U_V, U_OA, U_WQ, U_OB = range(6)
UPTR = {U_Q: 42, U_K: 42, U_V: 42, U_OA: 44, U_WQ: 48, U_OB: 54}
ULD = {U_Q: 3072, U_K: 3072, U_V: 3072, U_OA: 1024, U_WQ: 1024, U_OB: 1024}
UCOL = {U_Q: 0, U_K: 1024, U_V: 2048, U_OA: 0, U_WQ: 0, U_OB: 0}
def raw_setup(a, uA, uB, R, sbase, sstep, vdma):
    def sel(d, x, y):
        if x == y: a('s_mov_b32 s%d, %s' % (d, x))
        else:
            a('s_mov_b32 s%d, %s' % (d, x))
            a('s_cmp_eq_u32 s%d, 1' % S_KH)
            a('s_cselect_b32 s%d, %s, s%d' % (d, y, d))
    sel(R, 's%d' % UPTR[uA], 's%d' % UPTR[uB])
    sel(R + 1, 's%d' % (UPTR[uA] + 1), 's%d' % (UPTR[uB] + 1))
    sel(R + 2, '0x%x' % (ULD[uA] * 512), '0x%x' % (ULD[uB] * 512))
    a('s_mov_b32 s%d, 0x00020000' % (R + 3))
    sel(sstep, str(ULD[uA]), str(ULD[uB]))
    sel(sbase, str(UCOL[uA]), str(UCOL[uB]))
    a('v_lshrrev_b32 v%d, 2, v%d' % (vdma, V_LANE))
    a('v_mul_lo_u32 v%d, v%d, s%d' % (vdma, vdma, sstep))
    a('v_and_b32 v7, 3, v%d' % V_LANE)
    a('v_lshl_add_u32 v%d, v7, 4, v%d' % (vdma, vdma))
    a('s_lshl_b32 s%d, s%d, 4' % (sstep, sstep))
    a('s_lshl_b32 s%d, s%d, 4' % (S_T0, S_I))
    a('s_mul_i32 s%d, s%d, s%d' % (S_T0, S_T0, sstep))
    a('s_add_u32 s%d, s%d, s%d' % (sbase, sbase, S_T0))
    a('s_add_u32 s%d, s%d, s%d' % (sbase, sbase, S_WOFF))

def raw_rdaddr(a, v, slds):
    a('v_lshrrev_b32 v%d, 5, v%d' % (v, V_LANE))
    a('v_lshlrev_b32 v%d, 8, v%d' % (v, v))
    a('v_bfe_u32 v7, v%d, 2, 2' % V_LANE)
    a('v_lshl_add_u32 v%d, v7, 6, v%d' % (v, v))
    a('v_bfe_u32 v7, v%d, 4, 1' % V_LANE)
    a('v_lshl_add_u32 v%d, v7, 5, v%d' % (v, v))
    a('v_and_b32 v7, 3, v%d' % V_LANE)
    a('v_lshl_add_u32 v%d, v7, 3, v%d' % (v, v))
    a('v_add_u32 v%d, s%d, v%d' % (v, slds, v))

def raw_dma(R, sbase, sstep, vdma, slds, off):
    return ['s_add_u32 m0, s%d, %d' % (slds, off), 's_nop 0',
            'buffer_load_dwordx4 v%d, s[%d:%d], s%d offen lds' % (vdma, R, R + 3, sbase),
            's_add_u32 s%d, s%d, s%d' % (sbase, sbase, sstep)]

def raw_rd(dst, va, off):
    return ['ds_read_b64_tr_b16 v[%d:%d], v%d offset:%d' % (dst, dst + 1, va, off),
            'ds_read_b64_tr_b16 v[%d:%d], v%d offset:%d' % (dst + 2, dst + 3, va, off + 512)]

RW_D, RW_A = 94, 95
def load_w_issue(a, u, lds0, half):
    if half == 0:
        raw_setup(a, u, u, S_IN2, 68, 69, RW_D)
        a('s_and_b32 s70, s%d, 3' % S_W)
        a('s_lshl_b32 s70, s70, 13')
        a('s_add_u32 s70, s70, %d' % lds0)
        raw_rdaddr(a, RW_A, 70)
    for k in range(8):
        for l in raw_dma(S_IN2, 68, 69, RW_D, 70, k * 1024): a(l)

def load_w_read(a, vbase, half):
    for k in range(8):
        for l in raw_rd(vbase + 4 * (8 * half + k), RW_A, k * 1024): a(l)
    a('s_waitcnt lgkmcnt(0)')

def load_w_sync(a, u, vbase, lds0):
    for half in range(2):
        load_w_issue(a, u, lds0, half)
        a('s_waitcnt vmcnt(0)')
        load_w_read(a, vbase, half)

def load_w_ring(a, u, vbase, nslots):
    raw_setup(a, u, u, S_IN2, 68, 69, RW_D)
    raw_rdaddr(a, RW_A, 70)
    for k in range(nslots):
        for l in raw_dma(S_IN2, 68, 69, RW_D, 70, k * 1024): a(l)
    for k in range(16):
        a('s_waitcnt vmcnt(%d)' % min(nslots - 1, 15 - k))
        for l in raw_rd(vbase + 4 * k, RW_A, (k % nslots) * 1024): a(l)
        if k + nslots < 16:
            a('s_waitcnt lgkmcnt(0)')
            for l in raw_dma(S_IN2, 68, 69, RW_D, 70, (k % nslots) * 1024): a(l)
    a('s_waitcnt lgkmcnt(0)')

LDS_W16 = 135168
def dma_w16(a):
    a('s_cmp_eq_u32 s%d, 1' % S_WHICH)
    a('s_cselect_b32 s%d, s52, s50' % S_IN2)
    a('s_cselect_b32 s%d, s53, s51' % (S_IN2 + 1))
    a('s_mov_b32 s%d, 0x4000' % (S_IN2 + 2))
    a('s_mov_b32 s%d, 0x00020000' % (S_IN2 + 3))
    a('s_and_b32 s%d, s%d, 3' % (S_T0, S_W))
    a('s_lshl_b32 s%d, s%d, 12' % (S_T0, S_T0))
    a('s_add_u32 m0, s%d, %d' % (S_T0, LDS_W16))
    a('s_nop 0')
    for k in range(4):
        a('buffer_load_dwordx4 v%d, s[%d:%d], s%d offen offset:%d lds' % (V_L16, S_IN2, S_IN2 + 3, S_T0, k * 1024))

STL = 88
SDG, SDL = 84, 85
def dma_setup(a, all8):
    a('s_lshl_b32 s%d, s%d, 15' % (SDL, S_I))
    a('s_lshl_b32 s%d, s%d, 14' % (S_T2, S_J))
    a('s_add_u32 s%d, s%d, s%d' % (SDL, SDL, S_T2))
    if all8:
        a('s_lshl_b32 s%d, s%d, 11' % (S_T2, S_KH))
        a('s_add_u32 s%d, s%d, s%d' % (SDL, SDL, S_T2))
    a('s_add_u32 s%d, s%d, s%d' % (SDG, S_TOFF, S_XOFF))
    a('s_add_u32 s%d, s%d, s%d' % (SDG, SDG, SDL))

def dma_chunk(a, n):
    a('s_mov_b32 m0, s%d' % SDL)
    a('s_add_u32 s%d, s%d, 4096' % (SDL, SDL))
    for t in range(n):
        a('buffer_load_dwordx4 v%d, %s, s%d offen offset:%d sc1 lds' % (V_L16, WSR, SDG, t * 1024))
    a('s_add_u32 s%d, s%d, 4096' % (SDG, SDG))

def st_issue(a, all8):
    n = 4 if all8 else 8
    a('v_lshlrev_b32 v5, 3, v%d' % V_LANE)
    a('s_lshr_b32 s%d, s%d, 2' % (S_T0, S_XOFF))
    if all8: a('s_lshl_b32 s%d, s%d, 11' % (S_T1, S_W))
    else:
        a('s_and_b32 s%d, s%d, 3' % (S_T1, S_W))
        a('s_lshl_b32 s%d, s%d, 12' % (S_T1, S_T1))
    a('s_add_u32 s%d, s%d, s%d' % (S_T0, S_T0, S_T1))
    a('s_add_u32 s%d, s%d, s%d' % (S_T0, S_T0, S_SOFF))
    for q in range(n):
        a('buffer_load_dwordx2 v[%d:%d], v5, %s, s%d offen offset:%d sc1' % (80 + 2 * q, 81 + 2 * q, WSR, S_T0, q * 512))

def st_partial(a, all8):
    T = 80; n = 4 if all8 else 8
    while n > 1:
        n //= 2
        for q in range(n): pk_add(a, T + 2 * q, T + 2 * q, T + 2 * (q + n))
    if all8: a('s_lshl_b32 s%d, s%d, 9' % (S_T0, S_W))
    else:
        a('s_and_b32 s%d, s%d, 3' % (S_T0, S_W))
        a('s_lshl_b32 s%d, s%d, 9' % (S_T0, S_T0))
    a('s_add_u32 s%d, s%d, %d' % (S_T0, S_T0, LM_STD.stat))
    a('v_lshlrev_b32 v5, 3, v%d' % V_LANE)
    a('v_add_u32 v5, s%d, v5' % S_T0)
    a('ds_write_b64 v5, v[%d:%d]' % (T, T + 1))
    a('s_waitcnt lgkmcnt(0)')

def rs_issue(a, stat, nparts, T=80):
    a('v_lshlrev_b32 v5, 3, v%d' % V_LANE)
    a('v_add_u32 v5, %d, v5' % stat)
    for q in range(nparts // 2):
        a('ds_read2st64_b64 %s, v5 offset0:%d offset1:%d' % (vr(T + 4 * q), 2 * q, 2 * q + 1))

def rs_math(a, nparts, T=80):
    n = nparts
    while n > 2:
        n //= 2
        for q in range(n): pk_add(a, T + 2 * q, T + 2 * q, T + 2 * (q + n))
    pk_add(a, VM, T, T + 2)
    stats_math(a, VM, VR)

def rs_spread(a, frags):
    a('v_mov_b32 v8, v%d' % VM)
    a('v_mov_b32 v9, v%d' % VR)
    a('s_cmp_eq_u32 s%d, 1' % S_I)
    a('s_cselect_b64 s[%d:%d], -1, 0' % (S_T2, S_T3))
    a('v_permlane32_swap_b32 v%d, v8' % VM)
    a('v_permlane32_swap_b32 v%d, v9' % VR)
    a('s_nop 1')
    a('v_cndmask_b32_e64 v%d, v%d, v9, s[%d:%d]' % (VR, VR, S_T2, S_T3))
    if frags:
        a('v_cndmask_b32_e64 v9, v%d, v8, s[%d:%d]' % (VM, S_T2, S_T3))
        a('v_cndmask_b32_e64 v8, v8, v%d, s[%d:%d]' % (VM, S_T2, S_T3))
        make_mfrag(a, 9, V_MF)
        make_mfrag(a, 8, V_MF + 4)

def toggle_bufs(a, stats):
    next_tile(a)
    if stats: a('s_xor_b32 s%d, s%d, 0x%x' % (S_SOFF, S_SOFF, STP ^ (STP + 0x80000)))

def loader_path(a, stats, extra=None, hook=None):
    nx = 4 if extra else 0
    cwait(a)
    dma_setup(a, False)
    dma_chunk(a, 4)
    if stats: st_issue(a, False)
    dma_chunk(a, 4)
    a('s_waitcnt vmcnt(%d)' % (12 if stats else 4))
    a('s_barrier')
    dma_chunk(a, 4)
    if hook: hook(0)
    a('s_waitcnt vmcnt(4)')
    if stats: st_partial(a, False)
    a('s_barrier')
    dma_chunk(a, 4)
    if extra: extra()
    if stats:
        rs_issue(a, LM_STD.stat, 4)
    if hook: hook(1)
    if stats:
        a('s_waitcnt lgkmcnt(0)')
        rs_math(a, 4)
        if hook: hook('stats')
    a('s_waitcnt vmcnt(%d)' % (4 + nx))
    a('s_barrier')
    if hook: hook(2)
    a('s_waitcnt vmcnt(%d)' % nx)
    a('s_barrier')
    if hook: hook(3)
    if stats: rs_spread(a, False)
    if extra: a('s_waitcnt vmcnt(0)')

def active_path(a, w, stats, all8=False):
    def rd(t):
        b = XBUF[t % 4]
        a('ds_read_b128 %s, v%d offset:%d' % (vr(b), V_XA, t * 1024))
        a('ds_read_b128 %s, v%d offset:%d' % (vr(b + 4), V_XB, t * 1024))
    np_ = 8 if all8 else 4
    if all8:
        cwait(a)
        dma_setup(a, True)
        dma_chunk(a, 2)
        st_issue(a, True)
        dma_chunk(a, 2)
        a('s_waitcnt vmcnt(6)')
    a('s_barrier')
    for t in range(3): rd(t)
    for t in range(16):
        b = XBUF[t % 4]
        if t in (1, 5, 9):
            if all8:
                if t < 9: dma_chunk(a, 2)
                a('s_waitcnt vmcnt(%d)' % (2 if t < 9 else 0))
                if t == 1: st_partial(a, True)
            a('s_barrier')
        if t == 2 and stats:
            rs_issue(a, LM_STD.stat, np_)
        if t + 3 < 16:
            rd(t + 3)
        a('s_waitcnt lgkmcnt(%d)' % (2 * min(3, 15 - t)))
        for q, acc in enumerate((ACC0, ACC1)):
            c = '0' if t == 0 else vr(acc, 16)
            a('v_mfma_f32_32x32x16_bf16 %s, %s, %s, %s' % (vr(acc, 16), vr(w + 4 * t), vr(b + 4 * q), c))
        if t == 6 and stats: rs_math(a, np_)
        if t == 7 and stats: rs_spread(a, True)

class ifelse:
    def __init__(s, a): s.a = a; s.L1 = a.newlabel('ie'); s.L2 = a.newlabel('ie')
    def if_set(s, k):
        s.a('s_cmp_lg_u32 s%d, %d' % (S_KH, k)); s.a('s_cbranch_scc1 %s' % s.L1)
    def else_(s):
        s.a('s_branch %s' % s.L2); s.a.label(s.L1)
    def end(s): s.a.label(s.L2)

def kloop(a, w, t0, t1):
    def rd(t):
        b = XBUF[t % 4]
        a('ds_read_b128 %s, v%d offset:%d' % (vr(b), V_XA, t * 1024))
        a('ds_read_b128 %s, v%d offset:%d' % (vr(b + 4), V_XB, t * 1024))
    for t in range(t0, min(t0 + 3, t1)):
        rd(t)
    for t in range(t0, t1):
        b = XBUF[t % 4]
        if t + 3 < t1:
            rd(t + 3)
        a('s_waitcnt lgkmcnt(%d)' % (2 * min(3, t1 - 1 - t)))
        for q, acc in enumerate((ACC0, ACC1)):
            c = '0' if t == 0 else vr(acc, 16)
            a('v_mfma_f32_32x32x16_bf16 %s, %s, %s, %s' % (vr(acc, 16), vr(w + 4 * t), vr(b + 4 * q), c))

def halves_sum(a, v, tmp, op='v_add_f32'):
    a('v_mov_b32 v%d, v%d' % (tmp, v))
    a('s_nop 1')
    a('v_permlane32_swap_b32 v%d, v%d' % (v, tmp))
    a('s_nop 1')
    a('%s v%d, v%d, v%d' % (op, v, v, tmp))

def bf16r(a, v):
    a('v_cvt_pk_bf16_f32 v%d, v%d, v%d' % (v, v, v))
    a('v_and_b32 v%d, 0xffff0000, v%d' % (v, v))

def pk_add(a, d, x, y):
    a('v_pk_add_f32 v[%d:%d], v[%d:%d], v[%d:%d]' % (d, d + 1, x, x + 1, y, y + 1))

def stats_math(a, vm, vrstd):
    a('v_mul_f32 v%d, 0x%x, v%d' % (vm, f2u(1.0 / 512), vm))
    a('v_mul_f32 v%d, 0x%x, v%d' % (vrstd, f2u(1.0 / 512), vrstd))
    a('v_fma_f32 v%d, -v%d, v%d, v%d' % (vrstd, vm, vm, vrstd))
    a('v_max_f32 v%d, 0, v%d' % (vrstd, vrstd))
    bf16r(a, vrstd)
    a('v_add_f32 v%d, 0x%x, v%d' % (vrstd, f2u(1e-5), vrstd))
    bf16r(a, vrstd)
    a('v_sqrt_f32 v%d, v%d' % (vrstd, vrstd))
    a('s_nop 0')
    bf16r(a, vrstd)
    a('v_rcp_f32 v%d, v%d' % (vrstd, vrstd))
    bf16r(a, vm)

def stats_read(a, lm, vrow, T, vm=VM):
    a('v_lshlrev_b32 v%d, 3, v%d' % (vrow, vrow))
    a('v_add_u32 v%d, %d, v%d' % (vrow, lm.stat, vrow))
    for q in range(4):
        a('ds_read2st64_b64 %s, v%d offset0:%d offset1:%d' % (vr(T + 4 * q), vrow, 2 * q, 2 * q + 1))
    a('s_waitcnt lgkmcnt(0)')
    for q in range(4):
        pk_add(a, T + 4 * q, T + 4 * q, T + 4 * q + 2)
    pk_add(a, T, T, T + 4)
    pk_add(a, T + 8, T + 8, T + 12)
    pk_add(a, vm, T, T + 8)
    stats_math(a, vm, vm + 1)

def ln_stats(a, lm, T=V_TMP):
    a('v_and_b32 v5, 31, v%d' % V_LANE)
    a('s_lshl_b32 s%d, s%d, 5' % (S_T0, S_I))
    a('v_add_u32 v5, s%d, v5' % S_T0)
    stats_read(a, lm, 5, T)

def make_mfrag(a, vm, d):
    a('v_cvt_pk_bf16_f32 v%d, -v%d, -v%d' % (d, vm, vm))
    a('v_cvt_pk_bf16_f32 v%d, -v%d, -v%d' % (d + 1, vm, vm))
    a('v_mov_b32 v%d, 0' % (d + 2))
    a('v_mov_b32 v%d, 0' % (d + 3))

def mean_issue(a, lm):
    T = V_ACC + 40
    a('v_and_b32 v5, 31, v%d' % V_LANE)
    a('v_lshlrev_b32 v5, 3, v5')
    a('s_lshl_b32 s%d, s%d, 8' % (S_T0, S_I))
    a('s_add_u32 s%d, s%d, %d' % (S_T0, S_T0, lm.stat))
    a('v_add_u32 v5, s%d, v5' % S_T0)
    a('v_xor_b32 v6, 256, v5')
    for q in range(2):
        for k in range(4):
            a('ds_read2st64_b32 v[%d:%d], v%d offset0:%d offset1:%d' % (T + 8 * q + 2 * k, T + 8 * q + 2 * k + 1, 5 + q, 4 * k, 4 * k + 2))

def mean_finish(a):
    T = V_ACC + 40
    for q in range(2):
        t = T + 8 * q
        pk_add(a, t, t, t + 2)
        pk_add(a, t + 4, t + 4, t + 6)
        pk_add(a, t, t, t + 4)
        a('v_add_f32 v%d, v%d, v%d' % (t, t, t + 1))
        a('v_mul_f32 v%d, 0x%x, v%d' % (t, f2u(1.0 / 512), t))
        make_mfrag(a, t, V_MF + 4 * q)
    a('s_nop 1')

def mean_frags(a, lm):
    mean_issue(a, lm)
    a('s_waitcnt lgkmcnt(0)')
    mean_finish(a)

def stats_load_issue(a, T=V_TMP, tag=None):
    a('v_lshlrev_b32 v5, 3, v%d' % V_LANE)
    a('s_lshr_b32 s%d, s%d, 2' % (S_T0, S_XOFF))
    a('s_lshl_b32 s%d, s%d, 11' % (S_T1, S_W))
    a('s_add_u32 s%d, s%d, s%d' % (S_T0, S_T0, S_T1))
    a('s_add_u32 s%d, s%d, s%d' % (S_T0, S_T0, S_SOFF))
    for q in range(4):
        a.v(tag, 'buffer_load_dwordx2 v[%d:%d], v5, %s, s%d offen offset:%d sc1' % (T + 2 * q, T + 2 * q + 1, WSR, S_T0, q * 512))

def stats_load_finish(a, lm, T=V_TMP):
    pk_add(a, T, T, T + 2)
    pk_add(a, T + 4, T + 4, T + 6)
    pk_add(a, T, T, T + 4)
    a('s_lshl_b32 s%d, s%d, 9' % (S_T0, S_W))
    a('s_add_u32 s%d, s%d, %d' % (S_T0, S_T0, lm.stat))
    a('v_lshlrev_b32 v5, 3, v%d' % V_LANE)
    a('v_add_u32 v5, s%d, v5' % S_T0)
    a('ds_write_b64 v5, v[%d:%d]' % (T, T + 1))
    a('s_xor_b32 s%d, s%d, 0x%x' % (S_SOFF, S_SOFF, STP ^ (STP + 0x80000)))

def make_csfrag(a, vc, d, t):
    a('v_cvt_pk_bf16_f32 v%d, v%d, v%d' % (t, vc, vc))
    a('v_and_b32 v%d, 0xffff0000, v%d' % (t, t))
    a('v_sub_f32 v%d, v%d, v%d' % (t + 1, vc, t))
    a('v_cvt_pk_bf16_f32 v%d, v%d, v%d' % (d, t, t + 1))
    a('v_and_b32 v%d, 0xffff0000, v%d' % (t, d))
    a('v_sub_f32 v%d, v%d, v%d' % (t + 1, t + 1, t))
    a('v_cvt_pk_bf16_f32 v%d, v%d, 0' % (d + 1, t + 1))

def y_correct(a, cf):
    for q, acc in enumerate((ACC0, ACC1)):
        a('v_mfma_f32_32x32x16_bf16 %s, %s, %s, %s' % (vr(acc, 16), vr(cf), vr(V_MF + 4 * q), vr(acc, 16)))

def y_red_write(a, base, own):
    a('s_lshl_b32 s%d, s%d, 13' % (S_T0, S_J))
    a('s_mul_i32 s%d, s%d, 6144' % (S_T1, S_I))
    a('s_add_u32 s%d, s%d, s%d' % (S_T0, S_T0, S_T1))
    a('s_add_u32 s%d, s%d, %d' % (S_T0, S_T0, base))
    a('v_add_u32 v5, s%d, v%d' % (S_T0, V_L16))
    a('v_xor_b32 v6, 4096, v5')
    a.nop(7)
    for q, acc in enumerate((ACC0, ACC1)):
        for nh in range(2):
            if q == 0 and nh == own: continue
            a('ds_write_b128 v%d, %s offset:%d' % (5 + q, vr(acc + 8 * nh), nh * 16384))
            a('ds_write_b128 v%d, %s offset:%d' % (5 + q, vr(acc + 8 * nh + 4), nh * 16384 + 1024))

def y_red_read(a, base, own):
    d = V_ACC
    a('s_lshl_b32 s%d, s%d, 12' % (S_T0, S_W))
    a('s_add_u32 s%d, s%d, %d' % (S_T0, S_T0, base))
    a('v_add_u32 v5, s%d, v%d' % (S_T0, V_L16))
    L1 = a.newlabel('rr'); L2 = a.newlabel('rr')
    a('s_cmp_eq_u32 s%d, %d' % (S_KH, own))
    a('s_cbranch_scc1 %s' % L1)
    for k in range(4):
        a('ds_read_b128 %s, v5 offset:%d' % (vr(d + 4 * k), k * 1024))
    a('s_waitcnt lgkmcnt(0)')
    for r in range(0, 8, 2):
        pk_add(a, d + r, d + r, d + 8 + r)
    a('s_branch %s' % L2)
    a.label(L1)
    a('s_xor_b32 s%d, s%d, 1' % (S_T0, S_I))
    a('s_lshl_b32 s%d, s%d, 11' % (S_T0, S_T0))
    a('v_add_u32 v5, s%d, v5' % S_T0)
    a('ds_read_b128 %s, v5' % vr(ACC1))
    a('ds_read_b128 %s, v5 offset:1024' % vr(ACC1 + 4))
    a('s_waitcnt lgkmcnt(0)')
    for r in range(0, 8, 2):
        pk_add(a, d + r, ACC0 + 8 * own + r, ACC1 + r)
    a.label(L2)

def kv_red_write(a, base):
    a('s_xor_b32 s%d, s%d, 1' % (S_T0, S_W))
    a('s_lshl_b32 s%d, s%d, 12' % (S_T0, S_T0))
    a('s_add_u32 s%d, s%d, %d' % (S_T0, S_T0, base))
    a('v_add_u32 v5, s%d, v%d' % (S_T0, V_L16))
    a.nop(9)
    for k in range(4):
        a('ds_write_b128 v5, %s offset:%d' % (vr(ACC1 + 4 * k), k * 1024))

def barrier(a):
    a('s_waitcnt lgkmcnt(0)')
    a('s_barrier')

def phi_pack(a, acc, dst, tl=9, tmp=None, n=8):
    if tmp is None: tmp = acc + 8
    a('v_mul_f32 v%d, 0x%x, v%d' % (tl, f2u(LOG2E), VR))
    for r in range(n):
        a('v_mul_f32 v%d, v%d, v%d' % (tmp + r, acc + r, tl))
    for r in range(n):
        a('v_exp_f32_e64 v%d, v%d clamp' % (tmp + r, tmp + r))
    for r in range(n):
        a('v_fmaak_f32 v%d, v%d, v%d, 0x%x' % (acc + r, acc + r, VR, f2u(1e-6)))
        a('v_max_f32 v%d, 0x%x, v%d' % (acc + r, f2u(1e-6), acc + r))
    for r in range(0, n, 2):
        pk_add(a, acc + r, acc + r, tmp + r)
    for r in range(n // 2):
        a('v_cvt_pk_bf16_f32 v%d, v%d, v%d' % (dst + r, acc + 2 * r, acc + 2 * r + 1))

def scale_pack(a, acc, vs, dst, n=8):
    for r in range(n):
        a('v_mul_f32 v%d, v%d, v%d' % (acc + r, acc + r, vs))
    for r in range(n // 2):
        a('v_cvt_pk_bf16_f32 v%d, v%d, v%d' % (dst + r, acc + 2 * r, acc + 2 * r + 1))

def store_blk(a, v):
    a('s_add_u32 s%d, s%d, s%d' % (S_T0, S_BLK, S_TOFF))
    fast_store(a, ['buffer_store_dwordx4 %s, v%d, %s, s%d offen@' % (vr(v), V_L16, WSR, S_T0)])

def store_stats(a, tag=None):
    a('v_mov_b32 v6, 0')
    a('v_mov_b32 v7, 0')
    a('s_nop 0')
    for r in range(4):
        a('v_dot2_f32_bf16 v6, v%d, v%d, v6' % (V_RES + r, V_ONES))
        a('v_dot2_f32_bf16 v7, v%d, v%d, v7' % (V_RES + r, V_RES + r))
    a('s_bfe_u32 s%d, s%d, 0x5000a' % (S_T0, S_BLK))
    a('s_lshl_b32 s%d, s%d, 9' % (S_T0, S_T0))
    a('s_lshr_b32 s%d, s%d, 2' % (S_T1, S_XOFF))
    a('s_add_u32 s%d, s%d, s%d' % (S_T0, S_T0, S_T1))
    a('s_lshl_b32 s%d, s%d, 8' % (S_T1, S_I))
    a('s_add_u32 s%d, s%d, s%d' % (S_T0, S_T0, S_T1))
    a('s_add_u32 s%d, s%d, s%d' % (S_T0, S_T0, S_SOFF))
    a('v_mov_b32 v8, v6')
    a('v_mov_b32 v9, v7')
    a('v_lshlrev_b32 v5, 3, v%d' % V_LANE)
    a('s_nop 0')
    a('v_permlane32_swap_b32 v6, v8')
    a('v_permlane32_swap_b32 v7, v9')
    a('s_nop 1')
    a('v_pk_add_f32 v[6:7], v[6:7], v[8:9]')
    a('s_mov_b32 exec_hi, 0')
    fast_store(a, ['buffer_store_dwordx2 v[6:7], v5, %s, s%d offen@' % (WSR, S_T0)])
    a('s_mov_b32 exec_hi, -1')
    if tag: a.vm.append(tag)

def store_x(a):
    store_blk(a, V_RES)
    store_stats(a)

def a1_kv_owner(a, lm):
    a('s_lshl_b32 s%d, s%d, 12' % (S_T0, S_W))
    a('s_add_u32 s%d, s%d, %d' % (S_T0, S_T0, lm.red))
    a('v_add_u32 v5, s%d, v%d' % (S_T0, V_L16))
    for k in range(4):
        a('ds_read_b128 %s, v5 offset:%d' % (vr(ACC1 + 4 * k), k * 1024))
    a('s_lshl_b32 s%d, s%d, 12' % (S_T0, S_J))
    a('s_lshl_b32 s%d, s%d, 13' % (S_T1, S_KH))
    a('s_add_u32 s%d, s%d, s%d' % (S_T0, S_T0, S_T1))
    a('s_lshl_b32 s%d, s%d, 10' % (S_T1, S_I))
    a('s_add_u32 s%d, s%d, s%d' % (S_T0, S_T0, S_T1))
    a('s_add_u32 s%d, s%d, %d' % (S_T0, S_T0, lm.pkv))
    a('v_and_b32 v7, 31, v%d' % V_LANE)
    a('v_lshlrev_b32 v7, 5, v7')
    a('v_lshrrev_b32 v6, 5, v%d' % V_LANE)
    a('v_lshl_add_u32 v7, v6, 4, v7')
    a('v_add_u32 v7, s%d, v7' % S_T0)
    a('s_waitcnt lgkmcnt(0)')
    for r in range(0, 16, 2):
        pk_add(a, ACC0 + r, ACC0 + r, ACC1 + r)
    with role(a, 'A'):
        phi_pack(a, ACC0, V_XF, tmp=ACC1, n=16)
    with role(a, 'B'):
        scale_pack(a, ACC0, VR, V_XF, n=16)
    a('ds_write_b128 v7, %s' % vr(V_XF))
    a('ds_write_b128 v7, %s offset:2048' % vr(V_XF + 4))
    barrier(a)

def head_addrs(a):
    a('s_lshl_b32 s%d, s%d, 2' % (S_T2, S_CS))
    a('s_add_u32 s%d, s%d, s%d' % (S_T2, S_T2, S_W))
    a('s_lshl_b32 s%d, s%d, 14' % (S_T3, S_T2))
    a('s_add_u32 s%d, s%d, s%d' % (S_T3, S_T3, S_LOFF))
    a('s_add_u32 s%d, s%d, 0x%x' % (S_T3, S_T3, KVP_))
    a('s_lshl_b32 s%d, s%d, 11' % (S_T4, S_T2))
    a('s_add_u32 s%d, s%d, s%d' % (S_T4, S_T4, S_LOFF))
    a('s_add_u32 s%d, s%d, 0x%x' % (S_T4, S_T4, ZP_))
    a('s_lshl_b32 s%d, s%d, 12' % (S_T5, S_T2))
    a('s_add_u32 s%d, s%d, 0x%x' % (S_T5, S_T5, HFLAG))

def hello(a):
    head_addrs(a)
    a('s_mov_b32 s64, 1')
    tagval(a, 8, 64)
    a('s_lshl_b32 s%d, s%d, 7' % (S_T0, S_RB))
    a('s_add_u32 s%d, s%d, s%d' % (S_T0, S_T0, S_T5))
    a('v_mov_b32 v5, 0')
    a('s_mov_b64 exec, 1')
    a('buffer_store_dwordx2 v[8:9], v5, %s, s%d offen sc1' % (WSR, S_T0))
    a('s_mov_b64 exec, -1')

def kv_publish(a, lm, first):
    PA, PB, D, D2, ON = V_XF, V_XF + 8, V_ACC, V_ACC + 4, V_ACC + 8
    a('v_lshrrev_b32 v5, 4, v%d' % V_LANE)
    a('v_lshlrev_b32 v5, 8, v5')
    a('v_bfe_u32 v6, v%d, 2, 2' % V_LANE)
    a('v_lshl_add_u32 v5, v6, 5, v5')
    a('v_and_b32 v6, 1, v%d' % V_LANE)
    a('v_lshl_add_u32 v5, v6, 4, v5')
    a('v_bfe_u32 v6, v%d, 1, 1' % V_LANE)
    a('v_lshl_add_u32 v5, v6, 3, v5')
    a('s_lshl_b32 s%d, s%d, 11' % (S_T0, S_W))
    a('s_add_u32 s%d, s%d, %d' % (S_T0, S_T0, lm.pkv))
    a('v_add_u32 v5, s%d, v5' % S_T0)
    for sl in range(2):
        for u in range(2):
            a('ds_read_b64_tr_b16 v[%d:%d], v5 offset:%d' % (PA + 4 * sl + 2 * u, PA + 4 * sl + 2 * u + 1, sl * 1024 + u * 128))
            a('ds_read_b64_tr_b16 v[%d:%d], v5 offset:%d' % (PB + 4 * sl + 2 * u, PB + 4 * sl + 2 * u + 1, 8192 + sl * 1024 + u * 128))
    for r in range(4):
        a('v_mov_b32 v%d, v%d' % (ON + r, V_ONES))
    head_addrs(a)
    a('s_waitcnt lgkmcnt(0)')
    a('v_mfma_f32_16x16x32_bf16 %s, %s, %s, 0' % (vr(D), vr(PA), vr(PB)))
    a('v_mfma_f32_16x16x32_bf16 %s, %s, %s, 0' % (vr(D2), vr(PA), vr(ON)))
    a('v_mfma_f32_16x16x32_bf16 %s, %s, %s, %s' % (vr(D), vr(PA + 4), vr(PB + 4), vr(D)))
    a('v_mfma_f32_16x16x32_bf16 %s, %s, %s, %s' % (vr(D2), vr(PA + 4), vr(ON), vr(D2)))
    a('s_lshl_b32 s%d, s%d, 9' % (S_T0, S_RB))
    a('s_add_u32 s%d, s%d, s%d' % (S_T0, S_T0, S_T3))
    a('s_lshl_b32 s%d, s%d, 6' % (S_T1, S_RB))
    a('s_add_u32 s%d, s%d, s%d' % (S_T1, S_T1, S_T4))
    a('v_and_b32 v6, 48, v%d' % V_LANE)
    a('v_lshlrev_b32 v5, 3, v%d' % V_LANE)
    a('s_nop 2')
    a('v_cvt_pk_bf16_f32 v%d, v%d, v%d' % (D, D, D + 1))
    a('v_cvt_pk_bf16_f32 v%d, v%d, v%d' % (D + 1, D + 2, D + 3))
    for r in (0, 1, 4, 5, 6, 7):
        a('v_min_u32 v%d, -2, v%d' % (D + r, D + r))
    a('buffer_store_dwordx2 v[%d:%d], v5, %s, s%d offen sc1' % (D, D + 1, WSR, S_T0))
    a('s_mov_b32 exec_lo, 0x00010001')
    a('s_mov_b32 exec_hi, 0x00010001')
    a('buffer_store_dwordx4 %s, v6, %s, s%d offen sc1' % (vr(D2), WSR, S_T1))
    a('s_mov_b64 exec, -1')
    ts2(a)
    if first:
        a('s_mov_b32 s64, 1')
        tagbase(a, 65, 64)
        a('v_and_b32 v5, 31, v%d' % V_LANE)
        a('v_lshlrev_b32 v5, 7, v5')
        poll(a, ['buffer_load_dwordx2 v[8:9], v5, %s, s%d offen sc1' % (WSR, S_T5)], tagcmp([8], 65, 7))
    else:
        load_w_issue(a, U_OA, lm.wst, 0)
        a('s_waitcnt vmcnt(0)')
        load_w_read(a, V_W0, 0)
        load_w_issue(a, U_OA, lm.wst, 1)

def kv_gather(a, lm, first):
    if first:
        load_w_issue(a, U_OA, lm.wst, 0)
    head_addrs(a)
    ZR = V_TMP
    a('v_and_b32 v6, 48, v%d' % V_LANE)
    a('v_and_b32 v5, 15, v%d' % V_LANE)
    a('v_lshl_add_u32 v5, v5, 6, v6')
    poll(a, ['buffer_load_dwordx4 %s, v5, %s, s%d offen sc1' % (vr(ZR), WSR, S_T4),
             'buffer_load_dwordx4 %s, v5, %s, s%d offen offset:1024 sc1' % (vr(ZR + 4), WSR, S_T4)],
         ['v_max3_u32 v7, v%d, v%d, v%d' % (ZR, ZR + 1, ZR + 2), 'v_max3_u32 v8, v%d, v%d, v%d' % (ZR + 3, ZR + 4, ZR + 5),
          'v_max3_u32 v7, v7, v%d, v%d' % (ZR + 6, ZR + 7), 'v_max_u32 v7, v7, v8', 'v_cmp_eq_u32 vcc, -1, v7'])
    ts2(a)
    G = [V_W1 + 4 * k for k in range(16)]
    AC = V_ACC
    SEL = V_ACC + 8
    Lg = a.newlabel('gat')
    a('s_mov_b32 s%d, 0' % S_SPIN)
    a.label(Lg)
    a('s_add_u32 s%d, s%d, 1' % (S_SPIN, S_SPIN))
    a('s_cmp_gt_u32 s%d, %d' % (S_SPIN, SPIN_MAX))
    a('s_cbranch_scc1 L_end')
    a('s_mov_b32 s%d, s%d' % (S_T0, S_T3))
    for k in range(16):
        if k and k % 4 == 0:
            a('s_add_u32 s%d, s%d, 4096' % (S_T0, S_T0))
        a('buffer_load_dwordx4 %s, v%d, %s, s%d offen offset:%d sc1' % (vr(G[k]), V_L16, WSR, S_T0, (k % 4) * 1024))
    nx = 0
    if first:
        Ls = a.newlabel('gs')
        a('s_cmp_lg_u32 s%d, 1' % S_SPIN)
        a('s_cbranch_scc1 %s' % Ls)
        load_w_read(a, V_W0, 0)
        load_w_issue(a, U_OA, lm.wst, 1)
        a('s_branch %s_j' % Ls)
        a.label(Ls)
        a('s_waitcnt vmcnt(0)')
        a.label(Ls + '_j')
        nx = 8
    else:
        load_w_read(a, V_W0, 1)
    Z2 = V_TMP + 8
    pk_add(a, Z2, ZR, ZR + 4)
    pk_add(a, Z2 + 2, ZR + 2, ZR + 6)
    for sh in (8, 4, 2, 1):
        a('s_nop 1')
        for r in range(4):
            a('v_add_f32_dpp v%d, v%d, v%d row_ror:%d row_mask:0xf bank_mask:0xf' % (Z2 + r, Z2 + r, Z2 + r, sh))
    a('v_cvt_pk_bf16_f32 v%d, v%d, v%d' % (Z2, Z2, Z2 + 1))
    a('v_cvt_pk_bf16_f32 v%d, v%d, v%d' % (Z2 + 1, Z2 + 2, Z2 + 3))
    a('s_mov_b32 s%d, 0x00110011' % S_T0)
    a('s_mov_b32 s%d, 0x00110011' % S_T1)
    a('v_cndmask_b32_e64 v%d, 0, v%d, s[%d:%d]' % (Z2, Z2, S_T0, S_T1))
    a('v_cndmask_b32_e64 v%d, 0, v%d, s[%d:%d]' % (Z2 + 1, Z2 + 1, S_T0, S_T1))
    a('v_and_b32 v5, 15, v%d' % V_LANE)
    a('v_lshlrev_b32 v5, 4, v5')
    a('v_bfe_u32 v6, v%d, 4, 1' % V_LANE)
    a('v_lshl_add_u32 v5, v6, 9, v5')
    a('v_lshrrev_b32 v6, 5, v%d' % V_LANE)
    a('v_lshl_add_u32 v5, v6, 3, v5')
    a('s_lshl_b32 s%d, s%d, 11' % (S_T0, S_W))
    a('s_add_u32 s%d, s%d, %d' % (S_T0, S_T0, lm.pkv))
    a('v_add_u32 v5, s%d, v5' % S_T0)
    a('ds_write_b64 v5, v[%d:%d] offset:256' % (Z2, Z2 + 1))
    a('v_and_b32 v5, 7, v%d' % V_LANE)
    a('v_lshlrev_b32 v5, 5, v5')
    a('v_bfe_u32 v6, v%d, 3, 1' % V_LANE)
    a('v_lshl_add_u32 v5, v6, 9, v5')
    a('v_bfe_u32 v6, v%d, 4, 1' % V_LANE)
    a('v_lshl_add_u32 v5, v6, 3, v5')
    a('v_add_u32 v5, s%d, v5' % S_T0)
    a('v_mov_b32 v7, 0')
    a('v_mov_b32 v%d, 0x00003f80' % SEL)
    a('v_mov_b32 v%d, 0x3f800000' % (SEL + 1))
    for r in range(8): a('v_mov_b32 v%d, 0' % (AC + r))
    for k in range(16):
        a('s_waitcnt vmcnt(%d)' % (15 - k + nx))
        g = G[k]
        a('v_max3_u32 v7, v7, v%d, v%d' % (g, g + 1))
        a('v_max3_u32 v7, v7, v%d, v%d' % (g + 2, g + 3))
        for r in range(4):
            a('v_dot2_f32_bf16 v%d, v%d, v%d, v%d' % (AC + 2 * r, g + r, SEL, AC + 2 * r))
            a('v_dot2_f32_bf16 v%d, v%d, v%d, v%d' % (AC + 2 * r + 1, g + r, SEL + 1, AC + 2 * r + 1))
    a('v_cmp_eq_u32 vcc, -1, v7')
    a('s_cbranch_vccnz %s' % Lg)
    a('s_nop 1')
    for r in range(8): a('v_mov_b32 v%d, v%d' % (AC + 16 + r, AC + r))
    a('s_nop 1')
    for r in range(8): a('v_permlane32_swap_b32 v%d, v%d' % (AC + r, AC + 16 + r))
    a('s_nop 1')
    for r in range(0, 8, 2): pk_add(a, AC + r, AC + r, AC + 16 + r)
    for r in range(4):
        a('v_cvt_pk_bf16_f32 v%d, v%d, v%d' % (AC + r, AC + 2 * r, AC + 2 * r + 1))
    a('ds_write_b64 v5, v[%d:%d]' % (AC, AC + 1))
    a('ds_write_b64 v5, v[%d:%d] offset:16' % (AC + 2, AC + 3))
    if first:
        a('s_waitcnt vmcnt(0)')
        load_w_read(a, V_W0, 1)

def a1_pq(a, lm):
    y_red_read(a, lm.redq, 1)
    phi_pack(a, V_ACC, V_PQ)

def a1_finish(a, lm):
    a('s_lshl_b32 s%d, s%d, 1' % (S_T0, S_J))
    a('s_add_u32 s%d, s%d, s%d' % (S_T0, S_T0, S_KH))
    a('s_lshl_b32 s%d, s%d, 11' % (S_T0, S_T0))
    a('s_add_u32 s%d, s%d, %d' % (S_T0, S_T0, lm.pkv))
    a('v_add_u32 v6, s%d, v%d' % (S_T0, V_L16))
    a('ds_read_b128 %s, v6' % vr(V_XF + 4))
    a('s_waitcnt lgkmcnt(0)')
    N = V_ACC + 16
    a('v_mfma_f32_32x32x16_bf16 %s, %s, %s, 0' % (vr(N, 16), vr(V_XF + 4), vr(V_PQ)))
    a.nop(12)
    a('v_add_f32 v8, 0x%x, v%d' % (f2u(1e-6), N + 8))
    a('v_rcp_f32 v8, v8')
    a('s_nop 0')
    scale_pack(a, N, 8, V_XF + 8)
    store_blk(a, V_XF + 8)
    csignal(a)

def a1_tail(a, lm, first, qpass, ringbase):
    with role(a, 'B'):
        qpass()
        y_red_write(a, lm.redq, 1)
    with role(a, 'A'):
        kv_publish(a, lm, first)
    barrier(a)
    a1_pq(a, lm)
    with role(a, 'B'):
        ringbase()
        if first:
            colsum(a, V_W1, 9)
            make_csfrag(a, 9, V_CF2, 6)
    with role(a, 'A'):
        kv_gather(a, lm, first)
    barrier(a)
    ts2(a)
    a1_finish(a, lm)

def a1_std(a):
    lm = LM_STD
    active_path(a, V_W1, True, True)
    toggle_bufs(a, True)
    y_correct(a, V_CF1)
    kv_red_write(a, lm.red)
    barrier(a)
    ts2(a)
    a1_kv_owner(a, lm)
    ts2(a)
    def qpass():
        kloop(a, V_W0, 0, 16)
        y_correct(a, V_CF0)
    def ring():
        a('s_and_b32 s70, s%d, 3' % S_W)
        a('s_lshl_b32 s70, s70, 14')
        load_w_ring(a, U_WQ, V_W1, 16)
    a1_tail(a, lm, False, qpass, ring)

def warm2(a, vd, vt, tag=None):
    R = 64
    a('s_lshr_b32 s%d, s2, 3' % S_T2)
    a('s_lshl_b32 s%d, s%d, 3' % (S_T2, S_T2))
    a('s_add_u32 s%d, s%d, s%d' % (S_T2, S_T2, S_W))
    a('v_lshlrev_b32 v%d, 7, v%d' % (vt, V_LANE))
    a('s_lshr_b32 s%d, s%d, 6' % (S_T1, S_T2))
    a('s_mov_b32 s%d, s44\ns_mov_b32 s%d, s45\ns_mov_b32 s%d, 0x80000\ns_mov_b32 s%d, 0x00020000' % (R, R + 1, R + 2, R + 3))
    for (k, p) in ((1, 48), (2, 54), (3, 50)):
        a('s_cmp_eq_u32 s%d, %d' % (S_T1, k))
        a('s_cselect_b32 s%d, s%d, s%d' % (R, p, R))
        a('s_cselect_b32 s%d, s%d, s%d' % (R + 1, p + 1, R + 1))
    a('s_cselect_b32 s%d, 0x4000, s%d' % (R + 2, R + 2))
    a('s_cmp_ge_u32 s%d, 224' % S_T2)
    a('s_cselect_b32 s%d, s52, s%d' % (R, R))
    a('s_cselect_b32 s%d, s53, s%d' % (R + 1, R + 1))
    a('s_cselect_b32 s%d, 31, 63' % S_T1)
    a('s_and_b32 s%d, s%d, s%d' % (S_T0, S_T2, S_T1))
    a('s_lshl_b32 s%d, s%d, 13' % (S_T0, S_T0))
    a.v(tag, 'buffer_load_dword v%d, v%d, s[%d:%d], s%d offen' % (vd, vt, R, R + 3, S_T0))

def p1(a):
    a.vreset()
    srd(a, S_IN2, 40, 0x200000)
    srd(a, S_IN, 42, 0x180000)
    nonce_publish(a)
    VXD = [V_TMP + 16, V_TMP + 17]; VWD = V_TMP + 18
    a('v_lshrrev_b32 v5, 3, v%d' % V_LANE)
    a('v_and_b32 v6, 7, v%d' % V_LANE)
    a('v_lshrrev_b32 v7, 4, v%d' % V_LANE)
    a('v_xor_b32 v8, v6, v7')
    a('v_lshlrev_b32 v8, 4, v8')
    a('v_lshl_add_u32 v%d, v5, 10, v8' % VXD[0])
    a('v_xor_b32 v%d, 64, v%d' % (VXD[1], VXD[0]))
    a('v_lshrrev_b32 v5, 2, v%d' % V_LANE)
    a('v_mul_u32_u24 v5, 3072, v5')
    a('v_and_b32 v6, 3, v%d' % V_LANE)
    a('v_lshl_add_u32 v%d, v6, 4, v5' % VWD)
    SXG, SXL, SWG, SLO, SHI = 85, 87, 88, 89, 90
    a('s_lshl_b32 s%d, s%d, 15' % (S_T0, S_KH))
    a('s_lshl_b32 s%d, s%d, 14' % (S_T1, S_I))
    a('s_add_u32 s%d, s%d, s%d' % (SXG, S_XOFF, S_T0))
    a('s_add_u32 s%d, s%d, s%d' % (SXG, SXG, S_T1))
    a('s_lshl_b32 s%d, s%d, 9' % (S_T1, S_J))
    a('s_add_u32 s%d, s%d, s%d' % (SXG, SXG, S_T1))
    a('s_lshl_b32 s%d, s%d, 14' % (S_T1, S_J))
    a('s_add_u32 s%d, s%d, s%d' % (SXL, S_T0, S_T1))
    a('s_lshl_b32 s%d, s%d, 11' % (S_T1, S_I))
    a('s_add_u32 s%d, s%d, s%d' % (SXL, SXL, S_T1))
    a('s_mul_i32 s%d, s%d, %d' % (SWG, S_I, 256 * 3072))
    a('s_lshl_b32 s%d, s%d, 7' % (S_T0, S_CS))
    a('s_add_u32 s%d, s%d, s%d' % (SWG, SWG, S_T0))
    a('s_lshl_b32 s%d, s%d, 6' % (S_T0, S_J))
    a('s_add_u32 s%d, s%d, s%d' % (SWG, SWG, S_T0))
    a('s_lshl_b32 s94, s%d, 10' % S_KH)
    a('s_add_u32 s94, s94, s%d' % SWG)
    a('s_add_u32 s94, s94, 1024')
    a('s_and_b32 s%d, s%d, 3' % (S_T2, S_W))
    a('s_mul_i32 s%d, s%d, 12288' % (SLO, S_T2))
    a('s_add_u32 s%d, s%d, 65536' % (SLO, SLO))
    a('s_add_u32 s%d, s%d, 4096' % (SHI, SLO))
    a('s_lshl_b32 s%d, s%d, 12' % (S_T0, S_T2))
    a('s_add_u32 s%d, s%d, 114688' % (S_T0, S_T0))
    a('s_lshl_b32 s%d, s%d, 13' % (S_T1, S_T2))
    a('s_add_u32 s%d, s%d, 131072' % (S_T1, S_T1))
    a('s_cmp_eq_u32 s%d, 1' % S_KH)
    a('s_cselect_b32 s%d, s%d, s%d' % (SLO, S_T0, SLO))
    a('s_cselect_b32 s%d, s%d, s%d' % (SHI, S_T1, SHI))
    SROT = 3
    a('s_add_u32 s%d, s%d, s%d' % (SROT, S_RB, S_GRP))
    a('s_and_b32 s%d, s%d, 3' % (SROT, SROT))
    def rotg(g):
        a('s_add_u32 s%d, s%d, %d' % (S_T1, SROT, g))
        a('s_and_b32 s%d, s%d, 3' % (S_T1, S_T1))
    def dma_x(g):
        rotg(g)
        a('s_lshl_b32 s%d, s%d, 7' % (S_T1, S_T1))
        a('s_add_u32 s%d, s%d, s%d' % (S_T1, S_T1, SXG))
        for p in range(2):
            a('s_add_u32 s%d, s%d, %d' % (S_T0, S_T1, p * 8192))
            a('s_add_u32 m0, s%d, %d' % (SXL, g * 4096 + p * 1024))
            a('s_nop 0')
            a.v('x%d' % g, 'buffer_load_dwordx4 v%d, s[12:15], s%d offen lds' % (VXD[p], S_T0))
    def slot(sl): return (SLO, sl * 1024) if sl < 4 else (SHI, (sl - 4) * 1024)
    def dma_w(kt, q=False):
        sb, off = slot(4 + kt % 8) if q else slot(kt % 12)
        rotg(kt // 4)
        a('s_mul_i32 s%d, s%d, %d' % (S_T1, S_T1, 64 * 3072))
        a('s_add_u32 s%d, s%d, s%d' % (S_T1, S_T1, SWG if q else 94))
        a('s_add_u32 s%d, s%d, %d' % (S_T0, S_T1, (kt % 4) * 16 * 3072))
        a('s_add_u32 m0, s%d, %d' % (sb, off))
        a('s_nop 0')
        a.v(('q%d' if q else 'w%d') % kt, 'buffer_load_dwordx4 v%d, s[8:11], s%d offen lds' % (VWD, S_T0))
    dma_x(0)
    for kt in range(4): dma_w(kt)
    a('s_getpc_b64 s[64:65]')
    a.label('L_pcref')
    a('s_lshr_b32 s%d, s2, 3' % S_T0)
    a('s_lshl_b32 s%d, s%d, 3' % (S_T0, S_T0))
    a('s_add_u32 s%d, s%d, s%d' % (S_T0, S_T0, S_W))
    a('s_lshl_b32 s%d, s%d, 8' % (S_T0, S_T0))
    a('s_min_u32 s%d, s%d, L_end - L_pcref - 256' % (S_T0, S_T0))
    a('v_lshlrev_b32 v5, 2, v%d' % V_LANE)
    a('v_add_u32 v5, s%d, v5' % S_T0)
    a.v('cp', 'global_load_dword v%d, v5, s[64:65]' % (V_W0 + 21))
    dma_x(1)
    for kt in range(4, 8): dma_w(kt)
    PKR = V_W0
    def side_misc():
        a('v_and_b32 v5, 31, v%d' % V_LANE)
        a('v_lshlrev_b32 v5, 10, v5')
        a('v_lshrrev_b32 v6, 5, v%d' % V_LANE)
        a('v_lshl_add_u32 v5, v6, 3, v5')
        rowcol_off(a)
        a.v('res', 'buffer_load_dwordx2 v[%d:%d], v5, s[12:15], s%d offen' % (V_RES, V_RES + 1, S_T0))
        a.v('res', 'buffer_load_dwordx2 v[%d:%d], v5, s[12:15], s%d offen offset:16' % (V_RES + 2, V_RES + 3, S_T0))
        head_addrs(a)
        a('s_lshl_b32 s%d, s%d, 9' % (S_T0, S_RB))
        a('s_add_u32 s%d, s%d, s%d' % (S_T0, S_T0, S_T3))
        a('s_lshl_b32 s%d, s%d, 6' % (S_T1, S_RB))
        a('s_add_u32 s%d, s%d, s%d' % (S_T1, S_T1, S_T4))
        a('s_cmp_eq_u32 s%d, 0' % S_KH)
        a('s_cselect_b32 s%d, s%d, 0x%x' % (S_T0, S_T0, OOB))
        a('s_cselect_b32 s%d, s%d, 0x%x' % (S_T1, S_T1, OOB))
        PO = V_W0 + 16
        for r in range(4): a('v_mov_b32 v%d, -1' % (PO + r))
        for ly in range(2):
            if ly:
                a('s_add_u32 s%d, s%d, 0x%x' % (S_T0, S_T0, LS))
                a('s_add_u32 s%d, s%d, 0x%x' % (S_T1, S_T1, LS))
            a('s_mov_b32 exec_hi, 0')
            a.v('poi', 'buffer_store_dwordx4 %s, v%d, %s, s%d offen sc1' % (vr(PO), V_L16, WSR, S_T0))
            a('s_mov_b64 exec, 15')
            a.v('poi', 'buffer_store_dwordx4 %s, v%d, %s, s%d offen sc1' % (vr(PO), V_L16, WSR, S_T1))
            a('s_mov_b64 exec, -1')
        a('v_and_b32 v5, 7, v%d' % V_LANE)
        a('v_lshlrev_b32 v5, 21, v5')
        a.v('tlb', 'buffer_load_dword v%d, v5, %s, 0 offen' % (PO + 4, WSR))
    XR = [V_TMP + 20 + q for q in range(4)]
    WR = V_TMP + 24
    a('v_and_b32 v5, 31, v%d' % V_LANE)
    a('v_bfe_u32 v6, v%d, 1, 3' % V_LANE)
    a('v_lshrrev_b32 v7, 5, v%d' % V_LANE)
    a('v_xor_b32 v6, v6, v7')
    a('s_mul_i32 s%d, s%d, 49152' % (S_T0, S_I))
    a('v_lshlrev_b32 v5, 7, v5')
    a('v_add_u32 v5, s%d, v5' % S_T0)
    XR2 = [V_TMP + 12 + q for q in range(4)]
    for q in range(4):
        a('v_xor_b32 v7, %d, v6' % (2 * q))
        a('v_lshl_add_u32 v%d, v7, 4, v5' % XR[q])
        a('v_xor_b32 v%d, 32768, v%d' % (XR2[q], XR[q]))
    a('v_lshrrev_b32 v5, 5, v%d' % V_LANE)
    a('v_lshlrev_b32 v5, 9, v5')
    a('v_bfe_u32 v6, v%d, 2, 2' % V_LANE)
    a('v_lshl_add_u32 v5, v6, 6, v5')
    a('v_bfe_u32 v6, v%d, 4, 1' % V_LANE)
    a('v_lshl_add_u32 v5, v6, 5, v5')
    a('v_and_b32 v6, 3, v%d' % V_LANE)
    a('v_lshl_add_u32 v5, v6, 3, v5')
    a('v_add_u32 v%d, s%d, v5' % (WR, SLO))
    a('v_add_u32 v%d, s%d, v5' % (WR + 1, SHI))
    FB = [V_W1 + 12 * k for k in range(4)]
    CS, SS = V_TMP + 19, V_TMP + 26
    a('v_mov_b32 v%d, 0\nv_mov_b32 v%d, 0' % (SS, SS + 1))
    a('s_lshl_b32 s95, s%d, 1' % S_KH)
    a('s_add_u32 s95, s95, s%d' % S_J)
    def rd_kt(kt, q=False):
        b = FB[kt % 4]
        sl = 4 + kt % 8 if q else kt % 12
        areg, off = (WR, sl * 1024) if sl < 4 else (WR + 1, (sl - 4) * 1024)
        a('ds_read_b64_tr_b16 v[%d:%d], v%d offset:%d' % (b + 8, b + 9, areg, off))
        a('ds_read_b64_tr_b16 v[%d:%d], v%d offset:%d' % (b + 10, b + 11, areg, off + 256))
        a('ds_read_b128 %s, v%d offset:%d' % (vr(b), XR[kt & 3], (kt >> 2) * 4096))
        a('ds_read_b128 %s, v%d offset:%d' % (vr(b + 4), XR2[kt & 3], (kt >> 2) * 4096))
    def mm_kt(kt, stats):
        b = FB[kt % 4]; first = kt == 0
        if first: a('v_mov_b32 v%d, 0' % CS)
        for q, acc in enumerate((ACC0, ACC1)):
            a('v_mfma_f32_32x32x16_bf16 %s, %s, %s, %s' % (vr(acc, 16), vr(b + 8), vr(b + 4 * q), '0' if first else vr(acc, 16)))
        for r in range(4):
            a('v_dot2_f32_bf16 v%d, v%d, v%d, v%d' % (CS, b + 8 + r, V_ONES, CS))
        if stats:
            for tile in range(2):
                L = a.newlabel('st')
                a('s_cmp_lg_u32 s95, %d' % (2 * tile + (kt & 1)))
                a('s_cbranch_scc1 %s' % L)
                for r in range(4):
                    x = b + 4 * tile + r
                    a('v_dot2_f32_bf16 v%d, v%d, v%d, v%d' % (SS, x, V_ONES, SS))
                    a('v_dot2_f32_bf16 v%d, v%d, v%d, v%d' % (SS + 1, x, x, SS + 1))
                a.label(L)
    for kt in range(17):
        if kt < 16:
            if kt % 4 == 0:
                tags = ['x%d' % (kt // 4), 'w%d' % kt]
                a.vwait(*tags)
                a('s_barrier')
                if E('TSP1'): ts(a)
            else:
                a.vwait('w%d' % kt)
                if E('TSP2'): ts(a)
            rd_kt(kt)
            if kt: a('s_waitcnt lgkmcnt(4)')
        else:
            a('s_waitcnt lgkmcnt(0)')
        if kt >= 1:
            p = kt - 1
            if p < 4: dma_w(p + 12)
            mm_kt(p, True)
        if kt == 0:
            dma_x(2); dma_w(8); dma_w(9)
        if kt == 1:
            dma_w(10); dma_w(11); dma_x(3)
        if kt == 5:
            side_misc()
            nonce_probe(a)
        if kt == 9:
            nonce_check(a)
            a('s_mov_b32 s%d, 1' % S_GPH)
            with role(a, 0):
                lsignal(a)
            with role(a, 'A'):
                hello(a)
            with role(a, 'B'):
                vm = list(a.vm)
                for k in range(4): dma_w(k, True)
                a.vm = vm
        if kt == int(E('WARMKT', '10')):
            warm2(a, V_W0 + 22, V_W0 + 23, 'wu')
        if kt == 13:
            with role(a, 'B'):
                vm = list(a.vm)
                for k in range(4, 8): dma_w(k, True)
                a.vm = vm
    lms = LM(red=0, stat=106496, pkv=0, kvf=0, redq=0)
    a.nop(3)
    a('v_mov_b32 v8, v%d\nv_mov_b32 v9, v%d' % (SS, SS + 1))
    a('s_nop 1')
    a('v_permlane32_swap_b32 v%d, v8' % SS)
    a('v_permlane32_swap_b32 v%d, v9' % (SS + 1))
    a('s_nop 1')
    pk_add(a, 6, SS, 8)
    a('s_mov_b32 s%d, 0' % S_T2)
    a('s_mov_b32 s%d, -1' % S_T3)
    a('v_cndmask_b32_e64 v6, v6, 0, s[%d:%d]' % (S_T2, S_T3))
    a('v_cndmask_b32_e64 v7, v7, 0, s[%d:%d]' % (S_T2, S_T3))
    a('v_and_b32 v5, 31, v%d' % V_LANE)
    a('v_lshlrev_b32 v5, 3, v5')
    a('v_lshrrev_b32 v8, 5, v%d' % V_LANE)
    a('v_lshl_add_u32 v5, v8, 11, v5')
    a('s_lshl_b32 s%d, s%d, 10' % (S_T0, S_J))
    a('s_lshl_b32 s%d, s%d, 9' % (S_T1, S_I))
    a('s_add_u32 s%d, s%d, s%d' % (S_T0, S_T0, S_T1))
    a('s_xor_b32 s%d, s%d, s%d' % (S_T1, S_KH, S_I))
    a('s_lshl_b32 s%d, s%d, 8' % (S_T1, S_T1))
    a('s_add_u32 s%d, s%d, s%d' % (S_T0, S_T0, S_T1))
    a('s_add_u32 s%d, s%d, %d' % (S_T0, S_T0, lms.stat))
    a('v_add_u32 v5, s%d, v5' % S_T0)
    a('ds_write_b64 v5, v[6:7]')
    make_csfrag(a, CS, V_CF1, 6)
    for r in range(14, 20):
        a('v_mov_b32 v%d, 0' % r)
    barrier(a)
    ts(a)
    lm = LM(red=65536, stat=0, pkv=98304, kvf=114688, redq=65536, wst=131072)
    rs_issue(a, lms.stat, 4)
    a('s_waitcnt lgkmcnt(0)')
    rs_math(a, 4)
    rs_spread(a, True)
    a('s_nop 1')
    y_correct(a, V_CF1)
    kv_red_write(a, lm.red)
    p1_probe(a)
    barrier(a)
    if E('TSP1'): ts(a)
    a1_kv_owner(a, lm)
    ts(a)
    a('s_waitcnt vmcnt(0)')
    a.vreset(); a.vm.append('pr')
    p1_check(a)
    def qpass():
        a.vreset()
        for kt in range(17):
            if kt < 16:
                if kt >= 8: a.vwait('q%d' % kt)
                rd_kt(kt, True)
                if kt: a('s_waitcnt lgkmcnt(4)')
            else:
                a('s_waitcnt lgkmcnt(0)')
            if kt >= 1:
                p = kt - 1
                if p < 8: dma_w(p + 8, True)
                mm_kt(p, False)
        a.nop(3)
        make_csfrag(a, CS, V_CF0, 6)
        a('s_nop 1')
        y_correct(a, V_CF0)
    def ring():
        a('s_and_b32 s70, s%d, 3' % S_W)
        a('s_lshl_b32 s70, s70, 14')
        load_w_ring(a, U_WQ, V_W1, 16)
    a1_tail(a, lm, True, qpass, ring)

def resid_add(a, acc):
    for r in range(4):
        a('v_lshlrev_b32 v%d, 16, v%d' % (acc + 8 + 2 * r, V_RES + r))
        a('v_and_b32 v%d, 0xffff0000, v%d' % (acc + 9 + 2 * r, V_RES + r))
    for r in range(0, 8, 2):
        pk_add(a, acc + r, acc + r, acc + 8 + r)
    for r in range(4):
        a('v_cvt_pk_bf16_f32 v%d, v%d, v%d' % (V_RES + r, acc + 2 * r, acc + 2 * r + 1))

def final_store(a):
    srd(a, S_IN2, 56, 0x200000)
    a('s_nop 1')
    a('v_permlane32_swap_b32 v%d, v%d' % (V_RES, V_RES + 2))
    a('v_permlane32_swap_b32 v%d, v%d' % (V_RES + 1, V_RES + 3))
    a('v_and_b32 v5, 31, v%d' % V_LANE)
    a('v_lshlrev_b32 v5, 10, v5')
    a('v_lshrrev_b32 v6, 5, v%d' % V_LANE)
    a('v_lshl_add_u32 v5, v6, 4, v5')
    rowcol_off(a)
    a('buffer_store_dwordx4 %s, v5, s[12:15], s%d offen' % (vr(V_RES), S_T0))

def w16_regs(a):
    with role(a, 3):
        a('v_lshrrev_b32 v5, 5, v%d' % V_LANE)
        a('v_lshlrev_b32 v5, 9, v5')
        a('v_bfe_u32 v6, v%d, 4, 1' % V_LANE)
        a('v_lshl_add_u32 v5, v6, 7, v5')
        a('v_bfe_u32 v6, v%d, 2, 2' % V_LANE)
        a('v_lshl_add_u32 v5, v6, 5, v5')
        a('v_and_b32 v6, 3, v%d' % V_LANE)
        a('v_lshl_add_u32 v5, v6, 3, v5')
        a('v_add_u32 v5, %d, v5' % LDS_W16)
        for st in range(16):
            a('ds_read_b64_tr_b16 v[%d:%d], v5 offset:%d' % (V_W1 + 4 * st, V_W1 + 4 * st + 1, st * 1024))
            a('ds_read_b64_tr_b16 v[%d:%d], v5 offset:%d' % (V_W1 + 4 * st + 2, V_W1 + 4 * st + 3, st * 1024 + 256))
        a('s_waitcnt lgkmcnt(0)')
        L = a.newlabel('cf2')
        a('s_cmp_lg_u32 s%d, 0' % S_LOFF)
        a('s_cbranch_scc1 %s' % L)
        colsum(a, V_W1, 9)
        make_csfrag(a, 9, V_CF2, 6)
        a.label(L)

def out_gemm(a, w16=False):
    ie = ifelse(a)
    ie.if_set(0)
    active_path(a, V_W0, False)
    y_red_write(a, 65536, 0)
    ie.else_()
    loader_path(a, False, (lambda: dma_w16(a)) if w16 else None)
    ie.end()
    toggle_bufs(a, False)
    barrier(a)
    ts3(a)
    y_red_read(a, 65536, 0)
    resid_add(a, V_ACC)
    ts3(a)

def b1_compute(a):
    lm = LM_STD
    a('s_add_u32 s%d, s%d, 1' % (S_GPH, S_GPH))
    P = V_ACC
    X16 = [V_XF, V_XF + 4, V_XF + 8, V_XF + 12]
    MFg, CFg = P + 8, V_CF2
    def mk_hook(var):
        def hook(c):
            if c == 'stats':
                a('v_and_b32 v7, 15, v%d' % V_LANE)
                a('s_lshl_b32 s%d, s%d, 4' % (S_T0, S_SLAB))
                a('v_add_u32 v7, s%d, v7' % S_T0)
                a('v_lshlrev_b32 v7, 2, v7')
                a('ds_bpermute_b32 v8, v7, v%d' % VM)
                if var == 0:
                    a('ds_bpermute_b32 v%d, v7, v%d' % (P + 16, VR))
                else:
                    a('v_lshrrev_b32 v7, 4, v%d' % V_LANE)
                    a('v_lshlrev_b32 v7, 2, v7')
                    a('v_add_u32 v7, s%d, v7' % S_T0)
                    a('v_lshlrev_b32 v7, 2, v7')
                    for r in range(4):
                        a('ds_bpermute_b32 v%d, v7, v%d offset:%d' % (P + 16 + r, VR, 4 * r))
                a('v_and_b32 v%d, 15, v%d' % (P + 20, V_LANE))
                a('v_lshlrev_b32 v%d, 4, v%d' % (P + 20, P + 20))
                a('v_bfe_u32 v7, v%d, 4, 1' % V_LANE)
                a('v_lshl_add_u32 v%d, v7, %d, v%d' % (P + 20, 9 if var == 0 else 8, P + 20))
                a('v_lshrrev_b32 v7, 5, v%d' % V_LANE)
                a('v_lshl_add_u32 v%d, v7, 3, v%d' % (P + 20, P + 20))
                if var == 0:
                    a('s_lshl_b32 s71, s%d, 11' % S_RB)
                    a('s_lshr_b32 s%d, s%d, 1' % (S_T1, S_SLAB))
                    a('s_lshl_b32 s%d, s%d, 10' % (S_T1, S_T1))
                    a('s_add_u32 s71, s71, s%d' % S_T1)
                    a('s_and_b32 s%d, s%d, 1' % (S_T1, S_SLAB))
                    a('s_lshl_b32 s%d, s%d, 8' % (S_T1, S_T1))
                    a('s_add_u32 s71, s71, s%d' % S_T1)
                    a('s_add_u32 s71, s71, 0x%x' % KF_)
                else:
                    a('s_lshl_b32 s71, s%d, 2' % S_RB)
                    a('s_add_u32 s71, s71, s%d' % S_SLAB)
                    a('s_lshl_b32 s71, s71, 9')
                    a('s_add_u32 s71, s71, 0x%x' % VF_)
                a('s_add_u32 s71, s71, s%d' % S_LOFF)
                a('s_waitcnt lgkmcnt(0)')
                if var == 0:
                    for r in range(1, 4): a('v_mov_b32 v%d, v%d' % (P + 16 + r, P + 16))
                make_mfrag(a, 8, MFg)
                a('s_nop 1')
                if var == 0: a('v_mfma_f32_16x16x32_bf16 %s, %s, %s, %s' % (vr(P), vr(CFg), vr(MFg), vr(P)))
                else: a('v_mfma_f32_16x16x32_bf16 %s, %s, %s, %s' % (vr(P), vr(MFg), vr(CFg), vr(P)))
                return
            steps = [2 * c, 2 * c + 1, 8 + 2 * c, 9 + 2 * c]
            for n in range(4):
                a('ds_read_b128 %s, v6 offset:%d' % (vr(X16[n]), steps[n] * 2048))
            for n, st in enumerate(steps):
                a('s_waitcnt lgkmcnt(%d)' % (3 - n))
                cc = '0' if (c == 0 and n == 0) else vr(P)
                A_, B_ = (vr(V_W1 + 4 * st), vr(X16[n])) if var == 0 else (vr(X16[n]), vr(V_W1 + 4 * st))
                a('v_mfma_f32_16x16x32_bf16 %s, %s, %s, %s' % (vr(P), A_, B_, cc))
            if c == 3:
                a.nop(8)
                for r in range(4):
                    a('v_mul_f32 v%d, v%d, v%d' % (P + r, P + r, P + 16 + r))
                a('v_cvt_pk_bf16_f32 v%d, v%d, v%d' % (P + 4, P, P + 1))
                a('v_cvt_pk_bf16_f32 v%d, v%d, v%d' % (P + 5, P + 2, P + 3))
                a('buffer_store_dwordx2 v[%d:%d], v%d, %s, s71 offen sc1' % (P + 4, P + 5, P + 20, WSR))
        return hook
    Lb = a.newlabel('b1b'); L3 = a.newlabel('b13'); L3v = a.newlabel('b13v'); Le = a.newlabel('b1e')
    a('s_cmp_eq_u32 s%d, 1' % S_KH)
    a('s_cbranch_scc1 %s' % Lb)
    a('s_cmp_eq_u32 s%d, 3' % S_W)
    a('s_cbranch_scc1 %s' % L3)
    loader_path(a, True)
    a('s_branch %s' % Le)
    a.label(Lb)
    active_path(a, V_W1, True)
    y_correct(a, V_CF2)
    y_red_write(a, 65536, 1)
    a('s_branch %s' % Le)
    a.label(L3)
    a('v_and_b32 v6, 15, v%d' % V_LANE)
    a('v_lshlrev_b32 v6, 4, v6')
    a('v_bfe_u32 v5, v%d, 4, 1' % V_LANE)
    a('v_lshl_add_u32 v6, v5, 9, v6')
    a('v_lshrrev_b32 v5, 5, v%d' % V_LANE)
    a('v_lshl_add_u32 v6, v5, 10, v6')
    a('s_lshr_b32 s%d, s%d, 1' % (S_T0, S_SLAB))
    a('s_lshl_b32 s%d, s%d, 15' % (S_T0, S_T0))
    a('s_and_b32 s%d, s%d, 1' % (S_T1, S_SLAB))
    a('s_lshl_b32 s%d, s%d, 8' % (S_T1, S_T1))
    a('s_add_u32 s%d, s%d, s%d' % (S_T0, S_T0, S_T1))
    a('v_add_u32 v6, s%d, v6' % S_T0)
    a('s_cmp_eq_u32 s%d, 1' % S_WHICH)
    a('s_cbranch_scc1 %s' % L3v)
    loader_path(a, True, hook=mk_hook(0))
    a('s_branch %s' % Le)
    a.label(L3v)
    loader_path(a, True, hook=mk_hook(1))
    a.label(Le)
    toggle_bufs(a, True)
    barrier(a)
    with role(a, 3):
        a('s_waitcnt vmcnt(0)')
        lsignal(a)
    AQ = V_ACC
    y_red_read(a, 65536, 1)
    scale_pack(a, AQ, VR, V_XF)
    for r in range(4):
        a('v_lshlrev_b32 v%d, 16, v%d' % (AQ + 2 * r, V_XF + r))
        a('v_and_b32 v%d, 0xffff0000, v%d' % (AQ + 2 * r + 1, V_XF + r))
    for r in range(8):
        a('v_mul_f32 v%d, 0x%x, v%d' % (AQ + r, f2u(CQ), AQ + r))
    for r in range(4):
        a('v_cvt_pk_bf16_f32 v%d, v%d, v%d' % (A_Q + r, AQ + 2 * r, AQ + 2 * r + 1))

PRIO_SW = int(E('PRIO_SW', '48'))
def attn_loop(a):
    a.lreset()
    def rdK(t):
        if t < 64: a.l_('k%d' % t, 'ds_read_b128 %s, v%d offset:%d' % (vr(A_K[t % 2]), V_L16, t * 1024))
    def rdV(t):
        if t >= 64: return
        a('s_mov_b64 exec, s[%d:%d]' % (S_MASK_LO16, S_MASK_LO16 + 1))
        a.l_('v%d' % t, 'ds_read_b128 %s, v%d offset:%d' % (vr(A_V[t % 2]), A_VA, t * 1024))
        a.l_('v%d' % t, 'ds_read_b128 %s, v%d offset:%d' % (vr(A_V[t % 2] + 4), A_VA, t * 1024 + 512))
        a('s_mov_b64 exec, -1')
    def qk(t):
        a('v_mfma_f32_32x32x16_bf16 %s, %s, %s, %s' % (vr(A_S[t % 2], 16), vr(A_K[t % 2]), vr(A_Q), vr(A_BIAS, 16)))
    def pv(vb, pb, first=False):
        a('v_mfma_f32_32x32x16_bf16 %s, %s, %s, %s' % (vr(A_O, 16), vr(vb), vr(pb), '0' if first else vr(A_O, 16)))
    ex = lambda r: a('v_exp_f32 v%d, v%d' % (r, r))
    class first_pass:
        def __enter__(s_):
            s_.L = a.newlabel('fp')
            a('s_cmp_lg_u32 s%d, 0' % S_PASS)
            a('s_cbranch_scc1 %s' % s_.L)
        def __exit__(s_, *e): a.label(s_.L)
    a('v_and_b32 v%d, 15, v%d' % (A_VA, V_LANE))
    a('v_lshlrev_b32 v%d, 4, v%d' % (A_VA, A_VA))
    a('v_lshrrev_b32 v7, 5, v%d' % V_LANE)
    a('v_lshl_add_u32 v%d, v7, 8, v%d' % (A_VA, A_VA))
    a('v_add_u32 v%d, 65536, v%d' % (A_VA, A_VA))
    rdK(0); rdK(1); rdV(0)
    WD, WA = 10, 11
    a('s_lshl_b32 s70, s%d, 12' % S_W)
    a('s_add_u32 s70, s70, 131072')
    a('s_setprio 1')
    with role(a, 'B'):
        a('s_setprio 2')
    a.lwait('k0')
    qk(0)
    raw_rdaddr(a, WA, 70)
    a('s_nop 1')
    T0 = 29
    def wskip(cond_all):
        a('s_cmp_lg_u32 s%d, 0' % S_LOFF)
        a('s_cselect_b32 s%d, 0x%x, 0' % (S_T0, OOB))
        if not cond_all:
            a('s_cmp_eq_u32 s%d, 0' % S_KH)
            a('s_cselect_b32 s%d, 0, s%d' % (S_T0, S_T0))
        a('s_add_u32 s68, s68, s%d' % S_T0)
    for t in range(64):
        S = A_S[t % 2]
        cv = lambda r: a('v_cvt_pk_bf16_f32 v%d, v%d, v%d' % (A_P + r, S + 2 * r, S + 2 * r + 1))
        def xprobe():
            a('v_and_b32 v7, 7, v%d' % V_LANE)
            a('v_lshlrev_b32 v7, 7, v7')
            a('s_mov_b32 s66, 0x%x' % XFLAG)
            a('buffer_load_dwordx2 v[8:9], v7, %s, s66 offen sc1' % WSR)
        def xcheck(slots):
            Lr = a.newlabel('xr')
            tagbase(a, 65, S_GPH)
            m = sum(1 << sl for sl in slots)
            a('s_lshl_b32 s64, %d, s%d' % (m, S_GRP))
            chk = ['s_mov_b32 exec_lo, s64', 's_mov_b32 exec_hi, 0'] + tagcmp([8], 65, 5) + ['s_mov_b64 exec, -1']
            a('s_waitcnt vmcnt(0)')
            for c in chk: a(c)
            a('s_cbranch_vccz %s' % Lr)
            a('v_and_b32 v7, 7, v%d' % V_LANE)
            a('v_lshlrev_b32 v7, 7, v7')
            poll(a, ['buffer_load_dwordx2 v[8:9], v7, %s, s66 offen sc1' % WSR], chk, sleep=1)
            a.label(Lr)
        if t in (2, 9, 20):
            with first_pass(): xprobe()
        if t == 4:
            with first_pass():
                xcheck([1]); kv_dma(a, [1])
        if t == 11:
            with first_pass():
                xcheck([2, 3]); kv_dma(a, [2, 3])
        if t == 22:
            with first_pass():
                xcheck([4, 5, 6, 7]); kv_dma(a, range(4, 8))
        if t in (7, 15, 28):
            with first_pass():
                a('s_waitcnt vmcnt(0)')
                a('s_barrier')
            if t in (7, 15): rdK(t + 1)
        if E('TSA') and t in (0, 3, 4, 7, 15, 32, 50, 63): ts(a)
        if t == PRIO_SW:
            with role(a, 'B'):
                a('s_setprio 0')
        if t == T0 + int(E('WARMT', '0')):
            Lw = a.newlabel('wm')
            a('s_cmp_lg_u32 s%d, 0' % S_LOFF)
            a('s_cbranch_scc1 %s' % Lw)
            warm2(a, 8, 7)
            a.label(Lw)
        if t == T0:
            raw_setup(a, U_OB, U_Q, S_IN2, 68, 69, WD); wskip(False)
        if t == T0 + 16:
            raw_setup(a, U_K, U_V, S_IN2, 68, 69, WD); wskip(True)
        if t + 1 < 64:
            a.lwait('k%d' % (t + 1))
            qk(t + 1)
        if t not in (6, 14): rdK(t + 2)
        ex(S + 0); ex(S + 1); ex(S + 2); ex(S + 3); cv(0); ex(S + 4); ex(S + 5); cv(1); ex(S + 6); ex(S + 7); cv(2)
        ex(S + 8); ex(S + 9); cv(3); ex(S + 10); ex(S + 11)
        a.lwait('v%d' % t)
        pv(A_V[t % 2], A_P, t == 0)
        p = t - T0
        if 0 <= p < 32:
            if p >= 4: a.lwait('w%d' % (p - 4))
            for l in raw_dma(S_IN2, 68, 69, WD, 70, (p % 4) * 1024): a(l)
        cv(4); ex(S + 12); ex(S + 13); cv(5); ex(S + 14); ex(S + 15); cv(6)
        p = t - T0 - 2
        if 0 <= p < 32:
            a('s_waitcnt vmcnt(%d)' % min(2, 31 - p))
        else:
            a('s_nop 0')
        cv(7)
        if 0 <= p < 32:
            for l in raw_rd((V_W0 if p < 16 else V_W1) + 4 * (p % 16), WA, (p % 4) * 1024): a.l_('w%d' % p, l)
        else:
            a('s_nop 1')
        pv(A_V[t % 2] + 4, A_P + 4)
        rdV(t + 1)
    a('s_setprio 0')
    a.nop(16)

def attn_pre(a):
    a('s_mov_b32 s%d, 0x00110000' % S_T0)
    a('s_mov_b32 s%d, 0x00110000' % S_T1)
    a('v_cndmask_b32_e64 v7, 0, v%d, s[%d:%d]' % (V_ONES, S_T0, S_T1))
    for b in range(2):
        for r in range(8):
            a('v_mov_b32 v%d, v7' % (A_V[b] + r))

def kv_dma(a, slots):
    a('s_lshl_b32 s67, s%d, 10' % S_W)
    for sl in slots:
        a('s_add_u32 s%d, s%d, %d' % (S_T0, S_GRP, sl))
        a('s_and_b32 s%d, s%d, 7' % (S_T0, S_T0))
        a('s_lshl_b32 s%d, s%d, 13' % (S_T0, S_T0))
        a('s_add_u32 s%d, s%d, s67' % (S_T0, S_T0))
        a('s_add_u32 s%d, s%d, s%d' % (S_T0, S_T0, S_LOFF))
        a('s_add_u32 s%d, s%d, 0x%x' % (S_T0, S_T0, KF_))
        a('s_add_u32 m0, s67, %d' % (sl * 8192))
        a('s_add_u32 s%d, s%d, 0x10000' % (S_T1, S_T0))
        a('buffer_load_dwordx4 v%d, %s, s%d offen sc1 lds' % (V_L16, WSR, S_T0))
        a('s_add_u32 m0, s67, %d' % (65536 + sl * 8192))
        a('s_nop 0')
        a('buffer_load_dwordx4 v%d, %s, s%d offen sc1 lds' % (V_L16, WSR, S_T1))

def attn_inputs(a):
    with role(a, 0):
        lwait(a)
        L = a.newlabel('ld')
        a('s_lshr_b32 s%d, s2, 3' % S_T0)
        a('s_cmp_lg_u32 s%d, 0' % S_T0)
        a('s_cbranch_scc1 %s' % L)
        tagval(a, 6, S_GPH)
        a('s_lshl_b32 s%d, s%d, 7' % (S_T0, S_GRP))
        a('s_add_u32 s%d, s%d, 0x%x' % (S_T0, S_T0, XFLAG))
        a('v_mov_b32 v5, 0')
        a('s_mov_b64 exec, 1')
        a('buffer_store_dwordx2 v[6:7], v5, %s, s%d offen sc1' % (WSR, S_T0))
        a('s_mov_b64 exec, -1')
        a.label(L)
    barrier(a)
    ts(a)
    kv_dma(a, [0])
    a('s_waitcnt vmcnt(0)')
    a('s_barrier')

def attn_compute(a):
    a('ds_read_b128 %s, v%d' % (vr(A_K[0]), V_L16))
    a('s_waitcnt lgkmcnt(0)')
    a('v_mfma_f32_32x32x16_bf16 %s, %s, %s, 0' % (vr(A_S[0], 16), vr(A_K[0]), vr(A_Q)))
    a.nop(12)
    a('v_max3_f32 v10, v%d, v%d, v%d' % (A_S[0], A_S[0] + 1, A_S[0] + 2))
    a('v_max3_f32 v9, v%d, v%d, v%d' % (A_S[0] + 3, A_S[0] + 4, A_S[0] + 5))
    for r in range(6, 14, 4):
        a('v_max3_f32 v10, v10, v%d, v%d' % (A_S[0] + r, A_S[0] + r + 1))
        a('v_max3_f32 v9, v9, v%d, v%d' % (A_S[0] + r + 2, A_S[0] + r + 3))
    a('v_max3_f32 v10, v10, v%d, v%d' % (A_S[0] + 14, A_S[0] + 15))
    a('v_max_f32 v10, v10, v9')
    halves_sum(a, 10, 9, 'v_max_f32')
    a('v_sub_f32 v10, 0, v10')
    a('s_mov_b32 s%d, 0' % S_PASS)
    Lrun = a.newlabel('at_run'); Lok = a.newlabel('at_ok'); Lmx = a.newlabel('at_mx')
    a.label(Lrun)
    for r in range(16):
        a('v_mov_b32 v%d, v10' % (A_BIAS + r))
    a('s_nop 1')
    attn_loop(a)
    a('s_cmp_eq_u32 s%d, 1' % S_PASS)
    a('s_cbranch_scc1 %s' % Lok)
    a('v_max3_f32 v8, abs(v%d), abs(v%d), abs(v%d)' % (A_O, A_O + 1, A_O + 2))
    a('v_max3_f32 v9, abs(v%d), abs(v%d), abs(v%d)' % (A_O + 3, A_O + 4, A_O + 5))
    a('v_max3_f32 v8, abs(v%d), abs(v%d), v8' % (A_O + 6, A_O + 7))
    a('v_max_f32 v8, v8, v9')
    a('v_cmp_nle_f32 vcc, 0x%x, v%d' % (f2u(2.0 ** -89), A_O + 8))
    a('v_cmp_nge_f32 s[64:65], v%d, v%d' % (7, A_O + 8)) if False else None
    a('s_mov_b64 s[64:65], vcc')
    a('v_cmp_nge_f32 vcc, 0x%x, v%d' % (f2u(2.0 ** 90), A_O + 8))
    a('s_nop 3')
    a('s_or_b64 s[64:65], s[64:65], vcc')
    a('v_cmp_nge_f32 vcc, 0x%x, v8' % f2u(2.0 ** 126))
    a('s_nop 3')
    a('s_or_b64 s[64:65], s[64:65], vcc')
    a('s_cmp_eq_u64 s[64:65], 0')
    a('s_cbranch_scc1 %s' % Lok)
    a('s_mov_b32 s%d, 1' % S_PASS)
    a('v_mov_b32 v10, 0xff800000')
    a('v_mov_b32 v%d, v%d' % (A_KA, V_L16))
    a('s_mov_b32 s%d, 0' % S_CNT)
    a.label(Lmx)
    a('ds_read_b128 %s, v%d' % (vr(A_K[0]), A_KA))
    a('s_waitcnt lgkmcnt(0)')
    a('v_mfma_f32_32x32x16_bf16 %s, %s, %s, 0' % (vr(A_S[0], 16), vr(A_K[0]), vr(A_Q)))
    a.nop(16)
    for r in range(0, 16, 2):
        a('v_max3_f32 v10, v10, v%d, v%d' % (A_S[0] + r, A_S[0] + r + 1))
    a('v_add_u32 v%d, 1024, v%d' % (A_KA, A_KA))
    a('s_add_u32 s%d, s%d, 1' % (S_CNT, S_CNT))
    a('s_cmp_lt_u32 s%d, 64' % S_CNT)
    a('s_cbranch_scc1 %s' % Lmx)
    halves_sum(a, 10, 9, 'v_max_f32')
    a('v_sub_f32 v10, 0, v10')
    a('s_branch %s' % Lrun)
    a.label(Lok)
    a('v_rcp_f32 v8, v%d' % (A_O + 8))
    a('s_nop 0')
    scale_pack(a, A_O, 8, A_P)
    store_blk(a, A_P)
    csignal(a)

def header():
    ref = open('cdna_kernels/%s.s.ref' % NAME).read().split('\n')
    out = []
    for l in ref:
        if not l.startswith(';'): break
        if '@launch' in l: continue
        out.append(l)
    return out

def main(path):
    a = Asm()
    for h in header(): a.raw(h)
    a.raw('; @launch grid=(256,1,1) block=(512,1,1) lds=%d' % LDS_TOTAL)
    a.raw('.amdgcn_target "amdgcn-amd-amdhsa--gfx950"')
    a.raw('.text')
    name = NAME + '_kernel'
    prologue(a, name)
    ts(a)
    p1(a)
    ts(a)
    a.label('L_layer')
    out_gemm(a, True)
    store_x(a)
    csignal(a)
    w16_regs(a)
    ts(a)
    b1_compute(a)
    attn_pre(a)
    ts(a)
    attn_inputs(a)
    ts(a)
    attn_compute(a)
    ts(a)
    out_gemm(a)
    a('s_cmp_lg_u32 s%d, 0' % S_LOFF)
    a('s_cbranch_scc1 L_final')
    a('s_mov_b32 s%d, 0x%x' % (S_LOFF, LS))
    store_x(a)
    csignal(a)
    ts(a)
    a1_std(a)
    ts(a)
    a('s_branch L_layer')
    a.label('L_final')
    final_store(a)
    a('s_waitcnt vmcnt(0)')
    ts(a)
    epilogue(a, name)
    open(path, 'w').write(a.text())

if __name__ == '__main__':
    main(sys.argv[1] if len(sys.argv) > 1 else 'cdna_kernels/%s.s' % NAME)
```

```python
import struct, math, sys, os

NAME = 'interleave_layers__linear_attn_block__grouped_kv_mqa__prompt'
E = os.environ.get
TS_ON = E('TS', '0') == '1'
TS2 = TS_ON and E('TS2', '0') == '1'
DBGBUF = E('DBGBUF', '0') == '1'

T0_ = 0x1000000 if DBGBUF else 0x000000
WP = 0x400000
NT_QKV, NT_OA, NT_Q, NT_OB = 0, 48, 64, 80
WKV16 = 0x700000
STP = 0x780000
LB, LS = 0x880000, 0x140000
KF_, VF_, KMAX_ = LB, LB + 0x10000, LB + 0x20000
KVP_, ZP_ = LB + 0x28000, LB + 0x128000
CFLAG = 0xB00000
GFLAG = 0xB04000
XFLAG = 0xB05000
HFLAG = 0xB20000
TSBUF = 0xB40000
WS_BYTES = 0x10000000
OOB = 0x7FFF0000
_t = lambda n: T0_ + n * 0x200000
XF = [None, _t(1), _t(3), _t(5)]
OLIN = [_t(0), _t(4)]; OF = [_t(2), _t(6)]
KF = [KF_, KF_ + LS]; VF = [VF_, VF_ + LS]; KMAX = [KMAX_, KMAX_ + LS]; KVP = [KVP_, KVP_ + LS]; ZP = [ZP_, ZP_ + LS]

def f2u(x): return struct.unpack('<I', struct.pack('<f', x))[0]
LOG2E = math.log2(math.e)
CQ = 0.25 * LOG2E

class Asm:
    def __init__(self):
        self.l = []; self.uid = 0; self.vm = []; self.done = -1
    def __call__(self, s):
        for line in s.strip('\n').split('\n'):
            self.l.append('    ' + line.strip())
    def label(self, s): self.l.append(s + ':')
    def raw(self, s): self.l.append(s)
    def nop(self, n):
        while n > 0:
            k = min(n, 16); self('s_nop %d' % (k - 1)); n -= k
    def newlabel(self, p='L'):
        self.uid += 1; return '%s_%d' % (p, self.uid)
    def text(self): return '\n'.join(self.l) + '\n'
    def lreset(self): self.lg = []; self.ldone = -1
    def l_(self, tag, s_):
        self(s_); self.lg.append(tag)
    def lwait(self, *tags):
        idx = [i for i, t in enumerate(self.lg) if t in tags]
        if not idx or max(idx) <= self.ldone: return
        self.ldone = max(idx)
        n = len(self.lg) - 1 - max(idx)
        self('s_waitcnt lgkmcnt(%d)' % min(n, 15))
    def vreset(self): self.vm = []; self.done = -1
    def v(self, tag, s):
        self(s); self.vm.append(tag)
    def vwait(self, *tags, extra=''):
        idx = [i for i, t in enumerate(self.vm) if t in tags]
        if max(idx) <= self.done and not extra: return
        self.done = max(self.done, max(idx))
        n = len(self.vm) - 1 - max(idx)
        assert n <= 63
        self('s_waitcnt vmcnt(%d)%s' % (n, extra))

def vr(b, n=4): return 'v[%d:%d]' % (b, b + n - 1)

S_WS, S_IN, S_IN2 = 4, 8, 12
S_RB, S_CS, S_W, S_I, S_J, S_KH = 16, 17, 18, 19, 20, 21
S_BLK, S_LOFF = 22, 23
S_T0, S_T1, S_T2, S_T3, S_T4, S_T5 = 24, 25, 26, 27, 28, 29
S_MASK_LO16 = 30
S_WHICH, S_SLAB = 34, 35
S_CNT, S_PASS, S_CPH, S_GPH = 36, 37, 38, 39
S_FAST, S_SPIN = 62, 63
S_TSI, S_TOFF, S_SOFF, S_GRP = 72, 73, 74, 75
S_DBG = 76
S_WOFF, S_XOFF = 80, 81
S_TS = 82
S_NLO, S_NHI, S_XCC = 32, 33, 91
V_ONES, V_LANE, V_L16, V_XB, V_XA = 0, 1, 2, 3, 4
VM, VR = 10, 11
V_CF1, V_CF0, V_CF2 = 12, 14, 16
V_RES = 20
V_XF = 24
V_ACC = 40
V_PQ = 88
V_CFA, V_GFA, V_PCA, V_Q2 = 96, 97, 98, 99
V_TMP = 100
V_W0, V_W1 = 128, 192
A_Q, A_BIAS, A_S, A_P, A_O, A_K, A_V = 100, 24, [40, 56], 72, 80, [104, 108], [112, 120]
A_KA, A_VA = 5, 6
XBUF = [V_XF, V_XF + 8, V_TMP, V_TMP + 8]
ACC0, ACC1 = V_ACC, V_ACC + 16
V_MF = V_ACC + 32

class LM:
    def __init__(s, red, stat, pkv, kvf, redq, wst=98304): s.red, s.stat, s.pkv, s.kvf, s.redq, s.wst = red, stat, pkv, kvf, redq, wst
LM_STD = LM(red=65536, stat=131072, pkv=135168, kvf=151552, redq=65536)
LDS_U = 155648
LDS_TOTAL = 163840
WSR = 's[%d:%d]' % (S_WS, S_WS + 3)
SPIN_MAX = 200000

def srd(a, d, ptr_s, nbytes):
    a('s_mov_b32 s%d, s%d' % (d, ptr_s))
    a('s_mov_b32 s%d, s%d' % (d + 1, ptr_s + 1))
    a('s_mov_b32 s%d, 0x%x' % (d + 2, nbytes))
    a('s_mov_b32 s%d, 0x00020000' % (d + 3))

def ts(a):
    if not TS_ON: return
    L = a.newlabel('ts')
    a('s_cmp_lg_u32 s%d, %s' % (S_W, E('TSW', '0')))
    a('s_cbranch_scc1 %s' % L)
    a('s_memrealtime s[%d:%d]' % (S_TS, S_TS + 1))
    a('s_memtime s[92:93]')
    a('s_waitcnt lgkmcnt(0)')
    a('s_mov_b64 exec, 1')
    a('v_mov_b32 v8, s%d' % S_TS)
    a('v_mov_b32 v9, s%d' % S_TSI)
    a('buffer_store_dword v8, v9, %s, 0 offen' % WSR)
    a('v_mov_b32 v7, s92')
    a('buffer_store_dword v7, v9, %s, 0 offen offset:256' % WSR)
    a('s_mov_b64 exec, -1')
    a('s_add_u32 s%d, s%d, 4' % (S_TSI, S_TSI))
    a.label(L)
def ts3(a):
    if TS_ON and E('TS3'): ts(a)
def ts2(a):
    if TS2: ts(a)

class role:
    def __init__(s, a, who): s.a, s.who = a, who
    def __enter__(s):
        a = s.a; s.L = a.newlabel('role')
        if s.who == 'A': a('s_cmp_lg_u32 s%d, 0' % S_KH)
        elif s.who == 'B': a('s_cmp_lg_u32 s%d, 1' % S_KH)
        else: a('s_cmp_lg_u32 s%d, %d' % (S_W, s.who))
        a('s_cbranch_scc1 %s' % s.L)
    def __exit__(s, *e): s.a.label(s.L)

def prologue(a, name):
    a.raw('.globl %s' % name); a.raw('.p2align 8'); a.raw('.type %s,@function' % name)
    a.label(name)
    a('s_cmp_ge_u32 s2, 256')
    a('s_cbranch_scc1 L_end')
    a('s_load_dwordx16 s[40:55], s[0:1], 0')
    a('s_load_dwordx4 s[56:59], s[0:1], 64')
    a('s_load_dwordx2 s[60:61], s[0:1], 80')
    a('s_and_b32 s%d, s2, 7' % S_GRP)
    a('s_lshl_b32 s%d, s%d, 2' % (S_RB, S_GRP))
    a('s_lshr_b32 s%d, s2, 6' % S_T0)
    a('s_add_u32 s%d, s%d, s%d' % (S_RB, S_RB, S_T0))
    a('s_bfe_u32 s%d, s2, 0x30003' % S_CS)
    a('v_lshrrev_b32 v5, 6, v0')
    a('v_and_b32 v%d, 63, v0' % V_LANE)
    a('s_nop 0')
    a('v_readfirstlane_b32 s%d, v5' % S_W)
    a('v_lshlrev_b32 v%d, 4, v%d' % (V_L16, V_LANE))
    a('s_nop 3')
    a('s_and_b32 s%d, s%d, 1' % (S_I, S_W))
    a('s_bfe_u32 s%d, s%d, 0x10001' % (S_J, S_W))
    a('s_lshr_b32 s%d, s%d, 2' % (S_KH, S_W))
    a('s_lshl_b32 s%d, s%d, 1' % (S_T0, S_RB))
    a('s_add_u32 s%d, s%d, s%d' % (S_T0, S_T0, S_I))
    a('s_lshl_b32 s%d, s%d, 5' % (S_T0, S_T0))
    a('s_lshl_b32 s%d, s%d, 2' % (S_T1, S_CS))
    a('s_add_u32 s%d, s%d, s%d' % (S_T0, S_T0, S_T1))
    a('s_lshl_b32 s%d, s%d, 1' % (S_T1, S_J))
    a('s_add_u32 s%d, s%d, s%d' % (S_T0, S_T0, S_T1))
    a('s_add_u32 s%d, s%d, s%d' % (S_T0, S_T0, S_KH))
    a('s_lshl_b32 s%d, s%d, 10' % (S_BLK, S_T0))
    a('s_lshl_b32 s%d, s%d, 14' % (S_T1, S_I))
    a('s_mul_i32 s%d, s%d, 49152' % (S_T0, S_I))
    a('v_add_u32 v%d, s%d, v%d' % (V_XA, S_T0, V_L16))
    a('v_xor_b32 v%d, 32768, v%d' % (V_XB, V_XA))
    a('s_lshl_b32 s%d, s%d, 1' % (S_T0, S_CS))
    a('s_add_u32 s%d, s%d, s%d' % (S_T0, S_T0, S_J))
    a('s_lshl_b32 s%d, s%d, 6' % (S_WOFF, S_T0))
    a('s_lshl_b32 s%d, s%d, 16' % (S_XOFF, S_RB))
    a('v_mov_b32 v%d, 0x3f803f80' % V_ONES)
    a('s_mov_b32 s%d, 0x0000ffff' % S_MASK_LO16)
    a('s_mov_b32 s%d, 0x0000ffff' % (S_MASK_LO16 + 1))
    a('s_and_b32 s%d, s%d, 1' % (S_WHICH, S_CS))
    a('s_lshr_b32 s%d, s%d, 1' % (S_SLAB, S_CS))
    a('s_mov_b32 s%d, 0' % S_LOFF)
    a('s_mov_b32 s%d, 0' % S_CPH)
    a('s_mov_b32 s%d, 0' % S_GPH)
    a('s_mov_b32 s%d, 0' % S_FAST)
    a('s_mov_b32 s%d, 0x%x' % (S_TOFF, T0_))
    a('s_mov_b32 s%d, 0x%x' % (S_SOFF, STP))
    a('s_lshl_b32 s%d, s%d, 9' % (S_T0, S_RB))
    a('s_add_u32 s%d, s%d, 0x%x' % (S_T0, S_T0, CFLAG))
    a('v_lshlrev_b32 v5, 3, v%d' % V_LANE)
    a('v_add_u32 v%d, s%d, v5' % (V_PCA, S_T0))
    a('s_lshl_b32 s%d, s%d, 6' % (S_T1, S_CS))
    a('s_add_u32 s%d, s%d, s%d' % (S_T0, S_T0, S_T1))
    a('s_lshl_b32 s%d, s%d, 3' % (S_T1, S_W))
    a('s_add_u32 s%d, s%d, s%d' % (S_T0, S_T0, S_T1))
    a('v_mov_b32 v%d, s%d' % (V_CFA, S_T0))
    a('s_getreg_b32 s%d, hwreg(HW_REG_XCC_ID)' % S_XCC)
    a('s_and_b32 s%d, s%d, 15' % (S_XCC, S_XCC))
    a('s_lshl_b32 s%d, s%d, 6' % (S_T0, S_RB))
    a('s_lshl_b32 s%d, s%d, 3' % (S_T1, S_CS))
    a('s_add_u32 s%d, s%d, s%d' % (S_T0, S_T0, S_T1))
    a('s_add_u32 s%d, s%d, 0x%x' % (S_T0, S_T0, GFLAG))
    a('v_mov_b32 v%d, s%d' % (V_GFA, S_T0))
    a('s_lshl_b32 s%d, s2, 9' % S_TSI)
    a('s_add_u32 s%d, s%d, 0x%x' % (S_TSI, S_TSI, TSBUF))
    a('s_waitcnt lgkmcnt(0)')
    srd(a, S_WS, 60, WS_BYTES)
    srd(a, S_DBG, 58, 256)

def epilogue(a, name, nv=256):
    a.label('L_end')
    a('s_endpgm')
    a.raw('.section .rodata,"a"'); a.raw('.p2align 6')
    a.raw('.amdhsa_kernel %s' % name)
    a.raw('  .amdhsa_next_free_vgpr %d' % nv)
    a.raw('  .amdhsa_next_free_sgpr 96')
    a.raw('  .amdhsa_accum_offset %d' % ((nv + 3) // 4 * 4))
    a.raw('  .amdhsa_group_segment_fixed_size 0')
    a.raw('  .amdhsa_kernarg_size 88')
    a.raw('  .amdhsa_user_sgpr_count 2')
    a.raw('  .amdhsa_user_sgpr_kernarg_segment_ptr 1')
    a.raw('  .amdhsa_system_sgpr_workgroup_id_x 1')
    a.raw('  .amdhsa_float_denorm_mode_32 3')
    a.raw('.end_amdhsa_kernel')

def fast_store(a, fmts):
    L1 = a.newlabel('fs'); L2 = a.newlabel('fs')
    a('s_cmp_eq_u32 s%d, 1' % S_FAST)
    a('s_cbranch_scc1 %s' % L1)
    for f in fmts: a(f.replace('@', ' sc1'))
    a('s_branch %s' % L2)
    a.label(L1)
    for f in fmts: a(f.replace('@', ''))
    a.label(L2)

def tagval(a, v, sph, xcc=False):
    a('s_lshl_b32 s%d, s%d, 4' % (S_T0, sph))
    a('s_add_u32 s%d, s%d, s%d' % (S_T0, S_T0, S_NLO))
    if xcc: a('s_add_u32 s%d, s%d, s%d' % (S_T0, S_T0, S_XCC))
    a('v_mov_b32 v%d, s%d' % (v, S_T0))
    a('v_mov_b32 v%d, s%d' % (v + 1, S_NHI))

def tagbase(a, sdst, sph):
    a('s_lshl_b32 s%d, s%d, 4' % (sdst, sph))
    a('s_add_u32 s%d, s%d, s%d' % (sdst, sdst, S_NLO))

def tagcmp(pairs, sbase, t):
    out = []
    for n, p in enumerate(pairs):
        out.append('v_subrev_u32 v%d, s%d, v%d' % (p, sbase, p))
        out.append('v_xor_b32 v%d, s%d, v%d' % (p + 1, S_NHI, p + 1))
        out.append('v_lshrrev_b32 v%d, 12, v%d' % (p, p))
        if n == 0: out.append('v_or_b32 v%d, v%d, v%d' % (t, p, p + 1))
        else: out.append('v_or3_b32 v%d, v%d, v%d, v%d' % (t, t, p, p + 1))
    out.append('v_cmp_ne_u32 vcc, 0, v%d' % t)
    return out

def csignal(a, tag=None):
    a('s_add_u32 s%d, s%d, 1' % (S_CPH, S_CPH))
    tagval(a, 6, S_CPH, True)
    if tag is None:
        a('s_waitcnt vmcnt(0) lgkmcnt(0)')
    a('s_mov_b64 exec, 1')
    fast_store(a, ['buffer_store_dwordx2 v[6:7], v%d, %s, 0 offen@' % (V_CFA, WSR)])
    a('s_mov_b64 exec, -1')
    if tag: a.vm.append(tag)

def poll(a, load, cmp, sleep=0):
    Lp = a.newlabel('pl'); Lo = a.newlabel('po')
    a('s_mov_b32 s%d, 0' % S_SPIN)
    a.label(Lp)
    a('s_add_u32 s%d, s%d, 1' % (S_SPIN, S_SPIN))
    a('s_cmp_gt_u32 s%d, %d' % (S_SPIN, SPIN_MAX))
    a('s_cbranch_scc1 L_end')
    for l in load: a(l)
    a('s_waitcnt vmcnt(0)')
    for c in cmp: a(c)
    if sleep:
        a('s_cbranch_vccz %s' % Lo)
        a('s_sleep %d' % sleep)
        a('s_branch %s' % Lp)
        a.label(Lo)
    else:
        a('s_cbranch_vccnz %s' % Lp)

def cwait(a):
    tagbase(a, 65, S_CPH)
    Lp = a.newlabel('cw'); Lo = a.newlabel('co')
    ld = lambda v: a('buffer_load_dwordx2 v[%d:%d], v%d, %s, 0 offen sc1' % (v, v + 1, V_PCA, WSR))
    a('s_mov_b32 s%d, 0' % S_SPIN)
    ld(8)
    a.label(Lp)
    a('s_add_u32 s%d, s%d, 1' % (S_SPIN, S_SPIN))
    a('s_cmp_gt_u32 s%d, %d' % (S_SPIN, SPIN_MAX))
    a('s_cbranch_scc1 L_end')
    a('s_sleep 1')
    ld(92)
    a('s_waitcnt vmcnt(1)')
    for c in tagcmp([8], 65, 7): a(c)
    a('s_cbranch_vccz %s' % Lo)
    a('s_sleep 1')
    ld(8)
    a('s_waitcnt vmcnt(1)')
    for c in tagcmp([92], 65, 7): a(c)
    a('s_cbranch_vccnz %s' % Lp)
    a.label(Lo)

def lpoll_addr(a, v):
    a('v_and_b32 v%d, 31, v%d' % (v, V_LANE))
    a('v_lshlrev_b32 v%d, 3, v%d' % (v, v))
    a('s_lshl_b32 s66, s%d, 8' % S_GRP)
    a('s_add_u32 s66, s66, 0x%x' % GFLAG)

def lwait(a):
    tagbase(a, 65, S_GPH)
    lpoll_addr(a, 5)
    poll(a, ['buffer_load_dwordx2 v[8:9], v5, %s, s66 offen sc1' % WSR], tagcmp([8], 65, 7))

def lsignal(a):
    tagval(a, 6, S_GPH, True)
    a('s_mov_b64 exec, 1')
    fast_store(a, ['buffer_store_dwordx2 v[6:7], v%d, %s, 0 offen@' % (V_GFA, WSR)])
    a('s_mov_b64 exec, -1')

DBR = 's[%d:%d]' % (S_DBG, S_DBG + 3)
NP = 18
def nonce_publish(a):
    L = a.newlabel('np')
    a('s_cmp_lg_u32 s2, 0')
    a('s_cbranch_scc1 %s' % L)
    a('s_cmp_lg_u32 s%d, 0' % S_W)
    a('s_cbranch_scc1 %s' % L)
    a('s_memrealtime s[64:65]')
    a('s_waitcnt lgkmcnt(0)')
    a('s_lshl_b64 s[64:65], s[64:65], 12')
    a('s_or_b32 s65, s65, 0x80000000')
    a('v_mov_b32 v6, s64')
    a('v_mov_b32 v7, s65')
    a('v_mov_b32 v5, 0')
    a('s_mov_b64 exec, 1')
    a('buffer_store_dwordx2 v[6:7], v5, %s, 0 offen sc1' % DBR)
    a('s_mov_b64 exec, -1')
    a.label(L)

def nonce_probe(a):
    a('v_mov_b32 v5, 0')
    a.v('np', 'buffer_load_dwordx2 v[%d:%d], v5, %s, 0 offen sc1' % (NP, NP + 1, DBR))

def nonce_check(a):
    Lok = a.newlabel('nok')
    a.vwait('np')
    a('v_cmp_eq_u32 vcc, 0, v%d' % (NP + 1))
    a('s_cbranch_vccz %s' % Lok)
    a('v_mov_b32 v5, 0')
    poll(a, ['buffer_load_dwordx2 v[%d:%d], v5, %s, 0 offen sc1' % (NP, NP + 1, DBR)], ['v_cmp_eq_u32 vcc, 0, v%d' % (NP + 1)], sleep=2)
    a.label(Lok)
    a('v_readfirstlane_b32 s%d, v%d' % (S_NLO, NP))
    a('v_readfirstlane_b32 s%d, v%d' % (S_NHI, NP + 1))
    a('s_nop 3')

PR = 80
def p1_probe(a):
    lpoll_addr(a, PR + 6)
    a.v('pr', 'buffer_load_dwordx2 v[%d:%d], v%d, %s, s66 offen sc1' % (PR + 2, PR + 3, PR + 6, WSR))

def p1_check(a):
    L2 = a.newlabel('pc')
    a.vwait('pr')
    tagbase(a, 65, S_GPH)
    a('v_mov_b32 v%d, v%d' % (PR + 4, PR + 2))
    for c in tagcmp([PR + 2], 65, 7): a(c)
    a('s_cbranch_vccz %s' % L2)
    poll(a, ['buffer_load_dwordx2 v[%d:%d], v%d, %s, s66 offen sc1' % (PR + 2, PR + 3, PR + 6, WSR)],
         ['v_mov_b32 v%d, v%d' % (PR + 4, PR + 2)] + tagcmp([PR + 2], 65, 7), sleep=1)
    a.label(L2)
    a('v_and_b32 v%d, 15, v%d' % (PR + 4, PR + 4))
    a('v_cmp_ne_u32 vcc, s%d, v%d' % (S_XCC, PR + 4))
    a('s_nop 3')
    a('s_cmp_eq_u64 vcc, 0')
    a('s_cselect_b32 s%d, 1, 0' % S_FAST)
    if E('NOFAST'):
        a('s_mov_b32 s%d, 0' % S_FAST)

def next_tile(a):
    if DBGBUF: a('s_add_u32 s%d, s%d, 0x200000' % (S_TOFF, S_TOFF))
    else: a('s_xor_b32 s%d, s%d, 0x200000' % (S_TOFF, S_TOFF))

def colsum(a, vw, vcs):
    a('v_mov_b32 v%d, 0' % vcs)
    a('s_nop 1')
    for r in range(64):
        a('v_dot2_f32_bf16 v%d, v%d, v%d, v%d' % (vcs, vw + r, V_ONES, vcs))
    a.nop(3)

def rowcol_off(a):
    a('s_lshl_b32 s%d, s%d, 15' % (S_T1, S_I))
    a('s_add_u32 s%d, s%d, s%d' % (S_T0, S_XOFF, S_T1))
    a('s_lshl_b32 s%d, s%d, 7' % (S_T1, S_CS))
    a('s_add_u32 s%d, s%d, s%d' % (S_T0, S_T0, S_T1))
    a('s_lshl_b32 s%d, s%d, 6' % (S_T1, S_J))
    a('s_add_u32 s%d, s%d, s%d' % (S_T0, S_T0, S_T1))
    a('s_lshl_b32 s%d, s%d, 5' % (S_T1, S_KH))
    a('s_add_u32 s%d, s%d, s%d' % (S_T0, S_T0, S_T1))

U_Q, U_K, U_V, U_OA, U_WQ, U_OB = range(6)
UPTR = {U_Q: 42, U_K: 42, U_V: 42, U_OA: 44, U_WQ: 48, U_OB: 54}
ULD = {U_Q: 3072, U_K: 3072, U_V: 3072, U_OA: 1024, U_WQ: 1024, U_OB: 1024}
UCOL = {U_Q: 0, U_K: 1024, U_V: 2048, U_OA: 0, U_WQ: 0, U_OB: 0}
def raw_setup(a, uA, uB, R, sbase, sstep, vdma):
    def sel(d, x, y):
        if x == y: a('s_mov_b32 s%d, %s' % (d, x))
        else:
            a('s_mov_b32 s%d, %s' % (d, x))
            a('s_cmp_eq_u32 s%d, 1' % S_KH)
            a('s_cselect_b32 s%d, %s, s%d' % (d, y, d))
    sel(R, 's%d' % UPTR[uA], 's%d' % UPTR[uB])
    sel(R + 1, 's%d' % (UPTR[uA] + 1), 's%d' % (UPTR[uB] + 1))
    sel(R + 2, '0x%x' % (ULD[uA] * 512), '0x%x' % (ULD[uB] * 512))
    a('s_mov_b32 s%d, 0x00020000' % (R + 3))
    sel(sstep, str(ULD[uA]), str(ULD[uB]))
    sel(sbase, str(UCOL[uA]), str(UCOL[uB]))
    a('v_lshrrev_b32 v%d, 2, v%d' % (vdma, V_LANE))
    a('v_mul_lo_u32 v%d, v%d, s%d' % (vdma, vdma, sstep))
    a('v_and_b32 v7, 3, v%d' % V_LANE)
    a('v_lshl_add_u32 v%d, v7, 4, v%d' % (vdma, vdma))
    a('s_lshl_b32 s%d, s%d, 4' % (sstep, sstep))
    a('s_lshl_b32 s%d, s%d, 4' % (S_T0, S_I))
    a('s_mul_i32 s%d, s%d, s%d' % (S_T0, S_T0, sstep))
    a('s_add_u32 s%d, s%d, s%d' % (sbase, sbase, S_T0))
    a('s_add_u32 s%d, s%d, s%d' % (sbase, sbase, S_WOFF))

def raw_rdaddr(a, v, slds):
    a('v_lshrrev_b32 v%d, 5, v%d' % (v, V_LANE))
    a('v_lshlrev_b32 v%d, 8, v%d' % (v, v))
    a('v_bfe_u32 v7, v%d, 2, 2' % V_LANE)
    a('v_lshl_add_u32 v%d, v7, 6, v%d' % (v, v))
    a('v_bfe_u32 v7, v%d, 4, 1' % V_LANE)
    a('v_lshl_add_u32 v%d, v7, 5, v%d' % (v, v))
    a('v_and_b32 v7, 3, v%d' % V_LANE)
    a('v_lshl_add_u32 v%d, v7, 3, v%d' % (v, v))
    a('v_add_u32 v%d, s%d, v%d' % (v, slds, v))

def raw_dma(R, sbase, sstep, vdma, slds, off):
    return ['s_add_u32 m0, s%d, %d' % (slds, off), 's_nop 0',
            'buffer_load_dwordx4 v%d, s[%d:%d], s%d offen lds' % (vdma, R, R + 3, sbase),
            's_add_u32 s%d, s%d, s%d' % (sbase, sbase, sstep)]

def raw_rd(dst, va, off):
    return ['ds_read_b64_tr_b16 v[%d:%d], v%d offset:%d' % (dst, dst + 1, va, off),
            'ds_read_b64_tr_b16 v[%d:%d], v%d offset:%d' % (dst + 2, dst + 3, va, off + 512)]

RW_D, RW_A = 94, 95
def load_w_issue(a, u, lds0, half):
    if half == 0:
        raw_setup(a, u, u, S_IN2, 68, 69, RW_D)
        a('s_and_b32 s70, s%d, 3' % S_W)
        a('s_lshl_b32 s70, s70, 13')
        a('s_add_u32 s70, s70, %d' % lds0)
        raw_rdaddr(a, RW_A, 70)
    for k in range(8):
        for l in raw_dma(S_IN2, 68, 69, RW_D, 70, k * 1024): a(l)

def load_w_read(a, vbase, half):
    for k in range(8):
        for l in raw_rd(vbase + 4 * (8 * half + k), RW_A, k * 1024): a(l)
    a('s_waitcnt lgkmcnt(0)')

def load_w_sync(a, u, vbase, lds0):
    for half in range(2):
        load_w_issue(a, u, lds0, half)
        a('s_waitcnt vmcnt(0)')
        load_w_read(a, vbase, half)

def load_w_ring(a, u, vbase, nslots):
    raw_setup(a, u, u, S_IN2, 68, 69, RW_D)
    raw_rdaddr(a, RW_A, 70)
    for k in range(nslots):
        for l in raw_dma(S_IN2, 68, 69, RW_D, 70, k * 1024): a(l)
    for k in range(16):
        a('s_waitcnt vmcnt(%d)' % min(nslots - 1, 15 - k))
        for l in raw_rd(vbase + 4 * k, RW_A, (k % nslots) * 1024): a(l)
        if k + nslots < 16:
            a('s_waitcnt lgkmcnt(0)')
            for l in raw_dma(S_IN2, 68, 69, RW_D, 70, (k % nslots) * 1024): a(l)
    a('s_waitcnt lgkmcnt(0)')

LDS_W16 = 135168
def dma_w16(a):
    a('s_cmp_eq_u32 s%d, 1' % S_WHICH)
    a('s_cselect_b32 s%d, s52, s50' % S_IN2)
    a('s_cselect_b32 s%d, s53, s51' % (S_IN2 + 1))
    a('s_mov_b32 s%d, 0x4000' % (S_IN2 + 2))
    a('s_mov_b32 s%d, 0x00020000' % (S_IN2 + 3))
    a('s_and_b32 s%d, s%d, 3' % (S_T0, S_W))
    a('s_lshl_b32 s%d, s%d, 12' % (S_T0, S_T0))
    a('s_add_u32 m0, s%d, %d' % (S_T0, LDS_W16))
    a('s_nop 0')
    for k in range(4):
        a('buffer_load_dwordx4 v%d, s[%d:%d], s%d offen offset:%d lds' % (V_L16, S_IN2, S_IN2 + 3, S_T0, k * 1024))

STL = 88
SDG, SDL = 84, 85
def dma_setup(a, all8):
    a('s_lshl_b32 s%d, s%d, 15' % (SDL, S_I))
    a('s_lshl_b32 s%d, s%d, 14' % (S_T2, S_J))
    a('s_add_u32 s%d, s%d, s%d' % (SDL, SDL, S_T2))
    if all8:
        a('s_lshl_b32 s%d, s%d, 11' % (S_T2, S_KH))
        a('s_add_u32 s%d, s%d, s%d' % (SDL, SDL, S_T2))
    a('s_add_u32 s%d, s%d, s%d' % (SDG, S_TOFF, S_XOFF))
    a('s_add_u32 s%d, s%d, s%d' % (SDG, SDG, SDL))

def dma_chunk(a, n):
    a('s_mov_b32 m0, s%d' % SDL)
    a('s_add_u32 s%d, s%d, 4096' % (SDL, SDL))
    for t in range(n):
        a('buffer_load_dwordx4 v%d, %s, s%d offen offset:%d sc1 lds' % (V_L16, WSR, SDG, t * 1024))
    a('s_add_u32 s%d, s%d, 4096' % (SDG, SDG))

def st_issue(a, all8):
    n = 4 if all8 else 8
    a('v_lshlrev_b32 v5, 3, v%d' % V_LANE)
    a('s_lshr_b32 s%d, s%d, 2' % (S_T0, S_XOFF))
    if all8: a('s_lshl_b32 s%d, s%d, 11' % (S_T1, S_W))
    else:
        a('s_and_b32 s%d, s%d, 3' % (S_T1, S_W))
        a('s_lshl_b32 s%d, s%d, 12' % (S_T1, S_T1))
    a('s_add_u32 s%d, s%d, s%d' % (S_T0, S_T0, S_T1))
    a('s_add_u32 s%d, s%d, s%d' % (S_T0, S_T0, S_SOFF))
    for q in range(n):
        a('buffer_load_dwordx2 v[%d:%d], v5, %s, s%d offen offset:%d sc1' % (80 + 2 * q, 81 + 2 * q, WSR, S_T0, q * 512))

def st_partial(a, all8):
    T = 80; n = 4 if all8 else 8
    while n > 1:
        n //= 2
        for q in range(n): pk_add(a, T + 2 * q, T + 2 * q, T + 2 * (q + n))
    if all8: a('s_lshl_b32 s%d, s%d, 9' % (S_T0, S_W))
    else:
        a('s_and_b32 s%d, s%d, 3' % (S_T0, S_W))
        a('s_lshl_b32 s%d, s%d, 9' % (S_T0, S_T0))
    a('s_add_u32 s%d, s%d, %d' % (S_T0, S_T0, LM_STD.stat))
    a('v_lshlrev_b32 v5, 3, v%d' % V_LANE)
    a('v_add_u32 v5, s%d, v5' % S_T0)
    a('ds_write_b64 v5, v[%d:%d]' % (T, T + 1))
    a('s_waitcnt lgkmcnt(0)')

def rs_issue(a, stat, nparts, T=80):
    a('v_lshlrev_b32 v5, 3, v%d' % V_LANE)
    a('v_add_u32 v5, %d, v5' % stat)
    for q in range(nparts // 2):
        a('ds_read2st64_b64 %s, v5 offset0:%d offset1:%d' % (vr(T + 4 * q), 2 * q, 2 * q + 1))

def rs_math(a, nparts, T=80):
    n = nparts
    while n > 2:
        n //= 2
        for q in range(n): pk_add(a, T + 2 * q, T + 2 * q, T + 2 * (q + n))
    pk_add(a, VM, T, T + 2)
    stats_math(a, VM, VR)

def rs_spread(a, frags):
    a('v_mov_b32 v8, v%d' % VM)
    a('v_mov_b32 v9, v%d' % VR)
    a('s_cmp_eq_u32 s%d, 1' % S_I)
    a('s_cselect_b64 s[%d:%d], -1, 0' % (S_T2, S_T3))
    a('v_permlane32_swap_b32 v%d, v8' % VM)
    a('v_permlane32_swap_b32 v%d, v9' % VR)
    a('s_nop 1')
    a('v_cndmask_b32_e64 v%d, v%d, v9, s[%d:%d]' % (VR, VR, S_T2, S_T3))
    if frags:
        a('v_cndmask_b32_e64 v9, v%d, v8, s[%d:%d]' % (VM, S_T2, S_T3))
        a('v_cndmask_b32_e64 v8, v8, v%d, s[%d:%d]' % (VM, S_T2, S_T3))
        make_mfrag(a, 9, V_MF)
        make_mfrag(a, 8, V_MF + 4)

def toggle_bufs(a, stats):
    next_tile(a)
    if stats: a('s_xor_b32 s%d, s%d, 0x%x' % (S_SOFF, S_SOFF, STP ^ (STP + 0x80000)))

def loader_path(a, stats, extra=None, hook=None):
    nx = 4 if extra else 0
    cwait(a)
    dma_setup(a, False)
    dma_chunk(a, 4)
    if stats: st_issue(a, False)
    dma_chunk(a, 4)
    a('s_waitcnt vmcnt(%d)' % (12 if stats else 4))
    a('s_barrier')
    dma_chunk(a, 4)
    if hook: hook(0)
    a('s_waitcnt vmcnt(4)')
    if stats: st_partial(a, False)
    a('s_barrier')
    dma_chunk(a, 4)
    if extra: extra()
    if stats:
        rs_issue(a, LM_STD.stat, 4)
    if hook: hook(1)
    if stats:
        a('s_waitcnt lgkmcnt(0)')
        rs_math(a, 4)
        if hook: hook('stats')
    a('s_waitcnt vmcnt(%d)' % (4 + nx))
    a('s_barrier')
    if hook: hook(2)
    a('s_waitcnt vmcnt(%d)' % nx)
    a('s_barrier')
    if hook: hook(3)
    if stats: rs_spread(a, False)
    if extra: a('s_waitcnt vmcnt(0)')

def active_path(a, w, stats, all8=False):
    def rd(t):
        b = XBUF[t % 4]
        a('ds_read_b128 %s, v%d offset:%d' % (vr(b), V_XA, t * 1024))
        a('ds_read_b128 %s, v%d offset:%d' % (vr(b + 4), V_XB, t * 1024))
    np_ = 8 if all8 else 4
    if all8:
        cwait(a)
        dma_setup(a, True)
        dma_chunk(a, 2)
        st_issue(a, True)
        dma_chunk(a, 2)
        a('s_waitcnt vmcnt(6)')
    a('s_barrier')
    for t in range(3): rd(t)
    for t in range(16):
        b = XBUF[t % 4]
        if t in (1, 5, 9):
            if all8:
                if t < 9: dma_chunk(a, 2)
                a('s_waitcnt vmcnt(%d)' % (2 if t < 9 else 0))
                if t == 1: st_partial(a, True)
            a('s_barrier')
        if t == 2 and stats:
            rs_issue(a, LM_STD.stat, np_)
        if t + 3 < 16:
            rd(t + 3)
        a('s_waitcnt lgkmcnt(%d)' % (2 * min(3, 15 - t)))
        for q, acc in enumerate((ACC0, ACC1)):
            c = '0' if t == 0 else vr(acc, 16)
            a('v_mfma_f32_32x32x16_bf16 %s, %s, %s, %s' % (vr(acc, 16), vr(w + 4 * t), vr(b + 4 * q), c))
        if t == 6 and stats: rs_math(a, np_)
        if t == 7 and stats: rs_spread(a, True)

class ifelse:
    def __init__(s, a): s.a = a; s.L1 = a.newlabel('ie'); s.L2 = a.newlabel('ie')
    def if_set(s, k):
        s.a('s_cmp_lg_u32 s%d, %d' % (S_KH, k)); s.a('s_cbranch_scc1 %s' % s.L1)
    def else_(s):
        s.a('s_branch %s' % s.L2); s.a.label(s.L1)
    def end(s): s.a.label(s.L2)

def kloop(a, w, t0, t1):
    def rd(t):
        b = XBUF[t % 4]
        a('ds_read_b128 %s, v%d offset:%d' % (vr(b), V_XA, t * 1024))
        a('ds_read_b128 %s, v%d offset:%d' % (vr(b + 4), V_XB, t * 1024))
    for t in range(t0, min(t0 + 3, t1)):
        rd(t)
    for t in range(t0, t1):
        b = XBUF[t % 4]
        if t + 3 < t1:
            rd(t + 3)
        a('s_waitcnt lgkmcnt(%d)' % (2 * min(3, t1 - 1 - t)))
        for q, acc in enumerate((ACC0, ACC1)):
            c = '0' if t == 0 else vr(acc, 16)
            a('v_mfma_f32_32x32x16_bf16 %s, %s, %s, %s' % (vr(acc, 16), vr(w + 4 * t), vr(b + 4 * q), c))

def halves_sum(a, v, tmp, op='v_add_f32'):
    a('v_mov_b32 v%d, v%d' % (tmp, v))
    a('s_nop 1')
    a('v_permlane32_swap_b32 v%d, v%d' % (v, tmp))
    a('s_nop 1')
    a('%s v%d, v%d, v%d' % (op, v, v, tmp))

def bf16r(a, v):
    a('v_cvt_pk_bf16_f32 v%d, v%d, v%d' % (v, v, v))
    a('v_and_b32 v%d, 0xffff0000, v%d' % (v, v))

def pk_add(a, d, x, y):
    a('v_pk_add_f32 v[%d:%d], v[%d:%d], v[%d:%d]' % (d, d + 1, x, x + 1, y, y + 1))

def stats_math(a, vm, vrstd):
    a('v_mul_f32 v%d, 0x%x, v%d' % (vm, f2u(1.0 / 512), vm))
    a('v_mul_f32 v%d, 0x%x, v%d' % (vrstd, f2u(1.0 / 512), vrstd))
    a('v_fma_f32 v%d, -v%d, v%d, v%d' % (vrstd, vm, vm, vrstd))
    a('v_max_f32 v%d, 0, v%d' % (vrstd, vrstd))
    bf16r(a, vrstd)
    a('v_add_f32 v%d, 0x%x, v%d' % (vrstd, f2u(1e-5), vrstd))
    bf16r(a, vrstd)
    a('v_sqrt_f32 v%d, v%d' % (vrstd, vrstd))
    a('s_nop 0')
    bf16r(a, vrstd)
    a('v_rcp_f32 v%d, v%d' % (vrstd, vrstd))
    bf16r(a, vm)

def stats_read(a, lm, vrow, T, vm=VM):
    a('v_lshlrev_b32 v%d, 3, v%d' % (vrow, vrow))
    a('v_add_u32 v%d, %d, v%d' % (vrow, lm.stat, vrow))
    for q in range(4):
        a('ds_read2st64_b64 %s, v%d offset0:%d offset1:%d' % (vr(T + 4 * q), vrow, 2 * q, 2 * q + 1))
    a('s_waitcnt lgkmcnt(0)')
    for q in range(4):
        pk_add(a, T + 4 * q, T + 4 * q, T + 4 * q + 2)
    pk_add(a, T, T, T + 4)
    pk_add(a, T + 8, T + 8, T + 12)
    pk_add(a, vm, T, T + 8)
    stats_math(a, vm, vm + 1)

def ln_stats(a, lm, T=V_TMP):
    a('v_and_b32 v5, 31, v%d' % V_LANE)
    a('s_lshl_b32 s%d, s%d, 5' % (S_T0, S_I))
    a('v_add_u32 v5, s%d, v5' % S_T0)
    stats_read(a, lm, 5, T)

def make_mfrag(a, vm, d):
    a('v_cvt_pk_bf16_f32 v%d, -v%d, -v%d' % (d, vm, vm))
    a('v_cvt_pk_bf16_f32 v%d, -v%d, -v%d' % (d + 1, vm, vm))
    a('v_mov_b32 v%d, 0' % (d + 2))
    a('v_mov_b32 v%d, 0' % (d + 3))

def mean_issue(a, lm):
    T = V_ACC + 40
    a('v_and_b32 v5, 31, v%d' % V_LANE)
    a('v_lshlrev_b32 v5, 3, v5')
    a('s_lshl_b32 s%d, s%d, 8' % (S_T0, S_I))
    a('s_add_u32 s%d, s%d, %d' % (S_T0, S_T0, lm.stat))
    a('v_add_u32 v5, s%d, v5' % S_T0)
    a('v_xor_b32 v6, 256, v5')
    for q in range(2):
        for k in range(4):
            a('ds_read2st64_b32 v[%d:%d], v%d offset0:%d offset1:%d' % (T + 8 * q + 2 * k, T + 8 * q + 2 * k + 1, 5 + q, 4 * k, 4 * k + 2))

def mean_finish(a):
    T = V_ACC + 40
    for q in range(2):
        t = T + 8 * q
        pk_add(a, t, t, t + 2)
        pk_add(a, t + 4, t + 4, t + 6)
        pk_add(a, t, t, t + 4)
        a('v_add_f32 v%d, v%d, v%d' % (t, t, t + 1))
        a('v_mul_f32 v%d, 0x%x, v%d' % (t, f2u(1.0 / 512), t))
        make_mfrag(a, t, V_MF + 4 * q)
    a('s_nop 1')

def mean_frags(a, lm):
    mean_issue(a, lm)
    a('s_waitcnt lgkmcnt(0)')
    mean_finish(a)

def stats_load_issue(a, T=V_TMP, tag=None):
    a('v_lshlrev_b32 v5, 3, v%d' % V_LANE)
    a('s_lshr_b32 s%d, s%d, 2' % (S_T0, S_XOFF))
    a('s_lshl_b32 s%d, s%d, 11' % (S_T1, S_W))
    a('s_add_u32 s%d, s%d, s%d' % (S_T0, S_T0, S_T1))
    a('s_add_u32 s%d, s%d, s%d' % (S_T0, S_T0, S_SOFF))
    for q in range(4):
        a.v(tag, 'buffer_load_dwordx2 v[%d:%d], v5, %s, s%d offen offset:%d sc1' % (T + 2 * q, T + 2 * q + 1, WSR, S_T0, q * 512))

def stats_load_finish(a, lm, T=V_TMP):
    pk_add(a, T, T, T + 2)
    pk_add(a, T + 4, T + 4, T + 6)
    pk_add(a, T, T, T + 4)
    a('s_lshl_b32 s%d, s%d, 9' % (S_T0, S_W))
    a('s_add_u32 s%d, s%d, %d' % (S_T0, S_T0, lm.stat))
    a('v_lshlrev_b32 v5, 3, v%d' % V_LANE)
    a('v_add_u32 v5, s%d, v5' % S_T0)
    a('ds_write_b64 v5, v[%d:%d]' % (T, T + 1))
    a('s_xor_b32 s%d, s%d, 0x%x' % (S_SOFF, S_SOFF, STP ^ (STP + 0x80000)))

def make_csfrag(a, vc, d, t):
    a('v_cvt_pk_bf16_f32 v%d, v%d, v%d' % (t, vc, vc))
    a('v_and_b32 v%d, 0xffff0000, v%d' % (t, t))
    a('v_sub_f32 v%d, v%d, v%d' % (t + 1, vc, t))
    a('v_cvt_pk_bf16_f32 v%d, v%d, v%d' % (d, t, t + 1))
    a('v_and_b32 v%d, 0xffff0000, v%d' % (t, d))
    a('v_sub_f32 v%d, v%d, v%d' % (t + 1, t + 1, t))
    a('v_cvt_pk_bf16_f32 v%d, v%d, 0' % (d + 1, t + 1))

def y_correct(a, cf):
    for q, acc in enumerate((ACC0, ACC1)):
        a('v_mfma_f32_32x32x16_bf16 %s, %s, %s, %s' % (vr(acc, 16), vr(cf), vr(V_MF + 4 * q), vr(acc, 16)))

def y_red_write(a, base, own):
    a('s_lshl_b32 s%d, s%d, 13' % (S_T0, S_J))
    a('s_mul_i32 s%d, s%d, 6144' % (S_T1, S_I))
    a('s_add_u32 s%d, s%d, s%d' % (S_T0, S_T0, S_T1))
    a('s_add_u32 s%d, s%d, %d' % (S_T0, S_T0, base))
    a('v_add_u32 v5, s%d, v%d' % (S_T0, V_L16))
    a('v_xor_b32 v6, 4096, v5')
    a.nop(7)
    for q, acc in enumerate((ACC0, ACC1)):
        for nh in range(2):
            if q == 0 and nh == own: continue
            a('ds_write_b128 v%d, %s offset:%d' % (5 + q, vr(acc + 8 * nh), nh * 16384))
            a('ds_write_b128 v%d, %s offset:%d' % (5 + q, vr(acc + 8 * nh + 4), nh * 16384 + 1024))

def y_red_read(a, base, own):
    d = V_ACC
    a('s_lshl_b32 s%d, s%d, 12' % (S_T0, S_W))
    a('s_add_u32 s%d, s%d, %d' % (S_T0, S_T0, base))
    a('v_add_u32 v5, s%d, v%d' % (S_T0, V_L16))
    L1 = a.newlabel('rr'); L2 = a.newlabel('rr')
    a('s_cmp_eq_u32 s%d, %d' % (S_KH, own))
    a('s_cbranch_scc1 %s' % L1)
    for k in range(4):
        a('ds_read_b128 %s, v5 offset:%d' % (vr(d + 4 * k), k * 1024))
    a('s_waitcnt lgkmcnt(0)')
    for r in range(0, 8, 2):
        pk_add(a, d + r, d + r, d + 8 + r)
    a('s_branch %s' % L2)
    a.label(L1)
    a('s_xor_b32 s%d, s%d, 1' % (S_T0, S_I))
    a('s_lshl_b32 s%d, s%d, 11' % (S_T0, S_T0))
    a('v_add_u32 v5, s%d, v5' % S_T0)
    a('ds_read_b128 %s, v5' % vr(ACC1))
    a('ds_read_b128 %s, v5 offset:1024' % vr(ACC1 + 4))
    a('s_waitcnt lgkmcnt(0)')
    for r in range(0, 8, 2):
        pk_add(a, d + r, ACC0 + 8 * own + r, ACC1 + r)
    a.label(L2)

def kv_red_write(a, base):
    a('s_xor_b32 s%d, s%d, 1' % (S_T0, S_W))
    a('s_lshl_b32 s%d, s%d, 12' % (S_T0, S_T0))
    a('s_add_u32 s%d, s%d, %d' % (S_T0, S_T0, base))
    a('v_add_u32 v5, s%d, v%d' % (S_T0, V_L16))
    a.nop(9)
    for k in range(4):
        a('ds_write_b128 v5, %s offset:%d' % (vr(ACC1 + 4 * k), k * 1024))

def barrier(a):
    a('s_waitcnt lgkmcnt(0)')
    a('s_barrier')

def phi_pack(a, acc, dst, tl=9, tmp=None, n=8):
    if tmp is None: tmp = acc + 8
    a('v_mul_f32 v%d, 0x%x, v%d' % (tl, f2u(LOG2E), VR))
    for r in range(n):
        a('v_mul_f32 v%d, v%d, v%d' % (tmp + r, acc + r, tl))
    for r in range(n):
        a('v_exp_f32_e64 v%d, v%d clamp' % (tmp + r, tmp + r))
    for r in range(n):
        a('v_fmaak_f32 v%d, v%d, v%d, 0x%x' % (acc + r, acc + r, VR, f2u(1e-6)))
        a('v_max_f32 v%d, 0x%x, v%d' % (acc + r, f2u(1e-6), acc + r))
    for r in range(0, n, 2):
        pk_add(a, acc + r, acc + r, tmp + r)
    for r in range(n // 2):
        a('v_cvt_pk_bf16_f32 v%d, v%d, v%d' % (dst + r, acc + 2 * r, acc + 2 * r + 1))

def scale_pack(a, acc, vs, dst, n=8):
    for r in range(n):
        a('v_mul_f32 v%d, v%d, v%d' % (acc + r, acc + r, vs))
    for r in range(n // 2):
        a('v_cvt_pk_bf16_f32 v%d, v%d, v%d' % (dst + r, acc + 2 * r, acc + 2 * r + 1))

def store_blk(a, v):
    a('s_add_u32 s%d, s%d, s%d' % (S_T0, S_BLK, S_TOFF))
    fast_store(a, ['buffer_store_dwordx4 %s, v%d, %s, s%d offen@' % (vr(v), V_L16, WSR, S_T0)])

def store_stats(a, tag=None):
    a('v_mov_b32 v6, 0')
    a('v_mov_b32 v7, 0')
    a('s_nop 0')
    for r in range(4):
        a('v_dot2_f32_bf16 v6, v%d, v%d, v6' % (V_RES + r, V_ONES))
        a('v_dot2_f32_bf16 v7, v%d, v%d, v7' % (V_RES + r, V_RES + r))
    a('s_bfe_u32 s%d, s%d, 0x5000a' % (S_T0, S_BLK))
    a('s_lshl_b32 s%d, s%d, 9' % (S_T0, S_T0))
    a('s_lshr_b32 s%d, s%d, 2' % (S_T1, S_XOFF))
    a('s_add_u32 s%d, s%d, s%d' % (S_T0, S_T0, S_T1))
    a('s_lshl_b32 s%d, s%d, 8' % (S_T1, S_I))
    a('s_add_u32 s%d, s%d, s%d' % (S_T0, S_T0, S_T1))
    a('s_add_u32 s%d, s%d, s%d' % (S_T0, S_T0, S_SOFF))
    a('v_mov_b32 v8, v6')
    a('v_mov_b32 v9, v7')
    a('v_lshlrev_b32 v5, 3, v%d' % V_LANE)
    a('s_nop 0')
    a('v_permlane32_swap_b32 v6, v8')
    a('v_permlane32_swap_b32 v7, v9')
    a('s_nop 1')
    a('v_pk_add_f32 v[6:7], v[6:7], v[8:9]')
    a('s_mov_b32 exec_hi, 0')
    fast_store(a, ['buffer_store_dwordx2 v[6:7], v5, %s, s%d offen@' % (WSR, S_T0)])
    a('s_mov_b32 exec_hi, -1')
    if tag: a.vm.append(tag)

def store_x(a):
    store_blk(a, V_RES)
    store_stats(a)

def a1_kv_owner(a, lm):
    a('s_lshl_b32 s%d, s%d, 12' % (S_T0, S_W))
    a('s_add_u32 s%d, s%d, %d' % (S_T0, S_T0, lm.red))
    a('v_add_u32 v5, s%d, v%d' % (S_T0, V_L16))
    for k in range(4):
        a('ds_read_b128 %s, v5 offset:%d' % (vr(ACC1 + 4 * k), k * 1024))
    a('s_lshl_b32 s%d, s%d, 12' % (S_T0, S_J))
    a('s_lshl_b32 s%d, s%d, 13' % (S_T1, S_KH))
    a('s_add_u32 s%d, s%d, s%d' % (S_T0, S_T0, S_T1))
    a('s_lshl_b32 s%d, s%d, 10' % (S_T1, S_I))
    a('s_add_u32 s%d, s%d, s%d' % (S_T0, S_T0, S_T1))
    a('s_add_u32 s%d, s%d, %d' % (S_T0, S_T0, lm.pkv))
    a('v_and_b32 v7, 31, v%d' % V_LANE)
    a('v_lshlrev_b32 v7, 5, v7')
    a('v_lshrrev_b32 v6, 5, v%d' % V_LANE)
    a('v_lshl_add_u32 v7, v6, 4, v7')
    a('v_add_u32 v7, s%d, v7' % S_T0)
    a('s_waitcnt lgkmcnt(0)')
    for r in range(0, 16, 2):
        pk_add(a, ACC0 + r, ACC0 + r, ACC1 + r)
    with role(a, 'A'):
        phi_pack(a, ACC0, V_XF, tmp=ACC1, n=16)
    with role(a, 'B'):
        scale_pack(a, ACC0, VR, V_XF, n=16)
    a('ds_write_b128 v7, %s' % vr(V_XF))
    a('ds_write_b128 v7, %s offset:2048' % vr(V_XF + 4))
    barrier(a)

def head_addrs(a):
    a('s_lshl_b32 s%d, s%d, 2' % (S_T2, S_CS))
    a('s_add_u32 s%d, s%d, s%d' % (S_T2, S_T2, S_W))
    a('s_lshl_b32 s%d, s%d, 14' % (S_T3, S_T2))
    a('s_add_u32 s%d, s%d, s%d' % (S_T3, S_T3, S_LOFF))
    a('s_add_u32 s%d, s%d, 0x%x' % (S_T3, S_T3, KVP_))
    a('s_lshl_b32 s%d, s%d, 11' % (S_T4, S_T2))
    a('s_add_u32 s%d, s%d, s%d' % (S_T4, S_T4, S_LOFF))
    a('s_add_u32 s%d, s%d, 0x%x' % (S_T4, S_T4, ZP_))
    a('s_lshl_b32 s%d, s%d, 12' % (S_T5, S_T2))
    a('s_add_u32 s%d, s%d, 0x%x' % (S_T5, S_T5, HFLAG))

def hello(a):
    head_addrs(a)
    a('s_mov_b32 s64, 1')
    tagval(a, 8, 64)
    a('s_lshl_b32 s%d, s%d, 7' % (S_T0, S_RB))
    a('s_add_u32 s%d, s%d, s%d' % (S_T0, S_T0, S_T5))
    a('v_mov_b32 v5, 0')
    a('s_mov_b64 exec, 1')
    a('buffer_store_dwordx2 v[8:9], v5, %s, s%d offen sc1' % (WSR, S_T0))
    a('s_mov_b64 exec, -1')

def kv_publish(a, lm, first):
    PA, PB, D, D2, ON = V_XF, V_XF + 8, V_ACC, V_ACC + 4, V_ACC + 8
    a('v_lshrrev_b32 v5, 4, v%d' % V_LANE)
    a('v_lshlrev_b32 v5, 8, v5')
    a('v_bfe_u32 v6, v%d, 2, 2' % V_LANE)
    a('v_lshl_add_u32 v5, v6, 5, v5')
    a('v_and_b32 v6, 1, v%d' % V_LANE)
    a('v_lshl_add_u32 v5, v6, 4, v5')
    a('v_bfe_u32 v6, v%d, 1, 1' % V_LANE)
    a('v_lshl_add_u32 v5, v6, 3, v5')
    a('s_lshl_b32 s%d, s%d, 11' % (S_T0, S_W))
    a('s_add_u32 s%d, s%d, %d' % (S_T0, S_T0, lm.pkv))
    a('v_add_u32 v5, s%d, v5' % S_T0)
    for sl in range(2):
        for u in range(2):
            a('ds_read_b64_tr_b16 v[%d:%d], v5 offset:%d' % (PA + 4 * sl + 2 * u, PA + 4 * sl + 2 * u + 1, sl * 1024 + u * 128))
            a('ds_read_b64_tr_b16 v[%d:%d], v5 offset:%d' % (PB + 4 * sl + 2 * u, PB + 4 * sl + 2 * u + 1, 8192 + sl * 1024 + u * 128))
    for r in range(4):
        a('v_mov_b32 v%d, v%d' % (ON + r, V_ONES))
    head_addrs(a)
    a('s_waitcnt lgkmcnt(0)')
    a('v_mfma_f32_16x16x32_bf16 %s, %s, %s, 0' % (vr(D), vr(PA), vr(PB)))
    a('v_mfma_f32_16x16x32_bf16 %s, %s, %s, 0' % (vr(D2), vr(PA), vr(ON)))
    a('v_mfma_f32_16x16x32_bf16 %s, %s, %s, %s' % (vr(D), vr(PA + 4), vr(PB + 4), vr(D)))
    a('v_mfma_f32_16x16x32_bf16 %s, %s, %s, %s' % (vr(D2), vr(PA + 4), vr(ON), vr(D2)))
    a('s_lshl_b32 s%d, s%d, 9' % (S_T0, S_RB))
    a('s_add_u32 s%d, s%d, s%d' % (S_T0, S_T0, S_T3))
    a('s_lshl_b32 s%d, s%d, 6' % (S_T1, S_RB))
    a('s_add_u32 s%d, s%d, s%d' % (S_T1, S_T1, S_T4))
    a('v_and_b32 v6, 48, v%d' % V_LANE)
    a('v_lshlrev_b32 v5, 3, v%d' % V_LANE)
    a('s_nop 2')
    a('v_cvt_pk_bf16_f32 v%d, v%d, v%d' % (D, D, D + 1))
    a('v_cvt_pk_bf16_f32 v%d, v%d, v%d' % (D + 1, D + 2, D + 3))
    for r in (0, 1, 4, 5, 6, 7):
        a('v_min_u32 v%d, -2, v%d' % (D + r, D + r))
    a('buffer_store_dwordx2 v[%d:%d], v5, %s, s%d offen sc1' % (D, D + 1, WSR, S_T0))
    a('s_mov_b32 exec_lo, 0x00010001')
    a('s_mov_b32 exec_hi, 0x00010001')
    a('buffer_store_dwordx4 %s, v6, %s, s%d offen sc1' % (vr(D2), WSR, S_T1))
    a('s_mov_b64 exec, -1')
    ts2(a)
    if first:
        a('s_mov_b32 s64, 1')
        tagbase(a, 65, 64)
        a('v_and_b32 v5, 31, v%d' % V_LANE)
        a('v_lshlrev_b32 v5, 7, v5')
        poll(a, ['buffer_load_dwordx2 v[8:9], v5, %s, s%d offen sc1' % (WSR, S_T5)], tagcmp([8], 65, 7))
    else:
        load_w_issue(a, U_OA, lm.wst, 0)
        a('s_waitcnt vmcnt(0)')
        load_w_read(a, V_W0, 0)
        load_w_issue(a, U_OA, lm.wst, 1)

def kv_gather(a, lm, first):
    if first:
        load_w_issue(a, U_OA, lm.wst, 0)
    head_addrs(a)
    ZR = V_TMP
    a('v_and_b32 v6, 48, v%d' % V_LANE)
    a('v_and_b32 v5, 15, v%d' % V_LANE)
    a('v_lshl_add_u32 v5, v5, 6, v6')
    poll(a, ['buffer_load_dwordx4 %s, v5, %s, s%d offen sc1' % (vr(ZR), WSR, S_T4),
             'buffer_load_dwordx4 %s, v5, %s, s%d offen offset:1024 sc1' % (vr(ZR + 4), WSR, S_T4)],
         ['v_max3_u32 v7, v%d, v%d, v%d' % (ZR, ZR + 1, ZR + 2), 'v_max3_u32 v8, v%d, v%d, v%d' % (ZR + 3, ZR + 4, ZR + 5),
          'v_max3_u32 v7, v7, v%d, v%d' % (ZR + 6, ZR + 7), 'v_max_u32 v7, v7, v8', 'v_cmp_eq_u32 vcc, -1, v7'])
    ts2(a)
    G = [V_W1 + 4 * k for k in range(16)]
    AC = V_ACC
    SEL = V_ACC + 8
    Lg = a.newlabel('gat')
    a('s_mov_b32 s%d, 0' % S_SPIN)
    a.label(Lg)
    a('s_add_u32 s%d, s%d, 1' % (S_SPIN, S_SPIN))
    a('s_cmp_gt_u32 s%d, %d' % (S_SPIN, SPIN_MAX))
    a('s_cbranch_scc1 L_end')
    a('s_mov_b32 s%d, s%d' % (S_T0, S_T3))
    for k in range(16):
        if k and k % 4 == 0:
            a('s_add_u32 s%d, s%d, 4096' % (S_T0, S_T0))
        a('buffer_load_dwordx4 %s, v%d, %s, s%d offen offset:%d sc1' % (vr(G[k]), V_L16, WSR, S_T0, (k % 4) * 1024))
    nx = 0
    if first:
        Ls = a.newlabel('gs')
        a('s_cmp_lg_u32 s%d, 1' % S_SPIN)
        a('s_cbranch_scc1 %s' % Ls)
        load_w_read(a, V_W0, 0)
        load_w_issue(a, U_OA, lm.wst, 1)
        a('s_branch %s_j' % Ls)
        a.label(Ls)
        a('s_waitcnt vmcnt(0)')
        a.label(Ls + '_j')
        nx = 8
    else:
        load_w_read(a, V_W0, 1)
    Z2 = V_TMP + 8
    pk_add(a, Z2, ZR, ZR + 4)
    pk_add(a, Z2 + 2, ZR + 2, ZR + 6)
    for sh in (8, 4, 2, 1):
        a('s_nop 1')
        for r in range(4):
            a('v_add_f32_dpp v%d, v%d, v%d row_ror:%d row_mask:0xf bank_mask:0xf' % (Z2 + r, Z2 + r, Z2 + r, sh))
    a('v_cvt_pk_bf16_f32 v%d, v%d, v%d' % (Z2, Z2, Z2 + 1))
    a('v_cvt_pk_bf16_f32 v%d, v%d, v%d' % (Z2 + 1, Z2 + 2, Z2 + 3))
    a('s_mov_b32 s%d, 0x00110011' % S_T0)
    a('s_mov_b32 s%d, 0x00110011' % S_T1)
    a('v_cndmask_b32_e64 v%d, 0, v%d, s[%d:%d]' % (Z2, Z2, S_T0, S_T1))
    a('v_cndmask_b32_e64 v%d, 0, v%d, s[%d:%d]' % (Z2 + 1, Z2 + 1, S_T0, S_T1))
    a('v_and_b32 v5, 15, v%d' % V_LANE)
    a('v_lshlrev_b32 v5, 4, v5')
    a('v_bfe_u32 v6, v%d, 4, 1' % V_LANE)
    a('v_lshl_add_u32 v5, v6, 9, v5')
    a('v_lshrrev_b32 v6, 5, v%d' % V_LANE)
    a('v_lshl_add_u32 v5, v6, 3, v5')
    a('s_lshl_b32 s%d, s%d, 11' % (S_T0, S_W))
    a('s_add_u32 s%d, s%d, %d' % (S_T0, S_T0, lm.pkv))
    a('v_add_u32 v5, s%d, v5' % S_T0)
    a('ds_write_b64 v5, v[%d:%d] offset:256' % (Z2, Z2 + 1))
    a('v_and_b32 v5, 7, v%d' % V_LANE)
    a('v_lshlrev_b32 v5, 5, v5')
    a('v_bfe_u32 v6, v%d, 3, 1' % V_LANE)
    a('v_lshl_add_u32 v5, v6, 9, v5')
    a('v_bfe_u32 v6, v%d, 4, 1' % V_LANE)
    a('v_lshl_add_u32 v5, v6, 3, v5')
    a('v_add_u32 v5, s%d, v5' % S_T0)
    a('v_mov_b32 v7, 0')
    a('v_mov_b32 v%d, 0x00003f80' % SEL)
    a('v_mov_b32 v%d, 0x3f800000' % (SEL + 1))
    for r in range(8): a('v_mov_b32 v%d, 0' % (AC + r))
    for k in range(16):
        a('s_waitcnt vmcnt(%d)' % (15 - k + nx))
        g = G[k]
        a('v_max3_u32 v7, v7, v%d, v%d' % (g, g + 1))
        a('v_max3_u32 v7, v7, v%d, v%d' % (g + 2, g + 3))
        for r in range(4):
            a('v_dot2_f32_bf16 v%d, v%d, v%d, v%d' % (AC + 2 * r, g + r, SEL, AC + 2 * r))
            a('v_dot2_f32_bf16 v%d, v%d, v%d, v%d' % (AC + 2 * r + 1, g + r, SEL + 1, AC + 2 * r + 1))
    a('v_cmp_eq_u32 vcc, -1, v7')
    a('s_cbranch_vccnz %s' % Lg)
    a('s_nop 1')
    for r in range(8): a('v_mov_b32 v%d, v%d' % (AC + 16 + r, AC + r))
    a('s_nop 1')
    for r in range(8): a('v_permlane32_swap_b32 v%d, v%d' % (AC + r, AC + 16 + r))
    a('s_nop 1')
    for r in range(0, 8, 2): pk_add(a, AC + r, AC + r, AC + 16 + r)
    for r in range(4):
        a('v_cvt_pk_bf16_f32 v%d, v%d, v%d' % (AC + r, AC + 2 * r, AC + 2 * r + 1))
    a('ds_write_b64 v5, v[%d:%d]' % (AC, AC + 1))
    a('ds_write_b64 v5, v[%d:%d] offset:16' % (AC + 2, AC + 3))
    if first:
        a('s_waitcnt vmcnt(0)')
        load_w_read(a, V_W0, 1)

def a1_pq(a, lm):
    y_red_read(a, lm.redq, 1)
    phi_pack(a, V_ACC, V_PQ)

def a1_finish(a, lm):
    a('s_lshl_b32 s%d, s%d, 1' % (S_T0, S_J))
    a('s_add_u32 s%d, s%d, s%d' % (S_T0, S_T0, S_KH))
    a('s_lshl_b32 s%d, s%d, 11' % (S_T0, S_T0))
    a('s_add_u32 s%d, s%d, %d' % (S_T0, S_T0, lm.pkv))
    a('v_add_u32 v6, s%d, v%d' % (S_T0, V_L16))
    a('ds_read_b128 %s, v6' % vr(V_XF + 4))
    a('s_waitcnt lgkmcnt(0)')
    N = V_ACC + 16
    a('v_mfma_f32_32x32x16_bf16 %s, %s, %s, 0' % (vr(N, 16), vr(V_XF + 4), vr(V_PQ)))
    a.nop(12)
    a('v_add_f32 v8, 0x%x, v%d' % (f2u(1e-6), N + 8))
    a('v_rcp_f32 v8, v8')
    a('s_nop 0')
    scale_pack(a, N, 8, V_XF + 8)
    store_blk(a, V_XF + 8)
    csignal(a)

def a1_tail(a, lm, first, qpass, ringbase):
    with role(a, 'B'):
        qpass()
        y_red_write(a, lm.redq, 1)
    with role(a, 'A'):
        kv_publish(a, lm, first)
    barrier(a)
    if first:
        a.vreset()
        p1_probe(a)
    a1_pq(a, lm)
    if first:
        p1_check(a)
    with role(a, 'B'):
        ringbase()
        if first:
            colsum(a, V_W1, 9)
            make_csfrag(a, 9, V_CF2, 6)
    with role(a, 'A'):
        kv_gather(a, lm, first)
    barrier(a)
    ts2(a)
    a1_finish(a, lm)

def a1_std(a):
    lm = LM_STD
    active_path(a, V_W1, True, True)
    toggle_bufs(a, True)
    y_correct(a, V_CF1)
    kv_red_write(a, lm.red)
    barrier(a)
    ts2(a)
    a1_kv_owner(a, lm)
    ts2(a)
    def qpass():
        kloop(a, V_W0, 0, 16)
        y_correct(a, V_CF0)
    def ring():
        a('s_and_b32 s70, s%d, 3' % S_W)
        a('s_lshl_b32 s70, s70, 14')
        load_w_ring(a, U_WQ, V_W1, 16)
    a1_tail(a, lm, False, qpass, ring)

def warm2(a, vd, vt, tag=None, qcols=False):
    R = 64
    a('s_lshr_b32 s%d, s2, 3' % S_T2)
    a('s_lshl_b32 s%d, s%d, 3' % (S_T2, S_T2))
    a('s_add_u32 s%d, s%d, s%d' % (S_T2, S_T2, S_W))
    a('v_lshlrev_b32 v%d, 7, v%d' % (vt, V_LANE))
    a('s_lshr_b32 s%d, s%d, 6' % (S_T1, S_T2))
    a('s_mov_b32 s%d, s44\ns_mov_b32 s%d, s45\ns_mov_b32 s%d, 0x80000\ns_mov_b32 s%d, 0x00020000' % (R, R + 1, R + 2, R + 3))
    for (k, p) in ((1, 48), (2, 54), (3, 50)):
        a('s_cmp_eq_u32 s%d, %d' % (S_T1, k))
        a('s_cselect_b32 s%d, s%d, s%d' % (R, p, R))
        a('s_cselect_b32 s%d, s%d, s%d' % (R + 1, p + 1, R + 1))
    a('s_cselect_b32 s%d, 0x4000, s%d' % (R + 2, R + 2))
    a('s_cmp_ge_u32 s%d, 224' % S_T2)
    a('s_cselect_b32 s%d, s52, s%d' % (R, R))
    a('s_cselect_b32 s%d, s53, s%d' % (R + 1, R + 1))
    a('s_cselect_b32 s%d, 31, 63' % S_T1)
    a('s_and_b32 s%d, s%d, s%d' % (S_T0, S_T2, S_T1))
    a('s_lshl_b32 s%d, s%d, 13' % (S_T0, S_T0))
    if qcols:
        L = a.newlabel('wq')
        a('s_lshr_b32 s%d, s%d, 6' % (S_T1, S_T2))
        a('s_cmp_lg_u32 s%d, 2' % S_T1)
        a('s_cbranch_scc1 %s' % L)
        a('s_mov_b32 s%d, s42\ns_mov_b32 s%d, s43\ns_mov_b32 s%d, 0x180000' % (R, R + 1, R + 2))
        a('s_mul_i32 s%d, s%d, 3' % (S_T0, S_T0))
        a('v_lshrrev_b32 v%d, 3, v%d' % (vd, V_LANE))
        a('v_mul_u32_u24 v%d, 3072, v%d' % (vd, vd))
        a('v_and_b32 v%d, 7, v%d' % (vt, V_LANE))
        a('v_lshl_add_u32 v%d, v%d, 7, v%d' % (vt, vt, vd))
        a.label(L)
    a.v(tag, 'buffer_load_dword v%d, v%d, s[%d:%d], s%d offen' % (vd, vt, R, R + 3, S_T0))

def p1(a):
    a.vreset()
    srd(a, S_IN2, 40, 0x200000)
    srd(a, S_IN, 42, 0x180000)
    nonce_publish(a)
    VXD = [V_TMP + 16, V_TMP + 17]; VWD = V_TMP + 18
    a('v_lshrrev_b32 v5, 3, v%d' % V_LANE)
    a('v_and_b32 v6, 7, v%d' % V_LANE)
    a('v_lshrrev_b32 v7, 4, v%d' % V_LANE)
    a('v_xor_b32 v8, v6, v7')
    a('v_lshlrev_b32 v8, 4, v8')
    a('v_lshl_add_u32 v%d, v5, 10, v8' % VXD[0])
    a('v_xor_b32 v%d, 64, v%d' % (VXD[1], VXD[0]))
    a('v_lshrrev_b32 v5, 2, v%d' % V_LANE)
    a('v_mul_u32_u24 v5, 3072, v5')
    a('v_and_b32 v6, 3, v%d' % V_LANE)
    a('v_lshl_add_u32 v%d, v6, 4, v5' % VWD)
    SXG, SXL, SWG, SLO, SHI = 85, 87, 88, 89, 90
    a('s_lshl_b32 s%d, s%d, 15' % (S_T0, S_KH))
    a('s_lshl_b32 s%d, s%d, 14' % (S_T1, S_I))
    a('s_add_u32 s%d, s%d, s%d' % (SXG, S_XOFF, S_T0))
    a('s_add_u32 s%d, s%d, s%d' % (SXG, SXG, S_T1))
    a('s_lshl_b32 s%d, s%d, 9' % (S_T1, S_J))
    a('s_add_u32 s%d, s%d, s%d' % (SXG, SXG, S_T1))
    a('s_lshl_b32 s%d, s%d, 14' % (S_T1, S_J))
    a('s_add_u32 s%d, s%d, s%d' % (SXL, S_T0, S_T1))
    a('s_lshl_b32 s%d, s%d, 11' % (S_T1, S_I))
    a('s_add_u32 s%d, s%d, s%d' % (SXL, SXL, S_T1))
    a('s_mul_i32 s%d, s%d, %d' % (SWG, S_I, 256 * 3072))
    a('s_lshl_b32 s%d, s%d, 7' % (S_T0, S_CS))
    a('s_add_u32 s%d, s%d, s%d' % (SWG, SWG, S_T0))
    a('s_lshl_b32 s%d, s%d, 6' % (S_T0, S_J))
    a('s_add_u32 s%d, s%d, s%d' % (SWG, SWG, S_T0))
    a('s_lshl_b32 s94, s%d, 10' % S_KH)
    a('s_add_u32 s94, s94, s%d' % SWG)
    a('s_add_u32 s94, s94, 1024')
    a('s_and_b32 s%d, s%d, 3' % (S_T2, S_W))
    a('s_mul_i32 s%d, s%d, 11264' % (SLO, S_T2))
    a('s_add_u32 s%d, s%d, 65536' % (SLO, SLO))
    a('s_add_u32 s%d, s%d, 3072' % (SHI, SLO))
    a('s_mul_i32 s%d, s%d, 3072' % (S_T0, S_T2))
    a('s_add_u32 s%d, s%d, 110592' % (S_T0, S_T0))
    a('s_lshl_b32 s%d, s%d, 13' % (S_T1, S_T2))
    a('s_add_u32 s%d, s%d, 131072' % (S_T1, S_T1))
    a('s_cmp_eq_u32 s%d, 1' % S_KH)
    a('s_cselect_b32 s%d, s%d, s%d' % (SLO, S_T0, SLO))
    a('s_cselect_b32 s%d, s%d, s%d' % (SHI, S_T1, SHI))
    SROT = 3
    a('s_add_u32 s%d, s%d, s%d' % (SROT, S_RB, S_GRP))
    a('s_and_b32 s%d, s%d, 3' % (SROT, SROT))
    def rotg(g):
        a('s_add_u32 s%d, s%d, %d' % (S_T1, SROT, g))
        a('s_and_b32 s%d, s%d, 3' % (S_T1, S_T1))
    def dma_x(g):
        rotg(g)
        a('s_lshl_b32 s%d, s%d, 7' % (S_T1, S_T1))
        a('s_add_u32 s%d, s%d, s%d' % (S_T1, S_T1, SXG))
        for p in range(2):
            a('s_add_u32 s%d, s%d, %d' % (S_T0, S_T1, p * 8192))
            a('s_add_u32 m0, s%d, %d' % (SXL, g * 4096 + p * 1024))
            a('s_nop 0')
            a.v('x%d' % g, 'buffer_load_dwordx4 v%d, s[12:15], s%d offen lds' % (VXD[p], S_T0))
    def slot(sl): return (SLO, sl * 1024) if sl < 3 else (SHI, (sl - 3) * 1024)
    def dma_w(kt, q=False):
        sb, off = slot(3 + (kt + 2) % 8) if q else slot(kt % 11)
        rotg(kt // 4)
        a('s_mul_i32 s%d, s%d, %d' % (S_T1, S_T1, 64 * 3072))
        a('s_add_u32 s%d, s%d, s%d' % (S_T1, S_T1, SWG if q else 94))
        a('s_add_u32 s%d, s%d, %d' % (S_T0, S_T1, (kt % 4) * 16 * 3072))
        a('s_add_u32 m0, s%d, %d' % (sb, off))
        a('s_nop 0')
        a.v(('q%d' if q else 'w%d') % kt, 'buffer_load_dwordx4 v%d, s[8:11], s%d offen lds' % (VWD, S_T0))
    for g in range(4): dma_x(g)
    for kt in range(3): dma_w(kt)
    a('s_getpc_b64 s[64:65]')
    a.label('L_pcref')
    a('s_lshr_b32 s%d, s2, 3' % S_T0)
    a('s_lshl_b32 s%d, s%d, 3' % (S_T0, S_T0))
    a('s_add_u32 s%d, s%d, s%d' % (S_T0, S_T0, S_W))
    a('s_lshl_b32 s%d, s%d, 8' % (S_T0, S_T0))
    a('s_min_u32 s%d, s%d, L_end - L_pcref - 256' % (S_T0, S_T0))
    a('v_lshlrev_b32 v5, 2, v%d' % V_LANE)
    a('v_add_u32 v5, s%d, v5' % S_T0)
    a.v('cp', 'global_load_dword v%d, v5, s[64:65]' % 99)
    for kt in range(3, 6): dma_w(kt)
    PKR = V_W0
    def side_misc():
        a('v_and_b32 v5, 31, v%d' % V_LANE)
        a('v_lshlrev_b32 v5, 10, v5')
        a('v_lshrrev_b32 v6, 5, v%d' % V_LANE)
        a('v_lshl_add_u32 v5, v6, 3, v5')
        rowcol_off(a)
        a.v('res', 'buffer_load_dwordx2 v[%d:%d], v5, s[12:15], s%d offen' % (V_RES, V_RES + 1, S_T0))
        a.v('res', 'buffer_load_dwordx2 v[%d:%d], v5, s[12:15], s%d offen offset:16' % (V_RES + 2, V_RES + 3, S_T0))
        head_addrs(a)
        a('s_lshl_b32 s%d, s%d, 9' % (S_T0, S_RB))
        a('s_add_u32 s%d, s%d, s%d' % (S_T0, S_T0, S_T3))
        a('s_lshl_b32 s%d, s%d, 6' % (S_T1, S_RB))
        a('s_add_u32 s%d, s%d, s%d' % (S_T1, S_T1, S_T4))
        a('s_cmp_eq_u32 s%d, 0' % S_KH)
        a('s_cselect_b32 s%d, s%d, 0x%x' % (S_T0, S_T0, OOB))
        a('s_cselect_b32 s%d, s%d, 0x%x' % (S_T1, S_T1, OOB))
        PO = V_W0 + 16
        for r in range(4): a('v_mov_b32 v%d, -1' % (PO + r))
        for ly in range(2):
            if ly:
                a('s_add_u32 s%d, s%d, 0x%x' % (S_T0, S_T0, LS))
                a('s_add_u32 s%d, s%d, 0x%x' % (S_T1, S_T1, LS))
            a('s_mov_b32 exec_hi, 0')
            a.v('poi', 'buffer_store_dwordx4 %s, v%d, %s, s%d offen sc1' % (vr(PO), V_L16, WSR, S_T0))
            a('s_mov_b64 exec, 15')
            a.v('poi', 'buffer_store_dwordx4 %s, v%d, %s, s%d offen sc1' % (vr(PO), V_L16, WSR, S_T1))
            a('s_mov_b64 exec, -1')
        a('v_and_b32 v5, 7, v%d' % V_LANE)
        a('v_lshlrev_b32 v5, 21, v5')
        a.v('tlb', 'buffer_load_dword v%d, v5, %s, 0 offen' % (PO + 4, WSR))
    XR = [V_TMP + 20 + q for q in range(4)]
    WR = V_TMP + 24
    a('v_and_b32 v5, 31, v%d' % V_LANE)
    a('v_bfe_u32 v6, v%d, 1, 3' % V_LANE)
    a('v_lshrrev_b32 v7, 5, v%d' % V_LANE)
    a('v_xor_b32 v6, v6, v7')
    a('s_mul_i32 s%d, s%d, 49152' % (S_T0, S_I))
    a('v_lshlrev_b32 v5, 7, v5')
    a('v_add_u32 v5, s%d, v5' % S_T0)
    XR2 = [V_TMP + 12 + q for q in range(4)]
    for q in range(4):
        a('v_xor_b32 v7, %d, v6' % (2 * q))
        a('v_lshl_add_u32 v%d, v7, 4, v5' % XR[q])
        a('v_xor_b32 v%d, 32768, v%d' % (XR2[q], XR[q]))
    a('v_lshrrev_b32 v5, 5, v%d' % V_LANE)
    a('v_lshlrev_b32 v5, 9, v5')
    a('v_bfe_u32 v6, v%d, 2, 2' % V_LANE)
    a('v_lshl_add_u32 v5, v6, 6, v5')
    a('v_bfe_u32 v6, v%d, 4, 1' % V_LANE)
    a('v_lshl_add_u32 v5, v6, 5, v5')
    a('v_and_b32 v6, 3, v%d' % V_LANE)
    a('v_lshl_add_u32 v5, v6, 3, v5')
    a('v_add_u32 v%d, s%d, v5' % (WR, SLO))
    a('v_add_u32 v%d, s%d, v5' % (WR + 1, SHI))
    FB = [V_W1 + 12 * k for k in range(4)]
    CS, SS = V_TMP + 19, V_TMP + 26
    a('v_mov_b32 v%d, 0\nv_mov_b32 v%d, 0' % (SS, SS + 1))
    a('s_lshl_b32 s95, s%d, 1' % S_KH)
    a('s_add_u32 s95, s95, s%d' % S_J)
    def rd_kt(kt, q=False):
        b = FB[kt % 4]
        sl = 3 + (kt + 2) % 8 if q else kt % 11
        areg, off = (WR, sl * 1024) if sl < 3 else (WR + 1, (sl - 3) * 1024)
        a('ds_read_b64_tr_b16 v[%d:%d], v%d offset:%d' % (b + 8, b + 9, areg, off))
        a('ds_read_b64_tr_b16 v[%d:%d], v%d offset:%d' % (b + 10, b + 11, areg, off + 256))
        a('ds_read_b128 %s, v%d offset:%d' % (vr(b), XR[kt & 3], (kt >> 2) * 4096))
        a('ds_read_b128 %s, v%d offset:%d' % (vr(b + 4), XR2[kt & 3], (kt >> 2) * 4096))
    def mm_kt(kt, stats):
        b = FB[kt % 4]; first = kt == 0
        if first: a('v_mov_b32 v%d, 0' % CS)
        for q, acc in enumerate((ACC0, ACC1)):
            a('v_mfma_f32_32x32x16_bf16 %s, %s, %s, %s' % (vr(acc, 16), vr(b + 8), vr(b + 4 * q), '0' if first else vr(acc, 16)))
        for r in range(4):
            a('v_dot2_f32_bf16 v%d, v%d, v%d, v%d' % (CS, b + 8 + r, V_ONES, CS))
        if stats:
            for tile in range(2):
                L = a.newlabel('st')
                a('s_cmp_lg_u32 s95, %d' % (2 * tile + (kt & 1)))
                a('s_cbranch_scc1 %s' % L)
                for r in range(4):
                    x = b + 4 * tile + r
                    a('v_dot2_f32_bf16 v%d, v%d, v%d, v%d' % (SS, x, V_ONES, SS))
                    a('v_dot2_f32_bf16 v%d, v%d, v%d, v%d' % (SS + 1, x, x, SS + 1))
                a.label(L)
    lms = LM(red=0, stat=122880, pkv=0, kvf=0, redq=0)
    a.vwait('x3')
    a('v_add_u32 v5, s%d, v%d' % (SXL, V_L16))
    XS = V_W0
    for g in range(4):
        for p in range(2):
            a('ds_read_b128 %s, v5 offset:%d' % (vr(XS + 8 * g + 4 * p), g * 4096 + p * 1024))
    SA = V_ACC
    for r in range(4): a('v_mov_b32 v%d, 0' % (SA + r))
    a('s_waitcnt lgkmcnt(0)')
    for g in range(4):
        for p in range(2):
            for r in range(4):
                x = XS + 8 * g + 4 * p + r
                a('v_dot2_f32_bf16 v%d, v%d, v%d, v%d' % (SA + 2 * p, x, V_ONES, SA + 2 * p))
                a('v_dot2_f32_bf16 v%d, v%d, v%d, v%d' % (SA + 2 * p + 1, x, x, SA + 2 * p + 1))
    a('v_lshrrev_b32 v5, 3, v%d' % V_LANE)
    a('v_lshlrev_b32 v5, 3, v5')
    a('s_lshl_b32 s%d, s%d, 8' % (S_T0, S_KH))
    a('s_lshl_b32 s%d, s%d, 7' % (S_T1, S_I))
    a('s_add_u32 s%d, s%d, s%d' % (S_T0, S_T0, S_T1))
    a('s_lshl_b32 s%d, s%d, 9' % (S_T1, S_J))
    a('s_add_u32 s%d, s%d, s%d' % (S_T0, S_T0, S_T1))
    a('s_add_u32 s%d, s%d, %d' % (S_T0, S_T0, lms.stat))
    a('v_add_u32 v5, s%d, v5' % S_T0)
    for dp in ('quad_perm:[1,0,3,2]', 'quad_perm:[2,3,0,1]', 'row_half_mirror'):
        a('s_nop 1')
        for r in range(4):
            a('v_add_f32_dpp v%d, v%d, v%d %s row_mask:0xf bank_mask:0xf' % (SA + r, SA + r, SA + r, dp))
    a('ds_write_b64 v5, v[%d:%d]' % (SA, SA + 1))
    a('ds_write_b64 v5, v[%d:%d] offset:64' % (SA + 2, SA + 3))
    barrier(a)
    if E('TSP1'): ts(a)
    for kt in range(17):
        if kt < 16:
            a.vwait('w%d' % kt)
            if E('TSP2'): ts(a)
            rd_kt(kt)
            if kt: a('s_waitcnt lgkmcnt(4)')
        else:
            a('s_waitcnt lgkmcnt(0)')
        if kt >= 1:
            p = kt - 1
            if p < 5: dma_w(p + 11)
            mm_kt(p, False)
        if kt == 0:
            rs_issue(a, lms.stat, 2)
        if kt == 2:
            rs_math(a, 2)
            rs_spread(a, True)
            for r in range(14, 18):
                a('v_mov_b32 v%d, 0' % r)
        if kt == 0:
            for k in range(6, 9): dma_w(k)
        if kt == 1:
            for k in range(9, 11): dma_w(k)
        if kt == 6:
            side_misc()
            nonce_probe(a)
        if kt == int(E('WARMKT', '8')):
            warm2(a, V_W0 + 22, V_W0 + 23, 'wu', True)
        if kt == 12:
            with role(a, 'B'):
                vm = list(a.vm)
                a.vwait('w15')
                for k in range(6): dma_w(k, True)
                a.vm = vm; a.done = -1
    with role(a, 'B'):
        vm = list(a.vm)
        for k in range(6, 8): dma_w(k, True)
        a.vm = vm
    a.nop(3)
    make_csfrag(a, CS, V_CF1, 6)
    a('s_nop 1')
    y_correct(a, V_CF1)
    a('s_barrier')
    ts(a)
    lm = LM(red=65536, stat=0, pkv=98304, kvf=114688, redq=65536, wst=131072)
    kv_red_write(a, lm.red)
    with role(a, 'A'):
        nonce_check(a)
    with role(a, 'B'):
        a.vm += ['q'] * 8; a.done = -1
        nonce_check(a)
    a('v_mov_b32 v18, 0')
    a('v_mov_b32 v19, 0')
    a('s_mov_b32 s%d, 1' % S_GPH)
    with role(a, 0):
        lsignal(a)
    with role(a, 'A'):
        hello(a)
    barrier(a)
    if E('TSP1'): ts(a)
    a1_kv_owner(a, lm)
    ts(a)
    with role(a, 'B'):
        a('s_waitcnt vmcnt(0)')
    def qpass():
        a.vreset()
        for kt in range(17):
            if kt < 16:
                if kt >= 8: a.vwait('q%d' % kt)
                rd_kt(kt, True)
                if kt: a('s_waitcnt lgkmcnt(4)')
            else:
                a('s_waitcnt lgkmcnt(0)')
            if kt >= 1:
                p = kt - 1
                if p < 8: dma_w(p + 8, True)
                mm_kt(p, False)
        a.nop(3)
        make_csfrag(a, CS, V_CF0, 6)
        a('s_nop 1')
        y_correct(a, V_CF0)
    def ring():
        a('s_and_b32 s70, s%d, 3' % S_W)
        a('s_lshl_b32 s70, s70, 14')
        load_w_ring(a, U_WQ, V_W1, 16)
    a1_tail(a, lm, True, qpass, ring)

def resid_add(a, acc):
    for r in range(4):
        a('v_lshlrev_b32 v%d, 16, v%d' % (acc + 8 + 2 * r, V_RES + r))
        a('v_and_b32 v%d, 0xffff0000, v%d' % (acc + 9 + 2 * r, V_RES + r))
    for r in range(0, 8, 2):
        pk_add(a, acc + r, acc + r, acc + 8 + r)
    for r in range(4):
        a('v_cvt_pk_bf16_f32 v%d, v%d, v%d' % (V_RES + r, acc + 2 * r, acc + 2 * r + 1))

def final_store(a):
    srd(a, S_IN2, 56, 0x200000)
    a('s_nop 1')
    a('v_permlane32_swap_b32 v%d, v%d' % (V_RES, V_RES + 2))
    a('v_permlane32_swap_b32 v%d, v%d' % (V_RES + 1, V_RES + 3))
    a('v_and_b32 v5, 31, v%d' % V_LANE)
    a('v_lshlrev_b32 v5, 10, v5')
    a('v_lshrrev_b32 v6, 5, v%d' % V_LANE)
    a('v_lshl_add_u32 v5, v6, 4, v5')
    rowcol_off(a)
    a('buffer_store_dwordx4 %s, v5, s[12:15], s%d offen' % (vr(V_RES), S_T0))

def w16_regs(a):
    with role(a, 3):
        a('v_lshrrev_b32 v5, 5, v%d' % V_LANE)
        a('v_lshlrev_b32 v5, 9, v5')
        a('v_bfe_u32 v6, v%d, 4, 1' % V_LANE)
        a('v_lshl_add_u32 v5, v6, 7, v5')
        a('v_bfe_u32 v6, v%d, 2, 2' % V_LANE)
        a('v_lshl_add_u32 v5, v6, 5, v5')
        a('v_and_b32 v6, 3, v%d' % V_LANE)
        a('v_lshl_add_u32 v5, v6, 3, v5')
        a('v_add_u32 v5, %d, v5' % LDS_W16)
        for st in range(16):
            a('ds_read_b64_tr_b16 v[%d:%d], v5 offset:%d' % (V_W1 + 4 * st, V_W1 + 4 * st + 1, st * 1024))
            a('ds_read_b64_tr_b16 v[%d:%d], v5 offset:%d' % (V_W1 + 4 * st + 2, V_W1 + 4 * st + 3, st * 1024 + 256))
        a('s_waitcnt lgkmcnt(0)')
        L = a.newlabel('cf2')
        a('s_cmp_lg_u32 s%d, 0' % S_LOFF)
        a('s_cbranch_scc1 %s' % L)
        colsum(a, V_W1, 9)
        make_csfrag(a, 9, V_CF2, 6)
        a.label(L)

def out_gemm(a, w16=False):
    ie = ifelse(a)
    ie.if_set(0)
    active_path(a, V_W0, False)
    y_red_write(a, 65536, 0)
    ie.else_()
    loader_path(a, False, (lambda: dma_w16(a)) if w16 else None)
    ie.end()
    toggle_bufs(a, False)
    barrier(a)
    ts3(a)
    y_red_read(a, 65536, 0)
    resid_add(a, V_ACC)
    ts3(a)

def b1_compute(a):
    lm = LM_STD
    a('s_add_u32 s%d, s%d, 1' % (S_GPH, S_GPH))
    P = V_ACC
    X16 = [V_XF, V_XF + 4, V_XF + 8, V_XF + 12]
    MFg, CFg = P + 8, V_CF2
    def mk_hook(var):
        def hook(c):
            if c == 'stats':
                a('v_and_b32 v7, 15, v%d' % V_LANE)
                a('s_lshl_b32 s%d, s%d, 4' % (S_T0, S_SLAB))
                a('v_add_u32 v7, s%d, v7' % S_T0)
                a('v_lshlrev_b32 v7, 2, v7')
                a('ds_bpermute_b32 v8, v7, v%d' % VM)
                if var == 0:
                    a('ds_bpermute_b32 v%d, v7, v%d' % (P + 16, VR))
                else:
                    a('v_lshrrev_b32 v7, 4, v%d' % V_LANE)
                    a('v_lshlrev_b32 v7, 2, v7')
                    a('v_add_u32 v7, s%d, v7' % S_T0)
                    a('v_lshlrev_b32 v7, 2, v7')
                    for r in range(4):
                        a('ds_bpermute_b32 v%d, v7, v%d offset:%d' % (P + 16 + r, VR, 4 * r))
                a('v_and_b32 v%d, 15, v%d' % (P + 20, V_LANE))
                a('v_lshlrev_b32 v%d, 4, v%d' % (P + 20, P + 20))
                a('v_bfe_u32 v7, v%d, 4, 1' % V_LANE)
                a('v_lshl_add_u32 v%d, v7, %d, v%d' % (P + 20, 9 if var == 0 else 8, P + 20))
                a('v_lshrrev_b32 v7, 5, v%d' % V_LANE)
                a('v_lshl_add_u32 v%d, v7, 3, v%d' % (P + 20, P + 20))
                if var == 0:
                    a('s_lshl_b32 s71, s%d, 11' % S_RB)
                    a('s_lshr_b32 s%d, s%d, 1' % (S_T1, S_SLAB))
                    a('s_lshl_b32 s%d, s%d, 10' % (S_T1, S_T1))
                    a('s_add_u32 s71, s71, s%d' % S_T1)
                    a('s_and_b32 s%d, s%d, 1' % (S_T1, S_SLAB))
                    a('s_lshl_b32 s%d, s%d, 8' % (S_T1, S_T1))
                    a('s_add_u32 s71, s71, s%d' % S_T1)
                    a('s_add_u32 s71, s71, 0x%x' % KF_)
                else:
                    a('s_lshl_b32 s71, s%d, 2' % S_RB)
                    a('s_add_u32 s71, s71, s%d' % S_SLAB)
                    a('s_lshl_b32 s71, s71, 9')
                    a('s_add_u32 s71, s71, 0x%x' % VF_)
                a('s_add_u32 s71, s71, s%d' % S_LOFF)
                a('s_waitcnt lgkmcnt(0)')
                if var == 0:
                    for r in range(1, 4): a('v_mov_b32 v%d, v%d' % (P + 16 + r, P + 16))
                make_mfrag(a, 8, MFg)
                a('s_nop 1')
                if var == 0: a('v_mfma_f32_16x16x32_bf16 %s, %s, %s, %s' % (vr(P), vr(CFg), vr(MFg), vr(P)))
                else: a('v_mfma_f32_16x16x32_bf16 %s, %s, %s, %s' % (vr(P), vr(MFg), vr(CFg), vr(P)))
                return
            steps = [2 * c, 2 * c + 1, 8 + 2 * c, 9 + 2 * c]
            for n in range(4):
                a('ds_read_b128 %s, v6 offset:%d' % (vr(X16[n]), steps[n] * 2048))
            for n, st in enumerate(steps):
                a('s_waitcnt lgkmcnt(%d)' % (3 - n))
                cc = '0' if (c == 0 and n == 0) else vr(P)
                A_, B_ = (vr(V_W1 + 4 * st), vr(X16[n])) if var == 0 else (vr(X16[n]), vr(V_W1 + 4 * st))
                a('v_mfma_f32_16x16x32_bf16 %s, %s, %s, %s' % (vr(P), A_, B_, cc))
            if c == 3:
                a.nop(8)
                for r in range(4):
                    a('v_mul_f32 v%d, v%d, v%d' % (P + r, P + r, P + 16 + r))
                a('v_cvt_pk_bf16_f32 v%d, v%d, v%d' % (P + 4, P, P + 1))
                a('v_cvt_pk_bf16_f32 v%d, v%d, v%d' % (P + 5, P + 2, P + 3))
                a('buffer_store_dwordx2 v[%d:%d], v%d, %s, s71 offen sc1' % (P + 4, P + 5, P + 20, WSR))
        return hook
    Lb = a.newlabel('b1b'); L3 = a.newlabel('b13'); L3v = a.newlabel('b13v'); Le = a.newlabel('b1e')
    a('s_cmp_eq_u32 s%d, 1' % S_KH)
    a('s_cbranch_scc1 %s' % Lb)
    a('s_cmp_eq_u32 s%d, 3' % S_W)
    a('s_cbranch_scc1 %s' % L3)
    loader_path(a, True)
    a('s_branch %s' % Le)
    a.label(Lb)
    active_path(a, V_W1, True)
    y_correct(a, V_CF2)
    y_red_write(a, 65536, 1)
    a('s_branch %s' % Le)
    a.label(L3)
    a('v_and_b32 v6, 15, v%d' % V_LANE)
    a('v_lshlrev_b32 v6, 4, v6')
    a('v_bfe_u32 v5, v%d, 4, 1' % V_LANE)
    a('v_lshl_add_u32 v6, v5, 9, v6')
    a('v_lshrrev_b32 v5, 5, v%d' % V_LANE)
    a('v_lshl_add_u32 v6, v5, 10, v6')
    a('s_lshr_b32 s%d, s%d, 1' % (S_T0, S_SLAB))
    a('s_lshl_b32 s%d, s%d, 15' % (S_T0, S_T0))
    a('s_and_b32 s%d, s%d, 1' % (S_T1, S_SLAB))
    a('s_lshl_b32 s%d, s%d, 8' % (S_T1, S_T1))
    a('s_add_u32 s%d, s%d, s%d' % (S_T0, S_T0, S_T1))
    a('v_add_u32 v6, s%d, v6' % S_T0)
    a('s_cmp_eq_u32 s%d, 1' % S_WHICH)
    a('s_cbranch_scc1 %s' % L3v)
    loader_path(a, True, hook=mk_hook(0))
    a('s_branch %s' % Le)
    a.label(L3v)
    loader_path(a, True, hook=mk_hook(1))
    a.label(Le)
    toggle_bufs(a, True)
    barrier(a)
    with role(a, 3):
        a('s_waitcnt vmcnt(0)')
        lsignal(a)
    AQ = V_ACC
    y_red_read(a, 65536, 1)
    scale_pack(a, AQ, VR, V_XF)
    for r in range(4):
        a('v_lshlrev_b32 v%d, 16, v%d' % (AQ + 2 * r, V_XF + r))
        a('v_and_b32 v%d, 0xffff0000, v%d' % (AQ + 2 * r + 1, V_XF + r))
    for r in range(8):
        a('v_mul_f32 v%d, 0x%x, v%d' % (AQ + r, f2u(CQ), AQ + r))
    for r in range(4):
        a('v_cvt_pk_bf16_f32 v%d, v%d, v%d' % (A_Q + r, AQ + 2 * r, AQ + 2 * r + 1))

PRIO_LO = eval(E('PRIO_LO', '(4, 12, 23, 53)'))
PRIO_HI = eval(E('PRIO_HI', '(7, 15, 28)'))
def attn_loop(a):
    a.lreset()
    def rdK(t):
        if t < 64: a.l_('k%d' % t, 'ds_read_b128 %s, v%d offset:%d' % (vr(A_K[t % 2]), V_L16, t * 1024))
    def rdV(t):
        if t >= 64: return
        a('s_mov_b64 exec, s[%d:%d]' % (S_MASK_LO16, S_MASK_LO16 + 1))
        a.l_('v%d' % t, 'ds_read_b128 %s, v%d offset:%d' % (vr(A_V[t % 2]), A_VA, t * 1024))
        a.l_('v%d' % t, 'ds_read_b128 %s, v%d offset:%d' % (vr(A_V[t % 2] + 4), A_VA, t * 1024 + 512))
        a('s_mov_b64 exec, -1')
    def qk(t):
        a('v_mfma_f32_32x32x16_bf16 %s, %s, %s, %s' % (vr(A_S[t % 2], 16), vr(A_K[t % 2]), vr(A_Q), vr(A_BIAS, 16)))
    def pv(vb, pb, first=False):
        a('v_mfma_f32_32x32x16_bf16 %s, %s, %s, %s' % (vr(A_O, 16), vr(vb), vr(pb), '0' if first else vr(A_O, 16)))
    ex = lambda r: a('v_exp_f32 v%d, v%d' % (r, r))
    class first_pass:
        def __enter__(s_):
            s_.L = a.newlabel('fp')
            a('s_cmp_lg_u32 s%d, 0' % S_PASS)
            a('s_cbranch_scc1 %s' % s_.L)
        def __exit__(s_, *e): a.label(s_.L)
    a('v_and_b32 v%d, 15, v%d' % (A_VA, V_LANE))
    a('v_lshlrev_b32 v%d, 4, v%d' % (A_VA, A_VA))
    a('v_lshrrev_b32 v7, 5, v%d' % V_LANE)
    a('v_lshl_add_u32 v%d, v7, 8, v%d' % (A_VA, A_VA))
    a('v_add_u32 v%d, 65536, v%d' % (A_VA, A_VA))
    rdK(0); rdK(1); rdV(0)
    WD, WA = 10, 11
    a('s_lshl_b32 s70, s%d, 12' % S_W)
    a('s_add_u32 s70, s70, 131072')
    a('s_setprio 1')
    with role(a, 'B'):
        a('s_setprio 2')
    a.lwait('k0')
    qk(0)
    raw_rdaddr(a, WA, 70)
    a('s_nop 1')
    T0 = 29
    def wskip(cond_all):
        a('s_cmp_lg_u32 s%d, 0' % S_LOFF)
        a('s_cselect_b32 s%d, 0x%x, 0' % (S_T0, OOB))
        if not cond_all:
            a('s_cmp_eq_u32 s%d, 0' % S_KH)
            a('s_cselect_b32 s%d, 0, s%d' % (S_T0, S_T0))
        a('s_add_u32 s68, s68, s%d' % S_T0)
    for t in range(64):
        S = A_S[t % 2]
        cv = lambda r: a('v_cvt_pk_bf16_f32 v%d, v%d, v%d' % (A_P + r, S + 2 * r, S + 2 * r + 1))
        def xprobe():
            a('v_and_b32 v7, 7, v%d' % V_LANE)
            a('v_lshlrev_b32 v7, 7, v7')
            a('s_mov_b32 s66, 0x%x' % XFLAG)
            a('buffer_load_dwordx2 v[8:9], v7, %s, s66 offen sc1' % WSR)
        def xcheck(slots):
            Lr = a.newlabel('xr')
            tagbase(a, 65, S_GPH)
            m = sum(1 << sl for sl in slots)
            a('s_lshl_b32 s64, %d, s%d' % (m, S_GRP))
            chk = ['s_mov_b32 exec_lo, s64', 's_mov_b32 exec_hi, 0'] + tagcmp([8], 65, 5) + ['s_mov_b64 exec, -1']
            a('s_waitcnt vmcnt(0)')
            for c in chk: a(c)
            a('s_cbranch_vccz %s' % Lr)
            a('v_and_b32 v7, 7, v%d' % V_LANE)
            a('v_lshlrev_b32 v7, 7, v7')
            poll(a, ['buffer_load_dwordx2 v[8:9], v7, %s, s66 offen sc1' % WSR], chk, sleep=1)
            a.label(Lr)
        if t in (2, 9, 20):
            with first_pass(): xprobe()
        if t == 4:
            with first_pass():
                xcheck([1]); kv_dma(a, [1])
        if t == 11:
            with first_pass():
                xcheck([2, 3]); kv_dma(a, [2, 3])
        if t == 22:
            with first_pass():
                xcheck([4, 5, 6, 7]); kv_dma(a, range(4, 8))
        if t in (7, 15, 28):
            with first_pass():
                a('s_waitcnt vmcnt(0)')
                a('s_barrier')
            if t in (7, 15): rdK(t + 1)
        if E('TSA') and t in (0, 3, 4, 7, 15, 32, 50, 63): ts(a)
        if t in PRIO_LO:
            with role(a, 'B'):
                a('s_setprio 0')
        if t in PRIO_HI:
            with role(a, 'B'):
                a('s_setprio 2')
        if t == T0 + int(E('WARMT', '0')):
            Lw = a.newlabel('wm')
            a('s_cmp_lg_u32 s%d, 0' % S_LOFF)
            a('s_cbranch_scc1 %s' % Lw)
            warm2(a, 8, 7)
            a.label(Lw)
        if t == T0:
            raw_setup(a, U_OB, U_Q, S_IN2, 68, 69, WD); wskip(False)
        if t == T0 + 16:
            raw_setup(a, U_K, U_V, S_IN2, 68, 69, WD); wskip(True)
        if t + 1 < 64:
            a.lwait('k%d' % (t + 1))
            qk(t + 1)
        if t not in (6, 14): rdK(t + 2)
        ex(S + 0); ex(S + 1); ex(S + 2); ex(S + 3); cv(0); ex(S + 4); ex(S + 5); cv(1); ex(S + 6); ex(S + 7); cv(2)
        ex(S + 8); ex(S + 9); cv(3); ex(S + 10); ex(S + 11)
        a.lwait('v%d' % t)
        pv(A_V[t % 2], A_P, t == 0)
        p = t - T0
        if 0 <= p < 32:
            if p >= 4: a.lwait('w%d' % (p - 4))
            for l in raw_dma(S_IN2, 68, 69, WD, 70, (p % 4) * 1024): a(l)
        cv(4); ex(S + 12); ex(S + 13); cv(5); ex(S + 14); ex(S + 15); cv(6)
        p = t - T0 - 2
        if 0 <= p < 32:
            a('s_waitcnt vmcnt(%d)' % min(2, 31 - p))
        else:
            a('s_nop 0')
        cv(7)
        if 0 <= p < 32:
            for l in raw_rd((V_W0 if p < 16 else V_W1) + 4 * (p % 16), WA, (p % 4) * 1024): a.l_('w%d' % p, l)
        else:
            a('s_nop 1')
        pv(A_V[t % 2] + 4, A_P + 4)
        rdV(t + 1)
    a('s_setprio 0')
    a.nop(16)

def attn_pre(a):
    a('s_mov_b32 s%d, 0x00110000' % S_T0)
    a('s_mov_b32 s%d, 0x00110000' % S_T1)
    a('v_cndmask_b32_e64 v7, 0, v%d, s[%d:%d]' % (V_ONES, S_T0, S_T1))
    for b in range(2):
        for r in range(8):
            a('v_mov_b32 v%d, v7' % (A_V[b] + r))

def kv_dma(a, slots):
    a('s_lshl_b32 s67, s%d, 10' % S_W)
    for sl in slots:
        a('s_add_u32 s%d, s%d, %d' % (S_T0, S_GRP, sl))
        a('s_and_b32 s%d, s%d, 7' % (S_T0, S_T0))
        a('s_lshl_b32 s%d, s%d, 13' % (S_T0, S_T0))
        a('s_add_u32 s%d, s%d, s67' % (S_T0, S_T0))
        a('s_add_u32 s%d, s%d, s%d' % (S_T0, S_T0, S_LOFF))
        a('s_add_u32 s%d, s%d, 0x%x' % (S_T0, S_T0, KF_))
        a('s_add_u32 m0, s67, %d' % (sl * 8192))
        a('s_add_u32 s%d, s%d, 0x10000' % (S_T1, S_T0))
        a('buffer_load_dwordx4 v%d, %s, s%d offen sc1 lds' % (V_L16, WSR, S_T0))
        a('s_add_u32 m0, s67, %d' % (65536 + sl * 8192))
        a('s_nop 0')
        a('buffer_load_dwordx4 v%d, %s, s%d offen sc1 lds' % (V_L16, WSR, S_T1))

def attn_inputs(a):
    with role(a, 0):
        lwait(a)
        L = a.newlabel('ld')
        a('s_lshr_b32 s%d, s2, 3' % S_T0)
        a('s_cmp_lg_u32 s%d, 0' % S_T0)
        a('s_cbranch_scc1 %s' % L)
        tagval(a, 6, S_GPH)
        a('s_lshl_b32 s%d, s%d, 7' % (S_T0, S_GRP))
        a('s_add_u32 s%d, s%d, 0x%x' % (S_T0, S_T0, XFLAG))
        a('v_mov_b32 v5, 0')
        a('s_mov_b64 exec, 1')
        a('buffer_store_dwordx2 v[6:7], v5, %s, s%d offen sc1' % (WSR, S_T0))
        a('s_mov_b64 exec, -1')
        a.label(L)
    barrier(a)
    ts(a)
    kv_dma(a, [0])
    a('s_waitcnt vmcnt(0)')
    a('s_barrier')

def attn_compute(a):
    a('ds_read_b128 %s, v%d' % (vr(A_K[0]), V_L16))
    a('s_waitcnt lgkmcnt(0)')
    a('v_mfma_f32_32x32x16_bf16 %s, %s, %s, 0' % (vr(A_S[0], 16), vr(A_K[0]), vr(A_Q)))
    a.nop(12)
    a('v_max3_f32 v10, v%d, v%d, v%d' % (A_S[0], A_S[0] + 1, A_S[0] + 2))
    a('v_max3_f32 v9, v%d, v%d, v%d' % (A_S[0] + 3, A_S[0] + 4, A_S[0] + 5))
    for r in range(6, 14, 4):
        a('v_max3_f32 v10, v10, v%d, v%d' % (A_S[0] + r, A_S[0] + r + 1))
        a('v_max3_f32 v9, v9, v%d, v%d' % (A_S[0] + r + 2, A_S[0] + r + 3))
    a('v_max3_f32 v10, v10, v%d, v%d' % (A_S[0] + 14, A_S[0] + 15))
    a('v_max_f32 v10, v10, v9')
    halves_sum(a, 10, 9, 'v_max_f32')
    a('v_sub_f32 v10, 0, v10')
    a('s_mov_b32 s%d, 0' % S_PASS)
    Lrun = a.newlabel('at_run'); Lok = a.newlabel('at_ok'); Lmx = a.newlabel('at_mx')
    a.label(Lrun)
    for r in range(16):
        a('v_mov_b32 v%d, v10' % (A_BIAS + r))
    a('s_nop 1')
    attn_loop(a)
    a('s_cmp_eq_u32 s%d, 1' % S_PASS)
    a('s_cbranch_scc1 %s' % Lok)
    a('v_max3_f32 v8, abs(v%d), abs(v%d), abs(v%d)' % (A_O, A_O + 1, A_O + 2))
    a('v_max3_f32 v9, abs(v%d), abs(v%d), abs(v%d)' % (A_O + 3, A_O + 4, A_O + 5))
    a('v_max3_f32 v8, abs(v%d), abs(v%d), v8' % (A_O + 6, A_O + 7))
    a('v_max_f32 v8, v8, v9')
    a('v_cmp_nle_f32 vcc, 0x%x, v%d' % (f2u(2.0 ** -89), A_O + 8))
    a('v_cmp_nge_f32 s[64:65], v%d, v%d' % (7, A_O + 8)) if False else None
    a('s_mov_b64 s[64:65], vcc')
    a('v_cmp_nge_f32 vcc, 0x%x, v%d' % (f2u(2.0 ** 90), A_O + 8))
    a('s_nop 3')
    a('s_or_b64 s[64:65], s[64:65], vcc')
    a('v_cmp_nge_f32 vcc, 0x%x, v8' % f2u(2.0 ** 126))
    a('s_nop 3')
    a('s_or_b64 s[64:65], s[64:65], vcc')
    a('s_cmp_eq_u64 s[64:65], 0')
    a('s_cbranch_scc1 %s' % Lok)
    a('s_mov_b32 s%d, 1' % S_PASS)
    a('v_mov_b32 v10, 0xff800000')
    a('v_mov_b32 v%d, v%d' % (A_KA, V_L16))
    a('s_mov_b32 s%d, 0' % S_CNT)
    a.label(Lmx)
    a('ds_read_b128 %s, v%d' % (vr(A_K[0]), A_KA))
    a('s_waitcnt lgkmcnt(0)')
    a('v_mfma_f32_32x32x16_bf16 %s, %s, %s, 0' % (vr(A_S[0], 16), vr(A_K[0]), vr(A_Q)))
    a.nop(16)
    for r in range(0, 16, 2):
        a('v_max3_f32 v10, v10, v%d, v%d' % (A_S[0] + r, A_S[0] + r + 1))
    a('v_add_u32 v%d, 1024, v%d' % (A_KA, A_KA))
    a('s_add_u32 s%d, s%d, 1' % (S_CNT, S_CNT))
    a('s_cmp_lt_u32 s%d, 64' % S_CNT)
    a('s_cbranch_scc1 %s' % Lmx)
    halves_sum(a, 10, 9, 'v_max_f32')
    a('v_sub_f32 v10, 0, v10')
    a('s_branch %s' % Lrun)
    a.label(Lok)
    a('v_rcp_f32 v8, v%d' % (A_O + 8))
    a('s_nop 0')
    scale_pack(a, A_O, 8, A_P)
    store_blk(a, A_P)
    csignal(a)

def header():
    ref = open('cdna_kernels/%s.s.ref' % NAME).read().split('\n')
    out = []
    for l in ref:
        if not l.startswith(';'): break
        if '@launch' in l: continue
        out.append(l)
    return out

def main(path):
    a = Asm()
    for h in header(): a.raw(h)
    a.raw('; @launch grid=(256,1,1) block=(512,1,1) lds=%d' % LDS_TOTAL)
    a.raw('.amdgcn_target "amdgcn-amd-amdhsa--gfx950"')
    a.raw('.text')
    name = NAME + '_kernel'
    prologue(a, name)
    ts(a)
    p1(a)
    ts(a)
    a.label('L_layer')
    out_gemm(a, True)
    store_x(a)
    csignal(a)
    w16_regs(a)
    ts(a)
    b1_compute(a)
    attn_pre(a)
    ts(a)
    attn_inputs(a)
    ts(a)
    attn_compute(a)
    ts(a)
    out_gemm(a)
    a('s_cmp_lg_u32 s%d, 0' % S_LOFF)
    a('s_cbranch_scc1 L_final')
    a('s_mov_b32 s%d, 0x%x' % (S_LOFF, LS))
    store_x(a)
    csignal(a)
    ts(a)
    a1_std(a)
    ts(a)
    a('s_branch L_layer')
    a.label('L_final')
    final_store(a)
    a('s_waitcnt vmcnt(0)')
    ts(a)
    epilogue(a, name)
    open(path, 'w').write(a.text())

if __name__ == '__main__':
    main(sys.argv[1] if len(sys.argv) > 1 else 'cdna_kernels/%s.s' % NAME)
```

```python
import struct, math, sys, os

NAME = 'interleave_layers__linear_attn_block__grouped_kv_mqa__prompt'
E = os.environ.get
TS_ON = E('TS', '0') == '1'
TS2 = TS_ON and E('TS2', '0') == '1'
DBGBUF = E('DBGBUF', '0') == '1'

T0_ = 0x1000000 if DBGBUF else 0x000000
WP = 0x400000
NT_QKV, NT_OA, NT_Q, NT_OB = 0, 48, 64, 80
WKV16 = 0x700000
STP = 0x780000
LB, LS = 0x880000, 0x140000
KF_, VF_, KMAX_ = LB, LB + 0x10000, LB + 0x20000
KVP_, ZP_ = LB + 0x28000, LB + 0x128000
CFLAG = 0xB00000
GFLAG = 0xB04000
XFLAG = 0xB05000
HFLAG = 0xB20000
TSBUF = 0xB40000
WS_BYTES = 0x10000000
OOB = 0x7FFF0000
_t = lambda n: T0_ + n * 0x200000
XF = [None, _t(1), _t(3), _t(5)]
OLIN = [_t(0), _t(4)]; OF = [_t(2), _t(6)]
KF = [KF_, KF_ + LS]; VF = [VF_, VF_ + LS]; KMAX = [KMAX_, KMAX_ + LS]; KVP = [KVP_, KVP_ + LS]; ZP = [ZP_, ZP_ + LS]

def f2u(x): return struct.unpack('<I', struct.pack('<f', x))[0]
LOG2E = math.log2(math.e)
CQ = 0.25 * LOG2E

class Asm:
    def __init__(self):
        self.l = []; self.uid = 0; self.vm = []; self.done = -1
    def __call__(self, s):
        for line in s.strip('\n').split('\n'):
            self.l.append('    ' + line.strip())
    def label(self, s): self.l.append(s + ':')
    def raw(self, s): self.l.append(s)
    def nop(self, n):
        while n > 0:
            k = min(n, 16); self('s_nop %d' % (k - 1)); n -= k
    def newlabel(self, p='L'):
        self.uid += 1; return '%s_%d' % (p, self.uid)
    def text(self): return '\n'.join(self.l) + '\n'
    def lreset(self): self.lg = []; self.ldone = -1
    def l_(self, tag, s_):
        self(s_); self.lg.append(tag)
    def lwait(self, *tags):
        idx = [i for i, t in enumerate(self.lg) if t in tags]
        if not idx or max(idx) <= self.ldone: return
        self.ldone = max(idx)
        n = len(self.lg) - 1 - max(idx)
        self('s_waitcnt lgkmcnt(%d)' % min(n, 15))
    def vreset(self): self.vm = []; self.done = -1
    def v(self, tag, s):
        self(s); self.vm.append(tag)
    def vwait(self, *tags, extra=''):
        idx = [i for i, t in enumerate(self.vm) if t in tags]
        if max(idx) <= self.done and not extra: return
        self.done = max(self.done, max(idx))
        n = len(self.vm) - 1 - max(idx)
        assert n <= 63
        self('s_waitcnt vmcnt(%d)%s' % (n, extra))

def vr(b, n=4): return 'v[%d:%d]' % (b, b + n - 1)

S_WS, S_IN, S_IN2 = 4, 8, 12
S_RB, S_CS, S_W, S_I, S_J, S_KH = 16, 17, 18, 19, 20, 21
S_BLK, S_LOFF = 22, 23
S_T0, S_T1, S_T2, S_T3, S_T4, S_T5 = 24, 25, 26, 27, 28, 29
S_MASK_LO16 = 30
S_WHICH, S_SLAB = 34, 35
S_CNT, S_PASS, S_CPH, S_GPH = 36, 37, 38, 39
S_FAST, S_SPIN = 62, 63
S_TSI, S_TOFF, S_SOFF, S_GRP = 72, 73, 74, 75
S_DBG = 76
S_WOFF, S_XOFF = 80, 81
S_TS = 82
S_NLO, S_NHI, S_XCC = 32, 33, 91
V_ONES, V_LANE, V_L16, V_XB, V_XA = 0, 1, 2, 3, 4
VM, VR = 10, 11
V_CF1, V_CF0, V_CF2 = 12, 14, 16
V_RES = 20
V_XF = 24
V_ACC = 40
V_PQ = 88
V_CFA, V_GFA, V_PCA, V_Q2 = 96, 97, 98, 99
V_TMP = 100
V_W0, V_W1 = 128, 192
A_Q, A_BIAS, A_S, A_P, A_O, A_K, A_V = 100, 24, [40, 56], 72, 80, [104, 108], [112, 120]
A_KA, A_VA = 5, 6
XBUF = [V_XF, V_XF + 8, V_TMP, V_TMP + 8]
ACC0, ACC1 = V_ACC, V_ACC + 16
V_MF = V_ACC + 32

class LM:
    def __init__(s, red, stat, pkv, kvf, redq, wst=98304): s.red, s.stat, s.pkv, s.kvf, s.redq, s.wst = red, stat, pkv, kvf, redq, wst
LM_STD = LM(red=65536, stat=131072, pkv=135168, kvf=151552, redq=65536)
LDS_U = 155648
LDS_TOTAL = 163840
WSR = 's[%d:%d]' % (S_WS, S_WS + 3)
SPIN_MAX = 200000

def srd(a, d, ptr_s, nbytes):
    a('s_mov_b32 s%d, s%d' % (d, ptr_s))
    a('s_mov_b32 s%d, s%d' % (d + 1, ptr_s + 1))
    a('s_mov_b32 s%d, 0x%x' % (d + 2, nbytes))
    a('s_mov_b32 s%d, 0x00020000' % (d + 3))

def ts(a):
    if not TS_ON: return
    a('s_memrealtime s[%d:%d]' % (S_TS, S_TS + 1))
    a('s_waitcnt lgkmcnt(0)')
    a('s_lshl_b64 exec, 1, s%d' % S_TSI)
    a('v_mov_b32 v99, s%d' % S_TS)
    a('s_mov_b64 exec, -1')
    a('s_add_u32 s%d, s%d, 1' % (S_TSI, S_TSI))

def ts_flush(a):
    if not TS_ON: return
    a('s_lshl_b32 s%d, s2, 3' % S_T0)
    a('s_add_u32 s%d, s%d, s%d' % (S_T0, S_T0, S_W))
    a('s_lshl_b32 s%d, s%d, 8' % (S_T0, S_T0))
    a('s_add_u32 s%d, s%d, 0x%x' % (S_T0, S_T0, TSBUF))
    a('v_lshlrev_b32 v5, 2, v%d' % V_LANE)
    a('buffer_store_dword v99, v5, %s, s%d offen' % (WSR, S_T0))
    a('s_waitcnt vmcnt(0)')

def ts3(a):
    if TS_ON and E('TS3'): ts(a)
def ts2(a):
    if TS2: ts(a)

class role:
    def __init__(s, a, who): s.a, s.who = a, who
    def __enter__(s):
        a = s.a; s.L = a.newlabel('role')
        if s.who == 'A': a('s_cmp_lg_u32 s%d, 0' % S_KH)
        elif s.who == 'B': a('s_cmp_lg_u32 s%d, 1' % S_KH)
        else: a('s_cmp_lg_u32 s%d, %d' % (S_W, s.who))
        a('s_cbranch_scc1 %s' % s.L)
    def __exit__(s, *e): s.a.label(s.L)

def prologue(a, name):
    a.raw('.globl %s' % name); a.raw('.p2align 8'); a.raw('.type %s,@function' % name)
    a.label(name)
    a('s_cmp_ge_u32 s2, 256')
    a('s_cbranch_scc1 L_end')
    a('s_load_dwordx16 s[40:55], s[0:1], 0')
    a('s_load_dwordx4 s[56:59], s[0:1], 64')
    a('s_load_dwordx2 s[60:61], s[0:1], 80')
    a('s_and_b32 s%d, s2, 7' % S_GRP)
    a('s_lshl_b32 s%d, s%d, 2' % (S_RB, S_GRP))
    a('s_lshr_b32 s%d, s2, 6' % S_T0)
    a('s_add_u32 s%d, s%d, s%d' % (S_RB, S_RB, S_T0))
    a('s_bfe_u32 s%d, s2, 0x30003' % S_CS)
    a('v_lshrrev_b32 v5, 6, v0')
    a('v_and_b32 v%d, 63, v0' % V_LANE)
    a('s_nop 0')
    a('v_readfirstlane_b32 s%d, v5' % S_W)
    a('v_lshlrev_b32 v%d, 4, v%d' % (V_L16, V_LANE))
    a('s_nop 3')
    a('s_and_b32 s%d, s%d, 1' % (S_I, S_W))
    a('s_bfe_u32 s%d, s%d, 0x10001' % (S_J, S_W))
    a('s_lshr_b32 s%d, s%d, 2' % (S_KH, S_W))
    a('s_lshl_b32 s%d, s%d, 1' % (S_T0, S_RB))
    a('s_add_u32 s%d, s%d, s%d' % (S_T0, S_T0, S_I))
    a('s_lshl_b32 s%d, s%d, 5' % (S_T0, S_T0))
    a('s_lshl_b32 s%d, s%d, 2' % (S_T1, S_CS))
    a('s_add_u32 s%d, s%d, s%d' % (S_T0, S_T0, S_T1))
    a('s_lshl_b32 s%d, s%d, 1' % (S_T1, S_J))
    a('s_add_u32 s%d, s%d, s%d' % (S_T0, S_T0, S_T1))
    a('s_add_u32 s%d, s%d, s%d' % (S_T0, S_T0, S_KH))
    a('s_lshl_b32 s%d, s%d, 10' % (S_BLK, S_T0))
    a('s_lshl_b32 s%d, s%d, 14' % (S_T1, S_I))
    a('s_mul_i32 s%d, s%d, 49152' % (S_T0, S_I))
    a('v_add_u32 v%d, s%d, v%d' % (V_XA, S_T0, V_L16))
    a('v_xor_b32 v%d, 32768, v%d' % (V_XB, V_XA))
    a('s_lshl_b32 s%d, s%d, 1' % (S_T0, S_CS))
    a('s_add_u32 s%d, s%d, s%d' % (S_T0, S_T0, S_J))
    a('s_lshl_b32 s%d, s%d, 6' % (S_WOFF, S_T0))
    a('s_lshl_b32 s%d, s%d, 16' % (S_XOFF, S_RB))
    a('v_mov_b32 v%d, 0x3f803f80' % V_ONES)
    a('s_mov_b32 s%d, 0x0000ffff' % S_MASK_LO16)
    a('s_mov_b32 s%d, 0x0000ffff' % (S_MASK_LO16 + 1))
    a('s_and_b32 s%d, s%d, 1' % (S_WHICH, S_CS))
    a('s_lshr_b32 s%d, s%d, 1' % (S_SLAB, S_CS))
    a('s_mov_b32 s%d, 0' % S_LOFF)
    a('s_mov_b32 s%d, 0' % S_CPH)
    a('s_mov_b32 s%d, 0' % S_GPH)
    a('s_mov_b32 s%d, 0' % S_FAST)
    a('s_mov_b32 s%d, 0x%x' % (S_TOFF, T0_))
    a('s_mov_b32 s%d, 0x%x' % (S_SOFF, STP))
    a('s_lshl_b32 s%d, s%d, 9' % (S_T0, S_RB))
    a('s_add_u32 s%d, s%d, 0x%x' % (S_T0, S_T0, CFLAG))
    a('v_lshlrev_b32 v5, 3, v%d' % V_LANE)
    a('v_add_u32 v%d, s%d, v5' % (V_PCA, S_T0))
    a('s_lshl_b32 s%d, s%d, 6' % (S_T1, S_CS))
    a('s_add_u32 s%d, s%d, s%d' % (S_T0, S_T0, S_T1))
    a('s_lshl_b32 s%d, s%d, 3' % (S_T1, S_W))
    a('s_add_u32 s%d, s%d, s%d' % (S_T0, S_T0, S_T1))
    a('v_mov_b32 v%d, s%d' % (V_CFA, S_T0))
    a('s_getreg_b32 s%d, hwreg(HW_REG_XCC_ID)' % S_XCC)
    a('s_and_b32 s%d, s%d, 15' % (S_XCC, S_XCC))
    a('s_lshl_b32 s%d, s%d, 6' % (S_T0, S_RB))
    a('s_lshl_b32 s%d, s%d, 3' % (S_T1, S_CS))
    a('s_add_u32 s%d, s%d, s%d' % (S_T0, S_T0, S_T1))
    a('s_add_u32 s%d, s%d, 0x%x' % (S_T0, S_T0, GFLAG))
    a('v_mov_b32 v%d, s%d' % (V_GFA, S_T0))
    a('s_mov_b32 s%d, 0' % S_TSI)
    a('v_mov_b32 v99, 0')
    a('s_waitcnt lgkmcnt(0)')
    srd(a, S_WS, 60, WS_BYTES)
    srd(a, S_DBG, 58, 256)

def epilogue(a, name, nv=256):
    a.label('L_end')
    a('s_endpgm')
    a.raw('.section .rodata,"a"'); a.raw('.p2align 6')
    a.raw('.amdhsa_kernel %s' % name)
    a.raw('  .amdhsa_next_free_vgpr %d' % nv)
    a.raw('  .amdhsa_next_free_sgpr 96')
    a.raw('  .amdhsa_accum_offset %d' % ((nv + 3) // 4 * 4))
    a.raw('  .amdhsa_group_segment_fixed_size 0')
    a.raw('  .amdhsa_kernarg_size 88')
    a.raw('  .amdhsa_user_sgpr_count 2')
    a.raw('  .amdhsa_user_sgpr_kernarg_segment_ptr 1')
    a.raw('  .amdhsa_system_sgpr_workgroup_id_x 1')
    a.raw('  .amdhsa_float_denorm_mode_32 3')
    a.raw('.end_amdhsa_kernel')

def fast_store(a, fmts):
    L1 = a.newlabel('fs'); L2 = a.newlabel('fs')
    a('s_cmp_eq_u32 s%d, 1' % S_FAST)
    a('s_cbranch_scc1 %s' % L1)
    for f in fmts: a(f.replace('@', ' sc1'))
    a('s_branch %s' % L2)
    a.label(L1)
    for f in fmts: a(f.replace('@', ''))
    a.label(L2)

def tagval(a, v, sph, xcc=False):
    a('s_lshl_b32 s%d, s%d, 4' % (S_T0, sph))
    a('s_add_u32 s%d, s%d, s%d' % (S_T0, S_T0, S_NLO))
    if xcc: a('s_add_u32 s%d, s%d, s%d' % (S_T0, S_T0, S_XCC))
    a('v_mov_b32 v%d, s%d' % (v, S_T0))
    a('v_mov_b32 v%d, s%d' % (v + 1, S_NHI))

def tagbase(a, sdst, sph):
    a('s_lshl_b32 s%d, s%d, 4' % (sdst, sph))
    a('s_add_u32 s%d, s%d, s%d' % (sdst, sdst, S_NLO))

def tagcmp(pairs, sbase, t):
    out = []
    for n, p in enumerate(pairs):
        out.append('v_subrev_u32 v%d, s%d, v%d' % (p, sbase, p))
        out.append('v_xor_b32 v%d, s%d, v%d' % (p + 1, S_NHI, p + 1))
        out.append('v_lshrrev_b32 v%d, 12, v%d' % (p, p))
        if n == 0: out.append('v_or_b32 v%d, v%d, v%d' % (t, p, p + 1))
        else: out.append('v_or3_b32 v%d, v%d, v%d, v%d' % (t, t, p, p + 1))
    out.append('v_cmp_ne_u32 vcc, 0, v%d' % t)
    return out

def csignal(a, tag=None):
    a('s_add_u32 s%d, s%d, 1' % (S_CPH, S_CPH))
    tagval(a, 6, S_CPH, True)
    if tag is None:
        a('s_waitcnt vmcnt(0) lgkmcnt(0)')
    a('s_mov_b64 exec, 1')
    fast_store(a, ['buffer_store_dwordx2 v[6:7], v%d, %s, 0 offen@' % (V_CFA, WSR)])
    a('s_mov_b64 exec, -1')
    if tag: a.vm.append(tag)

def poll(a, load, cmp, sleep=0):
    Lp = a.newlabel('pl'); Lo = a.newlabel('po')
    a('s_mov_b32 s%d, 0' % S_SPIN)
    a.label(Lp)
    a('s_add_u32 s%d, s%d, 1' % (S_SPIN, S_SPIN))
    a('s_cmp_gt_u32 s%d, %d' % (S_SPIN, SPIN_MAX))
    a('s_cbranch_scc1 L_end')
    for l in load: a(l)
    a('s_waitcnt vmcnt(0)')
    for c in cmp: a(c)
    if sleep:
        a('s_cbranch_vccz %s' % Lo)
        a('s_sleep %d' % sleep)
        a('s_branch %s' % Lp)
        a.label(Lo)
    else:
        a('s_cbranch_vccnz %s' % Lp)

def cwait(a):
    tagbase(a, 65, S_CPH)
    Lp = a.newlabel('cw'); Lo = a.newlabel('co')
    ld = lambda v: a('buffer_load_dwordx2 v[%d:%d], v%d, %s, 0 offen sc1' % (v, v + 1, V_PCA, WSR))
    a('s_mov_b32 s%d, 0' % S_SPIN)
    ld(8)
    a.label(Lp)
    a('s_add_u32 s%d, s%d, 1' % (S_SPIN, S_SPIN))
    a('s_cmp_gt_u32 s%d, %d' % (S_SPIN, SPIN_MAX))
    a('s_cbranch_scc1 L_end')
    a('s_sleep 1')
    ld(92)
    a('s_waitcnt vmcnt(1)')
    for c in tagcmp([8], 65, 7): a(c)
    a('s_cbranch_vccz %s' % Lo)
    a('s_sleep 1')
    ld(8)
    a('s_waitcnt vmcnt(1)')
    for c in tagcmp([92], 65, 7): a(c)
    a('s_cbranch_vccnz %s' % Lp)
    a.label(Lo)

def lpoll_addr(a, v):
    a('v_and_b32 v%d, 31, v%d' % (v, V_LANE))
    a('v_lshlrev_b32 v%d, 3, v%d' % (v, v))
    a('s_lshl_b32 s66, s%d, 8' % S_GRP)
    a('s_add_u32 s66, s66, 0x%x' % GFLAG)

def lwait(a):
    tagbase(a, 65, S_GPH)
    lpoll_addr(a, 5)
    poll(a, ['buffer_load_dwordx2 v[8:9], v5, %s, s66 offen sc1' % WSR], tagcmp([8], 65, 7))

def lsignal(a):
    tagval(a, 6, S_GPH, True)
    a('s_mov_b64 exec, 1')
    fast_store(a, ['buffer_store_dwordx2 v[6:7], v%d, %s, 0 offen@' % (V_GFA, WSR)])
    a('s_mov_b64 exec, -1')

DBR = 's[%d:%d]' % (S_DBG, S_DBG + 3)
NP = 18
def nonce_publish(a):
    L = a.newlabel('np')
    a('s_cmp_lg_u32 s2, 0')
    a('s_cbranch_scc1 %s' % L)
    a('s_cmp_lg_u32 s%d, 0' % S_W)
    a('s_cbranch_scc1 %s' % L)
    a('s_memrealtime s[64:65]')
    a('s_waitcnt lgkmcnt(0)')
    a('s_lshl_b64 s[64:65], s[64:65], 12')
    a('s_or_b32 s65, s65, 0x80000000')
    a('v_mov_b32 v6, s64')
    a('v_mov_b32 v7, s65')
    a('v_mov_b32 v5, 0')
    a('s_mov_b64 exec, 1')
    a('buffer_store_dwordx2 v[6:7], v5, %s, 0 offen sc1' % DBR)
    a('s_mov_b64 exec, -1')
    a.label(L)

def nonce_probe(a):
    a('v_mov_b32 v5, 0')
    a.v('np', 'buffer_load_dwordx2 v[%d:%d], v5, %s, 0 offen sc1' % (NP, NP + 1, DBR))

def nonce_check(a):
    Lok = a.newlabel('nok')
    a.vwait('np')
    a('v_cmp_eq_u32 vcc, 0, v%d' % (NP + 1))
    a('s_cbranch_vccz %s' % Lok)
    a('v_mov_b32 v5, 0')
    poll(a, ['buffer_load_dwordx2 v[%d:%d], v5, %s, 0 offen sc1' % (NP, NP + 1, DBR)], ['v_cmp_eq_u32 vcc, 0, v%d' % (NP + 1)], sleep=2)
    a.label(Lok)
    a('v_readfirstlane_b32 s%d, v%d' % (S_NLO, NP))
    a('v_readfirstlane_b32 s%d, v%d' % (S_NHI, NP + 1))
    a('s_nop 3')

PR = 80
def p1_probe(a):
    lpoll_addr(a, PR + 6)
    a.v('pr', 'buffer_load_dwordx2 v[%d:%d], v%d, %s, s66 offen sc1' % (PR + 2, PR + 3, PR + 6, WSR))

def p1_check(a):
    L2 = a.newlabel('pc')
    a.vwait('pr')
    tagbase(a, 65, S_GPH)
    a('v_mov_b32 v%d, v%d' % (PR + 4, PR + 2))
    for c in tagcmp([PR + 2], 65, 7): a(c)
    a('s_cbranch_vccz %s' % L2)
    poll(a, ['buffer_load_dwordx2 v[%d:%d], v%d, %s, s66 offen sc1' % (PR + 2, PR + 3, PR + 6, WSR)],
         ['v_mov_b32 v%d, v%d' % (PR + 4, PR + 2)] + tagcmp([PR + 2], 65, 7), sleep=1)
    a.label(L2)
    a('v_and_b32 v%d, 15, v%d' % (PR + 4, PR + 4))
    a('v_cmp_ne_u32 vcc, s%d, v%d' % (S_XCC, PR + 4))
    a('s_nop 3')
    a('s_cmp_eq_u64 vcc, 0')
    a('s_cselect_b32 s%d, 1, 0' % S_FAST)
    if E('NOFAST'):
        a('s_mov_b32 s%d, 0' % S_FAST)

def next_tile(a):
    if DBGBUF: a('s_add_u32 s%d, s%d, 0x200000' % (S_TOFF, S_TOFF))
    else: a('s_xor_b32 s%d, s%d, 0x200000' % (S_TOFF, S_TOFF))

def colsum(a, vw, vcs):
    a('v_mov_b32 v%d, 0' % vcs)
    a('s_nop 1')
    for r in range(64):
        a('v_dot2_f32_bf16 v%d, v%d, v%d, v%d' % (vcs, vw + r, V_ONES, vcs))
    a.nop(3)

def rowcol_off(a):
    a('s_lshl_b32 s%d, s%d, 15' % (S_T1, S_I))
    a('s_add_u32 s%d, s%d, s%d' % (S_T0, S_XOFF, S_T1))
    a('s_lshl_b32 s%d, s%d, 7' % (S_T1, S_CS))
    a('s_add_u32 s%d, s%d, s%d' % (S_T0, S_T0, S_T1))
    a('s_lshl_b32 s%d, s%d, 6' % (S_T1, S_J))
    a('s_add_u32 s%d, s%d, s%d' % (S_T0, S_T0, S_T1))
    a('s_lshl_b32 s%d, s%d, 5' % (S_T1, S_KH))
    a('s_add_u32 s%d, s%d, s%d' % (S_T0, S_T0, S_T1))

U_Q, U_K, U_V, U_OA, U_WQ, U_OB = range(6)
UPTR = {U_Q: 42, U_K: 42, U_V: 42, U_OA: 44, U_WQ: 48, U_OB: 54}
ULD = {U_Q: 3072, U_K: 3072, U_V: 3072, U_OA: 1024, U_WQ: 1024, U_OB: 1024}
UCOL = {U_Q: 0, U_K: 1024, U_V: 2048, U_OA: 0, U_WQ: 0, U_OB: 0}
def raw_setup(a, uA, uB, R, sbase, sstep, vdma):
    def sel(d, x, y):
        if x == y: a('s_mov_b32 s%d, %s' % (d, x))
        else:
            a('s_mov_b32 s%d, %s' % (d, x))
            a('s_cmp_eq_u32 s%d, 1' % S_KH)
            a('s_cselect_b32 s%d, %s, s%d' % (d, y, d))
    sel(R, 's%d' % UPTR[uA], 's%d' % UPTR[uB])
    sel(R + 1, 's%d' % (UPTR[uA] + 1), 's%d' % (UPTR[uB] + 1))
    sel(R + 2, '0x%x' % (ULD[uA] * 512), '0x%x' % (ULD[uB] * 512))
    a('s_mov_b32 s%d, 0x00020000' % (R + 3))
    sel(sstep, str(ULD[uA]), str(ULD[uB]))
    sel(sbase, str(UCOL[uA]), str(UCOL[uB]))
    a('v_lshrrev_b32 v%d, 2, v%d' % (vdma, V_LANE))
    a('v_mul_lo_u32 v%d, v%d, s%d' % (vdma, vdma, sstep))
    a('v_and_b32 v7, 3, v%d' % V_LANE)
    a('v_lshl_add_u32 v%d, v7, 4, v%d' % (vdma, vdma))
    a('s_lshl_b32 s%d, s%d, 4' % (sstep, sstep))
    a('s_lshl_b32 s%d, s%d, 4' % (S_T0, S_I))
    a('s_mul_i32 s%d, s%d, s%d' % (S_T0, S_T0, sstep))
    a('s_add_u32 s%d, s%d, s%d' % (sbase, sbase, S_T0))
    a('s_add_u32 s%d, s%d, s%d' % (sbase, sbase, S_WOFF))

def raw_rdaddr(a, v, slds):
    a('v_lshrrev_b32 v%d, 5, v%d' % (v, V_LANE))
    a('v_lshlrev_b32 v%d, 8, v%d' % (v, v))
    a('v_bfe_u32 v7, v%d, 2, 2' % V_LANE)
    a('v_lshl_add_u32 v%d, v7, 6, v%d' % (v, v))
    a('v_bfe_u32 v7, v%d, 4, 1' % V_LANE)
    a('v_lshl_add_u32 v%d, v7, 5, v%d' % (v, v))
    a('v_and_b32 v7, 3, v%d' % V_LANE)
    a('v_lshl_add_u32 v%d, v7, 3, v%d' % (v, v))
    a('v_add_u32 v%d, s%d, v%d' % (v, slds, v))

def raw_dma(R, sbase, sstep, vdma, slds, off):
    return ['s_add_u32 m0, s%d, %d' % (slds, off), 's_nop 0',
            'buffer_load_dwordx4 v%d, s[%d:%d], s%d offen lds' % (vdma, R, R + 3, sbase),
            's_add_u32 s%d, s%d, s%d' % (sbase, sbase, sstep)]

def raw_rd(dst, va, off):
    return ['ds_read_b64_tr_b16 v[%d:%d], v%d offset:%d' % (dst, dst + 1, va, off),
            'ds_read_b64_tr_b16 v[%d:%d], v%d offset:%d' % (dst + 2, dst + 3, va, off + 512)]

RW_D, RW_A = 94, 95
def load_w_issue(a, u, lds0, half):
    if half == 0:
        raw_setup(a, u, u, S_IN2, 68, 69, RW_D)
        a('s_and_b32 s70, s%d, 3' % S_W)
        a('s_lshl_b32 s70, s70, 13')
        a('s_add_u32 s70, s70, %d' % lds0)
        raw_rdaddr(a, RW_A, 70)
    for k in range(8):
        for l in raw_dma(S_IN2, 68, 69, RW_D, 70, k * 1024): a(l)

def load_w_read(a, vbase, half):
    for k in range(8):
        for l in raw_rd(vbase + 4 * (8 * half + k), RW_A, k * 1024): a(l)
    a('s_waitcnt lgkmcnt(0)')

def load_w_sync(a, u, vbase, lds0):
    for half in range(2):
        load_w_issue(a, u, lds0, half)
        a('s_waitcnt vmcnt(0)')
        load_w_read(a, vbase, half)

def load_w_ring(a, u, vbase, nslots):
    raw_setup(a, u, u, S_IN2, 68, 69, RW_D)
    raw_rdaddr(a, RW_A, 70)
    for k in range(nslots):
        for l in raw_dma(S_IN2, 68, 69, RW_D, 70, k * 1024): a(l)
    for k in range(16):
        a('s_waitcnt vmcnt(%d)' % min(nslots - 1, 15 - k))
        for l in raw_rd(vbase + 4 * k, RW_A, (k % nslots) * 1024): a(l)
        if k + nslots < 16:
            a('s_waitcnt lgkmcnt(0)')
            for l in raw_dma(S_IN2, 68, 69, RW_D, 70, (k % nslots) * 1024): a(l)
    a('s_waitcnt lgkmcnt(0)')

LDS_W16 = 135168
def dma_w16(a):
    a('s_cmp_eq_u32 s%d, 1' % S_WHICH)
    a('s_cselect_b32 s%d, s52, s50' % S_IN2)
    a('s_cselect_b32 s%d, s53, s51' % (S_IN2 + 1))
    a('s_mov_b32 s%d, 0x4000' % (S_IN2 + 2))
    a('s_mov_b32 s%d, 0x00020000' % (S_IN2 + 3))
    a('s_and_b32 s%d, s%d, 3' % (S_T0, S_W))
    a('s_lshl_b32 s%d, s%d, 12' % (S_T0, S_T0))
    a('s_add_u32 m0, s%d, %d' % (S_T0, LDS_W16))
    a('s_nop 0')
    for k in range(4):
        a('buffer_load_dwordx4 v%d, s[%d:%d], s%d offen offset:%d lds' % (V_L16, S_IN2, S_IN2 + 3, S_T0, k * 1024))

STL = 88
SDG, SDL = 84, 85
def dma_setup(a, all8):
    a('s_lshl_b32 s%d, s%d, 15' % (SDL, S_I))
    a('s_lshl_b32 s%d, s%d, 14' % (S_T2, S_J))
    a('s_add_u32 s%d, s%d, s%d' % (SDL, SDL, S_T2))
    if all8:
        a('s_lshl_b32 s%d, s%d, 11' % (S_T2, S_KH))
        a('s_add_u32 s%d, s%d, s%d' % (SDL, SDL, S_T2))
    a('s_add_u32 s%d, s%d, s%d' % (SDG, S_TOFF, S_XOFF))
    a('s_add_u32 s%d, s%d, s%d' % (SDG, SDG, SDL))

def dma_chunk(a, n):
    a('s_mov_b32 m0, s%d' % SDL)
    a('s_add_u32 s%d, s%d, 4096' % (SDL, SDL))
    for t in range(n):
        a('buffer_load_dwordx4 v%d, %s, s%d offen offset:%d sc1 lds' % (V_L16, WSR, SDG, t * 1024))
    a('s_add_u32 s%d, s%d, 4096' % (SDG, SDG))

def st_issue(a, all8):
    n = 4 if all8 else 8
    a('v_lshlrev_b32 v5, 3, v%d' % V_LANE)
    a('s_lshr_b32 s%d, s%d, 2' % (S_T0, S_XOFF))
    if all8: a('s_lshl_b32 s%d, s%d, 11' % (S_T1, S_W))
    else:
        a('s_and_b32 s%d, s%d, 3' % (S_T1, S_W))
        a('s_lshl_b32 s%d, s%d, 12' % (S_T1, S_T1))
    a('s_add_u32 s%d, s%d, s%d' % (S_T0, S_T0, S_T1))
    a('s_add_u32 s%d, s%d, s%d' % (S_T0, S_T0, S_SOFF))
    for q in range(n):
        a('buffer_load_dwordx2 v[%d:%d], v5, %s, s%d offen offset:%d sc1' % (80 + 2 * q, 81 + 2 * q, WSR, S_T0, q * 512))

def st_partial(a, all8):
    T = 80; n = 4 if all8 else 8
    while n > 1:
        n //= 2
        for q in range(n): pk_add(a, T + 2 * q, T + 2 * q, T + 2 * (q + n))
    if all8: a('s_lshl_b32 s%d, s%d, 9' % (S_T0, S_W))
    else:
        a('s_and_b32 s%d, s%d, 3' % (S_T0, S_W))
        a('s_lshl_b32 s%d, s%d, 9' % (S_T0, S_T0))
    a('s_add_u32 s%d, s%d, %d' % (S_T0, S_T0, LM_STD.stat))
    a('v_lshlrev_b32 v5, 3, v%d' % V_LANE)
    a('v_add_u32 v5, s%d, v5' % S_T0)
    a('ds_write_b64 v5, v[%d:%d]' % (T, T + 1))
    a('s_waitcnt lgkmcnt(0)')

def rs_issue(a, stat, nparts, T=80):
    a('v_lshlrev_b32 v5, 3, v%d' % V_LANE)
    a('v_add_u32 v5, %d, v5' % stat)
    for q in range(nparts // 2):
        a('ds_read2st64_b64 %s, v5 offset0:%d offset1:%d' % (vr(T + 4 * q), 2 * q, 2 * q + 1))

def rs_math(a, nparts, T=80):
    n = nparts
    while n > 2:
        n //= 2
        for q in range(n): pk_add(a, T + 2 * q, T + 2 * q, T + 2 * (q + n))
    pk_add(a, VM, T, T + 2)
    stats_math(a, VM, VR)

def rs_spread(a, frags):
    a('v_mov_b32 v8, v%d' % VM)
    a('v_mov_b32 v9, v%d' % VR)
    a('s_cmp_eq_u32 s%d, 1' % S_I)
    a('s_cselect_b64 s[%d:%d], -1, 0' % (S_T2, S_T3))
    a('v_permlane32_swap_b32 v%d, v8' % VM)
    a('v_permlane32_swap_b32 v%d, v9' % VR)
    a('s_nop 1')
    a('v_cndmask_b32_e64 v%d, v%d, v9, s[%d:%d]' % (VR, VR, S_T2, S_T3))
    if frags:
        a('v_cndmask_b32_e64 v9, v%d, v8, s[%d:%d]' % (VM, S_T2, S_T3))
        a('v_cndmask_b32_e64 v8, v8, v%d, s[%d:%d]' % (VM, S_T2, S_T3))
        make_mfrag(a, 9, V_MF)
        make_mfrag(a, 8, V_MF + 4)

def toggle_bufs(a, stats):
    next_tile(a)
    if stats: a('s_xor_b32 s%d, s%d, 0x%x' % (S_SOFF, S_SOFF, STP ^ (STP + 0x80000)))

def tsb(a):
    if E('TSB'): ts(a)

def loader_path(a, stats, extra=None, hook=None):
    nx = 4 if extra else 0
    cwait(a)
    tsb(a)
    dma_setup(a, False)
    dma_chunk(a, 4)
    dma_chunk(a, 4)
    a('s_waitcnt vmcnt(4)')
    a('s_barrier')
    tsb(a)
    dma_chunk(a, 4)
    if hook: hook('pre')
    a('s_waitcnt vmcnt(4)')
    a('s_barrier')
    tsb(a)
    dma_chunk(a, 4)
    if extra: extra()
    a('s_waitcnt vmcnt(%d)' % (4 + nx))
    a('s_barrier')
    tsb(a)
    if stats:
        rs_issue(a, LM_STD.stat, 4)
    a('s_waitcnt vmcnt(%d)' % nx)
    a('s_barrier')
    tsb(a)
    if hook: hook('main')
    elif stats:
        a('s_waitcnt lgkmcnt(0)')
        rs_math(a, 4)
    if stats: rs_spread(a, False)
    if extra: a('s_waitcnt vmcnt(0)')

def active_path(a, w, stats, all8=False):
    def rd(t):
        b = XBUF[t % 4]
        a('ds_read_b128 %s, v%d offset:%d' % (vr(b), V_XA, t * 1024))
        a('ds_read_b128 %s, v%d offset:%d' % (vr(b + 4), V_XB, t * 1024))
    np_ = 8 if all8 else 4
    if all8:
        cwait(a)
        dma_setup(a, True)
        dma_chunk(a, 2)
        st_issue(a, True)
        dma_chunk(a, 2)
        a('s_waitcnt vmcnt(6)')
    elif stats:
        cwait(a)
        tsb(a)
        st_issue(a, False)
    a('s_barrier')
    tsb(a)
    for t in range(3): rd(t)
    for t in range(16):
        b = XBUF[t % 4]
        if t in (1, 5, 9):
            if all8:
                if t < 9: dma_chunk(a, 2)
                a('s_waitcnt vmcnt(%d)' % (2 if t < 9 else 0))
                if t == 1: st_partial(a, True)
            elif stats and t == 5:
                a('s_waitcnt vmcnt(0)')
                st_partial(a, False)
            a('s_barrier')
            tsb(a)
        if t == (2 if all8 else 6) and stats:
            rs_issue(a, LM_STD.stat, np_)
        if t + 3 < 16:
            rd(t + 3)
        a('s_waitcnt lgkmcnt(%d)' % (2 * min(3, 15 - t)))
        for q, acc in enumerate((ACC0, ACC1)):
            c = '0' if t == 0 else vr(acc, 16)
            a('v_mfma_f32_32x32x16_bf16 %s, %s, %s, %s' % (vr(acc, 16), vr(w + 4 * t), vr(b + 4 * q), c))
        if t == (6 if all8 else 10) and stats: rs_math(a, np_)
        if t == (7 if all8 else 11) and stats: rs_spread(a, True)

class ifelse:
    def __init__(s, a): s.a = a; s.L1 = a.newlabel('ie'); s.L2 = a.newlabel('ie')
    def if_set(s, k):
        s.a('s_cmp_lg_u32 s%d, %d' % (S_KH, k)); s.a('s_cbranch_scc1 %s' % s.L1)
    def else_(s):
        s.a('s_branch %s' % s.L2); s.a.label(s.L1)
    def end(s): s.a.label(s.L2)

def kloop(a, w, t0, t1):
    def rd(t):
        b = XBUF[t % 4]
        a('ds_read_b128 %s, v%d offset:%d' % (vr(b), V_XA, t * 1024))
        a('ds_read_b128 %s, v%d offset:%d' % (vr(b + 4), V_XB, t * 1024))
    for t in range(t0, min(t0 + 3, t1)):
        rd(t)
    for t in range(t0, t1):
        b = XBUF[t % 4]
        if t + 3 < t1:
            rd(t + 3)
        a('s_waitcnt lgkmcnt(%d)' % (2 * min(3, t1 - 1 - t)))
        for q, acc in enumerate((ACC0, ACC1)):
            c = '0' if t == 0 else vr(acc, 16)
            a('v_mfma_f32_32x32x16_bf16 %s, %s, %s, %s' % (vr(acc, 16), vr(w + 4 * t), vr(b + 4 * q), c))

def halves_sum(a, v, tmp, op='v_add_f32'):
    a('v_mov_b32 v%d, v%d' % (tmp, v))
    a('s_nop 1')
    a('v_permlane32_swap_b32 v%d, v%d' % (v, tmp))
    a('s_nop 1')
    a('%s v%d, v%d, v%d' % (op, v, v, tmp))

def bf16r(a, v):
    a('v_cvt_pk_bf16_f32 v%d, v%d, v%d' % (v, v, v))
    a('v_and_b32 v%d, 0xffff0000, v%d' % (v, v))

def pk_add(a, d, x, y):
    a('v_pk_add_f32 v[%d:%d], v[%d:%d], v[%d:%d]' % (d, d + 1, x, x + 1, y, y + 1))

def stats_math(a, vm, vrstd):
    a('v_mul_f32 v%d, 0x%x, v%d' % (vm, f2u(1.0 / 512), vm))
    a('v_mul_f32 v%d, 0x%x, v%d' % (vrstd, f2u(1.0 / 512), vrstd))
    a('v_fma_f32 v%d, -v%d, v%d, v%d' % (vrstd, vm, vm, vrstd))
    a('v_max_f32 v%d, 0, v%d' % (vrstd, vrstd))
    bf16r(a, vrstd)
    a('v_add_f32 v%d, 0x%x, v%d' % (vrstd, f2u(1e-5), vrstd))
    bf16r(a, vrstd)
    a('v_sqrt_f32 v%d, v%d' % (vrstd, vrstd))
    a('s_nop 0')
    bf16r(a, vrstd)
    a('v_rcp_f32 v%d, v%d' % (vrstd, vrstd))
    bf16r(a, vm)

def stats_read(a, lm, vrow, T, vm=VM):
    a('v_lshlrev_b32 v%d, 3, v%d' % (vrow, vrow))
    a('v_add_u32 v%d, %d, v%d' % (vrow, lm.stat, vrow))
    for q in range(4):
        a('ds_read2st64_b64 %s, v%d offset0:%d offset1:%d' % (vr(T + 4 * q), vrow, 2 * q, 2 * q + 1))
    a('s_waitcnt lgkmcnt(0)')
    for q in range(4):
        pk_add(a, T + 4 * q, T + 4 * q, T + 4 * q + 2)
    pk_add(a, T, T, T + 4)
    pk_add(a, T + 8, T + 8, T + 12)
    pk_add(a, vm, T, T + 8)
    stats_math(a, vm, vm + 1)

def ln_stats(a, lm, T=V_TMP):
    a('v_and_b32 v5, 31, v%d' % V_LANE)
    a('s_lshl_b32 s%d, s%d, 5' % (S_T0, S_I))
    a('v_add_u32 v5, s%d, v5' % S_T0)
    stats_read(a, lm, 5, T)

def make_mfrag(a, vm, d):
    a('v_cvt_pk_bf16_f32 v%d, -v%d, -v%d' % (d, vm, vm))
    a('v_cvt_pk_bf16_f32 v%d, -v%d, -v%d' % (d + 1, vm, vm))
    a('v_mov_b32 v%d, 0' % (d + 2))
    a('v_mov_b32 v%d, 0' % (d + 3))

def mean_issue(a, lm):
    T = V_ACC + 40
    a('v_and_b32 v5, 31, v%d' % V_LANE)
    a('v_lshlrev_b32 v5, 3, v5')
    a('s_lshl_b32 s%d, s%d, 8' % (S_T0, S_I))
    a('s_add_u32 s%d, s%d, %d' % (S_T0, S_T0, lm.stat))
    a('v_add_u32 v5, s%d, v5' % S_T0)
    a('v_xor_b32 v6, 256, v5')
    for q in range(2):
        for k in range(4):
            a('ds_read2st64_b32 v[%d:%d], v%d offset0:%d offset1:%d' % (T + 8 * q + 2 * k, T + 8 * q + 2 * k + 1, 5 + q, 4 * k, 4 * k + 2))

def mean_finish(a):
    T = V_ACC + 40
    for q in range(2):
        t = T + 8 * q
        pk_add(a, t, t, t + 2)
        pk_add(a, t + 4, t + 4, t + 6)
        pk_add(a, t, t, t + 4)
        a('v_add_f32 v%d, v%d, v%d' % (t, t, t + 1))
        a('v_mul_f32 v%d, 0x%x, v%d' % (t, f2u(1.0 / 512), t))
        make_mfrag(a, t, V_MF + 4 * q)
    a('s_nop 1')

def mean_frags(a, lm):
    mean_issue(a, lm)
    a('s_waitcnt lgkmcnt(0)')
    mean_finish(a)

def stats_load_issue(a, T=V_TMP, tag=None):
    a('v_lshlrev_b32 v5, 3, v%d' % V_LANE)
    a('s_lshr_b32 s%d, s%d, 2' % (S_T0, S_XOFF))
    a('s_lshl_b32 s%d, s%d, 11' % (S_T1, S_W))
    a('s_add_u32 s%d, s%d, s%d' % (S_T0, S_T0, S_T1))
    a('s_add_u32 s%d, s%d, s%d' % (S_T0, S_T0, S_SOFF))
    for q in range(4):
        a.v(tag, 'buffer_load_dwordx2 v[%d:%d], v5, %s, s%d offen offset:%d sc1' % (T + 2 * q, T + 2 * q + 1, WSR, S_T0, q * 512))

def stats_load_finish(a, lm, T=V_TMP):
    pk_add(a, T, T, T + 2)
    pk_add(a, T + 4, T + 4, T + 6)
    pk_add(a, T, T, T + 4)
    a('s_lshl_b32 s%d, s%d, 9' % (S_T0, S_W))
    a('s_add_u32 s%d, s%d, %d' % (S_T0, S_T0, lm.stat))
    a('v_lshlrev_b32 v5, 3, v%d' % V_LANE)
    a('v_add_u32 v5, s%d, v5' % S_T0)
    a('ds_write_b64 v5, v[%d:%d]' % (T, T + 1))
    a('s_xor_b32 s%d, s%d, 0x%x' % (S_SOFF, S_SOFF, STP ^ (STP + 0x80000)))

def make_csfrag(a, vc, d, t):
    a('v_cvt_pk_bf16_f32 v%d, v%d, v%d' % (t, vc, vc))
    a('v_and_b32 v%d, 0xffff0000, v%d' % (t, t))
    a('v_sub_f32 v%d, v%d, v%d' % (t + 1, vc, t))
    a('v_cvt_pk_bf16_f32 v%d, v%d, v%d' % (d, t, t + 1))
    a('v_and_b32 v%d, 0xffff0000, v%d' % (t, d))
    a('v_sub_f32 v%d, v%d, v%d' % (t + 1, t + 1, t))
    a('v_cvt_pk_bf16_f32 v%d, v%d, 0' % (d + 1, t + 1))

def y_correct(a, cf):
    for q, acc in enumerate((ACC0, ACC1)):
        a('v_mfma_f32_32x32x16_bf16 %s, %s, %s, %s' % (vr(acc, 16), vr(cf), vr(V_MF + 4 * q), vr(acc, 16)))

def y_red_write(a, base, own):
    a('s_lshl_b32 s%d, s%d, 13' % (S_T0, S_J))
    a('s_mul_i32 s%d, s%d, 6144' % (S_T1, S_I))
    a('s_add_u32 s%d, s%d, s%d' % (S_T0, S_T0, S_T1))
    a('s_add_u32 s%d, s%d, %d' % (S_T0, S_T0, base))
    a('v_add_u32 v5, s%d, v%d' % (S_T0, V_L16))
    a('v_xor_b32 v6, 4096, v5')
    a.nop(7)
    for q, acc in enumerate((ACC0, ACC1)):
        for nh in range(2):
            if q == 0 and nh == own: continue
            a('ds_write_b128 v%d, %s offset:%d' % (5 + q, vr(acc + 8 * nh), nh * 16384))
            a('ds_write_b128 v%d, %s offset:%d' % (5 + q, vr(acc + 8 * nh + 4), nh * 16384 + 1024))

def y_red_read(a, base, own):
    d = V_ACC
    a('s_lshl_b32 s%d, s%d, 12' % (S_T0, S_W))
    a('s_add_u32 s%d, s%d, %d' % (S_T0, S_T0, base))
    a('v_add_u32 v5, s%d, v%d' % (S_T0, V_L16))
    L1 = a.newlabel('rr'); L2 = a.newlabel('rr')
    a('s_cmp_eq_u32 s%d, %d' % (S_KH, own))
    a('s_cbranch_scc1 %s' % L1)
    for k in range(4):
        a('ds_read_b128 %s, v5 offset:%d' % (vr(d + 4 * k), k * 1024))
    a('s_waitcnt lgkmcnt(0)')
    for r in range(0, 8, 2):
        pk_add(a, d + r, d + r, d + 8 + r)
    a('s_branch %s' % L2)
    a.label(L1)
    a('s_xor_b32 s%d, s%d, 1' % (S_T0, S_I))
    a('s_lshl_b32 s%d, s%d, 11' % (S_T0, S_T0))
    a('v_add_u32 v5, s%d, v5' % S_T0)
    a('ds_read_b128 %s, v5' % vr(ACC1))
    a('ds_read_b128 %s, v5 offset:1024' % vr(ACC1 + 4))
    a('s_waitcnt lgkmcnt(0)')
    for r in range(0, 8, 2):
        pk_add(a, d + r, ACC0 + 8 * own + r, ACC1 + r)
    a.label(L2)

def kv_red_write(a, base):
    a('s_xor_b32 s%d, s%d, 1' % (S_T0, S_W))
    a('s_lshl_b32 s%d, s%d, 12' % (S_T0, S_T0))
    a('s_add_u32 s%d, s%d, %d' % (S_T0, S_T0, base))
    a('v_add_u32 v5, s%d, v%d' % (S_T0, V_L16))
    a.nop(9)
    for k in range(4):
        a('ds_write_b128 v5, %s offset:%d' % (vr(ACC1 + 4 * k), k * 1024))

def barrier(a):
    a('s_waitcnt lgkmcnt(0)')
    a('s_barrier')

def phi_pack(a, acc, dst, tl=9, tmp=None, n=8):
    if tmp is None: tmp = acc + 8
    a('v_mul_f32 v%d, 0x%x, v%d' % (tl, f2u(LOG2E), VR))
    for r in range(n):
        a('v_mul_f32 v%d, v%d, v%d' % (tmp + r, acc + r, tl))
    for r in range(n):
        a('v_exp_f32_e64 v%d, v%d clamp' % (tmp + r, tmp + r))
    for r in range(n):
        a('v_fmaak_f32 v%d, v%d, v%d, 0x%x' % (acc + r, acc + r, VR, f2u(1e-6)))
        a('v_max_f32 v%d, 0x%x, v%d' % (acc + r, f2u(1e-6), acc + r))
    for r in range(0, n, 2):
        pk_add(a, acc + r, acc + r, tmp + r)
    for r in range(n // 2):
        a('v_cvt_pk_bf16_f32 v%d, v%d, v%d' % (dst + r, acc + 2 * r, acc + 2 * r + 1))

def scale_pack(a, acc, vs, dst, n=8):
    for r in range(n):
        a('v_mul_f32 v%d, v%d, v%d' % (acc + r, acc + r, vs))
    for r in range(n // 2):
        a('v_cvt_pk_bf16_f32 v%d, v%d, v%d' % (dst + r, acc + 2 * r, acc + 2 * r + 1))

def store_blk(a, v):
    a('s_add_u32 s%d, s%d, s%d' % (S_T0, S_BLK, S_TOFF))
    fast_store(a, ['buffer_store_dwordx4 %s, v%d, %s, s%d offen@' % (vr(v), V_L16, WSR, S_T0)])

def store_stats(a, tag=None):
    a('v_mov_b32 v6, 0')
    a('v_mov_b32 v7, 0')
    a('s_nop 0')
    for r in range(4):
        a('v_dot2_f32_bf16 v6, v%d, v%d, v6' % (V_RES + r, V_ONES))
        a('v_dot2_f32_bf16 v7, v%d, v%d, v7' % (V_RES + r, V_RES + r))
    a('s_bfe_u32 s%d, s%d, 0x5000a' % (S_T0, S_BLK))
    a('s_lshl_b32 s%d, s%d, 9' % (S_T0, S_T0))
    a('s_lshr_b32 s%d, s%d, 2' % (S_T1, S_XOFF))
    a('s_add_u32 s%d, s%d, s%d' % (S_T0, S_T0, S_T1))
    a('s_lshl_b32 s%d, s%d, 8' % (S_T1, S_I))
    a('s_add_u32 s%d, s%d, s%d' % (S_T0, S_T0, S_T1))
    a('s_add_u32 s%d, s%d, s%d' % (S_T0, S_T0, S_SOFF))
    a('v_mov_b32 v8, v6')
    a('v_mov_b32 v9, v7')
    a('v_lshlrev_b32 v5, 3, v%d' % V_LANE)
    a('s_nop 0')
    a('v_permlane32_swap_b32 v6, v8')
    a('v_permlane32_swap_b32 v7, v9')
    a('s_nop 1')
    a('v_pk_add_f32 v[6:7], v[6:7], v[8:9]')
    a('s_mov_b32 exec_hi, 0')
    fast_store(a, ['buffer_store_dwordx2 v[6:7], v5, %s, s%d offen@' % (WSR, S_T0)])
    a('s_mov_b32 exec_hi, -1')
    if tag: a.vm.append(tag)

def store_x(a):
    store_blk(a, V_RES)
    store_stats(a)

def a1_kv_owner(a, lm):
    a('s_lshl_b32 s%d, s%d, 12' % (S_T0, S_W))
    a('s_add_u32 s%d, s%d, %d' % (S_T0, S_T0, lm.red))
    a('v_add_u32 v5, s%d, v%d' % (S_T0, V_L16))
    for k in range(4):
        a('ds_read_b128 %s, v5 offset:%d' % (vr(ACC1 + 4 * k), k * 1024))
    a('s_lshl_b32 s%d, s%d, 12' % (S_T0, S_J))
    a('s_lshl_b32 s%d, s%d, 13' % (S_T1, S_KH))
    a('s_add_u32 s%d, s%d, s%d' % (S_T0, S_T0, S_T1))
    a('s_lshl_b32 s%d, s%d, 10' % (S_T1, S_I))
    a('s_add_u32 s%d, s%d, s%d' % (S_T0, S_T0, S_T1))
    a('s_add_u32 s%d, s%d, %d' % (S_T0, S_T0, lm.pkv))
    a('v_and_b32 v7, 31, v%d' % V_LANE)
    a('v_lshlrev_b32 v7, 5, v7')
    a('v_lshrrev_b32 v6, 5, v%d' % V_LANE)
    a('v_lshl_add_u32 v7, v6, 4, v7')
    a('v_add_u32 v7, s%d, v7' % S_T0)
    a('s_waitcnt lgkmcnt(0)')
    for r in range(0, 16, 2):
        pk_add(a, ACC0 + r, ACC0 + r, ACC1 + r)
    with role(a, 'A'):
        phi_pack(a, ACC0, V_XF, tmp=ACC1, n=16)
    with role(a, 'B'):
        scale_pack(a, ACC0, VR, V_XF, n=16)
    a('ds_write_b128 v7, %s' % vr(V_XF))
    a('ds_write_b128 v7, %s offset:2048' % vr(V_XF + 4))
    barrier(a)

def head_addrs(a):
    a('s_lshl_b32 s%d, s%d, 2' % (S_T2, S_CS))
    a('s_add_u32 s%d, s%d, s%d' % (S_T2, S_T2, S_W))
    a('s_lshl_b32 s%d, s%d, 14' % (S_T3, S_T2))
    a('s_add_u32 s%d, s%d, s%d' % (S_T3, S_T3, S_LOFF))
    a('s_add_u32 s%d, s%d, 0x%x' % (S_T3, S_T3, KVP_))
    a('s_lshl_b32 s%d, s%d, 11' % (S_T4, S_T2))
    a('s_add_u32 s%d, s%d, s%d' % (S_T4, S_T4, S_LOFF))
    a('s_add_u32 s%d, s%d, 0x%x' % (S_T4, S_T4, ZP_))
    a('s_lshl_b32 s%d, s%d, 12' % (S_T5, S_T2))
    a('s_add_u32 s%d, s%d, 0x%x' % (S_T5, S_T5, HFLAG))

def hello(a):
    head_addrs(a)
    a('s_mov_b32 s64, 1')
    tagval(a, 8, 64)
    a('s_lshl_b32 s%d, s%d, 7' % (S_T0, S_RB))
    a('s_add_u32 s%d, s%d, s%d' % (S_T0, S_T0, S_T5))
    a('v_mov_b32 v5, 0')
    a('s_mov_b64 exec, 1')
    a('buffer_store_dwordx2 v[8:9], v5, %s, s%d offen sc1' % (WSR, S_T0))
    a('s_mov_b64 exec, -1')

def kv_publish(a, lm, first):
    PA, PB, D, D2, ON = V_XF, V_XF + 8, V_ACC, V_ACC + 4, V_ACC + 8
    a('v_lshrrev_b32 v5, 4, v%d' % V_LANE)
    a('v_lshlrev_b32 v5, 8, v5')
    a('v_bfe_u32 v6, v%d, 2, 2' % V_LANE)
    a('v_lshl_add_u32 v5, v6, 5, v5')
    a('v_and_b32 v6, 1, v%d' % V_LANE)
    a('v_lshl_add_u32 v5, v6, 4, v5')
    a('v_bfe_u32 v6, v%d, 1, 1' % V_LANE)
    a('v_lshl_add_u32 v5, v6, 3, v5')
    a('s_lshl_b32 s%d, s%d, 11' % (S_T0, S_W))
    a('s_add_u32 s%d, s%d, %d' % (S_T0, S_T0, lm.pkv))
    a('v_add_u32 v5, s%d, v5' % S_T0)
    for sl in range(2):
        for u in range(2):
            a('ds_read_b64_tr_b16 v[%d:%d], v5 offset:%d' % (PA + 4 * sl + 2 * u, PA + 4 * sl + 2 * u + 1, sl * 1024 + u * 128))
            a('ds_read_b64_tr_b16 v[%d:%d], v5 offset:%d' % (PB + 4 * sl + 2 * u, PB + 4 * sl + 2 * u + 1, 8192 + sl * 1024 + u * 128))
    for r in range(4):
        a('v_mov_b32 v%d, v%d' % (ON + r, V_ONES))
    head_addrs(a)
    a('s_waitcnt lgkmcnt(0)')
    a('v_mfma_f32_16x16x32_bf16 %s, %s, %s, 0' % (vr(D), vr(PA), vr(PB)))
    a('v_mfma_f32_16x16x32_bf16 %s, %s, %s, 0' % (vr(D2), vr(PA), vr(ON)))
    a('v_mfma_f32_16x16x32_bf16 %s, %s, %s, %s' % (vr(D), vr(PA + 4), vr(PB + 4), vr(D)))
    a('v_mfma_f32_16x16x32_bf16 %s, %s, %s, %s' % (vr(D2), vr(PA + 4), vr(ON), vr(D2)))
    a('s_lshl_b32 s%d, s%d, 9' % (S_T0, S_RB))
    a('s_add_u32 s%d, s%d, s%d' % (S_T0, S_T0, S_T3))
    a('s_lshl_b32 s%d, s%d, 6' % (S_T1, S_RB))
    a('s_add_u32 s%d, s%d, s%d' % (S_T1, S_T1, S_T4))
    a('v_and_b32 v6, 48, v%d' % V_LANE)
    a('v_lshlrev_b32 v5, 3, v%d' % V_LANE)
    a('s_nop 2')
    a('v_cvt_pk_bf16_f32 v%d, v%d, v%d' % (D, D, D + 1))
    a('v_cvt_pk_bf16_f32 v%d, v%d, v%d' % (D + 1, D + 2, D + 3))
    for r in (0, 1, 4, 5, 6, 7):
        a('v_min_u32 v%d, -2, v%d' % (D + r, D + r))
    a('buffer_store_dwordx2 v[%d:%d], v5, %s, s%d offen sc1' % (D, D + 1, WSR, S_T0))
    a('s_mov_b32 exec_lo, 0x00010001')
    a('s_mov_b32 exec_hi, 0x00010001')
    a('buffer_store_dwordx4 %s, v6, %s, s%d offen sc1' % (vr(D2), WSR, S_T1))
    a('s_mov_b64 exec, -1')
    ts2(a)
    if first:
        a('s_mov_b32 s64, 1')
        tagbase(a, 65, 64)
        a('v_and_b32 v5, 31, v%d' % V_LANE)
        a('v_lshlrev_b32 v5, 7, v5')
        poll(a, ['buffer_load_dwordx2 v[8:9], v5, %s, s%d offen sc1' % (WSR, S_T5)], tagcmp([8], 65, 7))
    else:
        load_w_issue(a, U_OA, lm.wst, 0)
        a('s_waitcnt vmcnt(0)')
        load_w_read(a, V_W0, 0)
        load_w_issue(a, U_OA, lm.wst, 1)

def kv_gather(a, lm, first):
    if first:
        load_w_issue(a, U_OA, lm.wst, 0)
    head_addrs(a)
    ZR = V_TMP
    a('v_and_b32 v6, 48, v%d' % V_LANE)
    a('v_and_b32 v5, 15, v%d' % V_LANE)
    a('v_lshl_add_u32 v5, v5, 6, v6')
    poll(a, ['buffer_load_dwordx4 %s, v5, %s, s%d offen sc1' % (vr(ZR), WSR, S_T4),
             'buffer_load_dwordx4 %s, v5, %s, s%d offen offset:1024 sc1' % (vr(ZR + 4), WSR, S_T4)],
         ['v_max3_u32 v7, v%d, v%d, v%d' % (ZR, ZR + 1, ZR + 2), 'v_max3_u32 v8, v%d, v%d, v%d' % (ZR + 3, ZR + 4, ZR + 5),
          'v_max3_u32 v7, v7, v%d, v%d' % (ZR + 6, ZR + 7), 'v_max_u32 v7, v7, v8', 'v_cmp_eq_u32 vcc, -1, v7'])
    ts2(a)
    G = [V_W1 + 4 * k for k in range(16)]
    AC = V_ACC
    SEL = V_ACC + 8
    Lg = a.newlabel('gat')
    a('s_mov_b32 s%d, 0' % S_SPIN)
    a.label(Lg)
    a('s_add_u32 s%d, s%d, 1' % (S_SPIN, S_SPIN))
    a('s_cmp_gt_u32 s%d, %d' % (S_SPIN, SPIN_MAX))
    a('s_cbranch_scc1 L_end')
    a('s_mov_b32 s%d, s%d' % (S_T0, S_T3))
    for k in range(16):
        if k and k % 4 == 0:
            a('s_add_u32 s%d, s%d, 4096' % (S_T0, S_T0))
        a('buffer_load_dwordx4 %s, v%d, %s, s%d offen offset:%d sc1' % (vr(G[k]), V_L16, WSR, S_T0, (k % 4) * 1024))
    nx = 0
    if first:
        Ls = a.newlabel('gs')
        a('s_cmp_lg_u32 s%d, 1' % S_SPIN)
        a('s_cbranch_scc1 %s' % Ls)
        load_w_read(a, V_W0, 0)
        load_w_issue(a, U_OA, lm.wst, 1)
        a('s_branch %s_j' % Ls)
        a.label(Ls)
        a('s_waitcnt vmcnt(0)')
        a.label(Ls + '_j')
        nx = 8
    else:
        load_w_read(a, V_W0, 1)
    Z2 = V_TMP + 8
    pk_add(a, Z2, ZR, ZR + 4)
    pk_add(a, Z2 + 2, ZR + 2, ZR + 6)
    for sh in (8, 4, 2, 1):
        a('s_nop 1')
        for r in range(4):
            a('v_add_f32_dpp v%d, v%d, v%d row_ror:%d row_mask:0xf bank_mask:0xf' % (Z2 + r, Z2 + r, Z2 + r, sh))
    a('v_cvt_pk_bf16_f32 v%d, v%d, v%d' % (Z2, Z2, Z2 + 1))
    a('v_cvt_pk_bf16_f32 v%d, v%d, v%d' % (Z2 + 1, Z2 + 2, Z2 + 3))
    a('s_mov_b32 s%d, 0x00110011' % S_T0)
    a('s_mov_b32 s%d, 0x00110011' % S_T1)
    a('v_cndmask_b32_e64 v%d, 0, v%d, s[%d:%d]' % (Z2, Z2, S_T0, S_T1))
    a('v_cndmask_b32_e64 v%d, 0, v%d, s[%d:%d]' % (Z2 + 1, Z2 + 1, S_T0, S_T1))
    a('v_and_b32 v5, 15, v%d' % V_LANE)
    a('v_lshlrev_b32 v5, 4, v5')
    a('v_bfe_u32 v6, v%d, 4, 1' % V_LANE)
    a('v_lshl_add_u32 v5, v6, 9, v5')
    a('v_lshrrev_b32 v6, 5, v%d' % V_LANE)
    a('v_lshl_add_u32 v5, v6, 3, v5')
    a('s_lshl_b32 s%d, s%d, 11' % (S_T0, S_W))
    a('s_add_u32 s%d, s%d, %d' % (S_T0, S_T0, lm.pkv))
    a('v_add_u32 v5, s%d, v5' % S_T0)
    a('ds_write_b64 v5, v[%d:%d] offset:256' % (Z2, Z2 + 1))
    a('v_and_b32 v5, 7, v%d' % V_LANE)
    a('v_lshlrev_b32 v5, 5, v5')
    a('v_bfe_u32 v6, v%d, 3, 1' % V_LANE)
    a('v_lshl_add_u32 v5, v6, 9, v5')
    a('v_bfe_u32 v6, v%d, 4, 1' % V_LANE)
    a('v_lshl_add_u32 v5, v6, 3, v5')
    a('v_add_u32 v5, s%d, v5' % S_T0)
    a('v_mov_b32 v7, 0')
    a('v_mov_b32 v%d, 0x00003f80' % SEL)
    a('v_mov_b32 v%d, 0x3f800000' % (SEL + 1))
    for r in range(8): a('v_mov_b32 v%d, 0' % (AC + r))
    for k in range(16):
        a('s_waitcnt vmcnt(%d)' % (15 - k + nx))
        g = G[k]
        a('v_max3_u32 v7, v7, v%d, v%d' % (g, g + 1))
        a('v_max3_u32 v7, v7, v%d, v%d' % (g + 2, g + 3))
        for r in range(4):
            a('v_dot2_f32_bf16 v%d, v%d, v%d, v%d' % (AC + 2 * r, g + r, SEL, AC + 2 * r))
            a('v_dot2_f32_bf16 v%d, v%d, v%d, v%d' % (AC + 2 * r + 1, g + r, SEL + 1, AC + 2 * r + 1))
    a('v_cmp_eq_u32 vcc, -1, v7')
    a('s_cbranch_vccnz %s' % Lg)
    a('s_nop 1')
    for r in range(8): a('v_mov_b32 v%d, v%d' % (AC + 16 + r, AC + r))
    a('s_nop 1')
    for r in range(8): a('v_permlane32_swap_b32 v%d, v%d' % (AC + r, AC + 16 + r))
    a('s_nop 1')
    for r in range(0, 8, 2): pk_add(a, AC + r, AC + r, AC + 16 + r)
    for r in range(4):
        a('v_cvt_pk_bf16_f32 v%d, v%d, v%d' % (AC + r, AC + 2 * r, AC + 2 * r + 1))
    a('ds_write_b64 v5, v[%d:%d]' % (AC, AC + 1))
    a('ds_write_b64 v5, v[%d:%d] offset:16' % (AC + 2, AC + 3))
    if first:
        a('s_waitcnt vmcnt(0)')
        load_w_read(a, V_W0, 1)

def a1_pq(a, lm):
    y_red_read(a, lm.redq, 1)
    phi_pack(a, V_ACC, V_PQ)

def a1_finish(a, lm):
    a('s_lshl_b32 s%d, s%d, 1' % (S_T0, S_J))
    a('s_add_u32 s%d, s%d, s%d' % (S_T0, S_T0, S_KH))
    a('s_lshl_b32 s%d, s%d, 11' % (S_T0, S_T0))
    a('s_add_u32 s%d, s%d, %d' % (S_T0, S_T0, lm.pkv))
    a('v_add_u32 v6, s%d, v%d' % (S_T0, V_L16))
    a('ds_read_b128 %s, v6' % vr(V_XF + 4))
    a('s_waitcnt lgkmcnt(0)')
    N = V_ACC + 16
    a('v_mfma_f32_32x32x16_bf16 %s, %s, %s, 0' % (vr(N, 16), vr(V_XF + 4), vr(V_PQ)))
    a.nop(12)
    a('v_add_f32 v8, 0x%x, v%d' % (f2u(1e-6), N + 8))
    a('v_rcp_f32 v8, v8')
    a('s_nop 0')
    scale_pack(a, N, 8, V_XF + 8)
    store_blk(a, V_XF + 8)
    csignal(a)

def a1_tail(a, lm, first, qpass, ringbase):
    with role(a, 'B'):
        qpass()
        y_red_write(a, lm.redq, 1)
    with role(a, 'A'):
        kv_publish(a, lm, first)
    barrier(a)
    if first:
        a.vreset()
        p1_probe(a)
    a1_pq(a, lm)
    if first:
        p1_check(a)
    with role(a, 'B'):
        ringbase()
        if first:
            colsum(a, V_W1, 9)
            make_csfrag(a, 9, V_CF2, 6)
    with role(a, 'A'):
        kv_gather(a, lm, first)
    barrier(a)
    ts2(a)
    a1_finish(a, lm)

def a1_std(a):
    lm = LM_STD
    active_path(a, V_W1, True, True)
    toggle_bufs(a, True)
    y_correct(a, V_CF1)
    kv_red_write(a, lm.red)
    barrier(a)
    ts2(a)
    a1_kv_owner(a, lm)
    ts2(a)
    def qpass():
        kloop(a, V_W0, 0, 16)
        y_correct(a, V_CF0)
    def ring():
        a('s_and_b32 s70, s%d, 3' % S_W)
        a('s_lshl_b32 s70, s70, 14')
        load_w_ring(a, U_WQ, V_W1, 16)
    a1_tail(a, lm, False, qpass, ring)

def warm2(a, vd, vt, tag=None, qcols=False):
    R = 64
    a('s_lshr_b32 s%d, s2, 3' % S_T2)
    a('s_lshl_b32 s%d, s%d, 3' % (S_T2, S_T2))
    a('s_add_u32 s%d, s%d, s%d' % (S_T2, S_T2, S_W))
    a('v_lshlrev_b32 v%d, 7, v%d' % (vt, V_LANE))
    a('s_lshr_b32 s%d, s%d, 6' % (S_T1, S_T2))
    a('s_mov_b32 s%d, s44\ns_mov_b32 s%d, s45\ns_mov_b32 s%d, 0x80000\ns_mov_b32 s%d, 0x00020000' % (R, R + 1, R + 2, R + 3))
    for (k, p) in ((1, 48), (2, 54), (3, 50)):
        a('s_cmp_eq_u32 s%d, %d' % (S_T1, k))
        a('s_cselect_b32 s%d, s%d, s%d' % (R, p, R))
        a('s_cselect_b32 s%d, s%d, s%d' % (R + 1, p + 1, R + 1))
    a('s_cselect_b32 s%d, 0x4000, s%d' % (R + 2, R + 2))
    a('s_cmp_ge_u32 s%d, 224' % S_T2)
    a('s_cselect_b32 s%d, s52, s%d' % (R, R))
    a('s_cselect_b32 s%d, s53, s%d' % (R + 1, R + 1))
    a('s_cselect_b32 s%d, 31, 63' % S_T1)
    a('s_and_b32 s%d, s%d, s%d' % (S_T0, S_T2, S_T1))
    a('s_lshl_b32 s%d, s%d, 13' % (S_T0, S_T0))
    if qcols:
        L = a.newlabel('wq')
        a('s_lshr_b32 s%d, s%d, 6' % (S_T1, S_T2))
        a('s_cmp_lg_u32 s%d, 2' % S_T1)
        a('s_cbranch_scc1 %s' % L)
        a('s_mov_b32 s%d, s42\ns_mov_b32 s%d, s43\ns_mov_b32 s%d, 0x180000' % (R, R + 1, R + 2))
        a('s_mul_i32 s%d, s%d, 3' % (S_T0, S_T0))
        a('v_lshrrev_b32 v%d, 3, v%d' % (vd, V_LANE))
        a('v_mul_u32_u24 v%d, 3072, v%d' % (vd, vd))
        a('v_and_b32 v%d, 7, v%d' % (vt, V_LANE))
        a('v_lshl_add_u32 v%d, v%d, 7, v%d' % (vt, vt, vd))
        a.label(L)
    a.v(tag, 'buffer_load_dword v%d, v%d, s[%d:%d], s%d offen' % (vd, vt, R, R + 3, S_T0))

def p1(a):
    a.vreset()
    srd(a, S_IN2, 40, 0x200000)
    srd(a, S_IN, 42, 0x180000)
    nonce_publish(a)
    VXD = [V_TMP + 16, V_TMP + 17]; VWD = V_TMP + 18
    a('v_lshrrev_b32 v5, 3, v%d' % V_LANE)
    a('v_and_b32 v6, 7, v%d' % V_LANE)
    a('v_lshrrev_b32 v7, 4, v%d' % V_LANE)
    a('v_xor_b32 v8, v6, v7')
    a('v_lshlrev_b32 v8, 4, v8')
    a('v_lshl_add_u32 v%d, v5, 10, v8' % VXD[0])
    a('v_xor_b32 v%d, 64, v%d' % (VXD[1], VXD[0]))
    a('v_lshrrev_b32 v5, 2, v%d' % V_LANE)
    a('v_mul_u32_u24 v5, 3072, v5')
    a('v_and_b32 v6, 3, v%d' % V_LANE)
    a('v_lshl_add_u32 v%d, v6, 4, v5' % VWD)
    SXG, SXL, SWG, SLO, SHI = 85, 87, 88, 89, 90
    a('s_lshl_b32 s%d, s%d, 15' % (S_T0, S_KH))
    a('s_lshl_b32 s%d, s%d, 14' % (S_T1, S_I))
    a('s_add_u32 s%d, s%d, s%d' % (SXG, S_XOFF, S_T0))
    a('s_add_u32 s%d, s%d, s%d' % (SXG, SXG, S_T1))
    a('s_lshl_b32 s%d, s%d, 9' % (S_T1, S_J))
    a('s_add_u32 s%d, s%d, s%d' % (SXG, SXG, S_T1))
    a('s_lshl_b32 s%d, s%d, 14' % (S_T1, S_J))
    a('s_add_u32 s%d, s%d, s%d' % (SXL, S_T0, S_T1))
    a('s_lshl_b32 s%d, s%d, 11' % (S_T1, S_I))
    a('s_add_u32 s%d, s%d, s%d' % (SXL, SXL, S_T1))
    a('s_mul_i32 s%d, s%d, %d' % (SWG, S_I, 256 * 3072))
    a('s_lshl_b32 s%d, s%d, 7' % (S_T0, S_CS))
    a('s_add_u32 s%d, s%d, s%d' % (SWG, SWG, S_T0))
    a('s_lshl_b32 s%d, s%d, 6' % (S_T0, S_J))
    a('s_add_u32 s%d, s%d, s%d' % (SWG, SWG, S_T0))
    a('s_lshl_b32 s94, s%d, 10' % S_KH)
    a('s_add_u32 s94, s94, s%d' % SWG)
    a('s_add_u32 s94, s94, 1024')
    a('s_and_b32 s%d, s%d, 3' % (S_T2, S_W))
    a('s_mul_i32 s%d, s%d, 11264' % (SLO, S_T2))
    a('s_add_u32 s%d, s%d, 65536' % (SLO, SLO))
    a('s_add_u32 s%d, s%d, 3072' % (SHI, SLO))
    a('s_mul_i32 s%d, s%d, 3072' % (S_T0, S_T2))
    a('s_add_u32 s%d, s%d, 110592' % (S_T0, S_T0))
    a('s_lshl_b32 s%d, s%d, 13' % (S_T1, S_T2))
    a('s_add_u32 s%d, s%d, 131072' % (S_T1, S_T1))
    a('s_cmp_eq_u32 s%d, 1' % S_KH)
    a('s_cselect_b32 s%d, s%d, s%d' % (SLO, S_T0, SLO))
    a('s_cselect_b32 s%d, s%d, s%d' % (SHI, S_T1, SHI))
    SROT = 3
    a('s_add_u32 s%d, s%d, s%d' % (SROT, S_RB, S_GRP))
    a('s_and_b32 s%d, s%d, 3' % (SROT, SROT))
    def rotg(g):
        a('s_add_u32 s%d, s%d, %d' % (S_T1, SROT, g))
        a('s_and_b32 s%d, s%d, 3' % (S_T1, S_T1))
    def dma_x(g):
        rotg(g)
        a('s_lshl_b32 s%d, s%d, 7' % (S_T1, S_T1))
        a('s_add_u32 s%d, s%d, s%d' % (S_T1, S_T1, SXG))
        for p in range(2):
            a('s_add_u32 s%d, s%d, %d' % (S_T0, S_T1, p * 8192))
            a('s_add_u32 m0, s%d, %d' % (SXL, g * 4096 + p * 1024))
            a('s_nop 0')
            a.v('x%d' % g, 'buffer_load_dwordx4 v%d, s[12:15], s%d offen lds' % (VXD[p], S_T0))
    def slot(sl): return (SLO, sl * 1024) if sl < 3 else (SHI, (sl - 3) * 1024)
    def dma_w(kt, q=False):
        sb, off = slot(3 + (kt + 2) % 8) if q else slot(kt % 11)
        rotg(kt // 4)
        a('s_mul_i32 s%d, s%d, %d' % (S_T1, S_T1, 64 * 3072))
        a('s_add_u32 s%d, s%d, s%d' % (S_T1, S_T1, SWG if q else 94))
        a('s_add_u32 s%d, s%d, %d' % (S_T0, S_T1, (kt % 4) * 16 * 3072))
        a('s_add_u32 m0, s%d, %d' % (sb, off))
        a('s_nop 0')
        a.v(('q%d' if q else 'w%d') % kt, 'buffer_load_dwordx4 v%d, s[8:11], s%d offen lds' % (VWD, S_T0))
    for g in range(4): dma_x(g)
    for kt in range(3): dma_w(kt)
    a('s_getpc_b64 s[64:65]')
    a.label('L_pcref')
    a('s_lshr_b32 s%d, s2, 3' % S_T0)
    a('s_lshl_b32 s%d, s%d, 3' % (S_T0, S_T0))
    a('s_add_u32 s%d, s%d, s%d' % (S_T0, S_T0, S_W))
    a('s_lshl_b32 s%d, s%d, 8' % (S_T0, S_T0))
    a('s_min_u32 s%d, s%d, L_end - L_pcref - 256' % (S_T0, S_T0))
    a('v_lshlrev_b32 v5, 2, v%d' % V_LANE)
    a('v_add_u32 v5, s%d, v5' % S_T0)
    a.v('cp', 'global_load_dword v%d, v5, s[64:65]' % 127)
    for kt in range(3, 6): dma_w(kt)
    PKR = V_W0
    def side_misc():
        a('v_and_b32 v5, 31, v%d' % V_LANE)
        a('v_lshlrev_b32 v5, 10, v5')
        a('v_lshrrev_b32 v6, 5, v%d' % V_LANE)
        a('v_lshl_add_u32 v5, v6, 3, v5')
        rowcol_off(a)
        a.v('res', 'buffer_load_dwordx2 v[%d:%d], v5, s[12:15], s%d offen' % (V_RES, V_RES + 1, S_T0))
        a.v('res', 'buffer_load_dwordx2 v[%d:%d], v5, s[12:15], s%d offen offset:16' % (V_RES + 2, V_RES + 3, S_T0))
        head_addrs(a)
        a('s_lshl_b32 s%d, s%d, 9' % (S_T0, S_RB))
        a('s_add_u32 s%d, s%d, s%d' % (S_T0, S_T0, S_T3))
        a('s_lshl_b32 s%d, s%d, 6' % (S_T1, S_RB))
        a('s_add_u32 s%d, s%d, s%d' % (S_T1, S_T1, S_T4))
        a('s_cmp_eq_u32 s%d, 0' % S_KH)
        a('s_cselect_b32 s%d, s%d, 0x%x' % (S_T0, S_T0, OOB))
        a('s_cselect_b32 s%d, s%d, 0x%x' % (S_T1, S_T1, OOB))
        PO = V_W0 + 16
        for r in range(4): a('v_mov_b32 v%d, -1' % (PO + r))
        for ly in range(2):
            if ly:
                a('s_add_u32 s%d, s%d, 0x%x' % (S_T0, S_T0, LS))
                a('s_add_u32 s%d, s%d, 0x%x' % (S_T1, S_T1, LS))
            a('s_mov_b32 exec_hi, 0')
            a.v('poi', 'buffer_store_dwordx4 %s, v%d, %s, s%d offen sc1' % (vr(PO), V_L16, WSR, S_T0))
            a('s_mov_b64 exec, 15')
            a.v('poi', 'buffer_store_dwordx4 %s, v%d, %s, s%d offen sc1' % (vr(PO), V_L16, WSR, S_T1))
            a('s_mov_b64 exec, -1')
        a('v_and_b32 v5, 7, v%d' % V_LANE)
        a('v_lshlrev_b32 v5, 21, v5')
        a.v('tlb', 'buffer_load_dword v%d, v5, %s, 0 offen' % (PO + 4, WSR))
    XR = [V_TMP + 20 + q for q in range(4)]
    WR = V_TMP + 24
    a('v_and_b32 v5, 31, v%d' % V_LANE)
    a('v_bfe_u32 v6, v%d, 1, 3' % V_LANE)
    a('v_lshrrev_b32 v7, 5, v%d' % V_LANE)
    a('v_xor_b32 v6, v6, v7')
    a('s_mul_i32 s%d, s%d, 49152' % (S_T0, S_I))
    a('v_lshlrev_b32 v5, 7, v5')
    a('v_add_u32 v5, s%d, v5' % S_T0)
    XR2 = [V_TMP + 12 + q for q in range(4)]
    for q in range(4):
        a('v_xor_b32 v7, %d, v6' % (2 * q))
        a('v_lshl_add_u32 v%d, v7, 4, v5' % XR[q])
        a('v_xor_b32 v%d, 32768, v%d' % (XR2[q], XR[q]))
    a('v_lshrrev_b32 v5, 5, v%d' % V_LANE)
    a('v_lshlrev_b32 v5, 9, v5')
    a('v_bfe_u32 v6, v%d, 2, 2' % V_LANE)
    a('v_lshl_add_u32 v5, v6, 6, v5')
    a('v_bfe_u32 v6, v%d, 4, 1' % V_LANE)
    a('v_lshl_add_u32 v5, v6, 5, v5')
    a('v_and_b32 v6, 3, v%d' % V_LANE)
    a('v_lshl_add_u32 v5, v6, 3, v5')
    a('v_add_u32 v%d, s%d, v5' % (WR, SLO))
    a('v_add_u32 v%d, s%d, v5' % (WR + 1, SHI))
    FB = [V_W1 + 12 * k for k in range(4)]
    CS, SS = V_TMP + 19, V_TMP + 26
    a('v_mov_b32 v%d, 0\nv_mov_b32 v%d, 0' % (SS, SS + 1))
    a('s_lshl_b32 s95, s%d, 1' % S_KH)
    a('s_add_u32 s95, s95, s%d' % S_J)
    def rd_kt(kt, q=False):
        b = FB[kt % 4]
        sl = 3 + (kt + 2) % 8 if q else kt % 11
        areg, off = (WR, sl * 1024) if sl < 3 else (WR + 1, (sl - 3) * 1024)
        a('ds_read_b64_tr_b16 v[%d:%d], v%d offset:%d' % (b + 8, b + 9, areg, off))
        a('ds_read_b64_tr_b16 v[%d:%d], v%d offset:%d' % (b + 10, b + 11, areg, off + 256))
        a('ds_read_b128 %s, v%d offset:%d' % (vr(b), XR[kt & 3], (kt >> 2) * 4096))
        a('ds_read_b128 %s, v%d offset:%d' % (vr(b + 4), XR2[kt & 3], (kt >> 2) * 4096))
    def mm_kt(kt, stats):
        b = FB[kt % 4]; first = kt == 0
        if first: a('v_mov_b32 v%d, 0' % CS)
        for q, acc in enumerate((ACC0, ACC1)):
            a('v_mfma_f32_32x32x16_bf16 %s, %s, %s, %s' % (vr(acc, 16), vr(b + 8), vr(b + 4 * q), '0' if first else vr(acc, 16)))
        for r in range(4):
            a('v_dot2_f32_bf16 v%d, v%d, v%d, v%d' % (CS, b + 8 + r, V_ONES, CS))
        if stats:
            for tile in range(2):
                L = a.newlabel('st')
                a('s_cmp_lg_u32 s95, %d' % (2 * tile + (kt & 1)))
                a('s_cbranch_scc1 %s' % L)
                for r in range(4):
                    x = b + 4 * tile + r
                    a('v_dot2_f32_bf16 v%d, v%d, v%d, v%d' % (SS, x, V_ONES, SS))
                    a('v_dot2_f32_bf16 v%d, v%d, v%d, v%d' % (SS + 1, x, x, SS + 1))
                a.label(L)
    lms = LM(red=0, stat=122880, pkv=0, kvf=0, redq=0)
    a.vwait('x3')
    a('v_add_u32 v5, s%d, v%d' % (SXL, V_L16))
    XS = V_W0
    for g in range(4):
        for p in range(2):
            a('ds_read_b128 %s, v5 offset:%d' % (vr(XS + 8 * g + 4 * p), g * 4096 + p * 1024))
    SA = V_ACC
    for r in range(4): a('v_mov_b32 v%d, 0' % (SA + r))
    a('s_waitcnt lgkmcnt(0)')
    for g in range(4):
        for p in range(2):
            for r in range(4):
                x = XS + 8 * g + 4 * p + r
                a('v_dot2_f32_bf16 v%d, v%d, v%d, v%d' % (SA + 2 * p, x, V_ONES, SA + 2 * p))
                a('v_dot2_f32_bf16 v%d, v%d, v%d, v%d' % (SA + 2 * p + 1, x, x, SA + 2 * p + 1))
    a('v_lshrrev_b32 v5, 3, v%d' % V_LANE)
    a('v_lshlrev_b32 v5, 3, v5')
    a('s_lshl_b32 s%d, s%d, 8' % (S_T0, S_KH))
    a('s_lshl_b32 s%d, s%d, 7' % (S_T1, S_I))
    a('s_add_u32 s%d, s%d, s%d' % (S_T0, S_T0, S_T1))
    a('s_lshl_b32 s%d, s%d, 9' % (S_T1, S_J))
    a('s_add_u32 s%d, s%d, s%d' % (S_T0, S_T0, S_T1))
    a('s_add_u32 s%d, s%d, %d' % (S_T0, S_T0, lms.stat))
    a('v_add_u32 v5, s%d, v5' % S_T0)
    for dp in ('quad_perm:[1,0,3,2]', 'quad_perm:[2,3,0,1]', 'row_half_mirror'):
        a('s_nop 1')
        for r in range(4):
            a('v_add_f32_dpp v%d, v%d, v%d %s row_mask:0xf bank_mask:0xf' % (SA + r, SA + r, SA + r, dp))
    a('ds_write_b64 v5, v[%d:%d]' % (SA, SA + 1))
    a('ds_write_b64 v5, v[%d:%d] offset:64' % (SA + 2, SA + 3))
    barrier(a)
    if E('TSP1'): ts(a)
    for kt in range(17):
        if kt < 16:
            a.vwait('w%d' % kt)
            if E('TSP2'): ts(a)
            rd_kt(kt)
            if kt: a('s_waitcnt lgkmcnt(4)')
        else:
            a('s_waitcnt lgkmcnt(0)')
        if kt >= 1:
            p = kt - 1
            if p < 5: dma_w(p + 11)
            mm_kt(p, False)
        if kt == 0:
            rs_issue(a, lms.stat, 2)
        if kt == 2:
            rs_math(a, 2)
            rs_spread(a, True)
            for r in range(14, 18):
                a('v_mov_b32 v%d, 0' % r)
        if kt == 0:
            for k in range(6, 9): dma_w(k)
        if kt == 1:
            for k in range(9, 11): dma_w(k)
        if kt == 6:
            side_misc()
            nonce_probe(a)
        if kt == int(E('WARMKT', '11')):
            warm2(a, V_W0 + 22, V_W0 + 23, 'wu', True)
        if kt == 12:
            with role(a, 'B'):
                vm = list(a.vm)
                a.vwait('w15')
                for k in range(6): dma_w(k, True)
                a.vm = vm; a.done = -1
    with role(a, 'B'):
        vm = list(a.vm)
        for k in range(6, 8): dma_w(k, True)
        a.vm = vm
    a.nop(3)
    make_csfrag(a, CS, V_CF1, 6)
    a('s_nop 1')
    y_correct(a, V_CF1)
    a('s_barrier')
    ts(a)
    lm = LM(red=65536, stat=0, pkv=98304, kvf=114688, redq=65536, wst=131072)
    kv_red_write(a, lm.red)
    with role(a, 'A'):
        nonce_check(a)
    with role(a, 'B'):
        a.vm += ['q'] * 8; a.done = -1
        nonce_check(a)
    a('v_mov_b32 v18, 0')
    a('v_mov_b32 v19, 0')
    a('s_mov_b32 s%d, 1' % S_GPH)
    with role(a, 0):
        lsignal(a)
    with role(a, 'A'):
        hello(a)
    barrier(a)
    if E('TSP1'): ts(a)
    a1_kv_owner(a, lm)
    ts(a)
    with role(a, 'B'):
        a('s_waitcnt vmcnt(0)')
    def qpass():
        a.vreset()
        for kt in range(17):
            if kt < 16:
                if kt >= 8: a.vwait('q%d' % kt)
                rd_kt(kt, True)
                if kt: a('s_waitcnt lgkmcnt(4)')
            else:
                a('s_waitcnt lgkmcnt(0)')
            if kt >= 1:
                p = kt - 1
                if p < 8: dma_w(p + 8, True)
                mm_kt(p, False)
        a.nop(3)
        make_csfrag(a, CS, V_CF0, 6)
        a('s_nop 1')
        y_correct(a, V_CF0)
    def ring():
        a('s_and_b32 s70, s%d, 3' % S_W)
        a('s_lshl_b32 s70, s70, 14')
        load_w_ring(a, U_WQ, V_W1, 16)
    a1_tail(a, lm, True, qpass, ring)

def resid_add(a, acc):
    for r in range(4):
        a('v_lshlrev_b32 v%d, 16, v%d' % (acc + 8 + 2 * r, V_RES + r))
        a('v_and_b32 v%d, 0xffff0000, v%d' % (acc + 9 + 2 * r, V_RES + r))
    for r in range(0, 8, 2):
        pk_add(a, acc + r, acc + r, acc + 8 + r)
    for r in range(4):
        a('v_cvt_pk_bf16_f32 v%d, v%d, v%d' % (V_RES + r, acc + 2 * r, acc + 2 * r + 1))

def final_store(a):
    srd(a, S_IN2, 56, 0x200000)
    a('s_nop 1')
    a('v_permlane32_swap_b32 v%d, v%d' % (V_RES, V_RES + 2))
    a('v_permlane32_swap_b32 v%d, v%d' % (V_RES + 1, V_RES + 3))
    a('v_and_b32 v5, 31, v%d' % V_LANE)
    a('v_lshlrev_b32 v5, 10, v5')
    a('v_lshrrev_b32 v6, 5, v%d' % V_LANE)
    a('v_lshl_add_u32 v5, v6, 4, v5')
    rowcol_off(a)
    a('buffer_store_dwordx4 %s, v5, s[12:15], s%d offen' % (vr(V_RES), S_T0))

def w16_regs(a, inside):
    a('v_lshrrev_b32 v5, 5, v%d' % V_LANE)
    a('v_lshlrev_b32 v5, 9, v5')
    a('v_bfe_u32 v7, v%d, 4, 1' % V_LANE)
    a('v_lshl_add_u32 v5, v7, 7, v5')
    a('v_bfe_u32 v7, v%d, 2, 2' % V_LANE)
    a('v_lshl_add_u32 v5, v7, 5, v5')
    a('v_and_b32 v7, 3, v%d' % V_LANE)
    a('v_lshl_add_u32 v5, v7, 3, v5')
    a('v_add_u32 v5, %d, v5' % LDS_W16)
    for st in range(16):
        a('ds_read_b64_tr_b16 v[%d:%d], v5 offset:%d' % (V_W1 + 4 * st, V_W1 + 4 * st + 1, st * 1024))
        a('ds_read_b64_tr_b16 v[%d:%d], v5 offset:%d' % (V_W1 + 4 * st + 2, V_W1 + 4 * st + 3, st * 1024 + 256))
    L = a.newlabel('cf2')
    a('s_cmp_lg_u32 s%d, 0' % S_LOFF)
    a('s_cbranch_scc1 %s' % L)
    a('s_waitcnt lgkmcnt(0)')
    colsum(a, V_W1, V_ACC)
    make_csfrag(a, V_ACC, V_CF2, V_ACC + 2)
    a.label(L)

def out_gemm(a, w16=False):
    ie = ifelse(a)
    ie.if_set(0)
    active_path(a, V_W0, False)
    y_red_write(a, 65536, 0)
    ie.else_()
    loader_path(a, False, (lambda: dma_w16(a)) if w16 else None)
    ie.end()
    toggle_bufs(a, False)
    barrier(a)
    ts3(a)
    y_red_read(a, 65536, 0)
    resid_add(a, V_ACC)
    ts3(a)

def b1_compute(a):
    lm = LM_STD
    a('s_add_u32 s%d, s%d, 1' % (S_GPH, S_GPH))
    P = V_ACC
    X16 = [V_XF, V_XF + 4, V_XF + 8, V_XF + 12]
    MFg, CFg = P + 8, V_CF2
    def mk_hook(var):
        def hook(c):
            if c == 'stats':
                a('v_and_b32 v7, 15, v%d' % V_LANE)
                a('s_lshl_b32 s%d, s%d, 4' % (S_T0, S_SLAB))
                a('v_add_u32 v7, s%d, v7' % S_T0)
                a('v_lshlrev_b32 v7, 2, v7')
                a('ds_bpermute_b32 v8, v7, v%d' % VM)
                if var == 0:
                    a('ds_bpermute_b32 v%d, v7, v%d' % (P + 16, VR))
                else:
                    a('v_lshrrev_b32 v7, 4, v%d' % V_LANE)
                    a('v_lshlrev_b32 v7, 2, v7')
                    a('v_add_u32 v7, s%d, v7' % S_T0)
                    a('v_lshlrev_b32 v7, 2, v7')
                    for r in range(4):
                        a('ds_bpermute_b32 v%d, v7, v%d offset:%d' % (P + 16 + r, VR, 4 * r))
                a('v_and_b32 v%d, 15, v%d' % (P + 20, V_LANE))
                a('v_lshlrev_b32 v%d, 4, v%d' % (P + 20, P + 20))
                a('v_bfe_u32 v7, v%d, 4, 1' % V_LANE)
                a('v_lshl_add_u32 v%d, v7, %d, v%d' % (P + 20, 9 if var == 0 else 8, P + 20))
                a('v_lshrrev_b32 v7, 5, v%d' % V_LANE)
                a('v_lshl_add_u32 v%d, v7, 3, v%d' % (P + 20, P + 20))
                if var == 0:
                    a('s_lshl_b32 s71, s%d, 11' % S_RB)
                    a('s_lshr_b32 s%d, s%d, 1' % (S_T1, S_SLAB))
                    a('s_lshl_b32 s%d, s%d, 10' % (S_T1, S_T1))
                    a('s_add_u32 s71, s71, s%d' % S_T1)
                    a('s_and_b32 s%d, s%d, 1' % (S_T1, S_SLAB))
                    a('s_lshl_b32 s%d, s%d, 8' % (S_T1, S_T1))
                    a('s_add_u32 s71, s71, s%d' % S_T1)
                    a('s_add_u32 s71, s71, 0x%x' % KF_)
                else:
                    a('s_lshl_b32 s71, s%d, 2' % S_RB)
                    a('s_add_u32 s71, s71, s%d' % S_SLAB)
                    a('s_lshl_b32 s71, s71, 9')
                    a('s_add_u32 s71, s71, 0x%x' % VF_)
                a('s_add_u32 s71, s71, s%d' % S_LOFF)
                a('s_waitcnt lgkmcnt(0)')
                if var == 0:
                    for r in range(1, 4): a('v_mov_b32 v%d, v%d' % (P + 16 + r, P + 16))
                make_mfrag(a, 8, MFg)
                a('s_nop 1')
                if var == 0: a('v_mfma_f32_16x16x32_bf16 %s, %s, %s, %s' % (vr(P), vr(CFg), vr(MFg), vr(P)))
                else: a('v_mfma_f32_16x16x32_bf16 %s, %s, %s, %s' % (vr(P), vr(MFg), vr(CFg), vr(P)))
                return
            if c == 'pre':
                w16_regs(a, True)
                return
            XB8 = [V_XF + 4 * k for k in range(4)] + [V_TMP + 4 * k for k in range(4)]
            for n in range(8):
                a('ds_read_b128 %s, v6 offset:%d' % (vr(XB8[n]), n * 2048))
            for st in range(16):
                a('s_waitcnt lgkmcnt(%d)' % min(7, 15 - st))
                acc = P + 24 * (st & 1)
                cc = '0' if st < 2 else vr(acc)
                A_, B_ = (vr(V_W1 + 4 * st), vr(XB8[st % 8])) if var == 0 else (vr(XB8[st % 8]), vr(V_W1 + 4 * st))
                a('v_mfma_f32_16x16x32_bf16 %s, %s, %s, %s' % (vr(acc), A_, B_, cc))
                if st + 8 < 16:
                    a('ds_read_b128 %s, v6 offset:%d' % (vr(XB8[st % 8]), (st + 8) * 2048))
            rs_math(a, 4)
            hook('stats')
            a.nop(8)
            pk_add(a, P, P, P + 24)
            pk_add(a, P + 2, P + 2, P + 26)
            for r in range(4):
                a('v_mul_f32 v%d, v%d, v%d' % (P + r, P + r, P + 16 + r))
            a('v_cvt_pk_bf16_f32 v%d, v%d, v%d' % (P + 4, P, P + 1))
            a('v_cvt_pk_bf16_f32 v%d, v%d, v%d' % (P + 5, P + 2, P + 3))
            a('buffer_store_dwordx2 v[%d:%d], v%d, %s, s71 offen sc1' % (P + 4, P + 5, P + 20, WSR))
        return hook
    Lb = a.newlabel('b1b'); L3 = a.newlabel('b13'); L3v = a.newlabel('b13v'); Le = a.newlabel('b1e')
    a('s_cmp_eq_u32 s%d, 1' % S_KH)
    a('s_cbranch_scc1 %s' % Lb)
    a('s_cmp_eq_u32 s%d, 3' % S_W)
    a('s_cbranch_scc1 %s' % L3)
    loader_path(a, True)
    a('s_branch %s' % Le)
    a.label(Lb)
    active_path(a, V_W1, True)
    y_correct(a, V_CF2)
    y_red_write(a, 65536, 1)
    a('s_branch %s' % Le)
    a.label(L3)
    a('v_and_b32 v6, 15, v%d' % V_LANE)
    a('v_lshlrev_b32 v6, 4, v6')
    a('v_bfe_u32 v5, v%d, 4, 1' % V_LANE)
    a('v_lshl_add_u32 v6, v5, 9, v6')
    a('v_lshrrev_b32 v5, 5, v%d' % V_LANE)
    a('v_lshl_add_u32 v6, v5, 10, v6')
    a('s_lshr_b32 s%d, s%d, 1' % (S_T0, S_SLAB))
    a('s_lshl_b32 s%d, s%d, 15' % (S_T0, S_T0))
    a('s_and_b32 s%d, s%d, 1' % (S_T1, S_SLAB))
    a('s_lshl_b32 s%d, s%d, 8' % (S_T1, S_T1))
    a('s_add_u32 s%d, s%d, s%d' % (S_T0, S_T0, S_T1))
    a('v_add_u32 v6, s%d, v6' % S_T0)
    a('s_cmp_eq_u32 s%d, 1' % S_WHICH)
    a('s_cbranch_scc1 %s' % L3v)
    loader_path(a, True, hook=mk_hook(0))
    a('s_branch %s' % Le)
    a.label(L3v)
    loader_path(a, True, hook=mk_hook(1))
    a.label(Le)
    tsb(a)
    toggle_bufs(a, True)
    attn_pre(a)
    barrier(a)
    tsb(a)
    with role(a, 3):
        a('s_waitcnt vmcnt(0)')
        lsignal(a)
    AQ = V_ACC
    y_red_read(a, 65536, 1)
    scale_pack(a, AQ, VR, V_XF)
    for r in range(4):
        a('v_lshlrev_b32 v%d, 16, v%d' % (AQ + 2 * r, V_XF + r))
        a('v_and_b32 v%d, 0xffff0000, v%d' % (AQ + 2 * r + 1, V_XF + r))
    for r in range(8):
        a('v_mul_f32 v%d, 0x%x, v%d' % (AQ + r, f2u(CQ), AQ + r))
    for r in range(4):
        a('v_cvt_pk_bf16_f32 v%d, v%d, v%d' % (A_Q + r, AQ + 2 * r, AQ + 2 * r + 1))

PRIO_LO = eval(E('PRIO_LO', '(4, 12, 23, 53)'))
PRIO_HI = eval(E('PRIO_HI', '(7, 15, 28)'))
def attn_loop(a):
    a.lreset()
    def rdK(t):
        if t < 64: a.l_('k%d' % t, 'ds_read_b128 %s, v%d offset:%d' % (vr(A_K[t % 2]), V_L16, t * 1024))
    def rdV(t):
        if t >= 64: return
        a('s_mov_b64 exec, s[%d:%d]' % (S_MASK_LO16, S_MASK_LO16 + 1))
        a.l_('v%d' % t, 'ds_read_b128 %s, v%d offset:%d' % (vr(A_V[t % 2]), A_VA, t * 1024))
        a.l_('v%d' % t, 'ds_read_b128 %s, v%d offset:%d' % (vr(A_V[t % 2] + 4), A_VA, t * 1024 + 512))
        a('s_mov_b64 exec, -1')
    def qk(t):
        a('v_mfma_f32_32x32x16_bf16 %s, %s, %s, %s' % (vr(A_S[t % 2], 16), vr(A_K[t % 2]), vr(A_Q), vr(A_BIAS, 16)))
    def pv(vb, pb, first=False):
        a('v_mfma_f32_32x32x16_bf16 %s, %s, %s, %s' % (vr(A_O, 16), vr(vb), vr(pb), '0' if first else vr(A_O, 16)))
    ex = lambda r: a('v_exp_f32 v%d, v%d' % (r, r))
    class first_pass:
        def __enter__(s_):
            s_.L = a.newlabel('fp')
            a('s_cmp_lg_u32 s%d, 0' % S_PASS)
            a('s_cbranch_scc1 %s' % s_.L)
        def __exit__(s_, *e): a.label(s_.L)
    a('v_and_b32 v%d, 15, v%d' % (A_VA, V_LANE))
    a('v_lshlrev_b32 v%d, 4, v%d' % (A_VA, A_VA))
    a('v_lshrrev_b32 v7, 5, v%d' % V_LANE)
    a('v_lshl_add_u32 v%d, v7, 8, v%d' % (A_VA, A_VA))
    a('v_add_u32 v%d, 65536, v%d' % (A_VA, A_VA))
    rdK(0); rdK(1); rdV(0)
    WD, WA = 10, 11
    a('s_lshl_b32 s70, s%d, 12' % S_W)
    a('s_add_u32 s70, s70, 131072')
    a('s_setprio 1')
    with role(a, 'B'):
        a('s_setprio 2')
    a.lwait('k0')
    qk(0)
    raw_rdaddr(a, WA, 70)
    a('s_nop 1')
    T0 = 29
    def wskip(cond_all):
        a('s_cmp_lg_u32 s%d, 0' % S_LOFF)
        a('s_cselect_b32 s%d, 0x%x, 0' % (S_T0, OOB))
        if not cond_all:
            a('s_cmp_eq_u32 s%d, 0' % S_KH)
            a('s_cselect_b32 s%d, 0, s%d' % (S_T0, S_T0))
        a('s_add_u32 s68, s68, s%d' % S_T0)
    for t in range(64):
        S = A_S[t % 2]
        cv = lambda r: a('v_cvt_pk_bf16_f32 v%d, v%d, v%d' % (A_P + r, S + 2 * r, S + 2 * r + 1))
        def xprobe():
            a('v_and_b32 v7, 7, v%d' % V_LANE)
            a('v_lshlrev_b32 v7, 7, v7')
            a('s_mov_b32 s66, 0x%x' % XFLAG)
            a('buffer_load_dwordx2 v[8:9], v7, %s, s66 offen sc1' % WSR)
        def xcheck(slots):
            Lr = a.newlabel('xr')
            tagbase(a, 65, S_GPH)
            m = sum(1 << sl for sl in slots)
            a('s_lshl_b32 s64, %d, s%d' % (m, S_GRP))
            chk = ['s_mov_b32 exec_lo, s64', 's_mov_b32 exec_hi, 0'] + tagcmp([8], 65, 5) + ['s_mov_b64 exec, -1']
            a('s_waitcnt vmcnt(0)')
            for c in chk: a(c)
            a('s_cbranch_vccz %s' % Lr)
            a('v_and_b32 v7, 7, v%d' % V_LANE)
            a('v_lshlrev_b32 v7, 7, v7')
            poll(a, ['buffer_load_dwordx2 v[8:9], v7, %s, s66 offen sc1' % WSR], chk, sleep=1)
            a.label(Lr)
        if t in (2, 9, 20):
            with first_pass(): xprobe()
        if t == 4:
            with first_pass():
                xcheck([1]); kv_dma(a, [1])
        if t == 11:
            with first_pass():
                xcheck([2, 3]); kv_dma(a, [2, 3])
        if t == 22:
            with first_pass():
                xcheck([4, 5, 6, 7]); kv_dma(a, range(4, 8))
        if t in (7, 15, 28):
            with first_pass():
                a('s_waitcnt vmcnt(0)')
                a('s_barrier')
            if t in (7, 15): rdK(t + 1)
        if E('TSA') and t in (0, 3, 4, 7, 15, 32, 50, 63): ts(a)
        if t in PRIO_LO:
            with role(a, 'B'):
                a('s_setprio 0')
        if t in PRIO_HI:
            with role(a, 'B'):
                a('s_setprio 2')
        if t == T0 + int(E('WARMT', '0')):
            Lw = a.newlabel('wm')
            a('s_cmp_lg_u32 s%d, 0' % S_LOFF)
            a('s_cbranch_scc1 %s' % Lw)
            warm2(a, 8, 7)
            a.label(Lw)
        if t == T0:
            raw_setup(a, U_OB, U_Q, S_IN2, 68, 69, WD); wskip(False)
        if t == T0 + 16:
            raw_setup(a, U_K, U_V, S_IN2, 68, 69, WD); wskip(True)
        if t + 1 < 64:
            a.lwait('k%d' % (t + 1))
            qk(t + 1)
        if t not in (6, 14): rdK(t + 2)
        ex(S + 0); ex(S + 1); ex(S + 2); ex(S + 3); cv(0); ex(S + 4); ex(S + 5); cv(1); ex(S + 6); ex(S + 7); cv(2)
        ex(S + 8); ex(S + 9); cv(3); ex(S + 10); ex(S + 11)
        a.lwait('v%d' % t)
        pv(A_V[t % 2], A_P, t == 0)
        p = t - T0
        if 0 <= p < 32:
            if p >= 4: a.lwait('w%d' % (p - 4))
            for l in raw_dma(S_IN2, 68, 69, WD, 70, (p % 4) * 1024): a(l)
        cv(4); ex(S + 12); ex(S + 13); cv(5); ex(S + 14); ex(S + 15); cv(6)
        p = t - T0 - 2
        if 0 <= p < 32:
            a('s_waitcnt vmcnt(%d)' % min(2, 31 - p))
        else:
            a('s_nop 0')
        cv(7)
        if 0 <= p < 32:
            for l in raw_rd((V_W0 if p < 16 else V_W1) + 4 * (p % 16), WA, (p % 4) * 1024): a.l_('w%d' % p, l)
        else:
            a('s_nop 1')
        pv(A_V[t % 2] + 4, A_P + 4)
        rdV(t + 1)
    a('s_setprio 0')
    a.nop(16)

def attn_pre(a):
    a('s_mov_b32 s%d, 0x00110000' % S_T0)
    a('s_mov_b32 s%d, 0x00110000' % S_T1)
    a('v_cndmask_b32_e64 v7, 0, v%d, s[%d:%d]' % (V_ONES, S_T0, S_T1))
    for b in range(2):
        for r in range(8):
            a('v_mov_b32 v%d, v7' % (A_V[b] + r))

def kv_dma(a, slots):
    a('s_lshl_b32 s67, s%d, 10' % S_W)
    for sl in slots:
        a('s_add_u32 s%d, s%d, %d' % (S_T0, S_GRP, sl))
        a('s_and_b32 s%d, s%d, 7' % (S_T0, S_T0))
        a('s_lshl_b32 s%d, s%d, 13' % (S_T0, S_T0))
        a('s_add_u32 s%d, s%d, s67' % (S_T0, S_T0))
        a('s_add_u32 s%d, s%d, s%d' % (S_T0, S_T0, S_LOFF))
        a('s_add_u32 s%d, s%d, 0x%x' % (S_T0, S_T0, KF_))
        a('s_add_u32 m0, s67, %d' % (sl * 8192))
        a('s_add_u32 s%d, s%d, 0x10000' % (S_T1, S_T0))
        a('buffer_load_dwordx4 v%d, %s, s%d offen sc1 lds' % (V_L16, WSR, S_T0))
        a('s_add_u32 m0, s67, %d' % (65536 + sl * 8192))
        a('s_nop 0')
        a('buffer_load_dwordx4 v%d, %s, s%d offen sc1 lds' % (V_L16, WSR, S_T1))

def attn_inputs(a):
    with role(a, 0):
        lwait(a)
        L = a.newlabel('ld')
        a('s_lshr_b32 s%d, s2, 3' % S_T0)
        a('s_cmp_lg_u32 s%d, 0' % S_T0)
        a('s_cbranch_scc1 %s' % L)
        tagval(a, 6, S_GPH)
        a('s_lshl_b32 s%d, s%d, 7' % (S_T0, S_GRP))
        a('s_add_u32 s%d, s%d, 0x%x' % (S_T0, S_T0, XFLAG))
        a('v_mov_b32 v5, 0')
        a('s_mov_b64 exec, 1')
        a('buffer_store_dwordx2 v[6:7], v5, %s, s%d offen sc1' % (WSR, S_T0))
        a('s_mov_b64 exec, -1')
        a.label(L)
    barrier(a)
    ts(a)
    kv_dma(a, [0])
    a('s_waitcnt vmcnt(0)')
    a('s_barrier')

def attn_compute(a):
    a('ds_read_b128 %s, v%d' % (vr(A_K[0]), V_L16))
    a('s_waitcnt lgkmcnt(0)')
    a('v_mfma_f32_32x32x16_bf16 %s, %s, %s, 0' % (vr(A_S[0], 16), vr(A_K[0]), vr(A_Q)))
    a.nop(12)
    a('v_max3_f32 v10, v%d, v%d, v%d' % (A_S[0], A_S[0] + 1, A_S[0] + 2))
    a('v_max3_f32 v9, v%d, v%d, v%d' % (A_S[0] + 3, A_S[0] + 4, A_S[0] + 5))
    for r in range(6, 14, 4):
        a('v_max3_f32 v10, v10, v%d, v%d' % (A_S[0] + r, A_S[0] + r + 1))
        a('v_max3_f32 v9, v9, v%d, v%d' % (A_S[0] + r + 2, A_S[0] + r + 3))
    a('v_max3_f32 v10, v10, v%d, v%d' % (A_S[0] + 14, A_S[0] + 15))
    a('v_max_f32 v10, v10, v9')
    halves_sum(a, 10, 9, 'v_max_f32')
    a('v_sub_f32 v10, 0, v10')
    a('s_mov_b32 s%d, 0' % S_PASS)
    Lrun = a.newlabel('at_run'); Lok = a.newlabel('at_ok'); Lmx = a.newlabel('at_mx')
    a.label(Lrun)
    for r in range(16):
        a('v_mov_b32 v%d, v10' % (A_BIAS + r))
    a('s_nop 1')
    attn_loop(a)
    a('s_cmp_eq_u32 s%d, 1' % S_PASS)
    a('s_cbranch_scc1 %s' % Lok)
    a('v_max3_f32 v8, abs(v%d), abs(v%d), abs(v%d)' % (A_O, A_O + 1, A_O + 2))
    a('v_max3_f32 v9, abs(v%d), abs(v%d), abs(v%d)' % (A_O + 3, A_O + 4, A_O + 5))
    a('v_max3_f32 v8, abs(v%d), abs(v%d), v8' % (A_O + 6, A_O + 7))
    a('v_max_f32 v8, v8, v9')
    a('v_cmp_nle_f32 vcc, 0x%x, v%d' % (f2u(2.0 ** -89), A_O + 8))
    a('v_cmp_nge_f32 s[64:65], v%d, v%d' % (7, A_O + 8)) if False else None
    a('s_mov_b64 s[64:65], vcc')
    a('v_cmp_nge_f32 vcc, 0x%x, v%d' % (f2u(2.0 ** 90), A_O + 8))
    a('s_nop 3')
    a('s_or_b64 s[64:65], s[64:65], vcc')
    a('v_cmp_nge_f32 vcc, 0x%x, v8' % f2u(2.0 ** 126))
    a('s_nop 3')
    a('s_or_b64 s[64:65], s[64:65], vcc')
    a('s_cmp_eq_u64 s[64:65], 0')
    a('s_cbranch_scc1 %s' % Lok)
    a('s_mov_b32 s%d, 1' % S_PASS)
    a('v_mov_b32 v10, 0xff800000')
    a('v_mov_b32 v%d, v%d' % (A_KA, V_L16))
    a('s_mov_b32 s%d, 0' % S_CNT)
    a.label(Lmx)
    a('ds_read_b128 %s, v%d' % (vr(A_K[0]), A_KA))
    a('s_waitcnt lgkmcnt(0)')
    a('v_mfma_f32_32x32x16_bf16 %s, %s, %s, 0' % (vr(A_S[0], 16), vr(A_K[0]), vr(A_Q)))
    a.nop(16)
    for r in range(0, 16, 2):
        a('v_max3_f32 v10, v10, v%d, v%d' % (A_S[0] + r, A_S[0] + r + 1))
    a('v_add_u32 v%d, 1024, v%d' % (A_KA, A_KA))
    a('s_add_u32 s%d, s%d, 1' % (S_CNT, S_CNT))
    a('s_cmp_lt_u32 s%d, 64' % S_CNT)
    a('s_cbranch_scc1 %s' % Lmx)
    halves_sum(a, 10, 9, 'v_max_f32')
    a('v_sub_f32 v10, 0, v10')
    a('s_branch %s' % Lrun)
    a.label(Lok)
    a('v_rcp_f32 v8, v%d' % (A_O + 8))
    a('s_nop 0')
    scale_pack(a, A_O, 8, A_P)
    store_blk(a, A_P)
    csignal(a)

def header():
    ref = open('cdna_kernels/%s.s.ref' % NAME).read().split('\n')
    out = []
    for l in ref:
        if not l.startswith(';'): break
        if '@launch' in l: continue
        out.append(l)
    return out

def main(path):
    a = Asm()
    for h in header(): a.raw(h)
    a.raw('; @launch grid=(256,1,1) block=(512,1,1) lds=%d' % LDS_TOTAL)
    a.raw('.amdgcn_target "amdgcn-amd-amdhsa--gfx950"')
    a.raw('.text')
    name = NAME + '_kernel'
    prologue(a, name)
    ts(a)
    p1(a)
    ts(a)
    a.label('L_layer')
    out_gemm(a, True)
    store_x(a)
    csignal(a)
    ts(a)
    b1_compute(a)
    ts(a)
    attn_inputs(a)
    ts(a)
    attn_compute(a)
    ts(a)
    out_gemm(a)
    a('s_cmp_lg_u32 s%d, 0' % S_LOFF)
    a('s_cbranch_scc1 L_final')
    a('s_mov_b32 s%d, 0x%x' % (S_LOFF, LS))
    store_x(a)
    csignal(a)
    ts(a)
    a1_std(a)
    ts(a)
    a('s_branch L_layer')
    a.label('L_final')
    final_store(a)
    a('s_waitcnt vmcnt(0)')
    ts(a)
    ts_flush(a)
    epilogue(a, name)
    open(path, 'w').write(a.text())

if __name__ == '__main__':
    main(sys.argv[1] if len(sys.argv) > 1 else 'cdna_kernels/%s.s' % NAME)
```

```python
import struct, math, sys, os

NAME = 'interleave_layers__linear_attn_block__grouped_kv_mqa__prompt'
E = os.environ.get
TS_ON = E('TS', '0') == '1'
TS2 = TS_ON and E('TS2', '0') == '1'
DBGBUF = E('DBGBUF', '0') == '1'

T0_ = 0x1000000 if DBGBUF else 0x000000
WP = 0x400000
NT_QKV, NT_OA, NT_Q, NT_OB = 0, 48, 64, 80
WKV16 = 0x700000
STP = 0x780000
LB, LS = 0x880000, 0x140000
KF_, VF_, KMAX_ = LB, LB + 0x10000, LB + 0x20000
KVP_, ZP_ = LB + 0x28000, LB + 0x128000
CFLAG = 0xB00000
GFLAG = 0xB04000
XFLAG = 0xB05000
HFLAG = 0xB20000
TSBUF = 0xB40000
WS_BYTES = 0x10000000
OOB = 0x7FFF0000
_t = lambda n: T0_ + n * 0x200000
XF = [None, _t(1), _t(3), _t(5)]
OLIN = [_t(0), _t(4)]; OF = [_t(2), _t(6)]
KF = [KF_, KF_ + LS]; VF = [VF_, VF_ + LS]; KMAX = [KMAX_, KMAX_ + LS]; KVP = [KVP_, KVP_ + LS]; ZP = [ZP_, ZP_ + LS]

def f2u(x): return struct.unpack('<I', struct.pack('<f', x))[0]
LOG2E = math.log2(math.e)
CQ = 0.25 * LOG2E

class Asm:
    def __init__(self):
        self.l = []; self.uid = 0; self.vm = []; self.done = -1
    def __call__(self, s):
        for line in s.strip('\n').split('\n'):
            self.l.append('    ' + line.strip())
    def label(self, s): self.l.append(s + ':')
    def raw(self, s): self.l.append(s)
    def nop(self, n):
        while n > 0:
            k = min(n, 16); self('s_nop %d' % (k - 1)); n -= k
    def newlabel(self, p='L'):
        self.uid += 1; return '%s_%d' % (p, self.uid)
    def text(self): return '\n'.join(self.l) + '\n'
    def lreset(self): self.lg = []; self.ldone = -1
    def l_(self, tag, s_):
        self(s_); self.lg.append(tag)
    def lwait(self, *tags):
        idx = [i for i, t in enumerate(self.lg) if t in tags]
        if not idx or max(idx) <= self.ldone: return
        self.ldone = max(idx)
        n = len(self.lg) - 1 - max(idx)
        self('s_waitcnt lgkmcnt(%d)' % min(n, 15))
    def vreset(self): self.vm = []; self.done = -1
    def v(self, tag, s):
        self(s); self.vm.append(tag)
    def vwait(self, *tags, extra=''):
        idx = [i for i, t in enumerate(self.vm) if t in tags]
        if max(idx) <= self.done and not extra: return
        self.done = max(self.done, max(idx))
        n = len(self.vm) - 1 - max(idx)
        assert n <= 63
        self('s_waitcnt vmcnt(%d)%s' % (n, extra))

def vr(b, n=4): return 'v[%d:%d]' % (b, b + n - 1)

S_WS, S_IN, S_IN2 = 4, 8, 12
S_RB, S_CS, S_W, S_I, S_J, S_KH = 16, 17, 18, 19, 20, 21
S_BLK, S_LOFF = 22, 23
S_T0, S_T1, S_T2, S_T3, S_T4, S_T5 = 24, 25, 26, 27, 28, 29
S_MASK_LO16 = 30
S_WHICH, S_SLAB = 34, 35
S_CNT, S_PASS, S_CPH, S_GPH = 36, 37, 38, 39
S_FAST, S_SPIN = 62, 63
S_TSI, S_TOFF, S_SOFF, S_GRP = 72, 73, 74, 75
S_DBG = 76
S_WOFF, S_XOFF = 80, 81
S_TS = 82
S_NLO, S_NHI, S_XCC = 32, 33, 91
V_ONES, V_LANE, V_L16, V_XB, V_XA = 0, 1, 2, 3, 4
VM, VR = 10, 11
V_CF1, V_CF0, V_CF2 = 12, 14, 16
V_RES = 20
V_XF = 24
V_ACC = 40
V_PQ = 88
V_CFA, V_GFA, V_PCA, V_Q2 = 96, 97, 98, 99
V_TMP = 100
V_W0, V_W1 = 128, 192
A_Q, A_BIAS, A_S, A_P, A_O, A_K, A_V = 100, 24, [40, 56], 72, 80, [104, 108], [112, 120]
A_KA, A_VA = 5, 6
XBUF = [V_XF, V_XF + 8, V_TMP, V_TMP + 8]
ACC0, ACC1 = V_ACC, V_ACC + 16
V_MF = V_ACC + 32

class LM:
    def __init__(s, red, stat, pkv, kvf, redq, wst=98304): s.red, s.stat, s.pkv, s.kvf, s.redq, s.wst = red, stat, pkv, kvf, redq, wst
LM_STD = LM(red=65536, stat=131072, pkv=135168, kvf=151552, redq=65536)
LDS_U = 155648
LDS_TOTAL = 163840
WSR = 's[%d:%d]' % (S_WS, S_WS + 3)
SPIN_MAX = 200000

def srd(a, d, ptr_s, nbytes):
    a('s_mov_b32 s%d, s%d' % (d, ptr_s))
    a('s_mov_b32 s%d, s%d' % (d + 1, ptr_s + 1))
    a('s_mov_b32 s%d, 0x%x' % (d + 2, nbytes))
    a('s_mov_b32 s%d, 0x00020000' % (d + 3))

def ts(a):
    if not TS_ON: return
    a('s_memrealtime s[%d:%d]' % (S_TS, S_TS + 1))
    a('s_waitcnt lgkmcnt(0)')
    a('s_lshl_b64 exec, 1, s%d' % S_TSI)
    a('v_mov_b32 v99, s%d' % S_TS)
    a('s_mov_b64 exec, -1')
    a('s_add_u32 s%d, s%d, 1' % (S_TSI, S_TSI))

def ts_flush(a):
    if not TS_ON: return
    a('s_lshl_b32 s%d, s2, 3' % S_T0)
    a('s_add_u32 s%d, s%d, s%d' % (S_T0, S_T0, S_W))
    a('s_lshl_b32 s%d, s%d, 8' % (S_T0, S_T0))
    a('s_add_u32 s%d, s%d, 0x%x' % (S_T0, S_T0, TSBUF))
    a('v_lshlrev_b32 v5, 2, v%d' % V_LANE)
    a('buffer_store_dword v99, v5, %s, s%d offen' % (WSR, S_T0))
    a('s_waitcnt vmcnt(0)')

def ts3(a):
    if TS_ON and E('TS3'): ts(a)
def ts2(a):
    if TS2: ts(a)

class role:
    def __init__(s, a, who): s.a, s.who = a, who
    def __enter__(s):
        a = s.a; s.L = a.newlabel('role')
        if s.who == 'A': a('s_cmp_lg_u32 s%d, 0' % S_KH)
        elif s.who == 'B': a('s_cmp_lg_u32 s%d, 1' % S_KH)
        else: a('s_cmp_lg_u32 s%d, %d' % (S_W, s.who))
        a('s_cbranch_scc1 %s' % s.L)
    def __exit__(s, *e): s.a.label(s.L)

def prologue(a, name):
    a.raw('.globl %s' % name); a.raw('.p2align 8'); a.raw('.type %s,@function' % name)
    a.label(name)
    a('s_cmp_ge_u32 s2, 256')
    a('s_cbranch_scc1 L_end')
    a('s_load_dwordx16 s[40:55], s[0:1], 0')
    a('s_load_dwordx4 s[56:59], s[0:1], 64')
    a('s_load_dwordx2 s[60:61], s[0:1], 80')
    a('s_and_b32 s%d, s2, 7' % S_GRP)
    a('s_lshl_b32 s%d, s%d, 2' % (S_RB, S_GRP))
    a('s_lshr_b32 s%d, s2, 6' % S_T0)
    a('s_add_u32 s%d, s%d, s%d' % (S_RB, S_RB, S_T0))
    a('s_bfe_u32 s%d, s2, 0x30003' % S_CS)
    a('v_lshrrev_b32 v5, 6, v0')
    a('v_and_b32 v%d, 63, v0' % V_LANE)
    a('s_nop 0')
    a('v_readfirstlane_b32 s%d, v5' % S_W)
    a('v_lshlrev_b32 v%d, 4, v%d' % (V_L16, V_LANE))
    a('s_nop 3')
    a('s_and_b32 s%d, s%d, 1' % (S_I, S_W))
    a('s_bfe_u32 s%d, s%d, 0x10001' % (S_J, S_W))
    a('s_lshr_b32 s%d, s%d, 2' % (S_KH, S_W))
    a('s_lshl_b32 s%d, s%d, 1' % (S_T0, S_RB))
    a('s_add_u32 s%d, s%d, s%d' % (S_T0, S_T0, S_I))
    a('s_lshl_b32 s%d, s%d, 5' % (S_T0, S_T0))
    a('s_lshl_b32 s%d, s%d, 2' % (S_T1, S_CS))
    a('s_add_u32 s%d, s%d, s%d' % (S_T0, S_T0, S_T1))
    a('s_lshl_b32 s%d, s%d, 1' % (S_T1, S_J))
    a('s_add_u32 s%d, s%d, s%d' % (S_T0, S_T0, S_T1))
    a('s_add_u32 s%d, s%d, s%d' % (S_T0, S_T0, S_KH))
    a('s_lshl_b32 s%d, s%d, 10' % (S_BLK, S_T0))
    a('s_lshl_b32 s%d, s%d, 14' % (S_T1, S_I))
    a('s_mul_i32 s%d, s%d, 49152' % (S_T0, S_I))
    a('v_add_u32 v%d, s%d, v%d' % (V_XA, S_T0, V_L16))
    a('v_xor_b32 v%d, 32768, v%d' % (V_XB, V_XA))
    a('s_lshl_b32 s%d, s%d, 1' % (S_T0, S_CS))
    a('s_add_u32 s%d, s%d, s%d' % (S_T0, S_T0, S_J))
    a('s_lshl_b32 s%d, s%d, 6' % (S_WOFF, S_T0))
    a('s_lshl_b32 s%d, s%d, 16' % (S_XOFF, S_RB))
    a('v_mov_b32 v%d, 0x3f803f80' % V_ONES)
    a('s_mov_b32 s%d, 0x0000ffff' % S_MASK_LO16)
    a('s_mov_b32 s%d, 0x0000ffff' % (S_MASK_LO16 + 1))
    a('s_and_b32 s%d, s%d, 1' % (S_WHICH, S_CS))
    a('s_lshr_b32 s%d, s%d, 1' % (S_SLAB, S_CS))
    a('s_mov_b32 s%d, 0' % S_LOFF)
    a('s_mov_b32 s%d, 0' % S_CPH)
    a('s_mov_b32 s%d, 0' % S_GPH)
    a('s_mov_b32 s%d, 0' % S_FAST)
    a('s_mov_b32 s%d, 0x%x' % (S_TOFF, T0_))
    a('s_mov_b32 s%d, 0x%x' % (S_SOFF, STP))
    a('s_lshl_b32 s%d, s%d, 9' % (S_T0, S_RB))
    a('s_add_u32 s%d, s%d, 0x%x' % (S_T0, S_T0, CFLAG))
    a('v_lshlrev_b32 v5, 3, v%d' % V_LANE)
    a('v_add_u32 v%d, s%d, v5' % (V_PCA, S_T0))
    a('s_lshl_b32 s%d, s%d, 6' % (S_T1, S_CS))
    a('s_add_u32 s%d, s%d, s%d' % (S_T0, S_T0, S_T1))
    a('s_lshl_b32 s%d, s%d, 3' % (S_T1, S_W))
    a('s_add_u32 s%d, s%d, s%d' % (S_T0, S_T0, S_T1))
    a('v_mov_b32 v%d, s%d' % (V_CFA, S_T0))
    a('s_getreg_b32 s%d, hwreg(HW_REG_XCC_ID)' % S_XCC)
    a('s_and_b32 s%d, s%d, 15' % (S_XCC, S_XCC))
    a('s_lshl_b32 s%d, s%d, 6' % (S_T0, S_RB))
    a('s_lshl_b32 s%d, s%d, 3' % (S_T1, S_CS))
    a('s_add_u32 s%d, s%d, s%d' % (S_T0, S_T0, S_T1))
    a('s_add_u32 s%d, s%d, 0x%x' % (S_T0, S_T0, GFLAG))
    a('v_mov_b32 v%d, s%d' % (V_GFA, S_T0))
    a('s_mov_b32 s%d, 0' % S_TSI)
    a('v_mov_b32 v99, 0')
    a('s_waitcnt lgkmcnt(0)')
    srd(a, S_WS, 60, WS_BYTES)
    srd(a, S_DBG, 58, 256)

def epilogue(a, name, nv=256):
    a.label('L_end')
    a('s_endpgm')
    a.raw('.section .rodata,"a"'); a.raw('.p2align 6')
    a.raw('.amdhsa_kernel %s' % name)
    a.raw('  .amdhsa_next_free_vgpr %d' % nv)
    a.raw('  .amdhsa_next_free_sgpr 96')
    a.raw('  .amdhsa_accum_offset %d' % ((nv + 3) // 4 * 4))
    a.raw('  .amdhsa_group_segment_fixed_size 0')
    a.raw('  .amdhsa_kernarg_size 88')
    a.raw('  .amdhsa_user_sgpr_count 2')
    a.raw('  .amdhsa_user_sgpr_kernarg_segment_ptr 1')
    a.raw('  .amdhsa_system_sgpr_workgroup_id_x 1')
    a.raw('  .amdhsa_float_denorm_mode_32 3')
    a.raw('.end_amdhsa_kernel')

def fast_store(a, fmts):
    L1 = a.newlabel('fs'); L2 = a.newlabel('fs')
    a('s_cmp_eq_u32 s%d, 1' % S_FAST)
    a('s_cbranch_scc1 %s' % L1)
    for f in fmts: a(f.replace('@', ' sc1'))
    a('s_branch %s' % L2)
    a.label(L1)
    for f in fmts: a(f.replace('@', ''))
    a.label(L2)

def tagval(a, v, sph, xcc=False):
    a('s_lshl_b32 s%d, s%d, 4' % (S_T0, sph))
    a('s_add_u32 s%d, s%d, s%d' % (S_T0, S_T0, S_NLO))
    if xcc: a('s_add_u32 s%d, s%d, s%d' % (S_T0, S_T0, S_XCC))
    a('v_mov_b32 v%d, s%d' % (v, S_T0))
    a('v_mov_b32 v%d, s%d' % (v + 1, S_NHI))

def tagbase(a, sdst, sph):
    a('s_lshl_b32 s%d, s%d, 4' % (sdst, sph))
    a('s_add_u32 s%d, s%d, s%d' % (sdst, sdst, S_NLO))

def tagcmp(pairs, sbase, t):
    out = []
    for n, p in enumerate(pairs):
        out.append('v_subrev_u32 v%d, s%d, v%d' % (p, sbase, p))
        out.append('v_xor_b32 v%d, s%d, v%d' % (p + 1, S_NHI, p + 1))
        out.append('v_lshrrev_b32 v%d, 12, v%d' % (p, p))
        if n == 0: out.append('v_or_b32 v%d, v%d, v%d' % (t, p, p + 1))
        else: out.append('v_or3_b32 v%d, v%d, v%d, v%d' % (t, t, p, p + 1))
    out.append('v_cmp_ne_u32 vcc, 0, v%d' % t)
    return out

def csignal(a, tag=None):
    a('s_add_u32 s%d, s%d, 1' % (S_CPH, S_CPH))
    tagval(a, 6, S_CPH, True)
    if tag is None:
        a('s_waitcnt vmcnt(0) lgkmcnt(0)')
    a('s_mov_b64 exec, 1')
    fast_store(a, ['buffer_store_dwordx2 v[6:7], v%d, %s, 0 offen@' % (V_CFA, WSR)])
    a('s_mov_b64 exec, -1')
    if tag: a.vm.append(tag)

def poll(a, load, cmp, sleep=0):
    Lp = a.newlabel('pl'); Lo = a.newlabel('po')
    a('s_mov_b32 s%d, 0' % S_SPIN)
    a.label(Lp)
    a('s_add_u32 s%d, s%d, 1' % (S_SPIN, S_SPIN))
    a('s_cmp_gt_u32 s%d, %d' % (S_SPIN, SPIN_MAX))
    a('s_cbranch_scc1 L_end')
    for l in load: a(l)
    a('s_waitcnt vmcnt(0)')
    for c in cmp: a(c)
    if sleep:
        a('s_cbranch_vccz %s' % Lo)
        a('s_sleep %d' % sleep)
        a('s_branch %s' % Lp)
        a.label(Lo)
    else:
        a('s_cbranch_vccnz %s' % Lp)

def cwait(a):
    tagbase(a, 65, S_CPH)
    Lp = a.newlabel('cw'); Lo = a.newlabel('co')
    ld = lambda v: a('buffer_load_dwordx2 v[%d:%d], v%d, %s, 0 offen sc1' % (v, v + 1, V_PCA, WSR))
    a('s_mov_b32 s%d, 0' % S_SPIN)
    ld(8)
    a.label(Lp)
    a('s_add_u32 s%d, s%d, 1' % (S_SPIN, S_SPIN))
    a('s_cmp_gt_u32 s%d, %d' % (S_SPIN, SPIN_MAX))
    a('s_cbranch_scc1 L_end')
    a('s_sleep 1')
    ld(92)
    a('s_waitcnt vmcnt(1)')
    for c in tagcmp([8], 65, 7): a(c)
    a('s_cbranch_vccz %s' % Lo)
    a('s_sleep 1')
    ld(8)
    a('s_waitcnt vmcnt(1)')
    for c in tagcmp([92], 65, 7): a(c)
    a('s_cbranch_vccnz %s' % Lp)
    a.label(Lo)

def lpoll_addr(a, v):
    a('v_and_b32 v%d, 31, v%d' % (v, V_LANE))
    a('v_lshlrev_b32 v%d, 3, v%d' % (v, v))
    a('s_lshl_b32 s66, s%d, 8' % S_GRP)
    a('s_add_u32 s66, s66, 0x%x' % GFLAG)

def lwait(a):
    tagbase(a, 65, S_GPH)
    lpoll_addr(a, 5)
    poll(a, ['buffer_load_dwordx2 v[8:9], v5, %s, s66 offen sc1' % WSR], tagcmp([8], 65, 7))

def lsignal(a):
    tagval(a, 6, S_GPH, True)
    a('s_mov_b64 exec, 1')
    fast_store(a, ['buffer_store_dwordx2 v[6:7], v%d, %s, 0 offen@' % (V_GFA, WSR)])
    a('s_mov_b64 exec, -1')

DBR = 's[%d:%d]' % (S_DBG, S_DBG + 3)
NP = 18
def nonce_publish(a):
    L = a.newlabel('np')
    a('s_cmp_lg_u32 s2, 0')
    a('s_cbranch_scc1 %s' % L)
    a('s_cmp_lg_u32 s%d, 0' % S_W)
    a('s_cbranch_scc1 %s' % L)
    a('s_memrealtime s[64:65]')
    a('s_waitcnt lgkmcnt(0)')
    a('s_lshl_b64 s[64:65], s[64:65], 12')
    a('s_or_b32 s65, s65, 0x80000000')
    a('v_mov_b32 v6, s64')
    a('v_mov_b32 v7, s65')
    a('v_mov_b32 v5, 0')
    a('s_mov_b64 exec, 1')
    a('buffer_store_dwordx2 v[6:7], v5, %s, 0 offen sc1' % DBR)
    a('s_mov_b64 exec, -1')
    a.label(L)

def nonce_probe(a):
    a('v_mov_b32 v5, 0')
    a.v('np', 'buffer_load_dwordx2 v[%d:%d], v5, %s, 0 offen sc1' % (NP, NP + 1, DBR))

def nonce_check(a):
    Lok = a.newlabel('nok')
    a.vwait('np')
    a('v_cmp_eq_u32 vcc, 0, v%d' % (NP + 1))
    a('s_cbranch_vccz %s' % Lok)
    a('v_mov_b32 v5, 0')
    poll(a, ['buffer_load_dwordx2 v[%d:%d], v5, %s, 0 offen sc1' % (NP, NP + 1, DBR)], ['v_cmp_eq_u32 vcc, 0, v%d' % (NP + 1)], sleep=2)
    a.label(Lok)
    a('v_readfirstlane_b32 s%d, v%d' % (S_NLO, NP))
    a('v_readfirstlane_b32 s%d, v%d' % (S_NHI, NP + 1))
    a('s_nop 3')

PR = 80
def p1_probe(a):
    lpoll_addr(a, PR + 6)
    a.v('pr', 'buffer_load_dwordx2 v[%d:%d], v%d, %s, s66 offen sc1' % (PR + 2, PR + 3, PR + 6, WSR))

def p1_check(a):
    L2 = a.newlabel('pc')
    a.vwait('pr')
    tagbase(a, 65, S_GPH)
    a('v_mov_b32 v%d, v%d' % (PR + 4, PR + 2))
    for c in tagcmp([PR + 2], 65, 7): a(c)
    a('s_cbranch_vccz %s' % L2)
    poll(a, ['buffer_load_dwordx2 v[%d:%d], v%d, %s, s66 offen sc1' % (PR + 2, PR + 3, PR + 6, WSR)],
         ['v_mov_b32 v%d, v%d' % (PR + 4, PR + 2)] + tagcmp([PR + 2], 65, 7), sleep=1)
    a.label(L2)
    a('v_and_b32 v%d, 15, v%d' % (PR + 4, PR + 4))
    a('v_cmp_ne_u32 vcc, s%d, v%d' % (S_XCC, PR + 4))
    a('s_nop 3')
    a('s_cmp_eq_u64 vcc, 0')
    a('s_cselect_b32 s%d, 1, 0' % S_FAST)
    if E('NOFAST'):
        a('s_mov_b32 s%d, 0' % S_FAST)

def next_tile(a):
    if DBGBUF: a('s_add_u32 s%d, s%d, 0x200000' % (S_TOFF, S_TOFF))
    else: a('s_xor_b32 s%d, s%d, 0x200000' % (S_TOFF, S_TOFF))

def colsum(a, vw, vcs):
    a('v_mov_b32 v%d, 0' % vcs)
    a('s_nop 1')
    for r in range(64):
        a('v_dot2_f32_bf16 v%d, v%d, v%d, v%d' % (vcs, vw + r, V_ONES, vcs))
    a.nop(3)

def rowcol_off(a):
    a('s_lshl_b32 s%d, s%d, 15' % (S_T1, S_I))
    a('s_add_u32 s%d, s%d, s%d' % (S_T0, S_XOFF, S_T1))
    a('s_lshl_b32 s%d, s%d, 7' % (S_T1, S_CS))
    a('s_add_u32 s%d, s%d, s%d' % (S_T0, S_T0, S_T1))
    a('s_lshl_b32 s%d, s%d, 6' % (S_T1, S_J))
    a('s_add_u32 s%d, s%d, s%d' % (S_T0, S_T0, S_T1))
    a('s_lshl_b32 s%d, s%d, 5' % (S_T1, S_KH))
    a('s_add_u32 s%d, s%d, s%d' % (S_T0, S_T0, S_T1))

U_Q, U_K, U_V, U_OA, U_WQ, U_OB = range(6)
UPTR = {U_Q: 42, U_K: 42, U_V: 42, U_OA: 44, U_WQ: 48, U_OB: 54}
ULD = {U_Q: 3072, U_K: 3072, U_V: 3072, U_OA: 1024, U_WQ: 1024, U_OB: 1024}
UCOL = {U_Q: 0, U_K: 1024, U_V: 2048, U_OA: 0, U_WQ: 0, U_OB: 0}
def raw_setup(a, uA, uB, R, sbase, sstep, vdma):
    def sel(d, x, y):
        if x == y: a('s_mov_b32 s%d, %s' % (d, x))
        else:
            a('s_mov_b32 s%d, %s' % (d, x))
            a('s_cmp_eq_u32 s%d, 1' % S_KH)
            a('s_cselect_b32 s%d, %s, s%d' % (d, y, d))
    sel(R, 's%d' % UPTR[uA], 's%d' % UPTR[uB])
    sel(R + 1, 's%d' % (UPTR[uA] + 1), 's%d' % (UPTR[uB] + 1))
    sel(R + 2, '0x%x' % (ULD[uA] * 512), '0x%x' % (ULD[uB] * 512))
    a('s_mov_b32 s%d, 0x00020000' % (R + 3))
    sel(sstep, str(ULD[uA]), str(ULD[uB]))
    sel(sbase, str(UCOL[uA]), str(UCOL[uB]))
    a('v_lshrrev_b32 v%d, 2, v%d' % (vdma, V_LANE))
    a('v_mul_lo_u32 v%d, v%d, s%d' % (vdma, vdma, sstep))
    a('v_and_b32 v7, 3, v%d' % V_LANE)
    a('v_lshl_add_u32 v%d, v7, 4, v%d' % (vdma, vdma))
    a('s_lshl_b32 s%d, s%d, 4' % (sstep, sstep))
    a('s_lshl_b32 s%d, s%d, 4' % (S_T0, S_I))
    a('s_mul_i32 s%d, s%d, s%d' % (S_T0, S_T0, sstep))
    a('s_add_u32 s%d, s%d, s%d' % (sbase, sbase, S_T0))
    a('s_add_u32 s%d, s%d, s%d' % (sbase, sbase, S_WOFF))

def raw_rdaddr(a, v, slds):
    a('v_lshrrev_b32 v%d, 5, v%d' % (v, V_LANE))
    a('v_lshlrev_b32 v%d, 8, v%d' % (v, v))
    a('v_bfe_u32 v7, v%d, 2, 2' % V_LANE)
    a('v_lshl_add_u32 v%d, v7, 6, v%d' % (v, v))
    a('v_bfe_u32 v7, v%d, 4, 1' % V_LANE)
    a('v_lshl_add_u32 v%d, v7, 5, v%d' % (v, v))
    a('v_and_b32 v7, 3, v%d' % V_LANE)
    a('v_lshl_add_u32 v%d, v7, 3, v%d' % (v, v))
    a('v_add_u32 v%d, s%d, v%d' % (v, slds, v))

def raw_dma(R, sbase, sstep, vdma, slds, off):
    return ['s_add_u32 m0, s%d, %d' % (slds, off), 's_nop 0',
            'buffer_load_dwordx4 v%d, s[%d:%d], s%d offen lds' % (vdma, R, R + 3, sbase),
            's_add_u32 s%d, s%d, s%d' % (sbase, sbase, sstep)]

def raw_rd(dst, va, off):
    return ['ds_read_b64_tr_b16 v[%d:%d], v%d offset:%d' % (dst, dst + 1, va, off),
            'ds_read_b64_tr_b16 v[%d:%d], v%d offset:%d' % (dst + 2, dst + 3, va, off + 512)]

RW_D, RW_A = 94, 95
def load_w_issue(a, u, lds0, half):
    if half == 0:
        raw_setup(a, u, u, S_IN2, 68, 69, RW_D)
        a('s_and_b32 s70, s%d, 3' % S_W)
        a('s_lshl_b32 s70, s70, 13')
        a('s_add_u32 s70, s70, %d' % lds0)
        raw_rdaddr(a, RW_A, 70)
    for k in range(8):
        for l in raw_dma(S_IN2, 68, 69, RW_D, 70, k * 1024): a(l)

def load_w_read(a, vbase, half):
    for k in range(8):
        for l in raw_rd(vbase + 4 * (8 * half + k), RW_A, k * 1024): a(l)
    a('s_waitcnt lgkmcnt(0)')

def load_w_sync(a, u, vbase, lds0):
    for half in range(2):
        load_w_issue(a, u, lds0, half)
        a('s_waitcnt vmcnt(0)')
        load_w_read(a, vbase, half)

def load_w_ring(a, u, vbase, nslots):
    raw_setup(a, u, u, S_IN2, 68, 69, RW_D)
    raw_rdaddr(a, RW_A, 70)
    for k in range(nslots):
        for l in raw_dma(S_IN2, 68, 69, RW_D, 70, k * 1024): a(l)
    for k in range(16):
        a('s_waitcnt vmcnt(%d)' % min(nslots - 1, 15 - k))
        for l in raw_rd(vbase + 4 * k, RW_A, (k % nslots) * 1024): a(l)
        if k + nslots < 16:
            a('s_waitcnt lgkmcnt(0)')
            for l in raw_dma(S_IN2, 68, 69, RW_D, 70, (k % nslots) * 1024): a(l)
    a('s_waitcnt lgkmcnt(0)')

LDS_W16 = 135168
def dma_w16(a):
    a('s_cmp_eq_u32 s%d, 1' % S_WHICH)
    a('s_cselect_b32 s%d, s52, s50' % S_IN2)
    a('s_cselect_b32 s%d, s53, s51' % (S_IN2 + 1))
    a('s_mov_b32 s%d, 0x4000' % (S_IN2 + 2))
    a('s_mov_b32 s%d, 0x00020000' % (S_IN2 + 3))
    a('s_and_b32 s%d, s%d, 3' % (S_T0, S_W))
    a('s_lshl_b32 s%d, s%d, 12' % (S_T0, S_T0))
    a('s_add_u32 m0, s%d, %d' % (S_T0, LDS_W16))
    a('s_nop 0')
    for k in range(4):
        a('buffer_load_dwordx4 v%d, s[%d:%d], s%d offen offset:%d lds' % (V_L16, S_IN2, S_IN2 + 3, S_T0, k * 1024))

STL = 88
SDG, SDL = 84, 85
def dma_setup(a, all8):
    a('s_lshl_b32 s%d, s%d, 15' % (SDL, S_I))
    a('s_lshl_b32 s%d, s%d, 14' % (S_T2, S_J))
    a('s_add_u32 s%d, s%d, s%d' % (SDL, SDL, S_T2))
    if all8:
        a('s_lshl_b32 s%d, s%d, 11' % (S_T2, S_KH))
        a('s_add_u32 s%d, s%d, s%d' % (SDL, SDL, S_T2))
    a('s_add_u32 s%d, s%d, s%d' % (SDG, S_TOFF, S_XOFF))
    a('s_add_u32 s%d, s%d, s%d' % (SDG, SDG, SDL))

def dma_chunk(a, n):
    a('s_mov_b32 m0, s%d' % SDL)
    a('s_add_u32 s%d, s%d, 4096' % (SDL, SDL))
    for t in range(n):
        a('buffer_load_dwordx4 v%d, %s, s%d offen offset:%d sc1 lds' % (V_L16, WSR, SDG, t * 1024))
    a('s_add_u32 s%d, s%d, 4096' % (SDG, SDG))

def st_issue(a, all8):
    n = 4 if all8 else 8
    a('v_lshlrev_b32 v5, 3, v%d' % V_LANE)
    a('s_lshr_b32 s%d, s%d, 2' % (S_T0, S_XOFF))
    if all8: a('s_lshl_b32 s%d, s%d, 11' % (S_T1, S_W))
    else:
        a('s_and_b32 s%d, s%d, 3' % (S_T1, S_W))
        a('s_lshl_b32 s%d, s%d, 12' % (S_T1, S_T1))
    a('s_add_u32 s%d, s%d, s%d' % (S_T0, S_T0, S_T1))
    a('s_add_u32 s%d, s%d, s%d' % (S_T0, S_T0, S_SOFF))
    for q in range(n):
        a('buffer_load_dwordx2 v[%d:%d], v5, %s, s%d offen offset:%d sc1' % (80 + 2 * q, 81 + 2 * q, WSR, S_T0, q * 512))

def st_partial(a, all8):
    T = 80; n = 4 if all8 else 8
    while n > 1:
        n //= 2
        for q in range(n): pk_add(a, T + 2 * q, T + 2 * q, T + 2 * (q + n))
    if all8: a('s_lshl_b32 s%d, s%d, 9' % (S_T0, S_W))
    else:
        a('s_and_b32 s%d, s%d, 3' % (S_T0, S_W))
        a('s_lshl_b32 s%d, s%d, 9' % (S_T0, S_T0))
    a('s_add_u32 s%d, s%d, %d' % (S_T0, S_T0, LM_STD.stat))
    a('v_lshlrev_b32 v5, 3, v%d' % V_LANE)
    a('v_add_u32 v5, s%d, v5' % S_T0)
    a('ds_write_b64 v5, v[%d:%d]' % (T, T + 1))
    a('s_waitcnt lgkmcnt(0)')

def rs_issue(a, stat, nparts, T=80):
    a('v_lshlrev_b32 v5, 3, v%d' % V_LANE)
    a('v_add_u32 v5, %d, v5' % stat)
    for q in range(nparts // 2):
        a('ds_read2st64_b64 %s, v5 offset0:%d offset1:%d' % (vr(T + 4 * q), 2 * q, 2 * q + 1))

def rs_math(a, nparts, T=80):
    n = nparts
    while n > 2:
        n //= 2
        for q in range(n): pk_add(a, T + 2 * q, T + 2 * q, T + 2 * (q + n))
    pk_add(a, VM, T, T + 2)
    stats_math(a, VM, VR)

def rs_spread(a, frags):
    a('v_mov_b32 v8, v%d' % VM)
    a('v_mov_b32 v9, v%d' % VR)
    a('s_cmp_eq_u32 s%d, 1' % S_I)
    a('s_cselect_b64 s[%d:%d], -1, 0' % (S_T2, S_T3))
    a('v_permlane32_swap_b32 v%d, v8' % VM)
    a('v_permlane32_swap_b32 v%d, v9' % VR)
    a('s_nop 1')
    a('v_cndmask_b32_e64 v%d, v%d, v9, s[%d:%d]' % (VR, VR, S_T2, S_T3))
    if frags:
        a('v_cndmask_b32_e64 v9, v%d, v8, s[%d:%d]' % (VM, S_T2, S_T3))
        a('v_cndmask_b32_e64 v8, v8, v%d, s[%d:%d]' % (VM, S_T2, S_T3))
        make_mfrag(a, 9, V_MF)
        make_mfrag(a, 8, V_MF + 4)

def toggle_bufs(a, stats):
    next_tile(a)
    if stats: a('s_xor_b32 s%d, s%d, 0x%x' % (S_SOFF, S_SOFF, STP ^ (STP + 0x80000)))

def tsb(a):
    if E('TSB'): ts(a)

def loader_path(a, stats, extra=None, hook=None):
    nx = 4 if extra else 0
    cwait(a)
    tsb(a)
    dma_setup(a, False)
    dma_chunk(a, 4)
    dma_chunk(a, 4)
    a('s_waitcnt vmcnt(4)')
    a('s_barrier')
    tsb(a)
    dma_chunk(a, 4)
    if hook: hook('pre')
    a('s_waitcnt vmcnt(4)')
    a('s_barrier')
    tsb(a)
    dma_chunk(a, 4)
    if extra: extra()
    a('s_waitcnt vmcnt(%d)' % (4 + nx))
    a('s_barrier')
    tsb(a)
    if stats:
        rs_issue(a, LM_STD.stat, 4)
    a('s_waitcnt vmcnt(%d)' % nx)
    a('s_barrier')
    tsb(a)
    if hook: hook('main')
    elif stats:
        a('s_waitcnt lgkmcnt(0)')
        rs_math(a, 4)
    if stats: rs_spread(a, False)
    if extra: a('s_waitcnt vmcnt(0)')

def active_path(a, w, stats, all8=False):
    def rd(t):
        b = XBUF[t % 4]
        a('ds_read_b128 %s, v%d offset:%d' % (vr(b), V_XA, t * 1024))
        a('ds_read_b128 %s, v%d offset:%d' % (vr(b + 4), V_XB, t * 1024))
    np_ = 8 if all8 else 4
    if all8:
        cwait(a)
        dma_setup(a, True)
        dma_chunk(a, 2)
        dma_chunk(a, 2)
        st_issue(a, True)
        a('s_waitcnt vmcnt(6)')
    elif stats:
        cwait(a)
        tsb(a)
        st_issue(a, False)
    a('s_barrier')
    tsb(a)
    for t in range(3): rd(t)
    for t in range(16):
        b = XBUF[t % 4]
        if t in (1, 5, 9):
            if all8:
                if t < 9: dma_chunk(a, 2)
                a('s_waitcnt vmcnt(%d)' % {1: 6, 5: 2, 9: 0}[t])
                if t == 5: st_partial(a, True)
            elif stats and t == 5:
                a('s_waitcnt vmcnt(0)')
                st_partial(a, False)
            a('s_barrier')
            tsb(a)
        if t == 6 and stats:
            rs_issue(a, LM_STD.stat, np_)
        if t + 3 < 16:
            rd(t + 3)
        a('s_waitcnt lgkmcnt(%d)' % (2 * min(3, 15 - t)))
        for q, acc in enumerate((ACC0, ACC1)):
            c = '0' if t == 0 else vr(acc, 16)
            a('v_mfma_f32_32x32x16_bf16 %s, %s, %s, %s' % (vr(acc, 16), vr(w + 4 * t), vr(b + 4 * q), c))
        if t == 10 and stats: rs_math(a, np_)
        if t == 11 and stats: rs_spread(a, True)

class ifelse:
    def __init__(s, a): s.a = a; s.L1 = a.newlabel('ie'); s.L2 = a.newlabel('ie')
    def if_set(s, k):
        s.a('s_cmp_lg_u32 s%d, %d' % (S_KH, k)); s.a('s_cbranch_scc1 %s' % s.L1)
    def else_(s):
        s.a('s_branch %s' % s.L2); s.a.label(s.L1)
    def end(s): s.a.label(s.L2)

def kloop(a, w, t0, t1):
    def rd(t):
        b = XBUF[t % 4]
        a('ds_read_b128 %s, v%d offset:%d' % (vr(b), V_XA, t * 1024))
        a('ds_read_b128 %s, v%d offset:%d' % (vr(b + 4), V_XB, t * 1024))
    for t in range(t0, min(t0 + 3, t1)):
        rd(t)
    for t in range(t0, t1):
        b = XBUF[t % 4]
        if t + 3 < t1:
            rd(t + 3)
        a('s_waitcnt lgkmcnt(%d)' % (2 * min(3, t1 - 1 - t)))
        for q, acc in enumerate((ACC0, ACC1)):
            c = '0' if t == 0 else vr(acc, 16)
            a('v_mfma_f32_32x32x16_bf16 %s, %s, %s, %s' % (vr(acc, 16), vr(w + 4 * t), vr(b + 4 * q), c))

def halves_sum(a, v, tmp, op='v_add_f32'):
    a('v_mov_b32 v%d, v%d' % (tmp, v))
    a('s_nop 1')
    a('v_permlane32_swap_b32 v%d, v%d' % (v, tmp))
    a('s_nop 1')
    a('%s v%d, v%d, v%d' % (op, v, v, tmp))

def bf16r(a, v):
    a('v_cvt_pk_bf16_f32 v%d, v%d, v%d' % (v, v, v))
    a('v_and_b32 v%d, 0xffff0000, v%d' % (v, v))

def pk_add(a, d, x, y):
    a('v_pk_add_f32 v[%d:%d], v[%d:%d], v[%d:%d]' % (d, d + 1, x, x + 1, y, y + 1))

def stats_math(a, vm, vrstd):
    a('v_mul_f32 v%d, 0x%x, v%d' % (vm, f2u(1.0 / 512), vm))
    a('v_mul_f32 v%d, 0x%x, v%d' % (vrstd, f2u(1.0 / 512), vrstd))
    a('v_fma_f32 v%d, -v%d, v%d, v%d' % (vrstd, vm, vm, vrstd))
    a('v_max_f32 v%d, 0, v%d' % (vrstd, vrstd))
    bf16r(a, vrstd)
    a('v_add_f32 v%d, 0x%x, v%d' % (vrstd, f2u(1e-5), vrstd))
    bf16r(a, vrstd)
    a('v_sqrt_f32 v%d, v%d' % (vrstd, vrstd))
    a('s_nop 0')
    bf16r(a, vrstd)
    a('v_rcp_f32 v%d, v%d' % (vrstd, vrstd))
    bf16r(a, vm)

def stats_read(a, lm, vrow, T, vm=VM):
    a('v_lshlrev_b32 v%d, 3, v%d' % (vrow, vrow))
    a('v_add_u32 v%d, %d, v%d' % (vrow, lm.stat, vrow))
    for q in range(4):
        a('ds_read2st64_b64 %s, v%d offset0:%d offset1:%d' % (vr(T + 4 * q), vrow, 2 * q, 2 * q + 1))
    a('s_waitcnt lgkmcnt(0)')
    for q in range(4):
        pk_add(a, T + 4 * q, T + 4 * q, T + 4 * q + 2)
    pk_add(a, T, T, T + 4)
    pk_add(a, T + 8, T + 8, T + 12)
    pk_add(a, vm, T, T + 8)
    stats_math(a, vm, vm + 1)

def ln_stats(a, lm, T=V_TMP):
    a('v_and_b32 v5, 31, v%d' % V_LANE)
    a('s_lshl_b32 s%d, s%d, 5' % (S_T0, S_I))
    a('v_add_u32 v5, s%d, v5' % S_T0)
    stats_read(a, lm, 5, T)

def make_mfrag(a, vm, d):
    a('v_cvt_pk_bf16_f32 v%d, -v%d, -v%d' % (d, vm, vm))
    a('v_cvt_pk_bf16_f32 v%d, -v%d, -v%d' % (d + 1, vm, vm))
    a('v_mov_b32 v%d, 0' % (d + 2))
    a('v_mov_b32 v%d, 0' % (d + 3))

def mean_issue(a, lm):
    T = V_ACC + 40
    a('v_and_b32 v5, 31, v%d' % V_LANE)
    a('v_lshlrev_b32 v5, 3, v5')
    a('s_lshl_b32 s%d, s%d, 8' % (S_T0, S_I))
    a('s_add_u32 s%d, s%d, %d' % (S_T0, S_T0, lm.stat))
    a('v_add_u32 v5, s%d, v5' % S_T0)
    a('v_xor_b32 v6, 256, v5')
    for q in range(2):
        for k in range(4):
            a('ds_read2st64_b32 v[%d:%d], v%d offset0:%d offset1:%d' % (T + 8 * q + 2 * k, T + 8 * q + 2 * k + 1, 5 + q, 4 * k, 4 * k + 2))

def mean_finish(a):
    T = V_ACC + 40
    for q in range(2):
        t = T + 8 * q
        pk_add(a, t, t, t + 2)
        pk_add(a, t + 4, t + 4, t + 6)
        pk_add(a, t, t, t + 4)
        a('v_add_f32 v%d, v%d, v%d' % (t, t, t + 1))
        a('v_mul_f32 v%d, 0x%x, v%d' % (t, f2u(1.0 / 512), t))
        make_mfrag(a, t, V_MF + 4 * q)
    a('s_nop 1')

def mean_frags(a, lm):
    mean_issue(a, lm)
    a('s_waitcnt lgkmcnt(0)')
    mean_finish(a)

def stats_load_issue(a, T=V_TMP, tag=None):
    a('v_lshlrev_b32 v5, 3, v%d' % V_LANE)
    a('s_lshr_b32 s%d, s%d, 2' % (S_T0, S_XOFF))
    a('s_lshl_b32 s%d, s%d, 11' % (S_T1, S_W))
    a('s_add_u32 s%d, s%d, s%d' % (S_T0, S_T0, S_T1))
    a('s_add_u32 s%d, s%d, s%d' % (S_T0, S_T0, S_SOFF))
    for q in range(4):
        a.v(tag, 'buffer_load_dwordx2 v[%d:%d], v5, %s, s%d offen offset:%d sc1' % (T + 2 * q, T + 2 * q + 1, WSR, S_T0, q * 512))

def stats_load_finish(a, lm, T=V_TMP):
    pk_add(a, T, T, T + 2)
    pk_add(a, T + 4, T + 4, T + 6)
    pk_add(a, T, T, T + 4)
    a('s_lshl_b32 s%d, s%d, 9' % (S_T0, S_W))
    a('s_add_u32 s%d, s%d, %d' % (S_T0, S_T0, lm.stat))
    a('v_lshlrev_b32 v5, 3, v%d' % V_LANE)
    a('v_add_u32 v5, s%d, v5' % S_T0)
    a('ds_write_b64 v5, v[%d:%d]' % (T, T + 1))
    a('s_xor_b32 s%d, s%d, 0x%x' % (S_SOFF, S_SOFF, STP ^ (STP + 0x80000)))

def make_csfrag(a, vc, d, t):
    a('v_cvt_pk_bf16_f32 v%d, v%d, v%d' % (t, vc, vc))
    a('v_and_b32 v%d, 0xffff0000, v%d' % (t, t))
    a('v_sub_f32 v%d, v%d, v%d' % (t + 1, vc, t))
    a('v_cvt_pk_bf16_f32 v%d, v%d, v%d' % (d, t, t + 1))
    a('v_and_b32 v%d, 0xffff0000, v%d' % (t, d))
    a('v_sub_f32 v%d, v%d, v%d' % (t + 1, t + 1, t))
    a('v_cvt_pk_bf16_f32 v%d, v%d, 0' % (d + 1, t + 1))

def y_correct(a, cf):
    for q, acc in enumerate((ACC0, ACC1)):
        a('v_mfma_f32_32x32x16_bf16 %s, %s, %s, %s' % (vr(acc, 16), vr(cf), vr(V_MF + 4 * q), vr(acc, 16)))

def y_red_write(a, base, own):
    a('s_lshl_b32 s%d, s%d, 13' % (S_T0, S_J))
    a('s_mul_i32 s%d, s%d, 6144' % (S_T1, S_I))
    a('s_add_u32 s%d, s%d, s%d' % (S_T0, S_T0, S_T1))
    a('s_add_u32 s%d, s%d, %d' % (S_T0, S_T0, base))
    a('v_add_u32 v5, s%d, v%d' % (S_T0, V_L16))
    a('v_xor_b32 v6, 4096, v5')
    a.nop(7)
    for q, acc in enumerate((ACC0, ACC1)):
        for nh in range(2):
            if q == 0 and nh == own: continue
            a('ds_write_b128 v%d, %s offset:%d' % (5 + q, vr(acc + 8 * nh), nh * 16384))
            a('ds_write_b128 v%d, %s offset:%d' % (5 + q, vr(acc + 8 * nh + 4), nh * 16384 + 1024))

def y_red_read(a, base, own):
    d = V_ACC
    a('s_lshl_b32 s%d, s%d, 12' % (S_T0, S_W))
    a('s_add_u32 s%d, s%d, %d' % (S_T0, S_T0, base))
    a('v_add_u32 v5, s%d, v%d' % (S_T0, V_L16))
    L1 = a.newlabel('rr'); L2 = a.newlabel('rr')
    a('s_cmp_eq_u32 s%d, %d' % (S_KH, own))
    a('s_cbranch_scc1 %s' % L1)
    for k in range(4):
        a('ds_read_b128 %s, v5 offset:%d' % (vr(d + 4 * k), k * 1024))
    a('s_waitcnt lgkmcnt(0)')
    for r in range(0, 8, 2):
        pk_add(a, d + r, d + r, d + 8 + r)
    a('s_branch %s' % L2)
    a.label(L1)
    a('s_xor_b32 s%d, s%d, 1' % (S_T0, S_I))
    a('s_lshl_b32 s%d, s%d, 11' % (S_T0, S_T0))
    a('v_add_u32 v5, s%d, v5' % S_T0)
    a('ds_read_b128 %s, v5' % vr(ACC1))
    a('ds_read_b128 %s, v5 offset:1024' % vr(ACC1 + 4))
    a('s_waitcnt lgkmcnt(0)')
    for r in range(0, 8, 2):
        pk_add(a, d + r, ACC0 + 8 * own + r, ACC1 + r)
    a.label(L2)

def kv_red_write(a, base):
    a('s_xor_b32 s%d, s%d, 1' % (S_T0, S_W))
    a('s_lshl_b32 s%d, s%d, 12' % (S_T0, S_T0))
    a('s_add_u32 s%d, s%d, %d' % (S_T0, S_T0, base))
    a('v_add_u32 v5, s%d, v%d' % (S_T0, V_L16))
    a.nop(9)
    for k in range(4):
        a('ds_write_b128 v5, %s offset:%d' % (vr(ACC1 + 4 * k), k * 1024))

def barrier(a):
    a('s_waitcnt lgkmcnt(0)')
    a('s_barrier')

def phi_pack(a, acc, dst, tl=9, tmp=None, n=8):
    if tmp is None: tmp = acc + 8
    a('v_mul_f32 v%d, 0x%x, v%d' % (tl, f2u(LOG2E), VR))
    for r in range(n):
        a('v_mul_f32 v%d, v%d, v%d' % (tmp + r, acc + r, tl))
    for r in range(n):
        a('v_exp_f32_e64 v%d, v%d clamp' % (tmp + r, tmp + r))
    for r in range(n):
        a('v_fmaak_f32 v%d, v%d, v%d, 0x%x' % (acc + r, acc + r, VR, f2u(1e-6)))
        a('v_max_f32 v%d, 0x%x, v%d' % (acc + r, f2u(1e-6), acc + r))
    for r in range(0, n, 2):
        pk_add(a, acc + r, acc + r, tmp + r)
    for r in range(n // 2):
        a('v_cvt_pk_bf16_f32 v%d, v%d, v%d' % (dst + r, acc + 2 * r, acc + 2 * r + 1))

def scale_pack(a, acc, vs, dst, n=8):
    for r in range(n):
        a('v_mul_f32 v%d, v%d, v%d' % (acc + r, acc + r, vs))
    for r in range(n // 2):
        a('v_cvt_pk_bf16_f32 v%d, v%d, v%d' % (dst + r, acc + 2 * r, acc + 2 * r + 1))

def store_blk(a, v):
    a('s_add_u32 s%d, s%d, s%d' % (S_T0, S_BLK, S_TOFF))
    fast_store(a, ['buffer_store_dwordx4 %s, v%d, %s, s%d offen@' % (vr(v), V_L16, WSR, S_T0)])

def store_stats(a, tag=None):
    a('v_mov_b32 v6, 0')
    a('v_mov_b32 v7, 0')
    a('s_nop 0')
    for r in range(4):
        a('v_dot2_f32_bf16 v6, v%d, v%d, v6' % (V_RES + r, V_ONES))
        a('v_dot2_f32_bf16 v7, v%d, v%d, v7' % (V_RES + r, V_RES + r))
    a('s_bfe_u32 s%d, s%d, 0x5000a' % (S_T0, S_BLK))
    a('s_lshl_b32 s%d, s%d, 9' % (S_T0, S_T0))
    a('s_lshr_b32 s%d, s%d, 2' % (S_T1, S_XOFF))
    a('s_add_u32 s%d, s%d, s%d' % (S_T0, S_T0, S_T1))
    a('s_lshl_b32 s%d, s%d, 8' % (S_T1, S_I))
    a('s_add_u32 s%d, s%d, s%d' % (S_T0, S_T0, S_T1))
    a('s_add_u32 s%d, s%d, s%d' % (S_T0, S_T0, S_SOFF))
    a('v_mov_b32 v8, v6')
    a('v_mov_b32 v9, v7')
    a('v_lshlrev_b32 v5, 3, v%d' % V_LANE)
    a('s_nop 0')
    a('v_permlane32_swap_b32 v6, v8')
    a('v_permlane32_swap_b32 v7, v9')
    a('s_nop 1')
    a('v_pk_add_f32 v[6:7], v[6:7], v[8:9]')
    a('s_mov_b32 exec_hi, 0')
    fast_store(a, ['buffer_store_dwordx2 v[6:7], v5, %s, s%d offen@' % (WSR, S_T0)])
    a('s_mov_b32 exec_hi, -1')
    if tag: a.vm.append(tag)

def store_x(a):
    store_blk(a, V_RES)
    store_stats(a)

def a1_kv_owner(a, lm):
    a('s_lshl_b32 s%d, s%d, 12' % (S_T0, S_W))
    a('s_add_u32 s%d, s%d, %d' % (S_T0, S_T0, lm.red))
    a('v_add_u32 v5, s%d, v%d' % (S_T0, V_L16))
    for k in range(4):
        a('ds_read_b128 %s, v5 offset:%d' % (vr(ACC1 + 4 * k), k * 1024))
    a('s_lshl_b32 s%d, s%d, 12' % (S_T0, S_J))
    a('s_lshl_b32 s%d, s%d, 13' % (S_T1, S_KH))
    a('s_add_u32 s%d, s%d, s%d' % (S_T0, S_T0, S_T1))
    a('s_lshl_b32 s%d, s%d, 10' % (S_T1, S_I))
    a('s_add_u32 s%d, s%d, s%d' % (S_T0, S_T0, S_T1))
    a('s_add_u32 s%d, s%d, %d' % (S_T0, S_T0, lm.pkv))
    a('v_and_b32 v7, 31, v%d' % V_LANE)
    a('v_lshlrev_b32 v7, 5, v7')
    a('v_lshrrev_b32 v6, 5, v%d' % V_LANE)
    a('v_lshl_add_u32 v7, v6, 4, v7')
    a('v_add_u32 v7, s%d, v7' % S_T0)
    a('s_waitcnt lgkmcnt(0)')
    for r in range(0, 16, 2):
        pk_add(a, ACC0 + r, ACC0 + r, ACC1 + r)
    with role(a, 'A'):
        phi_pack(a, ACC0, V_XF, tmp=ACC1, n=16)
    with role(a, 'B'):
        scale_pack(a, ACC0, VR, V_XF, n=16)
    a('ds_write_b128 v7, %s' % vr(V_XF))
    a('ds_write_b128 v7, %s offset:2048' % vr(V_XF + 4))
    barrier(a)

def head_addrs(a):
    a('s_lshl_b32 s%d, s%d, 2' % (S_T2, S_CS))
    a('s_add_u32 s%d, s%d, s%d' % (S_T2, S_T2, S_W))
    a('s_lshl_b32 s%d, s%d, 14' % (S_T3, S_T2))
    a('s_add_u32 s%d, s%d, s%d' % (S_T3, S_T3, S_LOFF))
    a('s_add_u32 s%d, s%d, 0x%x' % (S_T3, S_T3, KVP_))
    a('s_lshl_b32 s%d, s%d, 11' % (S_T4, S_T2))
    a('s_add_u32 s%d, s%d, s%d' % (S_T4, S_T4, S_LOFF))
    a('s_add_u32 s%d, s%d, 0x%x' % (S_T4, S_T4, ZP_))
    a('s_lshl_b32 s%d, s%d, 12' % (S_T5, S_T2))
    a('s_add_u32 s%d, s%d, 0x%x' % (S_T5, S_T5, HFLAG))

def hello(a):
    head_addrs(a)
    a('s_mov_b32 s64, 1')
    tagval(a, 8, 64)
    a('s_lshl_b32 s%d, s%d, 7' % (S_T0, S_RB))
    a('s_add_u32 s%d, s%d, s%d' % (S_T0, S_T0, S_T5))
    a('v_mov_b32 v5, 0')
    a('s_mov_b64 exec, 1')
    a('buffer_store_dwordx2 v[8:9], v5, %s, s%d offen sc1' % (WSR, S_T0))
    a('s_mov_b64 exec, -1')

def kv_publish(a, lm, first):
    PA, PB, D, D2, ON = V_XF, V_XF + 8, V_ACC, V_ACC + 4, V_ACC + 8
    a('v_lshrrev_b32 v5, 4, v%d' % V_LANE)
    a('v_lshlrev_b32 v5, 8, v5')
    a('v_bfe_u32 v6, v%d, 2, 2' % V_LANE)
    a('v_lshl_add_u32 v5, v6, 5, v5')
    a('v_and_b32 v6, 1, v%d' % V_LANE)
    a('v_lshl_add_u32 v5, v6, 4, v5')
    a('v_bfe_u32 v6, v%d, 1, 1' % V_LANE)
    a('v_lshl_add_u32 v5, v6, 3, v5')
    a('s_lshl_b32 s%d, s%d, 11' % (S_T0, S_W))
    a('s_add_u32 s%d, s%d, %d' % (S_T0, S_T0, lm.pkv))
    a('v_add_u32 v5, s%d, v5' % S_T0)
    for sl in range(2):
        for u in range(2):
            a('ds_read_b64_tr_b16 v[%d:%d], v5 offset:%d' % (PA + 4 * sl + 2 * u, PA + 4 * sl + 2 * u + 1, sl * 1024 + u * 128))
            a('ds_read_b64_tr_b16 v[%d:%d], v5 offset:%d' % (PB + 4 * sl + 2 * u, PB + 4 * sl + 2 * u + 1, 8192 + sl * 1024 + u * 128))
    for r in range(4):
        a('v_mov_b32 v%d, v%d' % (ON + r, V_ONES))
    head_addrs(a)
    a('s_waitcnt lgkmcnt(0)')
    a('v_mfma_f32_16x16x32_bf16 %s, %s, %s, 0' % (vr(D), vr(PA), vr(PB)))
    a('v_mfma_f32_16x16x32_bf16 %s, %s, %s, 0' % (vr(D2), vr(PA), vr(ON)))
    a('v_mfma_f32_16x16x32_bf16 %s, %s, %s, %s' % (vr(D), vr(PA + 4), vr(PB + 4), vr(D)))
    a('v_mfma_f32_16x16x32_bf16 %s, %s, %s, %s' % (vr(D2), vr(PA + 4), vr(ON), vr(D2)))
    a('s_lshl_b32 s%d, s%d, 9' % (S_T0, S_RB))
    a('s_add_u32 s%d, s%d, s%d' % (S_T0, S_T0, S_T3))
    a('s_lshl_b32 s%d, s%d, 6' % (S_T1, S_RB))
    a('s_add_u32 s%d, s%d, s%d' % (S_T1, S_T1, S_T4))
    a('v_and_b32 v6, 48, v%d' % V_LANE)
    a('v_lshlrev_b32 v5, 3, v%d' % V_LANE)
    a('s_nop 2')
    a('v_cvt_pk_bf16_f32 v%d, v%d, v%d' % (D, D, D + 1))
    a('v_cvt_pk_bf16_f32 v%d, v%d, v%d' % (D + 1, D + 2, D + 3))
    for r in (0, 1, 4, 5, 6, 7):
        a('v_min_u32 v%d, -2, v%d' % (D + r, D + r))
    a('buffer_store_dwordx2 v[%d:%d], v5, %s, s%d offen sc1' % (D, D + 1, WSR, S_T0))
    a('s_mov_b32 exec_lo, 0x00010001')
    a('s_mov_b32 exec_hi, 0x00010001')
    a('buffer_store_dwordx4 %s, v6, %s, s%d offen sc1' % (vr(D2), WSR, S_T1))
    a('s_mov_b64 exec, -1')
    ts2(a)
    if first:
        a('s_mov_b32 s64, 1')
        tagbase(a, 65, 64)
        a('v_and_b32 v5, 31, v%d' % V_LANE)
        a('v_lshlrev_b32 v5, 7, v5')
        poll(a, ['buffer_load_dwordx2 v[8:9], v5, %s, s%d offen sc1' % (WSR, S_T5)], tagcmp([8], 65, 7))
    else:
        load_w_issue(a, U_OA, lm.wst, 0)
        a('s_waitcnt vmcnt(0)')
        load_w_read(a, V_W0, 0)
        load_w_issue(a, U_OA, lm.wst, 1)

def kv_gather(a, lm, first, mid):
    head_addrs(a)
    a('s_mov_b32 s71, s%d' % S_T3)
    ZR = V_TMP
    a('v_and_b32 v6, 48, v%d' % V_LANE)
    a('v_and_b32 v5, 15, v%d' % V_LANE)
    a('v_lshl_add_u32 v5, v5, 6, v6')
    poll(a, ['buffer_load_dwordx4 %s, v5, %s, s%d offen sc1' % (vr(ZR), WSR, S_T4),
             'buffer_load_dwordx4 %s, v5, %s, s%d offen offset:1024 sc1' % (vr(ZR + 4), WSR, S_T4)],
         ['v_max3_u32 v7, v%d, v%d, v%d' % (ZR, ZR + 1, ZR + 2), 'v_max3_u32 v8, v%d, v%d, v%d' % (ZR + 3, ZR + 4, ZR + 5),
          'v_max3_u32 v7, v7, v%d, v%d' % (ZR + 6, ZR + 7), 'v_max_u32 v7, v7, v8', 'v_cmp_eq_u32 vcc, -1, v7'])
    ts2(a)
    G = [V_W1 + 4 * k for k in range(16)]
    AC = V_ACC
    SEL = V_ACC + 8
    Lg = a.newlabel('gat')
    a('s_mov_b32 s86, 0')
    a('s_mov_b32 s87, 0')
    a.label(Lg)
    a('s_add_u32 s87, s87, 1')
    a('s_cmp_gt_u32 s87, %d' % SPIN_MAX)
    a('s_cbranch_scc1 L_end')
    a('s_mov_b32 s%d, s71' % S_T0)
    for k in range(16):
        if k and k % 4 == 0:
            a('s_add_u32 s%d, s%d, 4096' % (S_T0, S_T0))
        a('buffer_load_dwordx4 %s, v%d, %s, s%d offen offset:%d sc1' % (vr(G[k]), V_L16, WSR, S_T0, (k % 4) * 1024))
    Ls = a.newlabel('gs')
    a('s_cmp_lg_u32 s86, 0')
    a('s_cbranch_scc1 %s' % Ls)
    a('s_mov_b32 s86, 1')
    if first:
        mid()
    a('s_branch %s_j' % Ls)
    a.label(Ls)
    a('s_waitcnt vmcnt(0)')
    a.label(Ls + '_j')
    nx = 8 if first else 0
    Z2 = V_TMP + 8
    pk_add(a, Z2, ZR, ZR + 4)
    pk_add(a, Z2 + 2, ZR + 2, ZR + 6)
    for sh in (8, 4, 2, 1):
        a('s_nop 1')
        for r in range(4):
            a('v_add_f32_dpp v%d, v%d, v%d row_ror:%d row_mask:0xf bank_mask:0xf' % (Z2 + r, Z2 + r, Z2 + r, sh))
    a('v_cvt_pk_bf16_f32 v%d, v%d, v%d' % (Z2, Z2, Z2 + 1))
    a('v_cvt_pk_bf16_f32 v%d, v%d, v%d' % (Z2 + 1, Z2 + 2, Z2 + 3))
    a('s_mov_b32 s%d, 0x00110011' % S_T0)
    a('s_mov_b32 s%d, 0x00110011' % S_T1)
    a('v_cndmask_b32_e64 v%d, 0, v%d, s[%d:%d]' % (Z2, Z2, S_T0, S_T1))
    a('v_cndmask_b32_e64 v%d, 0, v%d, s[%d:%d]' % (Z2 + 1, Z2 + 1, S_T0, S_T1))
    a('v_and_b32 v5, 15, v%d' % V_LANE)
    a('v_lshlrev_b32 v5, 4, v5')
    a('v_bfe_u32 v6, v%d, 4, 1' % V_LANE)
    a('v_lshl_add_u32 v5, v6, 9, v5')
    a('v_lshrrev_b32 v6, 5, v%d' % V_LANE)
    a('v_lshl_add_u32 v5, v6, 3, v5')
    a('s_lshl_b32 s%d, s%d, 11' % (S_T0, S_W))
    a('s_add_u32 s%d, s%d, %d' % (S_T0, S_T0, lm.pkv))
    a('v_add_u32 v5, s%d, v5' % S_T0)
    a('ds_write_b64 v5, v[%d:%d] offset:256' % (Z2, Z2 + 1))
    a('v_and_b32 v5, 7, v%d' % V_LANE)
    a('v_lshlrev_b32 v5, 5, v5')
    a('v_bfe_u32 v6, v%d, 3, 1' % V_LANE)
    a('v_lshl_add_u32 v5, v6, 9, v5')
    a('v_bfe_u32 v6, v%d, 4, 1' % V_LANE)
    a('v_lshl_add_u32 v5, v6, 3, v5')
    a('v_add_u32 v5, s%d, v5' % S_T0)
    a('v_mov_b32 v7, 0')
    a('v_mov_b32 v%d, 0x00003f80' % SEL)
    a('v_mov_b32 v%d, 0x3f800000' % (SEL + 1))
    for r in range(8): a('v_mov_b32 v%d, 0' % (AC + r))
    for k in range(16):
        a('s_waitcnt vmcnt(%d)' % (15 - k + nx))
        g = G[k]
        a('v_max3_u32 v7, v7, v%d, v%d' % (g, g + 1))
        a('v_max3_u32 v7, v7, v%d, v%d' % (g + 2, g + 3))
        for r in range(4):
            a('v_dot2_f32_bf16 v%d, v%d, v%d, v%d' % (AC + 2 * r, g + r, SEL, AC + 2 * r))
            a('v_dot2_f32_bf16 v%d, v%d, v%d, v%d' % (AC + 2 * r + 1, g + r, SEL + 1, AC + 2 * r + 1))
    a('v_cmp_eq_u32 vcc, -1, v7')
    a('s_cbranch_vccnz %s' % Lg)
    a('s_nop 1')
    for r in range(8): a('v_mov_b32 v%d, v%d' % (AC + 16 + r, AC + r))
    a('s_nop 1')
    for r in range(8): a('v_permlane32_swap_b32 v%d, v%d' % (AC + r, AC + 16 + r))
    a('s_nop 1')
    for r in range(0, 8, 2): pk_add(a, AC + r, AC + r, AC + 16 + r)
    for r in range(4):
        a('v_cvt_pk_bf16_f32 v%d, v%d, v%d' % (AC + r, AC + 2 * r, AC + 2 * r + 1))
    a('ds_write_b64 v5, v[%d:%d]' % (AC, AC + 1))
    a('ds_write_b64 v5, v[%d:%d] offset:16' % (AC + 2, AC + 3))
    if first:
        a('s_waitcnt vmcnt(0)')
        load_w_read(a, V_W0, 0)
        load_w_issue(a, U_OA, lm.wst, 1)

def a1_pq(a, lm):
    y_red_read(a, lm.redq, 1)
    phi_pack(a, V_ACC, V_PQ)

def a1_finish(a, lm):
    a('s_lshl_b32 s%d, s%d, 1' % (S_T0, S_J))
    a('s_add_u32 s%d, s%d, s%d' % (S_T0, S_T0, S_KH))
    a('s_lshl_b32 s%d, s%d, 11' % (S_T0, S_T0))
    a('s_add_u32 s%d, s%d, %d' % (S_T0, S_T0, lm.pkv))
    a('v_add_u32 v6, s%d, v%d' % (S_T0, V_L16))
    a('ds_read_b128 %s, v6' % vr(V_XF + 4))
    a('s_waitcnt lgkmcnt(0)')
    N = V_ACC + 16
    a('v_mfma_f32_32x32x16_bf16 %s, %s, %s, 0' % (vr(N, 16), vr(V_XF + 4), vr(V_PQ)))
    a.nop(12)
    a('v_add_f32 v8, 0x%x, v%d' % (f2u(1e-6), N + 8))
    a('v_rcp_f32 v8, v8')
    a('s_nop 0')
    scale_pack(a, N, 8, V_XF + 8)
    store_blk(a, V_XF + 8)
    csignal(a)

def a1_tail(a, lm, first, qpass, ringbase):
    def mid(isA):
        barrier(a)
        if first:
            a.vreset()
            p1_probe(a)
            if isA:
                load_w_issue(a, U_OA, lm.wst, 0)
                a.vm += ['oa'] * 8
        a1_pq(a, lm)
        if first:
            p1_check(a)
    ie = ifelse(a)
    ie.if_set(1)
    qpass()
    y_red_write(a, lm.redq, 1)
    mid(False)
    ringbase()
    if first:
        colsum(a, V_W1, 9)
        make_csfrag(a, 9, V_CF2, 6)
    ie.else_()
    kv_publish(a, lm, first)
    if not first: mid(True)
    kv_gather(a, lm, first, lambda: mid(True))
    ie.end()
    barrier(a)
    ts2(a)
    a1_finish(a, lm)
    with role(a, 'A'):
        load_w_read(a, V_W0, 1)

def a1_std(a):
    lm = LM_STD
    active_path(a, V_W1, True, True)
    toggle_bufs(a, True)
    y_correct(a, V_CF1)
    kv_red_write(a, lm.red)
    barrier(a)
    ts2(a)
    a1_kv_owner(a, lm)
    ts2(a)
    def qpass():
        kloop(a, V_W0, 0, 16)
        y_correct(a, V_CF0)
    def ring():
        a('s_and_b32 s70, s%d, 3' % S_W)
        a('s_lshl_b32 s70, s70, 14')
        load_w_ring(a, U_WQ, V_W1, 16)
    a1_tail(a, lm, False, qpass, ring)

def warm2(a, vd, vt, tag=None, qcols=False):
    R = 64
    a('s_lshr_b32 s%d, s2, 3' % S_T2)
    a('s_lshl_b32 s%d, s%d, 3' % (S_T2, S_T2))
    a('s_add_u32 s%d, s%d, s%d' % (S_T2, S_T2, S_W))
    a('v_lshlrev_b32 v%d, 7, v%d' % (vt, V_LANE))
    a('s_lshr_b32 s%d, s%d, 6' % (S_T1, S_T2))
    a('s_mov_b32 s%d, s44\ns_mov_b32 s%d, s45\ns_mov_b32 s%d, 0x80000\ns_mov_b32 s%d, 0x00020000' % (R, R + 1, R + 2, R + 3))
    for (k, p) in ((1, 48), (2, 54), (3, 50)):
        a('s_cmp_eq_u32 s%d, %d' % (S_T1, k))
        a('s_cselect_b32 s%d, s%d, s%d' % (R, p, R))
        a('s_cselect_b32 s%d, s%d, s%d' % (R + 1, p + 1, R + 1))
    a('s_cselect_b32 s%d, 0x4000, s%d' % (R + 2, R + 2))
    a('s_cmp_ge_u32 s%d, 224' % S_T2)
    a('s_cselect_b32 s%d, s52, s%d' % (R, R))
    a('s_cselect_b32 s%d, s53, s%d' % (R + 1, R + 1))
    a('s_cselect_b32 s%d, 31, 63' % S_T1)
    a('s_and_b32 s%d, s%d, s%d' % (S_T0, S_T2, S_T1))
    a('s_lshl_b32 s%d, s%d, 13' % (S_T0, S_T0))
    if qcols:
        L = a.newlabel('wq')
        a('s_lshr_b32 s%d, s%d, 6' % (S_T1, S_T2))
        a('s_cmp_lg_u32 s%d, 2' % S_T1)
        a('s_cbranch_scc1 %s' % L)
        a('s_mov_b32 s%d, s42\ns_mov_b32 s%d, s43\ns_mov_b32 s%d, 0x180000' % (R, R + 1, R + 2))
        a('s_mul_i32 s%d, s%d, 3' % (S_T0, S_T0))
        a('v_lshrrev_b32 v%d, 3, v%d' % (vd, V_LANE))
        a('v_mul_u32_u24 v%d, 3072, v%d' % (vd, vd))
        a('v_and_b32 v%d, 7, v%d' % (vt, V_LANE))
        a('v_lshl_add_u32 v%d, v%d, 7, v%d' % (vt, vt, vd))
        a.label(L)
    a.v(tag, 'buffer_load_dword v%d, v%d, s[%d:%d], s%d offen' % (vd, vt, R, R + 3, S_T0))

def p1(a):
    a.vreset()
    srd(a, S_IN2, 40, 0x200000)
    srd(a, S_IN, 42, 0x180000)
    nonce_publish(a)
    VXD = [V_TMP + 16, V_TMP + 17]; VWD = V_TMP + 18
    a('v_lshrrev_b32 v5, 3, v%d' % V_LANE)
    a('v_and_b32 v6, 7, v%d' % V_LANE)
    a('v_lshrrev_b32 v7, 4, v%d' % V_LANE)
    a('v_xor_b32 v8, v6, v7')
    a('v_lshlrev_b32 v8, 4, v8')
    a('v_lshl_add_u32 v%d, v5, 10, v8' % VXD[0])
    a('v_xor_b32 v%d, 64, v%d' % (VXD[1], VXD[0]))
    a('v_lshrrev_b32 v5, 2, v%d' % V_LANE)
    a('v_mul_u32_u24 v5, 3072, v5')
    a('v_and_b32 v6, 3, v%d' % V_LANE)
    a('v_lshl_add_u32 v%d, v6, 4, v5' % VWD)
    SXG, SXL, SWG, SLO, SHI = 85, 87, 88, 89, 90
    a('s_lshl_b32 s%d, s%d, 15' % (S_T0, S_KH))
    a('s_lshl_b32 s%d, s%d, 14' % (S_T1, S_I))
    a('s_add_u32 s%d, s%d, s%d' % (SXG, S_XOFF, S_T0))
    a('s_add_u32 s%d, s%d, s%d' % (SXG, SXG, S_T1))
    a('s_lshl_b32 s%d, s%d, 9' % (S_T1, S_J))
    a('s_add_u32 s%d, s%d, s%d' % (SXG, SXG, S_T1))
    a('s_lshl_b32 s%d, s%d, 14' % (S_T1, S_J))
    a('s_add_u32 s%d, s%d, s%d' % (SXL, S_T0, S_T1))
    a('s_lshl_b32 s%d, s%d, 11' % (S_T1, S_I))
    a('s_add_u32 s%d, s%d, s%d' % (SXL, SXL, S_T1))
    a('s_mul_i32 s%d, s%d, %d' % (SWG, S_I, 256 * 3072))
    a('s_lshl_b32 s%d, s%d, 7' % (S_T0, S_CS))
    a('s_add_u32 s%d, s%d, s%d' % (SWG, SWG, S_T0))
    a('s_lshl_b32 s%d, s%d, 6' % (S_T0, S_J))
    a('s_add_u32 s%d, s%d, s%d' % (SWG, SWG, S_T0))
    a('s_lshl_b32 s94, s%d, 10' % S_KH)
    a('s_add_u32 s94, s94, s%d' % SWG)
    a('s_add_u32 s94, s94, 1024')
    a('s_and_b32 s%d, s%d, 3' % (S_T2, S_W))
    a('s_mul_i32 s%d, s%d, 11264' % (SLO, S_T2))
    a('s_add_u32 s%d, s%d, 65536' % (SLO, SLO))
    a('s_add_u32 s%d, s%d, 3072' % (SHI, SLO))
    a('s_mul_i32 s%d, s%d, 3072' % (S_T0, S_T2))
    a('s_add_u32 s%d, s%d, 110592' % (S_T0, S_T0))
    a('s_lshl_b32 s%d, s%d, 13' % (S_T1, S_T2))
    a('s_add_u32 s%d, s%d, 131072' % (S_T1, S_T1))
    a('s_cmp_eq_u32 s%d, 1' % S_KH)
    a('s_cselect_b32 s%d, s%d, s%d' % (SLO, S_T0, SLO))
    a('s_cselect_b32 s%d, s%d, s%d' % (SHI, S_T1, SHI))
    SROT = 3
    a('s_add_u32 s%d, s%d, s%d' % (SROT, S_RB, S_GRP))
    a('s_and_b32 s%d, s%d, 3' % (SROT, SROT))
    def rotg(g):
        a('s_add_u32 s%d, s%d, %d' % (S_T1, SROT, g))
        a('s_and_b32 s%d, s%d, 3' % (S_T1, S_T1))
    def dma_x(g):
        rotg(g)
        a('s_lshl_b32 s%d, s%d, 7' % (S_T1, S_T1))
        a('s_add_u32 s%d, s%d, s%d' % (S_T1, S_T1, SXG))
        for p in range(2):
            a('s_add_u32 s%d, s%d, %d' % (S_T0, S_T1, p * 8192))
            a('s_add_u32 m0, s%d, %d' % (SXL, g * 4096 + p * 1024))
            a('s_nop 0')
            a.v('x%d' % g, 'buffer_load_dwordx4 v%d, s[12:15], s%d offen lds' % (VXD[p], S_T0))
    def slot(sl): return (SLO, sl * 1024) if sl < 3 else (SHI, (sl - 3) * 1024)
    def dma_w(kt, q=False):
        sb, off = slot(3 + (kt + 2) % 8) if q else slot(kt % 11)
        rotg(kt // 4)
        a('s_mul_i32 s%d, s%d, %d' % (S_T1, S_T1, 64 * 3072))
        a('s_add_u32 s%d, s%d, s%d' % (S_T1, S_T1, SWG if q else 94))
        a('s_add_u32 s%d, s%d, %d' % (S_T0, S_T1, (kt % 4) * 16 * 3072))
        a('s_add_u32 m0, s%d, %d' % (sb, off))
        a('s_nop 0')
        a.v(('q%d' if q else 'w%d') % kt, 'buffer_load_dwordx4 v%d, s[8:11], s%d offen lds' % (VWD, S_T0))
    for g in range(4): dma_x(g)
    for kt in range(3): dma_w(kt)
    a('s_getpc_b64 s[64:65]')
    a.label('L_pcref')
    a('s_lshr_b32 s%d, s2, 3' % S_T0)
    a('s_lshl_b32 s%d, s%d, 3' % (S_T0, S_T0))
    a('s_add_u32 s%d, s%d, s%d' % (S_T0, S_T0, S_W))
    a('s_lshl_b32 s%d, s%d, 8' % (S_T0, S_T0))
    a('s_min_u32 s%d, s%d, L_end - L_pcref - 256' % (S_T0, S_T0))
    a('v_lshlrev_b32 v5, 2, v%d' % V_LANE)
    a('v_add_u32 v5, s%d, v5' % S_T0)
    a.v('cp', 'global_load_dword v%d, v5, s[64:65]' % 127)
    for kt in range(3, 6): dma_w(kt)
    PKR = V_W0
    def side_misc():
        a('v_and_b32 v5, 31, v%d' % V_LANE)
        a('v_lshlrev_b32 v5, 10, v5')
        a('v_lshrrev_b32 v6, 5, v%d' % V_LANE)
        a('v_lshl_add_u32 v5, v6, 3, v5')
        rowcol_off(a)
        a.v('res', 'buffer_load_dwordx2 v[%d:%d], v5, s[12:15], s%d offen' % (V_RES, V_RES + 1, S_T0))
        a.v('res', 'buffer_load_dwordx2 v[%d:%d], v5, s[12:15], s%d offen offset:16' % (V_RES + 2, V_RES + 3, S_T0))
        head_addrs(a)
        a('s_lshl_b32 s%d, s%d, 9' % (S_T0, S_RB))
        a('s_add_u32 s%d, s%d, s%d' % (S_T0, S_T0, S_T3))
        a('s_lshl_b32 s%d, s%d, 6' % (S_T1, S_RB))
        a('s_add_u32 s%d, s%d, s%d' % (S_T1, S_T1, S_T4))
        a('s_cmp_eq_u32 s%d, 0' % S_KH)
        a('s_cselect_b32 s%d, s%d, 0x%x' % (S_T0, S_T0, OOB))
        a('s_cselect_b32 s%d, s%d, 0x%x' % (S_T1, S_T1, OOB))
        PO = V_W0 + 16
        for r in range(4): a('v_mov_b32 v%d, -1' % (PO + r))
        for ly in range(2):
            if ly:
                a('s_add_u32 s%d, s%d, 0x%x' % (S_T0, S_T0, LS))
                a('s_add_u32 s%d, s%d, 0x%x' % (S_T1, S_T1, LS))
            a('s_mov_b32 exec_hi, 0')
            a.v('poi', 'buffer_store_dwordx4 %s, v%d, %s, s%d offen sc1' % (vr(PO), V_L16, WSR, S_T0))
            a('s_mov_b64 exec, 15')
            a.v('poi', 'buffer_store_dwordx4 %s, v%d, %s, s%d offen sc1' % (vr(PO), V_L16, WSR, S_T1))
            a('s_mov_b64 exec, -1')
        a('v_and_b32 v5, 7, v%d' % V_LANE)
        a('v_lshlrev_b32 v5, 21, v5')
        a.v('tlb', 'buffer_load_dword v%d, v5, %s, 0 offen' % (PO + 4, WSR))
    XR = [V_TMP + 20 + q for q in range(4)]
    WR = V_TMP + 24
    a('v_and_b32 v5, 31, v%d' % V_LANE)
    a('v_bfe_u32 v6, v%d, 1, 3' % V_LANE)
    a('v_lshrrev_b32 v7, 5, v%d' % V_LANE)
    a('v_xor_b32 v6, v6, v7')
    a('s_mul_i32 s%d, s%d, 49152' % (S_T0, S_I))
    a('v_lshlrev_b32 v5, 7, v5')
    a('v_add_u32 v5, s%d, v5' % S_T0)
    XR2 = [V_TMP + 12 + q for q in range(4)]
    for q in range(4):
        a('v_xor_b32 v7, %d, v6' % (2 * q))
        a('v_lshl_add_u32 v%d, v7, 4, v5' % XR[q])
        a('v_xor_b32 v%d, 32768, v%d' % (XR2[q], XR[q]))
    a('v_lshrrev_b32 v5, 5, v%d' % V_LANE)
    a('v_lshlrev_b32 v5, 9, v5')
    a('v_bfe_u32 v6, v%d, 2, 2' % V_LANE)
    a('v_lshl_add_u32 v5, v6, 6, v5')
    a('v_bfe_u32 v6, v%d, 4, 1' % V_LANE)
    a('v_lshl_add_u32 v5, v6, 5, v5')
    a('v_and_b32 v6, 3, v%d' % V_LANE)
    a('v_lshl_add_u32 v5, v6, 3, v5')
    a('v_add_u32 v%d, s%d, v5' % (WR, SLO))
    a('v_add_u32 v%d, s%d, v5' % (WR + 1, SHI))
    FB = [V_W1 + 12 * k for k in range(4)]
    CS, SS = V_TMP + 19, V_TMP + 26
    a('v_mov_b32 v%d, 0\nv_mov_b32 v%d, 0' % (SS, SS + 1))
    a('s_lshl_b32 s95, s%d, 1' % S_KH)
    a('s_add_u32 s95, s95, s%d' % S_J)
    def rd_kt(kt, q=False):
        b = FB[kt % 4]
        sl = 3 + (kt + 2) % 8 if q else kt % 11
        areg, off = (WR, sl * 1024) if sl < 3 else (WR + 1, (sl - 3) * 1024)
        a('ds_read_b64_tr_b16 v[%d:%d], v%d offset:%d' % (b + 8, b + 9, areg, off))
        a('ds_read_b64_tr_b16 v[%d:%d], v%d offset:%d' % (b + 10, b + 11, areg, off + 256))
        a('ds_read_b128 %s, v%d offset:%d' % (vr(b), XR[kt & 3], (kt >> 2) * 4096))
        a('ds_read_b128 %s, v%d offset:%d' % (vr(b + 4), XR2[kt & 3], (kt >> 2) * 4096))
    def mm_kt(kt, stats):
        b = FB[kt % 4]; first = kt == 0
        if first: a('v_mov_b32 v%d, 0' % CS)
        for q, acc in enumerate((ACC0, ACC1)):
            a('v_mfma_f32_32x32x16_bf16 %s, %s, %s, %s' % (vr(acc, 16), vr(b + 8), vr(b + 4 * q), '0' if first else vr(acc, 16)))
        for r in range(4):
            a('v_dot2_f32_bf16 v%d, v%d, v%d, v%d' % (CS, b + 8 + r, V_ONES, CS))
        if stats:
            for tile in range(2):
                L = a.newlabel('st')
                a('s_cmp_lg_u32 s95, %d' % (2 * tile + (kt & 1)))
                a('s_cbranch_scc1 %s' % L)
                for r in range(4):
                    x = b + 4 * tile + r
                    a('v_dot2_f32_bf16 v%d, v%d, v%d, v%d' % (SS, x, V_ONES, SS))
                    a('v_dot2_f32_bf16 v%d, v%d, v%d, v%d' % (SS + 1, x, x, SS + 1))
                a.label(L)
    lms = LM(red=0, stat=122880, pkv=0, kvf=0, redq=0)
    a.vwait('x3')
    a('v_add_u32 v5, s%d, v%d' % (SXL, V_L16))
    XS = V_W0
    for g in range(4):
        for p in range(2):
            a('ds_read_b128 %s, v5 offset:%d' % (vr(XS + 8 * g + 4 * p), g * 4096 + p * 1024))
    SA = V_ACC
    for r in range(4): a('v_mov_b32 v%d, 0' % (SA + r))
    a('s_waitcnt lgkmcnt(0)')
    for g in range(4):
        for p in range(2):
            for r in range(4):
                x = XS + 8 * g + 4 * p + r
                a('v_dot2_f32_bf16 v%d, v%d, v%d, v%d' % (SA + 2 * p, x, V_ONES, SA + 2 * p))
                a('v_dot2_f32_bf16 v%d, v%d, v%d, v%d' % (SA + 2 * p + 1, x, x, SA + 2 * p + 1))
    a('v_lshrrev_b32 v5, 3, v%d' % V_LANE)
    a('v_lshlrev_b32 v5, 3, v5')
    a('s_lshl_b32 s%d, s%d, 8' % (S_T0, S_KH))
    a('s_lshl_b32 s%d, s%d, 7' % (S_T1, S_I))
    a('s_add_u32 s%d, s%d, s%d' % (S_T0, S_T0, S_T1))
    a('s_lshl_b32 s%d, s%d, 9' % (S_T1, S_J))
    a('s_add_u32 s%d, s%d, s%d' % (S_T0, S_T0, S_T1))
    a('s_add_u32 s%d, s%d, %d' % (S_T0, S_T0, lms.stat))
    a('v_add_u32 v5, s%d, v5' % S_T0)
    for dp in ('quad_perm:[1,0,3,2]', 'quad_perm:[2,3,0,1]', 'row_half_mirror'):
        a('s_nop 1')
        for r in range(4):
            a('v_add_f32_dpp v%d, v%d, v%d %s row_mask:0xf bank_mask:0xf' % (SA + r, SA + r, SA + r, dp))
    a('ds_write_b64 v5, v[%d:%d]' % (SA, SA + 1))
    a('ds_write_b64 v5, v[%d:%d] offset:64' % (SA + 2, SA + 3))
    barrier(a)
    if E('TSP1'): ts(a)
    for kt in range(17):
        if kt < 16:
            a.vwait('w%d' % kt)
            if E('TSP2'): ts(a)
            rd_kt(kt)
            if kt: a('s_waitcnt lgkmcnt(4)')
        else:
            a('s_waitcnt lgkmcnt(0)')
        if kt >= 1:
            p = kt - 1
            if p < 5: dma_w(p + 11)
            mm_kt(p, False)
        if kt == 0:
            rs_issue(a, lms.stat, 2)
        if kt == 2:
            rs_math(a, 2)
            rs_spread(a, True)
            for r in range(14, 18):
                a('v_mov_b32 v%d, 0' % r)
        if kt == 0:
            for k in range(6, 9): dma_w(k)
        if kt == 1:
            for k in range(9, 11): dma_w(k)
        if kt == 6:
            side_misc()
            nonce_probe(a)
        if kt == int(E('WARMKT', '11')):
            warm2(a, V_W0 + 22, V_W0 + 23, 'wu', True)
        if kt == 12:
            with role(a, 'B'):
                vm = list(a.vm)
                a.vwait('w15')
                for k in range(6): dma_w(k, True)
                a.vm = vm; a.done = -1
    with role(a, 'B'):
        vm = list(a.vm)
        for k in range(6, 8): dma_w(k, True)
        a.vm = vm
    a.nop(3)
    make_csfrag(a, CS, V_CF1, 6)
    a('s_nop 1')
    y_correct(a, V_CF1)
    a('s_barrier')
    ts(a)
    lm = LM(red=65536, stat=0, pkv=98304, kvf=114688, redq=65536, wst=131072)
    kv_red_write(a, lm.red)
    with role(a, 'A'):
        nonce_check(a)
    with role(a, 'B'):
        a.vm += ['q'] * 8; a.done = -1
        nonce_check(a)
    a('v_mov_b32 v18, 0')
    a('v_mov_b32 v19, 0')
    a('s_mov_b32 s%d, 1' % S_GPH)
    with role(a, 0):
        lsignal(a)
    with role(a, 'A'):
        hello(a)
    barrier(a)
    if E('TSP1'): ts(a)
    a1_kv_owner(a, lm)
    ts(a)
    with role(a, 'B'):
        a('s_waitcnt vmcnt(0)')
    def qpass():
        a.vreset()
        for kt in range(17):
            if kt < 16:
                if kt >= 8: a.vwait('q%d' % kt)
                rd_kt(kt, True)
                if kt: a('s_waitcnt lgkmcnt(4)')
            else:
                a('s_waitcnt lgkmcnt(0)')
            if kt >= 1:
                p = kt - 1
                if p < 8: dma_w(p + 8, True)
                mm_kt(p, False)
        a.nop(3)
        make_csfrag(a, CS, V_CF0, 6)
        a('s_nop 1')
        y_correct(a, V_CF0)
    def ring():
        a('s_and_b32 s70, s%d, 3' % S_W)
        a('s_lshl_b32 s70, s70, 14')
        load_w_ring(a, U_WQ, V_W1, 16)
    a1_tail(a, lm, True, qpass, ring)

def resid_add(a, acc):
    for r in range(4):
        a('v_lshlrev_b32 v%d, 16, v%d' % (acc + 8 + 2 * r, V_RES + r))
        a('v_and_b32 v%d, 0xffff0000, v%d' % (acc + 9 + 2 * r, V_RES + r))
    for r in range(0, 8, 2):
        pk_add(a, acc + r, acc + r, acc + 8 + r)
    for r in range(4):
        a('v_cvt_pk_bf16_f32 v%d, v%d, v%d' % (V_RES + r, acc + 2 * r, acc + 2 * r + 1))

def final_store(a):
    srd(a, S_IN2, 56, 0x200000)
    a('s_nop 1')
    a('v_permlane32_swap_b32 v%d, v%d' % (V_RES, V_RES + 2))
    a('v_permlane32_swap_b32 v%d, v%d' % (V_RES + 1, V_RES + 3))
    a('v_and_b32 v5, 31, v%d' % V_LANE)
    a('v_lshlrev_b32 v5, 10, v5')
    a('v_lshrrev_b32 v6, 5, v%d' % V_LANE)
    a('v_lshl_add_u32 v5, v6, 4, v5')
    rowcol_off(a)
    a('buffer_store_dwordx4 %s, v5, s[12:15], s%d offen' % (vr(V_RES), S_T0))

def w16_regs(a, inside):
    a('v_lshrrev_b32 v5, 5, v%d' % V_LANE)
    a('v_lshlrev_b32 v5, 9, v5')
    a('v_bfe_u32 v7, v%d, 4, 1' % V_LANE)
    a('v_lshl_add_u32 v5, v7, 7, v5')
    a('v_bfe_u32 v7, v%d, 2, 2' % V_LANE)
    a('v_lshl_add_u32 v5, v7, 5, v5')
    a('v_and_b32 v7, 3, v%d' % V_LANE)
    a('v_lshl_add_u32 v5, v7, 3, v5')
    a('v_add_u32 v5, %d, v5' % LDS_W16)
    for st in range(16):
        a('ds_read_b64_tr_b16 v[%d:%d], v5 offset:%d' % (V_W1 + 4 * st, V_W1 + 4 * st + 1, st * 1024))
        a('ds_read_b64_tr_b16 v[%d:%d], v5 offset:%d' % (V_W1 + 4 * st + 2, V_W1 + 4 * st + 3, st * 1024 + 256))
    L = a.newlabel('cf2')
    a('s_cmp_lg_u32 s%d, 0' % S_LOFF)
    a('s_cbranch_scc1 %s' % L)
    a('s_waitcnt lgkmcnt(0)')
    colsum(a, V_W1, V_ACC)
    make_csfrag(a, V_ACC, V_CF2, V_ACC + 2)
    a.label(L)

def out_gemm(a, w16=False):
    ie = ifelse(a)
    ie.if_set(0)
    active_path(a, V_W0, False)
    y_red_write(a, 65536, 0)
    ie.else_()
    loader_path(a, False, (lambda: dma_w16(a)) if w16 else None)
    ie.end()
    toggle_bufs(a, False)
    barrier(a)
    ts3(a)
    y_red_read(a, 65536, 0)
    resid_add(a, V_ACC)
    ts3(a)

def b1_compute(a):
    lm = LM_STD
    a('s_add_u32 s%d, s%d, 1' % (S_GPH, S_GPH))
    P = V_ACC
    X16 = [V_XF, V_XF + 4, V_XF + 8, V_XF + 12]
    MFg, CFg = P + 8, V_CF2
    def mk_hook(var):
        def hook(c):
            if c == 'stats':
                a('v_and_b32 v7, 15, v%d' % V_LANE)
                a('s_lshl_b32 s%d, s%d, 4' % (S_T0, S_SLAB))
                a('v_add_u32 v7, s%d, v7' % S_T0)
                a('v_lshlrev_b32 v7, 2, v7')
                a('ds_bpermute_b32 v8, v7, v%d' % VM)
                if var == 0:
                    a('ds_bpermute_b32 v%d, v7, v%d' % (P + 16, VR))
                else:
                    a('v_lshrrev_b32 v7, 4, v%d' % V_LANE)
                    a('v_lshlrev_b32 v7, 2, v7')
                    a('v_add_u32 v7, s%d, v7' % S_T0)
                    a('v_lshlrev_b32 v7, 2, v7')
                    for r in range(4):
                        a('ds_bpermute_b32 v%d, v7, v%d offset:%d' % (P + 16 + r, VR, 4 * r))
                a('v_and_b32 v%d, 15, v%d' % (P + 20, V_LANE))
                a('v_lshlrev_b32 v%d, 4, v%d' % (P + 20, P + 20))
                a('v_bfe_u32 v7, v%d, 4, 1' % V_LANE)
                a('v_lshl_add_u32 v%d, v7, %d, v%d' % (P + 20, 9 if var == 0 else 8, P + 20))
                a('v_lshrrev_b32 v7, 5, v%d' % V_LANE)
                a('v_lshl_add_u32 v%d, v7, 3, v%d' % (P + 20, P + 20))
                if var == 0:
                    a('s_lshl_b32 s71, s%d, 11' % S_RB)
                    a('s_lshr_b32 s%d, s%d, 1' % (S_T1, S_SLAB))
                    a('s_lshl_b32 s%d, s%d, 10' % (S_T1, S_T1))
                    a('s_add_u32 s71, s71, s%d' % S_T1)
                    a('s_and_b32 s%d, s%d, 1' % (S_T1, S_SLAB))
                    a('s_lshl_b32 s%d, s%d, 8' % (S_T1, S_T1))
                    a('s_add_u32 s71, s71, s%d' % S_T1)
                    a('s_add_u32 s71, s71, 0x%x' % KF_)
                else:
                    a('s_lshl_b32 s71, s%d, 2' % S_RB)
                    a('s_add_u32 s71, s71, s%d' % S_SLAB)
                    a('s_lshl_b32 s71, s71, 9')
                    a('s_add_u32 s71, s71, 0x%x' % VF_)
                a('s_add_u32 s71, s71, s%d' % S_LOFF)
                a('s_waitcnt lgkmcnt(0)')
                if var == 0:
                    for r in range(1, 4): a('v_mov_b32 v%d, v%d' % (P + 16 + r, P + 16))
                make_mfrag(a, 8, MFg)
                a('s_nop 1')
                if var == 0: a('v_mfma_f32_16x16x32_bf16 %s, %s, %s, %s' % (vr(P), vr(CFg), vr(MFg), vr(P)))
                else: a('v_mfma_f32_16x16x32_bf16 %s, %s, %s, %s' % (vr(P), vr(MFg), vr(CFg), vr(P)))
                return
            if c == 'pre':
                w16_regs(a, True)
                return
            XB8 = [V_XF + 4 * k for k in range(4)] + [V_TMP + 4 * k for k in range(4)]
            for n in range(8):
                a('ds_read_b128 %s, v6 offset:%d' % (vr(XB8[n]), n * 2048))
            for st in range(16):
                a('s_waitcnt lgkmcnt(%d)' % min(7, 15 - st))
                acc = P + 24 * (st & 1)
                cc = '0' if st < 2 else vr(acc)
                A_, B_ = (vr(V_W1 + 4 * st), vr(XB8[st % 8])) if var == 0 else (vr(XB8[st % 8]), vr(V_W1 + 4 * st))
                a('v_mfma_f32_16x16x32_bf16 %s, %s, %s, %s' % (vr(acc), A_, B_, cc))
                if st + 8 < 16:
                    a('ds_read_b128 %s, v6 offset:%d' % (vr(XB8[st % 8]), (st + 8) * 2048))
            rs_math(a, 4)
            hook('stats')
            a.nop(8)
            pk_add(a, P, P, P + 24)
            pk_add(a, P + 2, P + 2, P + 26)
            for r in range(4):
                a('v_mul_f32 v%d, v%d, v%d' % (P + r, P + r, P + 16 + r))
            a('v_cvt_pk_bf16_f32 v%d, v%d, v%d' % (P + 4, P, P + 1))
            a('v_cvt_pk_bf16_f32 v%d, v%d, v%d' % (P + 5, P + 2, P + 3))
            a('buffer_store_dwordx2 v[%d:%d], v%d, %s, s71 offen sc1' % (P + 4, P + 5, P + 20, WSR))
        return hook
    Lb = a.newlabel('b1b'); L3 = a.newlabel('b13'); L3v = a.newlabel('b13v'); Le = a.newlabel('b1e')
    a('s_cmp_eq_u32 s%d, 1' % S_KH)
    a('s_cbranch_scc1 %s' % Lb)
    a('s_cmp_eq_u32 s%d, 3' % S_W)
    a('s_cbranch_scc1 %s' % L3)
    loader_path(a, True)
    a('s_branch %s' % Le)
    a.label(Lb)
    active_path(a, V_W1, True)
    y_correct(a, V_CF2)
    y_red_write(a, 65536, 1)
    a('s_branch %s' % Le)
    a.label(L3)
    a('v_and_b32 v6, 15, v%d' % V_LANE)
    a('v_lshlrev_b32 v6, 4, v6')
    a('v_bfe_u32 v5, v%d, 4, 1' % V_LANE)
    a('v_lshl_add_u32 v6, v5, 9, v6')
    a('v_lshrrev_b32 v5, 5, v%d' % V_LANE)
    a('v_lshl_add_u32 v6, v5, 10, v6')
    a('s_lshr_b32 s%d, s%d, 1' % (S_T0, S_SLAB))
    a('s_lshl_b32 s%d, s%d, 15' % (S_T0, S_T0))
    a('s_and_b32 s%d, s%d, 1' % (S_T1, S_SLAB))
    a('s_lshl_b32 s%d, s%d, 8' % (S_T1, S_T1))
    a('s_add_u32 s%d, s%d, s%d' % (S_T0, S_T0, S_T1))
    a('v_add_u32 v6, s%d, v6' % S_T0)
    a('s_cmp_eq_u32 s%d, 1' % S_WHICH)
    a('s_cbranch_scc1 %s' % L3v)
    loader_path(a, True, hook=mk_hook(0))
    a('s_branch %s' % Le)
    a.label(L3v)
    loader_path(a, True, hook=mk_hook(1))
    a.label(Le)
    tsb(a)
    toggle_bufs(a, True)
    attn_pre(a)
    barrier(a)
    tsb(a)
    with role(a, 3):
        a('s_waitcnt vmcnt(0)')
        lsignal(a)
    AQ = V_ACC
    y_red_read(a, 65536, 1)
    scale_pack(a, AQ, VR, V_XF)
    for r in range(4):
        a('v_lshlrev_b32 v%d, 16, v%d' % (AQ + 2 * r, V_XF + r))
        a('v_and_b32 v%d, 0xffff0000, v%d' % (AQ + 2 * r + 1, V_XF + r))
    for r in range(8):
        a('v_mul_f32 v%d, 0x%x, v%d' % (AQ + r, f2u(CQ), AQ + r))
    for r in range(4):
        a('v_cvt_pk_bf16_f32 v%d, v%d, v%d' % (A_Q + r, AQ + 2 * r, AQ + 2 * r + 1))

PRIO_LO = eval(E('PRIO_LO', '(4, 12, 23, 53)'))
PRIO_HI = eval(E('PRIO_HI', '(7, 15, 28)'))
def attn_loop(a):
    a.lreset()
    def rdK(t):
        if t < 64: a.l_('k%d' % t, 'ds_read_b128 %s, v%d offset:%d' % (vr(A_K[t % 2]), V_L16, t * 1024))
    def rdV(t):
        if t >= 64: return
        a('s_mov_b64 exec, s[%d:%d]' % (S_MASK_LO16, S_MASK_LO16 + 1))
        a.l_('v%d' % t, 'ds_read_b128 %s, v%d offset:%d' % (vr(A_V[t % 2]), A_VA, t * 1024))
        a.l_('v%d' % t, 'ds_read_b128 %s, v%d offset:%d' % (vr(A_V[t % 2] + 4), A_VA, t * 1024 + 512))
        a('s_mov_b64 exec, -1')
    def qk(t):
        a('v_mfma_f32_32x32x16_bf16 %s, %s, %s, %s' % (vr(A_S[t % 2], 16), vr(A_K[t % 2]), vr(A_Q), vr(A_BIAS, 16)))
    def pv(vb, pb, first=False):
        a('v_mfma_f32_32x32x16_bf16 %s, %s, %s, %s' % (vr(A_O, 16), vr(vb), vr(pb), '0' if first else vr(A_O, 16)))
    ex = lambda r: a('v_exp_f32 v%d, v%d' % (r, r))
    class first_pass:
        def __enter__(s_):
            s_.L = a.newlabel('fp')
            a('s_cmp_lg_u32 s%d, 0' % S_PASS)
            a('s_cbranch_scc1 %s' % s_.L)
        def __exit__(s_, *e): a.label(s_.L)
    a('v_and_b32 v%d, 15, v%d' % (A_VA, V_LANE))
    a('v_lshlrev_b32 v%d, 4, v%d' % (A_VA, A_VA))
    a('v_lshrrev_b32 v7, 5, v%d' % V_LANE)
    a('v_lshl_add_u32 v%d, v7, 8, v%d' % (A_VA, A_VA))
    a('v_add_u32 v%d, 65536, v%d' % (A_VA, A_VA))
    rdK(0); rdK(1); rdV(0)
    WD, WA = 10, 11
    a('s_lshl_b32 s70, s%d, 12' % S_W)
    a('s_add_u32 s70, s70, 131072')
    a('s_setprio 1')
    with role(a, 'B'):
        a('s_setprio 2')
    a.lwait('k0')
    qk(0)
    raw_rdaddr(a, WA, 70)
    a('s_nop 1')
    T0 = 29
    def wskip(cond_all):
        a('s_cmp_lg_u32 s%d, 0' % S_LOFF)
        a('s_cselect_b32 s%d, 0x%x, 0' % (S_T0, OOB))
        if not cond_all:
            a('s_cmp_eq_u32 s%d, 0' % S_KH)
            a('s_cselect_b32 s%d, 0, s%d' % (S_T0, S_T0))
        a('s_add_u32 s68, s68, s%d' % S_T0)
    for t in range(64):
        S = A_S[t % 2]
        cv = lambda r: a('v_cvt_pk_bf16_f32 v%d, v%d, v%d' % (A_P + r, S + 2 * r, S + 2 * r + 1))
        def xprobe():
            a('v_and_b32 v7, 7, v%d' % V_LANE)
            a('v_lshlrev_b32 v7, 7, v7')
            a('s_mov_b32 s66, 0x%x' % XFLAG)
            a('buffer_load_dwordx2 v[8:9], v7, %s, s66 offen sc1' % WSR)
        def xcheck(slots):
            Lr = a.newlabel('xr')
            tagbase(a, 65, S_GPH)
            m = sum(1 << sl for sl in slots)
            a('s_lshl_b32 s64, %d, s%d' % (m, S_GRP))
            chk = ['s_mov_b32 exec_lo, s64', 's_mov_b32 exec_hi, 0'] + tagcmp([8], 65, 5) + ['s_mov_b64 exec, -1']
            a('s_waitcnt vmcnt(0)')
            for c in chk: a(c)
            a('s_cbranch_vccz %s' % Lr)
            a('v_and_b32 v7, 7, v%d' % V_LANE)
            a('v_lshlrev_b32 v7, 7, v7')
            poll(a, ['buffer_load_dwordx2 v[8:9], v7, %s, s66 offen sc1' % WSR], chk, sleep=1)
            a.label(Lr)
        if t in (2, 9, 20):
            with first_pass(): xprobe()
        if t == 4:
            with first_pass():
                xcheck([1]); kv_dma(a, [1])
        if t == 11:
            with first_pass():
                xcheck([2, 3]); kv_dma(a, [2, 3])
        if t == 22:
            with first_pass():
                xcheck([4, 5, 6, 7]); kv_dma(a, range(4, 8))
        if t in (7, 15, 28):
            with first_pass():
                a('s_waitcnt vmcnt(0)')
                a('s_barrier')
            if t in (7, 15): rdK(t + 1)
        if E('TSA') and t in (0, 3, 4, 7, 15, 32, 50, 63): ts(a)
        if t in PRIO_LO:
            with role(a, 'B'):
                a('s_setprio 0')
        if t in PRIO_HI:
            with role(a, 'B'):
                a('s_setprio 2')
        if t == T0 + int(E('WARMT', '0')):
            Lw = a.newlabel('wm')
            a('s_cmp_lg_u32 s%d, 0' % S_LOFF)
            a('s_cbranch_scc1 %s' % Lw)
            warm2(a, 8, 7)
            a.label(Lw)
        if t == T0:
            raw_setup(a, U_OB, U_Q, S_IN2, 68, 69, WD); wskip(False)
        if t == T0 + 16:
            raw_setup(a, U_K, U_V, S_IN2, 68, 69, WD); wskip(True)
        if t + 1 < 64:
            a.lwait('k%d' % (t + 1))
            qk(t + 1)
        if t not in (6, 14): rdK(t + 2)
        ex(S + 0); ex(S + 1); ex(S + 2); ex(S + 3); cv(0); ex(S + 4); ex(S + 5); cv(1); ex(S + 6); ex(S + 7); cv(2)
        ex(S + 8); ex(S + 9); cv(3); ex(S + 10); ex(S + 11)
        a.lwait('v%d' % t)
        pv(A_V[t % 2], A_P, t == 0)
        p = t - T0
        if 0 <= p < 32:
            if p >= 4: a.lwait('w%d' % (p - 4))
            for l in raw_dma(S_IN2, 68, 69, WD, 70, (p % 4) * 1024): a(l)
        cv(4); ex(S + 12); ex(S + 13); cv(5); ex(S + 14); ex(S + 15); cv(6)
        p = t - T0 - 2
        if 0 <= p < 32:
            a('s_waitcnt vmcnt(%d)' % min(2, 31 - p))
        else:
            a('s_nop 0')
        cv(7)
        if 0 <= p < 32:
            for l in raw_rd((V_W0 if p < 16 else V_W1) + 4 * (p % 16), WA, (p % 4) * 1024): a.l_('w%d' % p, l)
        else:
            a('s_nop 1')
        pv(A_V[t % 2] + 4, A_P + 4)
        rdV(t + 1)
    a('s_setprio 0')
    a.nop(16)

def attn_pre(a):
    a('s_mov_b32 s%d, 0x00110000' % S_T0)
    a('s_mov_b32 s%d, 0x00110000' % S_T1)
    a('v_cndmask_b32_e64 v7, 0, v%d, s[%d:%d]' % (V_ONES, S_T0, S_T1))
    for b in range(2):
        for r in range(8):
            a('v_mov_b32 v%d, v7' % (A_V[b] + r))

def kv_dma(a, slots):
    a('s_lshl_b32 s67, s%d, 10' % S_W)
    for sl in slots:
        a('s_add_u32 s%d, s%d, %d' % (S_T0, S_GRP, sl))
        a('s_and_b32 s%d, s%d, 7' % (S_T0, S_T0))
        a('s_lshl_b32 s%d, s%d, 13' % (S_T0, S_T0))
        a('s_add_u32 s%d, s%d, s67' % (S_T0, S_T0))
        a('s_add_u32 s%d, s%d, s%d' % (S_T0, S_T0, S_LOFF))
        a('s_add_u32 s%d, s%d, 0x%x' % (S_T0, S_T0, KF_))
        a('s_add_u32 m0, s67, %d' % (sl * 8192))
        a('s_add_u32 s%d, s%d, 0x10000' % (S_T1, S_T0))
        a('buffer_load_dwordx4 v%d, %s, s%d offen sc1 lds' % (V_L16, WSR, S_T0))
        a('s_add_u32 m0, s67, %d' % (65536 + sl * 8192))
        a('s_nop 0')
        a('buffer_load_dwordx4 v%d, %s, s%d offen sc1 lds' % (V_L16, WSR, S_T1))

def attn_inputs(a):
    with role(a, 0):
        lwait(a)
        L = a.newlabel('ld')
        a('s_lshr_b32 s%d, s2, 3' % S_T0)
        a('s_cmp_lg_u32 s%d, 0' % S_T0)
        a('s_cbranch_scc1 %s' % L)
        tagval(a, 6, S_GPH)
        a('s_lshl_b32 s%d, s%d, 7' % (S_T0, S_GRP))
        a('s_add_u32 s%d, s%d, 0x%x' % (S_T0, S_T0, XFLAG))
        a('v_mov_b32 v5, 0')
        a('s_mov_b64 exec, 1')
        a('buffer_store_dwordx2 v[6:7], v5, %s, s%d offen sc1' % (WSR, S_T0))
        a('s_mov_b64 exec, -1')
        a.label(L)
    barrier(a)
    ts(a)
    kv_dma(a, [0])
    a('s_waitcnt vmcnt(0)')
    a('s_barrier')

def attn_compute(a):
    a('ds_read_b128 %s, v%d' % (vr(A_K[0]), V_L16))
    a('s_waitcnt lgkmcnt(0)')
    a('v_mfma_f32_32x32x16_bf16 %s, %s, %s, 0' % (vr(A_S[0], 16), vr(A_K[0]), vr(A_Q)))
    a.nop(12)
    a('v_max3_f32 v10, v%d, v%d, v%d' % (A_S[0], A_S[0] + 1, A_S[0] + 2))
    a('v_max3_f32 v9, v%d, v%d, v%d' % (A_S[0] + 3, A_S[0] + 4, A_S[0] + 5))
    for r in range(6, 14, 4):
        a('v_max3_f32 v10, v10, v%d, v%d' % (A_S[0] + r, A_S[0] + r + 1))
        a('v_max3_f32 v9, v9, v%d, v%d' % (A_S[0] + r + 2, A_S[0] + r + 3))
    a('v_max3_f32 v10, v10, v%d, v%d' % (A_S[0] + 14, A_S[0] + 15))
    a('v_max_f32 v10, v10, v9')
    halves_sum(a, 10, 9, 'v_max_f32')
    a('v_sub_f32 v10, 0, v10')
    a('s_mov_b32 s%d, 0' % S_PASS)
    Lrun = a.newlabel('at_run'); Lok = a.newlabel('at_ok'); Lmx = a.newlabel('at_mx')
    a.label(Lrun)
    for r in range(16):
        a('v_mov_b32 v%d, v10' % (A_BIAS + r))
    a('s_nop 1')
    attn_loop(a)
    a('s_cmp_eq_u32 s%d, 1' % S_PASS)
    a('s_cbranch_scc1 %s' % Lok)
    a('v_max3_f32 v8, abs(v%d), abs(v%d), abs(v%d)' % (A_O, A_O + 1, A_O + 2))
    a('v_max3_f32 v9, abs(v%d), abs(v%d), abs(v%d)' % (A_O + 3, A_O + 4, A_O + 5))
    a('v_max3_f32 v8, abs(v%d), abs(v%d), v8' % (A_O + 6, A_O + 7))
    a('v_max_f32 v8, v8, v9')
    a('v_cmp_nle_f32 vcc, 0x%x, v%d' % (f2u(2.0 ** -89), A_O + 8))
    a('v_cmp_nge_f32 s[64:65], v%d, v%d' % (7, A_O + 8)) if False else None
    a('s_mov_b64 s[64:65], vcc')
    a('v_cmp_nge_f32 vcc, 0x%x, v%d' % (f2u(2.0 ** 90), A_O + 8))
    a('s_nop 3')
    a('s_or_b64 s[64:65], s[64:65], vcc')
    a('v_cmp_nge_f32 vcc, 0x%x, v8' % f2u(2.0 ** 126))
    a('s_nop 3')
    a('s_or_b64 s[64:65], s[64:65], vcc')
    a('s_cmp_eq_u64 s[64:65], 0')
    a('s_cbranch_scc1 %s' % Lok)
    a('s_mov_b32 s%d, 1' % S_PASS)
    a('v_mov_b32 v10, 0xff800000')
    a('v_mov_b32 v%d, v%d' % (A_KA, V_L16))
    a('s_mov_b32 s%d, 0' % S_CNT)
    a.label(Lmx)
    a('ds_read_b128 %s, v%d' % (vr(A_K[0]), A_KA))
    a('s_waitcnt lgkmcnt(0)')
    a('v_mfma_f32_32x32x16_bf16 %s, %s, %s, 0' % (vr(A_S[0], 16), vr(A_K[0]), vr(A_Q)))
    a.nop(16)
    for r in range(0, 16, 2):
        a('v_max3_f32 v10, v10, v%d, v%d' % (A_S[0] + r, A_S[0] + r + 1))
    a('v_add_u32 v%d, 1024, v%d' % (A_KA, A_KA))
    a('s_add_u32 s%d, s%d, 1' % (S_CNT, S_CNT))
    a('s_cmp_lt_u32 s%d, 64' % S_CNT)
    a('s_cbranch_scc1 %s' % Lmx)
    halves_sum(a, 10, 9, 'v_max_f32')
    a('v_sub_f32 v10, 0, v10')
    a('s_branch %s' % Lrun)
    a.label(Lok)
    a('v_rcp_f32 v8, v%d' % (A_O + 8))
    a('s_nop 0')
    scale_pack(a, A_O, 8, A_P)
    store_blk(a, A_P)
    csignal(a)

def header():
    ref = open('cdna_kernels/%s.s.ref' % NAME).read().split('\n')
    out = []
    for l in ref:
        if not l.startswith(';'): break
        if '@launch' in l: continue
        out.append(l)
    return out

def main(path):
    a = Asm()
    for h in header(): a.raw(h)
    a.raw('; @launch grid=(256,1,1) block=(512,1,1) lds=%d' % LDS_TOTAL)
    a.raw('.amdgcn_target "amdgcn-amd-amdhsa--gfx950"')
    a.raw('.text')
    name = NAME + '_kernel'
    prologue(a, name)
    ts(a)
    p1(a)
    ts(a)
    a.label('L_layer')
    out_gemm(a, True)
    store_x(a)
    csignal(a)
    ts(a)
    b1_compute(a)
    ts(a)
    attn_inputs(a)
    ts(a)
    attn_compute(a)
    ts(a)
    out_gemm(a)
    a('s_cmp_lg_u32 s%d, 0' % S_LOFF)
    a('s_cbranch_scc1 L_final')
    a('s_mov_b32 s%d, 0x%x' % (S_LOFF, LS))
    store_x(a)
    csignal(a)
    ts(a)
    a1_std(a)
    ts(a)
    a('s_branch L_layer')
    a.label('L_final')
    final_store(a)
    a('s_waitcnt vmcnt(0)')
    ts(a)
    ts_flush(a)
    epilogue(a, name)
    open(path, 'w').write(a.text())

if __name__ == '__main__':
    main(sys.argv[1] if len(sys.argv) > 1 else 'cdna_kernels/%s.s' % NAME)
```

```python
import struct, math, sys, os

NAME = 'interleave_layers__linear_attn_block__grouped_kv_mqa__prompt'
E = os.environ.get
TS_ON = E('TS', '0') == '1'
TS2 = TS_ON and E('TS2', '0') == '1'
DBGBUF = E('DBGBUF', '0') == '1'

T0_ = 0x1000000 if DBGBUF else 0x000000
WP = 0x400000
NT_QKV, NT_OA, NT_Q, NT_OB = 0, 48, 64, 80
WKV16 = 0x700000
STP = 0x780000
LB, LS = 0x880000, 0x140000
KF_, VF_, KMAX_ = LB, LB + 0x10000, LB + 0x20000
KVP_, ZP_ = LB + 0x28000, LB + 0x128000
CFLAG = 0xB00000
GFLAG = 0xB04000
XFLAG = 0xB05000
HFLAG = 0xB20000
TSBUF = 0xB40000
WS_BYTES = 0x10000000
OOB = 0x7FFF0000
_t = lambda n: T0_ + n * 0x200000
XF = [None, _t(1), _t(3), _t(5)]
OLIN = [_t(0), _t(4)]; OF = [_t(2), _t(6)]
KF = [KF_, KF_ + LS]; VF = [VF_, VF_ + LS]; KMAX = [KMAX_, KMAX_ + LS]; KVP = [KVP_, KVP_ + LS]; ZP = [ZP_, ZP_ + LS]

def f2u(x): return struct.unpack('<I', struct.pack('<f', x))[0]
LOG2E = math.log2(math.e)
CQ = 0.25 * LOG2E

class Asm:
    def __init__(self):
        self.l = []; self.uid = 0; self.vm = []; self.done = -1
    def __call__(self, s):
        for line in s.strip('\n').split('\n'):
            self.l.append('    ' + line.strip())
    def label(self, s): self.l.append(s + ':')
    def raw(self, s): self.l.append(s)
    def nop(self, n):
        while n > 0:
            k = min(n, 16); self('s_nop %d' % (k - 1)); n -= k
    def newlabel(self, p='L'):
        self.uid += 1; return '%s_%d' % (p, self.uid)
    def text(self): return '\n'.join(self.l) + '\n'
    def lreset(self): self.lg = []; self.ldone = -1
    def l_(self, tag, s_):
        self(s_); self.lg.append(tag)
    def lwait(self, *tags):
        idx = [i for i, t in enumerate(self.lg) if t in tags]
        if not idx or max(idx) <= self.ldone: return
        self.ldone = max(idx)
        n = len(self.lg) - 1 - max(idx)
        self('s_waitcnt lgkmcnt(%d)' % min(n, 15))
    def vreset(self): self.vm = []; self.done = -1
    def v(self, tag, s):
        self(s); self.vm.append(tag)
    def vwait(self, *tags, extra=''):
        idx = [i for i, t in enumerate(self.vm) if t in tags]
        if max(idx) <= self.done and not extra: return
        self.done = max(self.done, max(idx))
        n = len(self.vm) - 1 - max(idx)
        assert n <= 63
        self('s_waitcnt vmcnt(%d)%s' % (n, extra))

def vr(b, n=4): return 'v[%d:%d]' % (b, b + n - 1)

S_WS, S_IN, S_IN2 = 4, 8, 12
S_RB, S_CS, S_W, S_I, S_J, S_KH = 16, 17, 18, 19, 20, 21
S_BLK, S_LOFF = 22, 23
S_T0, S_T1, S_T2, S_T3, S_T4, S_T5 = 24, 25, 26, 27, 28, 29
S_MASK_LO16 = 30
S_WHICH, S_SLAB = 34, 35
S_CNT, S_PASS, S_CPH, S_GPH = 36, 37, 38, 39
S_FAST, S_SPIN = 62, 63
S_TSI, S_TOFF, S_SOFF, S_GRP = 72, 73, 74, 75
S_DBG = 76
S_WOFF, S_XOFF = 80, 81
S_TS = 82
S_NLO, S_NHI, S_XCC = 32, 33, 91
V_ONES, V_LANE, V_L16, V_XB, V_XA = 0, 1, 2, 3, 4
VM, VR = 10, 11
V_CF1, V_CF0, V_CF2 = 12, 14, 16
V_RES = 20
V_XF = 24
V_ACC = 40
V_PQ = 88
V_CFA, V_GFA, V_PCA, V_Q2 = 96, 97, 98, 99
V_TMP = 100
V_W0, V_W1 = 128, 192
A_Q, A_BIAS, A_S, A_P, A_O, A_K, A_V = 100, 24, [40, 56], 72, 80, [104, 108], [112, 120]
A_KA, A_VA = 5, 6
XBUF = [V_XF, V_XF + 8, V_TMP, V_TMP + 8]
ACC0, ACC1 = V_ACC, V_ACC + 16
V_MF = V_ACC + 32

class LM:
    def __init__(s, red, stat, pkv, kvf, redq, wst=98304): s.red, s.stat, s.pkv, s.kvf, s.redq, s.wst = red, stat, pkv, kvf, redq, wst
LM_STD = LM(red=65536, stat=131072, pkv=135168, kvf=151552, redq=65536)
LDS_U = 155648
LDS_TOTAL = 163840
WSR = 's[%d:%d]' % (S_WS, S_WS + 3)
SPIN_MAX = 200000

def srd(a, d, ptr_s, nbytes):
    a('s_mov_b32 s%d, s%d' % (d, ptr_s))
    a('s_mov_b32 s%d, s%d' % (d + 1, ptr_s + 1))
    a('s_mov_b32 s%d, 0x%x' % (d + 2, nbytes))
    a('s_mov_b32 s%d, 0x00020000' % (d + 3))

def ts(a):
    if not TS_ON: return
    a('s_memrealtime s[%d:%d]' % (S_TS, S_TS + 1))
    a('s_waitcnt lgkmcnt(0)')
    a('s_lshl_b64 exec, 1, s%d' % S_TSI)
    a('v_mov_b32 v99, s%d' % S_TS)
    a('s_mov_b64 exec, -1')
    a('s_add_u32 s%d, s%d, 1' % (S_TSI, S_TSI))

def ts_flush(a):
    if not TS_ON: return
    a('s_lshl_b32 s%d, s2, 3' % S_T0)
    a('s_add_u32 s%d, s%d, s%d' % (S_T0, S_T0, S_W))
    a('s_lshl_b32 s%d, s%d, 8' % (S_T0, S_T0))
    a('s_add_u32 s%d, s%d, 0x%x' % (S_T0, S_T0, TSBUF))
    a('v_lshlrev_b32 v5, 2, v%d' % V_LANE)
    a('buffer_store_dword v99, v5, %s, s%d offen' % (WSR, S_T0))
    a('s_waitcnt vmcnt(0)')

def ts3(a):
    if TS_ON and E('TS3'): ts(a)
def ts2(a):
    if TS2: ts(a)

class role:
    def __init__(s, a, who): s.a, s.who = a, who
    def __enter__(s):
        a = s.a; s.L = a.newlabel('role')
        if s.who == 'A': a('s_cmp_lg_u32 s%d, 0' % S_KH)
        elif s.who == 'B': a('s_cmp_lg_u32 s%d, 1' % S_KH)
        else: a('s_cmp_lg_u32 s%d, %d' % (S_W, s.who))
        a('s_cbranch_scc1 %s' % s.L)
    def __exit__(s, *e): s.a.label(s.L)

def prologue(a, name):
    a.raw('.globl %s' % name); a.raw('.p2align 8'); a.raw('.type %s,@function' % name)
    a.label(name)
    a('s_cmp_ge_u32 s2, 256')
    a('s_cbranch_scc1 L_end')
    a('s_load_dwordx16 s[40:55], s[0:1], 0')
    a('s_load_dwordx4 s[56:59], s[0:1], 64')
    a('s_load_dwordx2 s[60:61], s[0:1], 80')
    a('s_and_b32 s%d, s2, 7' % S_GRP)
    a('s_lshl_b32 s%d, s%d, 2' % (S_RB, S_GRP))
    a('s_lshr_b32 s%d, s2, 6' % S_T0)
    a('s_add_u32 s%d, s%d, s%d' % (S_RB, S_RB, S_T0))
    a('s_bfe_u32 s%d, s2, 0x30003' % S_CS)
    a('v_lshrrev_b32 v5, 6, v0')
    a('v_and_b32 v%d, 63, v0' % V_LANE)
    a('s_nop 0')
    a('v_readfirstlane_b32 s%d, v5' % S_W)
    a('v_lshlrev_b32 v%d, 4, v%d' % (V_L16, V_LANE))
    a('s_nop 3')
    a('s_and_b32 s%d, s%d, 1' % (S_I, S_W))
    a('s_bfe_u32 s%d, s%d, 0x10001' % (S_J, S_W))
    a('s_lshr_b32 s%d, s%d, 2' % (S_KH, S_W))
    a('s_lshl_b32 s%d, s%d, 1' % (S_T0, S_RB))
    a('s_add_u32 s%d, s%d, s%d' % (S_T0, S_T0, S_I))
    a('s_lshl_b32 s%d, s%d, 5' % (S_T0, S_T0))
    a('s_lshl_b32 s%d, s%d, 2' % (S_T1, S_CS))
    a('s_add_u32 s%d, s%d, s%d' % (S_T0, S_T0, S_T1))
    a('s_lshl_b32 s%d, s%d, 1' % (S_T1, S_J))
    a('s_add_u32 s%d, s%d, s%d' % (S_T0, S_T0, S_T1))
    a('s_add_u32 s%d, s%d, s%d' % (S_T0, S_T0, S_KH))
    a('s_lshl_b32 s%d, s%d, 10' % (S_BLK, S_T0))
    a('s_lshl_b32 s%d, s%d, 14' % (S_T1, S_I))
    a('s_mul_i32 s%d, s%d, 49152' % (S_T0, S_I))
    a('v_add_u32 v%d, s%d, v%d' % (V_XA, S_T0, V_L16))
    a('v_xor_b32 v%d, 32768, v%d' % (V_XB, V_XA))
    a('s_lshl_b32 s%d, s%d, 1' % (S_T0, S_CS))
    a('s_add_u32 s%d, s%d, s%d' % (S_T0, S_T0, S_J))
    a('s_lshl_b32 s%d, s%d, 6' % (S_WOFF, S_T0))
    a('s_lshl_b32 s%d, s%d, 16' % (S_XOFF, S_RB))
    a('v_mov_b32 v%d, 0x3f803f80' % V_ONES)
    a('s_mov_b32 s%d, 0x0000ffff' % S_MASK_LO16)
    a('s_mov_b32 s%d, 0x0000ffff' % (S_MASK_LO16 + 1))
    a('s_and_b32 s%d, s%d, 1' % (S_WHICH, S_CS))
    a('s_lshr_b32 s%d, s%d, 1' % (S_SLAB, S_CS))
    a('s_mov_b32 s%d, 0' % S_LOFF)
    a('s_mov_b32 s%d, 0' % S_CPH)
    a('s_mov_b32 s%d, 0' % S_GPH)
    a('s_mov_b32 s%d, 0' % S_FAST)
    a('s_mov_b32 s%d, 0x%x' % (S_TOFF, T0_))
    a('s_mov_b32 s%d, 0x%x' % (S_SOFF, STP))
    a('s_lshl_b32 s%d, s%d, 9' % (S_T0, S_RB))
    a('s_add_u32 s%d, s%d, 0x%x' % (S_T0, S_T0, CFLAG))
    a('v_lshlrev_b32 v5, 3, v%d' % V_LANE)
    a('v_add_u32 v%d, s%d, v5' % (V_PCA, S_T0))
    a('s_lshl_b32 s%d, s%d, 6' % (S_T1, S_CS))
    a('s_add_u32 s%d, s%d, s%d' % (S_T0, S_T0, S_T1))
    a('s_lshl_b32 s%d, s%d, 3' % (S_T1, S_W))
    a('s_add_u32 s%d, s%d, s%d' % (S_T0, S_T0, S_T1))
    a('v_mov_b32 v%d, s%d' % (V_CFA, S_T0))
    a('s_getreg_b32 s%d, hwreg(HW_REG_XCC_ID)' % S_XCC)
    a('s_and_b32 s%d, s%d, 15' % (S_XCC, S_XCC))
    a('s_lshl_b32 s%d, s%d, 6' % (S_T0, S_RB))
    a('s_lshl_b32 s%d, s%d, 3' % (S_T1, S_CS))
    a('s_add_u32 s%d, s%d, s%d' % (S_T0, S_T0, S_T1))
    a('s_add_u32 s%d, s%d, 0x%x' % (S_T0, S_T0, GFLAG))
    a('v_mov_b32 v%d, s%d' % (V_GFA, S_T0))
    a('s_mov_b32 s%d, 0' % S_TSI)
    a('v_mov_b32 v99, 0')
    a('s_waitcnt lgkmcnt(0)')
    srd(a, S_WS, 60, WS_BYTES)
    srd(a, S_DBG, 58, 256)

def epilogue(a, name, nv=256):
    a.label('L_end')
    a('s_endpgm')
    a.raw('.section .rodata,"a"'); a.raw('.p2align 6')
    a.raw('.amdhsa_kernel %s' % name)
    a.raw('  .amdhsa_next_free_vgpr %d' % nv)
    a.raw('  .amdhsa_next_free_sgpr 96')
    a.raw('  .amdhsa_accum_offset %d' % ((nv + 3) // 4 * 4))
    a.raw('  .amdhsa_group_segment_fixed_size 0')
    a.raw('  .amdhsa_kernarg_size 88')
    a.raw('  .amdhsa_user_sgpr_count 2')
    a.raw('  .amdhsa_user_sgpr_kernarg_segment_ptr 1')
    a.raw('  .amdhsa_system_sgpr_workgroup_id_x 1')
    a.raw('  .amdhsa_float_denorm_mode_32 3')
    a.raw('.end_amdhsa_kernel')

def fast_store(a, fmts):
    L1 = a.newlabel('fs'); L2 = a.newlabel('fs')
    a('s_cmp_eq_u32 s%d, 1' % S_FAST)
    a('s_cbranch_scc1 %s' % L1)
    for f in fmts: a(f.replace('@', ' sc1'))
    a('s_branch %s' % L2)
    a.label(L1)
    for f in fmts: a(f.replace('@', ''))
    a.label(L2)

def tagval(a, v, sph, xcc=False):
    a('s_lshl_b32 s%d, s%d, 4' % (S_T0, sph))
    a('s_add_u32 s%d, s%d, s%d' % (S_T0, S_T0, S_NLO))
    if xcc: a('s_add_u32 s%d, s%d, s%d' % (S_T0, S_T0, S_XCC))
    a('v_mov_b32 v%d, s%d' % (v, S_T0))
    a('v_mov_b32 v%d, s%d' % (v + 1, S_NHI))

def tagbase(a, sdst, sph):
    a('s_lshl_b32 s%d, s%d, 4' % (sdst, sph))
    a('s_add_u32 s%d, s%d, s%d' % (sdst, sdst, S_NLO))

def tagcmp(pairs, sbase, t):
    out = []
    for n, p in enumerate(pairs):
        out.append('v_subrev_u32 v%d, s%d, v%d' % (p, sbase, p))
        out.append('v_xor_b32 v%d, s%d, v%d' % (p + 1, S_NHI, p + 1))
        out.append('v_lshrrev_b32 v%d, 12, v%d' % (p, p))
        if n == 0: out.append('v_or_b32 v%d, v%d, v%d' % (t, p, p + 1))
        else: out.append('v_or3_b32 v%d, v%d, v%d, v%d' % (t, t, p, p + 1))
    out.append('v_cmp_ne_u32 vcc, 0, v%d' % t)
    return out

def csignal(a, tag=None):
    a('s_add_u32 s%d, s%d, 1' % (S_CPH, S_CPH))
    tagval(a, 6, S_CPH, True)
    if tag is None:
        a('s_waitcnt vmcnt(0) lgkmcnt(0)')
    a('s_mov_b64 exec, 1')
    fast_store(a, ['buffer_store_dwordx2 v[6:7], v%d, %s, 0 offen@' % (V_CFA, WSR)])
    a('s_mov_b64 exec, -1')
    if tag: a.vm.append(tag)

def poll(a, load, cmp, sleep=0):
    Lp = a.newlabel('pl'); Lo = a.newlabel('po')
    a('s_mov_b32 s%d, 0' % S_SPIN)
    a.label(Lp)
    a('s_add_u32 s%d, s%d, 1' % (S_SPIN, S_SPIN))
    a('s_cmp_gt_u32 s%d, %d' % (S_SPIN, SPIN_MAX))
    a('s_cbranch_scc1 L_end')
    for l in load: a(l)
    a('s_waitcnt vmcnt(0)')
    for c in cmp: a(c)
    if sleep:
        a('s_cbranch_vccz %s' % Lo)
        a('s_sleep %d' % sleep)
        a('s_branch %s' % Lp)
        a.label(Lo)
    else:
        a('s_cbranch_vccnz %s' % Lp)

def cwait(a):
    tagbase(a, 65, S_CPH)
    Lp = a.newlabel('cw'); Lo = a.newlabel('co')
    ld = lambda v: a('buffer_load_dwordx2 v[%d:%d], v%d, %s, 0 offen sc1' % (v, v + 1, V_PCA, WSR))
    a('s_mov_b32 s%d, 0' % S_SPIN)
    ld(8)
    a.label(Lp)
    a('s_add_u32 s%d, s%d, 1' % (S_SPIN, S_SPIN))
    a('s_cmp_gt_u32 s%d, %d' % (S_SPIN, SPIN_MAX))
    a('s_cbranch_scc1 L_end')
    if int(E('CSLEEP', '1')): a('s_sleep %s' % E('CSLEEP', '1'))
    ld(92)
    a('s_waitcnt vmcnt(1)')
    for c in tagcmp([8], 65, 7): a(c)
    a('s_cbranch_vccz %s' % Lo)
    if int(E('CSLEEP', '1')): a('s_sleep %s' % E('CSLEEP', '1'))
    ld(8)
    a('s_waitcnt vmcnt(1)')
    for c in tagcmp([92], 65, 7): a(c)
    a('s_cbranch_vccnz %s' % Lp)
    a.label(Lo)

def lpoll_addr(a, v):
    a('v_and_b32 v%d, 31, v%d' % (v, V_LANE))
    a('v_lshlrev_b32 v%d, 3, v%d' % (v, v))
    a('s_lshl_b32 s66, s%d, 8' % S_GRP)
    a('s_add_u32 s66, s66, 0x%x' % GFLAG)

def lwait(a):
    tagbase(a, 65, S_GPH)
    lpoll_addr(a, 5)
    poll(a, ['buffer_load_dwordx2 v[8:9], v5, %s, s66 offen sc1' % WSR], tagcmp([8], 65, 7))

def lsignal(a):
    tagval(a, 6, S_GPH, True)
    a('s_mov_b64 exec, 1')
    fast_store(a, ['buffer_store_dwordx2 v[6:7], v%d, %s, 0 offen@' % (V_GFA, WSR)])
    a('s_mov_b64 exec, -1')

DBR = 's[%d:%d]' % (S_DBG, S_DBG + 3)
NP = 18
def nonce_publish(a):
    L = a.newlabel('np')
    a('s_cmp_lg_u32 s2, 0')
    a('s_cbranch_scc1 %s' % L)
    a('s_cmp_lg_u32 s%d, 0' % S_W)
    a('s_cbranch_scc1 %s' % L)
    a('s_memrealtime s[64:65]')
    a('s_waitcnt lgkmcnt(0)')
    a('s_lshl_b64 s[64:65], s[64:65], 12')
    a('s_or_b32 s65, s65, 0x80000000')
    a('v_mov_b32 v6, s64')
    a('v_mov_b32 v7, s65')
    a('v_mov_b32 v5, 0')
    a('s_mov_b64 exec, 1')
    a('buffer_store_dwordx2 v[6:7], v5, %s, 0 offen sc1' % DBR)
    a('s_mov_b64 exec, -1')
    a.label(L)

def nonce_probe(a):
    a('v_mov_b32 v5, 0')
    a.v('np', 'buffer_load_dwordx2 v[%d:%d], v5, %s, 0 offen sc1' % (NP, NP + 1, DBR))

def nonce_check(a):
    Lok = a.newlabel('nok')
    a.vwait('np')
    a('v_cmp_eq_u32 vcc, 0, v%d' % (NP + 1))
    a('s_cbranch_vccz %s' % Lok)
    a('v_mov_b32 v5, 0')
    poll(a, ['buffer_load_dwordx2 v[%d:%d], v5, %s, 0 offen sc1' % (NP, NP + 1, DBR)], ['v_cmp_eq_u32 vcc, 0, v%d' % (NP + 1)], sleep=2)
    a.label(Lok)
    a('v_readfirstlane_b32 s%d, v%d' % (S_NLO, NP))
    a('v_readfirstlane_b32 s%d, v%d' % (S_NHI, NP + 1))
    a('s_nop 3')

PR = 80
def p1_probe(a):
    lpoll_addr(a, PR + 6)
    a.v('pr', 'buffer_load_dwordx2 v[%d:%d], v%d, %s, s66 offen sc1' % (PR + 2, PR + 3, PR + 6, WSR))

def p1_check(a):
    L2 = a.newlabel('pc')
    a.vwait('pr')
    tagbase(a, 65, S_GPH)
    a('v_mov_b32 v%d, v%d' % (PR + 4, PR + 2))
    for c in tagcmp([PR + 2], 65, 7): a(c)
    a('s_cbranch_vccz %s' % L2)
    poll(a, ['buffer_load_dwordx2 v[%d:%d], v%d, %s, s66 offen sc1' % (PR + 2, PR + 3, PR + 6, WSR)],
         ['v_mov_b32 v%d, v%d' % (PR + 4, PR + 2)] + tagcmp([PR + 2], 65, 7), sleep=1)
    a.label(L2)
    a('v_and_b32 v%d, 15, v%d' % (PR + 4, PR + 4))
    a('v_cmp_ne_u32 vcc, s%d, v%d' % (S_XCC, PR + 4))
    a('s_nop 3')
    a('s_cmp_eq_u64 vcc, 0')
    a('s_cselect_b32 s%d, 1, 0' % S_FAST)
    if E('NOFAST'):
        a('s_mov_b32 s%d, 0' % S_FAST)

def next_tile(a):
    if DBGBUF: a('s_add_u32 s%d, s%d, 0x200000' % (S_TOFF, S_TOFF))
    else: a('s_xor_b32 s%d, s%d, 0x200000' % (S_TOFF, S_TOFF))

def colsum(a, vw, vcs):
    a('v_mov_b32 v%d, 0' % vcs)
    a('s_nop 1')
    for r in range(64):
        a('v_dot2_f32_bf16 v%d, v%d, v%d, v%d' % (vcs, vw + r, V_ONES, vcs))
    a.nop(3)

def rowcol_off(a):
    a('s_lshl_b32 s%d, s%d, 15' % (S_T1, S_I))
    a('s_add_u32 s%d, s%d, s%d' % (S_T0, S_XOFF, S_T1))
    a('s_lshl_b32 s%d, s%d, 7' % (S_T1, S_CS))
    a('s_add_u32 s%d, s%d, s%d' % (S_T0, S_T0, S_T1))
    a('s_lshl_b32 s%d, s%d, 6' % (S_T1, S_J))
    a('s_add_u32 s%d, s%d, s%d' % (S_T0, S_T0, S_T1))
    a('s_lshl_b32 s%d, s%d, 5' % (S_T1, S_KH))
    a('s_add_u32 s%d, s%d, s%d' % (S_T0, S_T0, S_T1))

U_Q, U_K, U_V, U_OA, U_WQ, U_OB = range(6)
UPTR = {U_Q: 42, U_K: 42, U_V: 42, U_OA: 44, U_WQ: 48, U_OB: 54}
ULD = {U_Q: 3072, U_K: 3072, U_V: 3072, U_OA: 1024, U_WQ: 1024, U_OB: 1024}
UCOL = {U_Q: 0, U_K: 1024, U_V: 2048, U_OA: 0, U_WQ: 0, U_OB: 0}
def raw_setup(a, uA, uB, R, sbase, sstep, vdma):
    def sel(d, x, y):
        if x == y: a('s_mov_b32 s%d, %s' % (d, x))
        else:
            a('s_mov_b32 s%d, %s' % (d, x))
            a('s_cmp_eq_u32 s%d, 1' % S_KH)
            a('s_cselect_b32 s%d, %s, s%d' % (d, y, d))
    sel(R, 's%d' % UPTR[uA], 's%d' % UPTR[uB])
    sel(R + 1, 's%d' % (UPTR[uA] + 1), 's%d' % (UPTR[uB] + 1))
    sel(R + 2, '0x%x' % (ULD[uA] * 512), '0x%x' % (ULD[uB] * 512))
    a('s_mov_b32 s%d, 0x00020000' % (R + 3))
    sel(sstep, str(ULD[uA]), str(ULD[uB]))
    sel(sbase, str(UCOL[uA]), str(UCOL[uB]))
    a('v_lshrrev_b32 v%d, 2, v%d' % (vdma, V_LANE))
    a('v_mul_lo_u32 v%d, v%d, s%d' % (vdma, vdma, sstep))
    a('v_and_b32 v7, 3, v%d' % V_LANE)
    a('v_lshl_add_u32 v%d, v7, 4, v%d' % (vdma, vdma))
    a('s_lshl_b32 s%d, s%d, 4' % (sstep, sstep))
    a('s_lshl_b32 s%d, s%d, 4' % (S_T0, S_I))
    a('s_mul_i32 s%d, s%d, s%d' % (S_T0, S_T0, sstep))
    a('s_add_u32 s%d, s%d, s%d' % (sbase, sbase, S_T0))
    a('s_add_u32 s%d, s%d, s%d' % (sbase, sbase, S_WOFF))

def raw_rdaddr(a, v, slds):
    a('v_lshrrev_b32 v%d, 5, v%d' % (v, V_LANE))
    a('v_lshlrev_b32 v%d, 8, v%d' % (v, v))
    a('v_bfe_u32 v7, v%d, 2, 2' % V_LANE)
    a('v_lshl_add_u32 v%d, v7, 6, v%d' % (v, v))
    a('v_bfe_u32 v7, v%d, 4, 1' % V_LANE)
    a('v_lshl_add_u32 v%d, v7, 5, v%d' % (v, v))
    a('v_and_b32 v7, 3, v%d' % V_LANE)
    a('v_lshl_add_u32 v%d, v7, 3, v%d' % (v, v))
    a('v_add_u32 v%d, s%d, v%d' % (v, slds, v))

def raw_dma(R, sbase, sstep, vdma, slds, off):
    return ['s_add_u32 m0, s%d, %d' % (slds, off), 's_nop 0',
            'buffer_load_dwordx4 v%d, s[%d:%d], s%d offen lds' % (vdma, R, R + 3, sbase),
            's_add_u32 s%d, s%d, s%d' % (sbase, sbase, sstep)]

def raw_rd(dst, va, off):
    return ['ds_read_b64_tr_b16 v[%d:%d], v%d offset:%d' % (dst, dst + 1, va, off),
            'ds_read_b64_tr_b16 v[%d:%d], v%d offset:%d' % (dst + 2, dst + 3, va, off + 512)]

RW_D, RW_A = 94, 95
def load_w_issue(a, u, lds0, half):
    if half == 0:
        raw_setup(a, u, u, S_IN2, 68, 69, RW_D)
        a('s_and_b32 s70, s%d, 3' % S_W)
        a('s_lshl_b32 s70, s70, 13')
        a('s_add_u32 s70, s70, %d' % lds0)
        raw_rdaddr(a, RW_A, 70)
    for k in range(8):
        for l in raw_dma(S_IN2, 68, 69, RW_D, 70, k * 1024): a(l)

def load_w_read(a, vbase, half):
    for k in range(8):
        for l in raw_rd(vbase + 4 * (8 * half + k), RW_A, k * 1024): a(l)
    a('s_waitcnt lgkmcnt(0)')

def load_w_sync(a, u, vbase, lds0):
    for half in range(2):
        load_w_issue(a, u, lds0, half)
        a('s_waitcnt vmcnt(0)')
        load_w_read(a, vbase, half)

def load_w_ring(a, u, vbase, nslots):
    raw_setup(a, u, u, S_IN2, 68, 69, RW_D)
    raw_rdaddr(a, RW_A, 70)
    for k in range(nslots):
        for l in raw_dma(S_IN2, 68, 69, RW_D, 70, k * 1024): a(l)
    for k in range(16):
        a('s_waitcnt vmcnt(%d)' % min(nslots - 1, 15 - k))
        for l in raw_rd(vbase + 4 * k, RW_A, (k % nslots) * 1024): a(l)
        if k + nslots < 16:
            a('s_waitcnt lgkmcnt(0)')
            for l in raw_dma(S_IN2, 68, 69, RW_D, 70, (k % nslots) * 1024): a(l)
    a('s_waitcnt lgkmcnt(0)')

LDS_W16 = 135168
def dma_w16(a):
    a('s_cmp_eq_u32 s%d, 1' % S_WHICH)
    a('s_cselect_b32 s%d, s52, s50' % S_IN2)
    a('s_cselect_b32 s%d, s53, s51' % (S_IN2 + 1))
    a('s_mov_b32 s%d, 0x4000' % (S_IN2 + 2))
    a('s_mov_b32 s%d, 0x00020000' % (S_IN2 + 3))
    a('s_and_b32 s%d, s%d, 3' % (S_T0, S_W))
    a('s_lshl_b32 s%d, s%d, 12' % (S_T0, S_T0))
    a('s_add_u32 m0, s%d, %d' % (S_T0, LDS_W16))
    a('s_nop 0')
    for k in range(4):
        a('buffer_load_dwordx4 v%d, s[%d:%d], s%d offen offset:%d lds' % (V_L16, S_IN2, S_IN2 + 3, S_T0, k * 1024))

STL = 88
SDG, SDL = 84, 85
def dma_setup(a, all8):
    a('s_lshl_b32 s%d, s%d, 15' % (SDL, S_I))
    a('s_lshl_b32 s%d, s%d, 14' % (S_T2, S_J))
    a('s_add_u32 s%d, s%d, s%d' % (SDL, SDL, S_T2))
    if all8:
        a('s_lshl_b32 s%d, s%d, 11' % (S_T2, S_KH))
        a('s_add_u32 s%d, s%d, s%d' % (SDL, SDL, S_T2))
    a('s_add_u32 s%d, s%d, s%d' % (SDG, S_TOFF, S_XOFF))
    a('s_add_u32 s%d, s%d, s%d' % (SDG, SDG, SDL))

def dma_chunk(a, n):
    a('s_mov_b32 m0, s%d' % SDL)
    a('s_add_u32 s%d, s%d, 4096' % (SDL, SDL))
    for t in range(n):
        a('buffer_load_dwordx4 v%d, %s, s%d offen offset:%d sc1 lds' % (V_L16, WSR, SDG, t * 1024))
    a('s_add_u32 s%d, s%d, 4096' % (SDG, SDG))

def st_issue(a, all8):
    n = 4 if all8 else 8
    a('v_lshlrev_b32 v5, 3, v%d' % V_LANE)
    a('s_lshr_b32 s%d, s%d, 2' % (S_T0, S_XOFF))
    if all8: a('s_lshl_b32 s%d, s%d, 11' % (S_T1, S_W))
    else:
        a('s_and_b32 s%d, s%d, 3' % (S_T1, S_W))
        a('s_lshl_b32 s%d, s%d, 12' % (S_T1, S_T1))
    a('s_add_u32 s%d, s%d, s%d' % (S_T0, S_T0, S_T1))
    a('s_add_u32 s%d, s%d, s%d' % (S_T0, S_T0, S_SOFF))
    for q in range(n):
        a('buffer_load_dwordx2 v[%d:%d], v5, %s, s%d offen offset:%d sc1' % (80 + 2 * q, 81 + 2 * q, WSR, S_T0, q * 512))

def st_partial(a, all8):
    T = 80; n = 4 if all8 else 8
    while n > 1:
        n //= 2
        for q in range(n): pk_add(a, T + 2 * q, T + 2 * q, T + 2 * (q + n))
    if all8: a('s_lshl_b32 s%d, s%d, 9' % (S_T0, S_W))
    else:
        a('s_and_b32 s%d, s%d, 3' % (S_T0, S_W))
        a('s_lshl_b32 s%d, s%d, 9' % (S_T0, S_T0))
    a('s_add_u32 s%d, s%d, %d' % (S_T0, S_T0, LM_STD.stat))
    a('v_lshlrev_b32 v5, 3, v%d' % V_LANE)
    a('v_add_u32 v5, s%d, v5' % S_T0)
    a('ds_write_b64 v5, v[%d:%d]' % (T, T + 1))
    a('s_waitcnt lgkmcnt(0)')

def rs_issue(a, stat, nparts, T=80):
    a('v_lshlrev_b32 v5, 3, v%d' % V_LANE)
    a('v_add_u32 v5, %d, v5' % stat)
    for q in range(nparts // 2):
        a('ds_read2st64_b64 %s, v5 offset0:%d offset1:%d' % (vr(T + 4 * q), 2 * q, 2 * q + 1))

def rs_math(a, nparts, T=80):
    n = nparts
    while n > 2:
        n //= 2
        for q in range(n): pk_add(a, T + 2 * q, T + 2 * q, T + 2 * (q + n))
    pk_add(a, VM, T, T + 2)
    stats_math(a, VM, VR)

def rs_spread(a, frags):
    a('v_mov_b32 v8, v%d' % VM)
    a('v_mov_b32 v9, v%d' % VR)
    a('s_cmp_eq_u32 s%d, 1' % S_I)
    a('s_cselect_b64 s[%d:%d], -1, 0' % (S_T2, S_T3))
    a('v_permlane32_swap_b32 v%d, v8' % VM)
    a('v_permlane32_swap_b32 v%d, v9' % VR)
    a('s_nop 1')
    a('v_cndmask_b32_e64 v%d, v%d, v9, s[%d:%d]' % (VR, VR, S_T2, S_T3))
    if frags:
        a('v_cndmask_b32_e64 v9, v%d, v8, s[%d:%d]' % (VM, S_T2, S_T3))
        a('v_cndmask_b32_e64 v8, v8, v%d, s[%d:%d]' % (VM, S_T2, S_T3))
        make_mfrag(a, 9, V_MF)
        make_mfrag(a, 8, V_MF + 4)

def toggle_bufs(a, stats):
    next_tile(a)
    if stats: a('s_xor_b32 s%d, s%d, 0x%x' % (S_SOFF, S_SOFF, STP ^ (STP + 0x80000)))

def tsb(a):
    if E('TSB'): ts(a)

def loader_path(a, stats, extra=None, hook=None):
    nx = 4 if extra else 0
    cwait(a)
    tsb(a)
    dma_setup(a, False)
    dma_chunk(a, 4)
    dma_chunk(a, 4)
    a('s_waitcnt vmcnt(4)')
    a('s_barrier')
    tsb(a)
    dma_chunk(a, 4)
    if hook: hook('pre')
    a('s_waitcnt vmcnt(4)')
    a('s_barrier')
    tsb(a)
    dma_chunk(a, 4)
    if extra: extra()
    a('s_waitcnt vmcnt(%d)' % (4 + nx))
    a('s_barrier')
    tsb(a)
    if stats:
        rs_issue(a, LM_STD.stat, 4)
    a('s_waitcnt vmcnt(%d)' % nx)
    a('s_barrier')
    tsb(a)
    if hook: hook('main')
    elif stats:
        a('s_waitcnt lgkmcnt(0)')
        rs_math(a, 4)
    if stats: rs_spread(a, False)
    if extra: a('s_waitcnt vmcnt(0)')

def active_path(a, w, stats, all8=False):
    def rd(t):
        b = XBUF[t % 4]
        a('ds_read_b128 %s, v%d offset:%d' % (vr(b), V_XA, t * 1024))
        a('ds_read_b128 %s, v%d offset:%d' % (vr(b + 4), V_XB, t * 1024))
    np_ = 8 if all8 else 4
    if all8:
        cwait(a)
        dma_setup(a, True)
        dma_chunk(a, 2)
        dma_chunk(a, 2)
        st_issue(a, True)
        a('s_waitcnt vmcnt(6)')
    elif stats:
        cwait(a)
        tsb(a)
        st_issue(a, False)
    a('s_barrier')
    tsb(a)
    for t in range(3): rd(t)
    for t in range(16):
        b = XBUF[t % 4]
        if t in (1, 5, 9):
            if all8:
                if t < 9: dma_chunk(a, 2)
                a('s_waitcnt vmcnt(%d)' % {1: 6, 5: 2, 9: 0}[t])
                if t == 5: st_partial(a, True)
            elif stats and t == 5:
                a('s_waitcnt vmcnt(0)')
                st_partial(a, False)
            a('s_barrier')
            tsb(a)
        if t == 6 and stats:
            rs_issue(a, LM_STD.stat, np_)
        if t + 3 < 16:
            rd(t + 3)
        a('s_waitcnt lgkmcnt(%d)' % (2 * min(3, 15 - t)))
        for q, acc in enumerate((ACC0, ACC1)):
            c = '0' if t == 0 else vr(acc, 16)
            a('v_mfma_f32_32x32x16_bf16 %s, %s, %s, %s' % (vr(acc, 16), vr(w + 4 * t), vr(b + 4 * q), c))
        if t == 10 and stats: rs_math(a, np_)
        if t == 11 and stats: rs_spread(a, True)

class ifelse:
    def __init__(s, a): s.a = a; s.L1 = a.newlabel('ie'); s.L2 = a.newlabel('ie')
    def if_set(s, k):
        s.a('s_cmp_lg_u32 s%d, %d' % (S_KH, k)); s.a('s_cbranch_scc1 %s' % s.L1)
    def else_(s):
        s.a('s_branch %s' % s.L2); s.a.label(s.L1)
    def end(s): s.a.label(s.L2)

def kloop(a, w, t0, t1):
    def rd(t):
        b = XBUF[t % 4]
        a('ds_read_b128 %s, v%d offset:%d' % (vr(b), V_XA, t * 1024))
        a('ds_read_b128 %s, v%d offset:%d' % (vr(b + 4), V_XB, t * 1024))
    for t in range(t0, min(t0 + 3, t1)):
        rd(t)
    for t in range(t0, t1):
        b = XBUF[t % 4]
        if t + 3 < t1:
            rd(t + 3)
        a('s_waitcnt lgkmcnt(%d)' % (2 * min(3, t1 - 1 - t)))
        for q, acc in enumerate((ACC0, ACC1)):
            c = '0' if t == 0 else vr(acc, 16)
            a('v_mfma_f32_32x32x16_bf16 %s, %s, %s, %s' % (vr(acc, 16), vr(w + 4 * t), vr(b + 4 * q), c))

def halves_sum(a, v, tmp, op='v_add_f32'):
    a('v_mov_b32 v%d, v%d' % (tmp, v))
    a('s_nop 1')
    a('v_permlane32_swap_b32 v%d, v%d' % (v, tmp))
    a('s_nop 1')
    a('%s v%d, v%d, v%d' % (op, v, v, tmp))

def bf16r(a, v):
    a('v_cvt_pk_bf16_f32 v%d, v%d, v%d' % (v, v, v))
    a('v_and_b32 v%d, 0xffff0000, v%d' % (v, v))

def pk_add(a, d, x, y):
    a('v_pk_add_f32 v[%d:%d], v[%d:%d], v[%d:%d]' % (d, d + 1, x, x + 1, y, y + 1))

def stats_math(a, vm, vrstd):
    a('v_mul_f32 v%d, 0x%x, v%d' % (vm, f2u(1.0 / 512), vm))
    a('v_mul_f32 v%d, 0x%x, v%d' % (vrstd, f2u(1.0 / 512), vrstd))
    a('v_fma_f32 v%d, -v%d, v%d, v%d' % (vrstd, vm, vm, vrstd))
    a('v_max_f32 v%d, 0, v%d' % (vrstd, vrstd))
    bf16r(a, vrstd)
    a('v_add_f32 v%d, 0x%x, v%d' % (vrstd, f2u(1e-5), vrstd))
    bf16r(a, vrstd)
    a('v_sqrt_f32 v%d, v%d' % (vrstd, vrstd))
    a('s_nop 0')
    bf16r(a, vrstd)
    a('v_rcp_f32 v%d, v%d' % (vrstd, vrstd))
    bf16r(a, vm)

def stats_read(a, lm, vrow, T, vm=VM):
    a('v_lshlrev_b32 v%d, 3, v%d' % (vrow, vrow))
    a('v_add_u32 v%d, %d, v%d' % (vrow, lm.stat, vrow))
    for q in range(4):
        a('ds_read2st64_b64 %s, v%d offset0:%d offset1:%d' % (vr(T + 4 * q), vrow, 2 * q, 2 * q + 1))
    a('s_waitcnt lgkmcnt(0)')
    for q in range(4):
        pk_add(a, T + 4 * q, T + 4 * q, T + 4 * q + 2)
    pk_add(a, T, T, T + 4)
    pk_add(a, T + 8, T + 8, T + 12)
    pk_add(a, vm, T, T + 8)
    stats_math(a, vm, vm + 1)

def ln_stats(a, lm, T=V_TMP):
    a('v_and_b32 v5, 31, v%d' % V_LANE)
    a('s_lshl_b32 s%d, s%d, 5' % (S_T0, S_I))
    a('v_add_u32 v5, s%d, v5' % S_T0)
    stats_read(a, lm, 5, T)

def make_mfrag(a, vm, d):
    a('v_cvt_pk_bf16_f32 v%d, -v%d, -v%d' % (d, vm, vm))
    a('v_cvt_pk_bf16_f32 v%d, -v%d, -v%d' % (d + 1, vm, vm))
    a('v_mov_b32 v%d, 0' % (d + 2))
    a('v_mov_b32 v%d, 0' % (d + 3))

def mean_issue(a, lm):
    T = V_ACC + 40
    a('v_and_b32 v5, 31, v%d' % V_LANE)
    a('v_lshlrev_b32 v5, 3, v5')
    a('s_lshl_b32 s%d, s%d, 8' % (S_T0, S_I))
    a('s_add_u32 s%d, s%d, %d' % (S_T0, S_T0, lm.stat))
    a('v_add_u32 v5, s%d, v5' % S_T0)
    a('v_xor_b32 v6, 256, v5')
    for q in range(2):
        for k in range(4):
            a('ds_read2st64_b32 v[%d:%d], v%d offset0:%d offset1:%d' % (T + 8 * q + 2 * k, T + 8 * q + 2 * k + 1, 5 + q, 4 * k, 4 * k + 2))

def mean_finish(a):
    T = V_ACC + 40
    for q in range(2):
        t = T + 8 * q
        pk_add(a, t, t, t + 2)
        pk_add(a, t + 4, t + 4, t + 6)
        pk_add(a, t, t, t + 4)
        a('v_add_f32 v%d, v%d, v%d' % (t, t, t + 1))
        a('v_mul_f32 v%d, 0x%x, v%d' % (t, f2u(1.0 / 512), t))
        make_mfrag(a, t, V_MF + 4 * q)
    a('s_nop 1')

def mean_frags(a, lm):
    mean_issue(a, lm)
    a('s_waitcnt lgkmcnt(0)')
    mean_finish(a)

def stats_load_issue(a, T=V_TMP, tag=None):
    a('v_lshlrev_b32 v5, 3, v%d' % V_LANE)
    a('s_lshr_b32 s%d, s%d, 2' % (S_T0, S_XOFF))
    a('s_lshl_b32 s%d, s%d, 11' % (S_T1, S_W))
    a('s_add_u32 s%d, s%d, s%d' % (S_T0, S_T0, S_T1))
    a('s_add_u32 s%d, s%d, s%d' % (S_T0, S_T0, S_SOFF))
    for q in range(4):
        a.v(tag, 'buffer_load_dwordx2 v[%d:%d], v5, %s, s%d offen offset:%d sc1' % (T + 2 * q, T + 2 * q + 1, WSR, S_T0, q * 512))

def stats_load_finish(a, lm, T=V_TMP):
    pk_add(a, T, T, T + 2)
    pk_add(a, T + 4, T + 4, T + 6)
    pk_add(a, T, T, T + 4)
    a('s_lshl_b32 s%d, s%d, 9' % (S_T0, S_W))
    a('s_add_u32 s%d, s%d, %d' % (S_T0, S_T0, lm.stat))
    a('v_lshlrev_b32 v5, 3, v%d' % V_LANE)
    a('v_add_u32 v5, s%d, v5' % S_T0)
    a('ds_write_b64 v5, v[%d:%d]' % (T, T + 1))
    a('s_xor_b32 s%d, s%d, 0x%x' % (S_SOFF, S_SOFF, STP ^ (STP + 0x80000)))

def make_csfrag(a, vc, d, t):
    a('v_cvt_pk_bf16_f32 v%d, v%d, v%d' % (t, vc, vc))
    a('v_and_b32 v%d, 0xffff0000, v%d' % (t, t))
    a('v_sub_f32 v%d, v%d, v%d' % (t + 1, vc, t))
    a('v_cvt_pk_bf16_f32 v%d, v%d, v%d' % (d, t, t + 1))
    a('v_and_b32 v%d, 0xffff0000, v%d' % (t, d))
    a('v_sub_f32 v%d, v%d, v%d' % (t + 1, t + 1, t))
    a('v_cvt_pk_bf16_f32 v%d, v%d, 0' % (d + 1, t + 1))

def y_correct(a, cf):
    for q, acc in enumerate((ACC0, ACC1)):
        a('v_mfma_f32_32x32x16_bf16 %s, %s, %s, %s' % (vr(acc, 16), vr(cf), vr(V_MF + 4 * q), vr(acc, 16)))

def y_red_write(a, base, own):
    a('s_lshl_b32 s%d, s%d, 13' % (S_T0, S_J))
    a('s_mul_i32 s%d, s%d, 6144' % (S_T1, S_I))
    a('s_add_u32 s%d, s%d, s%d' % (S_T0, S_T0, S_T1))
    a('s_add_u32 s%d, s%d, %d' % (S_T0, S_T0, base))
    a('v_add_u32 v5, s%d, v%d' % (S_T0, V_L16))
    a('v_xor_b32 v6, 4096, v5')
    a.nop(7)
    for q, acc in enumerate((ACC0, ACC1)):
        for nh in range(2):
            if q == 0 and nh == own: continue
            a('ds_write_b128 v%d, %s offset:%d' % (5 + q, vr(acc + 8 * nh), nh * 16384))
            a('ds_write_b128 v%d, %s offset:%d' % (5 + q, vr(acc + 8 * nh + 4), nh * 16384 + 1024))

def y_red_read(a, base, own):
    d = V_ACC
    a('s_lshl_b32 s%d, s%d, 12' % (S_T0, S_W))
    a('s_add_u32 s%d, s%d, %d' % (S_T0, S_T0, base))
    a('v_add_u32 v5, s%d, v%d' % (S_T0, V_L16))
    L1 = a.newlabel('rr'); L2 = a.newlabel('rr')
    a('s_cmp_eq_u32 s%d, %d' % (S_KH, own))
    a('s_cbranch_scc1 %s' % L1)
    for k in range(4):
        a('ds_read_b128 %s, v5 offset:%d' % (vr(d + 4 * k), k * 1024))
    a('s_waitcnt lgkmcnt(0)')
    for r in range(0, 8, 2):
        pk_add(a, d + r, d + r, d + 8 + r)
    a('s_branch %s' % L2)
    a.label(L1)
    a('s_xor_b32 s%d, s%d, 1' % (S_T0, S_I))
    a('s_lshl_b32 s%d, s%d, 11' % (S_T0, S_T0))
    a('v_add_u32 v5, s%d, v5' % S_T0)
    a('ds_read_b128 %s, v5' % vr(ACC1))
    a('ds_read_b128 %s, v5 offset:1024' % vr(ACC1 + 4))
    a('s_waitcnt lgkmcnt(0)')
    for r in range(0, 8, 2):
        pk_add(a, d + r, ACC0 + 8 * own + r, ACC1 + r)
    a.label(L2)

def kv_red_write(a, base):
    a('s_xor_b32 s%d, s%d, 1' % (S_T0, S_W))
    a('s_lshl_b32 s%d, s%d, 12' % (S_T0, S_T0))
    a('s_add_u32 s%d, s%d, %d' % (S_T0, S_T0, base))
    a('v_add_u32 v5, s%d, v%d' % (S_T0, V_L16))
    a.nop(9)
    for k in range(4):
        a('ds_write_b128 v5, %s offset:%d' % (vr(ACC1 + 4 * k), k * 1024))

def barrier(a):
    a('s_waitcnt lgkmcnt(0)')
    a('s_barrier')

def phi_pack(a, acc, dst, tl=9, tmp=None, n=8):
    if tmp is None: tmp = acc + 8
    a('v_mul_f32 v%d, 0x%x, v%d' % (tl, f2u(LOG2E), VR))
    for r in range(n):
        a('v_mul_f32 v%d, v%d, v%d' % (tmp + r, acc + r, tl))
    for r in range(n):
        a('v_exp_f32_e64 v%d, v%d clamp' % (tmp + r, tmp + r))
    for r in range(n):
        a('v_fmaak_f32 v%d, v%d, v%d, 0x%x' % (acc + r, acc + r, VR, f2u(1e-6)))
        a('v_max_f32 v%d, 0x%x, v%d' % (acc + r, f2u(1e-6), acc + r))
    for r in range(0, n, 2):
        pk_add(a, acc + r, acc + r, tmp + r)
    for r in range(n // 2):
        a('v_cvt_pk_bf16_f32 v%d, v%d, v%d' % (dst + r, acc + 2 * r, acc + 2 * r + 1))

def scale_pack(a, acc, vs, dst, n=8):
    for r in range(n):
        a('v_mul_f32 v%d, v%d, v%d' % (acc + r, acc + r, vs))
    for r in range(n // 2):
        a('v_cvt_pk_bf16_f32 v%d, v%d, v%d' % (dst + r, acc + 2 * r, acc + 2 * r + 1))

def store_blk(a, v):
    a('s_add_u32 s%d, s%d, s%d' % (S_T0, S_BLK, S_TOFF))
    fast_store(a, ['buffer_store_dwordx4 %s, v%d, %s, s%d offen@' % (vr(v), V_L16, WSR, S_T0)])

def store_stats(a, tag=None):
    a('v_mov_b32 v6, 0')
    a('v_mov_b32 v7, 0')
    a('s_nop 0')
    for r in range(4):
        a('v_dot2_f32_bf16 v6, v%d, v%d, v6' % (V_RES + r, V_ONES))
        a('v_dot2_f32_bf16 v7, v%d, v%d, v7' % (V_RES + r, V_RES + r))
    a('s_bfe_u32 s%d, s%d, 0x5000a' % (S_T0, S_BLK))
    a('s_lshl_b32 s%d, s%d, 9' % (S_T0, S_T0))
    a('s_lshr_b32 s%d, s%d, 2' % (S_T1, S_XOFF))
    a('s_add_u32 s%d, s%d, s%d' % (S_T0, S_T0, S_T1))
    a('s_lshl_b32 s%d, s%d, 8' % (S_T1, S_I))
    a('s_add_u32 s%d, s%d, s%d' % (S_T0, S_T0, S_T1))
    a('s_add_u32 s%d, s%d, s%d' % (S_T0, S_T0, S_SOFF))
    a('v_mov_b32 v8, v6')
    a('v_mov_b32 v9, v7')
    a('v_lshlrev_b32 v5, 3, v%d' % V_LANE)
    a('s_nop 0')
    a('v_permlane32_swap_b32 v6, v8')
    a('v_permlane32_swap_b32 v7, v9')
    a('s_nop 1')
    a('v_pk_add_f32 v[6:7], v[6:7], v[8:9]')
    a('s_mov_b32 exec_hi, 0')
    fast_store(a, ['buffer_store_dwordx2 v[6:7], v5, %s, s%d offen@' % (WSR, S_T0)])
    a('s_mov_b32 exec_hi, -1')
    if tag: a.vm.append(tag)

def store_x(a):
    store_blk(a, V_RES)
    store_stats(a)

def a1_kv_owner(a, lm):
    a('s_lshl_b32 s%d, s%d, 12' % (S_T0, S_W))
    a('s_add_u32 s%d, s%d, %d' % (S_T0, S_T0, lm.red))
    a('v_add_u32 v5, s%d, v%d' % (S_T0, V_L16))
    for k in range(4):
        a('ds_read_b128 %s, v5 offset:%d' % (vr(ACC1 + 4 * k), k * 1024))
    a('s_lshl_b32 s%d, s%d, 12' % (S_T0, S_J))
    a('s_lshl_b32 s%d, s%d, 13' % (S_T1, S_KH))
    a('s_add_u32 s%d, s%d, s%d' % (S_T0, S_T0, S_T1))
    a('s_lshl_b32 s%d, s%d, 10' % (S_T1, S_I))
    a('s_add_u32 s%d, s%d, s%d' % (S_T0, S_T0, S_T1))
    a('s_add_u32 s%d, s%d, %d' % (S_T0, S_T0, lm.pkv))
    a('v_and_b32 v7, 31, v%d' % V_LANE)
    a('v_lshlrev_b32 v7, 5, v7')
    a('v_lshrrev_b32 v6, 5, v%d' % V_LANE)
    a('v_lshl_add_u32 v7, v6, 4, v7')
    a('v_add_u32 v7, s%d, v7' % S_T0)
    a('s_waitcnt lgkmcnt(0)')
    for r in range(0, 16, 2):
        pk_add(a, ACC0 + r, ACC0 + r, ACC1 + r)
    with role(a, 'A'):
        phi_pack(a, ACC0, V_XF, tmp=ACC1, n=16)
    with role(a, 'B'):
        scale_pack(a, ACC0, VR, V_XF, n=16)
    a('ds_write_b128 v7, %s' % vr(V_XF))
    a('ds_write_b128 v7, %s offset:2048' % vr(V_XF + 4))
    barrier(a)

def head_addrs(a):
    a('s_lshl_b32 s%d, s%d, 2' % (S_T2, S_CS))
    a('s_add_u32 s%d, s%d, s%d' % (S_T2, S_T2, S_W))
    a('s_lshl_b32 s%d, s%d, 14' % (S_T3, S_T2))
    a('s_add_u32 s%d, s%d, s%d' % (S_T3, S_T3, S_LOFF))
    a('s_add_u32 s%d, s%d, 0x%x' % (S_T3, S_T3, KVP_))
    a('s_lshl_b32 s%d, s%d, 11' % (S_T4, S_T2))
    a('s_add_u32 s%d, s%d, s%d' % (S_T4, S_T4, S_LOFF))
    a('s_add_u32 s%d, s%d, 0x%x' % (S_T4, S_T4, ZP_))
    a('s_lshl_b32 s%d, s%d, 12' % (S_T5, S_T2))
    a('s_add_u32 s%d, s%d, 0x%x' % (S_T5, S_T5, HFLAG))

def hello(a):
    head_addrs(a)
    a('s_mov_b32 s64, 1')
    tagval(a, 8, 64)
    a('s_lshl_b32 s%d, s%d, 7' % (S_T0, S_RB))
    a('s_add_u32 s%d, s%d, s%d' % (S_T0, S_T0, S_T5))
    a('v_mov_b32 v5, 0')
    a('s_mov_b64 exec, 1')
    a('buffer_store_dwordx2 v[8:9], v5, %s, s%d offen sc1' % (WSR, S_T0))
    a('s_mov_b64 exec, -1')

def kv_publish(a, lm, first):
    PA, PB, D, D2, ON = V_XF, V_XF + 8, V_ACC, V_ACC + 4, V_ACC + 8
    a('v_lshrrev_b32 v5, 4, v%d' % V_LANE)
    a('v_lshlrev_b32 v5, 8, v5')
    a('v_bfe_u32 v6, v%d, 2, 2' % V_LANE)
    a('v_lshl_add_u32 v5, v6, 5, v5')
    a('v_and_b32 v6, 1, v%d' % V_LANE)
    a('v_lshl_add_u32 v5, v6, 4, v5')
    a('v_bfe_u32 v6, v%d, 1, 1' % V_LANE)
    a('v_lshl_add_u32 v5, v6, 3, v5')
    a('s_lshl_b32 s%d, s%d, 11' % (S_T0, S_W))
    a('s_add_u32 s%d, s%d, %d' % (S_T0, S_T0, lm.pkv))
    a('v_add_u32 v5, s%d, v5' % S_T0)
    for sl in range(2):
        for u in range(2):
            a('ds_read_b64_tr_b16 v[%d:%d], v5 offset:%d' % (PA + 4 * sl + 2 * u, PA + 4 * sl + 2 * u + 1, sl * 1024 + u * 128))
            a('ds_read_b64_tr_b16 v[%d:%d], v5 offset:%d' % (PB + 4 * sl + 2 * u, PB + 4 * sl + 2 * u + 1, 8192 + sl * 1024 + u * 128))
    for r in range(4):
        a('v_mov_b32 v%d, v%d' % (ON + r, V_ONES))
    head_addrs(a)
    a('s_waitcnt lgkmcnt(0)')
    a('v_mfma_f32_16x16x32_bf16 %s, %s, %s, 0' % (vr(D), vr(PA), vr(PB)))
    a('v_mfma_f32_16x16x32_bf16 %s, %s, %s, 0' % (vr(D2), vr(PA), vr(ON)))
    a('v_mfma_f32_16x16x32_bf16 %s, %s, %s, %s' % (vr(D), vr(PA + 4), vr(PB + 4), vr(D)))
    a('v_mfma_f32_16x16x32_bf16 %s, %s, %s, %s' % (vr(D2), vr(PA + 4), vr(ON), vr(D2)))
    a('s_lshl_b32 s%d, s%d, 9' % (S_T0, S_RB))
    a('s_add_u32 s%d, s%d, s%d' % (S_T0, S_T0, S_T3))
    a('s_lshl_b32 s%d, s%d, 6' % (S_T1, S_RB))
    a('s_add_u32 s%d, s%d, s%d' % (S_T1, S_T1, S_T4))
    a('v_and_b32 v6, 48, v%d' % V_LANE)
    a('v_lshlrev_b32 v5, 3, v%d' % V_LANE)
    a('s_nop 2')
    a('v_cvt_pk_bf16_f32 v%d, v%d, v%d' % (D, D, D + 1))
    a('v_cvt_pk_bf16_f32 v%d, v%d, v%d' % (D + 1, D + 2, D + 3))
    for r in (0, 1, 4, 5, 6, 7):
        a('v_min_u32 v%d, -2, v%d' % (D + r, D + r))
    a('buffer_store_dwordx2 v[%d:%d], v5, %s, s%d offen sc1' % (D, D + 1, WSR, S_T0))
    a('s_mov_b32 exec_lo, 0x00010001')
    a('s_mov_b32 exec_hi, 0x00010001')
    a('buffer_store_dwordx4 %s, v6, %s, s%d offen sc1' % (vr(D2), WSR, S_T1))
    a('s_mov_b64 exec, -1')
    ts2(a)
    if first:
        a('s_mov_b32 s64, 1')
        tagbase(a, 65, 64)
        a('v_and_b32 v5, 31, v%d' % V_LANE)
        a('v_lshlrev_b32 v5, 7, v5')
        poll(a, ['buffer_load_dwordx2 v[8:9], v5, %s, s%d offen sc1' % (WSR, S_T5)], tagcmp([8], 65, 7))
    else:
        load_w_issue(a, U_OA, lm.wst, 0)
        a('s_waitcnt vmcnt(0)')
        load_w_read(a, V_W0, 0)
        load_w_issue(a, U_OA, lm.wst, 1)

def kv_gather(a, lm, first, mid):
    head_addrs(a)
    a('s_mov_b32 s71, s%d' % S_T3)
    ZR = V_TMP
    a('v_and_b32 v6, 48, v%d' % V_LANE)
    a('v_and_b32 v5, 15, v%d' % V_LANE)
    a('v_lshl_add_u32 v5, v5, 6, v6')
    poll(a, ['buffer_load_dwordx4 %s, v5, %s, s%d offen sc1' % (vr(ZR), WSR, S_T4),
             'buffer_load_dwordx4 %s, v5, %s, s%d offen offset:1024 sc1' % (vr(ZR + 4), WSR, S_T4)],
         ['v_max3_u32 v7, v%d, v%d, v%d' % (ZR, ZR + 1, ZR + 2), 'v_max3_u32 v8, v%d, v%d, v%d' % (ZR + 3, ZR + 4, ZR + 5),
          'v_max3_u32 v7, v7, v%d, v%d' % (ZR + 6, ZR + 7), 'v_max_u32 v7, v7, v8', 'v_cmp_eq_u32 vcc, -1, v7'], sleep=int(E('ZSLEEP', '0')))
    ts2(a)
    G = [V_W1 + 4 * k for k in range(16)]
    AC = V_ACC
    SEL = V_ACC + 8
    Lg = a.newlabel('gat')
    a('s_mov_b32 s86, 0')
    a('s_mov_b32 s87, 0')
    a.label(Lg)
    a('s_add_u32 s87, s87, 1')
    a('s_cmp_gt_u32 s87, %d' % SPIN_MAX)
    a('s_cbranch_scc1 L_end')
    a('s_mov_b32 s%d, s71' % S_T0)
    for k in range(16):
        if k and k % 4 == 0:
            a('s_add_u32 s%d, s%d, 4096' % (S_T0, S_T0))
        a('buffer_load_dwordx4 %s, v%d, %s, s%d offen offset:%d sc1' % (vr(G[k]), V_L16, WSR, S_T0, (k % 4) * 1024))
    Ls = a.newlabel('gs')
    a('s_cmp_lg_u32 s86, 0')
    a('s_cbranch_scc1 %s' % Ls)
    a('s_mov_b32 s86, 1')
    if first:
        mid()
    a('s_branch %s_j' % Ls)
    a.label(Ls)
    a('s_waitcnt vmcnt(0)')
    a.label(Ls + '_j')
    nx = 8 if first else 0
    Z2 = V_TMP + 8
    pk_add(a, Z2, ZR, ZR + 4)
    pk_add(a, Z2 + 2, ZR + 2, ZR + 6)
    for sh in (8, 4, 2, 1):
        a('s_nop 1')
        for r in range(4):
            a('v_add_f32_dpp v%d, v%d, v%d row_ror:%d row_mask:0xf bank_mask:0xf' % (Z2 + r, Z2 + r, Z2 + r, sh))
    a('v_cvt_pk_bf16_f32 v%d, v%d, v%d' % (Z2, Z2, Z2 + 1))
    a('v_cvt_pk_bf16_f32 v%d, v%d, v%d' % (Z2 + 1, Z2 + 2, Z2 + 3))
    a('s_mov_b32 s%d, 0x00110011' % S_T0)
    a('s_mov_b32 s%d, 0x00110011' % S_T1)
    a('v_cndmask_b32_e64 v%d, 0, v%d, s[%d:%d]' % (Z2, Z2, S_T0, S_T1))
    a('v_cndmask_b32_e64 v%d, 0, v%d, s[%d:%d]' % (Z2 + 1, Z2 + 1, S_T0, S_T1))
    a('v_and_b32 v5, 15, v%d' % V_LANE)
    a('v_lshlrev_b32 v5, 4, v5')
    a('v_bfe_u32 v6, v%d, 4, 1' % V_LANE)
    a('v_lshl_add_u32 v5, v6, 9, v5')
    a('v_lshrrev_b32 v6, 5, v%d' % V_LANE)
    a('v_lshl_add_u32 v5, v6, 3, v5')
    a('s_lshl_b32 s%d, s%d, 11' % (S_T0, S_W))
    a('s_add_u32 s%d, s%d, %d' % (S_T0, S_T0, lm.pkv))
    a('v_add_u32 v5, s%d, v5' % S_T0)
    a('ds_write_b64 v5, v[%d:%d] offset:256' % (Z2, Z2 + 1))
    a('v_and_b32 v5, 7, v%d' % V_LANE)
    a('v_lshlrev_b32 v5, 5, v5')
    a('v_bfe_u32 v6, v%d, 3, 1' % V_LANE)
    a('v_lshl_add_u32 v5, v6, 9, v5')
    a('v_bfe_u32 v6, v%d, 4, 1' % V_LANE)
    a('v_lshl_add_u32 v5, v6, 3, v5')
    a('v_add_u32 v5, s%d, v5' % S_T0)
    a('v_mov_b32 v7, 0')
    a('v_mov_b32 v%d, 0x00003f80' % SEL)
    a('v_mov_b32 v%d, 0x3f800000' % (SEL + 1))
    for r in range(8): a('v_mov_b32 v%d, 0' % (AC + r))
    for k in range(16):
        a('s_waitcnt vmcnt(%d)' % (15 - k + nx))
        g = G[k]
        a('v_max3_u32 v7, v7, v%d, v%d' % (g, g + 1))
        a('v_max3_u32 v7, v7, v%d, v%d' % (g + 2, g + 3))
        for r in range(4):
            a('v_dot2_f32_bf16 v%d, v%d, v%d, v%d' % (AC + 2 * r, g + r, SEL, AC + 2 * r))
            a('v_dot2_f32_bf16 v%d, v%d, v%d, v%d' % (AC + 2 * r + 1, g + r, SEL + 1, AC + 2 * r + 1))
    a('v_cmp_eq_u32 vcc, -1, v7')
    a('s_cbranch_vccnz %s' % Lg)
    a('s_nop 1')
    for r in range(8): a('v_mov_b32 v%d, v%d' % (AC + 16 + r, AC + r))
    a('s_nop 1')
    for r in range(8): a('v_permlane32_swap_b32 v%d, v%d' % (AC + r, AC + 16 + r))
    a('s_nop 1')
    for r in range(0, 8, 2): pk_add(a, AC + r, AC + r, AC + 16 + r)
    for r in range(4):
        a('v_cvt_pk_bf16_f32 v%d, v%d, v%d' % (AC + r, AC + 2 * r, AC + 2 * r + 1))
    a('ds_write_b64 v5, v[%d:%d]' % (AC, AC + 1))
    a('ds_write_b64 v5, v[%d:%d] offset:16' % (AC + 2, AC + 3))
    if first:
        a('s_waitcnt vmcnt(0)')
        load_w_read(a, V_W0, 0)
        load_w_issue(a, U_OA, lm.wst, 1)

def a1_pq(a, lm):
    y_red_read(a, lm.redq, 1)
    phi_pack(a, V_ACC, V_PQ)

def a1_finish(a, lm):
    a('s_lshl_b32 s%d, s%d, 1' % (S_T0, S_J))
    a('s_add_u32 s%d, s%d, s%d' % (S_T0, S_T0, S_KH))
    a('s_lshl_b32 s%d, s%d, 11' % (S_T0, S_T0))
    a('s_add_u32 s%d, s%d, %d' % (S_T0, S_T0, lm.pkv))
    a('v_add_u32 v6, s%d, v%d' % (S_T0, V_L16))
    a('ds_read_b128 %s, v6' % vr(V_XF + 4))
    a('s_waitcnt lgkmcnt(0)')
    N = V_ACC + 16
    a('v_mfma_f32_32x32x16_bf16 %s, %s, %s, 0' % (vr(N, 16), vr(V_XF + 4), vr(V_PQ)))
    a.nop(12)
    a('v_add_f32 v8, 0x%x, v%d' % (f2u(1e-6), N + 8))
    a('v_rcp_f32 v8, v8')
    a('s_nop 0')
    scale_pack(a, N, 8, V_XF + 8)
    store_blk(a, V_XF + 8)
    csignal(a)

def a1_tail(a, lm, first, qpass, ringbase):
    def mid(isA):
        barrier(a)
        if first:
            a.vreset()
            p1_probe(a)
            if isA:
                load_w_issue(a, U_OA, lm.wst, 0)
                a.vm += ['oa'] * 8
        a1_pq(a, lm)
        if first:
            p1_check(a)
    ie = ifelse(a)
    ie.if_set(1)
    qpass()
    y_red_write(a, lm.redq, 1)
    mid(False)
    ringbase()
    if first:
        colsum(a, V_W1, 9)
        make_csfrag(a, 9, V_CF2, 6)
    ie.else_()
    kv_publish(a, lm, first)
    if not first: mid(True)
    kv_gather(a, lm, first, lambda: mid(True))
    ie.end()
    barrier(a)
    ts2(a)
    a1_finish(a, lm)
    with role(a, 'A'):
        load_w_read(a, V_W0, 1)

def a1_std(a):
    lm = LM_STD
    active_path(a, V_W1, True, True)
    toggle_bufs(a, True)
    y_correct(a, V_CF1)
    kv_red_write(a, lm.red)
    barrier(a)
    ts2(a)
    a1_kv_owner(a, lm)
    ts2(a)
    def qpass():
        kloop(a, V_W0, 0, 16)
        y_correct(a, V_CF0)
    def ring():
        a('s_and_b32 s70, s%d, 3' % S_W)
        a('s_lshl_b32 s70, s70, 14')
        load_w_ring(a, U_WQ, V_W1, 16)
    a1_tail(a, lm, False, qpass, ring)

def warm2(a, vd, vt, tag=None, qcols=False):
    R = 64
    a('s_lshr_b32 s%d, s2, 3' % S_T2)
    a('s_lshl_b32 s%d, s%d, 3' % (S_T2, S_T2))
    a('s_add_u32 s%d, s%d, s%d' % (S_T2, S_T2, S_W))
    a('v_lshlrev_b32 v%d, 7, v%d' % (vt, V_LANE))
    a('s_lshr_b32 s%d, s%d, 6' % (S_T1, S_T2))
    a('s_mov_b32 s%d, s44\ns_mov_b32 s%d, s45\ns_mov_b32 s%d, 0x80000\ns_mov_b32 s%d, 0x00020000' % (R, R + 1, R + 2, R + 3))
    for (k, p) in ((1, 48), (2, 54), (3, 50)):
        a('s_cmp_eq_u32 s%d, %d' % (S_T1, k))
        a('s_cselect_b32 s%d, s%d, s%d' % (R, p, R))
        a('s_cselect_b32 s%d, s%d, s%d' % (R + 1, p + 1, R + 1))
    a('s_cselect_b32 s%d, 0x4000, s%d' % (R + 2, R + 2))
    a('s_cmp_ge_u32 s%d, 224' % S_T2)
    a('s_cselect_b32 s%d, s52, s%d' % (R, R))
    a('s_cselect_b32 s%d, s53, s%d' % (R + 1, R + 1))
    a('s_cselect_b32 s%d, 31, 63' % S_T1)
    a('s_and_b32 s%d, s%d, s%d' % (S_T0, S_T2, S_T1))
    a('s_lshl_b32 s%d, s%d, 13' % (S_T0, S_T0))
    if qcols:
        L = a.newlabel('wq')
        a('s_lshr_b32 s%d, s%d, 6' % (S_T1, S_T2))
        a('s_cmp_lg_u32 s%d, 2' % S_T1)
        a('s_cbranch_scc1 %s' % L)
        a('s_mov_b32 s%d, s42\ns_mov_b32 s%d, s43\ns_mov_b32 s%d, 0x180000' % (R, R + 1, R + 2))
        a('s_mul_i32 s%d, s%d, 3' % (S_T0, S_T0))
        a('v_lshrrev_b32 v%d, 3, v%d' % (vd, V_LANE))
        a('v_mul_u32_u24 v%d, 3072, v%d' % (vd, vd))
        a('v_and_b32 v%d, 7, v%d' % (vt, V_LANE))
        a('v_lshl_add_u32 v%d, v%d, 7, v%d' % (vt, vt, vd))
        a.label(L)
    a.v(tag, 'buffer_load_dword v%d, v%d, s[%d:%d], s%d offen' % (vd, vt, R, R + 3, S_T0))

def p1(a):
    a.vreset()
    srd(a, S_IN2, 40, 0x200000)
    srd(a, S_IN, 42, 0x180000)
    nonce_publish(a)
    VXD = [V_TMP + 16, V_TMP + 17]; VWD = V_TMP + 18
    a('v_lshrrev_b32 v5, 3, v%d' % V_LANE)
    a('v_and_b32 v6, 7, v%d' % V_LANE)
    a('v_lshrrev_b32 v7, 4, v%d' % V_LANE)
    a('v_xor_b32 v8, v6, v7')
    a('v_lshlrev_b32 v8, 4, v8')
    a('v_lshl_add_u32 v%d, v5, 10, v8' % VXD[0])
    a('v_xor_b32 v%d, 64, v%d' % (VXD[1], VXD[0]))
    a('v_lshrrev_b32 v5, 2, v%d' % V_LANE)
    a('v_mul_u32_u24 v5, 3072, v5')
    a('v_and_b32 v6, 3, v%d' % V_LANE)
    a('v_lshl_add_u32 v%d, v6, 4, v5' % VWD)
    SXG, SXL, SWG, SLO, SHI = 85, 87, 88, 89, 90
    a('s_lshl_b32 s%d, s%d, 15' % (S_T0, S_KH))
    a('s_lshl_b32 s%d, s%d, 14' % (S_T1, S_I))
    a('s_add_u32 s%d, s%d, s%d' % (SXG, S_XOFF, S_T0))
    a('s_add_u32 s%d, s%d, s%d' % (SXG, SXG, S_T1))
    a('s_lshl_b32 s%d, s%d, 9' % (S_T1, S_J))
    a('s_add_u32 s%d, s%d, s%d' % (SXG, SXG, S_T1))
    a('s_lshl_b32 s%d, s%d, 14' % (S_T1, S_J))
    a('s_add_u32 s%d, s%d, s%d' % (SXL, S_T0, S_T1))
    a('s_lshl_b32 s%d, s%d, 11' % (S_T1, S_I))
    a('s_add_u32 s%d, s%d, s%d' % (SXL, SXL, S_T1))
    a('s_mul_i32 s%d, s%d, %d' % (SWG, S_I, 256 * 3072))
    a('s_lshl_b32 s%d, s%d, 7' % (S_T0, S_CS))
    a('s_add_u32 s%d, s%d, s%d' % (SWG, SWG, S_T0))
    a('s_lshl_b32 s%d, s%d, 6' % (S_T0, S_J))
    a('s_add_u32 s%d, s%d, s%d' % (SWG, SWG, S_T0))
    a('s_lshl_b32 s94, s%d, 10' % S_KH)
    a('s_add_u32 s94, s94, s%d' % SWG)
    a('s_add_u32 s94, s94, 1024')
    a('s_and_b32 s%d, s%d, 3' % (S_T2, S_W))
    a('s_mul_i32 s%d, s%d, 11264' % (SLO, S_T2))
    a('s_add_u32 s%d, s%d, 65536' % (SLO, SLO))
    a('s_add_u32 s%d, s%d, 3072' % (SHI, SLO))
    a('s_mul_i32 s%d, s%d, 3072' % (S_T0, S_T2))
    a('s_add_u32 s%d, s%d, 110592' % (S_T0, S_T0))
    a('s_lshl_b32 s%d, s%d, 13' % (S_T1, S_T2))
    a('s_add_u32 s%d, s%d, 131072' % (S_T1, S_T1))
    a('s_cmp_eq_u32 s%d, 1' % S_KH)
    a('s_cselect_b32 s%d, s%d, s%d' % (SLO, S_T0, SLO))
    a('s_cselect_b32 s%d, s%d, s%d' % (SHI, S_T1, SHI))
    SROT = 3
    a('s_add_u32 s%d, s%d, s%d' % (SROT, S_RB, S_GRP))
    a('s_and_b32 s%d, s%d, 3' % (SROT, SROT))
    def rotg(g):
        a('s_add_u32 s%d, s%d, %d' % (S_T1, SROT, g))
        a('s_and_b32 s%d, s%d, 3' % (S_T1, S_T1))
    def dma_x(g):
        rotg(g)
        a('s_lshl_b32 s%d, s%d, 7' % (S_T1, S_T1))
        a('s_add_u32 s%d, s%d, s%d' % (S_T1, S_T1, SXG))
        for p in range(2):
            a('s_add_u32 s%d, s%d, %d' % (S_T0, S_T1, p * 8192))
            a('s_add_u32 m0, s%d, %d' % (SXL, g * 4096 + p * 1024))
            a('s_nop 0')
            a.v('x%d' % g, 'buffer_load_dwordx4 v%d, s[12:15], s%d offen lds' % (VXD[p], S_T0))
    def slot(sl): return (SLO, sl * 1024) if sl < 3 else (SHI, (sl - 3) * 1024)
    def dma_w(kt, q=False):
        sb, off = slot(3 + (kt + 2) % 8) if q else slot(kt % 11)
        rotg(kt // 4)
        a('s_mul_i32 s%d, s%d, %d' % (S_T1, S_T1, 64 * 3072))
        a('s_add_u32 s%d, s%d, s%d' % (S_T1, S_T1, SWG if q else 94))
        a('s_add_u32 s%d, s%d, %d' % (S_T0, S_T1, (kt % 4) * 16 * 3072))
        a('s_add_u32 m0, s%d, %d' % (sb, off))
        a('s_nop 0')
        a.v(('q%d' if q else 'w%d') % kt, 'buffer_load_dwordx4 v%d, s[8:11], s%d offen lds' % (VWD, S_T0))
    for g in range(4): dma_x(g)
    for kt in range(3): dma_w(kt)
    a('s_getpc_b64 s[64:65]')
    a.label('L_pcref')
    a('s_lshr_b32 s%d, s2, 3' % S_T0)
    a('s_lshl_b32 s%d, s%d, 3' % (S_T0, S_T0))
    a('s_add_u32 s%d, s%d, s%d' % (S_T0, S_T0, S_W))
    a('s_lshl_b32 s%d, s%d, 8' % (S_T0, S_T0))
    a('s_min_u32 s%d, s%d, L_end - L_pcref - 256' % (S_T0, S_T0))
    a('v_lshlrev_b32 v5, 2, v%d' % V_LANE)
    a('v_add_u32 v5, s%d, v5' % S_T0)
    a.v('cp', 'global_load_dword v%d, v5, s[64:65]' % 127)
    for kt in range(3, 6): dma_w(kt)
    PKR = V_W0
    def side_misc():
        a('v_and_b32 v5, 31, v%d' % V_LANE)
        a('v_lshlrev_b32 v5, 10, v5')
        a('v_lshrrev_b32 v6, 5, v%d' % V_LANE)
        a('v_lshl_add_u32 v5, v6, 3, v5')
        rowcol_off(a)
        a.v('res', 'buffer_load_dwordx2 v[%d:%d], v5, s[12:15], s%d offen' % (V_RES, V_RES + 1, S_T0))
        a.v('res', 'buffer_load_dwordx2 v[%d:%d], v5, s[12:15], s%d offen offset:16' % (V_RES + 2, V_RES + 3, S_T0))
        head_addrs(a)
        a('s_lshl_b32 s%d, s%d, 9' % (S_T0, S_RB))
        a('s_add_u32 s%d, s%d, s%d' % (S_T0, S_T0, S_T3))
        a('s_lshl_b32 s%d, s%d, 6' % (S_T1, S_RB))
        a('s_add_u32 s%d, s%d, s%d' % (S_T1, S_T1, S_T4))
        a('s_cmp_eq_u32 s%d, 0' % S_KH)
        a('s_cselect_b32 s%d, s%d, 0x%x' % (S_T0, S_T0, OOB))
        a('s_cselect_b32 s%d, s%d, 0x%x' % (S_T1, S_T1, OOB))
        PO = V_W0 + 16
        for r in range(4): a('v_mov_b32 v%d, -1' % (PO + r))
        for ly in range(2):
            if ly:
                a('s_add_u32 s%d, s%d, 0x%x' % (S_T0, S_T0, LS))
                a('s_add_u32 s%d, s%d, 0x%x' % (S_T1, S_T1, LS))
            a('s_mov_b32 exec_hi, 0')
            a.v('poi', 'buffer_store_dwordx4 %s, v%d, %s, s%d offen sc1' % (vr(PO), V_L16, WSR, S_T0))
            a('s_mov_b64 exec, 15')
            a.v('poi', 'buffer_store_dwordx4 %s, v%d, %s, s%d offen sc1' % (vr(PO), V_L16, WSR, S_T1))
            a('s_mov_b64 exec, -1')
        a('v_and_b32 v5, 7, v%d' % V_LANE)
        a('v_lshlrev_b32 v5, 21, v5')
        a.v('tlb', 'buffer_load_dword v%d, v5, %s, 0 offen' % (PO + 4, WSR))
    XR = [V_TMP + 20 + q for q in range(4)]
    WR = V_TMP + 24
    a('v_and_b32 v5, 31, v%d' % V_LANE)
    a('v_bfe_u32 v6, v%d, 1, 3' % V_LANE)
    a('v_lshrrev_b32 v7, 5, v%d' % V_LANE)
    a('v_xor_b32 v6, v6, v7')
    a('s_mul_i32 s%d, s%d, 49152' % (S_T0, S_I))
    a('v_lshlrev_b32 v5, 7, v5')
    a('v_add_u32 v5, s%d, v5' % S_T0)
    XR2 = [V_TMP + 12 + q for q in range(4)]
    for q in range(4):
        a('v_xor_b32 v7, %d, v6' % (2 * q))
        a('v_lshl_add_u32 v%d, v7, 4, v5' % XR[q])
        a('v_xor_b32 v%d, 32768, v%d' % (XR2[q], XR[q]))
    a('v_lshrrev_b32 v5, 5, v%d' % V_LANE)
    a('v_lshlrev_b32 v5, 9, v5')
    a('v_bfe_u32 v6, v%d, 2, 2' % V_LANE)
    a('v_lshl_add_u32 v5, v6, 6, v5')
    a('v_bfe_u32 v6, v%d, 4, 1' % V_LANE)
    a('v_lshl_add_u32 v5, v6, 5, v5')
    a('v_and_b32 v6, 3, v%d' % V_LANE)
    a('v_lshl_add_u32 v5, v6, 3, v5')
    a('v_add_u32 v%d, s%d, v5' % (WR, SLO))
    a('v_add_u32 v%d, s%d, v5' % (WR + 1, SHI))
    FB = [V_W1 + 12 * k for k in range(4)]
    CS, SS = V_TMP + 19, V_TMP + 26
    a('v_mov_b32 v%d, 0\nv_mov_b32 v%d, 0' % (SS, SS + 1))
    a('s_lshl_b32 s95, s%d, 1' % S_KH)
    a('s_add_u32 s95, s95, s%d' % S_J)
    def rd_kt(kt, q=False):
        b = FB[kt % 4]
        sl = 3 + (kt + 2) % 8 if q else kt % 11
        areg, off = (WR, sl * 1024) if sl < 3 else (WR + 1, (sl - 3) * 1024)
        a('ds_read_b64_tr_b16 v[%d:%d], v%d offset:%d' % (b + 8, b + 9, areg, off))
        a('ds_read_b64_tr_b16 v[%d:%d], v%d offset:%d' % (b + 10, b + 11, areg, off + 256))
        a('ds_read_b128 %s, v%d offset:%d' % (vr(b), XR[kt & 3], (kt >> 2) * 4096))
        a('ds_read_b128 %s, v%d offset:%d' % (vr(b + 4), XR2[kt & 3], (kt >> 2) * 4096))
    def mm_kt(kt, stats):
        b = FB[kt % 4]; first = kt == 0
        if first: a('v_mov_b32 v%d, 0' % CS)
        for q, acc in enumerate((ACC0, ACC1)):
            a('v_mfma_f32_32x32x16_bf16 %s, %s, %s, %s' % (vr(acc, 16), vr(b + 8), vr(b + 4 * q), '0' if first else vr(acc, 16)))
        for r in range(4):
            a('v_dot2_f32_bf16 v%d, v%d, v%d, v%d' % (CS, b + 8 + r, V_ONES, CS))
        if stats:
            for tile in range(2):
                L = a.newlabel('st')
                a('s_cmp_lg_u32 s95, %d' % (2 * tile + (kt & 1)))
                a('s_cbranch_scc1 %s' % L)
                for r in range(4):
                    x = b + 4 * tile + r
                    a('v_dot2_f32_bf16 v%d, v%d, v%d, v%d' % (SS, x, V_ONES, SS))
                    a('v_dot2_f32_bf16 v%d, v%d, v%d, v%d' % (SS + 1, x, x, SS + 1))
                a.label(L)
    lms = LM(red=0, stat=122880, pkv=0, kvf=0, redq=0)
    a.vwait('x3')
    a('v_add_u32 v5, s%d, v%d' % (SXL, V_L16))
    XS = V_W0
    for g in range(4):
        for p in range(2):
            a('ds_read_b128 %s, v5 offset:%d' % (vr(XS + 8 * g + 4 * p), g * 4096 + p * 1024))
    SA = V_ACC
    for r in range(4): a('v_mov_b32 v%d, 0' % (SA + r))
    a('s_waitcnt lgkmcnt(0)')
    for g in range(4):
        for p in range(2):
            for r in range(4):
                x = XS + 8 * g + 4 * p + r
                a('v_dot2_f32_bf16 v%d, v%d, v%d, v%d' % (SA + 2 * p, x, V_ONES, SA + 2 * p))
                a('v_dot2_f32_bf16 v%d, v%d, v%d, v%d' % (SA + 2 * p + 1, x, x, SA + 2 * p + 1))
    a('v_lshrrev_b32 v5, 3, v%d' % V_LANE)
    a('v_lshlrev_b32 v5, 3, v5')
    a('s_lshl_b32 s%d, s%d, 8' % (S_T0, S_KH))
    a('s_lshl_b32 s%d, s%d, 7' % (S_T1, S_I))
    a('s_add_u32 s%d, s%d, s%d' % (S_T0, S_T0, S_T1))
    a('s_lshl_b32 s%d, s%d, 9' % (S_T1, S_J))
    a('s_add_u32 s%d, s%d, s%d' % (S_T0, S_T0, S_T1))
    a('s_add_u32 s%d, s%d, %d' % (S_T0, S_T0, lms.stat))
    a('v_add_u32 v5, s%d, v5' % S_T0)
    for dp in ('quad_perm:[1,0,3,2]', 'quad_perm:[2,3,0,1]', 'row_half_mirror'):
        a('s_nop 1')
        for r in range(4):
            a('v_add_f32_dpp v%d, v%d, v%d %s row_mask:0xf bank_mask:0xf' % (SA + r, SA + r, SA + r, dp))
    a('ds_write_b64 v5, v[%d:%d]' % (SA, SA + 1))
    a('ds_write_b64 v5, v[%d:%d] offset:64' % (SA + 2, SA + 3))
    barrier(a)
    if E('TSP1'): ts(a)
    for kt in range(17):
        if kt < 16:
            a.vwait('w%d' % kt)
            if E('TSP2'): ts(a)
            rd_kt(kt)
            if kt: a('s_waitcnt lgkmcnt(4)')
        else:
            a('s_waitcnt lgkmcnt(0)')
        if kt >= 1:
            p = kt - 1
            if p < 5: dma_w(p + 11)
            mm_kt(p, False)
        if kt == 0:
            rs_issue(a, lms.stat, 2)
        if kt == 2:
            rs_math(a, 2)
            rs_spread(a, True)
            for r in range(14, 18):
                a('v_mov_b32 v%d, 0' % r)
        if kt == 0:
            for k in range(6, 9): dma_w(k)
        if kt == 1:
            for k in range(9, 11): dma_w(k)
        if kt == 6:
            side_misc()
            nonce_probe(a)
        if kt == int(E('WARMKT', '11')):
            warm2(a, V_W0 + 22, V_W0 + 23, 'wu', True)
        if kt == 12:
            with role(a, 'B'):
                vm = list(a.vm)
                a.vwait('w15')
                for k in range(6): dma_w(k, True)
                a.vm = vm; a.done = -1
    with role(a, 'B'):
        vm = list(a.vm)
        for k in range(6, 8): dma_w(k, True)
        a.vm = vm
    a.nop(3)
    make_csfrag(a, CS, V_CF1, 6)
    a('s_nop 1')
    y_correct(a, V_CF1)
    a('s_barrier')
    ts(a)
    lm = LM(red=65536, stat=0, pkv=98304, kvf=114688, redq=65536, wst=131072)
    kv_red_write(a, lm.red)
    with role(a, 'A'):
        nonce_check(a)
    with role(a, 'B'):
        a.vm += ['q'] * 8; a.done = -1
        nonce_check(a)
    a('v_mov_b32 v18, 0')
    a('v_mov_b32 v19, 0')
    a('s_mov_b32 s%d, 1' % S_GPH)
    with role(a, 0):
        lsignal(a)
    with role(a, 'A'):
        hello(a)
    barrier(a)
    if E('TSP1'): ts(a)
    a1_kv_owner(a, lm)
    ts(a)
    with role(a, 'B'):
        a('s_waitcnt vmcnt(0)')
    def qpass():
        a.vreset()
        for kt in range(17):
            if kt < 16:
                if kt >= 8: a.vwait('q%d' % kt)
                rd_kt(kt, True)
                if kt: a('s_waitcnt lgkmcnt(4)')
            else:
                a('s_waitcnt lgkmcnt(0)')
            if kt >= 1:
                p = kt - 1
                if p < 8: dma_w(p + 8, True)
                mm_kt(p, False)
        a.nop(3)
        make_csfrag(a, CS, V_CF0, 6)
        a('s_nop 1')
        y_correct(a, V_CF0)
    def ring():
        a('s_and_b32 s70, s%d, 3' % S_W)
        a('s_lshl_b32 s70, s70, 14')
        load_w_ring(a, U_WQ, V_W1, 16)
    a1_tail(a, lm, True, qpass, ring)

def resid_add(a, acc):
    for r in range(4):
        a('v_lshlrev_b32 v%d, 16, v%d' % (acc + 8 + 2 * r, V_RES + r))
        a('v_and_b32 v%d, 0xffff0000, v%d' % (acc + 9 + 2 * r, V_RES + r))
    for r in range(0, 8, 2):
        pk_add(a, acc + r, acc + r, acc + 8 + r)
    for r in range(4):
        a('v_cvt_pk_bf16_f32 v%d, v%d, v%d' % (V_RES + r, acc + 2 * r, acc + 2 * r + 1))

def final_store(a):
    srd(a, S_IN2, 56, 0x200000)
    a('s_nop 1')
    a('v_permlane32_swap_b32 v%d, v%d' % (V_RES, V_RES + 2))
    a('v_permlane32_swap_b32 v%d, v%d' % (V_RES + 1, V_RES + 3))
    a('v_and_b32 v5, 31, v%d' % V_LANE)
    a('v_lshlrev_b32 v5, 10, v5')
    a('v_lshrrev_b32 v6, 5, v%d' % V_LANE)
    a('v_lshl_add_u32 v5, v6, 4, v5')
    rowcol_off(a)
    a('buffer_store_dwordx4 %s, v5, s[12:15], s%d offen' % (vr(V_RES), S_T0))

def w16_regs(a, inside):
    a('v_lshrrev_b32 v5, 5, v%d' % V_LANE)
    a('v_lshlrev_b32 v5, 9, v5')
    a('v_bfe_u32 v7, v%d, 4, 1' % V_LANE)
    a('v_lshl_add_u32 v5, v7, 7, v5')
    a('v_bfe_u32 v7, v%d, 2, 2' % V_LANE)
    a('v_lshl_add_u32 v5, v7, 5, v5')
    a('v_and_b32 v7, 3, v%d' % V_LANE)
    a('v_lshl_add_u32 v5, v7, 3, v5')
    a('v_add_u32 v5, %d, v5' % LDS_W16)
    for st in range(16):
        a('ds_read_b64_tr_b16 v[%d:%d], v5 offset:%d' % (V_W1 + 4 * st, V_W1 + 4 * st + 1, st * 1024))
        a('ds_read_b64_tr_b16 v[%d:%d], v5 offset:%d' % (V_W1 + 4 * st + 2, V_W1 + 4 * st + 3, st * 1024 + 256))
    L = a.newlabel('cf2')
    a('s_cmp_lg_u32 s%d, 0' % S_LOFF)
    a('s_cbranch_scc1 %s' % L)
    a('s_waitcnt lgkmcnt(0)')
    colsum(a, V_W1, V_ACC)
    make_csfrag(a, V_ACC, V_CF2, V_ACC + 2)
    a.label(L)

def out_gemm(a, w16=False):
    ie = ifelse(a)
    ie.if_set(0)
    active_path(a, V_W0, False)
    y_red_write(a, 65536, 0)
    ie.else_()
    loader_path(a, False, (lambda: dma_w16(a)) if w16 else None)
    ie.end()
    toggle_bufs(a, False)
    barrier(a)
    ts3(a)
    y_red_read(a, 65536, 0)
    resid_add(a, V_ACC)
    ts3(a)

def b1_compute(a):
    lm = LM_STD
    a('s_add_u32 s%d, s%d, 1' % (S_GPH, S_GPH))
    P = V_ACC
    X16 = [V_XF, V_XF + 4, V_XF + 8, V_XF + 12]
    MFg, CFg = P + 8, V_CF2
    def mk_hook(var):
        def hook(c):
            if c == 'stats':
                a('v_and_b32 v7, 15, v%d' % V_LANE)
                a('s_lshl_b32 s%d, s%d, 4' % (S_T0, S_SLAB))
                a('v_add_u32 v7, s%d, v7' % S_T0)
                a('v_lshlrev_b32 v7, 2, v7')
                a('ds_bpermute_b32 v8, v7, v%d' % VM)
                if var == 0:
                    a('ds_bpermute_b32 v%d, v7, v%d' % (P + 16, VR))
                else:
                    a('v_lshrrev_b32 v7, 4, v%d' % V_LANE)
                    a('v_lshlrev_b32 v7, 2, v7')
                    a('v_add_u32 v7, s%d, v7' % S_T0)
                    a('v_lshlrev_b32 v7, 2, v7')
                    for r in range(4):
                        a('ds_bpermute_b32 v%d, v7, v%d offset:%d' % (P + 16 + r, VR, 4 * r))
                a('v_and_b32 v%d, 15, v%d' % (P + 20, V_LANE))
                a('v_lshlrev_b32 v%d, 4, v%d' % (P + 20, P + 20))
                a('v_bfe_u32 v7, v%d, 4, 1' % V_LANE)
                a('v_lshl_add_u32 v%d, v7, %d, v%d' % (P + 20, 9 if var == 0 else 8, P + 20))
                a('v_lshrrev_b32 v7, 5, v%d' % V_LANE)
                a('v_lshl_add_u32 v%d, v7, 3, v%d' % (P + 20, P + 20))
                if var == 0:
                    a('s_lshl_b32 s71, s%d, 11' % S_RB)
                    a('s_lshr_b32 s%d, s%d, 1' % (S_T1, S_SLAB))
                    a('s_lshl_b32 s%d, s%d, 10' % (S_T1, S_T1))
                    a('s_add_u32 s71, s71, s%d' % S_T1)
                    a('s_and_b32 s%d, s%d, 1' % (S_T1, S_SLAB))
                    a('s_lshl_b32 s%d, s%d, 8' % (S_T1, S_T1))
                    a('s_add_u32 s71, s71, s%d' % S_T1)
                    a('s_add_u32 s71, s71, 0x%x' % KF_)
                else:
                    a('s_lshl_b32 s71, s%d, 2' % S_RB)
                    a('s_add_u32 s71, s71, s%d' % S_SLAB)
                    a('s_lshl_b32 s71, s71, 9')
                    a('s_add_u32 s71, s71, 0x%x' % VF_)
                a('s_add_u32 s71, s71, s%d' % S_LOFF)
                a('s_waitcnt lgkmcnt(0)')
                if var == 0:
                    for r in range(1, 4): a('v_mov_b32 v%d, v%d' % (P + 16 + r, P + 16))
                make_mfrag(a, 8, MFg)
                a('s_nop 1')
                if var == 0: a('v_mfma_f32_16x16x32_bf16 %s, %s, %s, %s' % (vr(P), vr(CFg), vr(MFg), vr(P)))
                else: a('v_mfma_f32_16x16x32_bf16 %s, %s, %s, %s' % (vr(P), vr(MFg), vr(CFg), vr(P)))
                return
            if c == 'pre':
                w16_regs(a, True)
                return
            XB8 = [V_XF + 4 * k for k in range(4)] + [V_TMP + 4 * k for k in range(4)]
            for n in range(8):
                a('ds_read_b128 %s, v6 offset:%d' % (vr(XB8[n]), n * 2048))
            for st in range(16):
                a('s_waitcnt lgkmcnt(%d)' % min(7, 15 - st))
                acc = P + 24 * (st & 1)
                cc = '0' if st < 2 else vr(acc)
                A_, B_ = (vr(V_W1 + 4 * st), vr(XB8[st % 8])) if var == 0 else (vr(XB8[st % 8]), vr(V_W1 + 4 * st))
                a('v_mfma_f32_16x16x32_bf16 %s, %s, %s, %s' % (vr(acc), A_, B_, cc))
                if st + 8 < 16:
                    a('ds_read_b128 %s, v6 offset:%d' % (vr(XB8[st % 8]), (st + 8) * 2048))
            rs_math(a, 4)
            hook('stats')
            a.nop(8)
            pk_add(a, P, P, P + 24)
            pk_add(a, P + 2, P + 2, P + 26)
            for r in range(4):
                a('v_mul_f32 v%d, v%d, v%d' % (P + r, P + r, P + 16 + r))
            a('v_cvt_pk_bf16_f32 v%d, v%d, v%d' % (P + 4, P, P + 1))
            a('v_cvt_pk_bf16_f32 v%d, v%d, v%d' % (P + 5, P + 2, P + 3))
            a('buffer_store_dwordx2 v[%d:%d], v%d, %s, s71 offen sc1' % (P + 4, P + 5, P + 20, WSR))
        return hook
    Lb = a.newlabel('b1b'); L3 = a.newlabel('b13'); L3v = a.newlabel('b13v'); Le = a.newlabel('b1e')
    a('s_cmp_eq_u32 s%d, 1' % S_KH)
    a('s_cbranch_scc1 %s' % Lb)
    a('s_cmp_eq_u32 s%d, 3' % S_W)
    a('s_cbranch_scc1 %s' % L3)
    loader_path(a, True)
    a('s_branch %s' % Le)
    a.label(Lb)
    active_path(a, V_W1, True)
    y_correct(a, V_CF2)
    y_red_write(a, 65536, 1)
    a('s_branch %s' % Le)
    a.label(L3)
    a('v_and_b32 v6, 15, v%d' % V_LANE)
    a('v_lshlrev_b32 v6, 4, v6')
    a('v_bfe_u32 v5, v%d, 4, 1' % V_LANE)
    a('v_lshl_add_u32 v6, v5, 9, v6')
    a('v_lshrrev_b32 v5, 5, v%d' % V_LANE)
    a('v_lshl_add_u32 v6, v5, 10, v6')
    a('s_lshr_b32 s%d, s%d, 1' % (S_T0, S_SLAB))
    a('s_lshl_b32 s%d, s%d, 15' % (S_T0, S_T0))
    a('s_and_b32 s%d, s%d, 1' % (S_T1, S_SLAB))
    a('s_lshl_b32 s%d, s%d, 8' % (S_T1, S_T1))
    a('s_add_u32 s%d, s%d, s%d' % (S_T0, S_T0, S_T1))
    a('v_add_u32 v6, s%d, v6' % S_T0)
    a('s_cmp_eq_u32 s%d, 1' % S_WHICH)
    a('s_cbranch_scc1 %s' % L3v)
    loader_path(a, True, hook=mk_hook(0))
    a('s_branch %s' % Le)
    a.label(L3v)
    loader_path(a, True, hook=mk_hook(1))
    a.label(Le)
    tsb(a)
    toggle_bufs(a, True)
    attn_pre(a)
    barrier(a)
    tsb(a)
    with role(a, 3):
        a('s_waitcnt vmcnt(0)')
        lsignal(a)
    AQ = V_ACC
    y_red_read(a, 65536, 1)
    scale_pack(a, AQ, VR, V_XF)
    for r in range(4):
        a('v_lshlrev_b32 v%d, 16, v%d' % (AQ + 2 * r, V_XF + r))
        a('v_and_b32 v%d, 0xffff0000, v%d' % (AQ + 2 * r + 1, V_XF + r))
    for r in range(8):
        a('v_mul_f32 v%d, 0x%x, v%d' % (AQ + r, f2u(CQ), AQ + r))
    for r in range(4):
        a('v_cvt_pk_bf16_f32 v%d, v%d, v%d' % (A_Q + r, AQ + 2 * r, AQ + 2 * r + 1))

PRIO_LO = eval(E('PRIO_LO', '(4, 12, 23, 53)'))
PRIO_HI = eval(E('PRIO_HI', '(7, 15, 28)'))
def attn_loop(a):
    a.lreset()
    def rdK(t):
        if t < 64: a.l_('k%d' % t, 'ds_read_b128 %s, v%d offset:%d' % (vr(A_K[t % 2]), V_L16, t * 1024))
    def rdV(t):
        if t >= 64: return
        a('s_mov_b64 exec, s[%d:%d]' % (S_MASK_LO16, S_MASK_LO16 + 1))
        a.l_('v%d' % t, 'ds_read_b128 %s, v%d offset:%d' % (vr(A_V[t % 2]), A_VA, t * 1024))
        a.l_('v%d' % t, 'ds_read_b128 %s, v%d offset:%d' % (vr(A_V[t % 2] + 4), A_VA, t * 1024 + 512))
        a('s_mov_b64 exec, -1')
    def qk(t):
        a('v_mfma_f32_32x32x16_bf16 %s, %s, %s, %s' % (vr(A_S[t % 2], 16), vr(A_K[t % 2]), vr(A_Q), vr(A_BIAS, 16)))
    def pv(vb, pb, first=False):
        a('v_mfma_f32_32x32x16_bf16 %s, %s, %s, %s' % (vr(A_O, 16), vr(vb), vr(pb), '0' if first else vr(A_O, 16)))
    ex = lambda r: a('v_exp_f32 v%d, v%d' % (r, r))
    class first_pass:
        def __enter__(s_):
            s_.L = a.newlabel('fp')
            a('s_cmp_lg_u32 s%d, 0' % S_PASS)
            a('s_cbranch_scc1 %s' % s_.L)
        def __exit__(s_, *e): a.label(s_.L)
    a('v_and_b32 v%d, 15, v%d' % (A_VA, V_LANE))
    a('v_lshlrev_b32 v%d, 4, v%d' % (A_VA, A_VA))
    a('v_lshrrev_b32 v7, 5, v%d' % V_LANE)
    a('v_lshl_add_u32 v%d, v7, 8, v%d' % (A_VA, A_VA))
    a('v_add_u32 v%d, 65536, v%d' % (A_VA, A_VA))
    rdK(0); rdK(1); rdV(0)
    WD, WA = 10, 11
    a('s_lshl_b32 s70, s%d, 12' % S_W)
    a('s_add_u32 s70, s70, 131072')
    a('s_setprio 1')
    with role(a, 'B'):
        a('s_setprio 2')
    a.lwait('k0')
    qk(0)
    raw_rdaddr(a, WA, 70)
    a('s_nop 1')
    T0 = 29
    def wskip(cond_all):
        a('s_cmp_lg_u32 s%d, 0' % S_LOFF)
        a('s_cselect_b32 s%d, 0x%x, 0' % (S_T0, OOB))
        if not cond_all:
            a('s_cmp_eq_u32 s%d, 0' % S_KH)
            a('s_cselect_b32 s%d, 0, s%d' % (S_T0, S_T0))
        a('s_add_u32 s68, s68, s%d' % S_T0)
    for t in range(64):
        S = A_S[t % 2]
        cv = lambda r: a('v_cvt_pk_bf16_f32 v%d, v%d, v%d' % (A_P + r, S + 2 * r, S + 2 * r + 1))
        def xprobe():
            a('v_and_b32 v7, 7, v%d' % V_LANE)
            a('v_lshlrev_b32 v7, 7, v7')
            a('s_mov_b32 s66, 0x%x' % XFLAG)
            a('buffer_load_dwordx2 v[8:9], v7, %s, s66 offen sc1' % WSR)
        def xcheck(slots):
            Lr = a.newlabel('xr')
            tagbase(a, 65, S_GPH)
            m = sum(1 << sl for sl in slots)
            a('s_lshl_b32 s64, %d, s%d' % (m, S_GRP))
            chk = ['s_mov_b32 exec_lo, s64', 's_mov_b32 exec_hi, 0'] + tagcmp([8], 65, 5) + ['s_mov_b64 exec, -1']
            a('s_waitcnt vmcnt(0)')
            for c in chk: a(c)
            a('s_cbranch_vccz %s' % Lr)
            a('v_and_b32 v7, 7, v%d' % V_LANE)
            a('v_lshlrev_b32 v7, 7, v7')
            poll(a, ['buffer_load_dwordx2 v[8:9], v7, %s, s66 offen sc1' % WSR], chk, sleep=1)
            a.label(Lr)
        if t in (2, 9, 20):
            with first_pass(): xprobe()
        if t == 4:
            with first_pass():
                xcheck([1]); kv_dma(a, [1])
        if t == 11:
            with first_pass():
                xcheck([2, 3]); kv_dma(a, [2, 3])
        if t == 22:
            with first_pass():
                xcheck([4, 5, 6, 7]); kv_dma(a, range(4, 8))
        if t in (7, 15, 28):
            with first_pass():
                a('s_waitcnt vmcnt(0)')
                a('s_barrier')
            if t in (7, 15): rdK(t + 1)
        if E('TSA') and t in (0, 3, 4, 7, 15, 32, 50, 63): ts(a)
        if t in PRIO_LO:
            with role(a, 'B'):
                a('s_setprio 0')
        if t in PRIO_HI:
            with role(a, 'B'):
                a('s_setprio 2')
        if t == T0 + int(E('WARMT', '0')):
            Lw = a.newlabel('wm')
            a('s_cmp_lg_u32 s%d, 0' % S_LOFF)
            a('s_cbranch_scc1 %s' % Lw)
            warm2(a, 8, 7)
            a.label(Lw)
        if t == T0:
            raw_setup(a, U_OB, U_Q, S_IN2, 68, 69, WD); wskip(False)
        if t == T0 + 16:
            raw_setup(a, U_K, U_V, S_IN2, 68, 69, WD); wskip(True)
        if t + 1 < 64:
            a.lwait('k%d' % (t + 1))
            qk(t + 1)
        if t not in (6, 14): rdK(t + 2)
        ex(S + 0); ex(S + 1); ex(S + 2); ex(S + 3); cv(0); ex(S + 4); ex(S + 5); cv(1); ex(S + 6); ex(S + 7); cv(2)
        ex(S + 8); ex(S + 9); cv(3); ex(S + 10); ex(S + 11)
        a.lwait('v%d' % t)
        pv(A_V[t % 2], A_P, t == 0)
        p = t - T0
        if 0 <= p < 32:
            if p >= 4: a.lwait('w%d' % (p - 4))
            for l in raw_dma(S_IN2, 68, 69, WD, 70, (p % 4) * 1024): a(l)
        cv(4); ex(S + 12); ex(S + 13); cv(5); ex(S + 14); ex(S + 15); cv(6)
        p = t - T0 - 2
        if 0 <= p < 32:
            a('s_waitcnt vmcnt(%d)' % min(2, 31 - p))
        else:
            a('s_nop 0')
        cv(7)
        if 0 <= p < 32:
            for l in raw_rd((V_W0 if p < 16 else V_W1) + 4 * (p % 16), WA, (p % 4) * 1024): a.l_('w%d' % p, l)
        else:
            a('s_nop 1')
        pv(A_V[t % 2] + 4, A_P + 4)
        rdV(t + 1)
    a('s_setprio 0')
    a.nop(16)

def attn_pre(a):
    a('s_mov_b32 s%d, 0x00110000' % S_T0)
    a('s_mov_b32 s%d, 0x00110000' % S_T1)
    a('v_cndmask_b32_e64 v7, 0, v%d, s[%d:%d]' % (V_ONES, S_T0, S_T1))
    for b in range(2):
        for r in range(8):
            a('v_mov_b32 v%d, v7' % (A_V[b] + r))

def kv_dma(a, slots):
    a('s_lshl_b32 s67, s%d, 10' % S_W)
    for sl in slots:
        a('s_add_u32 s%d, s%d, %d' % (S_T0, S_GRP, sl))
        a('s_and_b32 s%d, s%d, 7' % (S_T0, S_T0))
        a('s_lshl_b32 s%d, s%d, 13' % (S_T0, S_T0))
        a('s_add_u32 s%d, s%d, s67' % (S_T0, S_T0))
        a('s_add_u32 s%d, s%d, s%d' % (S_T0, S_T0, S_LOFF))
        a('s_add_u32 s%d, s%d, 0x%x' % (S_T0, S_T0, KF_))
        a('s_add_u32 m0, s67, %d' % (sl * 8192))
        a('s_add_u32 s%d, s%d, 0x10000' % (S_T1, S_T0))
        a('buffer_load_dwordx4 v%d, %s, s%d offen sc1 lds' % (V_L16, WSR, S_T0))
        a('s_add_u32 m0, s67, %d' % (65536 + sl * 8192))
        a('s_nop 0')
        a('buffer_load_dwordx4 v%d, %s, s%d offen sc1 lds' % (V_L16, WSR, S_T1))

def attn_inputs(a):
    with role(a, 0):
        lwait(a)
        L = a.newlabel('ld')
        a('s_lshr_b32 s%d, s2, 3' % S_T0)
        a('s_cmp_lg_u32 s%d, 0' % S_T0)
        a('s_cbranch_scc1 %s' % L)
        tagval(a, 6, S_GPH)
        a('s_lshl_b32 s%d, s%d, 7' % (S_T0, S_GRP))
        a('s_add_u32 s%d, s%d, 0x%x' % (S_T0, S_T0, XFLAG))
        a('v_mov_b32 v5, 0')
        a('s_mov_b64 exec, 1')
        a('buffer_store_dwordx2 v[6:7], v5, %s, s%d offen sc1' % (WSR, S_T0))
        a('s_mov_b64 exec, -1')
        a.label(L)
    barrier(a)
    ts(a)
    kv_dma(a, [0])
    a('s_waitcnt vmcnt(0)')
    a('s_barrier')

def attn_compute(a):
    a('ds_read_b128 %s, v%d' % (vr(A_K[0]), V_L16))
    a('s_waitcnt lgkmcnt(0)')
    a('v_mfma_f32_32x32x16_bf16 %s, %s, %s, 0' % (vr(A_S[0], 16), vr(A_K[0]), vr(A_Q)))
    a.nop(12)
    a('v_max3_f32 v10, v%d, v%d, v%d' % (A_S[0], A_S[0] + 1, A_S[0] + 2))
    a('v_max3_f32 v9, v%d, v%d, v%d' % (A_S[0] + 3, A_S[0] + 4, A_S[0] + 5))
    for r in range(6, 14, 4):
        a('v_max3_f32 v10, v10, v%d, v%d' % (A_S[0] + r, A_S[0] + r + 1))
        a('v_max3_f32 v9, v9, v%d, v%d' % (A_S[0] + r + 2, A_S[0] + r + 3))
    a('v_max3_f32 v10, v10, v%d, v%d' % (A_S[0] + 14, A_S[0] + 15))
    a('v_max_f32 v10, v10, v9')
    halves_sum(a, 10, 9, 'v_max_f32')
    a('v_sub_f32 v10, 0, v10')
    a('s_mov_b32 s%d, 0' % S_PASS)
    Lrun = a.newlabel('at_run'); Lok = a.newlabel('at_ok'); Lmx = a.newlabel('at_mx')
    a.label(Lrun)
    for r in range(16):
        a('v_mov_b32 v%d, v10' % (A_BIAS + r))
    a('s_nop 1')
    attn_loop(a)
    a('s_cmp_eq_u32 s%d, 1' % S_PASS)
    a('s_cbranch_scc1 %s' % Lok)
    a('v_max3_f32 v8, abs(v%d), abs(v%d), abs(v%d)' % (A_O, A_O + 1, A_O + 2))
    a('v_max3_f32 v9, abs(v%d), abs(v%d), abs(v%d)' % (A_O + 3, A_O + 4, A_O + 5))
    a('v_max3_f32 v8, abs(v%d), abs(v%d), v8' % (A_O + 6, A_O + 7))
    a('v_max_f32 v8, v8, v9')
    a('v_cmp_nle_f32 vcc, 0x%x, v%d' % (f2u(2.0 ** -89), A_O + 8))
    a('v_cmp_nge_f32 s[64:65], v%d, v%d' % (7, A_O + 8)) if False else None
    a('s_mov_b64 s[64:65], vcc')
    a('v_cmp_nge_f32 vcc, 0x%x, v%d' % (f2u(2.0 ** 90), A_O + 8))
    a('s_nop 3')
    a('s_or_b64 s[64:65], s[64:65], vcc')
    a('v_cmp_nge_f32 vcc, 0x%x, v8' % f2u(2.0 ** 126))
    a('s_nop 3')
    a('s_or_b64 s[64:65], s[64:65], vcc')
    a('s_cmp_eq_u64 s[64:65], 0')
    a('s_cbranch_scc1 %s' % Lok)
    a('s_mov_b32 s%d, 1' % S_PASS)
    a('v_mov_b32 v10, 0xff800000')
    a('v_mov_b32 v%d, v%d' % (A_KA, V_L16))
    a('s_mov_b32 s%d, 0' % S_CNT)
    a.label(Lmx)
    a('ds_read_b128 %s, v%d' % (vr(A_K[0]), A_KA))
    a('s_waitcnt lgkmcnt(0)')
    a('v_mfma_f32_32x32x16_bf16 %s, %s, %s, 0' % (vr(A_S[0], 16), vr(A_K[0]), vr(A_Q)))
    a.nop(16)
    for r in range(0, 16, 2):
        a('v_max3_f32 v10, v10, v%d, v%d' % (A_S[0] + r, A_S[0] + r + 1))
    a('v_add_u32 v%d, 1024, v%d' % (A_KA, A_KA))
    a('s_add_u32 s%d, s%d, 1' % (S_CNT, S_CNT))
    a('s_cmp_lt_u32 s%d, 64' % S_CNT)
    a('s_cbranch_scc1 %s' % Lmx)
    halves_sum(a, 10, 9, 'v_max_f32')
    a('v_sub_f32 v10, 0, v10')
    a('s_branch %s' % Lrun)
    a.label(Lok)
    a('v_rcp_f32 v8, v%d' % (A_O + 8))
    a('s_nop 0')
    scale_pack(a, A_O, 8, A_P)
    store_blk(a, A_P)
    csignal(a)

def header():
    ref = open('cdna_kernels/%s.s.ref' % NAME).read().split('\n')
    out = []
    for l in ref:
        if not l.startswith(';'): break
        if '@launch' in l: continue
        out.append(l)
    return out

def main(path):
    a = Asm()
    for h in header(): a.raw(h)
    a.raw('; @launch grid=(256,1,1) block=(512,1,1) lds=%d' % LDS_TOTAL)
    a.raw('.amdgcn_target "amdgcn-amd-amdhsa--gfx950"')
    a.raw('.text')
    name = NAME + '_kernel'
    prologue(a, name)
    ts(a)
    p1(a)
    ts(a)
    a.label('L_layer')
    out_gemm(a, True)
    store_x(a)
    csignal(a)
    ts(a)
    b1_compute(a)
    ts(a)
    attn_inputs(a)
    ts(a)
    attn_compute(a)
    ts(a)
    out_gemm(a)
    a('s_cmp_lg_u32 s%d, 0' % S_LOFF)
    a('s_cbranch_scc1 L_final')
    a('s_mov_b32 s%d, 0x%x' % (S_LOFF, LS))
    store_x(a)
    csignal(a)
    ts(a)
    a1_std(a)
    ts(a)
    a('s_branch L_layer')
    a.label('L_final')
    final_store(a)
    a('s_waitcnt vmcnt(0)')
    ts(a)
    ts_flush(a)
    epilogue(a, name)
    open(path, 'w').write(a.text())

if __name__ == '__main__':
    main(sys.argv[1] if len(sys.argv) > 1 else 'cdna_kernels/%s.s' % NAME)
```

```python
import struct, math, sys, os

NAME = 'interleave_layers__linear_attn_block__grouped_kv_mqa__prompt'
E = os.environ.get
TS_ON = E('TS', '0') == '1'
TS2 = TS_ON and E('TS2', '0') == '1'
DBGBUF = E('DBGBUF', '0') == '1'

T0_ = 0x1000000 if DBGBUF else 0x000000
WP = 0x400000
NT_QKV, NT_OA, NT_Q, NT_OB = 0, 48, 64, 80
WKV16 = 0x700000
STP = 0x780000
LB, LS = 0x880000, 0x140000
KF_, VF_, KMAX_ = LB, LB + 0x10000, LB + 0x20000
KVP_, ZP_ = LB + 0x28000, LB + 0x128000
CFLAG = 0xB00000
GFLAG = 0xB04000
XFLAG = 0xB05000
HFLAG = 0xB20000
TSBUF = 0xB40000
WS_BYTES = 0x10000000
OOB = 0x7FFF0000
_t = lambda n: T0_ + n * 0x200000
XF = [None, _t(1), _t(3), _t(5)]
OLIN = [_t(0), _t(4)]; OF = [_t(2), _t(6)]
KF = [KF_, KF_ + LS]; VF = [VF_, VF_ + LS]; KMAX = [KMAX_, KMAX_ + LS]; KVP = [KVP_, KVP_ + LS]; ZP = [ZP_, ZP_ + LS]

def f2u(x): return struct.unpack('<I', struct.pack('<f', x))[0]
LOG2E = math.log2(math.e)
CQ = 0.25 * LOG2E

class Asm:
    def __init__(self):
        self.l = []; self.uid = 0; self.vm = []; self.done = -1
    def __call__(self, s):
        for line in s.strip('\n').split('\n'):
            self.l.append('    ' + line.strip())
    def label(self, s): self.l.append(s + ':')
    def raw(self, s): self.l.append(s)
    def nop(self, n):
        while n > 0:
            k = min(n, 16); self('s_nop %d' % (k - 1)); n -= k
    def newlabel(self, p='L'):
        self.uid += 1; return '%s_%d' % (p, self.uid)
    def text(self): return '\n'.join(self.l) + '\n'
    def lreset(self): self.lg = []; self.ldone = -1
    def l_(self, tag, s_):
        self(s_); self.lg.append(tag)
    def lwait(self, *tags):
        idx = [i for i, t in enumerate(self.lg) if t in tags]
        if not idx or max(idx) <= self.ldone: return
        self.ldone = max(idx)
        n = len(self.lg) - 1 - max(idx)
        self('s_waitcnt lgkmcnt(%d)' % min(n, 15))
    def vreset(self): self.vm = []; self.done = -1
    def v(self, tag, s):
        self(s); self.vm.append(tag)
    def vwait(self, *tags, extra=''):
        idx = [i for i, t in enumerate(self.vm) if t in tags]
        if max(idx) <= self.done and not extra: return
        self.done = max(self.done, max(idx))
        n = len(self.vm) - 1 - max(idx)
        assert n <= 63
        self('s_waitcnt vmcnt(%d)%s' % (n, extra))

def vr(b, n=4): return 'v[%d:%d]' % (b, b + n - 1)

S_WS, S_IN, S_IN2 = 4, 8, 12
S_RB, S_CS, S_W, S_I, S_J, S_KH = 16, 17, 18, 19, 20, 21
S_BLK, S_LOFF = 22, 23
S_T0, S_T1, S_T2, S_T3, S_T4, S_T5 = 24, 25, 26, 27, 28, 29
S_MASK_LO16 = 30
S_WHICH, S_SLAB = 34, 35
S_CNT, S_PASS, S_CPH, S_GPH = 36, 37, 38, 39
S_FAST, S_SPIN = 62, 63
S_TSI, S_TOFF, S_SOFF, S_GRP = 72, 73, 74, 75
S_DBG = 76
S_WOFF, S_XOFF = 80, 81
S_TS = 82
S_NLO, S_NHI, S_XCC = 32, 33, 91
V_ONES, V_LANE, V_L16, V_XB, V_XA = 0, 1, 2, 3, 4
VM, VR = 10, 11
V_CF1, V_CF0, V_CF2 = 12, 14, 16
V_RES = 20
V_XF = 24
V_ACC = 40
V_PQ = 88
V_CFA, V_GFA, V_PCA, V_Q2 = 96, 97, 98, 99
V_TMP = 100
V_W0, V_W1 = 128, 192
A_Q, A_BIAS, A_S, A_P, A_O, A_K, A_V = 100, 24, [40, 56], 72, 80, [104, 108], [112, 120]
A_KA, A_VA = 5, 6
XBUF = [V_XF, V_XF + 8, V_TMP, V_TMP + 8]
ACC0, ACC1 = V_ACC, V_ACC + 16
V_MF = V_ACC + 32

class LM:
    def __init__(s, red, stat, pkv, kvf, redq, wst=98304): s.red, s.stat, s.pkv, s.kvf, s.redq, s.wst = red, stat, pkv, kvf, redq, wst
LM_STD = LM(red=65536, stat=131072, pkv=135168, kvf=151552, redq=65536)
LDS_U = 155648
LDS_TOTAL = 163840
WSR = 's[%d:%d]' % (S_WS, S_WS + 3)
SPIN_MAX = 200000

def srd(a, d, ptr_s, nbytes):
    a('s_mov_b32 s%d, s%d' % (d, ptr_s))
    a('s_mov_b32 s%d, s%d' % (d + 1, ptr_s + 1))
    a('s_mov_b32 s%d, 0x%x' % (d + 2, nbytes))
    a('s_mov_b32 s%d, 0x00020000' % (d + 3))

def ts(a):
    if not TS_ON: return
    a('s_memrealtime s[%d:%d]' % (S_TS, S_TS + 1))
    a('s_waitcnt lgkmcnt(0)')
    a('s_lshl_b64 exec, 1, s%d' % S_TSI)
    a('v_mov_b32 v99, s%d' % S_TS)
    a('s_mov_b64 exec, -1')
    a('s_add_u32 s%d, s%d, 1' % (S_TSI, S_TSI))

def ts_flush(a):
    if not TS_ON: return
    a('s_lshl_b32 s%d, s2, 3' % S_T0)
    a('s_add_u32 s%d, s%d, s%d' % (S_T0, S_T0, S_W))
    a('s_lshl_b32 s%d, s%d, 8' % (S_T0, S_T0))
    a('s_add_u32 s%d, s%d, 0x%x' % (S_T0, S_T0, TSBUF))
    a('v_lshlrev_b32 v5, 2, v%d' % V_LANE)
    a('buffer_store_dword v99, v5, %s, s%d offen' % (WSR, S_T0))
    a('s_waitcnt vmcnt(0)')

def ts3(a):
    if TS_ON and E('TS3'): ts(a)
def ts2(a):
    if TS2: ts(a)

class role:
    def __init__(s, a, who): s.a, s.who = a, who
    def __enter__(s):
        a = s.a; s.L = a.newlabel('role')
        if s.who == 'A': a('s_cmp_lg_u32 s%d, 0' % S_KH)
        elif s.who == 'B': a('s_cmp_lg_u32 s%d, 1' % S_KH)
        else: a('s_cmp_lg_u32 s%d, %d' % (S_W, s.who))
        a('s_cbranch_scc1 %s' % s.L)
    def __exit__(s, *e): s.a.label(s.L)

def prologue(a, name):
    a.raw('.globl %s' % name); a.raw('.p2align 8'); a.raw('.type %s,@function' % name)
    a.label(name)
    a('s_cmp_ge_u32 s2, 256')
    a('s_cbranch_scc1 L_end')
    a('s_load_dwordx16 s[40:55], s[0:1], 0')
    a('s_load_dwordx4 s[56:59], s[0:1], 64')
    a('s_load_dwordx2 s[60:61], s[0:1], 80')
    a('s_and_b32 s%d, s2, 7' % S_GRP)
    a('s_lshl_b32 s%d, s%d, 2' % (S_RB, S_GRP))
    a('s_lshr_b32 s%d, s2, 6' % S_T0)
    a('s_add_u32 s%d, s%d, s%d' % (S_RB, S_RB, S_T0))
    a('s_bfe_u32 s%d, s2, 0x30003' % S_CS)
    a('v_lshrrev_b32 v5, 6, v0')
    a('v_and_b32 v%d, 63, v0' % V_LANE)
    a('s_nop 0')
    a('v_readfirstlane_b32 s%d, v5' % S_W)
    a('v_lshlrev_b32 v%d, 4, v%d' % (V_L16, V_LANE))
    a('s_nop 3')
    a('s_and_b32 s%d, s%d, 1' % (S_I, S_W))
    a('s_bfe_u32 s%d, s%d, 0x10001' % (S_J, S_W))
    a('s_lshr_b32 s%d, s%d, 2' % (S_KH, S_W))
    a('s_lshl_b32 s%d, s%d, 1' % (S_T0, S_RB))
    a('s_add_u32 s%d, s%d, s%d' % (S_T0, S_T0, S_I))
    a('s_lshl_b32 s%d, s%d, 5' % (S_T0, S_T0))
    a('s_lshl_b32 s%d, s%d, 2' % (S_T1, S_CS))
    a('s_add_u32 s%d, s%d, s%d' % (S_T0, S_T0, S_T1))
    a('s_lshl_b32 s%d, s%d, 1' % (S_T1, S_J))
    a('s_add_u32 s%d, s%d, s%d' % (S_T0, S_T0, S_T1))
    a('s_add_u32 s%d, s%d, s%d' % (S_T0, S_T0, S_KH))
    a('s_lshl_b32 s%d, s%d, 10' % (S_BLK, S_T0))
    a('s_lshl_b32 s%d, s%d, 14' % (S_T1, S_I))
    a('s_mul_i32 s%d, s%d, 49152' % (S_T0, S_I))
    a('v_add_u32 v%d, s%d, v%d' % (V_XA, S_T0, V_L16))
    a('v_xor_b32 v%d, 32768, v%d' % (V_XB, V_XA))
    a('s_lshl_b32 s%d, s%d, 1' % (S_T0, S_CS))
    a('s_add_u32 s%d, s%d, s%d' % (S_T0, S_T0, S_J))
    a('s_lshl_b32 s%d, s%d, 6' % (S_WOFF, S_T0))
    a('s_lshl_b32 s%d, s%d, 16' % (S_XOFF, S_RB))
    a('v_mov_b32 v%d, 0x3f803f80' % V_ONES)
    a('s_mov_b32 s%d, 0x0000ffff' % S_MASK_LO16)
    a('s_mov_b32 s%d, 0x0000ffff' % (S_MASK_LO16 + 1))
    a('s_and_b32 s%d, s%d, 1' % (S_WHICH, S_CS))
    a('s_lshr_b32 s%d, s%d, 1' % (S_SLAB, S_CS))
    a('s_mov_b32 s%d, 0' % S_LOFF)
    a('s_mov_b32 s%d, 0' % S_CPH)
    a('s_mov_b32 s%d, 0' % S_GPH)
    a('s_mov_b32 s%d, 0' % S_FAST)
    a('s_mov_b32 s%d, 0x%x' % (S_TOFF, T0_))
    a('s_mov_b32 s%d, 0x%x' % (S_SOFF, STP))
    a('s_lshl_b32 s%d, s%d, 9' % (S_T0, S_RB))
    a('s_add_u32 s%d, s%d, 0x%x' % (S_T0, S_T0, CFLAG))
    a('v_lshlrev_b32 v5, 3, v%d' % V_LANE)
    a('v_add_u32 v%d, s%d, v5' % (V_PCA, S_T0))
    a('s_lshl_b32 s%d, s%d, 6' % (S_T1, S_CS))
    a('s_add_u32 s%d, s%d, s%d' % (S_T0, S_T0, S_T1))
    a('s_lshl_b32 s%d, s%d, 3' % (S_T1, S_W))
    a('s_add_u32 s%d, s%d, s%d' % (S_T0, S_T0, S_T1))
    a('v_mov_b32 v%d, s%d' % (V_CFA, S_T0))
    a('s_getreg_b32 s%d, hwreg(HW_REG_XCC_ID)' % S_XCC)
    a('s_and_b32 s%d, s%d, 15' % (S_XCC, S_XCC))
    a('s_lshl_b32 s%d, s%d, 6' % (S_T0, S_RB))
    a('s_lshl_b32 s%d, s%d, 3' % (S_T1, S_CS))
    a('s_add_u32 s%d, s%d, s%d' % (S_T0, S_T0, S_T1))
    a('s_add_u32 s%d, s%d, 0x%x' % (S_T0, S_T0, GFLAG))
    a('v_mov_b32 v%d, s%d' % (V_GFA, S_T0))
    a('s_mov_b32 s%d, 0' % S_TSI)
    a('v_mov_b32 v99, 0')
    a('s_waitcnt lgkmcnt(0)')
    srd(a, S_WS, 60, WS_BYTES)
    srd(a, S_DBG, 58, 256)

def epilogue(a, name, nv=256):
    a.label('L_end')
    a('s_endpgm')
    a.raw('.section .rodata,"a"'); a.raw('.p2align 6')
    a.raw('.amdhsa_kernel %s' % name)
    a.raw('  .amdhsa_next_free_vgpr %d' % nv)
    a.raw('  .amdhsa_next_free_sgpr 96')
    a.raw('  .amdhsa_accum_offset %d' % ((nv + 3) // 4 * 4))
    a.raw('  .amdhsa_group_segment_fixed_size 0')
    a.raw('  .amdhsa_kernarg_size 88')
    a.raw('  .amdhsa_user_sgpr_count 2')
    a.raw('  .amdhsa_user_sgpr_kernarg_segment_ptr 1')
    a.raw('  .amdhsa_system_sgpr_workgroup_id_x 1')
    a.raw('  .amdhsa_float_denorm_mode_32 3')
    a.raw('.end_amdhsa_kernel')

def fast_store(a, fmts):
    L1 = a.newlabel('fs'); L2 = a.newlabel('fs')
    a('s_cmp_eq_u32 s%d, 1' % S_FAST)
    a('s_cbranch_scc1 %s' % L1)
    for f in fmts: a(f.replace('@', ' sc1'))
    a('s_branch %s' % L2)
    a.label(L1)
    for f in fmts: a(f.replace('@', ''))
    a.label(L2)

def tagval(a, v, sph, xcc=False):
    a('s_lshl_b32 s%d, s%d, 4' % (S_T0, sph))
    a('s_add_u32 s%d, s%d, s%d' % (S_T0, S_T0, S_NLO))
    if xcc: a('s_add_u32 s%d, s%d, s%d' % (S_T0, S_T0, S_XCC))
    a('v_mov_b32 v%d, s%d' % (v, S_T0))
    a('v_mov_b32 v%d, s%d' % (v + 1, S_NHI))

def tagbase(a, sdst, sph):
    a('s_lshl_b32 s%d, s%d, 4' % (sdst, sph))
    a('s_add_u32 s%d, s%d, s%d' % (sdst, sdst, S_NLO))

def tagcmp(pairs, sbase, t):
    out = []
    for n, p in enumerate(pairs):
        out.append('v_subrev_u32 v%d, s%d, v%d' % (p, sbase, p))
        out.append('v_xor_b32 v%d, s%d, v%d' % (p + 1, S_NHI, p + 1))
        out.append('v_lshrrev_b32 v%d, 12, v%d' % (p, p))
        if n == 0: out.append('v_or_b32 v%d, v%d, v%d' % (t, p, p + 1))
        else: out.append('v_or3_b32 v%d, v%d, v%d, v%d' % (t, t, p, p + 1))
    out.append('v_cmp_ne_u32 vcc, 0, v%d' % t)
    return out

def csignal(a, tag=None):
    a('s_add_u32 s%d, s%d, 1' % (S_CPH, S_CPH))
    tagval(a, 6, S_CPH, True)
    if tag is None:
        a('s_waitcnt vmcnt(0) lgkmcnt(0)')
    a('s_mov_b64 exec, 1')
    fast_store(a, ['buffer_store_dwordx2 v[6:7], v%d, %s, 0 offen@' % (V_CFA, WSR)])
    a('s_mov_b64 exec, -1')
    if tag: a.vm.append(tag)

def poll(a, load, cmp, sleep=0):
    Lp = a.newlabel('pl'); Lo = a.newlabel('po')
    a('s_mov_b32 s%d, 0' % S_SPIN)
    a.label(Lp)
    a('s_add_u32 s%d, s%d, 1' % (S_SPIN, S_SPIN))
    a('s_cmp_gt_u32 s%d, %d' % (S_SPIN, SPIN_MAX))
    a('s_cbranch_scc1 L_end')
    for l in load: a(l)
    a('s_waitcnt vmcnt(0)')
    for c in cmp: a(c)
    if sleep:
        a('s_cbranch_vccz %s' % Lo)
        a('s_sleep %d' % sleep)
        a('s_branch %s' % Lp)
        a.label(Lo)
    else:
        a('s_cbranch_vccnz %s' % Lp)

def cwait(a):
    tagbase(a, 65, S_CPH)
    Lp = a.newlabel('cw'); Lo = a.newlabel('co')
    ld = lambda v: a('buffer_load_dwordx2 v[%d:%d], v%d, %s, 0 offen sc1' % (v, v + 1, V_PCA, WSR))
    a('s_mov_b32 s%d, 0' % S_SPIN)
    ld(8)
    a.label(Lp)
    a('s_add_u32 s%d, s%d, 1' % (S_SPIN, S_SPIN))
    a('s_cmp_gt_u32 s%d, %d' % (S_SPIN, SPIN_MAX))
    a('s_cbranch_scc1 L_end')
    a('s_sleep 1')
    ld(92)
    a('s_waitcnt vmcnt(1)')
    for c in tagcmp([8], 65, 7): a(c)
    a('s_cbranch_vccz %s' % Lo)
    a('s_sleep 1')
    ld(8)
    a('s_waitcnt vmcnt(1)')
    for c in tagcmp([92], 65, 7): a(c)
    a('s_cbranch_vccnz %s' % Lp)
    a.label(Lo)

def lpoll_addr(a, v):
    a('v_and_b32 v%d, 31, v%d' % (v, V_LANE))
    a('v_lshlrev_b32 v%d, 3, v%d' % (v, v))
    a('s_lshl_b32 s66, s%d, 8' % S_GRP)
    a('s_add_u32 s66, s66, 0x%x' % GFLAG)

def lwait(a):
    tagbase(a, 65, S_GPH)
    lpoll_addr(a, 5)
    poll(a, ['buffer_load_dwordx2 v[8:9], v5, %s, s66 offen sc1' % WSR], tagcmp([8], 65, 7))

def lsignal(a):
    tagval(a, 6, S_GPH, True)
    a('s_mov_b64 exec, 1')
    fast_store(a, ['buffer_store_dwordx2 v[6:7], v%d, %s, 0 offen@' % (V_GFA, WSR)])
    a('s_mov_b64 exec, -1')

DBR = 's[%d:%d]' % (S_DBG, S_DBG + 3)
NP = 18
def nonce_publish(a):
    L = a.newlabel('np')
    a('s_cmp_lg_u32 s2, 0')
    a('s_cbranch_scc1 %s' % L)
    a('s_cmp_lg_u32 s%d, 0' % S_W)
    a('s_cbranch_scc1 %s' % L)
    a('s_memrealtime s[64:65]')
    a('s_waitcnt lgkmcnt(0)')
    a('s_lshl_b64 s[64:65], s[64:65], 12')
    a('s_or_b32 s65, s65, 0x80000000')
    a('v_mov_b32 v6, s64')
    a('v_mov_b32 v7, s65')
    a('v_mov_b32 v5, 0')
    a('s_mov_b64 exec, 1')
    a('buffer_store_dwordx2 v[6:7], v5, %s, 0 offen sc1' % DBR)
    a('s_mov_b64 exec, -1')
    a.label(L)

def nonce_probe(a):
    a('v_mov_b32 v5, 0')
    a.v('np', 'buffer_load_dwordx2 v[%d:%d], v5, %s, 0 offen sc1' % (NP, NP + 1, DBR))

def nonce_check(a):
    Lok = a.newlabel('nok')
    a.vwait('np')
    a('v_cmp_eq_u32 vcc, 0, v%d' % (NP + 1))
    a('s_cbranch_vccz %s' % Lok)
    a('v_mov_b32 v5, 0')
    poll(a, ['buffer_load_dwordx2 v[%d:%d], v5, %s, 0 offen sc1' % (NP, NP + 1, DBR)], ['v_cmp_eq_u32 vcc, 0, v%d' % (NP + 1)], sleep=2)
    a.label(Lok)
    a('v_readfirstlane_b32 s%d, v%d' % (S_NLO, NP))
    a('v_readfirstlane_b32 s%d, v%d' % (S_NHI, NP + 1))
    a('s_nop 3')

PR = 80
def p1_probe(a):
    lpoll_addr(a, PR + 6)
    a.v('pr', 'buffer_load_dwordx2 v[%d:%d], v%d, %s, s66 offen sc1' % (PR + 2, PR + 3, PR + 6, WSR))

def p1_check(a):
    L2 = a.newlabel('pc')
    a.vwait('pr')
    tagbase(a, 65, S_GPH)
    a('v_mov_b32 v%d, v%d' % (PR + 4, PR + 2))
    for c in tagcmp([PR + 2], 65, 7): a(c)
    a('s_cbranch_vccz %s' % L2)
    poll(a, ['buffer_load_dwordx2 v[%d:%d], v%d, %s, s66 offen sc1' % (PR + 2, PR + 3, PR + 6, WSR)],
         ['v_mov_b32 v%d, v%d' % (PR + 4, PR + 2)] + tagcmp([PR + 2], 65, 7), sleep=1)
    a.label(L2)
    a('v_and_b32 v%d, 15, v%d' % (PR + 4, PR + 4))
    a('v_cmp_ne_u32 vcc, s%d, v%d' % (S_XCC, PR + 4))
    a('s_nop 3')
    a('s_cmp_eq_u64 vcc, 0')
    a('s_cselect_b32 s%d, 1, 0' % S_FAST)
    if E('NOFAST'):
        a('s_mov_b32 s%d, 0' % S_FAST)

def next_tile(a):
    if DBGBUF: a('s_add_u32 s%d, s%d, 0x200000' % (S_TOFF, S_TOFF))
    else: a('s_xor_b32 s%d, s%d, 0x200000' % (S_TOFF, S_TOFF))

def colsum(a, vw, vcs):
    a('v_mov_b32 v%d, 0' % vcs)
    a('s_nop 1')
    for r in range(64):
        a('v_dot2_f32_bf16 v%d, v%d, v%d, v%d' % (vcs, vw + r, V_ONES, vcs))
    a.nop(3)

def rowcol_off(a):
    a('s_lshl_b32 s%d, s%d, 15' % (S_T1, S_I))
    a('s_add_u32 s%d, s%d, s%d' % (S_T0, S_XOFF, S_T1))
    a('s_lshl_b32 s%d, s%d, 7' % (S_T1, S_CS))
    a('s_add_u32 s%d, s%d, s%d' % (S_T0, S_T0, S_T1))
    a('s_lshl_b32 s%d, s%d, 6' % (S_T1, S_J))
    a('s_add_u32 s%d, s%d, s%d' % (S_T0, S_T0, S_T1))
    a('s_lshl_b32 s%d, s%d, 5' % (S_T1, S_KH))
    a('s_add_u32 s%d, s%d, s%d' % (S_T0, S_T0, S_T1))

U_Q, U_K, U_V, U_OA, U_WQ, U_OB = range(6)
UPTR = {U_Q: 42, U_K: 42, U_V: 42, U_OA: 44, U_WQ: 48, U_OB: 54}
ULD = {U_Q: 3072, U_K: 3072, U_V: 3072, U_OA: 1024, U_WQ: 1024, U_OB: 1024}
UCOL = {U_Q: 0, U_K: 1024, U_V: 2048, U_OA: 0, U_WQ: 0, U_OB: 0}
def raw_setup(a, uA, uB, R, sbase, sstep, vdma):
    def sel(d, x, y):
        if x == y: a('s_mov_b32 s%d, %s' % (d, x))
        else:
            a('s_mov_b32 s%d, %s' % (d, x))
            a('s_cmp_eq_u32 s%d, 1' % S_KH)
            a('s_cselect_b32 s%d, %s, s%d' % (d, y, d))
    sel(R, 's%d' % UPTR[uA], 's%d' % UPTR[uB])
    sel(R + 1, 's%d' % (UPTR[uA] + 1), 's%d' % (UPTR[uB] + 1))
    sel(R + 2, '0x%x' % (ULD[uA] * 512), '0x%x' % (ULD[uB] * 512))
    a('s_mov_b32 s%d, 0x00020000' % (R + 3))
    sel(sstep, str(ULD[uA]), str(ULD[uB]))
    sel(sbase, str(UCOL[uA]), str(UCOL[uB]))
    a('v_lshrrev_b32 v%d, 2, v%d' % (vdma, V_LANE))
    a('v_mul_lo_u32 v%d, v%d, s%d' % (vdma, vdma, sstep))
    a('v_and_b32 v7, 3, v%d' % V_LANE)
    a('v_lshl_add_u32 v%d, v7, 4, v%d' % (vdma, vdma))
    a('s_lshl_b32 s%d, s%d, 4' % (sstep, sstep))
    a('s_lshl_b32 s%d, s%d, 4' % (S_T0, S_I))
    a('s_mul_i32 s%d, s%d, s%d' % (S_T0, S_T0, sstep))
    a('s_add_u32 s%d, s%d, s%d' % (sbase, sbase, S_T0))
    a('s_add_u32 s%d, s%d, s%d' % (sbase, sbase, S_WOFF))

def raw_rdaddr(a, v, slds):
    a('v_lshrrev_b32 v%d, 5, v%d' % (v, V_LANE))
    a('v_lshlrev_b32 v%d, 8, v%d' % (v, v))
    a('v_bfe_u32 v7, v%d, 2, 2' % V_LANE)
    a('v_lshl_add_u32 v%d, v7, 6, v%d' % (v, v))
    a('v_bfe_u32 v7, v%d, 4, 1' % V_LANE)
    a('v_lshl_add_u32 v%d, v7, 5, v%d' % (v, v))
    a('v_and_b32 v7, 3, v%d' % V_LANE)
    a('v_lshl_add_u32 v%d, v7, 3, v%d' % (v, v))
    a('v_add_u32 v%d, s%d, v%d' % (v, slds, v))

def raw_dma(R, sbase, sstep, vdma, slds, off):
    return ['s_add_u32 m0, s%d, %d' % (slds, off), 's_nop 0',
            'buffer_load_dwordx4 v%d, s[%d:%d], s%d offen lds' % (vdma, R, R + 3, sbase),
            's_add_u32 s%d, s%d, s%d' % (sbase, sbase, sstep)]

def raw_rd(dst, va, off):
    return ['ds_read_b64_tr_b16 v[%d:%d], v%d offset:%d' % (dst, dst + 1, va, off),
            'ds_read_b64_tr_b16 v[%d:%d], v%d offset:%d' % (dst + 2, dst + 3, va, off + 512)]

RW_D, RW_A = 94, 95
def load_w_issue(a, u, lds0, half):
    if half == 0:
        raw_setup(a, u, u, S_IN2, 68, 69, RW_D)
        a('s_and_b32 s70, s%d, 3' % S_W)
        a('s_lshl_b32 s70, s70, 13')
        a('s_add_u32 s70, s70, %d' % lds0)
        raw_rdaddr(a, RW_A, 70)
    for k in range(8):
        for l in raw_dma(S_IN2, 68, 69, RW_D, 70, k * 1024): a(l)

def load_w_read(a, vbase, half):
    for k in range(8):
        for l in raw_rd(vbase + 4 * (8 * half + k), RW_A, k * 1024): a(l)
    a('s_waitcnt lgkmcnt(0)')

def load_w_sync(a, u, vbase, lds0):
    for half in range(2):
        load_w_issue(a, u, lds0, half)
        a('s_waitcnt vmcnt(0)')
        load_w_read(a, vbase, half)

def load_w_ring(a, u, vbase, nslots):
    raw_setup(a, u, u, S_IN2, 68, 69, RW_D)
    raw_rdaddr(a, RW_A, 70)
    for k in range(nslots):
        for l in raw_dma(S_IN2, 68, 69, RW_D, 70, k * 1024): a(l)
    for k in range(16):
        a('s_waitcnt vmcnt(%d)' % min(nslots - 1, 15 - k))
        for l in raw_rd(vbase + 4 * k, RW_A, (k % nslots) * 1024): a(l)
        if k + nslots < 16:
            a('s_waitcnt lgkmcnt(0)')
            for l in raw_dma(S_IN2, 68, 69, RW_D, 70, (k % nslots) * 1024): a(l)
    a('s_waitcnt lgkmcnt(0)')

LDS_W16 = 135168
def dma_w16(a):
    a('s_cmp_eq_u32 s%d, 1' % S_WHICH)
    a('s_cselect_b32 s%d, s52, s50' % S_IN2)
    a('s_cselect_b32 s%d, s53, s51' % (S_IN2 + 1))
    a('s_mov_b32 s%d, 0x4000' % (S_IN2 + 2))
    a('s_mov_b32 s%d, 0x00020000' % (S_IN2 + 3))
    a('s_and_b32 s%d, s%d, 3' % (S_T0, S_W))
    a('s_lshl_b32 s%d, s%d, 12' % (S_T0, S_T0))
    a('s_add_u32 m0, s%d, %d' % (S_T0, LDS_W16))
    a('s_nop 0')
    for k in range(4):
        a('buffer_load_dwordx4 v%d, s[%d:%d], s%d offen offset:%d lds' % (V_L16, S_IN2, S_IN2 + 3, S_T0, k * 1024))

STL = 88
SDG, SDL = 84, 85
def dma_setup(a, all8):
    a('s_lshl_b32 s%d, s%d, 15' % (SDL, S_I))
    a('s_lshl_b32 s%d, s%d, 14' % (S_T2, S_J))
    a('s_add_u32 s%d, s%d, s%d' % (SDL, SDL, S_T2))
    if all8:
        a('s_lshl_b32 s%d, s%d, 11' % (S_T2, S_KH))
        a('s_add_u32 s%d, s%d, s%d' % (SDL, SDL, S_T2))
    a('s_add_u32 s%d, s%d, s%d' % (SDG, S_TOFF, S_XOFF))
    a('s_add_u32 s%d, s%d, s%d' % (SDG, SDG, SDL))

def dma_chunk(a, n):
    a('s_mov_b32 m0, s%d' % SDL)
    a('s_add_u32 s%d, s%d, 4096' % (SDL, SDL))
    for t in range(n):
        a('buffer_load_dwordx4 v%d, %s, s%d offen offset:%d sc1 lds' % (V_L16, WSR, SDG, t * 1024))
    a('s_add_u32 s%d, s%d, 4096' % (SDG, SDG))

def st_issue(a, all8):
    n = 4 if all8 else 8
    a('v_lshlrev_b32 v5, 3, v%d' % V_LANE)
    a('s_lshr_b32 s%d, s%d, 2' % (S_T0, S_XOFF))
    if all8: a('s_lshl_b32 s%d, s%d, 11' % (S_T1, S_W))
    else:
        a('s_and_b32 s%d, s%d, 3' % (S_T1, S_W))
        a('s_lshl_b32 s%d, s%d, 12' % (S_T1, S_T1))
    a('s_add_u32 s%d, s%d, s%d' % (S_T0, S_T0, S_T1))
    a('s_add_u32 s%d, s%d, s%d' % (S_T0, S_T0, S_SOFF))
    for q in range(n):
        a('buffer_load_dwordx2 v[%d:%d], v5, %s, s%d offen offset:%d sc1' % (80 + 2 * q, 81 + 2 * q, WSR, S_T0, q * 512))

def st_partial(a, all8):
    T = 80; n = 4 if all8 else 8
    while n > 1:
        n //= 2
        for q in range(n): pk_add(a, T + 2 * q, T + 2 * q, T + 2 * (q + n))
    if all8: a('s_lshl_b32 s%d, s%d, 9' % (S_T0, S_W))
    else:
        a('s_and_b32 s%d, s%d, 3' % (S_T0, S_W))
        a('s_lshl_b32 s%d, s%d, 9' % (S_T0, S_T0))
    a('s_add_u32 s%d, s%d, %d' % (S_T0, S_T0, LM_STD.stat))
    a('v_lshlrev_b32 v5, 3, v%d' % V_LANE)
    a('v_add_u32 v5, s%d, v5' % S_T0)
    a('ds_write_b64 v5, v[%d:%d]' % (T, T + 1))
    a('s_waitcnt lgkmcnt(0)')

def rs_issue(a, stat, nparts, T=80):
    a('v_lshlrev_b32 v5, 3, v%d' % V_LANE)
    a('v_add_u32 v5, %d, v5' % stat)
    for q in range(nparts // 2):
        a('ds_read2st64_b64 %s, v5 offset0:%d offset1:%d' % (vr(T + 4 * q), 2 * q, 2 * q + 1))

def rs_math(a, nparts, T=80):
    n = nparts
    while n > 2:
        n //= 2
        for q in range(n): pk_add(a, T + 2 * q, T + 2 * q, T + 2 * (q + n))
    pk_add(a, VM, T, T + 2)
    stats_math(a, VM, VR)

def rs_spread(a, frags):
    a('v_mov_b32 v8, v%d' % VM)
    a('v_mov_b32 v9, v%d' % VR)
    a('s_cmp_eq_u32 s%d, 1' % S_I)
    a('s_cselect_b64 s[%d:%d], -1, 0' % (S_T2, S_T3))
    a('v_permlane32_swap_b32 v%d, v8' % VM)
    a('v_permlane32_swap_b32 v%d, v9' % VR)
    a('s_nop 1')
    a('v_cndmask_b32_e64 v%d, v%d, v9, s[%d:%d]' % (VR, VR, S_T2, S_T3))
    if frags:
        a('v_cndmask_b32_e64 v9, v%d, v8, s[%d:%d]' % (VM, S_T2, S_T3))
        a('v_cndmask_b32_e64 v8, v8, v%d, s[%d:%d]' % (VM, S_T2, S_T3))
        make_mfrag(a, 9, V_MF)
        make_mfrag(a, 8, V_MF + 4)

def toggle_bufs(a, stats):
    next_tile(a)
    if stats: a('s_xor_b32 s%d, s%d, 0x%x' % (S_SOFF, S_SOFF, STP ^ (STP + 0x80000)))

def tsb(a):
    if E('TSB'): ts(a)

def loader_path(a, stats, extra=None, hook=None):
    nx = 4 if extra else 0
    cwait(a)
    tsb(a)
    dma_setup(a, False)
    dma_chunk(a, 4)
    dma_chunk(a, 4)
    a('s_waitcnt vmcnt(4)')
    a('s_barrier')
    tsb(a)
    dma_chunk(a, 4)
    if hook: hook('pre')
    a('s_waitcnt vmcnt(4)')
    a('s_barrier')
    tsb(a)
    dma_chunk(a, 4)
    if extra: extra()
    a('s_waitcnt vmcnt(%d)' % (4 + nx))
    a('s_barrier')
    tsb(a)
    if stats:
        rs_issue(a, LM_STD.stat, 4)
    a('s_waitcnt vmcnt(%d)' % nx)
    a('s_barrier')
    tsb(a)
    if hook: hook('main')
    elif stats:
        a('s_waitcnt lgkmcnt(0)')
        rs_math(a, 4)
    if stats: rs_spread(a, False)
    if extra: a('s_waitcnt vmcnt(0)')

def active_path(a, w, stats, all8=False):
    def rd(t):
        b = XBUF[t % 4]
        a('ds_read_b128 %s, v%d offset:%d' % (vr(b), V_XA, t * 1024))
        a('ds_read_b128 %s, v%d offset:%d' % (vr(b + 4), V_XB, t * 1024))
    np_ = 8 if all8 else 4
    if all8:
        cwait(a)
        dma_setup(a, True)
        dma_chunk(a, 2)
        dma_chunk(a, 2)
        st_issue(a, True)
        a('s_waitcnt vmcnt(6)')
    elif stats:
        cwait(a)
        tsb(a)
        st_issue(a, False)
    a('s_barrier')
    tsb(a)
    for t in range(3): rd(t)
    for t in range(16):
        b = XBUF[t % 4]
        if t in (1, 5, 9):
            if all8:
                if t < 9: dma_chunk(a, 2)
                a('s_waitcnt vmcnt(%d)' % {1: 6, 5: 2, 9: 0}[t])
                if t == 5: st_partial(a, True)
            elif stats and t == 5:
                a('s_waitcnt vmcnt(0)')
                st_partial(a, False)
            a('s_barrier')
            tsb(a)
        if t == 6 and stats:
            rs_issue(a, LM_STD.stat, np_)
        if t + 3 < 16:
            rd(t + 3)
        a('s_waitcnt lgkmcnt(%d)' % (2 * min(3, 15 - t)))
        for q, acc in enumerate((ACC0, ACC1)):
            c = '0' if t == 0 else vr(acc, 16)
            a('v_mfma_f32_32x32x16_bf16 %s, %s, %s, %s' % (vr(acc, 16), vr(w + 4 * t), vr(b + 4 * q), c))
        if t == 10 and stats: rs_math(a, np_)
        if t == 11 and stats: rs_spread(a, True)

class ifelse:
    def __init__(s, a): s.a = a; s.L1 = a.newlabel('ie'); s.L2 = a.newlabel('ie')
    def if_set(s, k):
        s.a('s_cmp_lg_u32 s%d, %d' % (S_KH, k)); s.a('s_cbranch_scc1 %s' % s.L1)
    def else_(s):
        s.a('s_branch %s' % s.L2); s.a.label(s.L1)
    def end(s): s.a.label(s.L2)

def kloop(a, w, t0, t1):
    def rd(t):
        b = XBUF[t % 4]
        a('ds_read_b128 %s, v%d offset:%d' % (vr(b), V_XA, t * 1024))
        a('ds_read_b128 %s, v%d offset:%d' % (vr(b + 4), V_XB, t * 1024))
    for t in range(t0, min(t0 + 3, t1)):
        rd(t)
    for t in range(t0, t1):
        b = XBUF[t % 4]
        if t + 3 < t1:
            rd(t + 3)
        a('s_waitcnt lgkmcnt(%d)' % (2 * min(3, t1 - 1 - t)))
        for q, acc in enumerate((ACC0, ACC1)):
            c = '0' if t == 0 else vr(acc, 16)
            a('v_mfma_f32_32x32x16_bf16 %s, %s, %s, %s' % (vr(acc, 16), vr(w + 4 * t), vr(b + 4 * q), c))

def halves_sum(a, v, tmp, op='v_add_f32'):
    a('v_mov_b32 v%d, v%d' % (tmp, v))
    a('s_nop 1')
    a('v_permlane32_swap_b32 v%d, v%d' % (v, tmp))
    a('s_nop 1')
    a('%s v%d, v%d, v%d' % (op, v, v, tmp))

def bf16r(a, v):
    a('v_cvt_pk_bf16_f32 v%d, v%d, v%d' % (v, v, v))
    a('v_and_b32 v%d, 0xffff0000, v%d' % (v, v))

def pk_add(a, d, x, y):
    a('v_pk_add_f32 v[%d:%d], v[%d:%d], v[%d:%d]' % (d, d + 1, x, x + 1, y, y + 1))

def stats_math(a, vm, vrstd):
    a('v_mul_f32 v%d, 0x%x, v%d' % (vm, f2u(1.0 / 512), vm))
    a('v_mul_f32 v%d, 0x%x, v%d' % (vrstd, f2u(1.0 / 512), vrstd))
    a('v_fma_f32 v%d, -v%d, v%d, v%d' % (vrstd, vm, vm, vrstd))
    a('v_max_f32 v%d, 0, v%d' % (vrstd, vrstd))
    bf16r(a, vrstd)
    a('v_add_f32 v%d, 0x%x, v%d' % (vrstd, f2u(1e-5), vrstd))
    bf16r(a, vrstd)
    a('v_sqrt_f32 v%d, v%d' % (vrstd, vrstd))
    a('s_nop 0')
    bf16r(a, vrstd)
    a('v_rcp_f32 v%d, v%d' % (vrstd, vrstd))
    bf16r(a, vm)

def stats_read(a, lm, vrow, T, vm=VM):
    a('v_lshlrev_b32 v%d, 3, v%d' % (vrow, vrow))
    a('v_add_u32 v%d, %d, v%d' % (vrow, lm.stat, vrow))
    for q in range(4):
        a('ds_read2st64_b64 %s, v%d offset0:%d offset1:%d' % (vr(T + 4 * q), vrow, 2 * q, 2 * q + 1))
    a('s_waitcnt lgkmcnt(0)')
    for q in range(4):
        pk_add(a, T + 4 * q, T + 4 * q, T + 4 * q + 2)
    pk_add(a, T, T, T + 4)
    pk_add(a, T + 8, T + 8, T + 12)
    pk_add(a, vm, T, T + 8)
    stats_math(a, vm, vm + 1)

def ln_stats(a, lm, T=V_TMP):
    a('v_and_b32 v5, 31, v%d' % V_LANE)
    a('s_lshl_b32 s%d, s%d, 5' % (S_T0, S_I))
    a('v_add_u32 v5, s%d, v5' % S_T0)
    stats_read(a, lm, 5, T)

def make_mfrag(a, vm, d):
    a('v_cvt_pk_bf16_f32 v%d, -v%d, -v%d' % (d, vm, vm))
    a('v_cvt_pk_bf16_f32 v%d, -v%d, -v%d' % (d + 1, vm, vm))
    a('v_mov_b32 v%d, 0' % (d + 2))
    a('v_mov_b32 v%d, 0' % (d + 3))

def mean_issue(a, lm):
    T = V_ACC + 40
    a('v_and_b32 v5, 31, v%d' % V_LANE)
    a('v_lshlrev_b32 v5, 3, v5')
    a('s_lshl_b32 s%d, s%d, 8' % (S_T0, S_I))
    a('s_add_u32 s%d, s%d, %d' % (S_T0, S_T0, lm.stat))
    a('v_add_u32 v5, s%d, v5' % S_T0)
    a('v_xor_b32 v6, 256, v5')
    for q in range(2):
        for k in range(4):
            a('ds_read2st64_b32 v[%d:%d], v%d offset0:%d offset1:%d' % (T + 8 * q + 2 * k, T + 8 * q + 2 * k + 1, 5 + q, 4 * k, 4 * k + 2))

def mean_finish(a):
    T = V_ACC + 40
    for q in range(2):
        t = T + 8 * q
        pk_add(a, t, t, t + 2)
        pk_add(a, t + 4, t + 4, t + 6)
        pk_add(a, t, t, t + 4)
        a('v_add_f32 v%d, v%d, v%d' % (t, t, t + 1))
        a('v_mul_f32 v%d, 0x%x, v%d' % (t, f2u(1.0 / 512), t))
        make_mfrag(a, t, V_MF + 4 * q)
    a('s_nop 1')

def mean_frags(a, lm):
    mean_issue(a, lm)
    a('s_waitcnt lgkmcnt(0)')
    mean_finish(a)

def stats_load_issue(a, T=V_TMP, tag=None):
    a('v_lshlrev_b32 v5, 3, v%d' % V_LANE)
    a('s_lshr_b32 s%d, s%d, 2' % (S_T0, S_XOFF))
    a('s_lshl_b32 s%d, s%d, 11' % (S_T1, S_W))
    a('s_add_u32 s%d, s%d, s%d' % (S_T0, S_T0, S_T1))
    a('s_add_u32 s%d, s%d, s%d' % (S_T0, S_T0, S_SOFF))
    for q in range(4):
        a.v(tag, 'buffer_load_dwordx2 v[%d:%d], v5, %s, s%d offen offset:%d sc1' % (T + 2 * q, T + 2 * q + 1, WSR, S_T0, q * 512))

def stats_load_finish(a, lm, T=V_TMP):
    pk_add(a, T, T, T + 2)
    pk_add(a, T + 4, T + 4, T + 6)
    pk_add(a, T, T, T + 4)
    a('s_lshl_b32 s%d, s%d, 9' % (S_T0, S_W))
    a('s_add_u32 s%d, s%d, %d' % (S_T0, S_T0, lm.stat))
    a('v_lshlrev_b32 v5, 3, v%d' % V_LANE)
    a('v_add_u32 v5, s%d, v5' % S_T0)
    a('ds_write_b64 v5, v[%d:%d]' % (T, T + 1))
    a('s_xor_b32 s%d, s%d, 0x%x' % (S_SOFF, S_SOFF, STP ^ (STP + 0x80000)))

def make_csfrag(a, vc, d, t):
    a('v_cvt_pk_bf16_f32 v%d, v%d, v%d' % (t, vc, vc))
    a('v_and_b32 v%d, 0xffff0000, v%d' % (t, t))
    a('v_sub_f32 v%d, v%d, v%d' % (t + 1, vc, t))
    a('v_cvt_pk_bf16_f32 v%d, v%d, v%d' % (d, t, t + 1))
    a('v_and_b32 v%d, 0xffff0000, v%d' % (t, d))
    a('v_sub_f32 v%d, v%d, v%d' % (t + 1, t + 1, t))
    a('v_cvt_pk_bf16_f32 v%d, v%d, 0' % (d + 1, t + 1))

def y_correct(a, cf):
    for q, acc in enumerate((ACC0, ACC1)):
        a('v_mfma_f32_32x32x16_bf16 %s, %s, %s, %s' % (vr(acc, 16), vr(cf), vr(V_MF + 4 * q), vr(acc, 16)))

def y_red_write(a, base, own):
    a('s_lshl_b32 s%d, s%d, 13' % (S_T0, S_J))
    a('s_mul_i32 s%d, s%d, 6144' % (S_T1, S_I))
    a('s_add_u32 s%d, s%d, s%d' % (S_T0, S_T0, S_T1))
    a('s_add_u32 s%d, s%d, %d' % (S_T0, S_T0, base))
    a('v_add_u32 v5, s%d, v%d' % (S_T0, V_L16))
    a('v_xor_b32 v6, 4096, v5')
    a.nop(7)
    for q, acc in enumerate((ACC0, ACC1)):
        for nh in range(2):
            if q == 0 and nh == own: continue
            a('ds_write_b128 v%d, %s offset:%d' % (5 + q, vr(acc + 8 * nh), nh * 16384))
            a('ds_write_b128 v%d, %s offset:%d' % (5 + q, vr(acc + 8 * nh + 4), nh * 16384 + 1024))

def y_red_read(a, base, own):
    d = V_ACC
    a('s_lshl_b32 s%d, s%d, 12' % (S_T0, S_W))
    a('s_add_u32 s%d, s%d, %d' % (S_T0, S_T0, base))
    a('v_add_u32 v5, s%d, v%d' % (S_T0, V_L16))
    L1 = a.newlabel('rr'); L2 = a.newlabel('rr')
    a('s_cmp_eq_u32 s%d, %d' % (S_KH, own))
    a('s_cbranch_scc1 %s' % L1)
    for k in range(4):
        a('ds_read_b128 %s, v5 offset:%d' % (vr(d + 4 * k), k * 1024))
    a('s_waitcnt lgkmcnt(0)')
    for r in range(0, 8, 2):
        pk_add(a, d + r, d + r, d + 8 + r)
    a('s_branch %s' % L2)
    a.label(L1)
    a('s_xor_b32 s%d, s%d, 1' % (S_T0, S_I))
    a('s_lshl_b32 s%d, s%d, 11' % (S_T0, S_T0))
    a('v_add_u32 v5, s%d, v5' % S_T0)
    a('ds_read_b128 %s, v5' % vr(ACC1))
    a('ds_read_b128 %s, v5 offset:1024' % vr(ACC1 + 4))
    a('s_waitcnt lgkmcnt(0)')
    for r in range(0, 8, 2):
        pk_add(a, d + r, ACC0 + 8 * own + r, ACC1 + r)
    a.label(L2)

def kv_red_write(a, base):
    a('s_xor_b32 s%d, s%d, 1' % (S_T0, S_W))
    a('s_lshl_b32 s%d, s%d, 12' % (S_T0, S_T0))
    a('s_add_u32 s%d, s%d, %d' % (S_T0, S_T0, base))
    a('v_add_u32 v5, s%d, v%d' % (S_T0, V_L16))
    a.nop(9)
    for k in range(4):
        a('ds_write_b128 v5, %s offset:%d' % (vr(ACC1 + 4 * k), k * 1024))

def barrier(a):
    a('s_waitcnt lgkmcnt(0)')
    a('s_barrier')

def phi_pack(a, acc, dst, tl=9, tmp=None, n=8):
    if tmp is None: tmp = acc + 8
    a('v_mul_f32 v%d, 0x%x, v%d' % (tl, f2u(LOG2E), VR))
    for r in range(n):
        a('v_mul_f32 v%d, v%d, v%d' % (tmp + r, acc + r, tl))
    for r in range(n):
        a('v_exp_f32_e64 v%d, v%d clamp' % (tmp + r, tmp + r))
    for r in range(n):
        a('v_fmaak_f32 v%d, v%d, v%d, 0x%x' % (acc + r, acc + r, VR, f2u(1e-6)))
        a('v_max_f32 v%d, 0x%x, v%d' % (acc + r, f2u(1e-6), acc + r))
    for r in range(0, n, 2):
        pk_add(a, acc + r, acc + r, tmp + r)
    for r in range(n // 2):
        a('v_cvt_pk_bf16_f32 v%d, v%d, v%d' % (dst + r, acc + 2 * r, acc + 2 * r + 1))

def scale_pack(a, acc, vs, dst, n=8):
    for r in range(n):
        a('v_mul_f32 v%d, v%d, v%d' % (acc + r, acc + r, vs))
    for r in range(n // 2):
        a('v_cvt_pk_bf16_f32 v%d, v%d, v%d' % (dst + r, acc + 2 * r, acc + 2 * r + 1))

def store_blk(a, v):
    a('s_add_u32 s%d, s%d, s%d' % (S_T0, S_BLK, S_TOFF))
    fast_store(a, ['buffer_store_dwordx4 %s, v%d, %s, s%d offen@' % (vr(v), V_L16, WSR, S_T0)])

def store_stats(a, tag=None):
    a('v_mov_b32 v6, 0')
    a('v_mov_b32 v7, 0')
    a('s_nop 0')
    for r in range(4):
        a('v_dot2_f32_bf16 v6, v%d, v%d, v6' % (V_RES + r, V_ONES))
        a('v_dot2_f32_bf16 v7, v%d, v%d, v7' % (V_RES + r, V_RES + r))
    a('s_bfe_u32 s%d, s%d, 0x5000a' % (S_T0, S_BLK))
    a('s_lshl_b32 s%d, s%d, 9' % (S_T0, S_T0))
    a('s_lshr_b32 s%d, s%d, 2' % (S_T1, S_XOFF))
    a('s_add_u32 s%d, s%d, s%d' % (S_T0, S_T0, S_T1))
    a('s_lshl_b32 s%d, s%d, 8' % (S_T1, S_I))
    a('s_add_u32 s%d, s%d, s%d' % (S_T0, S_T0, S_T1))
    a('s_add_u32 s%d, s%d, s%d' % (S_T0, S_T0, S_SOFF))
    a('v_mov_b32 v8, v6')
    a('v_mov_b32 v9, v7')
    a('v_lshlrev_b32 v5, 3, v%d' % V_LANE)
    a('s_nop 0')
    a('v_permlane32_swap_b32 v6, v8')
    a('v_permlane32_swap_b32 v7, v9')
    a('s_nop 1')
    a('v_pk_add_f32 v[6:7], v[6:7], v[8:9]')
    a('s_mov_b32 exec_hi, 0')
    fast_store(a, ['buffer_store_dwordx2 v[6:7], v5, %s, s%d offen@' % (WSR, S_T0)])
    a('s_mov_b32 exec_hi, -1')
    if tag: a.vm.append(tag)

def store_x(a):
    store_blk(a, V_RES)
    store_stats(a)

def a1_kv_owner(a, lm):
    a('s_lshl_b32 s%d, s%d, 12' % (S_T0, S_W))
    a('s_add_u32 s%d, s%d, %d' % (S_T0, S_T0, lm.red))
    a('v_add_u32 v5, s%d, v%d' % (S_T0, V_L16))
    for k in range(4):
        a('ds_read_b128 %s, v5 offset:%d' % (vr(ACC1 + 4 * k), k * 1024))
    a('s_lshl_b32 s%d, s%d, 12' % (S_T0, S_J))
    a('s_lshl_b32 s%d, s%d, 13' % (S_T1, S_KH))
    a('s_add_u32 s%d, s%d, s%d' % (S_T0, S_T0, S_T1))
    a('s_lshl_b32 s%d, s%d, 10' % (S_T1, S_I))
    a('s_add_u32 s%d, s%d, s%d' % (S_T0, S_T0, S_T1))
    a('s_add_u32 s%d, s%d, %d' % (S_T0, S_T0, lm.pkv))
    a('v_and_b32 v7, 31, v%d' % V_LANE)
    a('v_lshlrev_b32 v7, 5, v7')
    a('v_lshrrev_b32 v6, 5, v%d' % V_LANE)
    a('v_lshl_add_u32 v7, v6, 4, v7')
    a('v_add_u32 v7, s%d, v7' % S_T0)
    a('s_waitcnt lgkmcnt(0)')
    for r in range(0, 16, 2):
        pk_add(a, ACC0 + r, ACC0 + r, ACC1 + r)
    with role(a, 'A'):
        phi_pack(a, ACC0, V_XF, tmp=ACC1, n=16)
    with role(a, 'B'):
        scale_pack(a, ACC0, VR, V_XF, n=16)
    a('ds_write_b128 v7, %s' % vr(V_XF))
    a('ds_write_b128 v7, %s offset:2048' % vr(V_XF + 4))
    barrier(a)

def head_addrs(a):
    a('s_lshl_b32 s%d, s%d, 2' % (S_T2, S_CS))
    a('s_add_u32 s%d, s%d, s%d' % (S_T2, S_T2, S_W))
    a('s_lshl_b32 s%d, s%d, 14' % (S_T3, S_T2))
    a('s_add_u32 s%d, s%d, s%d' % (S_T3, S_T3, S_LOFF))
    a('s_add_u32 s%d, s%d, 0x%x' % (S_T3, S_T3, KVP_))
    a('s_lshl_b32 s%d, s%d, 11' % (S_T4, S_T2))
    a('s_add_u32 s%d, s%d, s%d' % (S_T4, S_T4, S_LOFF))
    a('s_add_u32 s%d, s%d, 0x%x' % (S_T4, S_T4, ZP_))
    a('s_lshl_b32 s%d, s%d, 12' % (S_T5, S_T2))
    a('s_add_u32 s%d, s%d, 0x%x' % (S_T5, S_T5, HFLAG))

def hello(a):
    head_addrs(a)
    a('s_mov_b32 s64, 1')
    tagval(a, 8, 64)
    a('s_lshl_b32 s%d, s%d, 7' % (S_T0, S_RB))
    a('s_add_u32 s%d, s%d, s%d' % (S_T0, S_T0, S_T5))
    a('v_mov_b32 v5, 0')
    a('s_mov_b64 exec, 1')
    a('buffer_store_dwordx2 v[8:9], v5, %s, s%d offen sc1' % (WSR, S_T0))
    a('s_mov_b64 exec, -1')

def kv_publish(a, lm, first):
    PA, PB, D, D2, ON = V_XF, V_XF + 8, V_ACC, V_ACC + 4, V_ACC + 8
    a('v_lshrrev_b32 v5, 4, v%d' % V_LANE)
    a('v_lshlrev_b32 v5, 8, v5')
    a('v_bfe_u32 v6, v%d, 2, 2' % V_LANE)
    a('v_lshl_add_u32 v5, v6, 5, v5')
    a('v_and_b32 v6, 1, v%d' % V_LANE)
    a('v_lshl_add_u32 v5, v6, 4, v5')
    a('v_bfe_u32 v6, v%d, 1, 1' % V_LANE)
    a('v_lshl_add_u32 v5, v6, 3, v5')
    a('s_lshl_b32 s%d, s%d, 11' % (S_T0, S_W))
    a('s_add_u32 s%d, s%d, %d' % (S_T0, S_T0, lm.pkv))
    a('v_add_u32 v5, s%d, v5' % S_T0)
    for sl in range(2):
        for u in range(2):
            a('ds_read_b64_tr_b16 v[%d:%d], v5 offset:%d' % (PA + 4 * sl + 2 * u, PA + 4 * sl + 2 * u + 1, sl * 1024 + u * 128))
            a('ds_read_b64_tr_b16 v[%d:%d], v5 offset:%d' % (PB + 4 * sl + 2 * u, PB + 4 * sl + 2 * u + 1, 8192 + sl * 1024 + u * 128))
    for r in range(4):
        a('v_mov_b32 v%d, v%d' % (ON + r, V_ONES))
    head_addrs(a)
    a('s_waitcnt lgkmcnt(0)')
    a('v_mfma_f32_16x16x32_bf16 %s, %s, %s, 0' % (vr(D), vr(PA), vr(PB)))
    a('v_mfma_f32_16x16x32_bf16 %s, %s, %s, 0' % (vr(D2), vr(PA), vr(ON)))
    a('v_mfma_f32_16x16x32_bf16 %s, %s, %s, %s' % (vr(D), vr(PA + 4), vr(PB + 4), vr(D)))
    a('v_mfma_f32_16x16x32_bf16 %s, %s, %s, %s' % (vr(D2), vr(PA + 4), vr(ON), vr(D2)))
    a('s_lshl_b32 s%d, s%d, 9' % (S_T0, S_RB))
    a('s_add_u32 s%d, s%d, s%d' % (S_T0, S_T0, S_T3))
    a('s_lshl_b32 s%d, s%d, 6' % (S_T1, S_RB))
    a('s_add_u32 s%d, s%d, s%d' % (S_T1, S_T1, S_T4))
    a('v_and_b32 v6, 48, v%d' % V_LANE)
    a('v_lshlrev_b32 v5, 3, v%d' % V_LANE)
    a('s_nop 2')
    a('v_cvt_pk_bf16_f32 v%d, v%d, v%d' % (D, D, D + 1))
    a('v_cvt_pk_bf16_f32 v%d, v%d, v%d' % (D + 1, D + 2, D + 3))
    for r in (0, 1, 4, 5, 6, 7):
        a('v_min_u32 v%d, -2, v%d' % (D + r, D + r))
    a('buffer_store_dwordx2 v[%d:%d], v5, %s, s%d offen sc1' % (D, D + 1, WSR, S_T0))
    a('s_mov_b32 exec_lo, 0x00010001')
    a('s_mov_b32 exec_hi, 0x00010001')
    a('buffer_store_dwordx4 %s, v6, %s, s%d offen sc1' % (vr(D2), WSR, S_T1))
    a('s_mov_b64 exec, -1')
    ts2(a)
    if first:
        a('s_mov_b32 s64, 1')
        tagbase(a, 65, 64)
        a('v_and_b32 v5, 31, v%d' % V_LANE)
        a('v_lshlrev_b32 v5, 7, v5')
        poll(a, ['buffer_load_dwordx2 v[8:9], v5, %s, s%d offen sc1' % (WSR, S_T5)], tagcmp([8], 65, 7))
    else:
        load_w_issue(a, U_OA, lm.wst, 0)
        a('s_waitcnt vmcnt(0)')
        load_w_read(a, V_W0, 0)
        load_w_issue(a, U_OA, lm.wst, 1)

def kv_gather(a, lm, first, mid):
    head_addrs(a)
    a('s_mov_b32 s71, s%d' % S_T3)
    ZR = V_TMP
    a('v_and_b32 v6, 48, v%d' % V_LANE)
    a('v_and_b32 v5, 15, v%d' % V_LANE)
    a('v_lshl_add_u32 v5, v5, 6, v6')
    poll(a, ['buffer_load_dwordx4 %s, v5, %s, s%d offen sc1' % (vr(ZR), WSR, S_T4),
             'buffer_load_dwordx4 %s, v5, %s, s%d offen offset:1024 sc1' % (vr(ZR + 4), WSR, S_T4)],
         ['v_max3_u32 v7, v%d, v%d, v%d' % (ZR, ZR + 1, ZR + 2), 'v_max3_u32 v8, v%d, v%d, v%d' % (ZR + 3, ZR + 4, ZR + 5),
          'v_max3_u32 v7, v7, v%d, v%d' % (ZR + 6, ZR + 7), 'v_max_u32 v7, v7, v8', 'v_cmp_eq_u32 vcc, -1, v7'])
    ts2(a)
    G = [V_W1 + 4 * k for k in range(16)]
    AC = V_ACC
    SEL = V_ACC + 8
    Lg = a.newlabel('gat')
    a('s_mov_b32 s86, 0')
    a('s_mov_b32 s87, 0')
    a.label(Lg)
    a('s_add_u32 s87, s87, 1')
    a('s_cmp_gt_u32 s87, %d' % SPIN_MAX)
    a('s_cbranch_scc1 L_end')
    a('s_mov_b32 s%d, s71' % S_T0)
    for k in range(16):
        if k and k % 4 == 0:
            a('s_add_u32 s%d, s%d, 4096' % (S_T0, S_T0))
        a('buffer_load_dwordx4 %s, v%d, %s, s%d offen offset:%d sc1' % (vr(G[k]), V_L16, WSR, S_T0, (k % 4) * 1024))
    Ls = a.newlabel('gs')
    a('s_cmp_lg_u32 s86, 0')
    a('s_cbranch_scc1 %s' % Ls)
    a('s_mov_b32 s86, 1')
    if first:
        mid()
    a('s_branch %s_j' % Ls)
    a.label(Ls)
    a('s_waitcnt vmcnt(0)')
    a.label(Ls + '_j')
    nx = 8 if first else 0
    Z2 = V_TMP + 8
    pk_add(a, Z2, ZR, ZR + 4)
    pk_add(a, Z2 + 2, ZR + 2, ZR + 6)
    for sh in (8, 4, 2, 1):
        a('s_nop 1')
        for r in range(4):
            a('v_add_f32_dpp v%d, v%d, v%d row_ror:%d row_mask:0xf bank_mask:0xf' % (Z2 + r, Z2 + r, Z2 + r, sh))
    a('v_cvt_pk_bf16_f32 v%d, v%d, v%d' % (Z2, Z2, Z2 + 1))
    a('v_cvt_pk_bf16_f32 v%d, v%d, v%d' % (Z2 + 1, Z2 + 2, Z2 + 3))
    a('s_mov_b32 s%d, 0x00110011' % S_T0)
    a('s_mov_b32 s%d, 0x00110011' % S_T1)
    a('v_cndmask_b32_e64 v%d, 0, v%d, s[%d:%d]' % (Z2, Z2, S_T0, S_T1))
    a('v_cndmask_b32_e64 v%d, 0, v%d, s[%d:%d]' % (Z2 + 1, Z2 + 1, S_T0, S_T1))
    a('v_and_b32 v5, 15, v%d' % V_LANE)
    a('v_lshlrev_b32 v5, 4, v5')
    a('v_bfe_u32 v6, v%d, 4, 1' % V_LANE)
    a('v_lshl_add_u32 v5, v6, 9, v5')
    a('v_lshrrev_b32 v6, 5, v%d' % V_LANE)
    a('v_lshl_add_u32 v5, v6, 3, v5')
    a('s_lshl_b32 s%d, s%d, 11' % (S_T0, S_W))
    a('s_add_u32 s%d, s%d, %d' % (S_T0, S_T0, lm.pkv))
    a('v_add_u32 v5, s%d, v5' % S_T0)
    a('ds_write_b64 v5, v[%d:%d] offset:256' % (Z2, Z2 + 1))
    a('v_and_b32 v5, 7, v%d' % V_LANE)
    a('v_lshlrev_b32 v5, 5, v5')
    a('v_bfe_u32 v6, v%d, 3, 1' % V_LANE)
    a('v_lshl_add_u32 v5, v6, 9, v5')
    a('v_bfe_u32 v6, v%d, 4, 1' % V_LANE)
    a('v_lshl_add_u32 v5, v6, 3, v5')
    a('v_add_u32 v5, s%d, v5' % S_T0)
    a('v_mov_b32 v7, 0')
    a('v_mov_b32 v%d, 0x00003f80' % SEL)
    a('v_mov_b32 v%d, 0x3f800000' % (SEL + 1))
    for r in range(8): a('v_mov_b32 v%d, 0' % (AC + r))
    for k in range(16):
        a('s_waitcnt vmcnt(%d)' % (15 - k + nx))
        g = G[k]
        a('v_max3_u32 v7, v7, v%d, v%d' % (g, g + 1))
        a('v_max3_u32 v7, v7, v%d, v%d' % (g + 2, g + 3))
        for r in range(4):
            a('v_dot2_f32_bf16 v%d, v%d, v%d, v%d' % (AC + 2 * r, g + r, SEL, AC + 2 * r))
            a('v_dot2_f32_bf16 v%d, v%d, v%d, v%d' % (AC + 2 * r + 1, g + r, SEL + 1, AC + 2 * r + 1))
    a('v_cmp_eq_u32 vcc, -1, v7')
    a('s_cbranch_vccnz %s' % Lg)
    a('s_nop 1')
    for r in range(8): a('v_mov_b32 v%d, v%d' % (AC + 16 + r, AC + r))
    a('s_nop 1')
    for r in range(8): a('v_permlane32_swap_b32 v%d, v%d' % (AC + r, AC + 16 + r))
    a('s_nop 1')
    for r in range(0, 8, 2): pk_add(a, AC + r, AC + r, AC + 16 + r)
    for r in range(4):
        a('v_cvt_pk_bf16_f32 v%d, v%d, v%d' % (AC + r, AC + 2 * r, AC + 2 * r + 1))
    a('ds_write_b64 v5, v[%d:%d]' % (AC, AC + 1))
    a('ds_write_b64 v5, v[%d:%d] offset:16' % (AC + 2, AC + 3))
    if first:
        a('s_waitcnt vmcnt(0)')
        load_w_read(a, V_W0, 0)
        load_w_issue(a, U_OA, lm.wst, 1)

def a1_pq(a, lm):
    y_red_read(a, lm.redq, 1)
    phi_pack(a, V_ACC, V_PQ)

def a1_finish(a, lm):
    a('s_lshl_b32 s%d, s%d, 1' % (S_T0, S_J))
    a('s_add_u32 s%d, s%d, s%d' % (S_T0, S_T0, S_KH))
    a('s_lshl_b32 s%d, s%d, 11' % (S_T0, S_T0))
    a('s_add_u32 s%d, s%d, %d' % (S_T0, S_T0, lm.pkv))
    a('v_add_u32 v6, s%d, v%d' % (S_T0, V_L16))
    a('ds_read_b128 %s, v6' % vr(V_XF + 4))
    a('s_waitcnt lgkmcnt(0)')
    N = V_ACC + 16
    a('v_mfma_f32_32x32x16_bf16 %s, %s, %s, 0' % (vr(N, 16), vr(V_XF + 4), vr(V_PQ)))
    a.nop(12)
    a('v_add_f32 v8, 0x%x, v%d' % (f2u(1e-6), N + 8))
    a('v_rcp_f32 v8, v8')
    a('s_nop 0')
    scale_pack(a, N, 8, V_XF + 8)
    store_blk(a, V_XF + 8)
    csignal(a)

def a1_tail(a, lm, first, qpass, ringbase):
    def mid(isA):
        barrier(a)
        if first:
            a.vreset()
            p1_probe(a)
            if isA:
                load_w_issue(a, U_OA, lm.wst, 0)
                a.vm += ['oa'] * 8
        a1_pq(a, lm)
        if first:
            p1_check(a)
    ie = ifelse(a)
    ie.if_set(1)
    qpass()
    y_red_write(a, lm.redq, 1)
    mid(False)
    ringbase()
    if first:
        colsum(a, V_W1, 9)
        make_csfrag(a, 9, V_CF2, 6)
    ie.else_()
    kv_publish(a, lm, first)
    if not first: mid(True)
    kv_gather(a, lm, first, lambda: mid(True))
    ie.end()
    barrier(a)
    ts2(a)
    a1_finish(a, lm)
    with role(a, 'A'):
        load_w_read(a, V_W0, 1)

def a1_std(a):
    lm = LM_STD
    active_path(a, V_W1, True, True)
    toggle_bufs(a, True)
    y_correct(a, V_CF1)
    kv_red_write(a, lm.red)
    barrier(a)
    ts2(a)
    a1_kv_owner(a, lm)
    ts2(a)
    def qpass():
        kloop(a, V_W0, 0, 16)
        y_correct(a, V_CF0)
    def ring():
        a('s_and_b32 s70, s%d, 3' % S_W)
        a('s_lshl_b32 s70, s70, 14')
        load_w_ring(a, U_WQ, V_W1, 16)
    a1_tail(a, lm, False, qpass, ring)

def warm2(a, vd, vt, tag=None, qcols=False):
    R = 64
    a('s_lshr_b32 s%d, s2, 3' % S_T2)
    a('s_lshl_b32 s%d, s%d, 3' % (S_T2, S_T2))
    a('s_add_u32 s%d, s%d, s%d' % (S_T2, S_T2, S_W))
    a('v_lshlrev_b32 v%d, 7, v%d' % (vt, V_LANE))
    a('s_lshr_b32 s%d, s%d, 6' % (S_T1, S_T2))
    a('s_mov_b32 s%d, s44\ns_mov_b32 s%d, s45\ns_mov_b32 s%d, 0x80000\ns_mov_b32 s%d, 0x00020000' % (R, R + 1, R + 2, R + 3))
    for (k, p) in ((1, 48), (2, 54), (3, 50)):
        a('s_cmp_eq_u32 s%d, %d' % (S_T1, k))
        a('s_cselect_b32 s%d, s%d, s%d' % (R, p, R))
        a('s_cselect_b32 s%d, s%d, s%d' % (R + 1, p + 1, R + 1))
    a('s_cselect_b32 s%d, 0x4000, s%d' % (R + 2, R + 2))
    a('s_cmp_ge_u32 s%d, 224' % S_T2)
    a('s_cselect_b32 s%d, s52, s%d' % (R, R))
    a('s_cselect_b32 s%d, s53, s%d' % (R + 1, R + 1))
    a('s_cselect_b32 s%d, 31, 63' % S_T1)
    a('s_and_b32 s%d, s%d, s%d' % (S_T0, S_T2, S_T1))
    a('s_lshl_b32 s%d, s%d, 13' % (S_T0, S_T0))
    if qcols:
        L = a.newlabel('wq')
        a('s_lshr_b32 s%d, s%d, 6' % (S_T1, S_T2))
        a('s_cmp_lg_u32 s%d, 2' % S_T1)
        a('s_cbranch_scc1 %s' % L)
        a('s_mov_b32 s%d, s42\ns_mov_b32 s%d, s43\ns_mov_b32 s%d, 0x180000' % (R, R + 1, R + 2))
        a('s_mul_i32 s%d, s%d, 3' % (S_T0, S_T0))
        a('v_lshrrev_b32 v%d, 3, v%d' % (vd, V_LANE))
        a('v_mul_u32_u24 v%d, 3072, v%d' % (vd, vd))
        a('v_and_b32 v%d, 7, v%d' % (vt, V_LANE))
        a('v_lshl_add_u32 v%d, v%d, 7, v%d' % (vt, vt, vd))
        a.label(L)
    a.v(tag, 'buffer_load_dword v%d, v%d, s[%d:%d], s%d offen' % (vd, vt, R, R + 3, S_T0))

def p1(a):
    a.vreset()
    srd(a, S_IN2, 40, 0x200000)
    srd(a, S_IN, 42, 0x180000)
    nonce_publish(a)
    VXD = [V_TMP + 16, V_TMP + 17]; VWD = V_TMP + 18
    a('v_lshrrev_b32 v5, 3, v%d' % V_LANE)
    a('v_and_b32 v6, 7, v%d' % V_LANE)
    a('v_lshrrev_b32 v7, 4, v%d' % V_LANE)
    a('v_xor_b32 v8, v6, v7')
    a('v_lshlrev_b32 v8, 4, v8')
    a('v_lshl_add_u32 v%d, v5, 10, v8' % VXD[0])
    a('v_xor_b32 v%d, 64, v%d' % (VXD[1], VXD[0]))
    a('v_lshrrev_b32 v5, 2, v%d' % V_LANE)
    a('v_mul_u32_u24 v5, 3072, v5')
    a('v_and_b32 v6, 3, v%d' % V_LANE)
    a('v_lshl_add_u32 v%d, v6, 4, v5' % VWD)
    SXG, SXL, SWG, SLO, SHI = 85, 87, 88, 89, 90
    a('s_lshl_b32 s%d, s%d, 15' % (S_T0, S_KH))
    a('s_lshl_b32 s%d, s%d, 14' % (S_T1, S_I))
    a('s_add_u32 s%d, s%d, s%d' % (SXG, S_XOFF, S_T0))
    a('s_add_u32 s%d, s%d, s%d' % (SXG, SXG, S_T1))
    a('s_lshl_b32 s%d, s%d, 9' % (S_T1, S_J))
    a('s_add_u32 s%d, s%d, s%d' % (SXG, SXG, S_T1))
    a('s_lshl_b32 s%d, s%d, 14' % (S_T1, S_J))
    a('s_add_u32 s%d, s%d, s%d' % (SXL, S_T0, S_T1))
    a('s_lshl_b32 s%d, s%d, 11' % (S_T1, S_I))
    a('s_add_u32 s%d, s%d, s%d' % (SXL, SXL, S_T1))
    a('s_mul_i32 s%d, s%d, %d' % (SWG, S_I, 256 * 3072))
    a('s_lshl_b32 s%d, s%d, 7' % (S_T0, S_CS))
    a('s_add_u32 s%d, s%d, s%d' % (SWG, SWG, S_T0))
    a('s_lshl_b32 s%d, s%d, 6' % (S_T0, S_J))
    a('s_add_u32 s%d, s%d, s%d' % (SWG, SWG, S_T0))
    a('s_lshl_b32 s94, s%d, 10' % S_KH)
    a('s_add_u32 s94, s94, s%d' % SWG)
    a('s_add_u32 s94, s94, 1024')
    a('s_and_b32 s%d, s%d, 3' % (S_T2, S_W))
    a('s_mul_i32 s%d, s%d, 11264' % (SLO, S_T2))
    a('s_add_u32 s%d, s%d, 65536' % (SLO, SLO))
    a('s_add_u32 s%d, s%d, 3072' % (SHI, SLO))
    a('s_mul_i32 s%d, s%d, 3072' % (S_T0, S_T2))
    a('s_add_u32 s%d, s%d, 110592' % (S_T0, S_T0))
    a('s_lshl_b32 s%d, s%d, 13' % (S_T1, S_T2))
    a('s_add_u32 s%d, s%d, 131072' % (S_T1, S_T1))
    a('s_cmp_eq_u32 s%d, 1' % S_KH)
    a('s_cselect_b32 s%d, s%d, s%d' % (SLO, S_T0, SLO))
    a('s_cselect_b32 s%d, s%d, s%d' % (SHI, S_T1, SHI))
    SROT = 3
    a('s_add_u32 s%d, s%d, s%d' % (SROT, S_RB, S_GRP))
    a('s_and_b32 s%d, s%d, 3' % (SROT, SROT))
    def rotg(g):
        a('s_add_u32 s%d, s%d, %d' % (S_T1, SROT, g))
        a('s_and_b32 s%d, s%d, 3' % (S_T1, S_T1))
    def dma_x(g):
        rotg(g)
        a('s_lshl_b32 s%d, s%d, 7' % (S_T1, S_T1))
        a('s_add_u32 s%d, s%d, s%d' % (S_T1, S_T1, SXG))
        for p in range(2):
            a('s_add_u32 s%d, s%d, %d' % (S_T0, S_T1, p * 8192))
            a('s_add_u32 m0, s%d, %d' % (SXL, g * 4096 + p * 1024))
            a('s_nop 0')
            a.v('x%d' % g, 'buffer_load_dwordx4 v%d, s[12:15], s%d offen lds' % (VXD[p], S_T0))
    def slot(sl): return (SLO, sl * 1024) if sl < 3 else (SHI, (sl - 3) * 1024)
    def dma_w(kt, q=False):
        sb, off = slot(3 + (kt + 2) % 8) if q else slot(kt % 11)
        rotg(kt // 4)
        a('s_mul_i32 s%d, s%d, %d' % (S_T1, S_T1, 64 * 3072))
        a('s_add_u32 s%d, s%d, s%d' % (S_T1, S_T1, SWG if q else 94))
        a('s_add_u32 s%d, s%d, %d' % (S_T0, S_T1, (kt % 4) * 16 * 3072))
        a('s_add_u32 m0, s%d, %d' % (sb, off))
        a('s_nop 0')
        a.v(('q%d' if q else 'w%d') % kt, 'buffer_load_dwordx4 v%d, s[8:11], s%d offen lds' % (VWD, S_T0))
    for g in range(4): dma_x(g)
    for kt in range(3): dma_w(kt)
    a('s_getpc_b64 s[64:65]')
    a.label('L_pcref')
    a('s_lshr_b32 s%d, s2, 3' % S_T0)
    a('s_lshl_b32 s%d, s%d, 3' % (S_T0, S_T0))
    a('s_add_u32 s%d, s%d, s%d' % (S_T0, S_T0, S_W))
    a('s_lshl_b32 s%d, s%d, 8' % (S_T0, S_T0))
    a('s_min_u32 s%d, s%d, L_end - L_pcref - 256' % (S_T0, S_T0))
    a('v_lshlrev_b32 v5, 2, v%d' % V_LANE)
    a('v_add_u32 v5, s%d, v5' % S_T0)
    a.v('cp', 'global_load_dword v%d, v5, s[64:65]' % 127)
    for kt in range(3, 6): dma_w(kt)
    PKR = V_W0
    def side_misc():
        a('v_and_b32 v5, 31, v%d' % V_LANE)
        a('v_lshlrev_b32 v5, 10, v5')
        a('v_lshrrev_b32 v6, 5, v%d' % V_LANE)
        a('v_lshl_add_u32 v5, v6, 3, v5')
        rowcol_off(a)
        a.v('res', 'buffer_load_dwordx2 v[%d:%d], v5, s[12:15], s%d offen' % (V_RES, V_RES + 1, S_T0))
        a.v('res', 'buffer_load_dwordx2 v[%d:%d], v5, s[12:15], s%d offen offset:16' % (V_RES + 2, V_RES + 3, S_T0))
        head_addrs(a)
        a('s_lshl_b32 s%d, s%d, 9' % (S_T0, S_RB))
        a('s_add_u32 s%d, s%d, s%d' % (S_T0, S_T0, S_T3))
        a('s_lshl_b32 s%d, s%d, 6' % (S_T1, S_RB))
        a('s_add_u32 s%d, s%d, s%d' % (S_T1, S_T1, S_T4))
        a('s_cmp_eq_u32 s%d, 0' % S_KH)
        a('s_cselect_b32 s%d, s%d, 0x%x' % (S_T0, S_T0, OOB))
        a('s_cselect_b32 s%d, s%d, 0x%x' % (S_T1, S_T1, OOB))
        PO = V_W0 + 16
        for r in range(4): a('v_mov_b32 v%d, -1' % (PO + r))
        for ly in range(2):
            if ly:
                a('s_add_u32 s%d, s%d, 0x%x' % (S_T0, S_T0, LS))
                a('s_add_u32 s%d, s%d, 0x%x' % (S_T1, S_T1, LS))
            a('s_mov_b32 exec_hi, 0')
            a.v('poi', 'buffer_store_dwordx4 %s, v%d, %s, s%d offen sc1' % (vr(PO), V_L16, WSR, S_T0))
            a('s_mov_b64 exec, 15')
            a.v('poi', 'buffer_store_dwordx4 %s, v%d, %s, s%d offen sc1' % (vr(PO), V_L16, WSR, S_T1))
            a('s_mov_b64 exec, -1')
        a('v_and_b32 v5, 7, v%d' % V_LANE)
        a('v_lshlrev_b32 v5, 21, v5')
        a.v('tlb', 'buffer_load_dword v%d, v5, %s, 0 offen' % (PO + 4, WSR))
    XR = [V_TMP + 20 + q for q in range(4)]
    WR = V_TMP + 24
    a('v_and_b32 v5, 31, v%d' % V_LANE)
    a('v_bfe_u32 v6, v%d, 1, 3' % V_LANE)
    a('v_lshrrev_b32 v7, 5, v%d' % V_LANE)
    a('v_xor_b32 v6, v6, v7')
    a('s_mul_i32 s%d, s%d, 49152' % (S_T0, S_I))
    a('v_lshlrev_b32 v5, 7, v5')
    a('v_add_u32 v5, s%d, v5' % S_T0)
    XR2 = [V_TMP + 12 + q for q in range(4)]
    for q in range(4):
        a('v_xor_b32 v7, %d, v6' % (2 * q))
        a('v_lshl_add_u32 v%d, v7, 4, v5' % XR[q])
        a('v_xor_b32 v%d, 32768, v%d' % (XR2[q], XR[q]))
    a('v_lshrrev_b32 v5, 5, v%d' % V_LANE)
    a('v_lshlrev_b32 v5, 9, v5')
    a('v_bfe_u32 v6, v%d, 2, 2' % V_LANE)
    a('v_lshl_add_u32 v5, v6, 6, v5')
    a('v_bfe_u32 v6, v%d, 4, 1' % V_LANE)
    a('v_lshl_add_u32 v5, v6, 5, v5')
    a('v_and_b32 v6, 3, v%d' % V_LANE)
    a('v_lshl_add_u32 v5, v6, 3, v5')
    a('v_add_u32 v%d, s%d, v5' % (WR, SLO))
    a('v_add_u32 v%d, s%d, v5' % (WR + 1, SHI))
    FB = [V_W1 + 12 * k for k in range(4)]
    CS, SS = V_TMP + 19, V_TMP + 26
    a('v_mov_b32 v%d, 0\nv_mov_b32 v%d, 0' % (SS, SS + 1))
    a('s_lshl_b32 s95, s%d, 1' % S_KH)
    a('s_add_u32 s95, s95, s%d' % S_J)
    def rd_kt(kt, q=False):
        b = FB[kt % 4]
        sl = 3 + (kt + 2) % 8 if q else kt % 11
        areg, off = (WR, sl * 1024) if sl < 3 else (WR + 1, (sl - 3) * 1024)
        a('ds_read_b64_tr_b16 v[%d:%d], v%d offset:%d' % (b + 8, b + 9, areg, off))
        a('ds_read_b64_tr_b16 v[%d:%d], v%d offset:%d' % (b + 10, b + 11, areg, off + 256))
        a('ds_read_b128 %s, v%d offset:%d' % (vr(b), XR[kt & 3], (kt >> 2) * 4096))
        a('ds_read_b128 %s, v%d offset:%d' % (vr(b + 4), XR2[kt & 3], (kt >> 2) * 4096))
    def mm_kt(kt, stats):
        b = FB[kt % 4]; first = kt == 0
        if first: a('v_mov_b32 v%d, 0' % CS)
        for q, acc in enumerate((ACC0, ACC1)):
            a('v_mfma_f32_32x32x16_bf16 %s, %s, %s, %s' % (vr(acc, 16), vr(b + 8), vr(b + 4 * q), '0' if first else vr(acc, 16)))
        for r in range(4):
            a('v_dot2_f32_bf16 v%d, v%d, v%d, v%d' % (CS, b + 8 + r, V_ONES, CS))
        if stats:
            for tile in range(2):
                L = a.newlabel('st')
                a('s_cmp_lg_u32 s95, %d' % (2 * tile + (kt & 1)))
                a('s_cbranch_scc1 %s' % L)
                for r in range(4):
                    x = b + 4 * tile + r
                    a('v_dot2_f32_bf16 v%d, v%d, v%d, v%d' % (SS, x, V_ONES, SS))
                    a('v_dot2_f32_bf16 v%d, v%d, v%d, v%d' % (SS + 1, x, x, SS + 1))
                a.label(L)
    lms = LM(red=0, stat=122880, pkv=0, kvf=0, redq=0)
    a.vwait('x3')
    a('v_add_u32 v5, s%d, v%d' % (SXL, V_L16))
    XS = V_W0
    for g in range(4):
        for p in range(2):
            a('ds_read_b128 %s, v5 offset:%d' % (vr(XS + 8 * g + 4 * p), g * 4096 + p * 1024))
    SA = V_ACC
    for r in range(4): a('v_mov_b32 v%d, 0' % (SA + r))
    a('s_waitcnt lgkmcnt(0)')
    for g in range(4):
        for p in range(2):
            for r in range(4):
                x = XS + 8 * g + 4 * p + r
                a('v_dot2_f32_bf16 v%d, v%d, v%d, v%d' % (SA + 2 * p, x, V_ONES, SA + 2 * p))
                a('v_dot2_f32_bf16 v%d, v%d, v%d, v%d' % (SA + 2 * p + 1, x, x, SA + 2 * p + 1))
    a('v_lshrrev_b32 v5, 3, v%d' % V_LANE)
    a('v_lshlrev_b32 v5, 3, v5')
    a('s_lshl_b32 s%d, s%d, 8' % (S_T0, S_KH))
    a('s_lshl_b32 s%d, s%d, 7' % (S_T1, S_I))
    a('s_add_u32 s%d, s%d, s%d' % (S_T0, S_T0, S_T1))
    a('s_lshl_b32 s%d, s%d, 9' % (S_T1, S_J))
    a('s_add_u32 s%d, s%d, s%d' % (S_T0, S_T0, S_T1))
    a('s_add_u32 s%d, s%d, %d' % (S_T0, S_T0, lms.stat))
    a('v_add_u32 v5, s%d, v5' % S_T0)
    for dp in ('quad_perm:[1,0,3,2]', 'quad_perm:[2,3,0,1]', 'row_half_mirror'):
        a('s_nop 1')
        for r in range(4):
            a('v_add_f32_dpp v%d, v%d, v%d %s row_mask:0xf bank_mask:0xf' % (SA + r, SA + r, SA + r, dp))
    a('ds_write_b64 v5, v[%d:%d]' % (SA, SA + 1))
    a('ds_write_b64 v5, v[%d:%d] offset:64' % (SA + 2, SA + 3))
    barrier(a)
    if E('TSP1'): ts(a)
    for kt in range(17):
        if kt < 16:
            a.vwait('w%d' % kt)
            if E('TSP2'): ts(a)
            rd_kt(kt)
            if kt: a('s_waitcnt lgkmcnt(4)')
        else:
            a('s_waitcnt lgkmcnt(0)')
        if kt >= 1:
            p = kt - 1
            if p < 5: dma_w(p + 11)
            mm_kt(p, False)
        if kt == 0:
            rs_issue(a, lms.stat, 2)
        if kt == 2:
            rs_math(a, 2)
            rs_spread(a, True)
            for r in range(14, 18):
                a('v_mov_b32 v%d, 0' % r)
        if kt == 0:
            for k in range(6, 9): dma_w(k)
        if kt == 1:
            for k in range(9, 11): dma_w(k)
        if kt == 6:
            side_misc()
            nonce_probe(a)
        if kt == int(E('WARMKT', '11')):
            warm2(a, V_W0 + 22, V_W0 + 23, 'wu', True)
        if kt == 12:
            with role(a, 'B'):
                vm = list(a.vm)
                a.vwait('w15')
                for k in range(6): dma_w(k, True)
                a.vm = vm; a.done = -1
    with role(a, 'B'):
        vm = list(a.vm)
        for k in range(6, 8): dma_w(k, True)
        a.vm = vm
    a.nop(3)
    make_csfrag(a, CS, V_CF1, 6)
    a('s_nop 1')
    y_correct(a, V_CF1)
    a('s_barrier')
    ts(a)
    lm = LM(red=65536, stat=0, pkv=98304, kvf=114688, redq=65536, wst=131072)
    kv_red_write(a, lm.red)
    with role(a, 'A'):
        nonce_check(a)
    with role(a, 'B'):
        a.vm += ['q'] * 8; a.done = -1
        nonce_check(a)
    a('v_mov_b32 v18, 0')
    a('v_mov_b32 v19, 0')
    a('s_mov_b32 s%d, 1' % S_GPH)
    with role(a, 0):
        lsignal(a)
    with role(a, 'A'):
        hello(a)
    barrier(a)
    if E('TSP1'): ts(a)
    a1_kv_owner(a, lm)
    ts(a)
    with role(a, 'B'):
        a('s_waitcnt vmcnt(0)')
    def qpass():
        a.vreset()
        for kt in range(17):
            if kt < 16:
                if kt >= 8: a.vwait('q%d' % kt)
                rd_kt(kt, True)
                if kt: a('s_waitcnt lgkmcnt(4)')
            else:
                a('s_waitcnt lgkmcnt(0)')
            if kt >= 1:
                p = kt - 1
                if p < 8: dma_w(p + 8, True)
                mm_kt(p, False)
        a.nop(3)
        make_csfrag(a, CS, V_CF0, 6)
        a('s_nop 1')
        y_correct(a, V_CF0)
    def ring():
        a('s_and_b32 s70, s%d, 3' % S_W)
        a('s_lshl_b32 s70, s70, 14')
        load_w_ring(a, U_WQ, V_W1, 16)
    a1_tail(a, lm, True, qpass, ring)

def resid_add(a, acc):
    for r in range(4):
        a('v_lshlrev_b32 v%d, 16, v%d' % (acc + 8 + 2 * r, V_RES + r))
        a('v_and_b32 v%d, 0xffff0000, v%d' % (acc + 9 + 2 * r, V_RES + r))
    for r in range(0, 8, 2):
        pk_add(a, acc + r, acc + r, acc + 8 + r)
    for r in range(4):
        a('v_cvt_pk_bf16_f32 v%d, v%d, v%d' % (V_RES + r, acc + 2 * r, acc + 2 * r + 1))

def final_store(a):
    srd(a, S_IN2, 56, 0x200000)
    a('s_nop 1')
    a('v_permlane32_swap_b32 v%d, v%d' % (V_RES, V_RES + 2))
    a('v_permlane32_swap_b32 v%d, v%d' % (V_RES + 1, V_RES + 3))
    a('v_and_b32 v5, 31, v%d' % V_LANE)
    a('v_lshlrev_b32 v5, 10, v5')
    a('v_lshrrev_b32 v6, 5, v%d' % V_LANE)
    a('v_lshl_add_u32 v5, v6, 4, v5')
    rowcol_off(a)
    a('buffer_store_dwordx4 %s, v5, s[12:15], s%d offen' % (vr(V_RES), S_T0))

def w16_regs(a, inside):
    a('v_lshrrev_b32 v5, 5, v%d' % V_LANE)
    a('v_lshlrev_b32 v5, 9, v5')
    a('v_bfe_u32 v7, v%d, 4, 1' % V_LANE)
    a('v_lshl_add_u32 v5, v7, 7, v5')
    a('v_bfe_u32 v7, v%d, 2, 2' % V_LANE)
    a('v_lshl_add_u32 v5, v7, 5, v5')
    a('v_and_b32 v7, 3, v%d' % V_LANE)
    a('v_lshl_add_u32 v5, v7, 3, v5')
    a('v_add_u32 v5, %d, v5' % LDS_W16)
    for st in range(16):
        a('ds_read_b64_tr_b16 v[%d:%d], v5 offset:%d' % (V_W1 + 4 * st, V_W1 + 4 * st + 1, st * 1024))
        a('ds_read_b64_tr_b16 v[%d:%d], v5 offset:%d' % (V_W1 + 4 * st + 2, V_W1 + 4 * st + 3, st * 1024 + 256))
    L = a.newlabel('cf2')
    a('s_cmp_lg_u32 s%d, 0' % S_LOFF)
    a('s_cbranch_scc1 %s' % L)
    a('s_waitcnt lgkmcnt(0)')
    colsum(a, V_W1, V_ACC)
    make_csfrag(a, V_ACC, V_CF2, V_ACC + 2)
    a.label(L)

def out_gemm(a, w16=False):
    ie = ifelse(a)
    ie.if_set(0)
    active_path(a, V_W0, False)
    y_red_write(a, 65536, 0)
    ie.else_()
    loader_path(a, False, (lambda: dma_w16(a)) if w16 else None)
    ie.end()
    toggle_bufs(a, False)
    barrier(a)
    ts3(a)
    y_red_read(a, 65536, 0)
    resid_add(a, V_ACC)
    ts3(a)

def b1_compute(a):
    lm = LM_STD
    a('s_add_u32 s%d, s%d, 1' % (S_GPH, S_GPH))
    P = V_ACC
    X16 = [V_XF, V_XF + 4, V_XF + 8, V_XF + 12]
    MFg, CFg = P + 8, V_CF2
    def mk_hook(var):
        def hook(c):
            if c == 'stats':
                a('v_and_b32 v7, 15, v%d' % V_LANE)
                a('s_lshl_b32 s%d, s%d, 4' % (S_T0, S_SLAB))
                a('v_add_u32 v7, s%d, v7' % S_T0)
                a('v_lshlrev_b32 v7, 2, v7')
                a('ds_bpermute_b32 v8, v7, v%d' % VM)
                if var == 0:
                    a('ds_bpermute_b32 v%d, v7, v%d' % (P + 16, VR))
                else:
                    a('v_lshrrev_b32 v7, 4, v%d' % V_LANE)
                    a('v_lshlrev_b32 v7, 2, v7')
                    a('v_add_u32 v7, s%d, v7' % S_T0)
                    a('v_lshlrev_b32 v7, 2, v7')
                    for r in range(4):
                        a('ds_bpermute_b32 v%d, v7, v%d offset:%d' % (P + 16 + r, VR, 4 * r))
                a('v_and_b32 v%d, 15, v%d' % (P + 20, V_LANE))
                a('v_lshlrev_b32 v%d, 4, v%d' % (P + 20, P + 20))
                a('v_bfe_u32 v7, v%d, 4, 1' % V_LANE)
                a('v_lshl_add_u32 v%d, v7, %d, v%d' % (P + 20, 9 if var == 0 else 8, P + 20))
                a('v_lshrrev_b32 v7, 5, v%d' % V_LANE)
                a('v_lshl_add_u32 v%d, v7, 3, v%d' % (P + 20, P + 20))
                if var == 0:
                    a('s_lshl_b32 s71, s%d, 11' % S_RB)
                    a('s_lshr_b32 s%d, s%d, 1' % (S_T1, S_SLAB))
                    a('s_lshl_b32 s%d, s%d, 10' % (S_T1, S_T1))
                    a('s_add_u32 s71, s71, s%d' % S_T1)
                    a('s_and_b32 s%d, s%d, 1' % (S_T1, S_SLAB))
                    a('s_lshl_b32 s%d, s%d, 8' % (S_T1, S_T1))
                    a('s_add_u32 s71, s71, s%d' % S_T1)
                    a('s_add_u32 s71, s71, 0x%x' % KF_)
                else:
                    a('s_lshl_b32 s71, s%d, 2' % S_RB)
                    a('s_add_u32 s71, s71, s%d' % S_SLAB)
                    a('s_lshl_b32 s71, s71, 9')
                    a('s_add_u32 s71, s71, 0x%x' % VF_)
                a('s_add_u32 s71, s71, s%d' % S_LOFF)
                a('s_waitcnt lgkmcnt(0)')
                if var == 0:
                    for r in range(1, 4): a('v_mov_b32 v%d, v%d' % (P + 16 + r, P + 16))
                make_mfrag(a, 8, MFg)
                a('s_nop 1')
                if var == 0: a('v_mfma_f32_16x16x32_bf16 %s, %s, %s, %s' % (vr(P), vr(CFg), vr(MFg), vr(P)))
                else: a('v_mfma_f32_16x16x32_bf16 %s, %s, %s, %s' % (vr(P), vr(MFg), vr(CFg), vr(P)))
                return
            if c == 'pre':
                w16_regs(a, True)
                return
            XB8 = [V_XF + 4 * k for k in range(4)] + [V_TMP + 4 * k for k in range(4)]
            for n in range(8):
                a('ds_read_b128 %s, v6 offset:%d' % (vr(XB8[n]), n * 2048))
            for st in range(16):
                a('s_waitcnt lgkmcnt(%d)' % min(7, 15 - st))
                acc = P + 24 * (st & 1)
                cc = '0' if st < 2 else vr(acc)
                A_, B_ = (vr(V_W1 + 4 * st), vr(XB8[st % 8])) if var == 0 else (vr(XB8[st % 8]), vr(V_W1 + 4 * st))
                a('v_mfma_f32_16x16x32_bf16 %s, %s, %s, %s' % (vr(acc), A_, B_, cc))
                if st + 8 < 16:
                    a('ds_read_b128 %s, v6 offset:%d' % (vr(XB8[st % 8]), (st + 8) * 2048))
            rs_math(a, 4)
            hook('stats')
            a.nop(8)
            pk_add(a, P, P, P + 24)
            pk_add(a, P + 2, P + 2, P + 26)
            for r in range(4):
                a('v_mul_f32 v%d, v%d, v%d' % (P + r, P + r, P + 16 + r))
            a('v_cvt_pk_bf16_f32 v%d, v%d, v%d' % (P + 4, P, P + 1))
            a('v_cvt_pk_bf16_f32 v%d, v%d, v%d' % (P + 5, P + 2, P + 3))
            a('buffer_store_dwordx2 v[%d:%d], v%d, %s, s71 offen sc1' % (P + 4, P + 5, P + 20, WSR))
        return hook
    Lb = a.newlabel('b1b'); L3 = a.newlabel('b13'); L3v = a.newlabel('b13v'); Le = a.newlabel('b1e')
    a('s_cmp_eq_u32 s%d, 1' % S_KH)
    a('s_cbranch_scc1 %s' % Lb)
    a('s_cmp_eq_u32 s%d, 3' % S_W)
    a('s_cbranch_scc1 %s' % L3)
    loader_path(a, True)
    a('s_branch %s' % Le)
    a.label(Lb)
    active_path(a, V_W1, True)
    y_correct(a, V_CF2)
    y_red_write(a, 65536, 1)
    a('s_branch %s' % Le)
    a.label(L3)
    a('v_and_b32 v6, 15, v%d' % V_LANE)
    a('v_lshlrev_b32 v6, 4, v6')
    a('v_bfe_u32 v5, v%d, 4, 1' % V_LANE)
    a('v_lshl_add_u32 v6, v5, 9, v6')
    a('v_lshrrev_b32 v5, 5, v%d' % V_LANE)
    a('v_lshl_add_u32 v6, v5, 10, v6')
    a('s_lshr_b32 s%d, s%d, 1' % (S_T0, S_SLAB))
    a('s_lshl_b32 s%d, s%d, 15' % (S_T0, S_T0))
    a('s_and_b32 s%d, s%d, 1' % (S_T1, S_SLAB))
    a('s_lshl_b32 s%d, s%d, 8' % (S_T1, S_T1))
    a('s_add_u32 s%d, s%d, s%d' % (S_T0, S_T0, S_T1))
    a('v_add_u32 v6, s%d, v6' % S_T0)
    a('s_cmp_eq_u32 s%d, 1' % S_WHICH)
    a('s_cbranch_scc1 %s' % L3v)
    loader_path(a, True, hook=mk_hook(0))
    a('s_branch %s' % Le)
    a.label(L3v)
    loader_path(a, True, hook=mk_hook(1))
    a.label(Le)
    tsb(a)
    toggle_bufs(a, True)
    attn_pre(a)
    barrier(a)
    tsb(a)
    with role(a, 3):
        a('s_waitcnt vmcnt(0)')
        lsignal(a)
    AQ = V_ACC
    y_red_read(a, 65536, 1)
    scale_pack(a, AQ, VR, V_XF)
    for r in range(4):
        a('v_lshlrev_b32 v%d, 16, v%d' % (AQ + 2 * r, V_XF + r))
        a('v_and_b32 v%d, 0xffff0000, v%d' % (AQ + 2 * r + 1, V_XF + r))
    for r in range(8):
        a('v_mul_f32 v%d, 0x%x, v%d' % (AQ + r, f2u(CQ), AQ + r))
    for r in range(4):
        a('v_cvt_pk_bf16_f32 v%d, v%d, v%d' % (A_Q + r, AQ + 2 * r, AQ + 2 * r + 1))

PRIO_LO = eval(E('PRIO_LO', '(4, 12, 23, 53)'))
PRIO_HI = eval(E('PRIO_HI', '(7, 15, 28)'))
def attn_loop(a):
    a.lreset()
    def rdK(t):
        if t < 64: a.l_('k%d' % t, 'ds_read_b128 %s, v%d offset:%d' % (vr(A_K[t % 2]), V_L16, t * 1024))
    def rdV(t):
        if t >= 64: return
        a('s_mov_b64 exec, s[%d:%d]' % (S_MASK_LO16, S_MASK_LO16 + 1))
        a.l_('v%d' % t, 'ds_read_b128 %s, v%d offset:%d' % (vr(A_V[t % 2]), A_VA, t * 1024))
        a.l_('v%d' % t, 'ds_read_b128 %s, v%d offset:%d' % (vr(A_V[t % 2] + 4), A_VA, t * 1024 + 512))
        a('s_mov_b64 exec, -1')
    def qk(t):
        a('v_mfma_f32_32x32x16_bf16 %s, %s, %s, %s' % (vr(A_S[t % 2], 16), vr(A_K[t % 2]), vr(A_Q), vr(A_BIAS, 16)))
    def pv(vb, pb, first=False):
        a('v_mfma_f32_32x32x16_bf16 %s, %s, %s, %s' % (vr(A_O, 16), vr(vb), vr(pb), '0' if first else vr(A_O, 16)))
    ex = lambda r: a('v_exp_f32 v%d, v%d' % (r, r))
    class first_pass:
        def __enter__(s_):
            s_.L = a.newlabel('fp')
            a('s_cmp_lg_u32 s%d, 0' % S_PASS)
            a('s_cbranch_scc1 %s' % s_.L)
        def __exit__(s_, *e): a.label(s_.L)
    a('v_and_b32 v%d, 15, v%d' % (A_VA, V_LANE))
    a('v_lshlrev_b32 v%d, 4, v%d' % (A_VA, A_VA))
    a('v_lshrrev_b32 v7, 5, v%d' % V_LANE)
    a('v_lshl_add_u32 v%d, v7, 8, v%d' % (A_VA, A_VA))
    a('v_add_u32 v%d, 65536, v%d' % (A_VA, A_VA))
    rdK(0); rdK(1); rdV(0)
    WD, WA = 10, 11
    a('s_lshl_b32 s70, s%d, 12' % S_W)
    a('s_add_u32 s70, s70, 131072')
    a('s_setprio 1')
    with role(a, 'B'):
        a('s_setprio 2')
    a.lwait('k0')
    qk(0)
    raw_rdaddr(a, WA, 70)
    a('s_nop 1')
    T0 = 29
    def wskip(cond_all):
        a('s_cmp_lg_u32 s%d, 0' % S_LOFF)
        a('s_cselect_b32 s%d, 0x%x, 0' % (S_T0, OOB))
        if not cond_all:
            a('s_cmp_eq_u32 s%d, 0' % S_KH)
            a('s_cselect_b32 s%d, 0, s%d' % (S_T0, S_T0))
        a('s_add_u32 s68, s68, s%d' % S_T0)
    for t in range(64):
        S = A_S[t % 2]
        cv = lambda r: a('v_cvt_pk_bf16_f32 v%d, v%d, v%d' % (A_P + r, S + 2 * r, S + 2 * r + 1))
        def xprobe():
            a('v_and_b32 v7, 7, v%d' % V_LANE)
            a('v_lshlrev_b32 v7, 7, v7')
            a('s_mov_b32 s66, 0x%x' % XFLAG)
            a('buffer_load_dwordx2 v[8:9], v7, %s, s66 offen sc1' % WSR)
        def xcheck(slots):
            Lr = a.newlabel('xr')
            tagbase(a, 65, S_GPH)
            m = sum(1 << sl for sl in slots)
            a('s_lshl_b32 s64, %d, s%d' % (m, S_GRP))
            chk = ['s_mov_b32 exec_lo, s64', 's_mov_b32 exec_hi, 0'] + tagcmp([8], 65, 5) + ['s_mov_b64 exec, -1']
            a('s_waitcnt vmcnt(0)')
            for c in chk: a(c)
            a('s_cbranch_vccz %s' % Lr)
            a('v_and_b32 v7, 7, v%d' % V_LANE)
            a('v_lshlrev_b32 v7, 7, v7')
            poll(a, ['buffer_load_dwordx2 v[8:9], v7, %s, s66 offen sc1' % WSR], chk, sleep=1)
            a.label(Lr)
        if t in (2, 9, 20):
            with first_pass(): xprobe()
        if t == 4:
            with first_pass():
                xcheck([1]); kv_dma(a, [1])
        if t == 11:
            with first_pass():
                xcheck([2, 3]); kv_dma(a, [2, 3])
        if t == 22:
            with first_pass():
                xcheck([4, 5, 6, 7]); kv_dma(a, range(4, 8))
        if t in (7, 15, 28):
            with first_pass():
                a('s_waitcnt vmcnt(0)')
                a('s_barrier')
            if t in (7, 15): rdK(t + 1)
        if E('TSA') and t in (0, 3, 4, 7, 15, 32, 50, 63): ts(a)
        if t in PRIO_LO:
            with role(a, 'B'):
                a('s_setprio 0')
        if t in PRIO_HI:
            with role(a, 'B'):
                a('s_setprio 2')
        if t == T0 + int(E('WARMT', '0')):
            Lw = a.newlabel('wm')
            a('s_cmp_lg_u32 s%d, 0' % S_LOFF)
            a('s_cbranch_scc1 %s' % Lw)
            warm2(a, 8, 7)
            a.label(Lw)
        if t == T0:
            raw_setup(a, U_OB, U_Q, S_IN2, 68, 69, WD); wskip(False)
        if t == T0 + 16:
            raw_setup(a, U_K, U_V, S_IN2, 68, 69, WD); wskip(True)
        if t + 1 < 64:
            a.lwait('k%d' % (t + 1))
            qk(t + 1)
        if t not in (6, 14): rdK(t + 2)
        ex(S + 0); ex(S + 1); ex(S + 2); ex(S + 3); cv(0); ex(S + 4); ex(S + 5); cv(1); ex(S + 6); ex(S + 7); cv(2)
        ex(S + 8); ex(S + 9); cv(3); ex(S + 10); ex(S + 11)
        a.lwait('v%d' % t)
        pv(A_V[t % 2], A_P, t == 0)
        p = t - T0
        if 0 <= p < 32:
            if p >= 4: a.lwait('w%d' % (p - 4))
            for l in raw_dma(S_IN2, 68, 69, WD, 70, (p % 4) * 1024): a(l)
        cv(4); ex(S + 12); ex(S + 13); cv(5); ex(S + 14); ex(S + 15); cv(6)
        p = t - T0 - 2
        if 0 <= p < 32:
            a('s_waitcnt vmcnt(%d)' % min(2, 31 - p))
        else:
            a('s_nop 0')
        cv(7)
        if 0 <= p < 32:
            for l in raw_rd((V_W0 if p < 16 else V_W1) + 4 * (p % 16), WA, (p % 4) * 1024): a.l_('w%d' % p, l)
        else:
            a('s_nop 1')
        pv(A_V[t % 2] + 4, A_P + 4)
        rdV(t + 1)
    a('s_setprio 0')
    a.nop(16)

def attn_pre(a):
    a('s_mov_b32 s%d, 0x00110000' % S_T0)
    a('s_mov_b32 s%d, 0x00110000' % S_T1)
    a('v_cndmask_b32_e64 v7, 0, v%d, s[%d:%d]' % (V_ONES, S_T0, S_T1))
    for b in range(2):
        for r in range(8):
            a('v_mov_b32 v%d, v7' % (A_V[b] + r))

def kv_dma(a, slots):
    a('s_lshl_b32 s67, s%d, 10' % S_W)
    for sl in slots:
        a('s_add_u32 s%d, s%d, %d' % (S_T0, S_GRP, sl))
        a('s_and_b32 s%d, s%d, 7' % (S_T0, S_T0))
        a('s_lshl_b32 s%d, s%d, 13' % (S_T0, S_T0))
        a('s_add_u32 s%d, s%d, s67' % (S_T0, S_T0))
        a('s_add_u32 s%d, s%d, s%d' % (S_T0, S_T0, S_LOFF))
        a('s_add_u32 s%d, s%d, 0x%x' % (S_T0, S_T0, KF_))
        a('s_add_u32 m0, s67, %d' % (sl * 8192))
        a('s_add_u32 s%d, s%d, 0x10000' % (S_T1, S_T0))
        a('buffer_load_dwordx4 v%d, %s, s%d offen sc1 lds' % (V_L16, WSR, S_T0))
        a('s_add_u32 m0, s67, %d' % (65536 + sl * 8192))
        a('s_nop 0')
        a('buffer_load_dwordx4 v%d, %s, s%d offen sc1 lds' % (V_L16, WSR, S_T1))

def attn_inputs(a):
    with role(a, 0):
        lwait(a)
        L = a.newlabel('ld')
        a('s_lshr_b32 s%d, s2, 3' % S_T0)
        a('s_cmp_lg_u32 s%d, 0' % S_T0)
        a('s_cbranch_scc1 %s' % L)
        tagval(a, 6, S_GPH)
        a('s_lshl_b32 s%d, s%d, 7' % (S_T0, S_GRP))
        a('s_add_u32 s%d, s%d, 0x%x' % (S_T0, S_T0, XFLAG))
        a('v_mov_b32 v5, 0')
        a('s_mov_b64 exec, 1')
        a('buffer_store_dwordx2 v[6:7], v5, %s, s%d offen sc1' % (WSR, S_T0))
        a('s_mov_b64 exec, -1')
        a.label(L)
    barrier(a)
    ts(a)
    kv_dma(a, [0])
    a('s_waitcnt vmcnt(0)')
    a('s_barrier')

def attn_compute(a):
    a('ds_read_b128 %s, v%d' % (vr(A_K[0]), V_L16))
    a('s_waitcnt lgkmcnt(0)')
    a('v_mfma_f32_32x32x16_bf16 %s, %s, %s, 0' % (vr(A_S[0], 16), vr(A_K[0]), vr(A_Q)))
    a.nop(12)
    a('v_max3_f32 v10, v%d, v%d, v%d' % (A_S[0], A_S[0] + 1, A_S[0] + 2))
    a('v_max3_f32 v9, v%d, v%d, v%d' % (A_S[0] + 3, A_S[0] + 4, A_S[0] + 5))
    for r in range(6, 14, 4):
        a('v_max3_f32 v10, v10, v%d, v%d' % (A_S[0] + r, A_S[0] + r + 1))
        a('v_max3_f32 v9, v9, v%d, v%d' % (A_S[0] + r + 2, A_S[0] + r + 3))
    a('v_max3_f32 v10, v10, v%d, v%d' % (A_S[0] + 14, A_S[0] + 15))
    a('v_max_f32 v10, v10, v9')
    halves_sum(a, 10, 9, 'v_max_f32')
    a('v_sub_f32 v10, 0, v10')
    a('s_mov_b32 s%d, 0' % S_PASS)
    Lrun = a.newlabel('at_run'); Lok = a.newlabel('at_ok'); Lmx = a.newlabel('at_mx')
    a.label(Lrun)
    for r in range(16):
        a('v_mov_b32 v%d, v10' % (A_BIAS + r))
    a('s_nop 1')
    attn_loop(a)
    a('s_cmp_eq_u32 s%d, 1' % S_PASS)
    a('s_cbranch_scc1 %s' % Lok)
    a('v_max3_f32 v8, abs(v%d), abs(v%d), abs(v%d)' % (A_O, A_O + 1, A_O + 2))
    a('v_max3_f32 v9, abs(v%d), abs(v%d), abs(v%d)' % (A_O + 3, A_O + 4, A_O + 5))
    a('v_max3_f32 v8, abs(v%d), abs(v%d), v8' % (A_O + 6, A_O + 7))
    a('v_max_f32 v8, v8, v9')
    a('v_cmp_nle_f32 vcc, 0x%x, v%d' % (f2u(2.0 ** -89), A_O + 8))
    a('v_cmp_nge_f32 s[64:65], v%d, v%d' % (7, A_O + 8)) if False else None
    a('s_mov_b64 s[64:65], vcc')
    a('v_cmp_nge_f32 vcc, 0x%x, v%d' % (f2u(2.0 ** 90), A_O + 8))
    a('s_nop 3')
    a('s_or_b64 s[64:65], s[64:65], vcc')
    a('v_cmp_nge_f32 vcc, 0x%x, v8' % f2u(2.0 ** 126))
    a('s_nop 3')
    a('s_or_b64 s[64:65], s[64:65], vcc')
    a('s_cmp_eq_u64 s[64:65], 0')
    a('s_cbranch_scc1 %s' % Lok)
    a('s_mov_b32 s%d, 1' % S_PASS)
    a('v_mov_b32 v10, 0xff800000')
    a('v_mov_b32 v%d, v%d' % (A_KA, V_L16))
    a('s_mov_b32 s%d, 0' % S_CNT)
    a.label(Lmx)
    a('ds_read_b128 %s, v%d' % (vr(A_K[0]), A_KA))
    a('s_waitcnt lgkmcnt(0)')
    a('v_mfma_f32_32x32x16_bf16 %s, %s, %s, 0' % (vr(A_S[0], 16), vr(A_K[0]), vr(A_Q)))
    a.nop(16)
    for r in range(0, 16, 2):
        a('v_max3_f32 v10, v10, v%d, v%d' % (A_S[0] + r, A_S[0] + r + 1))
    a('v_add_u32 v%d, 1024, v%d' % (A_KA, A_KA))
    a('s_add_u32 s%d, s%d, 1' % (S_CNT, S_CNT))
    a('s_cmp_lt_u32 s%d, 64' % S_CNT)
    a('s_cbranch_scc1 %s' % Lmx)
    halves_sum(a, 10, 9, 'v_max_f32')
    a('v_sub_f32 v10, 0, v10')
    a('s_branch %s' % Lrun)
    a.label(Lok)
    a('v_rcp_f32 v8, v%d' % (A_O + 8))
    a('s_nop 0')
    scale_pack(a, A_O, 8, A_P)
    store_blk(a, A_P)
    csignal(a)

def header():
    ref = open('cdna_kernels/%s.s.ref' % NAME).read().split('\n')
    out = []
    for l in ref:
        if not l.startswith(';'): break
        if '@launch' in l: continue
        out.append(l)
    return out

DOC = """
Generated by a hand-written Python generator (work/gen_final.py).  One persistent kernel, 256 workgroups x 8 waves (one per CU).
Workgroup (rb, cs) owns rows 64rb..64rb+63 and columns 64cs..64cs+63 of every activation; wave (i,j,nh) owns a 32-row x 16-column block.
LayerNorm is folded into the following GEMM (row statistics from the producers, mean correction as one extra MFMA, rstd in the epilogue).
Activations travel between workgroups in MFMA fragment order through d_ws; hand-offs use 64-bit flags tagged with a per-launch nonce
(published through d_debug); same-XCD groups (checked at run time via XCC_ID) use L2-local stores, any other placement uses write-through.
Softmax: exp2(s - m0) with m0 = row max over the first key tile; the row sum / accumulators are range-checked afterwards and the
wave falls back to the exact row max when the stand-in was unsafe.  Row sums come from a ones-row in the V operand.
"""

def main(path):
    a = Asm()
    for h in header(): a.raw(h)
    a.raw('; @launch grid=(256,1,1) block=(512,1,1) lds=%d' % LDS_TOTAL)
    for l in DOC.strip().split('\n'): a.raw('; ' + l)
    a.raw('.amdgcn_target "amdgcn-amd-amdhsa--gfx950"')
    a.raw('.text')
    name = NAME + '_kernel'
    prologue(a, name)
    ts(a)
    p1(a)
    ts(a)
    a.label('L_layer')
    out_gemm(a, True)
    store_x(a)
    csignal(a)
    ts(a)
    b1_compute(a)
    ts(a)
    attn_inputs(a)
    ts(a)
    attn_compute(a)
    ts(a)
    out_gemm(a)
    a('s_cmp_lg_u32 s%d, 0' % S_LOFF)
    a('s_cbranch_scc1 L_final')
    a('s_mov_b32 s%d, 0x%x' % (S_LOFF, LS))
    store_x(a)
    csignal(a)
    ts(a)
    a1_std(a)
    ts(a)
    a('s_branch L_layer')
    a.label('L_final')
    final_store(a)
    a('s_waitcnt vmcnt(0)')
    ts(a)
    ts_flush(a)
    epilogue(a, name)
    open(path, 'w').write(a.text())

if __name__ == '__main__':
    main(sys.argv[1] if len(sys.argv) > 1 else 'cdna_kernels/%s.s' % NAME)
```
